```python
import torch

def _softmax(x, axis=-1):
    return torch.softmax(x, dim=axis)
def _gelu(x):
    return torch.nn.functional.gelu(x, approximate="tanh")
def _silu(x):
    return torch.nn.functional.silu(x)
def _sigmoid(x):
    return torch.sigmoid(x)
def _layernorm(x, axis=-1, eps=1e-5):
    m = x.mean(dim=axis, keepdim=True)
    v = x.var(dim=axis, keepdim=True, unbiased=False)
    return (x - m) / torch.sqrt(v + eps)
def _scatter_add(tgt, idx, src, axis=0):
    return tgt.clone().index_add_(axis, idx, src)
def _segment_sum(src, seg, n):
    out = torch.zeros((n,) + src.shape[1:], dtype=src.dtype)
    return out.index_add_(0, seg, src)
def _pad(x, pw):
    flat = tuple(v for pair in reversed(pw) for v in pair)
    return torch.nn.functional.pad(x, flat)

kernel_name = 'standalone__molecular_angular_gemnet__graph'

def setup_inputs():

    _w = (lambda a: (lambda t: t.to(torch.bfloat16) if t.is_floating_point() else t)(torch.as_tensor(a)))
    N, deg, De, L = 12500, 32, 4, 1
    E = N * deg
    T = E * deg
    NR = 8
    dist = torch.rand(E).to(float)
    angle = (torch.rand(T) * torch.pi).to(float)
    centers = torch.linspace(0.0, 1.0, NR).to(float)
    ang_freq = torch.arange(1, L + 1).to(float)
    return {
        "m": _w((lambda *s: torch.randn(*s, dtype=torch.bfloat16) * 0.05)(E, De)),
        "idx_in": _w((lambda lo, hi, *s: torch.randint(lo, hi, s))(0, E, T).to(torch.int64)),
        "idx_out": _w((lambda lo, hi, *s: torch.randint(lo, hi, s))(0, E, T).to(torch.int64)),
        "dist": _w(dist),
        "angle": _w(angle),
        "centers": _w(centers),
        "ang_freq": _w(ang_freq),
        "w_rbf": _w((lambda *s: torch.randn(*s, dtype=torch.bfloat16) * 0.4)(NR, De)),
        "w_sbf": _w((lambda *s: torch.randn(*s, dtype=torch.bfloat16) * 0.4)(NR * L, De)),
        "w_down": _w((lambda *s: torch.randn(*s, dtype=torch.bfloat16) * 0.4)(De, De)),
        "w_up": _w((lambda *s: torch.randn(*s, dtype=torch.bfloat16) * 0.4)(De, De)),
    }

def reference(m, idx_in, idx_out, dist, angle, centers, ang_freq, w_rbf, w_sbf, w_down, w_up):
    E, De = m.shape[0], m.shape[1]
    NR = centers.shape[0]
    L = ang_freq.shape[0]
    rbf = torch.exp(-10.0 * (dist[:, None] - centers[None, :]) ** 2)
    cbf = torch.cos(ang_freq[None, :] * angle[:, None])
    rbf_t = rbf[idx_out]
    sbf = torch.reshape(rbf_t[:, :, None] * cbf[:, None, :], (-1, NR * L))
    x = (m[idx_in] @ w_down) * (sbf @ w_sbf)
    agg = _segment_sum(x, idx_out, E)
    return m + (agg @ w_up) * (rbf @ w_rbf)
```

```python
import struct, sys, math

E = 400000
T = 12800000
NT_TILES = 1024
S = 12500
UNITS = S // 4
B1 = 448
R1 = 7
RS = 75264
W1OFF = 50000
OFF_BASE = 0x5000000
MAX_BASE = OFF_BASE + NT_TILES * 1024
WS_BYTES = 268435456
L_HIST = 0
L_MAX = L_HIST + 1024
L_ST = 1152
LDS1 = L_ST + 75008

OPT = dict(ld_in='nt', st_ws='', ld_ent='nt', ld_g='', D=4)
for a in sys.argv[2:]:
    k, v = a.split('=')
    OPT[k] = int(v) if v.lstrip('-').isdigit() else v

def f32bits(x): return struct.unpack('<I', struct.pack('<f', x))[0]

out = []
def A(s): out.append('    ' + s)
def L(s): out.append(s + ':')
def C(s): out.append('    ; ' + s)

def srd(d, b, nbytes, stride=0):
    A(f's_mov_b32 s{d}, s{b}')
    if stride:
        A(f's_and_b32 s{d+1}, s{b+1}, 0xffff')
        A(f's_or_b32 s{d+1}, s{d+1}, {stride<<16:#x}')
    else:
        A(f's_and_b32 s{d+1}, s{b+1}, 0xffff')
    A(f's_mov_b32 s{d+2}, {nbytes:#x}')
    A(f's_mov_b32 s{d+3}, 0x00020000')

def dpp_reduce(op, v):
    for sh in (1, 2, 4, 8):
        A('s_nop 1')
        A(f'{op}_dpp v{v}, v{v}, v{v} row_shr:{sh} row_mask:0xf bank_mask:0xf bound_ctrl:0')
    A('s_nop 1')
    A(f'{op}_dpp v{v}, v{v}, v{v} row_bcast:15 row_mask:0xa bank_mask:0xf')
    A('s_nop 1')
    A(f'{op}_dpp v{v}, v{v}, v{v} row_bcast:31 row_mask:0xc bank_mask:0xf')

inv2pi = 1.0 / (2 * math.pi)
hi_bits = f32bits(inv2pi) & 0xFFFFFF00
C_HI = struct.unpack('<f', struct.pack('<I', hi_bits))[0]
C_LO = inv2pi - C_HI

hdr = open('standalone__molecular_angular_gemnet__graph.s.ref').read().split('; Override launch')[0]
out.append(hdr.rstrip())
out.append(f'; @launch kernel=part_kernel grid=({NT_TILES},1,1) block=({B1},1,1) lds={LDS1}')
LDS2 = 4 * 1568 * 8 + 64
out.append(f'; @launch kernel=acc_kernel grid=(256,1,1) block=(1024,1,1) lds={LDS2}')
out.append('.amdgcn_target "amdgcn-amd-amdhsa--gfx950"')
out.append('.text')

out.append('.globl part_kernel')
out.append('.p2align 8')
out.append('.type part_kernel,@function')
L('part_kernel')
A(f's_cmp_ge_u32 s2, {NT_TILES}')
A('s_cbranch_scc1 P_END')
A('s_load_dwordx4 s[4:7], s[0:1], 0')
A('s_load_dwordx2 s[8:9], s[0:1], 16')
A('s_load_dwordx2 s[10:11], s[0:1], 32')
A('s_load_dwordx2 s[12:13], s[0:1], 48')
A('s_load_dwordx2 s[14:15], s[0:1], 104')
S_IN, S_OUT, S_ANG, S_WS, S_M = 16, 20, 24, 28, 32
A('v_lshlrev_b32 v1, 4, v0')
A('v_lshlrev_b32 v2, 3, v0')
A('v_lshlrev_b32 v3, 2, v0')
A('v_mov_b32 v4, 0')
A('v_mov_b32 v5, 4')
A('s_waitcnt lgkmcnt(0)')
A('s_load_dword s36, s[12:13], 0')
srd(S_IN, 6, T * 4); srd(S_OUT, 8, T * 4); srd(S_ANG, 10, T * 2); srd(S_WS, 14, WS_BYTES); srd(S_M, 4, E * 8)
A(f's_mul_i32 s37, s2, {S*4}')
A(f's_mul_i32 s38, s2, {S*2}')
VM = 8
VIN = 16
VOUT = VIN + 28
VANG = VOUT + 28
VRK = VANG + 14
VT = VRK + 28
assert VT + 12 <= 128
A('s_cmp_ge_u32 s2, 256')
A('s_cbranch_scc1 P_NOM')
A(f's_mul_i32 s39, s2, {2*B1*16}')
A(f'buffer_load_dwordx4 v[{VM}:{VM+3}], v1, s[{S_M}:{S_M+3}], s39 offen')
A(f's_add_u32 s39, s39, {B1*16}')
A(f'buffer_load_dwordx4 v[{VM+4}:{VM+7}], v1, s[{S_M}:{S_M+3}], s39 offen')
L('P_NOM')
last_valid = UNITS - (R1 - 1) * B1
A(f'v_cmp_gt_u32 s[40:41], {last_valid}, v0' if last_valid <= 64 else f's_movk_i32 s42, {last_valid}')
if last_valid > 64:
    A('v_cmp_gt_u32 s[40:41], s42, v0')
ldf = OPT['ld_in']
for k in range(R1):
    if k == R1 - 1:
        A('s_mov_b64 exec, s[40:41]')
    A(f'buffer_load_dwordx4 v[{VOUT+4*k}:{VOUT+4*k+3}], v1, s[{S_OUT}:{S_OUT+3}], s37 offen {ldf}')
    A(f'buffer_load_dwordx4 v[{VIN+4*k}:{VIN+4*k+3}], v1, s[{S_IN}:{S_IN+3}], s37 offen {ldf}')
    A(f'buffer_load_dwordx2 v[{VANG+2*k}:{VANG+2*k+1}], v2, s[{S_ANG}:{S_ANG+3}], s38 offen {ldf}')
    if k < R1 - 1:
        A(f's_add_u32 s37, s37, {B1*16}')
        A(f's_add_u32 s38, s38, {B1*8}')
A('s_mov_b64 exec, -1')
A('s_movk_i32 s42, 272')
A('v_cmp_gt_u32 vcc, s42, v0')
A('s_and_saveexec_b64 s[44:45], vcc')
A(f'ds_write_b32 v3, v4 offset:{L_HIST}' if L_HIST < 65536 else 'ERR')
A('s_mov_b64 exec, s[44:45]')
A('s_waitcnt lgkmcnt(0)')
A('s_barrier')
A('s_lshl_b32 s36, s36, 16')
A(f's_mov_b32 s46, {hi_bits:#x}')
A(f's_mov_b32 s47, {f32bits(C_LO):#x}')
A('s_mov_b32 s48, 0xff800000')
A('s_mov_b32 s49, 0xffff0000')
for k in range(R1):
    A(f's_waitcnt vmcnt({3*(R1-1-k)})')
    if k == R1 - 1:
        A('s_mov_b64 exec, s[40:41]')
    for j in range(4):
        vo, vi, vr = VOUT + 4*k + j, VIN + 4*k + j, VRK + 4*k + j
        t = VT + j
        A(f'v_lshlrev_b32 v{t}, 11, v{vo}')
        A(f'v_and_or_b32 v{vi}, v{t}, s48, v{vi}')
        A(f'v_and_b32 v{t}, 15, v{vo}')
        A(f'v_lshl_or_b32 v{vi}, v{t}, 19, v{vi}')
        A(f'v_lshrrev_b32 v{vo}, 2, v{vo}')
        A(f'v_and_b32 v{vo}, 0x3fc, v{vo}')
        A(f'ds_add_rtn_u32 v{vr}, v{vo}, v5 offset:{L_HIST}')
    for p in range(2):
        va = VANG + 2*k + p
        a0, a1, b0, b1 = VT + 4, VT + 5, VT + 6, VT + 7
        A(f'v_lshlrev_b32 v{a0}, 16, v{va}')
        A(f'v_and_b32 v{a1}, s49, v{va}')
        A(f'v_mul_f32 v{a0}, s36, v{a0}')
        A(f'v_mul_f32 v{a1}, s36, v{a1}')
        A(f'v_cvt_pk_bf16_f32 v{va}, v{a0}, v{a1}')
        A(f'v_lshlrev_b32 v{a0}, 16, v{va}')
        A(f'v_and_b32 v{a1}, s49, v{va}')
        A(f'v_mul_f32 v{b0}, s46, v{a0}')
        A(f'v_mul_f32 v{b1}, s46, v{a1}')
        A(f'v_fract_f32 v{b0}, v{b0}')
        A(f'v_fract_f32 v{b1}, v{b1}')
        A(f'v_fmac_f32 v{b0}, s47, v{a0}')
        A(f'v_fmac_f32 v{b1}, s47, v{a1}')
        A(f'v_cos_f32 v{b0}, v{b0}')
        A(f'v_cos_f32 v{b1}, v{b1}')
        A('s_nop 0')
        A(f'v_cvt_pk_bf16_f32 v{va}, v{b0}, v{b1}')
A('s_mov_b64 exec, -1')
A('s_cmp_ge_u32 s2, 256')
A('s_cbranch_scc1 P_NOM2')
A('s_mov_b32 s42, 0x7fff7fff')
for j in range(8):
    A(f'v_and_b32 v{VM+j}, s42, v{VM+j}')
for j in range(4):
    A(f'v_pk_max_u16 v{VM+j}, v{VM+j}, v{VM+4+j}')
A(f'v_pk_max_u16 v{VM}, v{VM}, v{VM+2}')
A(f'v_pk_max_u16 v{VM+1}, v{VM+1}, v{VM+3}')
A(f'v_pk_max_u16 v{VM}, v{VM}, v{VM+1}')
A(f'v_lshrrev_b32 v{VM+1}, 16, v{VM}')
A(f'v_and_b32 v{VM}, 0xffff, v{VM}')
A(f'v_max_u32 v{VM}, v{VM}, v{VM+1}')
dpp_reduce('v_max_u32', VM)
A('s_nop 1')
A(f'v_readlane_b32 s42, v{VM}, 63')
A('s_nop 1')
A(f'v_mov_b32 v{VM}, s42')
A('s_mov_b64 exec, 1')
A(f'ds_max_u32 v4, v{VM} offset:{L_MAX}')
A('s_mov_b64 exec, -1')
L('P_NOM2')
A('s_waitcnt lgkmcnt(0)')
A('s_barrier')
A('v_readfirstlane_b32 s42, v0')
A('s_nop 3')
A('s_cmp_ge_u32 s42, 64')
A('s_cbranch_scc1 P_SCAN_DONE')
h = VT
assert h % 2 == 0
A(f'ds_read_b128 v[{h}:{h+3}], v1 offset:{L_HIST}')
A(f'ds_read_b32 v{h+9}, v4 offset:{L_MAX}')
A('s_waitcnt lgkmcnt(0)')
A(f'v_add_u32 v{h+1}, v{h}, v{h+1}')
A(f'v_add_u32 v{h+2}, v{h+1}, v{h+2}')
A(f'v_add_u32 v{h+3}, v{h+2}, v{h+3}')
A(f'v_mov_b32 v{h+8}, v{h+3}')
dpp_reduce('v_add_u32', h + 8)
A(f'v_sub_u32 v{h+4}, v{h+8}, v{h+3}')
A(f'v_add_u32 v{h+5}, v{h+4}, v{h}')
A(f'v_add_u32 v{h+6}, v{h+4}, v{h+1}')
A(f'v_add_u32 v{h+7}, v{h+4}, v{h+2}')
A(f'ds_write_b128 v1, v[{h+4}:{h+7}] offset:{L_HIST}')
for j in range(4):
    A(f'v_lshrrev_b32 v{h+j}, 2, v{h+4+j}')
    A(f'v_lshl_or_b32 v{h+j}, v{h+5+j}, 14, v{h+j}')
A('s_lshl_b32 s42, s2, 10')
A(f's_add_u32 s42, s42, {OFF_BASE:#x}')
A(f'buffer_store_dwordx4 v[{h}:{h+3}], v1, s[{S_WS}:{S_WS+3}], s42 offen')
A('s_cmp_ge_u32 s2, 256')
A('s_cbranch_scc1 P_SCAN_DONE')
A('s_lshl_b32 s42, s2, 2')
A(f's_add_u32 s42, s42, {MAX_BASE:#x}')
A('s_mov_b64 exec, 1')
A(f'buffer_store_dword v{h+9}, v4, s[{S_WS}:{S_WS+3}], s42 offen')
A('s_mov_b64 exec, -1')
L('P_SCAN_DONE')
A('s_waitcnt lgkmcnt(0)')
A('s_barrier')
for k in range(R1):
    if k == R1 - 1:
        A('s_mov_b64 exec, s[40:41]')
    for j in range(4):
        vo = VOUT + 4*k + j
        A(f'ds_read_b32 v{vo}, v{vo} offset:{L_HIST}')
    def scat(kk):
        for j in range(4):
            vo, vi, vr = VOUT + 4*kk + j, VIN + 4*kk + j, VRK + 4*kk + j
            va = VANG + 2*kk + j // 2
            A(f'v_add_u32 v{vo}, v{vo}, v{vr}')
            A(f'v_lshrrev_b32 v{vr}, 1, v{vo}')
            A(f'ds_write_b32 v{vo}, v{vi} offset:{L_ST}')
            A(f'ds_write_b16{"_d16_hi" if j & 1 else ""} v{vr}, v{va} offset:{L_ST+W1OFF}')
    if k == R1 - 1:
        A('s_mov_b64 exec, -1')
    if k > 0:
        A('s_waitcnt lgkmcnt(4)')
        scat(k - 1)
A('s_waitcnt lgkmcnt(8)')
A('s_mov_b64 exec, s[40:41]')
scat(R1 - 1)
A('s_mov_b64 exec, -1')
A('s_waitcnt lgkmcnt(0)')
A('s_barrier')
NV = 75008 // 16
RC = (NV + B1 - 1) // B1
lastc = NV - (RC - 1) * B1
A(f's_movk_i32 s42, {lastc}')
A('v_cmp_gt_u32 s[40:41], s42, v0')
A(f'v_add_u32 v6, {8*B1*16}, v1')
for j in range(RC):
    if j == RC - 1:
        A('s_mov_b64 exec, s[40:41]')
    off = j * B1 * 16 + L_ST
    if off < 65536 - 16 and j < 8:
        A(f'ds_read_b128 v[{16+4*j}:{16+4*j+3}], v1 offset:{off}')
    else:
        A(f'ds_read_b128 v[{16+4*j}:{16+4*j+3}], v6 offset:{off - 8*B1*16}')
A('s_mov_b64 exec, -1')
A(f's_mul_i32 s42, s2, {RS}')
stf = OPT['st_ws']
for j in range(RC):
    A(f's_waitcnt lgkmcnt({min(RC-1-j, 15)})')
    if j == RC - 1:
        A('s_mov_b64 exec, s[40:41]')
    A(f'buffer_store_dwordx4 v[{16+4*j}:{16+4*j+3}], v1, s[{S_WS}:{S_WS+3}], s42 offen {stf}')
    if j < RC - 1:
        A(f's_add_u32 s42, s42, {B1*16}')
L('P_END')
A('s_endpgm')

D = OPT['D']
ARR = 1568 * 8
out.append('.globl acc_kernel')
out.append('.p2align 8')
out.append('.type acc_kernel,@function')
L('acc_kernel')
A('s_cmp_ge_u32 s2, 256')
A('s_cbranch_scc1 Q_END')
A('s_load_dwordx2 s[4:5], s[0:1], 0')
A('s_load_dwordx2 s[6:7], s[0:1], 104')
A('s_load_dwordx2 s[8:9], s[0:1], 24')
A('s_load_dwordx2 s[10:11], s[0:1], 88')
S_M, S_WS, S_DIST, S_O = 12, 16, 20, 24
A('s_and_b32 s3, s2, 7')
A('s_lshl_b32 s3, s3, 5')
A('s_lshr_b32 s28, s2, 3')
A('s_add_u32 s3, s3, s28')
A('v_and_b32 v1, 63, v0')
A('v_lshlrev_b32 v2, 2, v1')
A('v_lshlrev_b32 v3, 1, v1')
A('v_lshlrev_b32 v4, 10, v0')
A('v_lshlrev_b32 v5, 4, v1')
A('v_readfirstlane_b32 s29, v0')
A('s_waitcnt lgkmcnt(0)')
srd(S_M, 4, E * 8); srd(S_WS, 6, WS_BYTES); srd(S_DIST, 8, E * 2); srd(S_O, 10, E * 8)
A('s_lshl_b32 s30, s3, 2')
A(f's_add_u32 s30, s30, {OFF_BASE:#x}')
A(f'buffer_load_dword v6, v4, s[{S_WS}:{S_WS+3}], s30 offen')
A(f's_mov_b32 s30, {MAX_BASE:#x}')
A(f'buffer_load_dwordx4 v[8:11], v5, s[{S_WS}:{S_WS+3}], s30 offen')
A('v_mov_b32 v12, 0'); A('v_mov_b32 v13, 0'); A('v_mov_b32 v14, 0'); A('v_mov_b32 v15, 0')
A('v_lshlrev_b32 v7, 4, v0')
for j in range(3):
    A(f'ds_write_b128 v7, v[12:15] offset:{j*16384}')
A('v_cmp_gt_u32 vcc, 64, v0')
A('s_and_saveexec_b64 s[32:33], vcc')
A(f'ds_write_b128 v7, v[12:15] offset:{3*16384}')
A('s_mov_b64 exec, s[32:33]')
A(f's_mul_i32 s31, s29, {RS}')
A('s_waitcnt vmcnt(0)')
A('v_max_u32 v8, v8, v9'); A('v_max_u32 v10, v10, v11'); A('v_max_u32 v8, v8, v10')
dpp_reduce('v_max_u32', 8)
A('s_nop 1')
A('v_readlane_b32 s34, v8, 63')
A('s_nop 3')
A('s_lshr_b32 s34, s34, 7')
A('s_min_u32 s34, s34, 254')
A('s_add_u32 s37, s34, 923')
A('s_lshl_b32 s37, s37, 20')
A('s_or_b32 s37, s37, 0x80000')
A('s_mov_b32 s36, 0')
A('s_sub_i32 s35, s34, 152')
A('s_mov_b32 s38, 0xffff0000')
A('s_mov_b32 s39, 0')
A('s_mov_b32 s40, 0')
A('s_mov_b32 s41, 0')
A('s_waitcnt lgkmcnt(0)')
A('s_barrier')
NE = 2 * D
NG = D
VE = 16
VG = VE + 2 * NE
VT = VG + 2 * NG
VT += VT & 1
SM = 44
assert SM + 2 * NE <= 100
ldE = OPT['ld_ent']; ldG = OPT['ld_g']

def gen_item(slot):
    m = SM + 2 * slot
    A('v_readlane_b32 s42, v6, s39')
    A('s_nop 0')
    A('s_and_b32 s43, s42, 0xffff')
    A('s_lshr_b32 s42, s42, 16')
    A('s_add_u32 s43, s43, s40')
    A('s_sub_i32 s42, s42, s43')
    A('s_cmp_ge_u32 s39, 64')
    A('s_cselect_b32 s42, 0, s42')
    A('s_addc_u32 s41, s41, 0')
    A('s_mov_b64 exec, -1')
    A(f'v_cmp_gt_i32 s[{m}:{m+1}], s42, v1')
    A('s_lshl_b32 s100, s43, 2')
    A('s_add_u32 s100, s100, s31')
    A('s_lshl_b32 s101, s43, 1')
    A('s_add_u32 s101, s101, s31')
    A(f's_add_u32 s101, s101, {W1OFF}')
    A('s_add_u32 s43, s40, 64')
    A('s_cmp_gt_i32 s42, 64')
    A('s_cselect_b32 s40, s43, 0')
    A(f's_cselect_b32 s43, 0, {RS}')
    A('s_cselect_b32 s42, 0, 1')
    A('s_add_u32 s31, s31, s43')
    A('s_add_u32 s39, s39, s42')
    A(f's_mov_b64 exec, s[{m}:{m+1}]')
    A(f'buffer_load_dword v{VE+2*slot}, v2, s[{S_WS}:{S_WS+3}], s100 offen {ldE}')
    A(f'buffer_load_ushort v{VE+2*slot+1}, v3, s[{S_WS}:{S_WS+3}], s101 offen {ldE}')

def gen_gather(eslot, gslot):
    m = SM + 2 * eslot
    t = VT
    A(f's_mov_b64 exec, s[{m}:{m+1}]')
    A(f'v_and_b32 v{t}, 0x7ffff, v{VE+2*eslot}')
    A(f'v_lshlrev_b32 v{t}, 3, v{t}')
    A(f'buffer_load_dwordx2 v[{VG+2*gslot}:{VG+2*gslot+1}], v{t}, s[{S_M}:{S_M+3}], 0 offen {ldG}')

def gen_compute(eslot, gslot):
    m = SM + 2 * eslot
    w0, cs = VE + 2 * eslot, VE + 2 * eslot + 1
    g0, g1 = VG + 2 * gslot, VG + 2 * gslot + 1
    cd = VT + 2
    ad = VT + 1
    p = [VT + 4, VT + 6, VT + 8, VT + 10]
    A(f's_mov_b64 exec, s[{m}:{m+1}]')
    A(f'v_lshlrev_b32 v{cs}, 16, v{cs}')
    A(f'v_lshrrev_b32 v{ad}, 16, v{w0}')
    A(f'v_cvt_f64_f32 v[{cd}:{cd+1}], v{cs}')
    A(f'v_and_b32 v{ad}, 0x3ff8, v{ad}')
    A(f'v_lshlrev_b32 v{p[0]}, 16, v{g0}')
    A(f'v_and_b32 v{p[1]}, s38, v{g0}')
    A(f'v_lshlrev_b32 v{p[2]}, 16, v{g1}')
    A(f'v_and_b32 v{p[3]}, s38, v{g1}')
    for j in range(4):
        A(f'v_cvt_f64_f32 v[{p[j]}:{p[j]+1}], v{p[j]}')
    for j in range(4):
        A(f'v_fma_f64 v[{p[j]}:{p[j]+1}], v[{p[j]}:{p[j]+1}], v[{cd}:{cd+1}], s[36:37]')
        A(f'ds_add_u64 v{ad}, v[{p[j]}:{p[j]+1}] offset:{j*ARR}')

A(f'v_mov_b32 v{VT}, 0'); A(f'v_mov_b32 v{VT+1}, 0')
for s_ in range(NE):
    A(f'v_mov_b32 v{VE+2*s_}, 0')
for k in range(D):
    gen_item(k)
for k in range(D):
    A(f's_waitcnt vmcnt({(D-1-k)*2 + k*3})')
    gen_gather(k, k % NG)
    gen_item(D + k)
L('Q_LOOP')
for k in range(NE):
    A(f's_waitcnt vmcnt({3*(D-1)})')
    gen_compute(k % NE, k % NG)
    gen_gather((k + D) % NE, k % NG)
    gen_item(k % NE)
A(f's_cmp_lt_u32 s41, {2*D}')
A('s_cbranch_scc1 Q_LOOP')
A('s_mov_b64 exec, -1')
A('s_load_dwordx2 s[4:5], s[0:1], 40')
A('s_load_dwordx4 s[8:11], s[0:1], 56')
A('s_load_dwordx4 s[28:31], s[0:1], 72')
A('s_waitcnt lgkmcnt(0)')
A('s_load_dwordx4 s[40:43], s[4:5], 0')
A('s_load_dwordx16 s[44:59], s[8:9], 0')
A('s_load_dwordx16 s[60:75], s[10:11], 0')
A('s_load_dwordx8 s[76:83], s[28:29], 0')
A('s_load_dwordx8 s[84:91], s[30:31], 0')
VB = 16
def R(i, n): return VB + 40 * i + n
for i in range(2):
    loc, e, t = R(i, 0), R(i, 1), R(i, 2)
    A(f'v_add_u32 v{loc}, {1024*i}, v0')
    A(f'v_lshrrev_b32 v{t}, 4, v{loc}')
    A(f'v_lshlrev_b32 v{t}, 8, v{t}')
    A(f'v_add_u32 v{t}, s3, v{t}')
    A(f'v_and_b32 v{e}, 15, v{loc}')
    A(f'v_lshl_or_b32 v{e}, v{t}, 4, v{e}')
    if i == 1:
        A(f's_movk_i32 s92, 1568')
        A(f'v_cmp_le_u32 vcc, s92, v{loc}')
        A(f'v_mov_b32 v{t}, 0x1000000')
        A('s_nop 0')
        A(f'v_cndmask_b32 v{e}, v{e}, v{t}, vcc')
        A(f'v_cndmask_b32 v{loc}, v{loc}, 0, vcc') if False else None
        A(f'v_min_u32 v{loc}, 1567, v{loc}')
    A(f'v_lshlrev_b32 v{t}, 1, v{e}')
    A(f'v_lshlrev_b32 v{e}, 3, v{e}')
    A(f'buffer_load_ushort v{R(i,3)}, v{t}, s[{S_DIST}:{S_DIST+3}], 0 offen')
    A(f'buffer_load_dwordx2 v[{R(i,4)}:{R(i,5)}], v{e}, s[{S_M}:{S_M+3}], 0 offen')
    A(f'v_lshlrev_b32 v{loc}, 3, v{loc}')
A('s_waitcnt lgkmcnt(0)')
A('s_barrier')
for i in range(2):
    for j in range(4):
        A(f'ds_read_b64 v[{R(i,6+2*j)}:{R(i,7+2*j)}], v{R(i,0)} offset:{j*ARR}')
A('s_mov_b32 s92, 0')
A('s_mov_b32 s93, 0x41f00000')
A('s_waitcnt lgkmcnt(0)')
for i in range(2):
    for j in range(4):
        lo, hi = R(i, 6+2*j), R(i, 7+2*j)
        d0 = R(i, 14); d1 = R(i, 16)
        A(f'v_bfe_i32 v{hi}, v{hi}, 0, 19')
        A(f'v_cvt_f64_u32 v[{d0}:{d0+1}], v{lo}')
        A(f'v_cvt_f64_i32 v[{d1}:{d1+1}], v{hi}')
        A(f'v_fma_f64 v[{d0}:{d0+1}], v[{d1}:{d1+1}], s[92:93], v[{d0}:{d0+1}]')
        A(f'v_ldexp_f64 v[{d0}:{d0+1}], v[{d0}:{d0+1}], s35')
        A(f'v_cvt_f32_f64 v{R(i,6+j)}, v[{d0}:{d0+1}]')
def sw(base, idx, dst):
    s = base + idx // 2
    if idx & 1: A(f's_and_b32 s{dst}, s{s}, 0xffff0000')
    else: A(f's_lshl_b32 s{dst}, s{s}, 16')
def rnd2(a, b, t):
    A(f'v_cvt_pk_bf16_f32 v{t}, v{a}, v{b}')
    A(f'v_lshlrev_b32 v{a}, 16, v{t}')
    A(f'v_and_b32 v{b}, s38, v{t}')
for d in range(4):
    for k in range(4):
        sw(76, k*4 + d, 92)
        for i in range(2):
            if k == 0: A(f'v_mul_f32 v{R(i,10+d)}, s92, v{R(i,6+k)}')
            else: A(f'v_fmac_f32 v{R(i,10+d)}, s92, v{R(i,6+k)}')
A('s_waitcnt vmcnt(0)')
A(f's_mov_b32 s94, {f32bits(-10.0):#x}')
A(f's_mov_b32 s95, {f32bits(math.log2(math.e)):#x}')
for i in range(2):
    A(f'v_lshlrev_b32 v{R(i,3)}, 16, v{R(i,3)}')
for r in range(0, 8, 2):
    sw(40, r, 92); sw(40, r + 1, 93)
    for i in range(2):
        a, b, t = R(i, 14 + r), R(i, 15 + r), R(i, 2)
        A(f'v_subrev_f32 v{a}, s92, v{R(i,3)}')
        A(f'v_subrev_f32 v{b}, s93, v{R(i,3)}')
        rnd2(a, b, t)
        A(f'v_mul_f32 v{a}, v{a}, v{a}')
        A(f'v_mul_f32 v{b}, v{b}, v{b}')
        rnd2(a, b, t)
        A(f'v_mul_f32 v{a}, s94, v{a}')
        A(f'v_mul_f32 v{b}, s94, v{b}')
        rnd2(a, b, t)
        A(f'v_mul_f32 v{a}, s95, v{a}')
        A(f'v_mul_f32 v{b}, s95, v{b}')
        A(f'v_exp_f32 v{a}, v{a}')
        A(f'v_exp_f32 v{b}, v{b}')
        A('s_nop 0')
        rnd2(a, b, t)
for base, dst in ((60, 22), (44, 26)):
    for d in range(4):
        for r in range(8):
            sw(base, r*4 + d, 92)
            for i in range(2):
                if r == 0: A(f'v_mul_f32 v{R(i,dst+d)}, s92, v{R(i,14+r)}')
                else: A(f'v_fmac_f32 v{R(i,dst+d)}, s92, v{R(i,14+r)}')
for i in range(2):
    for d in range(4):
        A(f'v_mul_f32 v{R(i,10+d)}, v{R(i,10+d)}, v{R(i,22+d)}')
    rnd2(R(i,10), R(i,11), R(i,2)); rnd2(R(i,12), R(i,13), R(i,2))
    rnd2(R(i,26), R(i,27), R(i,2)); rnd2(R(i,28), R(i,29), R(i,2))
for d in range(4):
    for k in range(4):
        sw(84, k*4 + d, 92)
        for i in range(2):
            if k == 0: A(f'v_mul_f32 v{R(i,22+d)}, s92, v{R(i,10+k)}')
            else: A(f'v_fmac_f32 v{R(i,22+d)}, s92, v{R(i,10+k)}')
for i in range(2):
    rnd2(R(i,22), R(i,23), R(i,2)); rnd2(R(i,24), R(i,25), R(i,2))
    for d in range(4):
        A(f'v_mul_f32 v{R(i,22+d)}, v{R(i,22+d)}, v{R(i,26+d)}')
    rnd2(R(i,22), R(i,23), R(i,2)); rnd2(R(i,24), R(i,25), R(i,2))
    A(f'v_lshlrev_b32 v{R(i,26)}, 16, v{R(i,4)}')
    A(f'v_and_b32 v{R(i,27)}, s38, v{R(i,4)}')
    A(f'v_lshlrev_b32 v{R(i,28)}, 16, v{R(i,5)}')
    A(f'v_and_b32 v{R(i,29)}, s38, v{R(i,5)}')
    for d in range(4):
        A(f'v_add_f32 v{R(i,22+d)}, v{R(i,22+d)}, v{R(i,26+d)}')
    A(f'v_cvt_pk_bf16_f32 v{R(i,30)}, v{R(i,22)}, v{R(i,23)}')
    A(f'v_cvt_pk_bf16_f32 v{R(i,31)}, v{R(i,24)}, v{R(i,25)}')
    A(f'buffer_store_dwordx2 v[{R(i,30)}:{R(i,31)}], v{R(i,1)}, s[{S_O}:{S_O+3}], 0 offen')
L('Q_END')
A('s_endpgm')

out.append('.section .rodata,"a"')
for name, vg in (('part_kernel', 128), ('acc_kernel', 96)):
    out.append('.p2align 6')
    out.append(f'.amdhsa_kernel {name}')
    out.append(f'  .amdhsa_next_free_vgpr {vg}')
    out.append('  .amdhsa_next_free_sgpr 102')
    out.append(f'  .amdhsa_accum_offset {vg}')
    out.append('  .amdhsa_group_segment_fixed_size 0')
    out.append('  .amdhsa_kernarg_size 112')
    out.append('  .amdhsa_user_sgpr_count 2')
    out.append('  .amdhsa_user_sgpr_kernarg_segment_ptr 1')
    out.append('  .amdhsa_system_sgpr_workgroup_id_x 1')
    out.append('  .amdhsa_float_denorm_mode_32 3')
    out.append('.end_amdhsa_kernel')
open(sys.argv[1], 'w').write('\n'.join(o for o in out if o is not None) + '\n')
```

```python
import struct, sys, math

E = 400000
T = 12800000
CH = 6250
S = 25000
NTILE = 512
NBLK = (S + 2) // 3
RS = 133376
OFS = 8208
OFF_BASE = 0x4400000
MAX_BASE = 0x4C00000
PART_BASE = 0x5000000
WS_BYTES = 268435456
MAGIC_DIV = (2**32 + CH - 1) // CH
MINI = S - 6 * 4096
assert NTILE * RS <= OFF_BASE and OFF_BASE + NTILE * OFS <= MAX_BASE

OPT = dict(ld_in='nt', st_ws='sc0 sc1', ld_ent='', ld_ch='', st_part='sc0 sc1', ld_part='', NB=2, skip_s=0, skip_g=0, skip_fill=0, skip_e=0,
           stamp=-1, stamp2=-1, prio=1, ilv='4:0,5:1', pre=1, npb=1, bps=1, vpos='123456', skip_ch=0, skip_pf=0, pmap=0)
for a in sys.argv[2:]:
    k, v = a.split('=')
    OPT[k] = int(v) if (v.lstrip('-').isdigit() and k != 'vpos') else v.replace('_', ' ')

def f32bits(x): return struct.unpack('<I', struct.pack('<f', x))[0]
out = []
def A(s): out.append('    ' + s)
def L(s): out.append(s + ':')
_lab = [0]
def newlab(p='L'):
    _lab[0] += 1
    return f'{p}_{_lab[0]}'
def srd(d, b, nbytes):
    A(f's_mov_b32 s{d}, s{b}')
    A(f's_and_b32 s{d+1}, s{b+1}, 0xffff')
    A(f's_mov_b32 s{d+2}, {nbytes:#x}')
    A(f's_mov_b32 s{d+3}, 0x00020000')
def dpp_scan(op, v):
    for sh in (1, 2, 4, 8):
        A('s_nop 1')
        A(f'{op}_dpp v{v}, v{v}, v{v} row_shr:{sh} row_mask:0xf bank_mask:0xf bound_ctrl:0')
    A('s_nop 1')
    A(f'{op}_dpp v{v}, v{v}, v{v} row_bcast:15 row_mask:0xa bank_mask:0xf')
    A('s_nop 1')
    A(f'{op}_dpp v{v}, v{v}, v{v} row_bcast:31 row_mask:0xc bank_mask:0xf')
def khead(name):
    out.append(f'.globl {name}')
    out.append('.p2align 8')
    out.append(f'.type {name},@function')
    L(name)
SD = 'dst_sel:DWORD dst_unused:UNUSED_PAD'

stampn = [0]
def stamp(key):
    if OPT[key] < 0: return
    n = stampn[0]; stampn[0] += 1
    A(OPT.get('clk','s_memtime').replace(' ','_') + ' s[98:99]')
    A('s_waitcnt lgkmcnt(0)')
    A(f's_mov_b32 s{76+n}, s98')
def stamp_flush(key, swave, vz, wave=0):
    if OPT[key] < 0: return
    lab = newlab('STF')
    A(f's_cmp_lg_u32 s2, {OPT[key]}')
    A(f's_cbranch_scc1 {lab}')
    A(f's_cmp_lg_u32 s{swave}, {wave}')
    A(f's_cbranch_scc1 {lab}')
    A('s_load_dwordx2 s[4:5], s[0:1], 96')
    A('s_waitcnt lgkmcnt(0)')
    srd(72, 4, 256)
    A('s_mov_b64 exec, 1')
    A(f'v_mov_b32 v{vz}, 0')
    for n in range(stampn[0]):
        A(f's_sub_u32 s98, s{76+n}, s76')
        A(f'v_mov_b32 v{vz+1}, s98')
        A(f'buffer_store_dword v{vz+1}, v{vz}, s[72:75], 0 offen offset:{4*n}')
        A('s_nop 1')
    L(lab)

L_H, L_SC, L_ST = 0, 16384, 16640
L_X = L_ST
L_W = L_X + NBLK * 4 + 8
LDS1 = L_W + NBLK * 12
assert L_W < 65536 and L_W % 16 == 0
L_ARB, L_CH, L_SC2 = 50000, 100000, 150000
LDS2 = 150000 + 64
G3 = (E + 511) // 512

hdr = open('standalone__molecular_angular_gemnet__graph.s.ref').read().split('; Override launch')[0]
out.append(hdr.rstrip())
out.append(f'; @launch kernel=part_kernel grid=(256,1,1) block=(1024,1,1) lds={LDS1}')
out.append(f'; @launch kernel=acc_kernel grid=(256,1,1) block=(1024,1,1) lds={LDS2}')
out.append(f'; @launch kernel=fin_kernel grid=({G3},1,1) block=(256,1,1) lds=0')
out.append('.amdgcn_target "amdgcn-amd-amdhsa--gfx950"')
out.append('.text')

khead('part_kernel')
A('s_cmp_ge_u32 s2, 256')
A('s_cbranch_scc1 P_END')
A('s_load_dwordx4 s[4:7], s[0:1], 0')
A('s_load_dwordx2 s[8:9], s[0:1], 16')
A('s_load_dwordx2 s[10:11], s[0:1], 32')
A('s_load_dwordx2 s[12:13], s[0:1], 48')
A('s_load_dwordx2 s[14:15], s[0:1], 104')
S_IN, S_OUT, S_ANG, S_WS, S_M = 16, 20, 24, 28, 32
if OPT['prio']: A('s_setprio 3')
A('v_lshlrev_b32 v1, 4, v0')
A('v_lshlrev_b32 v2, 3, v0')
A('v_mov_b32 v3, 1')
A('v_mov_b32 v4, 0x10000')
A('v_mov_b32 v5, 0')
A('v_lshlrev_b32 v6, 2, v0')
A('v_lshlrev_b32 v7, 1, v0')
TT = 8
for r in range(4): A(f'v_mov_b32 v{TT+4+r}, 0')
A('v_readfirstlane_b32 s50, v0')
A(f'ds_write_b128 v1, v[{TT+4}:{TT+7}]')
A(f'ds_write_b32 v6, v5 offset:{L_SC}')
A(f's_movk_i32 s42, {MINI}')
A('v_cmp_gt_u32 s[40:41], s42, v0')
A('s_waitcnt lgkmcnt(0)')
A('s_load_dword s36, s[12:13], 0')
srd(S_IN, 6, T * 4); srd(S_OUT, 8, T * 4); srd(S_ANG, 10, T * 2); srd(S_WS, 14, WS_BYTES); srd(S_M, 4, E * 8)
A('s_lshr_b32 s50, s50, 6')
A(f's_mul_i32 s37, s2, {2*S*4}')
A(f's_mul_i32 s38, s2, {2*S*2}')
UA = 24
unitA = [(UA + 10*k, UA + 10*k + 4, UA + 10*k + 8) for k in range(6)] + [(84, 85, 86)]
unitB = [(88 + 10*k, 88 + 10*k + 4, 88 + 10*k + 8) for k in range(4)] + [unitA[0], unitA[1], (44, 45, 46)]
vm = []
ldf = OPT['ld_in']
def load_unit(tag, k):
    vi, vo, va = (unitA if tag == 'A' else unitB)[k]
    tile = 0 if tag == 'A' else 1
    A(f's_add_u32 s43, s37, {tile*S*4 + k*16384}')
    A(f's_add_u32 s44, s38, {tile*S*2 + k*8192}')
    if k < 6:
        A(f'buffer_load_dwordx4 v[{vo}:{vo+3}], v1, s[{S_OUT}:{S_OUT+3}], s43 offen {ldf}')
        A(f'buffer_load_dwordx4 v[{vi}:{vi+3}], v1, s[{S_IN}:{S_IN+3}], s43 offen {ldf}')
        A(f'buffer_load_dwordx2 v[{va}:{va+1}], v2, s[{S_ANG}:{S_ANG+3}], s44 offen {ldf}')
    else:
        A('s_mov_b64 exec, s[40:41]')
        A(f'buffer_load_dword v{vo}, v6, s[{S_OUT}:{S_OUT+3}], s43 offen {ldf}')
        A(f'buffer_load_dword v{vi}, v6, s[{S_IN}:{S_IN+3}], s43 offen {ldf}')
        A(f'buffer_load_ushort v{va}, v7, s[{S_ANG}:{S_ANG+3}], s44 offen {ldf}')
        A('s_mov_b64 exec, -1')
    vm.extend([(tag, k)] * 3)
def vwait(tag):
    idx = max(i for i, t in enumerate(vm) if t == tag)
    A(f's_waitcnt vmcnt({min(len(vm)-1-idx, 63)})')
stamp('stamp')
for k in range(OPT['pre']): load_unit('A', k)
A('s_barrier')
A(f's_mul_i32 s39, s2, {782*16}')
A(f'buffer_load_dwordx4 v[{TT}:{TT+3}], v1, s[{S_M}:{S_M+3}], s39 offen'); vm.append('M')
for k in range(OPT['pre'], 7): load_unit('A', k)
if OPT['prio']: A('s_setprio 0')
A(f's_mov_b32 s46, {f32bits(1/(2*math.pi)):#x}')
A(f's_mov_b32 s47, {f32bits(1/(2*math.pi)):#x}')
A('s_mov_b32 s48, 0xfc000000')
A('s_mov_b32 s49, 0xffff0000')
A(f's_mov_b32 s51, {(-CH) & 0xffffffff:#x}')
A('s_mov_b32 s52, 0x00020002')
A('s_mov_b32 s53, 0x55555556')
A('s_waitcnt lgkmcnt(0)')
A('s_lshl_b32 s36, s36, 16')

PT = TT + 11
def process(tag, k):
    vi0, vo0, va0 = (unitA if tag == 'A' else unitB)[k]
    inc = 3 if tag == 'A' else 4
    n = 4 if k < 6 else 1
    vwait((tag, k))
    skip = None
    if k == 6:
        skip = newlab('P_MS')
        A('s_mov_b64 exec, s[40:41]')
        A(f's_cbranch_execz {skip}')
    tj, ti, t1 = PT, PT + 1, PT + 2
    for j in range(n):
        vi, vo = vi0 + j, vo0 + j
        A(f'v_mul_hi_u32_u24 v{tj}, {MAGIC_DIV:#x}, v{vi}')
        A(f'v_mul_hi_u32_u24 v{ti}, {MAGIC_DIV:#x}, v{vo}')
        A(f'v_lshl_add_u32 v{vi}, v{vo}, 13, v{vi}')
        A(f'v_lshl_add_u32 v{vo}, v{ti}, 6, v{tj}')
        A(f'v_lshl_add_u32 v{t1}, v{ti}, 13, v{tj}')
        A(f'v_lshlrev_b32 v{vo}, 2, v{vo}')
        A(f'v_mad_i32_i24 v{vi}, v{t1}, s51, v{vi}')
        A(f'ds_add_u32 v{vo}, v{inc} offset:{L_H}')
    a0, a1 = PT + 3, PT + 4
    assert a0 % 2 == 0
    npair = (n + 1) // 2
    nf = newlab('P_NF')
    A('s_cmp_eq_u32 s36, 0x3f800000')
    A(f's_cbranch_scc1 {nf}')
    for p in range(npair):
        va = va0 + p
        A(f'v_lshlrev_b32 v{a0}, 16, v{va}')
        A(f'v_and_b32 v{a1}, s49, v{va}')
        A(f'v_mul_f32 v{a0}, s36, v{a0}')
        A(f'v_mul_f32 v{a1}, s36, v{a1}')
        A(f'v_cvt_pk_bf16_f32 v{va}, v{a0}, v{a1}')
    L(nf)
    for p in range(npair):
        va = va0 + p
        A(f'v_lshlrev_b32 v{a0}, 16, v{va}')
        A(f'v_and_b32 v{a1}, s49, v{va}')
        A(f'v_pk_mul_f32 v[{a0}:{a1}], v[{a0}:{a1}], s[46:47]')
        A(f'v_fract_f32 v{a0}, v{a0}')
        A(f'v_fract_f32 v{a1}, v{a1}')
        A(f'v_cos_f32 v{a0}, v{a0}')
        A(f'v_cos_f32 v{a1}, v{a1}')
        A('s_nop 0')
        A(f'v_cvt_pk_f16_f32 v{va}, v{a0}, v{a1}')
        A(f'v_pk_add_u16 v{va}, v{va}, s52')
        e0, e1 = 2*p, 2*p + 1
        A(f'v_lshlrev_b32 v{a0}, 16, v{va}')
        if e1 < n: A(f'v_and_or_b32 v{vi0+e1}, v{va}, s48, v{vi0+e1}')
        A(f'v_and_or_b32 v{vi0+e0}, v{a0}, s48, v{vi0+e0}')
        A(f'v_lshrrev_b32 v{va}, 2, v{va}')
    if k == 6:
        L(skip)
        A('s_mov_b64 exec, -1')

def maxm():
    vwait('M')
    A('s_mov_b32 s42, 0x7fff7fff')
    for j in range(4): A(f'v_and_b32 v{TT+j}, s42, v{TT+j}')
    A(f'v_pk_max_u16 v{TT}, v{TT}, v{TT+2}')
    A(f'v_pk_max_u16 v{TT+1}, v{TT+1}, v{TT+3}')
    A(f'v_pk_max_u16 v{TT}, v{TT}, v{TT+1}')
    A(f'v_lshrrev_b32 v{TT+1}, 16, v{TT}')
    A(f'v_and_b32 v{TT}, 0xffff, v{TT}')
    A(f'v_max_u32 v{TT}, v{TT}, v{TT+1}')
    dpp_scan('v_max_u32', TT)
    A('s_nop 1')
    A(f'v_readlane_b32 s42, v{TT}, 63')
    A('s_nop 1')
    A(f'v_mov_b32 v{TT}, s42')
    A('s_mov_b64 exec, 1')
    A(f'ds_max_u32 v5, v{TT} offset:{L_SC+128}')
    A('s_mov_b64 exec, -1')

def scan(tile, scoff):
    h = TT
    A('s_waitcnt lgkmcnt(0)')
    A('s_barrier')
    A(f'ds_read_b128 v[{h}:{h+3}], v1 offset:{L_H}')
    A(f'v_and_b32 v{h+5}, 63, v0')
    A(f'v_cmp_lt_u32 vcc, s50, v{h+5}')
    A(f'v_lshlrev_b32 v{h+5}, 2, v{h+5}')
    A('s_and_b64 s[56:57], vcc, 0xffff')
    A('s_waitcnt lgkmcnt(0)')
    if tile == 1:
        for j in range(4): A(f'v_lshrrev_b32 v{h+j}, 16, v{h+j}')
    for j in range(1, 4): A(f'v_add_u32 v{h+j}, v{h+j-1}, v{h+j}')
    A(f'v_mov_b32 v{h+4}, v{h+3}')
    dpp_scan('v_add_u32', h + 4)
    A('s_nop 1')
    A(f'v_readlane_b32 s42, v{h+4}, 63')
    A('s_nop 1')
    A(f'v_mov_b32 v{h+6}, s42')
    A('s_mov_b64 exec, s[56:57]')
    A(f'ds_add_u32 v{h+5}, v{h+6} offset:{scoff}')
    A('s_mov_b64 exec, -1')
    A('s_lshl_b32 s42, s50, 2')
    A(f'v_mov_b32 v{h+5}, s42')
    A(f'v_sub_u32 v{h+4}, v{h+4}, v{h+3}')
    A('s_waitcnt lgkmcnt(0)')
    A('s_barrier')
    A(f'ds_read_b32 v{h+5}, v{h+5} offset:{scoff}')
    if tile == 0: A(f'ds_read_b32 v{h+6}, v5 offset:{L_SC+128}')
    A(f's_mul_i32 s42, s2, {2*OFS}')
    A(f's_add_u32 s42, s42, {OFF_BASE + tile*OFS:#x}')
    A('s_waitcnt lgkmcnt(0)')
    A(f'v_add_u32 v{h+4}, v{h+4}, v{h+5}')
    for j in (3, 2, 1): A(f'v_add_u32 v{h+j}, v{h+4}, v{h+j-1}')
    A(f'v_mov_b32 v{h}, v{h+4}')
    A(f'ds_write_b128 v1, v[{h}:{h+3}] offset:{L_H}')
    for j in range(4):
        A(f'v_mul_hi_u32 v{h+10+j}, v{h+j}, s53')
        A(f'v_add_u32 v{h+10+j}, v{h+10+j}, v{h+j}')
    A(f'v_lshl_or_b32 v{h+8}, v{h+11}, 16, v{h+10}')
    A(f'v_lshl_or_b32 v{h+9}, v{h+13}, 16, v{h+12}')
    A(f'buffer_store_dwordx2 v[{h+8}:{h+9}], v2, s[{S_WS}:{S_WS+3}], s42 offen')
    vm.append(('OFS', tile))
    done = newlab('P_SC')
    A('s_cmp_lg_u32 s50, 0')
    A(f's_cbranch_scc1 {done}')
    A('s_mov_b64 exec, 1')
    A(f'v_mov_b32 v{h+5}, {S + S//3}')
    A('s_add_u32 s42, s42, 8192')
    A(f'buffer_store_dword v{h+5}, v5, s[{S_WS}:{S_WS+3}], s42 offen')
    if tile == 0:
        A('s_lshl_b32 s42, s2, 2')
        A(f's_add_u32 s42, s42, {MAX_BASE:#x}')
        A(f'buffer_store_dword v{h+6}, v5, s[{S_WS}:{S_WS+3}], s42 offen')
    A('s_mov_b64 exec, -1')
    L(done)
    A('s_waitcnt lgkmcnt(0)')
    A('s_barrier')

def scatter(tag, after_wait, after_fin):
    units = unitA if tag == 'A' else unitB
    lg = []
    def issue(k):
        vi0, vo0, _ = units[k]
        n = 4 if k < 6 else 1
        if k == 6: A('s_mov_b64 exec, s[40:41]')
        for j in range(n):
            A(f'ds_add_rtn_u32 v{TT+4*(k&1)+j}, v{vo0+j}, v3 offset:{L_H}')
            lg.append(('R', k))
        if k == 6: A('s_mov_b64 exec, -1')
    def fin(k):
        vi0, vo0, va0 = units[k]
        n = 4 if k < 6 else 1
        if k == 6: A('s_mov_b64 exec, s[40:41]')
        for j in range(n):
            t = TT + 4*(k & 1) + j
            q, a = TT + 8, TT + 9 + (j & 1)
            if tag == 'A': A(f'v_and_b32 v{t}, 0xffff, v{t}')
            A(f'v_mul_hi_u32 v{q}, v{t}, s53')
            A(f'v_lshlrev_b32 v{a}, 2, v{t}')
            A(f'v_add_u32 v{t}, v{q}, v{t}')
            A(f'ds_write_b32 v{a}, v{vi0+j} offset:{L_W}')
            A(f'ds_write_b8{"_d16_hi" if j & 1 else ""} v{t}, v{va0+j//2} offset:{L_X}')
            lg.extend([('W', k)] * 2)
        if k == 6: A('s_mov_b64 exec, -1')
    issue(0)
    for k in range(7):
        if k + 1 < 7: issue(k + 1)
        idx = max(i for i, t in enumerate(lg) if t == ('R', k) or t == ('W', k - 1))
        A(f's_waitcnt lgkmcnt({min(len(lg)-1-idx, 15)})')
        if k in after_wait: after_wait[k]()
        fin(k)
        if k in after_fin:
            after_fin[k]()
            lg.extend([('H', k)] * 4)
    A('s_waitcnt lgkmcnt(0)')
    A('s_barrier')

RC = (NBLK + 1023) // 1024
lastc = NBLK - (RC - 1) * 1024
def copyout(tile, regs, ar):
    A(f's_movk_i32 s42, {lastc}')
    A('v_cmp_gt_u32 s[56:57], s42, v0')
    A(f'v_mul_u32_u24 v{ar[0]}, 12, v0')
    A(f'v_add_u32 v{ar[0]}, {L_W}, v{ar[0]}')
    A(f's_mul_i32 s42, s2, {2*RS}')
    if tile: A(f's_add_u32 s42, s42, {RS}')
    def rd(j):
        r = regs[j]
        if j == RC - 1: A('s_mov_b64 exec, s[56:57]')
        A(f'ds_read2_b32 v[{r}:{r+1}], v{ar[0]} offset0:0 offset1:1')
        A(f'ds_read_b32 v{r+2}, v{ar[0]} offset:8')
        A(f'ds_read_b32 v{r+3}, v6 offset:{L_X + j*4096}')
        if j == RC - 1: A('s_mov_b64 exec, -1')
        else: A(f'v_add_u32 v{ar[0]}, {12*1024}, v{ar[0]}')
    LA = 4
    for j in range(LA): rd(j)
    for j in range(RC):
        if j + LA < RC: rd(j + LA)
        A(f's_waitcnt lgkmcnt({3*min(LA, RC-1-j)})')
        if j == RC - 1: A('s_mov_b64 exec, s[56:57]')
        A(f'buffer_store_dwordx4 v[{regs[j]}:{regs[j]+3}], v1, s[{S_WS}:{S_WS+3}], s42 offen {OPT["st_ws"]}')
        vm.append(('ST', tile, j))
        if j < RC - 1: A('s_add_u32 s42, s42, 16384')
    A('s_mov_b64 exec, -1')

stamp('stamp')
process('A', 0)
stamp('stamp')
maxm()
for k in range(1, 7): process('A', k)
stamp('stamp')
NPB = OPT['npb']
for k in range(NPB): load_unit('B', k)
scan(0, L_SC)
stamp('stamp')
ilv = dict((int(x.split(':')[0]), int(x.split(':')[1])) for x in OPT['ilv'].split(',')) if OPT['ilv'] else {}
pend = list(range(NPB, 7))
aw = {}
for k in range(7):
    take = []
    while pend and len(take) < OPT['bps'] and (pend[0] < 4 or k >= pend[0] - 3):
        take.append(pend.pop(0))
    if k == 6: take += pend; pend = []
    if take: aw[k] = (lambda tk=take: [load_unit('B', b) for b in tk])
scatter('A', aw, {k: (lambda b=b: process('B', b)) for k, b in ilv.items()})
stamp('stamp')
copyout(0, [48 + 4*j for j in range(RC)], [TT, TT + 1, TT + 2])
stamp('stamp')
for k in range(7):
    if k not in ilv.values(): process('B', k)
stamp('stamp')
scan(1, L_SC + 64)
stamp('stamp')
scatter('B', {}, {})
stamp('stamp')
copyout(1, [48 + 4*j for j in range(RC)], [TT, TT + 1, TT + 2])
stamp('stamp')
if OPT['stamp'] >= 0: A('s_waitcnt vmcnt(0)')
stamp('stamp')
stamp_flush('stamp', 50, TT, OPT.get('swave', 0))
L('P_END')
A('s_endpgm')

NB = OPT['NB']
st2n = [0]
def stamp2(nowait=False):
    if OPT['stamp2'] < 0: return
    n = st2n[0]; st2n[0] += 1
    A(OPT.get('clk','s_memtime').replace(' ','_') + ' s[16:17]')
    A('s_waitcnt lgkmcnt(0)')
    A(f'v_writelane_b32 v127, s16, {n}')
khead('acc_kernel')
A('s_cmp_ge_u32 s2, 256')
A('s_cbranch_scc1 Q_END')
A('s_load_dwordx2 s[4:5], s[0:1], 0')
A('s_load_dwordx2 s[6:7], s[0:1], 104')
S_M, S_WS = 8, 12
A('s_and_b32 s3, s2, 7')
A('s_lshl_b32 s3, s3, 5')
A('s_lshr_b32 s16, s2, 3')
A('s_add_u32 s3, s3, s16')
if OPT['pmap']:
    A('s_lshr_b32 s16, s3, 6')
    A('s_and_b32 s3, s3, 63')
    A('s_lshl_b32 s3, s3, 2')
    A('s_or_b32 s3, s3, s16')
VTB = 5; VOF = 8
VEB = VOF + 18
def EB(slot, s): return VEB + (slot * 3 + s) * 4
VG = VEB + 48
def G(s, e): return VG + (s * 3 + e) * 2
VCH = VG + 18
VT = VCH + 16
VSH, VFC = VT + 10, VT + 11
VOV = VT + 12
assert VOV % 2 == 0 and VOV + 2 <= 127, VOV
def OF(s, k): return VOF + 9*s + k
def MK(slot, s, e):
    if s == 2 and e > 0: return 36 + 2 * e
    return 46 + slot * 14 + (s * 3 + e) * 2
A('v_and_b32 v1, 3, v0')
A('v_lshlrev_b32 v2, 4, v0')
A('v_lshrrev_b32 v3, 2, v0')
A('v_mov_b32 v127, 0')
A('s_waitcnt lgkmcnt(0)')
srd(S_M, 4, E * 8); srd(S_WS, 6, WS_BYTES)
stamp2()
A(f's_movk_i32 s16, {OFS}')
A(f'v_mul_lo_u32 v{VT}, v3, s16')
A('s_lshl_b32 s17, s3, 5')
A(f's_add_u32 s17, s17, {OFF_BASE:#x}')
A(f's_add_u32 s18, s17, {256*OFS}')
TO = VEB
for s_, so in ((0, 17), (1, 18)):
    b = TO + 10 * s_
    A(f'buffer_load_dwordx4 v[{b}:{b+3}], v{VT}, s[{S_WS}:{S_WS+3}], s{so} offen')
    A(f'buffer_load_dwordx4 v[{b+4}:{b+7}], v{VT}, s[{S_WS}:{S_WS+3}], s{so} offen offset:16')
    A(f'buffer_load_ushort v{b+8}, v{VT}, s[{S_WS}:{S_WS+3}], s{so} offen offset:32')
A(f'v_and_b32 v{VT+1}, 63, v0')
A(f'v_lshlrev_b32 v{VT+1}, 4, v{VT+1}')
A(f's_mov_b32 s19, {MAX_BASE:#x}')
A(f'buffer_load_dwordx4 v[{VT+2}:{VT+5}], v{VT+1}, s[{S_WS}:{S_WS+3}], s19 offen')
A('s_and_b32 s20, s3, 3')
A(f's_mul_i32 s20, s20, {16*CH*8}')
A('v_cmp_gt_u32 s[22:23], 53, v0')
def load_chunk():
    for j in range(4):
        if j == 3: A('s_mov_b64 exec, s[22:23]')
        A(f's_add_u32 s21, s20, {j*16384}')
        A(f'buffer_load_dwordx4 v[{VCH+4*j}:{VCH+4*j+3}], v2, s[{S_M}:{S_M+3}], s21 offen {OPT["ld_ch"]}')
    A('s_mov_b64 exec, -1')
    A(f's_add_u32 s20, s20, {CH*8}')
def fill():
    if OPT['skip_fill']: return
    for j in range(4):
        if j == 3: A('s_mov_b64 exec, s[22:23]')
        A(f'ds_write_b128 v3, v[{VCH+4*j}:{VCH+4*j+3}] offset:{j*16384}')
    A('s_mov_b64 exec, -1')
load_chunk()
A(f's_mov_b32 s16, {RS}')
A(f'v_mul_lo_u32 v{VTB}, v3, s16')
A(f'v_add_u32 v{VTB+1}, {256*RS}, v{VTB}')
A('v_cmp_lt_u32 s[36:37], 1, v1')
A('v_and_b32 v4, 1, v0')
A('v_lshl_add_u32 v4, v4, 2, 16')
A('v_lshlrev_b32 v1, 2, v1')
A(f'v_add_u32 v{VTB+2}, 16, v1')
if OPT['skip_e']:
    for r in range(2): A(f'v_mov_b32 v{VTB+r}, 0')
A(f'v_add_u32 v3, {L_CH}, v2')
z = VG
for r in range(4): A(f'v_mov_b32 v{z+r}, 0')
for j in range(4): A(f'ds_write_b128 v2, v[{z}:{z+3}] offset:{j*16384}')
A(f'v_add_u32 v{VT+6}, 65536, v2')
for j in range(2): A(f'ds_write_b128 v{VT+6}, v[{z}:{z+3}] offset:{j*16384}')
A('s_movk_i32 s16, 106')
A('v_cmp_gt_u32 s[24:25], s16, v0')
A('s_mov_b64 exec, s[24:25]')
A(f'ds_write_b128 v{VT+6}, v[{z}:{z+3}] offset:{2*16384}')
A('s_mov_b64 exec, 1')
A(f'v_mov_b32 v{VT+7}, {L_SC2}')
A(f'ds_write_b32 v{VT+7}, v{z}')
A('s_mov_b64 exec, -1')
A('s_mov_b32 s30, 0xffff0000')
A(f's_mov_b32 s31, {L_CH}')
A('s_mov_b32 s35, 0xfc000000')
A(f'v_mov_b32 v{VSH}, 18')
A(f'v_mov_b32 v{VFC}, 0xfffc')
A('s_waitcnt vmcnt(4)')
for s_ in range(2):
    for k in range(9): A(f'v_mov_b32 v{OF(s_,k)}, v{TO+10*s_+k}')
A(f'v_max_u32 v{VT+2}, v{VT+2}, v{VT+3}'); A(f'v_max_u32 v{VT+4}, v{VT+4}, v{VT+5}'); A(f'v_max_u32 v{VT+9}, v{VT+2}, v{VT+4}')

VRM = VOV + 2
assert VRM + 4 <= 127
def third_sel(r, t, rem, skip=None):
    r0, h0, r1, h1 = r >> 1, r & 1, (r + 1) >> 1, (r + 1) & 1
    y0, y1, q0, q1, off = t, t + 1, t + 2, t + 3, t + 4
    for s_, y, q in ((0, y0, q0), (1, y1, q1)):
        A(f'v_and_b32_sdwa v{y}, v{OF(s_,r0)}, v{VFC} {SD} src0_sel:WORD_{h0} src1_sel:DWORD')
        A(f'v_sub_u32_sdwa v{q}, v{OF(s_,r1)}, v{y} {SD} src0_sel:WORD_{h1} src1_sel:DWORD')
    A(f'v_cmp_lt_i32 s[42:43], 16, v{q0}')
    A(f'v_cmp_lt_i32 s[44:45], 16, v{q1}')
    if skip:
        A('s_or_b64 vcc, s[42:43], s[44:45]')
        A(f's_cbranch_scc0 {skip}')
    A('s_orn2_b64 vcc, s[36:37], s[42:43]')
    A('s_and_b64 vcc, vcc, s[44:45]')
    A('s_and_b64 s[42:43], s[42:43], s[44:45]')
    A(f'v_cndmask_b32 v{off}, v{VTB+2}, v4, s[42:43]')
    A(f'v_cndmask_b32 v{y0}, v{y0}, v{y1}, vcc')
    A(f'v_cndmask_b32 v{q0}, v{q0}, v{q1}, vcc')
    A(f'v_cndmask_b32 v{y1}, v{VTB}, v{VTB+1}, vcc')
    A(f'v_add_u32 v{y0}, v{y0}, v{off}')
    A(f'v_sub_u32 v{rem}, v{q0}, v{off}')
    A(f'v_lshl_add_u32 v{t}, v{y0}, 2, v{y1}')

def pf1(s_, r, live=False):
    slot = r % 4
    r0, h0, r1, h1 = r >> 1, r & 1, (r + 1) >> 1, (r + 1) & 1
    y, ad, d, ln = VT, VT + 1, VT + 2, VT + 3
    e = EB(slot, s_)
    A('s_mov_b64 exec, -1')
    if s_ < 2:
        a, b = OF(s_, r0), OF(s_, r1)
        m = [MK(slot, s_, k) for k in range(3)]
        A(f'v_and_b32_sdwa v{y}, v{a}, v{VFC} {SD} src0_sel:WORD_{h0} src1_sel:DWORD')
        A(f'v_sub_u32_sdwa v{ln}, v{b}, v{a} {SD} src0_sel:WORD_{h1} src1_sel:WORD_{h0}')
        A(f'v_add_u32 v{y}, v{y}, v1')
        A(f'v_sub_u32_sdwa v{d}, v{y}, v{a} {SD} src0_sel:DWORD src1_sel:WORD_{h0}')
        A(f'v_lshl_add_u32 v{ad}, v{y}, 2, v{VTB+s_}')
        A(f'v_cmp_lt_u32 s[{m[0]}:{m[0]+1}], v{d}, v{ln}')
        A(f'v_add_u32 v{d}, 1, v{d}')
        A(f'v_cmp_lt_u32 s[{m[1]}:{m[1]+1}], v{d}, v{ln}')
        A(f'v_add_u32 v{d}, 1, v{d}')
        A(f'v_cmp_lt_u32 s[{m[2]}:{m[2]+1}], v{d}, v{ln}')
        A(f's_or_b64 vcc, s[{m[0]}:{m[0]+1}], s[{m[1]}:{m[1]+1}]')
        A(f's_or_b64 exec, vcc, s[{m[2]}:{m[2]+1}]')
    else:
        m = MK(slot, 2, 0)
        sk = newlab('Q_T')
        ad = VT
        A(f's_mov_b64 s[{m}:{m+1}], 0')
        third_sel(r, VT, VRM + slot, sk)
        A(f'v_cmp_lt_i32 s[{m}:{m+1}], 0, v{VRM+slot}')
        L(sk)
        A(f's_mov_b64 exec, s[{m}:{m+1}]')
    if live: A('s_and_b64 exec, exec, s[18:19]')
    if OPT['skip_pf']: A('s_mov_b64 exec, 0')
    A(f'buffer_load_dwordx4 v[{e}:{e+3}], v{ad}, s[{S_WS}:{S_WS+3}], 0 offen {OPT["ld_ent"]}')

def ch1(j, live=False):
    if j == 3:
        A('s_and_b64 exec, s[22:23], s[18:19]' if live else 's_mov_b64 exec, s[22:23]')
    else:
        A('s_mov_b64 exec, s[18:19]' if live else 's_mov_b64 exec, -1')
    A(f's_add_u32 s21, s20, {j*16384}')
    if OPT['skip_ch'] == 1: A('s_mov_b64 exec, 0')
    A(f'buffer_load_dwordx4 v[{VCH+4*j}:{VCH+4*j+3}], v2, s[{S_M}:{S_M+3}], s21 offen {OPT["ld_ch"]}')
    if j == 3 and OPT['skip_ch'] != 2: A(f's_add_u32 s20, s20, {CH*8}')

def gath1(w, g):
    A(f'v_bfe_u32 v{g}, v{w}, 0, 13')
    A(f'v_lshl_add_u32 v{g}, v{g}, 3, s31')
    if not OPT['skip_g']: A(f'ds_read_b64 v[{g}:{g+1}], v{g}')

def scat1(w, xr, e, g):
    x, ad = VT, VT + 1
    p0, p2 = VT + 2, VT + 4
    A(f'v_lshlrev_b32_sdwa v{x}, v{VSH}, v{xr} {SD} src0_sel:DWORD src1_sel:BYTE_{e}')
    A(f'v_lshlrev_b32 v{p2}, 16, v{g+1}')
    A(f'v_and_b32 v{p2+1}, s30, v{g+1}')
    A(f'v_and_or_b32 v{x}, v{w}, s35, v{x}')
    A(f'v_lshrrev_b32 v{ad}, 10, v{w}')
    A(f'v_lshlrev_b32 v{p0}, 16, v{g}')
    A(f'v_and_b32 v{p0+1}, s30, v{g}')
    for r in (p2, p2 + 1, p0, p0 + 1):
        A(f'v_fma_mix_f32 v{r}, v{r}, v{x}, s28 op_sel:[0,1,0] op_sel_hi:[0,1,0]')
        if r == p2: A(f'v_and_b32 v{ad}, 0xfff8, v{ad}')
        if r == p2 + 1: A(f'ds_add_u64 v{ad}, v[{p2}:{p2+1}] offset:{L_ARB}')
    A(f'v_lshl_or_b32 v{p0}, v{p0}, 6, 1')
    A(f'v_lshlrev_b32 v{p0+1}, 3, v{p0+1}')
    A(f'ds_add_u64 v{ad}, v[{p0}:{p0+1}]')

def Gphase(r):
    slot = r % 4
    done = newlab('Q_GI')
    for s_ in range(2):
        for e in range(3):
            m = MK(slot, s_, e)
            A(f's_mov_b64 exec, s[{m}:{m+1}]')
            gath1(EB(slot, s_) + e, G(s_, e))
    m = MK(slot, 2, 0)
    A(f's_mov_b64 exec, s[{m}:{m+1}]')
    A(f's_cbranch_execz {done}')
    gath1(EB(slot, 2), G(2, 0))
    rem = VRM + slot
    A(f'v_cmp_lt_i32 s[38:39], 1, v{rem}')
    A(f'v_cmp_lt_i32 s[40:41], 2, v{rem}')
    A(f'v_cmp_lt_i32 s[42:43], 8, v{rem}')
    for e in (1, 2):
        A(f's_mov_b64 exec, s[{36+2*e}:{37+2*e}]')
        A(f's_cbranch_execz {done}')
        gath1(EB(slot, 2) + e, G(2, e))
    A('s_mov_b64 exec, s[42:43]')
    A(f's_cbranch_execz {done}')
    A('s_mov_b64 exec, -1')
    third_sel(r, VT, rem)
    ad, stp, w, xr = VT + 6, VT + 7, VT + 8, VT + 9
    A(f'v_mov_b32 v{ad}, v{VT}')
    A(f'v_cndmask_b32 v{stp}, 16, 8, s[42:43]')
    lp = newlab('Q_SL')
    L(lp)
    A(f'v_sub_u32 v{rem}, v{rem}, v{stp}')
    A(f'v_lshl_add_u32 v{ad}, v{stp}, 2, v{ad}')
    A(f'v_cmpx_lt_i32 vcc, 0, v{rem}')
    A(f's_cbranch_execz {done}')
    A('s_mov_b64 s[44:45], exec')
    nx = newlab('Q_SN')
    for e in range(3):
        A(f'buffer_load_dword v{w}, v{ad}, s[{S_WS}:{S_WS+3}], 0 offen offset:{4*e}')
        A(f'buffer_load_dword v{xr}, v{ad}, s[{S_WS}:{S_WS+3}], 0 offen offset:12')
        A('s_waitcnt vmcnt(0)')
        A(f'v_bfe_u32 v{VOV}, v{w}, 0, 13')
        A(f'v_lshl_add_u32 v{VOV}, v{VOV}, 3, s31')
        A(f'ds_read_b64 v[{VOV}:{VOV+1}], v{VOV}')
        A('s_waitcnt lgkmcnt(0)')
        scat1(w, xr, e, VOV)
        if e < 2:
            A(f'v_cmpx_lt_i32 vcc, {1+e}, v{rem}')
            A(f's_cbranch_execz {nx}')
    L(nx)
    A('s_mov_b64 exec, s[44:45]')
    A(f's_branch {lp}')
    L(done)
    A('s_mov_b64 exec, -1')

def Sphase(r):
    slot = r % 4
    done = newlab('Q_S')
    ps = r & 1
    ops = [lambda: ch1(0, r >= 2), lambda: ch1(1, r >= 2), lambda: (ch1(2, r >= 2), ch1(3, r >= 2)),
           lambda: pf1(ps, r + 2, r + 2 >= 4), lambda: pf1(ps, r + 3, r + 3 >= 4), lambda: pf1(2, r + 2, r + 2 >= 4)]
    pos = [int(c) for c in OPT['vpos']]
    k = 0
    for s_ in range(3):
        for e in range(3):
            for o, p in zip(ops, pos):
                if p == k: o()
            k += 1
            m = MK(slot, s_, e)
            A(f's_mov_b64 exec, s[{m}:{m+1}]')
            if s_ == 2: A(f's_cbranch_execz {done}')
            b = EB(slot, s_)
            if not OPT['skip_s']: scat1(b + e, b + 3, e, G(s_, e))
    L(done)
    A('s_mov_b64 exec, -1')

pf1(0, 0); pf1(0, 1); pf1(1, 0); pf1(2, 0)
A('s_mov_b64 exec, -1')
dpp_scan('v_max_u32', VT + 9)
A('s_nop 1')
A(f'v_readlane_b32 s26, v{VT+9}, 63')
for s_ in range(2):
    A(f'v_and_b32 v{VT+2}, 0xffff, v{OF(s_,0)}')
    A(f'v_lshrrev_b32 v{VT+3}, 2, v{VT+2}')
    A(f'v_sub_u32 v{VT+2}, v{VT+2}, v{VT+3}')
    A(f'v_lshrrev_b32 v{VT+3}, 2, v{OF(s_,8)}')
    A(f'v_add_u32 v{VT+2}, v{VT+2}, v{VT+3}')
    A(f'v_sub_u32 v{VT+4+s_}, v{VT+2}, v{OF(s_,8)}')
A(f'v_add_u32 v{VT+2}, v{VT+4}, v{VT+5}')
dpp_scan('v_add_u32', VT + 2)
A('s_nop 1')
A(f'v_readlane_b32 s32, v{VT+2}, 63')
A('s_lshr_b32 s26, s26, 7')
A('s_min_u32 s27, s26, 252')
A('s_add_u32 s28, s27, 2')
A('s_lshl_b32 s28, s28, 23')
A('s_or_b32 s28, s28, 0x400000')
A('s_sub_i32 s29, s27, 148')
A('s_waitcnt vmcnt(4)')
fill()
for j in range(4): ch1(j)
pf1(1, 1); pf1(1, 2); pf1(2, 1)
A('s_mov_b64 exec, -1')
A('s_mov_b32 s33, 0')
A('s_mov_b64 s[18:19], -1')
A('s_waitcnt vmcnt(7) lgkmcnt(0)')
stamp2()
A('s_barrier')
L('Q_LOOP')
for r in range(4):
    if r == 1: stamp2()
    Gphase(r)
    A('s_waitcnt vmcnt(3) lgkmcnt(0)')
    if r == 1: stamp2()
    A('s_barrier')
    if r == 1: stamp2()
    last = newlab('Q_SK')
    if r == 3:
        A('s_cmp_eq_u32 s33, 3')
        A(f's_cbranch_scc1 {last}')
    fill()
    L(last)
    Sphase(r)
    if r == 3:
        A('s_add_u32 s33, s33, 1')
        A('s_cmp_lt_u32 s33, 4')
        A('s_cbranch_scc0 Q_DONE')
        A('s_cmp_eq_u32 s33, 3')
        A('s_cselect_b64 s[18:19], 0, -1')
        for s_ in range(2):
            for k in range(0, 7): A(f'v_mov_b32 v{OF(s_,k)}, v{OF(s_,k+2)}')
    A('s_waitcnt vmcnt(7) lgkmcnt(12)' if not OPT['skip_s'] else 's_waitcnt vmcnt(7) lgkmcnt(0)')
    if r == 1: stamp2()
    A('s_barrier')
    if r == 1: stamp2()
A('s_branch Q_LOOP')
L('Q_DONE')
A('s_waitcnt lgkmcnt(0)')
stamp2()
A('s_barrier')
A('v_lshlrev_b32 v3, 3, v0')
RA = 8
for k in range(7):
    if k == 6: A('s_mov_b64 exec, s[24:25]')
    A(f'ds_read_b64 v[{RA+4*k}:{RA+4*k+1}], v3 offset:{k*8192}')
A('s_mov_b64 exec, -1')
A(f'v_add_u32 v4, {L_ARB}, v3')
for k in range(7):
    if k == 6: A('s_mov_b64 exec, s[24:25]')
    A(f'ds_read_b64 v[{RA+4*k+2}:{RA+4*k+3}], v4 offset:{k*8192}')
A('s_mov_b64 exec, -1')
A('s_lshl_b32 s34, s28, 6'); A('s_or_b32 s34, s34, 1')
A('s_lshl_b32 s35, s28, 3')
A('s_and_b32 s16, s3, 3'); A(f's_mul_i32 s16, s16, {E*16}')
A('s_lshr_b32 s17, s3, 2'); A(f's_mul_i32 s17, s17, {CH*16}')
A('s_add_u32 s16, s16, s17'); A(f's_add_u32 s16, s16, {PART_BASE:#x}')
A('v_mov_b32 v5, 0')
A('s_waitcnt lgkmcnt(0)')
X = 40
for k in range(7):
    a0, a1, b0, b1 = RA + 4*k, RA + 4*k + 1, RA + 4*k + 2, RA + 4*k + 3
    c = X; P = X + 2; t = X + 4
    if k == 6: A('s_mov_b64 exec, s[24:25]')
    A(f'v_and_b32 v{c}, 63, v{a0}')
    A(f'v_add_u32 v5, v5, v{c}')
    A(f'v_mad_u64_u32 v[{P}:{P+1}], vcc, v{c}, s34, 0')
    A(f'v_mul_lo_u32 v{t}, v{c}, s35')
    A(f'v_add_u32 v{P+1}, v{P+1}, v{t}')
    A(f'v_sub_co_u32 v{a0}, vcc, v{a0}, v{P}')
    A('s_nop 1')
    A(f'v_subb_co_u32 v{a1}, vcc, v{a1}, v{P+1}, vcc')
    A(f'v_mad_u64_u32 v[{P}:{P+1}], vcc, v{c}, s28, 0')
    A(f'v_add_u32 v{P+1}, v{P+1}, v{P}')
    A(f'v_sub_co_u32 v{b0}, vcc, v{b0}, v{P}')
    A('s_nop 1')
    A(f'v_subb_co_u32 v{b1}, vcc, v{b1}, v{P+1}, vcc')
    A(f'v_alignbit_b32 v{a0}, v{a1}, v{a0}, 3')
    A(f'v_ashrrev_i32 v{a0}, 3, v{a0}')
    A(f'v_ashrrev_i32 v{a1}, 3, v{a1}')
    A(f'v_ashrrev_i32 v{t}, 31, v{a0}')
    A(f'v_sub_u32 v{a1}, v{a1}, v{t}')
    A(f'v_ashrrev_i32 v{t}, 31, v{b0}')
    A(f'v_sub_u32 v{b1}, v{b1}, v{t}')
    for r in (a0, a1, b0, b1): A(f'v_cvt_f32_i32 v{r}, v{r}')
    for r in (a0, a1, b0, b1): A(f'v_ldexp_f32 v{r}, v{r}, s29')
    A(f'buffer_store_dwordx4 v[{a0}:{b1}], v2, s[{S_WS}:{S_WS+3}], s16 offen {OPT["st_part"]}')
    A('s_add_u32 s16, s16, 16384')
A('s_mov_b64 exec, -1')
stamp2()
if OPT['stamp2'] >= 0:
    A('s_waitcnt vmcnt(0)')
    stamp2()
    A('v_readfirstlane_b32 s54, v0')
    A('s_nop 3')
    A(f's_cmp_lg_u32 s2, {OPT["stamp2"]}')
    A('s_cbranch_scc1 Q_END')
    A(f's_cmp_lg_u32 s54, {64*OPT.get("swave", 0)}')
    A('s_cbranch_scc1 Q_END')
    A('s_load_dwordx2 s[4:5], s[0:1], 96')
    A('s_waitcnt lgkmcnt(0)')
    srd(72, 4, 256)
    A('v_readlane_b32 s54, v127, 0')
    A('v_and_b32 v4, 63, v0')
    A('v_lshlrev_b32 v4, 2, v4')
    A('v_subrev_u32 v127, s54, v127')
    A('buffer_store_dword v127, v4, s[72:75], 0 offen')
L('Q_END')
A('s_endpgm')

khead('fin_kernel')
A(f's_cmp_ge_u32 s2, {G3}')
A('s_cbranch_scc1 F_END')
A('s_load_dwordx2 s[4:5], s[0:1], 0')
A('s_load_dwordx2 s[6:7], s[0:1], 104')
A('s_load_dwordx2 s[8:9], s[0:1], 24')
A('s_load_dwordx2 s[10:11], s[0:1], 88')
A('s_load_dwordx2 s[96:97], s[0:1], 40')
A('s_load_dwordx4 s[32:35], s[0:1], 56')
A('s_load_dwordx4 s[28:31], s[0:1], 72')
S_M, S_WS, S_DIST, S_O = 12, 16, 20, 24
A('s_lshl_b32 s3, s2, 9')
A('s_waitcnt lgkmcnt(0)')
A('s_load_dwordx4 s[40:43], s[96:97], 0')
A('s_load_dwordx16 s[44:59], s[32:33], 0')
A('s_load_dwordx16 s[60:75], s[34:35], 0')
A('s_load_dwordx8 s[76:83], s[28:29], 0')
A('s_load_dwordx8 s[84:91], s[30:31], 0')
srd(S_M, 4, E * 8); srd(S_WS, 6, WS_BYTES); srd(S_DIST, 8, E * 2); srd(S_O, 10, E * 8)
A('s_mov_b32 s38, 0xffff0000')
VB = 2
def R(i, n): return VB + 40 * i + n
for i in range(2):
    e, t = R(i, 1), R(i, 2)
    A(f'v_add_u32 v{e}, s3, v0')
    if i: A(f'v_add_u32 v{e}, 256, v{e}')
    A(f'v_min_u32 v{t}, {E-1}, v{e}')
    A(f'v_lshlrev_b32 v{R(i,0)}, 4, v{t}')
    for p in range(4):
        A(f's_mov_b32 s39, {PART_BASE + p*E*16:#x}')
        A(f'buffer_load_dwordx4 v[{R(i,6+4*p)}:{R(i,9+4*p)}], v{R(i,0)}, s[{S_WS}:{S_WS+3}], s39 offen {OPT["ld_part"]}')
    A(f'v_lshlrev_b32 v{t}, 1, v{e}')
    A(f'v_lshlrev_b32 v{e}, 3, v{e}')
    A(f'buffer_load_ushort v{R(i,3)}, v{t}, s[{S_DIST}:{S_DIST+3}], 0 offen')
    A(f'buffer_load_dwordx2 v[{R(i,4)}:{R(i,5)}], v{e}, s[{S_M}:{S_M+3}], 0 offen')
def sw(base, idx, dst):
    s = base + idx // 2
    if idx & 1: A(f's_and_b32 s{dst}, s{s}, 0xffff0000')
    else: A(f's_lshl_b32 s{dst}, s{s}, 16')
def rnd2(a, b, t):
    A(f'v_cvt_pk_bf16_f32 v{t}, v{a}, v{b}')
    A(f'v_lshlrev_b32 v{a}, 16, v{t}')
    A(f'v_and_b32 v{b}, s38, v{t}')
A('s_waitcnt vmcnt(0) lgkmcnt(0)')
for i in range(2):
    for d in range(4):
        A(f'v_add_f32 v{R(i,6+d)}, v{R(i,6+d)}, v{R(i,10+d)}')
        A(f'v_add_f32 v{R(i,14+d)}, v{R(i,14+d)}, v{R(i,18+d)}')
        A(f'v_add_f32 v{R(i,6+d)}, v{R(i,6+d)}, v{R(i,14+d)}')
for d in range(4):
    for k in range(4):
        sw(76, k*4 + d, 92)
        for i in range(2):
            if k == 0: A(f'v_mul_f32 v{R(i,10+d)}, s92, v{R(i,6+k)}')
            else: A(f'v_fmac_f32 v{R(i,10+d)}, s92, v{R(i,6+k)}')
A(f's_mov_b32 s94, {f32bits(-10.0):#x}')
A(f's_mov_b32 s95, {f32bits(math.log2(math.e)):#x}')
for i in range(2): A(f'v_lshlrev_b32 v{R(i,3)}, 16, v{R(i,3)}')
for r in range(0, 8, 2):
    sw(40, r, 92); sw(40, r + 1, 93)
    for i in range(2):
        a, b, t = R(i, 14 + r), R(i, 15 + r), R(i, 2)
        A(f'v_subrev_f32 v{a}, s92, v{R(i,3)}')
        A(f'v_subrev_f32 v{b}, s93, v{R(i,3)}')
        rnd2(a, b, t)
        A(f'v_mul_f32 v{a}, v{a}, v{a}')
        A(f'v_mul_f32 v{b}, v{b}, v{b}')
        rnd2(a, b, t)
        A(f'v_mul_f32 v{a}, s94, v{a}')
        A(f'v_mul_f32 v{b}, s94, v{b}')
        rnd2(a, b, t)
        A(f'v_mul_f32 v{a}, s95, v{a}')
        A(f'v_mul_f32 v{b}, s95, v{b}')
        A(f'v_exp_f32 v{a}, v{a}')
        A(f'v_exp_f32 v{b}, v{b}')
        A('s_nop 0')
        rnd2(a, b, t)
for base, dst in ((60, 22), (44, 26)):
    for d in range(4):
        for r in range(8):
            sw(base, r*4 + d, 92)
            for i in range(2):
                if r == 0: A(f'v_mul_f32 v{R(i,dst+d)}, s92, v{R(i,14+r)}')
                else: A(f'v_fmac_f32 v{R(i,dst+d)}, s92, v{R(i,14+r)}')
for i in range(2):
    for d in range(4):
        A(f'v_mul_f32 v{R(i,10+d)}, v{R(i,10+d)}, v{R(i,22+d)}')
    rnd2(R(i,10), R(i,11), R(i,2)); rnd2(R(i,12), R(i,13), R(i,2))
    rnd2(R(i,26), R(i,27), R(i,2)); rnd2(R(i,28), R(i,29), R(i,2))
for d in range(4):
    for k in range(4):
        sw(84, k*4 + d, 92)
        for i in range(2):
            if k == 0: A(f'v_mul_f32 v{R(i,22+d)}, s92, v{R(i,10+k)}')
            else: A(f'v_fmac_f32 v{R(i,22+d)}, s92, v{R(i,10+k)}')
for i in range(2):
    rnd2(R(i,22), R(i,23), R(i,2)); rnd2(R(i,24), R(i,25), R(i,2))
    for d in range(4):
        A(f'v_mul_f32 v{R(i,22+d)}, v{R(i,22+d)}, v{R(i,26+d)}')
    rnd2(R(i,22), R(i,23), R(i,2)); rnd2(R(i,24), R(i,25), R(i,2))
    A(f'v_lshlrev_b32 v{R(i,26)}, 16, v{R(i,4)}')
    A(f'v_and_b32 v{R(i,27)}, s38, v{R(i,4)}')
    A(f'v_lshlrev_b32 v{R(i,28)}, 16, v{R(i,5)}')
    A(f'v_and_b32 v{R(i,29)}, s38, v{R(i,5)}')
    for d in range(4):
        A(f'v_add_f32 v{R(i,22+d)}, v{R(i,22+d)}, v{R(i,26+d)}')
    A(f'v_cvt_pk_bf16_f32 v{R(i,30)}, v{R(i,22)}, v{R(i,23)}')
    A(f'v_cvt_pk_bf16_f32 v{R(i,31)}, v{R(i,24)}, v{R(i,25)}')
    A(f'buffer_store_dwordx2 v[{R(i,30)}:{R(i,31)}], v{R(i,1)}, s[{S_O}:{S_O+3}], 0 offen')
L('F_END')
A('s_endpgm')

out.append('.section .rodata,"a"')
for name, vg in (('part_kernel', 128), ('acc_kernel', 128), ('fin_kernel', 80)):
    out.append('.p2align 6')
    out.append(f'.amdhsa_kernel {name}')
    out.append(f'  .amdhsa_next_free_vgpr {vg}')
    out.append('  .amdhsa_next_free_sgpr 102')
    out.append(f'  .amdhsa_accum_offset {vg}')
    out.append('  .amdhsa_group_segment_fixed_size 0')
    out.append('  .amdhsa_kernarg_size 112')
    out.append('  .amdhsa_user_sgpr_count 2')
    out.append('  .amdhsa_user_sgpr_kernarg_segment_ptr 1')
    out.append('  .amdhsa_system_sgpr_workgroup_id_x 1')
    out.append('  .amdhsa_float_denorm_mode_32 3')
    out.append('.end_amdhsa_kernel')
open(sys.argv[1], 'w').write('\n'.join(out) + '\n')
```

```python
import struct, sys, math

E = 400000
T = 12800000
CH = 6250
S = 25000
NTILE = 512
NBLK = (S + 2) // 3
RS = 133376
OFS = 8208
OFF_BASE = 0x4400000
MAX_BASE = 0x4C00000
SCL_BASE = 0x4C01000
PART_BASE = 0x5000000
WS_BYTES = 268435456
MAGIC_DIV = (2**32 + CH - 1) // CH
MINI = S - 6 * 4096
assert NTILE * RS <= OFF_BASE and OFF_BASE + NTILE * OFS <= MAX_BASE

OPT = dict(ld_in='nt', st_ws='sc0 sc1', ld_ent='', ld_ch='', st_part='sc0 sc1', ld_part='', NB=2, skip_s=0, skip_g=0, skip_fill=0, skip_e=0,
           stamp=-1, stamp2=-1, prio=1, ilv='2:0,3:1,4:2,5:3', pre=1, npb=1, bps=1, vpos='123456', skip_ch=0, skip_pf=0, pmap=0, cpos=0, epos=1, unpair=0, k2prio=0, pa=2, pb=2, struct=0, forcefb=0)
for a in sys.argv[2:]:
    k, v = a.split('=')
    OPT[k] = int(v) if (v.lstrip('-').isdigit() and k != 'vpos') else v.replace('_', ' ')

def f32bits(x): return struct.unpack('<I', struct.pack('<f', x))[0]
out = []
def A(s): out.append('    ' + s)
def L(s): out.append(s + ':')
_lab = [0]
def newlab(p='L'):
    _lab[0] += 1
    return f'{p}_{_lab[0]}'
def srd(d, b, nbytes):
    A(f's_mov_b32 s{d}, s{b}')
    A(f's_and_b32 s{d+1}, s{b+1}, 0xffff')
    A(f's_mov_b32 s{d+2}, {nbytes:#x}')
    A(f's_mov_b32 s{d+3}, 0x00020000')
def dpp_scan(op, v):
    for sh in (1, 2, 4, 8):
        A('s_nop 1')
        A(f'{op}_dpp v{v}, v{v}, v{v} row_shr:{sh} row_mask:0xf bank_mask:0xf bound_ctrl:0')
    A('s_nop 1')
    A(f'{op}_dpp v{v}, v{v}, v{v} row_bcast:15 row_mask:0xa bank_mask:0xf')
    A('s_nop 1')
    A(f'{op}_dpp v{v}, v{v}, v{v} row_bcast:31 row_mask:0xc bank_mask:0xf')
def khead(name):
    out.append(f'.globl {name}')
    out.append('.p2align 8')
    out.append(f'.type {name},@function')
    L(name)
SD = 'dst_sel:DWORD dst_unused:UNUSED_PAD'

stampn = [0]
def stamp(key):
    if OPT[key] < 0: return
    n = stampn[0]; stampn[0] += 1
    A(OPT.get('clk','s_memtime').replace(' ','_') + ' s[98:99]')
    A('s_waitcnt lgkmcnt(0)')
    A(f's_mov_b32 s{76+n}, s98')
def stamp_flush(key, swave, vz, wave=0):
    if OPT[key] < 0: return
    lab = newlab('STF')
    A(f's_cmp_lg_u32 s2, {OPT[key]}')
    A(f's_cbranch_scc1 {lab}')
    A(f's_cmp_lg_u32 s{swave}, {wave}')
    A(f's_cbranch_scc1 {lab}')
    A('s_load_dwordx2 s[4:5], s[0:1], 96')
    A('s_waitcnt lgkmcnt(0)')
    srd(72, 4, 256)
    A('s_mov_b64 exec, 1')
    A(f'v_mov_b32 v{vz}, 0')
    for n in range(stampn[0]):
        A(f's_sub_u32 s98, s{76+n}, s76')
        A(f'v_mov_b32 v{vz+1}, s98')
        A(f'buffer_store_dword v{vz+1}, v{vz}, s[72:75], 0 offen offset:{4*n}')
        A('s_nop 1')
    L(lab)

L_H, L_SC, L_ST = 0, 16384, 16640
L_X = L_ST
L_W = L_X + NBLK * 4 + 8
LDS1 = L_W + NBLK * 12
assert L_W < 65536 and L_W % 16 == 0
L_ARB, L_CH, L_SC2 = 50000, 100000, 150000
LDS2 = 150000 + 64
G3 = (E + 511) // 512

hdr = open('standalone__molecular_angular_gemnet__graph.s.ref').read().split('; Override launch')[0]
out.append(hdr.rstrip())
out.append(f'; @launch kernel=part_kernel grid=(256,1,1) block=(1024,1,1) lds={LDS1}')
out.append(f'; @launch kernel=acc_kernel grid=(256,1,1) block=(1024,1,1) lds={LDS2}')
out.append(f'; @launch kernel=fin_kernel grid=({G3},1,1) block=(256,1,1) lds=0')
out.append('.amdgcn_target "amdgcn-amd-amdhsa--gfx950"')
out.append('.text')

khead('part_kernel')
A('s_cmp_ge_u32 s2, 256')
A('s_cbranch_scc1 P_END')
A('s_load_dwordx4 s[4:7], s[0:1], 0')
A('s_load_dwordx2 s[8:9], s[0:1], 16')
A('s_load_dwordx2 s[10:11], s[0:1], 32')
A('s_load_dwordx2 s[12:13], s[0:1], 48')
A('s_load_dwordx2 s[14:15], s[0:1], 104')
S_IN, S_OUT, S_ANG, S_WS, S_M = 16, 20, 24, 28, 32
if OPT['prio']: A('s_setprio 3')
A('v_lshlrev_b32 v1, 4, v0')
A('v_lshlrev_b32 v2, 3, v0')
A('v_mov_b32 v3, 1')
A('v_mov_b32 v4, 0x10000')
A('v_mov_b32 v5, 0')
A('v_lshlrev_b32 v6, 2, v0')
A('v_lshlrev_b32 v7, 1, v0')
TT = 8
for r in range(4): A(f'v_mov_b32 v{TT+4+r}, 0')
A('v_readfirstlane_b32 s50, v0')
A(f'ds_write_b128 v1, v[{TT+4}:{TT+7}]')
A(f'ds_write_b32 v6, v5 offset:{L_SC}')
A(f's_movk_i32 s42, {MINI}')
A('v_cmp_gt_u32 s[40:41], s42, v0')
A('s_waitcnt lgkmcnt(0)')
A('s_load_dword s36, s[12:13], 0')
srd(S_IN, 6, T * 4); srd(S_OUT, 8, T * 4); srd(S_ANG, 10, T * 2); srd(S_WS, 14, WS_BYTES); srd(S_M, 4, E * 8)
A('s_lshr_b32 s50, s50, 6')
A(f's_mul_i32 s37, s2, {2*S*4}')
A(f's_mul_i32 s38, s2, {2*S*2}')
UA = 24
unitA = [(UA + 10*k, UA + 10*k + 4, UA + 10*k + 8) for k in range(6)] + [(84, 85, 86)]
unitB = [(88 + 10*k, 88 + 10*k + 4, 88 + 10*k + 8) for k in range(4)] + [unitA[0], unitA[1], (44, 45, 46)]
vm = []
ldf = OPT['ld_in']
def load_unit(tag, k):
    vi, vo, va = (unitA if tag == 'A' else unitB)[k]
    tile = 0 if tag == 'A' else 1
    A(f's_add_u32 s43, s37, {tile*S*4 + k*16384}')
    A(f's_add_u32 s44, s38, {tile*S*2 + k*8192}')
    if k < 6:
        A(f'buffer_load_dwordx4 v[{vo}:{vo+3}], v1, s[{S_OUT}:{S_OUT+3}], s43 offen {ldf}')
        A(f'buffer_load_dwordx4 v[{vi}:{vi+3}], v1, s[{S_IN}:{S_IN+3}], s43 offen {ldf}')
        A(f'buffer_load_dwordx2 v[{va}:{va+1}], v2, s[{S_ANG}:{S_ANG+3}], s44 offen {ldf}')
    else:
        A('s_or_b64 exec, s[40:41], 1')
        A(f'buffer_load_dword v{vo}, v6, s[{S_OUT}:{S_OUT+3}], s43 offen {ldf}')
        A(f'buffer_load_dword v{vi}, v6, s[{S_IN}:{S_IN+3}], s43 offen {ldf}')
        A(f'buffer_load_ushort v{va}, v7, s[{S_ANG}:{S_ANG+3}], s44 offen {ldf}')
        A('s_mov_b64 exec, -1')
    vm.extend([(tag, k)] * 3)
def vwait(tag):
    idx = max(i for i, t in enumerate(vm) if t == tag)
    A(f's_waitcnt vmcnt({min(len(vm)-1-idx, 63)})')
stamp('stamp')
for k in range(OPT['pre']): load_unit('A', k)
A('s_barrier')
A(f's_mul_i32 s39, s2, {782*16}')
A(f'buffer_load_dwordx4 v[{TT}:{TT+3}], v1, s[{S_M}:{S_M+3}], s39 offen'); vm.append('M')
for k in range(OPT['pre'], 7): load_unit('A', k)
if OPT['prio']: A('s_setprio 0')
A(f's_mov_b32 s46, {f32bits(1/(2*math.pi)):#x}')
A(f's_mov_b32 s47, {f32bits(1/(2*math.pi)):#x}')
A('s_mov_b32 s48, 0xfc000000')
A('s_mov_b32 s49, 0xffff0000')
A(f's_mov_b32 s51, {(-CH) & 0xffffffff:#x}')
A('s_mov_b32 s52, 0x00020002')
A('s_mov_b32 s53, 0x55555556')
A('s_waitcnt lgkmcnt(0)')
A('s_lshl_b32 s36, s36, 16')

PT = TT + 11
def process(tag, k):
    vi0, vo0, va0 = (unitA if tag == 'A' else unitB)[k]
    inc = 3 if tag == 'A' else 4
    n = 4 if k < 6 else 1
    vwait((tag, k))
    skip = None
    if k == 6:
        skip = newlab('P_MS')
        A('s_mov_b64 exec, s[40:41]')
        A(f's_cbranch_execz {skip}')
    tj, ti, t1 = PT, PT + 1, PT + 2
    for j in range(n):
        vi, vo = vi0 + j, vo0 + j
        A(f'v_mul_hi_u32_u24 v{tj}, {MAGIC_DIV:#x}, v{vi}')
        A(f'v_mul_hi_u32_u24 v{ti}, {MAGIC_DIV:#x}, v{vo}')
        A(f'v_lshl_add_u32 v{vi}, v{vo}, 13, v{vi}')
        A(f'v_lshl_add_u32 v{vo}, v{ti}, 6, v{tj}')
        A(f'v_lshl_add_u32 v{t1}, v{ti}, 13, v{tj}')
        A(f'v_lshlrev_b32 v{vo}, 2, v{vo}')
        A(f'v_mad_i32_i24 v{vi}, v{t1}, s51, v{vi}')
        A(f'ds_add_u32 v{vo}, v{inc} offset:{L_H}')
    a0, a1 = PT + 3, PT + 4
    assert a0 % 2 == 0
    npair = (n + 1) // 2
    nf = newlab('P_NF')
    A('s_cmp_eq_u32 s36, 0x3f800000')
    A(f's_cbranch_scc1 {nf}')
    for p in range(npair):
        va = va0 + p
        A(f'v_lshlrev_b32 v{a0}, 16, v{va}')
        A(f'v_and_b32 v{a1}, s49, v{va}')
        A(f'v_mul_f32 v{a0}, s36, v{a0}')
        A(f'v_mul_f32 v{a1}, s36, v{a1}')
        A(f'v_cvt_pk_bf16_f32 v{va}, v{a0}, v{a1}')
    L(nf)
    for p in range(npair):
        va = va0 + p
        A(f'v_lshlrev_b32 v{a0}, 16, v{va}')
        A(f'v_and_b32 v{a1}, s49, v{va}')
        A(f'v_pk_mul_f32 v[{a0}:{a1}], v[{a0}:{a1}], s[46:47]')
        A(f'v_fract_f32 v{a0}, v{a0}')
        A(f'v_fract_f32 v{a1}, v{a1}')
        A(f'v_cos_f32 v{a0}, v{a0}')
        A(f'v_cos_f32 v{a1}, v{a1}')
        A('s_nop 0')
        A(f'v_cvt_pk_f16_f32 v{va}, v{a0}, v{a1}')
        A(f'v_pk_add_u16 v{va}, v{va}, s52')
        e0, e1 = 2*p, 2*p + 1
        A(f'v_lshlrev_b32 v{a0}, 16, v{va}')
        if e1 < n: A(f'v_and_or_b32 v{vi0+e1}, v{va}, s48, v{vi0+e1}')
        A(f'v_and_or_b32 v{vi0+e0}, v{a0}, s48, v{vi0+e0}')
        A(f'v_lshrrev_b32 v{va}, 2, v{va}')
    if k == 6:
        L(skip)
        A('s_mov_b64 exec, -1')

def maxm():
    vwait('M')
    A('s_mov_b32 s42, 0x7fff7fff')
    for j in range(4): A(f'v_and_b32 v{TT+j}, s42, v{TT+j}')
    A(f'v_pk_max_u16 v{TT}, v{TT}, v{TT+2}')
    A(f'v_pk_max_u16 v{TT+1}, v{TT+1}, v{TT+3}')
    A(f'v_pk_max_u16 v{TT}, v{TT}, v{TT+1}')
    A(f'v_lshrrev_b32 v{TT+1}, 16, v{TT}')
    A(f'v_and_b32 v{TT}, 0xffff, v{TT}')
    A(f'v_max_u32 v{TT}, v{TT}, v{TT+1}')
    dpp_scan('v_max_u32', TT)
    A('s_nop 1')
    A(f'v_readlane_b32 s42, v{TT}, 63')
    A('s_nop 1')
    A(f'v_mov_b32 v{TT}, s42')
    A('s_mov_b64 exec, 1')
    A(f'ds_max_u32 v5, v{TT} offset:{L_SC+128}')
    A('s_mov_b64 exec, -1')

def scan(tile, scoff):
    h = TT
    A('s_waitcnt lgkmcnt(0)')
    A('s_barrier')
    A(f'ds_read_b128 v[{h}:{h+3}], v1 offset:{L_H}')
    A(f'v_and_b32 v{h+5}, 63, v0')
    A(f'v_cmp_lt_u32 vcc, s50, v{h+5}')
    A(f'v_lshlrev_b32 v{h+5}, 2, v{h+5}')
    A('s_and_b64 s[56:57], vcc, 0xffff')
    A('s_waitcnt lgkmcnt(0)')
    if tile == 1:
        for j in range(4): A(f'v_lshrrev_b32 v{h+j}, 16, v{h+j}')
    for j in range(1, 4): A(f'v_add_u32 v{h+j}, v{h+j-1}, v{h+j}')
    A(f'v_mov_b32 v{h+4}, v{h+3}')
    dpp_scan('v_add_u32', h + 4)
    A('s_nop 1')
    A(f'v_readlane_b32 s42, v{h+4}, 63')
    A('s_nop 1')
    A(f'v_mov_b32 v{h+6}, s42')
    A('s_mov_b64 exec, s[56:57]')
    A(f'ds_add_u32 v{h+5}, v{h+6} offset:{scoff}')
    A('s_mov_b64 exec, -1')
    A('s_lshl_b32 s42, s50, 2')
    A(f'v_mov_b32 v{h+5}, s42')
    A(f'v_sub_u32 v{h+4}, v{h+4}, v{h+3}')
    A('s_waitcnt lgkmcnt(0)')
    A('s_barrier')
    A(f'ds_read_b32 v{h+5}, v{h+5} offset:{scoff}')
    if tile == 0: A(f'ds_read_b32 v{h+6}, v5 offset:{L_SC+128}')
    A(f's_mul_i32 s42, s2, {2*OFS}')
    A(f's_add_u32 s42, s42, {OFF_BASE + tile*OFS:#x}')
    A('s_waitcnt lgkmcnt(0)')
    A(f'v_add_u32 v{h+4}, v{h+4}, v{h+5}')
    for j in (3, 2, 1): A(f'v_add_u32 v{h+j}, v{h+4}, v{h+j-1}')
    A(f'v_mov_b32 v{h}, v{h+4}')
    A(f'ds_write_b128 v1, v[{h}:{h+3}] offset:{L_H}')
    for j in range(4):
        A(f'v_mul_hi_u32 v{h+10+j}, v{h+j}, s53')
        A(f'v_add_u32 v{h+10+j}, v{h+10+j}, v{h+j}')
    A(f'v_lshl_or_b32 v{h+8}, v{h+11}, 16, v{h+10}')
    A(f'v_lshl_or_b32 v{h+9}, v{h+13}, 16, v{h+12}')
    A(f'buffer_store_dwordx2 v[{h+8}:{h+9}], v2, s[{S_WS}:{S_WS+3}], s42 offen')
    vm.append(('OFS', tile))
    done = newlab('P_SC')
    A('s_cmp_lg_u32 s50, 0')
    A(f's_cbranch_scc1 {done}')
    A('s_mov_b64 exec, 1')
    A(f'v_mov_b32 v{h+5}, {S + S//3}')
    A('s_add_u32 s42, s42, 8192')
    A(f'buffer_store_dword v{h+5}, v5, s[{S_WS}:{S_WS+3}], s42 offen')
    if tile == 0:
        A(f's_add_u32 s42, s2, {MAX_BASE:#x}')
        A(f'v_lshrrev_b32 v{h+6}, 7, v{h+6}')
        A(f'buffer_store_byte v{h+6}, v5, s[{S_WS}:{S_WS+3}], s42 offen')
    A('s_mov_b64 exec, -1')
    L(done)
    A('s_waitcnt lgkmcnt(0)')
    A('s_barrier')

def scatter(tag, after_wait, after_fin):
    units = unitA if tag == 'A' else unitB
    lg = []
    def issue(k):
        vi0, vo0, _ = units[k]
        n = 4 if k < 6 else 1
        if k == 6: A('s_mov_b64 exec, s[40:41]')
        for j in range(n):
            A(f'ds_add_rtn_u32 v{TT+4*(k&1)+j}, v{vo0+j}, v3 offset:{L_H}')
            lg.append(('R', k))
        if k == 6: A('s_mov_b64 exec, -1')
    def fin(k):
        vi0, vo0, va0 = units[k]
        n = 4 if k < 6 else 1
        if k == 6: A('s_mov_b64 exec, s[40:41]')
        for j in range(n):
            t = TT + 4*(k & 1) + j
            q, a = TT + 8, TT + 9 + (j & 1)
            if tag == 'A': A(f'v_and_b32 v{t}, 0xffff, v{t}')
            A(f'v_mul_hi_u32 v{q}, v{t}, s53')
            A(f'v_lshlrev_b32 v{a}, 2, v{t}')
            A(f'v_add_u32 v{t}, v{q}, v{t}')
            A(f'ds_write_b32 v{a}, v{vi0+j} offset:{L_W}')
            A(f'ds_write_b8{"_d16_hi" if j & 1 else ""} v{t}, v{va0+j//2} offset:{L_X}')
            lg.extend([('W', k)] * 2)
        if k == 6: A('s_mov_b64 exec, -1')
    issue(0)
    for k in range(7):
        if k + 1 < 7: issue(k + 1)
        idx = max(i for i, t in enumerate(lg) if t == ('R', k) or t == ('W', k - 1))
        ny = sum(1 for t in lg[idx+1:] if t[1] != 6)
        A(f's_waitcnt lgkmcnt({min(ny, 15)})')
        if k in after_wait: after_wait[k]()
        fin(k)
        if k in after_fin:
            after_fin[k]()
            lg.extend([('H', k)] * 4)
    A('s_waitcnt lgkmcnt(0)')
    A('s_barrier')

RC = (NBLK + 1023) // 1024
lastc = NBLK - (RC - 1) * 1024
def copyout(tile, regs, ar):
    A(f's_movk_i32 s42, {lastc}')
    A('v_cmp_gt_u32 s[56:57], s42, v0')
    A(f'v_mul_u32_u24 v{ar[0]}, 12, v0')
    A(f'v_add_u32 v{ar[0]}, {L_W}, v{ar[0]}')
    A(f's_mul_i32 s42, s2, {2*RS}')
    if tile: A(f's_add_u32 s42, s42, {RS}')
    def rd(j):
        r = regs[j]
        if j == RC - 1: A('s_mov_b64 exec, s[56:57]')
        A(f'ds_read2_b32 v[{r}:{r+1}], v{ar[0]} offset0:0 offset1:1')
        A(f'ds_read_b32 v{r+2}, v{ar[0]} offset:8')
        A(f'ds_read_b32 v{r+3}, v6 offset:{L_X + j*4096}')
        if j == RC - 1: A('s_mov_b64 exec, -1')
        else: A(f'v_add_u32 v{ar[0]}, {12*1024}, v{ar[0]}')
    LA = 4
    for j in range(LA): rd(j)
    for j in range(RC):
        if j + LA < RC: rd(j + LA)
        A(f's_waitcnt lgkmcnt({3*max(0, min(LA, RC-2-j))})')
        if j == RC - 1: A('s_mov_b64 exec, s[56:57]')
        A(f'buffer_store_dwordx4 v[{regs[j]}:{regs[j]+3}], v1, s[{S_WS}:{S_WS+3}], s42 offen {OPT["st_ws"]}')
        if j < RC - 1: vm.append(('ST', tile, j))
        if j < RC - 1: A('s_add_u32 s42, s42, 16384')
    A('s_mov_b64 exec, -1')

stamp('stamp')
process('A', 0)
stamp('stamp')
maxm()
for k in range(1, 7): process('A', k)
stamp('stamp')
NPB = OPT['npb']
for k in range(NPB): load_unit('B', k)
scan(0, L_SC)
stamp('stamp')
ilv = dict((int(x.split(':')[0]), int(x.split(':')[1])) for x in OPT['ilv'].split(',')) if OPT['ilv'] else {}
pend = list(range(NPB, 7))
aw = {}
for k in range(7):
    take = []
    while pend and len(take) < OPT['bps'] and (pend[0] < 4 or k >= pend[0] - 3):
        take.append(pend.pop(0))
    if k == 6: take += pend; pend = []
    if take: aw[k] = (lambda tk=take: [load_unit('B', b) for b in tk])
scatter('A', aw, {k: (lambda b=b: process('B', b)) for k, b in ilv.items()})
stamp('stamp')
copyout(0, [48 + 4*j for j in range(RC)], [TT, TT + 1, TT + 2])
stamp('stamp')
for k in range(7):
    if k not in ilv.values(): process('B', k)
stamp('stamp')
scan(1, L_SC + 64)
stamp('stamp')
scatter('B', {}, {})
stamp('stamp')
copyout(1, [48 + 4*j for j in range(RC)], [TT, TT + 1, TT + 2])
stamp('stamp')
if OPT['stamp'] >= 0: A('s_waitcnt vmcnt(0)')
stamp('stamp')
stamp_flush('stamp', 50, TT, OPT.get('swave', 0))
L('P_END')
A('s_endpgm')

st2n = [0]
def stamp2():
    if OPT['stamp2'] < 0: return
    n = st2n[0]; st2n[0] += 1
    A(OPT.get('clk','s_memtime').replace(' ','_') + ' s[4:5]')
    A('s_waitcnt lgkmcnt(0)')
    A(f'v_writelane_b32 v127, s4, {n+2}')
khead('acc_kernel')
A('s_cmp_ge_u32 s2, 256')
A('s_cbranch_scc1 Q_END')
A('s_load_dwordx2 s[4:5], s[0:1], 0')
A('s_load_dwordx2 s[6:7], s[0:1], 104')
S_M, S_WS = 8, 12
A('s_and_b32 s3, s2, 7')
A('s_lshl_b32 s3, s3, 5')
A('s_lshr_b32 s16, s2, 3')
A('s_add_u32 s3, s3, s16')
VTB = 5; VOF = 8
VEB = VOF + 18
def EB(slot, s): return VEB + (slot * 3 + s) * 4
VG = VEB + 48
def G(s, e): return VG + (s * 3 + e) * 2
VCH = VG + 18
VT = VCH + 16
VA = VT + 1
VSH, VFC = VT + 10, VT + 11
VOV = VT + 12
VRM = VOV + 2
assert VOV % 2 == 0 and VRM + 4 <= 127
def OF(s, k): return VOF + 9*s + k
def MK(slot, s, e):
    if s == 2 and e > 0: return 36 + 2 * e
    return 46 + slot * 14 + (s * 3 + e) * 2
A('v_and_b32 v1, 3, v0')
A('v_lshlrev_b32 v2, 4, v0')
A('v_lshrrev_b32 v3, 2, v0')
A('v_and_b32 v4, 1, v0')
A(f'v_bfe_u32 v{VT}, v0, 1, 1')
A(f'v_lshl_add_u32 v{VT}, v{VT}, 8, v3')
A(f'v_mul_u32_u24 v{VT}, {OFS}, v{VT}')
A(f'v_lshl_add_u32 v{VT+1}, v4, 4, v{VT}')
A(f'v_and_b32 v{VT+2}, 63, v0')
A(f'v_lshlrev_b32 v{VT+2}, 2, v{VT+2}')
A('v_mov_b32 v127, 0')
A('s_lshl_b32 s17, s3, 5')
A(f's_add_u32 s17, s17, {OFF_BASE:#x}')
A(f's_mov_b32 s19, {MAX_BASE:#x}')
A('s_and_b32 s20, s3, 3')
A(f's_mul_i32 s20, s20, {16*CH*8}')
A('v_cmp_gt_u32 s[22:23], 53, v0')
A('s_waitcnt lgkmcnt(0)')
srd(S_M, 4, E * 8); srd(S_WS, 6, WS_BYTES)
TO = VG
A(f'buffer_load_dwordx4 v[{TO}:{TO+3}], v{VT+1}, s[{S_WS}:{S_WS+3}], s17 offen')
A(f'buffer_load_ushort v{TO+4}, v{VT}, s[{S_WS}:{S_WS+3}], s17 offen offset:32')
A(f'buffer_load_dword v{VT+9}, v{VT+2}, s[{S_WS}:{S_WS+3}], s19 offen')
stamp2()
INLOOP = [0]
def ch1(j, live=False):
    sk = None
    if j == 3:
        A('s_and_b64 exec, s[22:23], s[18:19]' if live else 's_mov_b64 exec, s[22:23]')
        sk = newlab('Q_C')
        A(f's_cbranch_execz {sk}')
    else:
        A('s_mov_b64 exec, s[18:19]' if live else 's_mov_b64 exec, -1')
    A(f's_add_u32 s21, s20, {j*16384}')
    if not (OPT['skip_ch'] and INLOOP[0]): A(f'buffer_load_dwordx4 v[{VCH+4*j}:{VCH+4*j+3}], v2, s[{S_M}:{S_M+3}], s21 offen {OPT["ld_ch"]}')
    if j == 3: L(sk)
def chall(live=False):
    for j in (3, 0, 1, 2): ch1(j, live)
    A(f's_add_u32 s20, s20, {CH*8}')
def fill():
    if OPT['skip_fill']: return
    sk = newlab('Q_F')
    A('s_mov_b64 exec, s[22:23]')
    A(f's_cbranch_execz {sk}')
    A(f'ds_write_b128 v3, v[{VCH+12}:{VCH+15}] offset:{3*16384}')
    L(sk)
    A('s_mov_b64 exec, -1')
    for j in range(3):
        A(f'ds_write_b128 v3, v[{VCH+4*j}:{VCH+4*j+3}] offset:{j*16384}')
chall()
A(f's_mov_b32 s16, {RS}')
A(f'v_mul_lo_u32 v{VTB}, v3, s16')
A(f'v_add_u32 v{VTB+1}, {256*RS}, v{VTB}')
A('v_cmp_lt_u32 s[36:37], 1, v1')
A('v_lshl_add_u32 v4, v4, 2, 16')
A('v_lshlrev_b32 v1, 2, v1')
A(f'v_add_u32 v{VTB+2}, 16, v1')
A(f'v_add_u32 v3, {L_CH}, v2')
z = VEB + 44
for r in range(4): A(f'v_mov_b32 v{z+r}, 0')
for j in range(4): A(f'ds_write_b128 v2, v[{z}:{z+3}] offset:{j*16384}')
A(f'v_add_u32 v{VT+6}, 65536, v2')
for j in range(2): A(f'ds_write_b128 v{VT+6}, v[{z}:{z+3}] offset:{j*16384}')
A('s_movk_i32 s16, 106')
A('v_cmp_gt_u32 s[24:25], s16, v0')
A('s_mov_b64 exec, s[24:25]')
A(f'ds_write_b128 v{VT+6}, v[{z}:{z+3}] offset:{2*16384}')
A('s_mov_b64 exec, -1')
A(f'v_mov_b32 v126, {L_SC2}')
VONE = VSH
A('s_mov_b64 exec, 1')
A(f'ds_write_b128 v126, v[{z}:{z+3}]')
A('s_mov_b64 exec, -1')
A('s_mov_b32 s30, 0xffff0000')
A(f's_mov_b32 s31, {L_CH}')
A('s_mov_b32 s35, 0xfc000000')
A(f'v_mov_b32 v{VSH}, 18')
A(f'v_mov_b32 v{VFC}, 0xfffc')
A('s_waitcnt vmcnt(3)')
for s_ in range(2):
    for k in range(9):
        ln = 2*s_ + (1 if 4 <= k < 8 else 0)
        src = TO + (k % 4 if k < 8 else 4)
        A(f'v_mov_b32_dpp v{OF(s_,k)}, v{src} quad_perm:[{ln},{ln},{ln},{ln}] row_mask:0xf bank_mask:0xf')

def third_sel(r, t, rem, skip=None, ad=None):
    if ad is None: ad = t
    r0, h0, r1, h1 = r >> 1, r & 1, (r + 1) >> 1, (r + 1) & 1
    y0, y1, q0, q1, off = t, t + 1, t + 2, t + 3, t + 4
    for s_, y, q in ((0, y0, q0), (1, y1, q1)):
        A(f'v_and_b32_sdwa v{y}, v{OF(s_,r0)}, v{VFC} {SD} src0_sel:WORD_{h0} src1_sel:DWORD')
        A(f'v_sub_u32_sdwa v{q}, v{OF(s_,r1)}, v{y} {SD} src0_sel:WORD_{h1} src1_sel:DWORD')
    A(f'v_cmp_lt_i32 s[42:43], 16, v{q0}')
    A(f'v_cmp_lt_i32 s[44:45], 16, v{q1}')
    if skip:
        A('s_or_b64 vcc, s[42:43], s[44:45]')
        if skip[1]: A('s_and_b64 vcc, vcc, s[18:19]')
        A(f's_cbranch_scc0 {skip[0]}')
    A('s_orn2_b64 vcc, s[36:37], s[42:43]')
    A('s_and_b64 vcc, vcc, s[44:45]')
    A('s_and_b64 s[42:43], s[42:43], s[44:45]')
    A(f'v_cndmask_b32 v{off}, v{VTB+2}, v4, s[42:43]')
    A(f'v_cndmask_b32 v{y0}, v{y0}, v{y1}, vcc')
    A(f'v_cndmask_b32 v{q0}, v{q0}, v{q1}, vcc')
    A(f'v_cndmask_b32 v{y1}, v{VTB}, v{VTB+1}, vcc')
    A(f'v_add_u32 v{y0}, v{y0}, v{off}')
    A(f'v_sub_u32 v{rem}, v{q0}, v{off}')
    A(f'v_lshl_add_u32 v{ad}, v{y0}, 2, v{y1}')

def pf1c(s_, r, ad):
    slot = r % 4
    r0, h0, r1, h1 = r >> 1, r & 1, (r + 1) >> 1, (r + 1) & 1
    y, d, ln = VT, VT + 2, VT + 3
    a, b = OF(s_, r0), OF(s_, r1)
    m = [MK(slot, s_, k) for k in range(3)]
    A(f'v_and_b32_sdwa v{y}, v{a}, v{VFC} {SD} src0_sel:WORD_{h0} src1_sel:DWORD')
    A(f'v_sub_u32_sdwa v{ln}, v{b}, v{a} {SD} src0_sel:WORD_{h1} src1_sel:WORD_{h0}')
    A(f'v_add_u32 v{y}, v{y}, v1')
    A(f'v_sub_u32_sdwa v{d}, v{y}, v{a} {SD} src0_sel:DWORD src1_sel:WORD_{h0}')
    A(f'v_lshl_add_u32 v{ad}, v{y}, 2, v{VTB+s_}')
    A(f'v_cmp_lt_u32 s[{m[0]}:{m[0]+1}], v{d}, v{ln}')
    A(f'v_add_u32 v{d}, 1, v{d}')
    A(f'v_cmp_lt_u32 s[{m[1]}:{m[1]+1}], v{d}, v{ln}')
    A(f'v_add_u32 v{d}, 1, v{d}')
    A(f'v_cmp_lt_u32 s[{m[2]}:{m[2]+1}], v{d}, v{ln}')
def pf1i(s_, r, ad, live=False):
    slot = r % 4
    m = [MK(slot, s_, k) for k in range(3)]
    e = EB(slot, s_)
    A(f's_or_b64 vcc, s[{m[0]}:{m[0]+1}], s[{m[1]}:{m[1]+1}]')
    A(f's_or_b64 vcc, vcc, s[{m[2]}:{m[2]+1}]')
    if live: A('s_and_b64 vcc, vcc, s[18:19]')
    A('s_or_b64 exec, vcc, 1')
    if not (OPT['skip_pf'] and INLOOP[0]): A(f'buffer_load_dwordx4 v[{e}:{e+3}], v{ad}, s[{S_WS}:{S_WS+3}], 0 offen {OPT["ld_ent"]}')
def pf3c(r, ad, live=False):
    slot = r % 4
    m = MK(slot, 2, 0)
    sk = newlab('Q_T')
    A(f's_mov_b64 s[{m}:{m+1}], 0')
    third_sel(r, VT, VRM + slot, (sk, live), ad)
    A(f'v_cmp_lt_i32 s[{m}:{m+1}], 0, v{VRM+slot}')
    L(sk)
def pf3i(r, ad):
    slot = r % 4
    m = MK(slot, 2, 0); e = EB(slot, 2)
    sk = newlab('Q_T')
    A(f's_mov_b64 exec, s[{m}:{m+1}]')
    A(f's_cbranch_execz {sk}')
    A(f'buffer_load_dwordx4 v[{e}:{e+3}], v{ad}, s[{S_WS}:{S_WS+3}], 0 offen {OPT["ld_ent"]}')
    L(sk)
def pf1(s_, r, live=False):
    A('s_mov_b64 exec, -1'); pf1c(s_, r, VA); pf1i(s_, r, VA, live)
def pf3(r, live=False):
    A('s_mov_b64 exec, -1'); pf3c(r, VT, live); pf3i(r, VT)
def wait3(r, n, extra=''):
    m3 = MK(r % 4, 2, 0)
    w1 = newlab('Q_W'); w2 = newlab('Q_W')
    A(f's_cmp_eq_u64 s[{m3}:{m3+1}], 0')
    A(f's_cbranch_scc1 {w1}')
    A(f's_waitcnt vmcnt({n+1}){extra}')
    A(f's_branch {w2}')
    L(w1)
    A(f's_waitcnt vmcnt({n}){extra}')
    L(w2)

def gath1(w, g):
    A(f'v_bfe_u32 v{g}, v{w}, 0, 13')
    A(f'v_lshl_add_u32 v{g}, v{g}, 3, s31')
    if not OPT['skip_g']: A(f'ds_read_b64 v[{g}:{g+1}], v{g}')

def scat1(w, xr, e, g):
    x, ad = VT, VT + 1
    p0, p2 = VT + 2, VT + 4
    A(f'v_lshlrev_b32_sdwa v{x}, v{VSH}, v{xr} {SD} src0_sel:DWORD src1_sel:BYTE_{e}')
    A(f'v_lshlrev_b32 v{p2}, 16, v{g+1}')
    A(f'v_and_b32 v{p2+1}, s30, v{g+1}')
    A(f'v_and_or_b32 v{x}, v{w}, s35, v{x}')
    A(f'v_lshrrev_b32 v{ad}, 10, v{w}')
    A(f'v_lshlrev_b32 v{p0}, 16, v{g}')
    A(f'v_and_b32 v{p0+1}, s30, v{g}')
    for r in (p2, p2 + 1, p0, p0 + 1):
        A(f'v_fma_mix_f32 v{r}, v{r}, v{x}, s{26 if r == p0 else 28} op_sel:[0,1,0] op_sel_hi:[0,1,0]')
        if r == p2: A(f'v_and_b32 v{ad}, 0xfff8, v{ad}')
        if r == p2 + 1: A(f'ds_add_u64 v{ad}, v[{p2}:{p2+1}] offset:{L_ARB}')
    A(f'v_add_u32 v{p0}, s34, v{p0}')
    A(f'ds_add_u64 v{ad}, v[{p0}:{p0+1}]')

def Gset(r, s_):
    slot = r % 4
    for e in range(3):
        m = MK(slot, s_, e)
        A(f's_mov_b64 exec, s[{m}:{m+1}]')
        gath1(EB(slot, s_) + e, G(s_, e))
def Gthird(r):
    slot = r % 4
    done = newlab('Q_GI')
    m = MK(slot, 2, 0)
    A(f's_mov_b64 exec, s[{m}:{m+1}]')
    A(f's_cbranch_execz {done}')
    gath1(EB(slot, 2), G(2, 0))
    rem = VRM + slot
    A(f'v_cmp_lt_i32 s[38:39], 1, v{rem}')
    A(f'v_cmp_lt_i32 s[40:41], 2, v{rem}')
    A(f'v_cmp_lt_i32 s[42:43], 8, v{rem}')
    for e in (1, 2):
        A(f's_mov_b64 exec, s[{36+2*e}:{37+2*e}]')
        A(f's_cbranch_execz {done}')
        gath1(EB(slot, 2) + e, G(2, e))
    A('s_mov_b64 exec, s[42:43]')
    A(f's_cbranch_execz {done}')
    A('s_mov_b64 exec, -1')
    third_sel(r, VT, rem)
    ad, stp, w, xr = VT + 6, VT + 7, VT + 8, VT + 9
    A(f'v_mov_b32 v{ad}, v{VT}')
    A(f'v_cndmask_b32 v{stp}, 16, 8, s[42:43]')
    lp = newlab('Q_SL')
    L(lp)
    A(f'v_sub_u32 v{rem}, v{rem}, v{stp}')
    A(f'v_lshl_add_u32 v{ad}, v{stp}, 2, v{ad}')
    A(f'v_cmpx_lt_i32 vcc, 0, v{rem}')
    A(f's_cbranch_execz {done}')
    A('s_mov_b64 s[44:45], exec')
    nx = newlab('Q_SN')
    for e in range(3):
        A(f'buffer_load_dword v{w}, v{ad}, s[{S_WS}:{S_WS+3}], 0 offen offset:{4*e}')
        A(f'buffer_load_dword v{xr}, v{ad}, s[{S_WS}:{S_WS+3}], 0 offen offset:12')
        A('s_waitcnt vmcnt(0)')
        A(f'v_bfe_u32 v{VOV}, v{w}, 0, 13')
        A(f'v_lshl_add_u32 v{VOV}, v{VOV}, 3, s31')
        A(f'ds_read_b64 v[{VOV}:{VOV+1}], v{VOV}')
        A('s_waitcnt lgkmcnt(0)')
        scat1(w, xr, e, VOV)
        if e < 2:
            A(f'v_cmpx_lt_i32 vcc, {1+e}, v{rem}')
            A(f's_cbranch_execz {nx}')
    L(nx)
    A('s_mov_b64 exec, s[44:45]')
    A(f's_branch {lp}')
    L(done)
def Sset(r, s_, hooks={}):
    slot = r % 4
    done = newlab('Q_S')
    for e in range(3):
        if e in hooks: hooks[e]()
        m = MK(slot, s_, e)
        A(f's_mov_b64 exec, s[{m}:{m+1}]')
        if s_ == 2: A(f's_cbranch_execz {done}')
        b = EB(slot, s_)
        if not OPT['skip_s']: scat1(b + e, b + 3, e, G(s_, e))
    L(done)

pf1(0, 0); pf1(1, 0); pf3(0); pf1(0, 1)
A('s_mov_b64 exec, -1')
A(f'v_max_u32_sdwa v{VT+2}, v{VT+9}, v{VT+9} {SD} src0_sel:BYTE_0 src1_sel:BYTE_1')
A(f'v_max_u32_sdwa v{VT+3}, v{VT+9}, v{VT+9} {SD} src0_sel:BYTE_2 src1_sel:BYTE_3')
A(f'v_max_u32 v{VT+9}, v{VT+2}, v{VT+3}')
dpp_scan('v_max_u32', VT + 9)
A('s_nop 1')
A(f'v_readlane_b32 s29, v{VT+9}, 63')
for s_ in range(2):
    A(f'v_and_b32 v{VT+2}, 0xffff, v{OF(s_,0)}')
    A(f'v_lshrrev_b32 v{VT+3}, 2, v{VT+2}')
    A(f'v_sub_u32 v{VT+2}, v{VT+2}, v{VT+3}')
    A(f'v_lshrrev_b32 v{VT+3}, 2, v{OF(s_,8)}')
    A(f'v_add_u32 v{VT+2}, v{VT+2}, v{VT+3}')
    A(f'v_sub_u32 v{VT+4+s_}, v{VT+2}, v{OF(s_,8)}')
A(f'v_add_u32 v{VT+2}, v{VT+4}, v{VT+5}')
dpp_scan('v_add_u32', VT + 2)
A('s_nop 1')
A(f'v_readlane_b32 s32, v{VT+2}, 63')
A('s_min_u32 s27, s29, 249')
A('s_add_u32 s28, s27, 2')
A('s_lshl_b32 s28, s28, 23')
A('s_or_b32 s28, s28, 0x400000')
A('s_add_u32 s26, s27, 5')
A('s_lshl_b32 s26, s26, 23')
A('s_sub_u32 s34, 0x4000000, s26')
A('s_or_b32 s26, s26, 0x80000')
A('s_waitcnt vmcnt(3)')
fill()
chall()
A('s_mov_b32 s33, 0')
A('s_mov_b64 s[18:19], -1')
A('s_waitcnt vmcnt(4) lgkmcnt(0)')
stamp2()
A('s_barrier')
Gset(0, 0); Gset(0, 1); Gthird(0)
pf1(1, 1); pf1(1, 2); pf3(1)
wait3(1, 2, ' lgkmcnt(0)')
if OPT['skip_pf']:
    pf1(0, 2); pf1(0, 3); pf1(1, 3); A('s_waitcnt vmcnt(0)')
INLOOP[0] = 1
L('Q_LOOP')
for r in range(4):
    ps = r & 1
    if r == 1: stamp2()
    A('s_barrier')
    if r == 1: stamp2()
    lastr = newlab('Q_SK')
    if r == 3:
        A('s_cmp_eq_u32 s33, 3')
        A(f's_cbranch_scc1 Q_LAST')
    fill()
    st = OPT['struct']
    if st == 0:
        chall(r >= 2)
        Sset(r, 0)
        A('s_waitcnt vmcnt(3) lgkmcnt(0)')
        if r == 1: stamp2()
        A('s_barrier')
        if r == 1: stamp2()
        Gset(r + 1, 0)
        Sset(r, 1, {1: lambda: pf1(ps, r + 2, r + 2 >= 4), 2: lambda: pf1(ps, r + 3, r + 3 >= 4)})
        Gset(r + 1, 1)
        Sset(r, 2)
        Gthird(r + 1)
        pf3(r + 2, r + 2 >= 4)
    elif st == 1:
        chall(r >= 2)
        Sset(r, 0)
        Sset(r, 2)
        A('s_waitcnt vmcnt(3) lgkmcnt(0)')
        A('s_barrier')
        Gset(r + 1, 0)
        Gthird(r + 1)
        Sset(r, 1)
        Gset(r + 1, 1)
        pf1(ps, r + 2, r + 2 >= 4); pf1(ps, r + 3, r + 3 >= 4)
        pf3(r + 2, r + 2 >= 4)
    elif st == 2:
        chall(r >= 2)
        Sset(r, 0)
        Sset(r, 1)
        Sset(r, 2)
        A('s_waitcnt vmcnt(3) lgkmcnt(0)')
        A('s_barrier')
        Gset(r + 1, 0)
        Gset(r + 1, 1)
        Gthird(r + 1)
        pf1(ps, r + 2, r + 2 >= 4); pf1(ps, r + 3, r + 3 >= 4)
        pf3(r + 2, r + 2 >= 4)
    if r == 3:
        A('s_mov_b64 exec, -1')
        A('s_add_u32 s33, s33, 1')
        A('s_cmp_eq_u32 s33, 3')
        A('s_cselect_b64 s[18:19], 1, -1')
        for s_ in range(2):
            for k in range(0, 7): A(f'v_mov_b32 v{OF(s_,k)}, v{OF(s_,k+2)}')
    wait3(r + 2, 2, ' lgkmcnt(0)')
A('s_branch Q_LOOP')
L('Q_LAST')
Sset(3, 0)
Sset(3, 1)
Sset(3, 2)
A('s_mov_b64 exec, -1')
A('s_waitcnt lgkmcnt(0)')
stamp2()
A('s_barrier')
A('v_lshlrev_b32 v3, 3, v0')
RA = 8
for k in range(7):
    if k == 6: A('s_mov_b64 exec, s[24:25]')
    A(f'ds_read_b64 v[{RA+4*k}:{RA+4*k+1}], v3 offset:{k*8192}')
A('s_mov_b64 exec, -1')
A(f'v_add_u32 v4, {L_ARB}, v3')
for k in range(7):
    if k == 6: A('s_mov_b64 exec, s[24:25]')
    A(f'ds_read_b64 v[{RA+4*k+2}:{RA+4*k+3}], v4 offset:{k*8192}')
A('s_mov_b64 exec, -1')
A('s_and_b32 s16, s3, 3'); A(f's_mul_i32 s16, s16, {E*8}')
A('s_lshr_b32 s17, s3, 2'); A(f's_mul_i32 s17, s17, {CH*8}')
A('s_add_u32 s16, s16, s17'); A(f's_add_u32 s16, s16, {PART_BASE:#x}')
A('v_mov_b32 v5, 0')
A(f's_mov_b32 s36, {f32bits(2.0**-10):#x}')
A(f's_mov_b32 s37, {f32bits(2.0**-13):#x}')
A('s_mov_b32 s38, s37'); A('s_mov_b32 s39, s37')
A('s_sub_i32 s40, s27, 135')
A('v_mov_b32 v6, 1.0')
A('v_ldexp_f32 v6, v6, s40')
A('s_lshl_b32 s41, s3, 2')
A(f's_add_u32 s41, s41, {SCL_BASE:#x}')
A('v_cmp_eq_u32 vcc, 0, v0')
A('s_mov_b64 exec, vcc')
A(f'buffer_store_dword v6, v5, s[{S_WS}:{S_WS+3}], s41 offen')
A('s_mov_b64 exec, -1')
X = 40
for k in range(7):
    a0, a1, b0, b1 = RA + 4*k, RA + 4*k + 1, RA + 4*k + 2, RA + 4*k + 3
    c = X; P = X + 2; t = X + 4
    A(f's_waitcnt lgkmcnt({max(0,5-k)})')
    if k == 6: A('s_mov_b64 exec, s[24:25]')
    A(f'v_lshrrev_b32 v{c}, 26, v{a0}')
    A(f'v_and_b32 v{a0}, 0x3ffffff, v{a0}')
    A(f'v_mad_u64_u32 v[{P}:{P+1}], vcc, v{c}, s28, 0')
    A(f'v_lshlrev_b32 v{t}, 19, v{c}')
    A(f'v_add_u32 v5, v5, v{c}')
    A(f'v_sub_u32 v{a0}, v{a0}, v{t}')
    A(f'v_sub_u32 v{a1}, v{a1}, v{P}')
    A(f'v_add_u32 v{P+1}, v{P+1}, v{P}')
    A(f'v_sub_co_u32 v{b0}, vcc, v{b0}, v{P}')
    A(f'v_cvt_f32_i32 v{a0}, v{a0}')
    A(f'v_cvt_f32_i32 v{a1}, v{a1}')
    A(f'v_subb_co_u32 v{b1}, vcc, v{b1}, v{P+1}, vcc')
    A(f'v_ashrrev_i32 v{t}, 31, v{b0}')
    A(f'v_cvt_f32_i32 v{b0}, v{b0}')
    A(f'v_sub_u32 v{b1}, v{b1}, v{t}')
    A(f'v_pk_mul_f32 v[{a0}:{a1}], v[{a0}:{a1}], s[36:37]')
    A(f'v_cvt_f32_i32 v{b1}, v{b1}')
    A(f'v_cvt_pk_f16_f32 v{a0}, v{a0}, v{a1}')
    A(f'v_pk_mul_f32 v[{b0}:{b1}], v[{b0}:{b1}], s[38:39]')
    A(f'v_cvt_pk_f16_f32 v{a1}, v{b0}, v{b1}')
    A(f'buffer_store_dwordx2 v[{a0}:{a1}], v3, s[{S_WS}:{S_WS+3}], s16 offen {OPT["st_part"]}')
    A('s_add_u32 s16, s16, 8192')
A('s_mov_b64 exec, -1')
dpp_scan('v_add_u32', 5)
A('s_nop 1')
A('v_readlane_b32 s42, v5, 63')
A('s_nop 3')
A('s_lshl_b32 s42, s42, 2')
A('s_add_u32 s42, s42, s32')
A('v_mov_b32 v6, s42')
A('v_mov_b32 v7, s32')
A('s_mov_b64 exec, 1')
A('ds_add_u32 v126, v6')
A('ds_sub_u32 v126, v7 offset:4')
A('s_mov_b64 exec, -1')
A('s_waitcnt lgkmcnt(0)')
A('s_barrier')
A('ds_read_b64 v[6:7], v126')
A('s_waitcnt lgkmcnt(0)')
A('v_readfirstlane_b32 s42, v6')
A('v_readfirstlane_b32 s43, v7')
A('s_nop 3')
if OPT['forcefb']: A('s_mov_b32 s42, 1')
A('s_cmp_gt_u32 s29, 249')
A('s_cselect_b32 s42, 1, s42')
A('s_cmp_eq_u32 s42, 0')
A('s_cbranch_scc1 Q_FIN')
A('s_waitcnt vmcnt(0)')
A('s_min_u32 s27, s29, 254')
A('s_add_u32 s45, s27, 923')
A('s_lshl_b32 s45, s45, 20')
A('s_or_b32 s45, s45, 0x80000')
A('s_mov_b32 s44, 0')
A('s_lshr_b32 s43, s43, 2')
A('s_flbit_i32_b32 s46, s43')
A('s_max_i32 s46, s46, 0')
A('s_sub_u32 s46, 32, s46')
A('s_sub_i32 s47, -11, s46')
A('s_add_u32 s40, s27, s46')
A('s_sub_i32 s40, s40, 141')
A('v_mov_b32 v6, 1.0')
A('v_ldexp_f32 v6, v6, s40')
A('v_mov_b32 v5, 0')
A('v_cmp_eq_u32 vcc, 0, v0')
A('s_mov_b64 exec, vcc')
A(f'buffer_store_dword v6, v5, s[{S_WS}:{S_WS+3}], s41 offen')
A('s_mov_b64 exec, -1')
A('v_lshrrev_b32 v8, 1, v0')
A(f'v_mul_u32_u24 v9, {OFS}, v8')
A(f's_mov_b32 s16, {RS}')
A('v_mul_lo_u32 v8, v8, s16')
A('v_and_b32 v10, 1, v0')
for r in range(12, 16): A(f'v_mov_b32 v{r}, 0')
A('v_add_u32 v11, 65536, v2')
A('s_mov_b32 s48, 0')
L('Q_FH')
A('s_barrier')
for j in range(4): A(f'ds_write_b128 v2, v[12:15] offset:{j*16384}')
for j in range(2): A(f'ds_write_b128 v11, v[12:15] offset:{j*16384}')
A('s_mov_b64 exec, s[24:25]')
A(f'ds_write_b128 v11, v[12:15] offset:{2*16384}')
A('s_mov_b64 exec, -1')
A('s_waitcnt lgkmcnt(0)')
A('s_barrier')
A('s_lshl_b32 s49, s3, 5')
A(f's_add_u32 s49, s49, {OFF_BASE:#x}')
A('s_and_b32 s50, s3, 3')
A(f's_mul_i32 s50, s50, {16*CH*8}')
A('s_mov_b32 s51, 0')
L('Q_FR')
A(f'buffer_load_ushort v16, v9, s[{S_WS}:{S_WS+3}], s49 offen')
A(f'buffer_load_ushort v17, v9, s[{S_WS}:{S_WS+3}], s49 offen offset:2')
A('s_waitcnt vmcnt(0)')
A('v_add_u32 v16, v16, v10')
L('Q_FI')
A('v_cmp_lt_u32 vcc, v16, v17')
A('s_and_b64 exec, exec, vcc')
A('s_cbranch_execz Q_FRN')
A('s_mov_b64 s[52:53], exec')
A('v_and_b32 v18, 3, v16')
A('v_lshl_add_u32 v19, v16, 2, v8')
A('v_or_b32 v20, 3, v16')
A('v_lshl_add_u32 v20, v20, 2, v8')
A('v_add_u32 v20, v20, v18')
A(f'buffer_load_dword v21, v19, s[{S_WS}:{S_WS+3}], 0 offen')
A(f'buffer_load_ubyte v22, v20, s[{S_WS}:{S_WS+3}], 0 offen')
A('s_waitcnt vmcnt(0)')
A('v_bfe_u32 v23, v21, 13, 13')
A('v_subrev_u32 v23, s48, v23')
A('s_movk_i32 s16, 3125')
A('v_cmp_gt_u32 vcc, s16, v23')
A('v_cmp_ne_u32 s[54:55], 3, v18')
A('s_and_b64 vcc, vcc, s[54:55]')
A('v_bfe_u32 v24, v21, 0, 13')
A('v_lshlrev_b32 v24, 3, v24')
A('s_and_b64 exec, exec, vcc')
A('s_cbranch_execz Q_FIN2')
A(f'buffer_load_dwordx2 v[26:27], v24, s[{S_M}:{S_M+3}], s50 offen')
A('v_lshlrev_b32 v22, 2, v22')
A('v_lshrrev_b32 v25, 16, v21')
A('v_and_b32 v25, 0xfc00, v25')
A('v_or_b32 v25, v25, v22')
A('v_cvt_f32_f16 v25, v25')
A('v_cvt_f64_f32 v[28:29], v25')
A('v_lshlrev_b32 v23, 3, v23')
A('v_add_u32 v38, 50000, v23')
A('s_waitcnt vmcnt(0)')
A('v_lshlrev_b32 v30, 16, v26'); A('v_and_b32 v32, s30, v26')
A('v_lshlrev_b32 v34, 16, v27'); A('v_and_b32 v36, s30, v27')
for j, r in enumerate((30, 32, 34, 36)):
    A(f'v_cvt_f64_f32 v[{r}:{r+1}], v{r}')
    A(f'v_fma_f64 v[{r}:{r+1}], v[{r}:{r+1}], v[28:29], s[44:45]')
    A(f'ds_add_u64 v{23 if j < 2 else 38}, v[{r}:{r+1}] offset:{(j & 1) * 25000}')
L('Q_FIN2')
A('s_mov_b64 exec, s[52:53]')
A('v_add_u32 v16, 2, v16')
A('s_branch Q_FI')
L('Q_FRN')
A('s_mov_b64 exec, -1')
A('s_add_u32 s49, s49, 2')
A(f's_add_u32 s50, s50, {CH*8}')
A('s_add_u32 s51, s51, 1')
A('s_cmp_lt_u32 s51, 16')
A('s_cbranch_scc1 Q_FR')
A('s_waitcnt lgkmcnt(0)')
A('s_barrier')
A('s_and_b32 s16, s3, 3'); A(f's_mul_i32 s16, s16, {E*8}')
A('s_lshr_b32 s17, s3, 2'); A(f's_mul_i32 s17, s17, {CH*8}')
A('s_add_u32 s16, s16, s17'); A(f's_add_u32 s16, s16, {PART_BASE:#x}')
A('s_lshl_b32 s17, s48, 3'); A('s_add_u32 s16, s16, s17')
A('s_mov_b32 s52, 0'); A('s_mov_b32 s53, 0x41f00000')
A('v_mov_b32 v16, v3')
L('Q_FC')
A('s_movk_i32 s17, 25000')
A('v_cmp_gt_u32 vcc, s17, v16')
A('s_and_b64 exec, exec, vcc')
A('s_cbranch_execz Q_FCD')
A('v_add_u32 v17, 50000, v16')
for j in range(4):
    A(f'ds_read_b64 v[{18+2*j}:{19+2*j}], v{16 if j < 2 else 17} offset:{(j & 1) * 25000}')
A('s_waitcnt lgkmcnt(0)')
for j in range(4):
    lo, hi = 18 + 2*j, 19 + 2*j
    A(f'v_bfe_i32 v{hi}, v{hi}, 0, 19')
    A(f'v_cvt_f64_u32 v[26:27], v{lo}')
    A(f'v_cvt_f64_i32 v[28:29], v{hi}')
    A('v_fma_f64 v[26:27], v[28:29], s[52:53], v[26:27]')
    A('v_ldexp_f64 v[26:27], v[26:27], s47')
    A(f'v_cvt_f32_f64 v{30+j}, v[26:27]')
A('v_cvt_pk_f16_f32 v34, v30, v31')
A('v_cvt_pk_f16_f32 v35, v32, v33')
A(f'buffer_store_dwordx2 v[34:35], v16, s[{S_WS}:{S_WS+3}], s16 offen')
A('v_add_u32 v16, 8192, v16')
A('s_branch Q_FC')
L('Q_FCD')
A('s_mov_b64 exec, -1')
A('s_add_u32 s48, s48, 3125')
A('s_cmp_lt_u32 s48, 6250')
A('s_cbranch_scc1 Q_FH')
L('Q_FIN')
stamp2()
if OPT['stamp2'] >= 0:
    A('s_waitcnt vmcnt(0)')
    stamp2()
    A('v_readfirstlane_b32 s54, v0')
    A('s_nop 3')
    A(f's_cmp_lg_u32 s2, {OPT["stamp2"]}')
    A('s_cbranch_scc1 Q_END')
    A(f's_cmp_lg_u32 s54, {64*OPT.get("swave", 0)}')
    A('s_cbranch_scc1 Q_END')
    A('s_load_dwordx2 s[4:5], s[0:1], 96')
    A('s_waitcnt lgkmcnt(0)')
    srd(72, 4, 256)
    A('v_readlane_b32 s54, v127, 2')
    A('v_and_b32 v4, 63, v0')
    A('v_lshlrev_b32 v4, 2, v4')
    A('v_subrev_u32 v127, s54, v127')
    A('buffer_store_dword v127, v4, s[72:75], 0 offen')
L('Q_END')
A('s_endpgm')

khead('fin_kernel')
A(f's_cmp_ge_u32 s2, {G3}')
A('s_cbranch_scc1 F_END')
A('s_load_dwordx2 s[4:5], s[0:1], 0')
A('s_load_dwordx2 s[6:7], s[0:1], 104')
A('s_load_dwordx2 s[8:9], s[0:1], 24')
A('s_load_dwordx2 s[10:11], s[0:1], 88')
A('s_load_dwordx2 s[96:97], s[0:1], 40')
A('s_load_dwordx4 s[32:35], s[0:1], 56')
A('s_load_dwordx4 s[28:31], s[0:1], 72')
S_M, S_WS, S_DIST, S_O = 12, 16, 20, 24
A('s_lshl_b32 s3, s2, 9')
A('s_waitcnt lgkmcnt(0)')
A('s_load_dwordx4 s[40:43], s[96:97], 0')
A('s_load_dwordx16 s[44:59], s[32:33], 0')
A('s_load_dwordx16 s[60:75], s[34:35], 0')
A('s_load_dwordx8 s[76:83], s[28:29], 0')
A('s_load_dwordx8 s[84:91], s[30:31], 0')
srd(S_M, 4, E * 8); srd(S_WS, 6, WS_BYTES); srd(S_DIST, 8, E * 2); srd(S_O, 10, E * 8)
A('s_mov_b32 s38, 0xffff0000')
VB = 2
def R(i, n): return VB + 40 * i + n
for i in range(2):
    e, t = R(i, 1), R(i, 2)
    A(f'v_add_u32 v{e}, s3, v0')
    if i: A(f'v_add_u32 v{e}, 256, v{e}')
    A(f'v_lshlrev_b32 v{t}, 1, v{e}')
    A(f'buffer_load_ushort v{R(i,3)}, v{t}, s[{S_DIST}:{S_DIST+3}], 0 offen')
for i in range(2):
    e, t = R(i, 1), R(i, 2)
    A(f'v_min_u32 v{t}, {E-1}, v{e}')
    A(f'v_lshlrev_b32 v{R(i,0)}, 3, v{t}')
    A(f'v_mul_hi_u32_u24 v{t}, {MAGIC_DIV:#x}, v{t}')
    A(f'v_lshlrev_b32 v{t}, 4, v{t}')
    A(f's_mov_b32 s39, {SCL_BASE:#x}')
    A(f'buffer_load_dwordx4 v[{R(i,6)}:{R(i,9)}], v{t}, s[{S_WS}:{S_WS+3}], s39 offen')
    for p in range(4):
        A(f's_mov_b32 s39, {PART_BASE + p*E*8:#x}')
        A(f'buffer_load_dwordx2 v[{R(i,32+2*p)}:{R(i,33+2*p)}], v{R(i,0)}, s[{S_WS}:{S_WS+3}], s39 offen {OPT["ld_part"]}')
    A(f'v_lshlrev_b32 v{e}, 3, v{e}')
    A(f'buffer_load_dwordx2 v[{R(i,4)}:{R(i,5)}], v{e}, s[{S_M}:{S_M+3}], 0 offen')
def sw(base, idx, dst):
    s = base + idx // 2
    if idx & 1: A(f's_and_b32 s{dst}, s{s}, 0xffff0000')
    else: A(f's_lshl_b32 s{dst}, s{s}, 16')
def rnd2(a, b, t):
    A(f'v_cvt_pk_bf16_f32 v{t}, v{a}, v{b}')
    A(f'v_lshlrev_b32 v{a}, 16, v{t}')
    A(f'v_and_b32 v{b}, s38, v{t}')
A('s_waitcnt vmcnt(12) lgkmcnt(0)')
A(f's_mov_b32 s94, {f32bits(-10.0):#x}')
A(f's_mov_b32 s95, {f32bits(math.log2(math.e)):#x}')
for i in range(2): A(f'v_lshlrev_b32 v{R(i,3)}, 16, v{R(i,3)}')
for r in range(0, 8, 2):
    sw(40, r, 92); sw(40, r + 1, 93)
    for i in range(2):
        a, b, t = R(i, 14 + r), R(i, 15 + r), R(i, 2)
        A(f'v_subrev_f32 v{a}, s92, v{R(i,3)}')
        A(f'v_subrev_f32 v{b}, s93, v{R(i,3)}')
        rnd2(a, b, t)
        A(f'v_mul_f32 v{a}, v{a}, v{a}')
        A(f'v_mul_f32 v{b}, v{b}, v{b}')
        rnd2(a, b, t)
        A(f'v_mul_f32 v{a}, s94, v{a}')
        A(f'v_mul_f32 v{b}, s94, v{b}')
        rnd2(a, b, t)
        A(f'v_mul_f32 v{a}, s95, v{a}')
        A(f'v_mul_f32 v{b}, s95, v{b}')
        A(f'v_exp_f32 v{a}, v{a}')
        A(f'v_exp_f32 v{b}, v{b}')
        A('s_nop 0')
        rnd2(a, b, t)
for base, dst in ((60, 22), (44, 26)):
    for d in range(4):
        for r in range(8):
            sw(base, r*4 + d, 92)
            for i in range(2):
                if r == 0: A(f'v_mul_f32 v{R(i,dst+d)}, s92, v{R(i,14+r)}')
                else: A(f'v_fmac_f32 v{R(i,dst+d)}, s92, v{R(i,14+r)}')
A('s_waitcnt vmcnt(0)')
for i in range(2):
    for d in range(4):
        for p in range(4):
            c = '0' if p == 0 else f'v{R(i,14+d)}'
            A(f'v_fma_mix_f32 v{R(i,14+d)}, v{R(i,32+2*p+d//2)}, v{R(i,6+p)}, {c} op_sel:[{d&1},0,0] op_sel_hi:[1,0,0]')
for d in range(4):
    for k in range(4):
        sw(76, k*4 + d, 92)
        for i in range(2):
            if k == 0: A(f'v_mul_f32 v{R(i,10+d)}, s92, v{R(i,14+k)}')
            else: A(f'v_fmac_f32 v{R(i,10+d)}, s92, v{R(i,14+k)}')
for i in range(2):
    for d in range(4):
        A(f'v_mul_f32 v{R(i,10+d)}, v{R(i,10+d)}, v{R(i,22+d)}')
    rnd2(R(i,10), R(i,11), R(i,2)); rnd2(R(i,12), R(i,13), R(i,2))
    rnd2(R(i,26), R(i,27), R(i,2)); rnd2(R(i,28), R(i,29), R(i,2))
for d in range(4):
    for k in range(4):
        sw(84, k*4 + d, 92)
        for i in range(2):
            if k == 0: A(f'v_mul_f32 v{R(i,22+d)}, s92, v{R(i,10+k)}')
            else: A(f'v_fmac_f32 v{R(i,22+d)}, s92, v{R(i,10+k)}')
for i in range(2):
    rnd2(R(i,22), R(i,23), R(i,2)); rnd2(R(i,24), R(i,25), R(i,2))
    for d in range(4):
        A(f'v_mul_f32 v{R(i,22+d)}, v{R(i,22+d)}, v{R(i,26+d)}')
    rnd2(R(i,22), R(i,23), R(i,2)); rnd2(R(i,24), R(i,25), R(i,2))
    A(f'v_lshlrev_b32 v{R(i,26)}, 16, v{R(i,4)}')
    A(f'v_and_b32 v{R(i,27)}, s38, v{R(i,4)}')
    A(f'v_lshlrev_b32 v{R(i,28)}, 16, v{R(i,5)}')
    A(f'v_and_b32 v{R(i,29)}, s38, v{R(i,5)}')
    for d in range(4):
        A(f'v_add_f32 v{R(i,22+d)}, v{R(i,22+d)}, v{R(i,26+d)}')
    A(f'v_cvt_pk_bf16_f32 v{R(i,30)}, v{R(i,22)}, v{R(i,23)}')
    A(f'v_cvt_pk_bf16_f32 v{R(i,31)}, v{R(i,24)}, v{R(i,25)}')
    A(f'buffer_store_dwordx2 v[{R(i,30)}:{R(i,31)}], v{R(i,1)}, s[{S_O}:{S_O+3}], 0 offen')
L('F_END')
A('s_endpgm')

out.append('.section .rodata,"a"')
for name, vg in (('part_kernel', 128), ('acc_kernel', 128), ('fin_kernel', 84)):
    out.append('.p2align 6')
    out.append(f'.amdhsa_kernel {name}')
    out.append(f'  .amdhsa_next_free_vgpr {vg}')
    out.append('  .amdhsa_next_free_sgpr 102')
    out.append(f'  .amdhsa_accum_offset {vg}')
    out.append('  .amdhsa_group_segment_fixed_size 0')
    out.append('  .amdhsa_kernarg_size 112')
    out.append('  .amdhsa_user_sgpr_count 2')
    out.append('  .amdhsa_user_sgpr_kernarg_segment_ptr 1')
    out.append('  .amdhsa_system_sgpr_workgroup_id_x 1')
    out.append('  .amdhsa_float_denorm_mode_32 3')
    out.append('.end_amdhsa_kernel')
open(sys.argv[1], 'w').write('\n'.join(out) + '\n')
```

```python
import struct, sys, math

E = 400000
T = 12800000
CH = 6250
S = 25000
NTILE = 512
NBLK = (S + 2) // 3
RS = 133376
OFS = 8208
OFF_BASE = 0x4400000
MAX_BASE = 0x4C00000
SCL_BASE = 0x4C01000
PART_BASE = 0x5000000
WS_BYTES = 268435456
MAGIC_DIV = (2**32 + CH - 1) // CH
MINI = S - 6 * 4096
assert NTILE * RS <= OFF_BASE and OFF_BASE + NTILE * OFS <= MAX_BASE

OPT = dict(ld_in='nt', st_ws='sc0 sc1', ld_ent='', ld_ch='', st_part='sc0 sc1', ld_part='', NB=2, skip_s=0, skip_g=0, skip_fill=0, skip_e=0,
           stamp=-1, stamp2=-1, prio=1, ilv='2:0,3:1,4:2,5:3', pre=1, npb=1, bps=1, vpos='123456', skip_ch=0, skip_pf=0, pmap=0, cpos=0, epos=1, unpair=0, k2prio=0, pa=2, pb=2, struct=0, forcefb=0, abst=0)
for a in sys.argv[2:]:
    k, v = a.split('=')
    OPT[k] = int(v) if (v.lstrip('-').isdigit() and k != 'vpos') else v.replace('_', ' ')

def f32bits(x): return struct.unpack('<I', struct.pack('<f', x))[0]
out = []
def A(s): out.append('    ' + s)
def L(s): out.append(s + ':')
_lab = [0]
def newlab(p='L'):
    _lab[0] += 1
    return f'{p}_{_lab[0]}'
def srd(d, b, nbytes):
    A(f's_mov_b32 s{d}, s{b}')
    A(f's_and_b32 s{d+1}, s{b+1}, 0xffff')
    A(f's_mov_b32 s{d+2}, {nbytes:#x}')
    A(f's_mov_b32 s{d+3}, 0x00020000')
def dpp_scan(op, v):
    for sh in (1, 2, 4, 8):
        A('s_nop 1')
        A(f'{op}_dpp v{v}, v{v}, v{v} row_shr:{sh} row_mask:0xf bank_mask:0xf bound_ctrl:0')
    A('s_nop 1')
    A(f'{op}_dpp v{v}, v{v}, v{v} row_bcast:15 row_mask:0xa bank_mask:0xf')
    A('s_nop 1')
    A(f'{op}_dpp v{v}, v{v}, v{v} row_bcast:31 row_mask:0xc bank_mask:0xf')
def khead(name):
    out.append(f'.globl {name}')
    out.append('.p2align 8')
    out.append(f'.type {name},@function')
    L(name)
SD = 'dst_sel:DWORD dst_unused:UNUSED_PAD'
def abs_start(v):
    if not OPT['abst']: return
    A('s_memrealtime s[4:5]')
    A('s_waitcnt lgkmcnt(0)')
    A(f'v_mov_b32 v{v}, s4')
def abs_end(v, sr, kid, wpb):
    if not OPT['abst']: return
    A('s_mov_b64 exec, -1')
    A('s_waitcnt vmcnt(0)')
    A('s_load_dwordx2 s[4:5], s[0:1], 104')
    A('s_memrealtime s[6:7]')
    A('s_waitcnt lgkmcnt(0)')
    srd(sr, 4, WS_BYTES)
    A('v_lshrrev_b32 v1, 6, v0')
    A(f's_mul_i32 s7, s2, {wpb}')
    A('v_add_u32 v1, s7, v1')
    A('v_lshlrev_b32 v1, 3, v1')
    A(f'v_mov_b32 v2, v{v}')
    A('v_mov_b32 v3, s6')
    A(f's_mov_b32 s7, {0xF000000 + kid*65536:#x}')
    A('s_mov_b64 exec, 1')
    A(f'buffer_store_dwordx2 v[2:3], v1, s[{sr}:{sr+3}], s7 offen')

stampn = [0]
def stamp(key):
    if OPT[key] < 0: return
    n = stampn[0]; stampn[0] += 1
    A(OPT.get('clk','s_memtime').replace(' ','_') + ' s[98:99]')
    A('s_waitcnt lgkmcnt(0)')
    A(f's_mov_b32 s{76+n}, s98')
def stamp_flush(key, swave, vz, wave=0):
    if OPT[key] < 0: return
    lab = newlab('STF')
    A(f's_cmp_lg_u32 s2, {OPT[key]}')
    A(f's_cbranch_scc1 {lab}')
    A(f's_cmp_lg_u32 s{swave}, {wave}')
    A(f's_cbranch_scc1 {lab}')
    A('s_load_dwordx2 s[4:5], s[0:1], 96')
    A('s_waitcnt lgkmcnt(0)')
    srd(72, 4, 256)
    A('s_mov_b64 exec, 1')
    A(f'v_mov_b32 v{vz}, 0')
    for n in range(stampn[0]):
        A(f's_sub_u32 s98, s{76+n}, s76')
        A(f'v_mov_b32 v{vz+1}, s98')
        A(f'buffer_store_dword v{vz+1}, v{vz}, s[72:75], 0 offen offset:{4*n}')
        A('s_nop 1')
    L(lab)

L_H, L_SC, L_ST = 0, 16384, 16640
L_X = L_ST
L_W = L_X + NBLK * 4 + 8
LDS1 = L_W + NBLK * 12
assert L_W < 65536 and L_W % 16 == 0
L_ARB, L_CH, L_SC2 = 50000, 100000, 150000
LDS2 = 150000 + 64
G3 = (E + 511) // 512

hdr = open('standalone__molecular_angular_gemnet__graph.s.ref').read().split('; Override launch')[0]
out.append(hdr.rstrip())
out.append(f'; @launch kernel=part_kernel grid=(256,1,1) block=(1024,1,1) lds={LDS1}')
out.append(f'; @launch kernel=acc_kernel grid=(256,1,1) block=(1024,1,1) lds={LDS2}')
out.append(f'; @launch kernel=fin_kernel grid=({G3},1,1) block=(256,1,1) lds=0')
out.append('.amdgcn_target "amdgcn-amd-amdhsa--gfx950"')
out.append('.text')

khead('part_kernel')
A('s_cmp_ge_u32 s2, 256')
A('s_cbranch_scc1 P_END')
abs_start(87)
A('s_load_dwordx4 s[4:7], s[0:1], 0')
A('s_load_dwordx2 s[8:9], s[0:1], 16')
A('s_load_dwordx2 s[10:11], s[0:1], 32')
A('s_load_dwordx2 s[12:13], s[0:1], 48')
A('s_load_dwordx2 s[14:15], s[0:1], 104')
S_IN, S_OUT, S_ANG, S_WS, S_M = 16, 20, 24, 28, 32
if OPT['prio']: A('s_setprio 3')
A('v_lshlrev_b32 v1, 4, v0')
A('v_lshlrev_b32 v2, 3, v0')
A('v_mov_b32 v3, 1')
A('v_mov_b32 v4, 0x10000')
A('v_mov_b32 v5, 0')
A('v_lshlrev_b32 v6, 2, v0')
A('v_lshlrev_b32 v7, 1, v0')
TT = 8
for r in range(4): A(f'v_mov_b32 v{TT+4+r}, 0')
A('v_readfirstlane_b32 s50, v0')
A(f'ds_write_b128 v1, v[{TT+4}:{TT+7}]')
A(f'ds_write_b32 v6, v5 offset:{L_SC}')
A(f's_movk_i32 s42, {MINI}')
A('v_cmp_gt_u32 s[40:41], s42, v0')
A('s_waitcnt lgkmcnt(0)')
A('s_load_dword s36, s[12:13], 0')
srd(S_IN, 6, T * 4); srd(S_OUT, 8, T * 4); srd(S_ANG, 10, T * 2); srd(S_WS, 14, WS_BYTES); srd(S_M, 4, E * 8)
A('s_lshr_b32 s50, s50, 6')
A(f's_mul_i32 s37, s2, {2*S*4}')
A(f's_mul_i32 s38, s2, {2*S*2}')
UA = 24
unitA = [(UA + 10*k, UA + 10*k + 4, UA + 10*k + 8) for k in range(6)] + [(84, 85, 86)]
unitB = [(88 + 10*k, 88 + 10*k + 4, 88 + 10*k + 8) for k in range(4)] + [unitA[0], unitA[1], (44, 45, 46)]
vm = []
ldf = OPT['ld_in']
def load_unit(tag, k):
    vi, vo, va = (unitA if tag == 'A' else unitB)[k]
    tile = 0 if tag == 'A' else 1
    A(f's_add_u32 s43, s37, {tile*S*4 + k*16384}')
    A(f's_add_u32 s44, s38, {tile*S*2 + k*8192}')
    if k < 6:
        A(f'buffer_load_dwordx4 v[{vo}:{vo+3}], v1, s[{S_OUT}:{S_OUT+3}], s43 offen {ldf}')
        A(f'buffer_load_dwordx4 v[{vi}:{vi+3}], v1, s[{S_IN}:{S_IN+3}], s43 offen {ldf}')
        A(f'buffer_load_dwordx2 v[{va}:{va+1}], v2, s[{S_ANG}:{S_ANG+3}], s44 offen {ldf}')
    else:
        A('s_or_b64 exec, s[40:41], 1')
        A(f'buffer_load_dword v{vo}, v6, s[{S_OUT}:{S_OUT+3}], s43 offen {ldf}')
        A(f'buffer_load_dword v{vi}, v6, s[{S_IN}:{S_IN+3}], s43 offen {ldf}')
        A(f'buffer_load_ushort v{va}, v7, s[{S_ANG}:{S_ANG+3}], s44 offen {ldf}')
        A('s_mov_b64 exec, -1')
    vm.extend([(tag, k)] * 3)
def vwait(tag):
    idx = max(i for i, t in enumerate(vm) if t == tag)
    A(f's_waitcnt vmcnt({min(len(vm)-1-idx, 63)})')
stamp('stamp')
for k in range(OPT['pre']): load_unit('A', k)
A('s_barrier')
A(f's_mul_i32 s39, s2, {782*16}')
A(f'buffer_load_dwordx4 v[{TT}:{TT+3}], v1, s[{S_M}:{S_M+3}], s39 offen'); vm.append('M')
for k in range(OPT['pre'], 7): load_unit('A', k)
if OPT['prio']: A('s_setprio 0')
A(f's_mov_b32 s46, {f32bits(1/(2*math.pi)):#x}')
A(f's_mov_b32 s47, {f32bits(1/(2*math.pi)):#x}')
A('s_mov_b32 s48, 0xfc000000')
A('s_mov_b32 s49, 0xffff0000')
A(f's_mov_b32 s51, {(-CH) & 0xffffffff:#x}')
A('s_mov_b32 s52, 0x00020002')
A('s_mov_b32 s53, 0x55555556')
A('s_waitcnt lgkmcnt(0)')
A('s_lshl_b32 s36, s36, 16')

PT = TT + 11
def process(tag, k):
    vi0, vo0, va0 = (unitA if tag == 'A' else unitB)[k]
    inc = 3 if tag == 'A' else 4
    n = 4 if k < 6 else 1
    vwait((tag, k))
    skip = None
    if k == 6:
        skip = newlab('P_MS')
        A('s_mov_b64 exec, s[40:41]')
        A(f's_cbranch_execz {skip}')
    tj, ti, t1 = PT, PT + 1, PT + 2
    for j in range(n):
        vi, vo = vi0 + j, vo0 + j
        A(f'v_mul_hi_u32_u24 v{tj}, {MAGIC_DIV:#x}, v{vi}')
        A(f'v_mul_hi_u32_u24 v{ti}, {MAGIC_DIV:#x}, v{vo}')
        A(f'v_lshl_add_u32 v{vi}, v{vo}, 13, v{vi}')
        A(f'v_lshl_add_u32 v{vo}, v{ti}, 6, v{tj}')
        A(f'v_lshl_add_u32 v{t1}, v{ti}, 13, v{tj}')
        A(f'v_lshlrev_b32 v{vo}, 2, v{vo}')
        A(f'v_mad_i32_i24 v{vi}, v{t1}, s51, v{vi}')
        A(f'ds_add_u32 v{vo}, v{inc} offset:{L_H}')
    a0, a1 = PT + 3, PT + 4
    assert a0 % 2 == 0
    npair = (n + 1) // 2
    nf = newlab('P_NF')
    A('s_cmp_eq_u32 s36, 0x3f800000')
    A(f's_cbranch_scc1 {nf}')
    for p in range(npair):
        va = va0 + p
        A(f'v_lshlrev_b32 v{a0}, 16, v{va}')
        A(f'v_and_b32 v{a1}, s49, v{va}')
        A(f'v_mul_f32 v{a0}, s36, v{a0}')
        A(f'v_mul_f32 v{a1}, s36, v{a1}')
        A(f'v_cvt_pk_bf16_f32 v{va}, v{a0}, v{a1}')
    L(nf)
    for p in range(npair):
        va = va0 + p
        A(f'v_lshlrev_b32 v{a0}, 16, v{va}')
        A(f'v_and_b32 v{a1}, s49, v{va}')
        A(f'v_pk_mul_f32 v[{a0}:{a1}], v[{a0}:{a1}], s[46:47]')
        A(f'v_fract_f32 v{a0}, v{a0}')
        A(f'v_fract_f32 v{a1}, v{a1}')
        A(f'v_cos_f32 v{a0}, v{a0}')
        A(f'v_cos_f32 v{a1}, v{a1}')
        A('s_nop 0')
        A(f'v_cvt_pk_f16_f32 v{va}, v{a0}, v{a1}')
        A(f'v_pk_add_u16 v{va}, v{va}, s52')
        e0, e1 = 2*p, 2*p + 1
        A(f'v_lshlrev_b32 v{a0}, 16, v{va}')
        if e1 < n: A(f'v_and_or_b32 v{vi0+e1}, v{va}, s48, v{vi0+e1}')
        A(f'v_and_or_b32 v{vi0+e0}, v{a0}, s48, v{vi0+e0}')
        A(f'v_lshrrev_b32 v{va}, 2, v{va}')
    if k == 6:
        L(skip)
        A('s_mov_b64 exec, -1')

def maxm():
    vwait('M')
    A('s_mov_b32 s42, 0x7fff7fff')
    for j in range(4): A(f'v_and_b32 v{TT+j}, s42, v{TT+j}')
    A(f'v_pk_max_u16 v{TT}, v{TT}, v{TT+2}')
    A(f'v_pk_max_u16 v{TT+1}, v{TT+1}, v{TT+3}')
    A(f'v_pk_max_u16 v{TT}, v{TT}, v{TT+1}')
    A(f'v_lshrrev_b32 v{TT+1}, 16, v{TT}')
    A(f'v_and_b32 v{TT}, 0xffff, v{TT}')
    A(f'v_max_u32 v{TT}, v{TT}, v{TT+1}')
    dpp_scan('v_max_u32', TT)
    A('s_nop 1')
    A(f'v_readlane_b32 s42, v{TT}, 63')
    A('s_nop 1')
    A(f'v_mov_b32 v{TT}, s42')
    A('s_mov_b64 exec, 1')
    A(f'ds_max_u32 v5, v{TT} offset:{L_SC+128}')
    A('s_mov_b64 exec, -1')

def scan(tile, scoff):
    h = TT
    A('s_waitcnt lgkmcnt(0)')
    A('s_barrier')
    A(f'ds_read_b128 v[{h}:{h+3}], v1 offset:{L_H}')
    A(f'v_and_b32 v{h+5}, 63, v0')
    A(f'v_cmp_lt_u32 vcc, s50, v{h+5}')
    A(f'v_lshlrev_b32 v{h+5}, 2, v{h+5}')
    A('s_and_b64 s[56:57], vcc, 0xffff')
    A('s_waitcnt lgkmcnt(0)')
    if tile == 1:
        for j in range(4): A(f'v_lshrrev_b32 v{h+j}, 16, v{h+j}')
    for j in range(1, 4): A(f'v_add_u32 v{h+j}, v{h+j-1}, v{h+j}')
    A(f'v_mov_b32 v{h+4}, v{h+3}')
    dpp_scan('v_add_u32', h + 4)
    A('s_nop 1')
    A(f'v_readlane_b32 s42, v{h+4}, 63')
    A('s_nop 1')
    A(f'v_mov_b32 v{h+6}, s42')
    A('s_mov_b64 exec, s[56:57]')
    A(f'ds_add_u32 v{h+5}, v{h+6} offset:{scoff}')
    A('s_mov_b64 exec, -1')
    A('s_lshl_b32 s42, s50, 2')
    A(f'v_mov_b32 v{h+5}, s42')
    A(f'v_sub_u32 v{h+4}, v{h+4}, v{h+3}')
    A('s_waitcnt lgkmcnt(0)')
    A('s_barrier')
    A(f'ds_read_b32 v{h+5}, v{h+5} offset:{scoff}')
    if tile == 0: A(f'ds_read_b32 v{h+6}, v5 offset:{L_SC+128}')
    A(f's_mul_i32 s42, s2, {2*OFS}')
    A(f's_add_u32 s42, s42, {OFF_BASE + tile*OFS:#x}')
    A('s_waitcnt lgkmcnt(0)')
    A(f'v_add_u32 v{h+4}, v{h+4}, v{h+5}')
    for j in (3, 2, 1): A(f'v_add_u32 v{h+j}, v{h+4}, v{h+j-1}')
    A(f'v_mov_b32 v{h}, v{h+4}')
    A(f'ds_write_b128 v1, v[{h}:{h+3}] offset:{L_H}')
    for j in range(4):
        A(f'v_mul_hi_u32 v{h+10+j}, v{h+j}, s53')
        A(f'v_add_u32 v{h+10+j}, v{h+10+j}, v{h+j}')
    A(f'v_lshl_or_b32 v{h+8}, v{h+11}, 16, v{h+10}')
    A(f'v_lshl_or_b32 v{h+9}, v{h+13}, 16, v{h+12}')
    A(f'buffer_store_dwordx2 v[{h+8}:{h+9}], v2, s[{S_WS}:{S_WS+3}], s42 offen')
    vm.append(('OFS', tile))
    done = newlab('P_SC')
    A('s_cmp_lg_u32 s50, 0')
    A(f's_cbranch_scc1 {done}')
    A('s_mov_b64 exec, 1')
    A(f'v_mov_b32 v{h+5}, {S + S//3}')
    A('s_add_u32 s42, s42, 8192')
    A(f'buffer_store_dword v{h+5}, v5, s[{S_WS}:{S_WS+3}], s42 offen')
    if tile == 0:
        A(f's_add_u32 s42, s2, {MAX_BASE:#x}')
        A(f'v_lshrrev_b32 v{h+6}, 7, v{h+6}')
        A(f'buffer_store_byte v{h+6}, v5, s[{S_WS}:{S_WS+3}], s42 offen')
    A('s_mov_b64 exec, -1')
    L(done)
    A('s_waitcnt lgkmcnt(0)')
    A('s_barrier')

def scatter(tag, after_wait, after_fin):
    units = unitA if tag == 'A' else unitB
    lg = []
    def issue(k):
        vi0, vo0, _ = units[k]
        n = 4 if k < 6 else 1
        if k == 6: A('s_mov_b64 exec, s[40:41]')
        for j in range(n):
            A(f'ds_add_rtn_u32 v{TT+4*(k&1)+j}, v{vo0+j}, v3 offset:{L_H}')
            lg.append(('R', k))
        if k == 6: A('s_mov_b64 exec, -1')
    def fin(k):
        vi0, vo0, va0 = units[k]
        n = 4 if k < 6 else 1
        if k == 6: A('s_mov_b64 exec, s[40:41]')
        for j in range(n):
            t = TT + 4*(k & 1) + j
            q, a = TT + 8, TT + 9 + (j & 1)
            if tag == 'A': A(f'v_and_b32 v{t}, 0xffff, v{t}')
            A(f'v_mul_hi_u32 v{q}, v{t}, s53')
            A(f'v_lshlrev_b32 v{a}, 2, v{t}')
            A(f'v_add_u32 v{t}, v{q}, v{t}')
            A(f'ds_write_b32 v{a}, v{vi0+j} offset:{L_W}')
            A(f'ds_write_b8{"_d16_hi" if j & 1 else ""} v{t}, v{va0+j//2} offset:{L_X}')
            lg.extend([('W', k)] * 2)
        if k == 6: A('s_mov_b64 exec, -1')
    issue(0)
    for k in range(7):
        if k + 1 < 7: issue(k + 1)
        idx = max(i for i, t in enumerate(lg) if t == ('R', k) or t == ('W', k - 1))
        ny = sum(1 for t in lg[idx+1:] if t[1] != 6)
        A(f's_waitcnt lgkmcnt({min(ny, 15)})')
        if k in after_wait: after_wait[k]()
        fin(k)
        if k in after_fin:
            after_fin[k]()
            lg.extend([('H', k)] * 4)
    A('s_waitcnt lgkmcnt(0)')
    A('s_barrier')

RC = (NBLK + 1023) // 1024
lastc = NBLK - (RC - 1) * 1024
def copyout(tile, regs, ar):
    A(f's_movk_i32 s42, {lastc}')
    A('v_cmp_gt_u32 s[56:57], s42, v0')
    A(f'v_mul_u32_u24 v{ar[0]}, 12, v0')
    A(f'v_add_u32 v{ar[0]}, {L_W}, v{ar[0]}')
    A(f's_mul_i32 s42, s2, {2*RS}')
    if tile: A(f's_add_u32 s42, s42, {RS}')
    def rd(j):
        r = regs[j]
        if j == RC - 1: A('s_mov_b64 exec, s[56:57]')
        A(f'ds_read2_b32 v[{r}:{r+1}], v{ar[0]} offset0:0 offset1:1')
        A(f'ds_read_b32 v{r+2}, v{ar[0]} offset:8')
        A(f'ds_read_b32 v{r+3}, v6 offset:{L_X + j*4096}')
        if j == RC - 1: A('s_mov_b64 exec, -1')
        else: A(f'v_add_u32 v{ar[0]}, {12*1024}, v{ar[0]}')
    LA = 4
    for j in range(LA): rd(j)
    for j in range(RC):
        if j + LA < RC: rd(j + LA)
        A(f's_waitcnt lgkmcnt({3*max(0, min(LA, RC-2-j))})')
        if j == RC - 1: A('s_mov_b64 exec, s[56:57]')
        A(f'buffer_store_dwordx4 v[{regs[j]}:{regs[j]+3}], v1, s[{S_WS}:{S_WS+3}], s42 offen {OPT["st_ws"]}')
        if j < RC - 1: vm.append(('ST', tile, j))
        if j < RC - 1: A('s_add_u32 s42, s42, 16384')
    A('s_mov_b64 exec, -1')

stamp('stamp')
process('A', 0)
stamp('stamp')
maxm()
for k in range(1, 7): process('A', k)
stamp('stamp')
NPB = OPT['npb']
for k in range(NPB): load_unit('B', k)
scan(0, L_SC)
stamp('stamp')
ilv = dict((int(x.split(':')[0]), int(x.split(':')[1])) for x in OPT['ilv'].split(',')) if OPT['ilv'] else {}
pend = list(range(NPB, 7))
aw = {}
for k in range(7):
    take = []
    while pend and len(take) < OPT['bps'] and (pend[0] < 4 or k >= pend[0] - 3):
        take.append(pend.pop(0))
    if k == 6: take += pend; pend = []
    if take: aw[k] = (lambda tk=take: [load_unit('B', b) for b in tk])
scatter('A', aw, {k: (lambda b=b: process('B', b)) for k, b in ilv.items()})
stamp('stamp')
copyout(0, [48 + 4*j for j in range(RC)], [TT, TT + 1, TT + 2])
stamp('stamp')
for k in range(7):
    if k not in ilv.values(): process('B', k)
stamp('stamp')
scan(1, L_SC + 64)
stamp('stamp')
scatter('B', {}, {})
stamp('stamp')
copyout(1, [48 + 4*j for j in range(RC)], [TT, TT + 1, TT + 2])
stamp('stamp')
if OPT['stamp'] >= 0: A('s_waitcnt vmcnt(0)')
stamp('stamp')
stamp_flush('stamp', 50, TT, OPT.get('swave', 0))
abs_end(87, 64, 0, 16)
L('P_END')
A('s_endpgm')

st2n = [0]
def stamp2():
    if OPT['stamp2'] < 0: return
    n = st2n[0]; st2n[0] += 1
    A(OPT.get('clk','s_memtime').replace(' ','_') + ' s[4:5]')
    A('s_waitcnt lgkmcnt(0)')
    A(f'v_writelane_b32 v127, s4, {n+2}')
khead('acc_kernel')
A('s_cmp_ge_u32 s2, 256')
A('s_cbranch_scc1 Q_END')
abs_start(127)
A('s_load_dwordx2 s[4:5], s[0:1], 0')
A('s_load_dwordx2 s[6:7], s[0:1], 104')
S_M, S_WS = 8, 12
A('s_and_b32 s3, s2, 7')
A('s_lshl_b32 s3, s3, 5')
A('s_lshr_b32 s16, s2, 3')
A('s_add_u32 s3, s3, s16')
VTB = 5; VOF = 8
VEB = VOF + 18
def EB(slot, s): return VEB + (slot * 3 + s) * 4
VG = VEB + 48
def G(s, e): return VG + (s * 3 + e) * 2
VCH = VG + 18
VT = VCH + 16
VA = VT + 1
VSH, VFC = VT + 10, VT + 11
VOV = VT + 12
VRM = VOV + 2
assert VOV % 2 == 0 and VRM + 4 <= 127
def OF(s, k): return VOF + 9*s + k
def MK(slot, s, e):
    if s == 2 and e > 0: return 36 + 2 * e
    return 46 + slot * 14 + (s * 3 + e) * 2
A('v_and_b32 v1, 3, v0')
A('v_lshlrev_b32 v2, 4, v0')
A('v_lshrrev_b32 v3, 2, v0')
A('v_and_b32 v4, 1, v0')
A(f'v_bfe_u32 v{VT}, v0, 1, 1')
A(f'v_lshl_add_u32 v{VT}, v{VT}, 8, v3')
A(f'v_mul_u32_u24 v{VT}, {OFS}, v{VT}')
A(f'v_lshl_add_u32 v{VT+1}, v4, 4, v{VT}')
A(f'v_and_b32 v{VT+2}, 63, v0')
A(f'v_lshlrev_b32 v{VT+2}, 2, v{VT+2}')
if not OPT['abst']: A('v_mov_b32 v127, 0')
A('s_lshl_b32 s17, s3, 5')
A(f's_add_u32 s17, s17, {OFF_BASE:#x}')
A(f's_mov_b32 s19, {MAX_BASE:#x}')
A('s_and_b32 s20, s3, 3')
A(f's_mul_i32 s20, s20, {16*CH*8}')
A('v_cmp_gt_u32 s[22:23], 53, v0')
A('s_waitcnt lgkmcnt(0)')
srd(S_M, 4, E * 8); srd(S_WS, 6, WS_BYTES)
TO = VG
A(f'buffer_load_dwordx4 v[{TO}:{TO+3}], v{VT+1}, s[{S_WS}:{S_WS+3}], s17 offen')
A(f'buffer_load_ushort v{TO+4}, v{VT}, s[{S_WS}:{S_WS+3}], s17 offen offset:32')
A(f'buffer_load_dword v{VT+9}, v{VT+2}, s[{S_WS}:{S_WS+3}], s19 offen')
stamp2()
INLOOP = [0]
def ch1(j, live=False):
    sk = None
    if j == 3:
        A('s_and_b64 exec, s[22:23], s[18:19]' if live else 's_mov_b64 exec, s[22:23]')
        sk = newlab('Q_C')
        A(f's_cbranch_execz {sk}')
    else:
        A('s_mov_b64 exec, s[18:19]' if live else 's_mov_b64 exec, -1')
    A(f's_add_u32 s21, s20, {j*16384}')
    if not (OPT['skip_ch'] and INLOOP[0]): A(f'buffer_load_dwordx4 v[{VCH+4*j}:{VCH+4*j+3}], v2, s[{S_M}:{S_M+3}], s21 offen {OPT["ld_ch"]}')
    if j == 3: L(sk)
def chall(live=False):
    for j in (3, 0, 1, 2): ch1(j, live)
    A(f's_add_u32 s20, s20, {CH*8}')
def fill():
    if OPT['skip_fill']: return
    sk = newlab('Q_F')
    A('s_mov_b64 exec, s[22:23]')
    A(f's_cbranch_execz {sk}')
    A(f'ds_write_b128 v3, v[{VCH+12}:{VCH+15}] offset:{3*16384}')
    L(sk)
    A('s_mov_b64 exec, -1')
    for j in range(3):
        A(f'ds_write_b128 v3, v[{VCH+4*j}:{VCH+4*j+3}] offset:{j*16384}')
chall()
A(f's_mov_b32 s16, {RS}')
A(f'v_mul_lo_u32 v{VTB}, v3, s16')
A(f'v_add_u32 v{VTB+1}, {256*RS}, v{VTB}')
A('v_cmp_lt_u32 s[36:37], 1, v1')
A('v_lshl_add_u32 v4, v4, 2, 16')
A('v_lshlrev_b32 v1, 2, v1')
A(f'v_add_u32 v{VTB+2}, 16, v1')
A(f'v_add_u32 v3, {L_CH}, v2')
z = VEB + 44
for r in range(4): A(f'v_mov_b32 v{z+r}, 0')
for j in range(4): A(f'ds_write_b128 v2, v[{z}:{z+3}] offset:{j*16384}')
A(f'v_add_u32 v{VT+6}, 65536, v2')
for j in range(2): A(f'ds_write_b128 v{VT+6}, v[{z}:{z+3}] offset:{j*16384}')
A('s_movk_i32 s16, 106')
A('v_cmp_gt_u32 s[24:25], s16, v0')
A('s_mov_b64 exec, s[24:25]')
A(f'ds_write_b128 v{VT+6}, v[{z}:{z+3}] offset:{2*16384}')
A('s_mov_b64 exec, -1')
A(f'v_mov_b32 v126, {L_SC2}')
VONE = VSH
A('s_mov_b64 exec, 1')
A(f'ds_write_b128 v126, v[{z}:{z+3}]')
A('s_mov_b64 exec, -1')
A('s_mov_b32 s30, 0xffff0000')
A(f's_mov_b32 s31, {L_CH}')
A('s_mov_b32 s35, 0xfc000000')
A(f'v_mov_b32 v{VSH}, 18')
A(f'v_mov_b32 v{VFC}, 0xfffc')
A('s_waitcnt vmcnt(3)')
for s_ in range(2):
    for k in range(9):
        ln = 2*s_ + (1 if 4 <= k < 8 else 0)
        src = TO + (k % 4 if k < 8 else 4)
        A(f'v_mov_b32_dpp v{OF(s_,k)}, v{src} quad_perm:[{ln},{ln},{ln},{ln}] row_mask:0xf bank_mask:0xf')

def third_sel(r, t, rem, skip=None, ad=None):
    if ad is None: ad = t
    r0, h0, r1, h1 = r >> 1, r & 1, (r + 1) >> 1, (r + 1) & 1
    y0, y1, q0, q1, off = t, t + 1, t + 2, t + 3, t + 4
    for s_, y, q in ((0, y0, q0), (1, y1, q1)):
        A(f'v_and_b32_sdwa v{y}, v{OF(s_,r0)}, v{VFC} {SD} src0_sel:WORD_{h0} src1_sel:DWORD')
        A(f'v_sub_u32_sdwa v{q}, v{OF(s_,r1)}, v{y} {SD} src0_sel:WORD_{h1} src1_sel:DWORD')
    A(f'v_cmp_lt_i32 s[42:43], 16, v{q0}')
    A(f'v_cmp_lt_i32 s[44:45], 16, v{q1}')
    if skip:
        A('s_or_b64 vcc, s[42:43], s[44:45]')
        if skip[1]: A('s_and_b64 vcc, vcc, s[18:19]')
        A(f's_cbranch_scc0 {skip[0]}')
    A('s_orn2_b64 vcc, s[36:37], s[42:43]')
    A('s_and_b64 vcc, vcc, s[44:45]')
    A('s_and_b64 s[42:43], s[42:43], s[44:45]')
    A(f'v_cndmask_b32 v{off}, v{VTB+2}, v4, s[42:43]')
    A(f'v_cndmask_b32 v{y0}, v{y0}, v{y1}, vcc')
    A(f'v_cndmask_b32 v{q0}, v{q0}, v{q1}, vcc')
    A(f'v_cndmask_b32 v{y1}, v{VTB}, v{VTB+1}, vcc')
    A(f'v_add_u32 v{y0}, v{y0}, v{off}')
    A(f'v_sub_u32 v{rem}, v{q0}, v{off}')
    A(f'v_lshl_add_u32 v{ad}, v{y0}, 2, v{y1}')

def pf1c(s_, r, ad):
    slot = r % 4
    r0, h0, r1, h1 = r >> 1, r & 1, (r + 1) >> 1, (r + 1) & 1
    y, d, ln = VT, VT + 2, VT + 3
    a, b = OF(s_, r0), OF(s_, r1)
    m = [MK(slot, s_, k) for k in range(3)]
    A(f'v_and_b32_sdwa v{y}, v{a}, v{VFC} {SD} src0_sel:WORD_{h0} src1_sel:DWORD')
    A(f'v_sub_u32_sdwa v{ln}, v{b}, v{a} {SD} src0_sel:WORD_{h1} src1_sel:WORD_{h0}')
    A(f'v_add_u32 v{y}, v{y}, v1')
    A(f'v_sub_u32_sdwa v{d}, v{y}, v{a} {SD} src0_sel:DWORD src1_sel:WORD_{h0}')
    A(f'v_lshl_add_u32 v{ad}, v{y}, 2, v{VTB+s_}')
    A(f'v_cmp_lt_u32 s[{m[0]}:{m[0]+1}], v{d}, v{ln}')
    A(f'v_add_u32 v{d}, 1, v{d}')
    A(f'v_cmp_lt_u32 s[{m[1]}:{m[1]+1}], v{d}, v{ln}')
    A(f'v_add_u32 v{d}, 1, v{d}')
    A(f'v_cmp_lt_u32 s[{m[2]}:{m[2]+1}], v{d}, v{ln}')
def pf1i(s_, r, ad, live=False):
    slot = r % 4
    m = [MK(slot, s_, k) for k in range(3)]
    e = EB(slot, s_)
    A(f's_or_b64 vcc, s[{m[0]}:{m[0]+1}], s[{m[1]}:{m[1]+1}]')
    A(f's_or_b64 vcc, vcc, s[{m[2]}:{m[2]+1}]')
    if live: A('s_and_b64 vcc, vcc, s[18:19]')
    A('s_or_b64 exec, vcc, 1')
    if not (OPT['skip_pf'] and INLOOP[0]): A(f'buffer_load_dwordx4 v[{e}:{e+3}], v{ad}, s[{S_WS}:{S_WS+3}], 0 offen {OPT["ld_ent"]}')
def pf3c(r, ad, live=False):
    slot = r % 4
    m = MK(slot, 2, 0)
    sk = newlab('Q_T')
    A(f's_mov_b64 s[{m}:{m+1}], 0')
    third_sel(r, VT, VRM + slot, (sk, live), ad)
    A(f'v_cmp_lt_i32 s[{m}:{m+1}], 0, v{VRM+slot}')
    L(sk)
def pf3i(r, ad):
    slot = r % 4
    m = MK(slot, 2, 0); e = EB(slot, 2)
    sk = newlab('Q_T')
    A(f's_mov_b64 exec, s[{m}:{m+1}]')
    A(f's_cbranch_execz {sk}')
    A(f'buffer_load_dwordx4 v[{e}:{e+3}], v{ad}, s[{S_WS}:{S_WS+3}], 0 offen {OPT["ld_ent"]}')
    L(sk)
def pf1(s_, r, live=False):
    A('s_mov_b64 exec, -1'); pf1c(s_, r, VA); pf1i(s_, r, VA, live)
def pf3(r, live=False):
    A('s_mov_b64 exec, -1'); pf3c(r, VT, live); pf3i(r, VT)
def wait3(r, n, extra=''):
    m3 = MK(r % 4, 2, 0)
    w1 = newlab('Q_W'); w2 = newlab('Q_W')
    A(f's_cmp_eq_u64 s[{m3}:{m3+1}], 0')
    A(f's_cbranch_scc1 {w1}')
    A(f's_waitcnt vmcnt({n+1}){extra}')
    A(f's_branch {w2}')
    L(w1)
    A(f's_waitcnt vmcnt({n}){extra}')
    L(w2)

def gath1(w, g):
    A(f'v_bfe_u32 v{g}, v{w}, 0, 13')
    A(f'v_lshl_add_u32 v{g}, v{g}, 3, s31')
    if not OPT['skip_g']: A(f'ds_read_b64 v[{g}:{g+1}], v{g}')

def scat1(w, xr, e, g):
    x, ad = VT, VT + 1
    p0, p2 = VT + 2, VT + 4
    A(f'v_lshlrev_b32_sdwa v{x}, v{VSH}, v{xr} {SD} src0_sel:DWORD src1_sel:BYTE_{e}')
    A(f'v_lshlrev_b32 v{p2}, 16, v{g+1}')
    A(f'v_and_b32 v{p2+1}, s30, v{g+1}')
    A(f'v_and_or_b32 v{x}, v{w}, s35, v{x}')
    A(f'v_lshrrev_b32 v{ad}, 10, v{w}')
    A(f'v_lshlrev_b32 v{p0}, 16, v{g}')
    A(f'v_and_b32 v{p0+1}, s30, v{g}')
    for r in (p2, p2 + 1, p0, p0 + 1):
        A(f'v_fma_mix_f32 v{r}, v{r}, v{x}, s{26 if r == p0 else 28} op_sel:[0,1,0] op_sel_hi:[0,1,0]')
        if r == p2: A(f'v_and_b32 v{ad}, 0xfff8, v{ad}')
        if r == p2 + 1: A(f'ds_add_u64 v{ad}, v[{p2}:{p2+1}] offset:{L_ARB}')
    A(f'v_add_u32 v{p0}, s34, v{p0}')
    A(f'ds_add_u64 v{ad}, v[{p0}:{p0+1}]')

def Gset(r, s_):
    slot = r % 4
    for e in range(3):
        m = MK(slot, s_, e)
        A(f's_mov_b64 exec, s[{m}:{m+1}]')
        gath1(EB(slot, s_) + e, G(s_, e))
def Gthird(r):
    slot = r % 4
    done = newlab('Q_GI')
    m = MK(slot, 2, 0)
    A(f's_mov_b64 exec, s[{m}:{m+1}]')
    A(f's_cbranch_execz {done}')
    gath1(EB(slot, 2), G(2, 0))
    rem = VRM + slot
    A(f'v_cmp_lt_i32 s[38:39], 1, v{rem}')
    A(f'v_cmp_lt_i32 s[40:41], 2, v{rem}')
    A(f'v_cmp_lt_i32 s[42:43], 8, v{rem}')
    for e in (1, 2):
        A(f's_mov_b64 exec, s[{36+2*e}:{37+2*e}]')
        A(f's_cbranch_execz {done}')
        gath1(EB(slot, 2) + e, G(2, e))
    A('s_mov_b64 exec, s[42:43]')
    A(f's_cbranch_execz {done}')
    A('s_mov_b64 exec, -1')
    third_sel(r, VT, rem)
    ad, stp, w, xr = VT + 6, VT + 7, VT + 8, VT + 9
    A(f'v_mov_b32 v{ad}, v{VT}')
    A(f'v_cndmask_b32 v{stp}, 16, 8, s[42:43]')
    lp = newlab('Q_SL')
    L(lp)
    A(f'v_sub_u32 v{rem}, v{rem}, v{stp}')
    A(f'v_lshl_add_u32 v{ad}, v{stp}, 2, v{ad}')
    A(f'v_cmpx_lt_i32 vcc, 0, v{rem}')
    A(f's_cbranch_execz {done}')
    A('s_mov_b64 s[44:45], exec')
    nx = newlab('Q_SN')
    for e in range(3):
        A(f'buffer_load_dword v{w}, v{ad}, s[{S_WS}:{S_WS+3}], 0 offen offset:{4*e}')
        A(f'buffer_load_dword v{xr}, v{ad}, s[{S_WS}:{S_WS+3}], 0 offen offset:12')
        A('s_waitcnt vmcnt(0)')
        A(f'v_bfe_u32 v{VOV}, v{w}, 0, 13')
        A(f'v_lshl_add_u32 v{VOV}, v{VOV}, 3, s31')
        A(f'ds_read_b64 v[{VOV}:{VOV+1}], v{VOV}')
        A('s_waitcnt lgkmcnt(0)')
        scat1(w, xr, e, VOV)
        if e < 2:
            A(f'v_cmpx_lt_i32 vcc, {1+e}, v{rem}')
            A(f's_cbranch_execz {nx}')
    L(nx)
    A('s_mov_b64 exec, s[44:45]')
    A(f's_branch {lp}')
    L(done)
def Sset(r, s_, hooks={}):
    slot = r % 4
    done = newlab('Q_S')
    for e in range(3):
        if e in hooks: hooks[e]()
        m = MK(slot, s_, e)
        A(f's_mov_b64 exec, s[{m}:{m+1}]')
        if s_ == 2: A(f's_cbranch_execz {done}')
        b = EB(slot, s_)
        if not OPT['skip_s']: scat1(b + e, b + 3, e, G(s_, e))
    L(done)

pf1(0, 0); pf1(1, 0); pf3(0); pf1(0, 1)
A('s_mov_b64 exec, -1')
A(f'v_max_u32_sdwa v{VT+2}, v{VT+9}, v{VT+9} {SD} src0_sel:BYTE_0 src1_sel:BYTE_1')
A(f'v_max_u32_sdwa v{VT+3}, v{VT+9}, v{VT+9} {SD} src0_sel:BYTE_2 src1_sel:BYTE_3')
A(f'v_max_u32 v{VT+9}, v{VT+2}, v{VT+3}')
dpp_scan('v_max_u32', VT + 9)
A('s_nop 1')
A(f'v_readlane_b32 s29, v{VT+9}, 63')
for s_ in range(2):
    A(f'v_and_b32 v{VT+2}, 0xffff, v{OF(s_,0)}')
    A(f'v_lshrrev_b32 v{VT+3}, 2, v{VT+2}')
    A(f'v_sub_u32 v{VT+2}, v{VT+2}, v{VT+3}')
    A(f'v_lshrrev_b32 v{VT+3}, 2, v{OF(s_,8)}')
    A(f'v_add_u32 v{VT+2}, v{VT+2}, v{VT+3}')
    A(f'v_sub_u32 v{VT+4+s_}, v{VT+2}, v{OF(s_,8)}')
A(f'v_add_u32 v{VT+2}, v{VT+4}, v{VT+5}')
dpp_scan('v_add_u32', VT + 2)
A('s_nop 1')
A(f'v_readlane_b32 s32, v{VT+2}, 63')
A('s_min_u32 s27, s29, 249')
A('s_add_u32 s28, s27, 2')
A('s_lshl_b32 s28, s28, 23')
A('s_or_b32 s28, s28, 0x400000')
A('s_add_u32 s26, s27, 5')
A('s_lshl_b32 s26, s26, 23')
A('s_sub_u32 s34, 0x4000000, s26')
A('s_or_b32 s26, s26, 0x80000')
A('s_waitcnt vmcnt(3)')
fill()
chall()
A('s_mov_b32 s33, 0')
A('s_mov_b64 s[18:19], -1')
A('s_waitcnt vmcnt(4) lgkmcnt(0)')
stamp2()
A('s_barrier')
Gset(0, 0); Gset(0, 1); Gthird(0)
pf1(1, 1); pf1(1, 2); pf3(1)
wait3(1, 2, ' lgkmcnt(0)')
if OPT['skip_pf']:
    pf1(0, 2); pf1(0, 3); pf1(1, 3); A('s_waitcnt vmcnt(0)')
INLOOP[0] = 1
L('Q_LOOP')
for r in range(4):
    ps = r & 1
    if r == 1: stamp2()
    A('s_barrier')
    if r == 1: stamp2()
    lastr = newlab('Q_SK')
    if r == 3:
        A('s_cmp_eq_u32 s33, 3')
        A(f's_cbranch_scc1 Q_LAST')
    fill()
    st = OPT['struct']
    if st == 0:
        chall(r >= 2)
        Sset(r, 0)
        A('s_waitcnt vmcnt(3) lgkmcnt(0)')
        if r == 1: stamp2()
        A('s_barrier')
        if r == 1: stamp2()
        Gset(r + 1, 0)
        Sset(r, 1, {1: lambda: pf1(ps, r + 2, r + 2 >= 4), 2: lambda: pf1(ps, r + 3, r + 3 >= 4)})
        Gset(r + 1, 1)
        Sset(r, 2)
        Gthird(r + 1)
        pf3(r + 2, r + 2 >= 4)
    elif st == 1:
        chall(r >= 2)
        Sset(r, 0)
        Sset(r, 2)
        A('s_waitcnt vmcnt(3) lgkmcnt(0)')
        A('s_barrier')
        Gset(r + 1, 0)
        Gthird(r + 1)
        Sset(r, 1)
        Gset(r + 1, 1)
        pf1(ps, r + 2, r + 2 >= 4); pf1(ps, r + 3, r + 3 >= 4)
        pf3(r + 2, r + 2 >= 4)
    elif st == 2:
        chall(r >= 2)
        Sset(r, 0)
        Sset(r, 1)
        Sset(r, 2)
        A('s_waitcnt vmcnt(3) lgkmcnt(0)')
        A('s_barrier')
        Gset(r + 1, 0)
        Gset(r + 1, 1)
        Gthird(r + 1)
        pf1(ps, r + 2, r + 2 >= 4); pf1(ps, r + 3, r + 3 >= 4)
        pf3(r + 2, r + 2 >= 4)
    if r == 3:
        A('s_mov_b64 exec, -1')
        A('s_add_u32 s33, s33, 1')
        A('s_cmp_eq_u32 s33, 3')
        A('s_cselect_b64 s[18:19], 1, -1')
        for s_ in range(2):
            for k in range(0, 7): A(f'v_mov_b32 v{OF(s_,k)}, v{OF(s_,k+2)}')
    wait3(r + 2, 2, ' lgkmcnt(0)')
A('s_branch Q_LOOP')
L('Q_LAST')
Sset(3, 0)
Sset(3, 1)
Sset(3, 2)
A('s_mov_b64 exec, -1')
A('s_waitcnt lgkmcnt(0)')
stamp2()
A('s_barrier')
A('v_lshlrev_b32 v3, 3, v0')
RA = 8
for k in range(7):
    if k == 6: A('s_mov_b64 exec, s[24:25]')
    A(f'ds_read_b64 v[{RA+4*k}:{RA+4*k+1}], v3 offset:{k*8192}')
A('s_mov_b64 exec, -1')
A(f'v_add_u32 v4, {L_ARB}, v3')
for k in range(7):
    if k == 6: A('s_mov_b64 exec, s[24:25]')
    A(f'ds_read_b64 v[{RA+4*k+2}:{RA+4*k+3}], v4 offset:{k*8192}')
A('s_mov_b64 exec, -1')
A('s_and_b32 s16, s3, 3'); A(f's_mul_i32 s16, s16, {E*8}')
A('s_lshr_b32 s17, s3, 2'); A(f's_mul_i32 s17, s17, {CH*8}')
A('s_add_u32 s16, s16, s17'); A(f's_add_u32 s16, s16, {PART_BASE:#x}')
A('v_mov_b32 v5, 0')
A(f's_mov_b32 s36, {f32bits(2.0**-10):#x}')
A(f's_mov_b32 s37, {f32bits(2.0**-13):#x}')
A('s_mov_b32 s38, s37'); A('s_mov_b32 s39, s37')
A('s_sub_i32 s40, s27, 135')
A('v_mov_b32 v6, 1.0')
A('v_ldexp_f32 v6, v6, s40')
A('s_lshl_b32 s41, s3, 2')
A(f's_add_u32 s41, s41, {SCL_BASE:#x}')
A('v_cmp_eq_u32 vcc, 0, v0')
A('s_mov_b64 exec, vcc')
A(f'buffer_store_dword v6, v5, s[{S_WS}:{S_WS+3}], s41 offen')
A('s_mov_b64 exec, -1')
X = 40
for k in range(7):
    a0, a1, b0, b1 = RA + 4*k, RA + 4*k + 1, RA + 4*k + 2, RA + 4*k + 3
    c = X; P = X + 2; t = X + 4
    A(f's_waitcnt lgkmcnt({max(0,5-k)})')
    if k == 6: A('s_mov_b64 exec, s[24:25]')
    A(f'v_lshrrev_b32 v{c}, 26, v{a0}')
    A(f'v_and_b32 v{a0}, 0x3ffffff, v{a0}')
    A(f'v_mad_u64_u32 v[{P}:{P+1}], vcc, v{c}, s28, 0')
    A(f'v_lshlrev_b32 v{t}, 19, v{c}')
    A(f'v_add_u32 v5, v5, v{c}')
    A(f'v_sub_u32 v{a0}, v{a0}, v{t}')
    A(f'v_sub_u32 v{a1}, v{a1}, v{P}')
    A(f'v_add_u32 v{P+1}, v{P+1}, v{P}')
    A(f'v_sub_co_u32 v{b0}, vcc, v{b0}, v{P}')
    A(f'v_cvt_f32_i32 v{a0}, v{a0}')
    A(f'v_cvt_f32_i32 v{a1}, v{a1}')
    A(f'v_subb_co_u32 v{b1}, vcc, v{b1}, v{P+1}, vcc')
    A(f'v_ashrrev_i32 v{t}, 31, v{b0}')
    A(f'v_cvt_f32_i32 v{b0}, v{b0}')
    A(f'v_sub_u32 v{b1}, v{b1}, v{t}')
    A(f'v_pk_mul_f32 v[{a0}:{a1}], v[{a0}:{a1}], s[36:37]')
    A(f'v_cvt_f32_i32 v{b1}, v{b1}')
    A(f'v_cvt_pk_f16_f32 v{a0}, v{a0}, v{a1}')
    A(f'v_pk_mul_f32 v[{b0}:{b1}], v[{b0}:{b1}], s[38:39]')
    A(f'v_cvt_pk_f16_f32 v{a1}, v{b0}, v{b1}')
    A(f'buffer_store_dwordx2 v[{a0}:{a1}], v3, s[{S_WS}:{S_WS+3}], s16 offen {OPT["st_part"]}')
    A('s_add_u32 s16, s16, 8192')
A('s_mov_b64 exec, -1')
dpp_scan('v_add_u32', 5)
A('s_nop 1')
A('v_readlane_b32 s42, v5, 63')
A('s_nop 3')
A('s_lshl_b32 s42, s42, 2')
A('s_add_u32 s42, s42, s32')
A('v_mov_b32 v6, s42')
A('v_mov_b32 v7, s32')
A('s_mov_b64 exec, 1')
A('ds_add_u32 v126, v6')
A('ds_sub_u32 v126, v7 offset:4')
A('s_mov_b64 exec, -1')
A('s_waitcnt lgkmcnt(0)')
A('s_barrier')
A('ds_read_b64 v[6:7], v126')
A('s_waitcnt lgkmcnt(0)')
A('v_readfirstlane_b32 s42, v6')
A('v_readfirstlane_b32 s43, v7')
A('s_nop 3')
if OPT['forcefb']: A('s_mov_b32 s42, 1')
A('s_cmp_gt_u32 s29, 249')
A('s_cselect_b32 s42, 1, s42')
A('s_cmp_eq_u32 s42, 0')
A('s_cbranch_scc1 Q_FIN')
A('s_waitcnt vmcnt(0)')
A('s_min_u32 s27, s29, 254')
A('s_add_u32 s45, s27, 923')
A('s_lshl_b32 s45, s45, 20')
A('s_or_b32 s45, s45, 0x80000')
A('s_mov_b32 s44, 0')
A('s_lshr_b32 s43, s43, 2')
A('s_flbit_i32_b32 s46, s43')
A('s_max_i32 s46, s46, 0')
A('s_sub_u32 s46, 32, s46')
A('s_sub_i32 s47, -11, s46')
A('s_add_u32 s40, s27, s46')
A('s_sub_i32 s40, s40, 141')
A('v_mov_b32 v6, 1.0')
A('v_ldexp_f32 v6, v6, s40')
A('v_mov_b32 v5, 0')
A('v_cmp_eq_u32 vcc, 0, v0')
A('s_mov_b64 exec, vcc')
A(f'buffer_store_dword v6, v5, s[{S_WS}:{S_WS+3}], s41 offen')
A('s_mov_b64 exec, -1')
A('v_lshrrev_b32 v8, 1, v0')
A(f'v_mul_u32_u24 v9, {OFS}, v8')
A(f's_mov_b32 s16, {RS}')
A('v_mul_lo_u32 v8, v8, s16')
A('v_and_b32 v10, 1, v0')
for r in range(12, 16): A(f'v_mov_b32 v{r}, 0')
A('v_add_u32 v11, 65536, v2')
A('s_mov_b32 s48, 0')
L('Q_FH')
A('s_barrier')
for j in range(4): A(f'ds_write_b128 v2, v[12:15] offset:{j*16384}')
for j in range(2): A(f'ds_write_b128 v11, v[12:15] offset:{j*16384}')
A('s_mov_b64 exec, s[24:25]')
A(f'ds_write_b128 v11, v[12:15] offset:{2*16384}')
A('s_mov_b64 exec, -1')
A('s_waitcnt lgkmcnt(0)')
A('s_barrier')
A('s_lshl_b32 s49, s3, 5')
A(f's_add_u32 s49, s49, {OFF_BASE:#x}')
A('s_and_b32 s50, s3, 3')
A(f's_mul_i32 s50, s50, {16*CH*8}')
A('s_mov_b32 s51, 0')
L('Q_FR')
A(f'buffer_load_ushort v16, v9, s[{S_WS}:{S_WS+3}], s49 offen')
A(f'buffer_load_ushort v17, v9, s[{S_WS}:{S_WS+3}], s49 offen offset:2')
A('s_waitcnt vmcnt(0)')
A('v_add_u32 v16, v16, v10')
L('Q_FI')
A('v_cmp_lt_u32 vcc, v16, v17')
A('s_and_b64 exec, exec, vcc')
A('s_cbranch_execz Q_FRN')
A('s_mov_b64 s[52:53], exec')
A('v_and_b32 v18, 3, v16')
A('v_lshl_add_u32 v19, v16, 2, v8')
A('v_or_b32 v20, 3, v16')
A('v_lshl_add_u32 v20, v20, 2, v8')
A('v_add_u32 v20, v20, v18')
A(f'buffer_load_dword v21, v19, s[{S_WS}:{S_WS+3}], 0 offen')
A(f'buffer_load_ubyte v22, v20, s[{S_WS}:{S_WS+3}], 0 offen')
A('s_waitcnt vmcnt(0)')
A('v_bfe_u32 v23, v21, 13, 13')
A('v_subrev_u32 v23, s48, v23')
A('s_movk_i32 s16, 3125')
A('v_cmp_gt_u32 vcc, s16, v23')
A('v_cmp_ne_u32 s[54:55], 3, v18')
A('s_and_b64 vcc, vcc, s[54:55]')
A('v_bfe_u32 v24, v21, 0, 13')
A('v_lshlrev_b32 v24, 3, v24')
A('s_and_b64 exec, exec, vcc')
A('s_cbranch_execz Q_FIN2')
A(f'buffer_load_dwordx2 v[26:27], v24, s[{S_M}:{S_M+3}], s50 offen')
A('v_lshlrev_b32 v22, 2, v22')
A('v_lshrrev_b32 v25, 16, v21')
A('v_and_b32 v25, 0xfc00, v25')
A('v_or_b32 v25, v25, v22')
A('v_cvt_f32_f16 v25, v25')
A('v_cvt_f64_f32 v[28:29], v25')
A('v_lshlrev_b32 v23, 3, v23')
A('v_add_u32 v38, 50000, v23')
A('s_waitcnt vmcnt(0)')
A('v_lshlrev_b32 v30, 16, v26'); A('v_and_b32 v32, s30, v26')
A('v_lshlrev_b32 v34, 16, v27'); A('v_and_b32 v36, s30, v27')
for j, r in enumerate((30, 32, 34, 36)):
    A(f'v_cvt_f64_f32 v[{r}:{r+1}], v{r}')
    A(f'v_fma_f64 v[{r}:{r+1}], v[{r}:{r+1}], v[28:29], s[44:45]')
    A(f'ds_add_u64 v{23 if j < 2 else 38}, v[{r}:{r+1}] offset:{(j & 1) * 25000}')
L('Q_FIN2')
A('s_mov_b64 exec, s[52:53]')
A('v_add_u32 v16, 2, v16')
A('s_branch Q_FI')
L('Q_FRN')
A('s_mov_b64 exec, -1')
A('s_add_u32 s49, s49, 2')
A(f's_add_u32 s50, s50, {CH*8}')
A('s_add_u32 s51, s51, 1')
A('s_cmp_lt_u32 s51, 16')
A('s_cbranch_scc1 Q_FR')
A('s_waitcnt lgkmcnt(0)')
A('s_barrier')
A('s_and_b32 s16, s3, 3'); A(f's_mul_i32 s16, s16, {E*8}')
A('s_lshr_b32 s17, s3, 2'); A(f's_mul_i32 s17, s17, {CH*8}')
A('s_add_u32 s16, s16, s17'); A(f's_add_u32 s16, s16, {PART_BASE:#x}')
A('s_lshl_b32 s17, s48, 3'); A('s_add_u32 s16, s16, s17')
A('s_mov_b32 s52, 0'); A('s_mov_b32 s53, 0x41f00000')
A('v_mov_b32 v16, v3')
L('Q_FC')
A('s_movk_i32 s17, 25000')
A('v_cmp_gt_u32 vcc, s17, v16')
A('s_and_b64 exec, exec, vcc')
A('s_cbranch_execz Q_FCD')
A('v_add_u32 v17, 50000, v16')
for j in range(4):
    A(f'ds_read_b64 v[{18+2*j}:{19+2*j}], v{16 if j < 2 else 17} offset:{(j & 1) * 25000}')
A('s_waitcnt lgkmcnt(0)')
for j in range(4):
    lo, hi = 18 + 2*j, 19 + 2*j
    A(f'v_bfe_i32 v{hi}, v{hi}, 0, 19')
    A(f'v_cvt_f64_u32 v[26:27], v{lo}')
    A(f'v_cvt_f64_i32 v[28:29], v{hi}')
    A('v_fma_f64 v[26:27], v[28:29], s[52:53], v[26:27]')
    A('v_ldexp_f64 v[26:27], v[26:27], s47')
    A(f'v_cvt_f32_f64 v{30+j}, v[26:27]')
A('v_cvt_pk_f16_f32 v34, v30, v31')
A('v_cvt_pk_f16_f32 v35, v32, v33')
A(f'buffer_store_dwordx2 v[34:35], v16, s[{S_WS}:{S_WS+3}], s16 offen')
A('v_add_u32 v16, 8192, v16')
A('s_branch Q_FC')
L('Q_FCD')
A('s_mov_b64 exec, -1')
A('s_add_u32 s48, s48, 3125')
A('s_cmp_lt_u32 s48, 6250')
A('s_cbranch_scc1 Q_FH')
L('Q_FIN')
stamp2()
if OPT['stamp2'] >= 0:
    A('s_waitcnt vmcnt(0)')
    stamp2()
    A('v_readfirstlane_b32 s54, v0')
    A('s_nop 3')
    A(f's_cmp_lg_u32 s2, {OPT["stamp2"]}')
    A('s_cbranch_scc1 Q_END')
    A(f's_cmp_lg_u32 s54, {64*OPT.get("swave", 0)}')
    A('s_cbranch_scc1 Q_END')
    A('s_load_dwordx2 s[4:5], s[0:1], 96')
    A('s_waitcnt lgkmcnt(0)')
    srd(72, 4, 256)
    A('v_readlane_b32 s54, v127, 2')
    A('v_and_b32 v4, 63, v0')
    A('v_lshlrev_b32 v4, 2, v4')
    A('v_subrev_u32 v127, s54, v127')
    A('buffer_store_dword v127, v4, s[72:75], 0 offen')
abs_end(127, 64, 1, 16)
L('Q_END')
A('s_endpgm')

khead('fin_kernel')
A(f's_cmp_ge_u32 s2, {G3}')
A('s_cbranch_scc1 F_END')
abs_start(83)
A('s_load_dwordx2 s[4:5], s[0:1], 0')
A('s_load_dwordx2 s[6:7], s[0:1], 104')
A('s_load_dwordx2 s[8:9], s[0:1], 24')
A('s_load_dwordx2 s[10:11], s[0:1], 88')
A('s_load_dwordx2 s[96:97], s[0:1], 40')
A('s_load_dwordx4 s[32:35], s[0:1], 56')
A('s_load_dwordx4 s[28:31], s[0:1], 72')
S_M, S_WS, S_DIST, S_O = 12, 16, 20, 24
A('s_lshl_b32 s3, s2, 9')
A('s_waitcnt lgkmcnt(0)')
A('s_load_dwordx4 s[40:43], s[96:97], 0')
A('s_load_dwordx16 s[44:59], s[32:33], 0')
A('s_load_dwordx16 s[60:75], s[34:35], 0')
A('s_load_dwordx8 s[76:83], s[28:29], 0')
A('s_load_dwordx8 s[84:91], s[30:31], 0')
srd(S_M, 4, E * 8); srd(S_WS, 6, WS_BYTES); srd(S_DIST, 8, E * 2); srd(S_O, 10, E * 8)
A('s_mov_b32 s38, 0xffff0000')
VB = 2
def R(i, n): return VB + 40 * i + n
for i in range(2):
    e, t = R(i, 1), R(i, 2)
    A(f'v_add_u32 v{e}, s3, v0')
    if i: A(f'v_add_u32 v{e}, 256, v{e}')
    A(f'v_lshlrev_b32 v{t}, 1, v{e}')
    A(f'buffer_load_ushort v{R(i,3)}, v{t}, s[{S_DIST}:{S_DIST+3}], 0 offen')
for i in range(2):
    e, t = R(i, 1), R(i, 2)
    A(f'v_min_u32 v{t}, {E-1}, v{e}')
    A(f'v_lshlrev_b32 v{R(i,0)}, 3, v{t}')
    A(f'v_mul_hi_u32_u24 v{t}, {MAGIC_DIV:#x}, v{t}')
    A(f'v_lshlrev_b32 v{t}, 4, v{t}')
    A(f's_mov_b32 s39, {SCL_BASE:#x}')
    A(f'buffer_load_dwordx4 v[{R(i,6)}:{R(i,9)}], v{t}, s[{S_WS}:{S_WS+3}], s39 offen')
    for p in range(4):
        A(f's_mov_b32 s39, {PART_BASE + p*E*8:#x}')
        A(f'buffer_load_dwordx2 v[{R(i,32+2*p)}:{R(i,33+2*p)}], v{R(i,0)}, s[{S_WS}:{S_WS+3}], s39 offen {OPT["ld_part"]}')
    A(f'v_lshlrev_b32 v{e}, 3, v{e}')
    A(f'buffer_load_dwordx2 v[{R(i,4)}:{R(i,5)}], v{e}, s[{S_M}:{S_M+3}], 0 offen')
def sw(base, idx, dst):
    s = base + idx // 2
    if idx & 1: A(f's_and_b32 s{dst}, s{s}, 0xffff0000')
    else: A(f's_lshl_b32 s{dst}, s{s}, 16')
def rnd2(a, b, t):
    A(f'v_cvt_pk_bf16_f32 v{t}, v{a}, v{b}')
    A(f'v_lshlrev_b32 v{a}, 16, v{t}')
    A(f'v_and_b32 v{b}, s38, v{t}')
A('s_waitcnt vmcnt(12) lgkmcnt(0)')
A(f's_mov_b32 s94, {f32bits(-10.0):#x}')
A(f's_mov_b32 s95, {f32bits(math.log2(math.e)):#x}')
for i in range(2): A(f'v_lshlrev_b32 v{R(i,3)}, 16, v{R(i,3)}')
for r in range(0, 8, 2):
    sw(40, r, 92); sw(40, r + 1, 93)
    for i in range(2):
        a, b, t = R(i, 14 + r), R(i, 15 + r), R(i, 2)
        A(f'v_subrev_f32 v{a}, s92, v{R(i,3)}')
        A(f'v_subrev_f32 v{b}, s93, v{R(i,3)}')
        rnd2(a, b, t)
        A(f'v_mul_f32 v{a}, v{a}, v{a}')
        A(f'v_mul_f32 v{b}, v{b}, v{b}')
        rnd2(a, b, t)
        A(f'v_mul_f32 v{a}, s94, v{a}')
        A(f'v_mul_f32 v{b}, s94, v{b}')
        rnd2(a, b, t)
        A(f'v_mul_f32 v{a}, s95, v{a}')
        A(f'v_mul_f32 v{b}, s95, v{b}')
        A(f'v_exp_f32 v{a}, v{a}')
        A(f'v_exp_f32 v{b}, v{b}')
        A('s_nop 0')
        rnd2(a, b, t)
for base, dst in ((60, 22), (44, 26)):
    for d in range(4):
        for r in range(8):
            sw(base, r*4 + d, 92)
            for i in range(2):
                if r == 0: A(f'v_mul_f32 v{R(i,dst+d)}, s92, v{R(i,14+r)}')
                else: A(f'v_fmac_f32 v{R(i,dst+d)}, s92, v{R(i,14+r)}')
A('s_waitcnt vmcnt(0)')
for i in range(2):
    for d in range(4):
        for p in range(4):
            c = '0' if p == 0 else f'v{R(i,14+d)}'
            A(f'v_fma_mix_f32 v{R(i,14+d)}, v{R(i,32+2*p+d//2)}, v{R(i,6+p)}, {c} op_sel:[{d&1},0,0] op_sel_hi:[1,0,0]')
for d in range(4):
    for k in range(4):
        sw(76, k*4 + d, 92)
        for i in range(2):
            if k == 0: A(f'v_mul_f32 v{R(i,10+d)}, s92, v{R(i,14+k)}')
            else: A(f'v_fmac_f32 v{R(i,10+d)}, s92, v{R(i,14+k)}')
for i in range(2):
    for d in range(4):
        A(f'v_mul_f32 v{R(i,10+d)}, v{R(i,10+d)}, v{R(i,22+d)}')
    rnd2(R(i,10), R(i,11), R(i,2)); rnd2(R(i,12), R(i,13), R(i,2))
    rnd2(R(i,26), R(i,27), R(i,2)); rnd2(R(i,28), R(i,29), R(i,2))
for d in range(4):
    for k in range(4):
        sw(84, k*4 + d, 92)
        for i in range(2):
            if k == 0: A(f'v_mul_f32 v{R(i,22+d)}, s92, v{R(i,10+k)}')
            else: A(f'v_fmac_f32 v{R(i,22+d)}, s92, v{R(i,10+k)}')
for i in range(2):
    rnd2(R(i,22), R(i,23), R(i,2)); rnd2(R(i,24), R(i,25), R(i,2))
    for d in range(4):
        A(f'v_mul_f32 v{R(i,22+d)}, v{R(i,22+d)}, v{R(i,26+d)}')
    rnd2(R(i,22), R(i,23), R(i,2)); rnd2(R(i,24), R(i,25), R(i,2))
    A(f'v_lshlrev_b32 v{R(i,26)}, 16, v{R(i,4)}')
    A(f'v_and_b32 v{R(i,27)}, s38, v{R(i,4)}')
    A(f'v_lshlrev_b32 v{R(i,28)}, 16, v{R(i,5)}')
    A(f'v_and_b32 v{R(i,29)}, s38, v{R(i,5)}')
    for d in range(4):
        A(f'v_add_f32 v{R(i,22+d)}, v{R(i,22+d)}, v{R(i,26+d)}')
    A(f'v_cvt_pk_bf16_f32 v{R(i,30)}, v{R(i,22)}, v{R(i,23)}')
    A(f'v_cvt_pk_bf16_f32 v{R(i,31)}, v{R(i,24)}, v{R(i,25)}')
    A(f'buffer_store_dwordx2 v[{R(i,30)}:{R(i,31)}], v{R(i,1)}, s[{S_O}:{S_O+3}], 0 offen')
abs_end(83, 64, 2, 4)
L('F_END')
A('s_endpgm')

out.append('.section .rodata,"a"')
for name, vg in (('part_kernel', 128), ('acc_kernel', 128), ('fin_kernel', 84)):
    out.append('.p2align 6')
    out.append(f'.amdhsa_kernel {name}')
    out.append(f'  .amdhsa_next_free_vgpr {vg}')
    out.append('  .amdhsa_next_free_sgpr 102')
    out.append(f'  .amdhsa_accum_offset {vg}')
    out.append('  .amdhsa_group_segment_fixed_size 0')
    out.append('  .amdhsa_kernarg_size 112')
    out.append('  .amdhsa_user_sgpr_count 2')
    out.append('  .amdhsa_user_sgpr_kernarg_segment_ptr 1')
    out.append('  .amdhsa_system_sgpr_workgroup_id_x 1')
    out.append('  .amdhsa_float_denorm_mode_32 3')
    out.append('.end_amdhsa_kernel')
open(sys.argv[1], 'w').write('\n'.join(out) + '\n')
```

```python
import struct, sys, math

E = 400000
T = 12800000
CH = 6250
S = 25000
NTILE = 512
NBLK = (S + 2) // 3
RS = 133376
OFS = 8208
OFF_BASE = 0x4400000
MAX_BASE = 0x4C00000
SCL_BASE = 0x4C01000
PART_BASE = 0x5000000
WS_BYTES = 268435456
MAGIC_DIV = (2**32 + CH - 1) // CH
MINI = S - 6 * 4096
assert NTILE * RS <= OFF_BASE and OFF_BASE + NTILE * OFS <= MAX_BASE

OPT = dict(ld_in='nt', st_ws='sc0 sc1', ld_ent='', ld_ch='', st_part='sc0 sc1', ld_part='', NB=2, skip_s=0, skip_g=0, skip_fill=0, skip_e=0,
           stamp=-1, stamp2=-1, prio=1, ilv='2:0,3:1,4:2,5:3', pre=1, npb=1, bps=1, vpos='123456', skip_ch=0, skip_pf=0, pmap=0, cpos=0, epos=1, unpair=0, k2prio=0, pa=2, pb=2, struct=0, forcefb=0, abst=0, wsoff=0)
for a in sys.argv[2:]:
    k, v = a.split('=')
    OPT[k] = int(v) if (v.lstrip('-').isdigit() and k != 'vpos') else v.replace('_', ' ')

def f32bits(x): return struct.unpack('<I', struct.pack('<f', x))[0]
out = []
def A(s): out.append('    ' + s)
def L(s): out.append(s + ':')
_lab = [0]
def newlab(p='L'):
    _lab[0] += 1
    return f'{p}_{_lab[0]}'
def srd(d, b, nbytes):
    if nbytes == WS_BYTES and OPT['wsoff']:
        off = OPT['wsoff'] << 20
        A(f's_add_u32 s{d}, s{b}, {off:#x}')
        A(f's_addc_u32 s{d+1}, s{b+1}, 0')
        A(f's_and_b32 s{d+1}, s{d+1}, 0xffff')
        A(f's_mov_b32 s{d+2}, {nbytes - off:#x}')
        A(f's_mov_b32 s{d+3}, 0x00020000')
        return
    A(f's_mov_b32 s{d}, s{b}')
    A(f's_and_b32 s{d+1}, s{b+1}, 0xffff')
    A(f's_mov_b32 s{d+2}, {nbytes:#x}')
    A(f's_mov_b32 s{d+3}, 0x00020000')
def dpp_scan(op, v):
    for sh in (1, 2, 4, 8):
        A('s_nop 1')
        A(f'{op}_dpp v{v}, v{v}, v{v} row_shr:{sh} row_mask:0xf bank_mask:0xf bound_ctrl:0')
    A('s_nop 1')
    A(f'{op}_dpp v{v}, v{v}, v{v} row_bcast:15 row_mask:0xa bank_mask:0xf')
    A('s_nop 1')
    A(f'{op}_dpp v{v}, v{v}, v{v} row_bcast:31 row_mask:0xc bank_mask:0xf')
def khead(name):
    out.append(f'.globl {name}')
    out.append('.p2align 8')
    out.append(f'.type {name},@function')
    L(name)
SD = 'dst_sel:DWORD dst_unused:UNUSED_PAD'
def abs_start(v):
    if not OPT['abst']: return
    A('s_memrealtime s[4:5]')
    A('s_waitcnt lgkmcnt(0)')
    A(f'v_mov_b32 v{v}, s4')
def abs_end(v, sr, kid, wpb):
    if not OPT['abst']: return
    A('s_mov_b64 exec, -1')
    A('s_waitcnt vmcnt(0)')
    A('s_load_dwordx2 s[4:5], s[0:1], 104')
    A('s_memrealtime s[6:7]')
    A('s_waitcnt lgkmcnt(0)')
    srd(sr, 4, WS_BYTES)
    A('v_lshrrev_b32 v1, 6, v0')
    A(f's_mul_i32 s7, s2, {wpb}')
    A('v_add_u32 v1, s7, v1')
    A('v_lshlrev_b32 v1, 3, v1')
    A(f'v_mov_b32 v2, v{v}')
    A('v_mov_b32 v3, s6')
    A(f's_mov_b32 s7, {0xF000000 + kid*65536:#x}')
    A('s_mov_b64 exec, 1')
    A(f'buffer_store_dwordx2 v[2:3], v1, s[{sr}:{sr+3}], s7 offen')

stampn = [0]
def stamp(key):
    if OPT[key] < 0: return
    n = stampn[0]; stampn[0] += 1
    A(OPT.get('clk','s_memtime').replace(' ','_') + ' s[98:99]')
    A('s_waitcnt lgkmcnt(0)')
    A(f's_mov_b32 s{76+n}, s98')
def stamp_flush(key, swave, vz, wave=0):
    if OPT[key] < 0: return
    lab = newlab('STF')
    A(f's_cmp_lg_u32 s2, {OPT[key]}')
    A(f's_cbranch_scc1 {lab}')
    A(f's_cmp_lg_u32 s{swave}, {wave}')
    A(f's_cbranch_scc1 {lab}')
    A('s_load_dwordx2 s[4:5], s[0:1], 96')
    A('s_waitcnt lgkmcnt(0)')
    srd(72, 4, 256)
    A('s_mov_b64 exec, 1')
    A(f'v_mov_b32 v{vz}, 0')
    for n in range(stampn[0]):
        A(f's_sub_u32 s98, s{76+n}, s76')
        A(f'v_mov_b32 v{vz+1}, s98')
        A(f'buffer_store_dword v{vz+1}, v{vz}, s[72:75], 0 offen offset:{4*n}')
        A('s_nop 1')
    L(lab)

L_H, L_SC, L_ST = 0, 16384, 16640
L_X = L_ST
L_W = L_X + NBLK * 4 + 8
LDS1 = L_W + NBLK * 12
assert L_W < 65536 and L_W % 16 == 0
L_ARB, L_CH, L_SC2 = 50000, 100000, 150000
LDS2 = 150000 + 64
G3 = (E + 511) // 512

hdr = open('standalone__molecular_angular_gemnet__graph.s.ref').read().split('; Override launch')[0]
out.append(hdr.rstrip())
out.append(f'; @launch kernel=part_kernel grid=(256,1,1) block=(1024,1,1) lds={LDS1}')
out.append(f'; @launch kernel=acc_kernel grid=(256,1,1) block=(1024,1,1) lds={LDS2}')
out.append(f'; @launch kernel=fin_kernel grid=({G3},1,1) block=(256,1,1) lds=0')
out.append('.amdgcn_target "amdgcn-amd-amdhsa--gfx950"')
out.append('.text')

khead('part_kernel')
A('s_cmp_ge_u32 s2, 256')
A('s_cbranch_scc1 P_END')
abs_start(87)
A('s_load_dwordx4 s[4:7], s[0:1], 0')
A('s_load_dwordx2 s[8:9], s[0:1], 16')
A('s_load_dwordx2 s[10:11], s[0:1], 32')
A('s_load_dwordx2 s[12:13], s[0:1], 48')
A('s_load_dwordx2 s[14:15], s[0:1], 104')
S_IN, S_OUT, S_ANG, S_WS, S_M = 16, 20, 24, 28, 32
if OPT['prio']: A('s_setprio 3')
A('v_lshlrev_b32 v1, 4, v0')
A('v_lshlrev_b32 v2, 3, v0')
A('v_mov_b32 v3, 1')
A('v_mov_b32 v4, 0x10000')
A('v_mov_b32 v5, 0')
A('v_lshlrev_b32 v6, 2, v0')
A('v_lshlrev_b32 v7, 1, v0')
TT = 8
for r in range(4): A(f'v_mov_b32 v{TT+4+r}, 0')
A('v_readfirstlane_b32 s50, v0')
A(f'ds_write_b128 v1, v[{TT+4}:{TT+7}]')
A(f'ds_write_b32 v6, v5 offset:{L_SC}')
A(f's_movk_i32 s42, {MINI}')
A('v_cmp_gt_u32 s[40:41], s42, v0')
A('s_waitcnt lgkmcnt(0)')
A('s_load_dword s36, s[12:13], 0')
srd(S_IN, 6, T * 4); srd(S_OUT, 8, T * 4); srd(S_ANG, 10, T * 2); srd(S_WS, 14, WS_BYTES); srd(S_M, 4, E * 8)
A('s_lshr_b32 s50, s50, 6')
A(f's_mul_i32 s37, s2, {2*S*4}')
A(f's_mul_i32 s38, s2, {2*S*2}')
UA = 24
unitA = [(UA + 10*k, UA + 10*k + 4, UA + 10*k + 8) for k in range(6)] + [(84, 85, 86)]
unitB = [(88 + 10*k, 88 + 10*k + 4, 88 + 10*k + 8) for k in range(4)] + [unitA[0], unitA[1], (44, 45, 46)]
vm = []
ldf = OPT['ld_in']
def load_unit(tag, k):
    vi, vo, va = (unitA if tag == 'A' else unitB)[k]
    tile = 0 if tag == 'A' else 1
    A(f's_add_u32 s43, s37, {tile*S*4 + k*16384}')
    A(f's_add_u32 s44, s38, {tile*S*2 + k*8192}')
    if k < 6:
        A(f'buffer_load_dwordx4 v[{vo}:{vo+3}], v1, s[{S_OUT}:{S_OUT+3}], s43 offen {ldf}')
        A(f'buffer_load_dwordx4 v[{vi}:{vi+3}], v1, s[{S_IN}:{S_IN+3}], s43 offen {ldf}')
        A(f'buffer_load_dwordx2 v[{va}:{va+1}], v2, s[{S_ANG}:{S_ANG+3}], s44 offen {ldf}')
    else:
        A('s_or_b64 exec, s[40:41], 1')
        A(f'buffer_load_dword v{vo}, v6, s[{S_OUT}:{S_OUT+3}], s43 offen {ldf}')
        A(f'buffer_load_dword v{vi}, v6, s[{S_IN}:{S_IN+3}], s43 offen {ldf}')
        A(f'buffer_load_ushort v{va}, v7, s[{S_ANG}:{S_ANG+3}], s44 offen {ldf}')
        A('s_mov_b64 exec, -1')
    vm.extend([(tag, k)] * 3)
def vwait(tag):
    idx = max(i for i, t in enumerate(vm) if t == tag)
    A(f's_waitcnt vmcnt({min(len(vm)-1-idx, 63)})')
stamp('stamp')
for k in range(OPT['pre']): load_unit('A', k)
A('s_barrier')
A(f's_mul_i32 s39, s2, {782*16}')
A(f'buffer_load_dwordx4 v[{TT}:{TT+3}], v1, s[{S_M}:{S_M+3}], s39 offen'); vm.append('M')
for k in range(OPT['pre'], 7): load_unit('A', k)
if OPT['prio']: A('s_setprio 0')
A(f's_mov_b32 s46, {f32bits(1/(2*math.pi)):#x}')
A(f's_mov_b32 s47, {f32bits(1/(2*math.pi)):#x}')
A('s_mov_b32 s48, 0xfc000000')
A('s_mov_b32 s49, 0xffff0000')
A(f's_mov_b32 s51, {(-CH) & 0xffffffff:#x}')
A('s_mov_b32 s52, 0x00020002')
A('s_mov_b32 s53, 0x55555556')
A('s_waitcnt lgkmcnt(0)')
A('s_lshl_b32 s36, s36, 16')

PT = TT + 11
def process(tag, k):
    vi0, vo0, va0 = (unitA if tag == 'A' else unitB)[k]
    inc = 3 if tag == 'A' else 4
    n = 4 if k < 6 else 1
    vwait((tag, k))
    skip = None
    if k == 6:
        skip = newlab('P_MS')
        A('s_mov_b64 exec, s[40:41]')
        A(f's_cbranch_execz {skip}')
    tj, ti, t1 = PT, PT + 1, PT + 2
    for j in range(n):
        vi, vo = vi0 + j, vo0 + j
        A(f'v_mul_hi_u32_u24 v{tj}, {MAGIC_DIV:#x}, v{vi}')
        A(f'v_mul_hi_u32_u24 v{ti}, {MAGIC_DIV:#x}, v{vo}')
        A(f'v_lshl_add_u32 v{vi}, v{vo}, 13, v{vi}')
        A(f'v_lshl_add_u32 v{vo}, v{ti}, 6, v{tj}')
        A(f'v_lshl_add_u32 v{t1}, v{ti}, 13, v{tj}')
        A(f'v_lshlrev_b32 v{vo}, 2, v{vo}')
        A(f'v_mad_i32_i24 v{vi}, v{t1}, s51, v{vi}')
        A(f'ds_add_u32 v{vo}, v{inc} offset:{L_H}')
    a0, a1 = PT + 3, PT + 4
    assert a0 % 2 == 0
    npair = (n + 1) // 2
    nf = newlab('P_NF')
    A('s_cmp_eq_u32 s36, 0x3f800000')
    A(f's_cbranch_scc1 {nf}')
    for p in range(npair):
        va = va0 + p
        A(f'v_lshlrev_b32 v{a0}, 16, v{va}')
        A(f'v_and_b32 v{a1}, s49, v{va}')
        A(f'v_mul_f32 v{a0}, s36, v{a0}')
        A(f'v_mul_f32 v{a1}, s36, v{a1}')
        A(f'v_cvt_pk_bf16_f32 v{va}, v{a0}, v{a1}')
    L(nf)
    for p in range(npair):
        va = va0 + p
        A(f'v_lshlrev_b32 v{a0}, 16, v{va}')
        A(f'v_and_b32 v{a1}, s49, v{va}')
        A(f'v_pk_mul_f32 v[{a0}:{a1}], v[{a0}:{a1}], s[46:47]')
        A(f'v_fract_f32 v{a0}, v{a0}')
        A(f'v_fract_f32 v{a1}, v{a1}')
        A(f'v_cos_f32 v{a0}, v{a0}')
        A(f'v_cos_f32 v{a1}, v{a1}')
        A('s_nop 0')
        A(f'v_cvt_pk_f16_f32 v{va}, v{a0}, v{a1}')
        A(f'v_pk_add_u16 v{va}, v{va}, s52')
        e0, e1 = 2*p, 2*p + 1
        A(f'v_lshlrev_b32 v{a0}, 16, v{va}')
        if e1 < n: A(f'v_and_or_b32 v{vi0+e1}, v{va}, s48, v{vi0+e1}')
        A(f'v_and_or_b32 v{vi0+e0}, v{a0}, s48, v{vi0+e0}')
        A(f'v_lshrrev_b32 v{va}, 2, v{va}')
    if k == 6:
        L(skip)
        A('s_mov_b64 exec, -1')

def maxm():
    vwait('M')
    A('s_mov_b32 s42, 0x7fff7fff')
    for j in range(4): A(f'v_and_b32 v{TT+j}, s42, v{TT+j}')
    A(f'v_pk_max_u16 v{TT}, v{TT}, v{TT+2}')
    A(f'v_pk_max_u16 v{TT+1}, v{TT+1}, v{TT+3}')
    A(f'v_pk_max_u16 v{TT}, v{TT}, v{TT+1}')
    A(f'v_lshrrev_b32 v{TT+1}, 16, v{TT}')
    A(f'v_and_b32 v{TT}, 0xffff, v{TT}')
    A(f'v_max_u32 v{TT}, v{TT}, v{TT+1}')
    dpp_scan('v_max_u32', TT)
    A('s_nop 1')
    A(f'v_readlane_b32 s42, v{TT}, 63')
    A('s_nop 1')
    A(f'v_mov_b32 v{TT}, s42')
    A('s_mov_b64 exec, 1')
    A(f'ds_max_u32 v5, v{TT} offset:{L_SC+128}')
    A('s_mov_b64 exec, -1')

def scan(tile, scoff):
    h = TT
    A('s_waitcnt lgkmcnt(0)')
    A('s_barrier')
    A(f'ds_read_b128 v[{h}:{h+3}], v1 offset:{L_H}')
    A(f'v_and_b32 v{h+5}, 63, v0')
    A(f'v_cmp_lt_u32 vcc, s50, v{h+5}')
    A(f'v_lshlrev_b32 v{h+5}, 2, v{h+5}')
    A('s_and_b64 s[56:57], vcc, 0xffff')
    A('s_waitcnt lgkmcnt(0)')
    if tile == 1:
        for j in range(4): A(f'v_lshrrev_b32 v{h+j}, 16, v{h+j}')
    for j in range(1, 4): A(f'v_add_u32 v{h+j}, v{h+j-1}, v{h+j}')
    A(f'v_mov_b32 v{h+4}, v{h+3}')
    dpp_scan('v_add_u32', h + 4)
    A('s_nop 1')
    A(f'v_readlane_b32 s42, v{h+4}, 63')
    A('s_nop 1')
    A(f'v_mov_b32 v{h+6}, s42')
    A('s_mov_b64 exec, s[56:57]')
    A(f'ds_add_u32 v{h+5}, v{h+6} offset:{scoff}')
    A('s_mov_b64 exec, -1')
    A('s_lshl_b32 s42, s50, 2')
    A(f'v_mov_b32 v{h+5}, s42')
    A(f'v_sub_u32 v{h+4}, v{h+4}, v{h+3}')
    A('s_waitcnt lgkmcnt(0)')
    A('s_barrier')
    A(f'ds_read_b32 v{h+5}, v{h+5} offset:{scoff}')
    if tile == 0: A(f'ds_read_b32 v{h+6}, v5 offset:{L_SC+128}')
    A(f's_mul_i32 s42, s2, {2*OFS}')
    A(f's_add_u32 s42, s42, {OFF_BASE + tile*OFS:#x}')
    A('s_waitcnt lgkmcnt(0)')
    A(f'v_add_u32 v{h+4}, v{h+4}, v{h+5}')
    for j in (3, 2, 1): A(f'v_add_u32 v{h+j}, v{h+4}, v{h+j-1}')
    A(f'v_mov_b32 v{h}, v{h+4}')
    A(f'ds_write_b128 v1, v[{h}:{h+3}] offset:{L_H}')
    for j in range(4):
        A(f'v_mul_hi_u32 v{h+10+j}, v{h+j}, s53')
        A(f'v_add_u32 v{h+10+j}, v{h+10+j}, v{h+j}')
    A(f'v_lshl_or_b32 v{h+8}, v{h+11}, 16, v{h+10}')
    A(f'v_lshl_or_b32 v{h+9}, v{h+13}, 16, v{h+12}')
    A(f'buffer_store_dwordx2 v[{h+8}:{h+9}], v2, s[{S_WS}:{S_WS+3}], s42 offen')
    vm.append(('OFS', tile))
    done = newlab('P_SC')
    A('s_cmp_lg_u32 s50, 0')
    A(f's_cbranch_scc1 {done}')
    A('s_mov_b64 exec, 1')
    A(f'v_mov_b32 v{h+5}, {S + S//3}')
    A('s_add_u32 s42, s42, 8192')
    A(f'buffer_store_dword v{h+5}, v5, s[{S_WS}:{S_WS+3}], s42 offen')
    if tile == 0:
        A(f's_add_u32 s42, s2, {MAX_BASE:#x}')
        A(f'v_lshrrev_b32 v{h+6}, 7, v{h+6}')
        A(f'buffer_store_byte v{h+6}, v5, s[{S_WS}:{S_WS+3}], s42 offen')
    A('s_mov_b64 exec, -1')
    L(done)
    A('s_waitcnt lgkmcnt(0)')
    A('s_barrier')

def scatter(tag, after_wait, after_fin):
    units = unitA if tag == 'A' else unitB
    lg = []
    def issue(k):
        vi0, vo0, _ = units[k]
        n = 4 if k < 6 else 1
        if k == 6: A('s_mov_b64 exec, s[40:41]')
        for j in range(n):
            A(f'ds_add_rtn_u32 v{TT+4*(k&1)+j}, v{vo0+j}, v3 offset:{L_H}')
            lg.append(('R', k))
        if k == 6: A('s_mov_b64 exec, -1')
    def fin(k):
        vi0, vo0, va0 = units[k]
        n = 4 if k < 6 else 1
        if k == 6: A('s_mov_b64 exec, s[40:41]')
        for j in range(n):
            t = TT + 4*(k & 1) + j
            q, a = TT + 8, TT + 9 + (j & 1)
            if tag == 'A': A(f'v_and_b32 v{t}, 0xffff, v{t}')
            A(f'v_mul_hi_u32 v{q}, v{t}, s53')
            A(f'v_lshlrev_b32 v{a}, 2, v{t}')
            A(f'v_add_u32 v{t}, v{q}, v{t}')
            A(f'ds_write_b32 v{a}, v{vi0+j} offset:{L_W}')
            A(f'ds_write_b8{"_d16_hi" if j & 1 else ""} v{t}, v{va0+j//2} offset:{L_X}')
            lg.extend([('W', k)] * 2)
        if k == 6: A('s_mov_b64 exec, -1')
    issue(0)
    for k in range(7):
        if k + 1 < 7: issue(k + 1)
        idx = max(i for i, t in enumerate(lg) if t == ('R', k) or t == ('W', k - 1))
        ny = sum(1 for t in lg[idx+1:] if t[1] != 6)
        A(f's_waitcnt lgkmcnt({min(ny, 15)})')
        if k in after_wait: after_wait[k]()
        fin(k)
        if k in after_fin:
            after_fin[k]()
            lg.extend([('H', k)] * 4)
    A('s_waitcnt lgkmcnt(0)')
    A('s_barrier')

RC = (NBLK + 1023) // 1024
lastc = NBLK - (RC - 1) * 1024
def copyout(tile, regs, ar):
    A(f's_movk_i32 s42, {lastc}')
    A('v_cmp_gt_u32 s[56:57], s42, v0')
    A(f'v_mul_u32_u24 v{ar[0]}, 12, v0')
    A(f'v_add_u32 v{ar[0]}, {L_W}, v{ar[0]}')
    A(f's_mul_i32 s42, s2, {2*RS}')
    if tile: A(f's_add_u32 s42, s42, {RS}')
    def rd(j):
        r = regs[j]
        if j == RC - 1: A('s_mov_b64 exec, s[56:57]')
        A(f'ds_read2_b32 v[{r}:{r+1}], v{ar[0]} offset0:0 offset1:1')
        A(f'ds_read_b32 v{r+2}, v{ar[0]} offset:8')
        A(f'ds_read_b32 v{r+3}, v6 offset:{L_X + j*4096}')
        if j == RC - 1: A('s_mov_b64 exec, -1')
        else: A(f'v_add_u32 v{ar[0]}, {12*1024}, v{ar[0]}')
    LA = 4
    for j in range(LA): rd(j)
    for j in range(RC):
        if j + LA < RC: rd(j + LA)
        A(f's_waitcnt lgkmcnt({3*max(0, min(LA, RC-2-j))})')
        if j == RC - 1: A('s_mov_b64 exec, s[56:57]')
        A(f'buffer_store_dwordx4 v[{regs[j]}:{regs[j]+3}], v1, s[{S_WS}:{S_WS+3}], s42 offen {OPT["st_ws"]}')
        if j < RC - 1: vm.append(('ST', tile, j))
        if j < RC - 1: A('s_add_u32 s42, s42, 16384')
    A('s_mov_b64 exec, -1')

stamp('stamp')
process('A', 0)
stamp('stamp')
maxm()
for k in range(1, 7): process('A', k)
stamp('stamp')
NPB = OPT['npb']
for k in range(NPB): load_unit('B', k)
scan(0, L_SC)
stamp('stamp')
ilv = dict((int(x.split(':')[0]), int(x.split(':')[1])) for x in OPT['ilv'].split(',')) if OPT['ilv'] else {}
pend = list(range(NPB, 7))
aw = {}
for k in range(7):
    take = []
    while pend and len(take) < OPT['bps'] and (pend[0] < 4 or k >= pend[0] - 3):
        take.append(pend.pop(0))
    if k == 6: take += pend; pend = []
    if take: aw[k] = (lambda tk=take: [load_unit('B', b) for b in tk])
scatter('A', aw, {k: (lambda b=b: process('B', b)) for k, b in ilv.items()})
stamp('stamp')
copyout(0, [48 + 4*j for j in range(RC)], [TT, TT + 1, TT + 2])
stamp('stamp')
for k in range(7):
    if k not in ilv.values(): process('B', k)
stamp('stamp')
scan(1, L_SC + 64)
stamp('stamp')
scatter('B', {}, {})
stamp('stamp')
copyout(1, [48 + 4*j for j in range(RC)], [TT, TT + 1, TT + 2])
stamp('stamp')
if OPT['stamp'] >= 0: A('s_waitcnt vmcnt(0)')
stamp('stamp')
stamp_flush('stamp', 50, TT, OPT.get('swave', 0))
abs_end(87, 64, 0, 16)
L('P_END')
A('s_endpgm')

st2n = [0]
def stamp2():
    if OPT['stamp2'] < 0: return
    n = st2n[0]; st2n[0] += 1
    A(OPT.get('clk','s_memtime').replace(' ','_') + ' s[4:5]')
    A('s_waitcnt lgkmcnt(0)')
    A(f'v_writelane_b32 v127, s4, {n+2}')
khead('acc_kernel')
A('s_cmp_ge_u32 s2, 256')
A('s_cbranch_scc1 Q_END')
abs_start(127)
A('s_load_dwordx2 s[4:5], s[0:1], 0')
A('s_load_dwordx2 s[6:7], s[0:1], 104')
S_M, S_WS = 8, 12
A('s_and_b32 s3, s2, 7')
A('s_lshl_b32 s3, s3, 5')
A('s_lshr_b32 s16, s2, 3')
A('s_add_u32 s3, s3, s16')
VTB = 5; VOF = 8
VEB = VOF + 18
def EB(slot, s): return VEB + (slot * 3 + s) * 4
VG = VEB + 48
def G(s, e): return VG + (s * 3 + e) * 2
VCH = VG + 18
VT = VCH + 16
VA = VT + 1
VSH, VFC = VT + 10, VT + 11
VOV = VT + 12
VRM = VOV + 2
assert VOV % 2 == 0 and VRM + 4 <= 127
def OF(s, k): return VOF + 9*s + k
def MK(slot, s, e):
    if s == 2 and e > 0: return 36 + 2 * e
    return 46 + slot * 14 + (s * 3 + e) * 2
A('v_and_b32 v1, 3, v0')
A('v_lshlrev_b32 v2, 4, v0')
A('v_lshrrev_b32 v3, 2, v0')
A('v_and_b32 v4, 1, v0')
A(f'v_bfe_u32 v{VT}, v0, 1, 1')
A(f'v_lshl_add_u32 v{VT}, v{VT}, 8, v3')
A(f'v_mul_u32_u24 v{VT}, {OFS}, v{VT}')
A(f'v_lshl_add_u32 v{VT+1}, v4, 4, v{VT}')
A(f'v_and_b32 v{VT+2}, 63, v0')
A(f'v_lshlrev_b32 v{VT+2}, 2, v{VT+2}')
if not OPT['abst']: A('v_mov_b32 v127, 0')
A('s_lshl_b32 s17, s3, 5')
A(f's_add_u32 s17, s17, {OFF_BASE:#x}')
A(f's_mov_b32 s19, {MAX_BASE:#x}')
A('s_and_b32 s20, s3, 3')
A(f's_mul_i32 s20, s20, {16*CH*8}')
A('v_cmp_gt_u32 s[22:23], 53, v0')
A('s_waitcnt lgkmcnt(0)')
srd(S_M, 4, E * 8); srd(S_WS, 6, WS_BYTES)
TO = VG
A(f'buffer_load_dwordx4 v[{TO}:{TO+3}], v{VT+1}, s[{S_WS}:{S_WS+3}], s17 offen')
A(f'buffer_load_ushort v{TO+4}, v{VT}, s[{S_WS}:{S_WS+3}], s17 offen offset:32')
A(f'buffer_load_dword v{VT+9}, v{VT+2}, s[{S_WS}:{S_WS+3}], s19 offen')
stamp2()
INLOOP = [0]
def ch1(j, live=False):
    sk = None
    if j == 3:
        A('s_and_b64 exec, s[22:23], s[18:19]' if live else 's_mov_b64 exec, s[22:23]')
        sk = newlab('Q_C')
        A(f's_cbranch_execz {sk}')
    else:
        A('s_mov_b64 exec, s[18:19]' if live else 's_mov_b64 exec, -1')
    A(f's_add_u32 s21, s20, {j*16384}')
    if not (OPT['skip_ch'] and INLOOP[0]): A(f'buffer_load_dwordx4 v[{VCH+4*j}:{VCH+4*j+3}], v2, s[{S_M}:{S_M+3}], s21 offen {OPT["ld_ch"]}')
    if j == 3: L(sk)
def chall(live=False):
    for j in (3, 0, 1, 2): ch1(j, live)
    A(f's_add_u32 s20, s20, {CH*8}')
def fill():
    if OPT['skip_fill']: return
    sk = newlab('Q_F')
    A('s_mov_b64 exec, s[22:23]')
    A(f's_cbranch_execz {sk}')
    A(f'ds_write_b128 v3, v[{VCH+12}:{VCH+15}] offset:{3*16384}')
    L(sk)
    A('s_mov_b64 exec, -1')
    for j in range(3):
        A(f'ds_write_b128 v3, v[{VCH+4*j}:{VCH+4*j+3}] offset:{j*16384}')
chall()
A(f's_mov_b32 s16, {RS}')
A(f'v_mul_lo_u32 v{VTB}, v3, s16')
A(f'v_add_u32 v{VTB+1}, {256*RS}, v{VTB}')
A('v_cmp_lt_u32 s[36:37], 1, v1')
A('v_lshl_add_u32 v4, v4, 2, 16')
A('v_lshlrev_b32 v1, 2, v1')
A(f'v_add_u32 v{VTB+2}, 16, v1')
A(f'v_add_u32 v3, {L_CH}, v2')
z = VEB + 44
for r in range(4): A(f'v_mov_b32 v{z+r}, 0')
for j in range(4): A(f'ds_write_b128 v2, v[{z}:{z+3}] offset:{j*16384}')
A(f'v_add_u32 v{VT+6}, 65536, v2')
for j in range(2): A(f'ds_write_b128 v{VT+6}, v[{z}:{z+3}] offset:{j*16384}')
A('s_movk_i32 s16, 106')
A('v_cmp_gt_u32 s[24:25], s16, v0')
A('s_mov_b64 exec, s[24:25]')
A(f'ds_write_b128 v{VT+6}, v[{z}:{z+3}] offset:{2*16384}')
A('s_mov_b64 exec, -1')
A(f'v_mov_b32 v126, {L_SC2}')
VONE = VSH
A('s_mov_b64 exec, 1')
A(f'ds_write_b128 v126, v[{z}:{z+3}]')
A('s_mov_b64 exec, -1')
A('s_mov_b32 s30, 0xffff0000')
A(f's_mov_b32 s31, {L_CH}')
A('s_mov_b32 s35, 0xfc000000')
A(f'v_mov_b32 v{VSH}, 18')
A(f'v_mov_b32 v{VFC}, 0xfffc')
A('s_waitcnt vmcnt(3)')
for s_ in range(2):
    for k in range(9):
        ln = 2*s_ + (1 if 4 <= k < 8 else 0)
        src = TO + (k % 4 if k < 8 else 4)
        A(f'v_mov_b32_dpp v{OF(s_,k)}, v{src} quad_perm:[{ln},{ln},{ln},{ln}] row_mask:0xf bank_mask:0xf')

def third_sel(r, t, rem, skip=None, ad=None):
    if ad is None: ad = t
    r0, h0, r1, h1 = r >> 1, r & 1, (r + 1) >> 1, (r + 1) & 1
    y0, y1, q0, q1, off = t, t + 1, t + 2, t + 3, t + 4
    for s_, y, q in ((0, y0, q0), (1, y1, q1)):
        A(f'v_and_b32_sdwa v{y}, v{OF(s_,r0)}, v{VFC} {SD} src0_sel:WORD_{h0} src1_sel:DWORD')
        A(f'v_sub_u32_sdwa v{q}, v{OF(s_,r1)}, v{y} {SD} src0_sel:WORD_{h1} src1_sel:DWORD')
    A(f'v_cmp_lt_i32 s[42:43], 16, v{q0}')
    A(f'v_cmp_lt_i32 s[44:45], 16, v{q1}')
    if skip:
        A('s_or_b64 vcc, s[42:43], s[44:45]')
        if skip[1]: A('s_and_b64 vcc, vcc, s[18:19]')
        A(f's_cbranch_scc0 {skip[0]}')
    A('s_orn2_b64 vcc, s[36:37], s[42:43]')
    A('s_and_b64 vcc, vcc, s[44:45]')
    A('s_and_b64 s[42:43], s[42:43], s[44:45]')
    A(f'v_cndmask_b32 v{off}, v{VTB+2}, v4, s[42:43]')
    A(f'v_cndmask_b32 v{y0}, v{y0}, v{y1}, vcc')
    A(f'v_cndmask_b32 v{q0}, v{q0}, v{q1}, vcc')
    A(f'v_cndmask_b32 v{y1}, v{VTB}, v{VTB+1}, vcc')
    A(f'v_add_u32 v{y0}, v{y0}, v{off}')
    A(f'v_sub_u32 v{rem}, v{q0}, v{off}')
    A(f'v_lshl_add_u32 v{ad}, v{y0}, 2, v{y1}')

def pf1c(s_, r, ad):
    slot = r % 4
    r0, h0, r1, h1 = r >> 1, r & 1, (r + 1) >> 1, (r + 1) & 1
    y, d, ln = VT, VT + 2, VT + 3
    a, b = OF(s_, r0), OF(s_, r1)
    m = [MK(slot, s_, k) for k in range(3)]
    A(f'v_and_b32_sdwa v{y}, v{a}, v{VFC} {SD} src0_sel:WORD_{h0} src1_sel:DWORD')
    A(f'v_sub_u32_sdwa v{ln}, v{b}, v{a} {SD} src0_sel:WORD_{h1} src1_sel:WORD_{h0}')
    A(f'v_add_u32 v{y}, v{y}, v1')
    A(f'v_sub_u32_sdwa v{d}, v{y}, v{a} {SD} src0_sel:DWORD src1_sel:WORD_{h0}')
    A(f'v_lshl_add_u32 v{ad}, v{y}, 2, v{VTB+s_}')
    A(f'v_cmp_lt_u32 s[{m[0]}:{m[0]+1}], v{d}, v{ln}')
    A(f'v_add_u32 v{d}, 1, v{d}')
    A(f'v_cmp_lt_u32 s[{m[1]}:{m[1]+1}], v{d}, v{ln}')
    A(f'v_add_u32 v{d}, 1, v{d}')
    A(f'v_cmp_lt_u32 s[{m[2]}:{m[2]+1}], v{d}, v{ln}')
def pf1i(s_, r, ad, live=False):
    slot = r % 4
    m = [MK(slot, s_, k) for k in range(3)]
    e = EB(slot, s_)
    A(f's_or_b64 vcc, s[{m[0]}:{m[0]+1}], s[{m[1]}:{m[1]+1}]')
    A(f's_or_b64 vcc, vcc, s[{m[2]}:{m[2]+1}]')
    if live: A('s_and_b64 vcc, vcc, s[18:19]')
    A('s_or_b64 exec, vcc, 1')
    if not (OPT['skip_pf'] and INLOOP[0]): A(f'buffer_load_dwordx4 v[{e}:{e+3}], v{ad}, s[{S_WS}:{S_WS+3}], 0 offen {OPT["ld_ent"]}')
def pf3c(r, ad, live=False):
    slot = r % 4
    m = MK(slot, 2, 0)
    sk = newlab('Q_T')
    A(f's_mov_b64 s[{m}:{m+1}], 0')
    third_sel(r, VT, VRM + slot, (sk, live), ad)
    A(f'v_cmp_lt_i32 s[{m}:{m+1}], 0, v{VRM+slot}')
    L(sk)
def pf3i(r, ad):
    slot = r % 4
    m = MK(slot, 2, 0); e = EB(slot, 2)
    sk = newlab('Q_T')
    A(f's_mov_b64 exec, s[{m}:{m+1}]')
    A(f's_cbranch_execz {sk}')
    A(f'buffer_load_dwordx4 v[{e}:{e+3}], v{ad}, s[{S_WS}:{S_WS+3}], 0 offen {OPT["ld_ent"]}')
    L(sk)
def pf1(s_, r, live=False):
    A('s_mov_b64 exec, -1'); pf1c(s_, r, VA); pf1i(s_, r, VA, live)
def pf3(r, live=False):
    A('s_mov_b64 exec, -1'); pf3c(r, VT, live); pf3i(r, VT)
def wait3(r, n, extra=''):
    m3 = MK(r % 4, 2, 0)
    w1 = newlab('Q_W'); w2 = newlab('Q_W')
    A(f's_cmp_eq_u64 s[{m3}:{m3+1}], 0')
    A(f's_cbranch_scc1 {w1}')
    A(f's_waitcnt vmcnt({n+1}){extra}')
    A(f's_branch {w2}')
    L(w1)
    A(f's_waitcnt vmcnt({n}){extra}')
    L(w2)

def gath1(w, g):
    A(f'v_bfe_u32 v{g}, v{w}, 0, 13')
    A(f'v_lshl_add_u32 v{g}, v{g}, 3, s31')
    if not OPT['skip_g']: A(f'ds_read_b64 v[{g}:{g+1}], v{g}')

def scat1(w, xr, e, g):
    x, ad = VT, VT + 1
    p0, p2 = VT + 2, VT + 4
    A(f'v_lshlrev_b32_sdwa v{x}, v{VSH}, v{xr} {SD} src0_sel:DWORD src1_sel:BYTE_{e}')
    A(f'v_lshlrev_b32 v{p2}, 16, v{g+1}')
    A(f'v_and_b32 v{p2+1}, s30, v{g+1}')
    A(f'v_and_or_b32 v{x}, v{w}, s35, v{x}')
    A(f'v_lshrrev_b32 v{ad}, 10, v{w}')
    A(f'v_lshlrev_b32 v{p0}, 16, v{g}')
    A(f'v_and_b32 v{p0+1}, s30, v{g}')
    for r in (p2, p2 + 1, p0, p0 + 1):
        A(f'v_fma_mix_f32 v{r}, v{r}, v{x}, s{26 if r == p0 else 28} op_sel:[0,1,0] op_sel_hi:[0,1,0]')
        if r == p2: A(f'v_and_b32 v{ad}, 0xfff8, v{ad}')
        if r == p2 + 1: A(f'ds_add_u64 v{ad}, v[{p2}:{p2+1}] offset:{L_ARB}')
    A(f'v_add_u32 v{p0}, s34, v{p0}')
    A(f'ds_add_u64 v{ad}, v[{p0}:{p0+1}]')

def Gset(r, s_):
    slot = r % 4
    for e in range(3):
        m = MK(slot, s_, e)
        A(f's_mov_b64 exec, s[{m}:{m+1}]')
        gath1(EB(slot, s_) + e, G(s_, e))
def Gthird(r):
    slot = r % 4
    done = newlab('Q_GI')
    m = MK(slot, 2, 0)
    A(f's_mov_b64 exec, s[{m}:{m+1}]')
    A(f's_cbranch_execz {done}')
    gath1(EB(slot, 2), G(2, 0))
    rem = VRM + slot
    A(f'v_cmp_lt_i32 s[38:39], 1, v{rem}')
    A(f'v_cmp_lt_i32 s[40:41], 2, v{rem}')
    A(f'v_cmp_lt_i32 s[42:43], 8, v{rem}')
    for e in (1, 2):
        A(f's_mov_b64 exec, s[{36+2*e}:{37+2*e}]')
        A(f's_cbranch_execz {done}')
        gath1(EB(slot, 2) + e, G(2, e))
    A('s_mov_b64 exec, s[42:43]')
    A(f's_cbranch_execz {done}')
    A('s_mov_b64 exec, -1')
    third_sel(r, VT, rem)
    ad, stp, w, xr = VT + 6, VT + 7, VT + 8, VT + 9
    A(f'v_mov_b32 v{ad}, v{VT}')
    A(f'v_cndmask_b32 v{stp}, 16, 8, s[42:43]')
    lp = newlab('Q_SL')
    L(lp)
    A(f'v_sub_u32 v{rem}, v{rem}, v{stp}')
    A(f'v_lshl_add_u32 v{ad}, v{stp}, 2, v{ad}')
    A(f'v_cmpx_lt_i32 vcc, 0, v{rem}')
    A(f's_cbranch_execz {done}')
    A('s_mov_b64 s[44:45], exec')
    nx = newlab('Q_SN')
    for e in range(3):
        A(f'buffer_load_dword v{w}, v{ad}, s[{S_WS}:{S_WS+3}], 0 offen offset:{4*e}')
        A(f'buffer_load_dword v{xr}, v{ad}, s[{S_WS}:{S_WS+3}], 0 offen offset:12')
        A('s_waitcnt vmcnt(0)')
        A(f'v_bfe_u32 v{VOV}, v{w}, 0, 13')
        A(f'v_lshl_add_u32 v{VOV}, v{VOV}, 3, s31')
        A(f'ds_read_b64 v[{VOV}:{VOV+1}], v{VOV}')
        A('s_waitcnt lgkmcnt(0)')
        scat1(w, xr, e, VOV)
        if e < 2:
            A(f'v_cmpx_lt_i32 vcc, {1+e}, v{rem}')
            A(f's_cbranch_execz {nx}')
    L(nx)
    A('s_mov_b64 exec, s[44:45]')
    A(f's_branch {lp}')
    L(done)
def Sset(r, s_, hooks={}):
    slot = r % 4
    done = newlab('Q_S')
    for e in range(3):
        if e in hooks: hooks[e]()
        m = MK(slot, s_, e)
        A(f's_mov_b64 exec, s[{m}:{m+1}]')
        if s_ == 2: A(f's_cbranch_execz {done}')
        b = EB(slot, s_)
        if not OPT['skip_s']: scat1(b + e, b + 3, e, G(s_, e))
    L(done)

pf1(0, 0); pf1(1, 0); pf3(0); pf1(0, 1)
A('s_mov_b64 exec, -1')
A(f'v_max_u32_sdwa v{VT+2}, v{VT+9}, v{VT+9} {SD} src0_sel:BYTE_0 src1_sel:BYTE_1')
A(f'v_max_u32_sdwa v{VT+3}, v{VT+9}, v{VT+9} {SD} src0_sel:BYTE_2 src1_sel:BYTE_3')
A(f'v_max_u32 v{VT+9}, v{VT+2}, v{VT+3}')
dpp_scan('v_max_u32', VT + 9)
A('s_nop 1')
A(f'v_readlane_b32 s29, v{VT+9}, 63')
for s_ in range(2):
    A(f'v_and_b32 v{VT+2}, 0xffff, v{OF(s_,0)}')
    A(f'v_lshrrev_b32 v{VT+3}, 2, v{VT+2}')
    A(f'v_sub_u32 v{VT+2}, v{VT+2}, v{VT+3}')
    A(f'v_lshrrev_b32 v{VT+3}, 2, v{OF(s_,8)}')
    A(f'v_add_u32 v{VT+2}, v{VT+2}, v{VT+3}')
    A(f'v_sub_u32 v{VT+4+s_}, v{VT+2}, v{OF(s_,8)}')
A(f'v_add_u32 v{VT+2}, v{VT+4}, v{VT+5}')
dpp_scan('v_add_u32', VT + 2)
A('s_nop 1')
A(f'v_readlane_b32 s32, v{VT+2}, 63')
A('s_min_u32 s27, s29, 249')
A('s_add_u32 s28, s27, 2')
A('s_lshl_b32 s28, s28, 23')
A('s_or_b32 s28, s28, 0x400000')
A('s_add_u32 s26, s27, 5')
A('s_lshl_b32 s26, s26, 23')
A('s_sub_u32 s34, 0x4000000, s26')
A('s_or_b32 s26, s26, 0x80000')
A('s_waitcnt vmcnt(3)')
fill()
chall()
A('s_mov_b32 s33, 0')
A('s_mov_b64 s[18:19], -1')
A('s_waitcnt vmcnt(4) lgkmcnt(0)')
stamp2()
A('s_barrier')
Gset(0, 0); Gset(0, 1); Gthird(0)
pf1(1, 1); pf1(1, 2); pf3(1)
wait3(1, 2, ' lgkmcnt(0)')
if OPT['skip_pf']:
    pf1(0, 2); pf1(0, 3); pf1(1, 3); A('s_waitcnt vmcnt(0)')
INLOOP[0] = 1
L('Q_LOOP')
for r in range(4):
    ps = r & 1
    if r == 1: stamp2()
    A('s_barrier')
    if r == 1: stamp2()
    lastr = newlab('Q_SK')
    if r == 3:
        A('s_cmp_eq_u32 s33, 3')
        A(f's_cbranch_scc1 Q_LAST')
    fill()
    st = OPT['struct']
    if st == 0:
        chall(r >= 2)
        Sset(r, 0)
        A('s_waitcnt vmcnt(3) lgkmcnt(0)')
        if r == 1: stamp2()
        A('s_barrier')
        if r == 1: stamp2()
        Gset(r + 1, 0)
        Sset(r, 1, {1: lambda: pf1(ps, r + 2, r + 2 >= 4), 2: lambda: pf1(ps, r + 3, r + 3 >= 4)})
        Gset(r + 1, 1)
        Sset(r, 2)
        Gthird(r + 1)
        pf3(r + 2, r + 2 >= 4)
    elif st == 1:
        chall(r >= 2)
        Sset(r, 0)
        Sset(r, 2)
        A('s_waitcnt vmcnt(3) lgkmcnt(0)')
        A('s_barrier')
        Gset(r + 1, 0)
        Gthird(r + 1)
        Sset(r, 1)
        Gset(r + 1, 1)
        pf1(ps, r + 2, r + 2 >= 4); pf1(ps, r + 3, r + 3 >= 4)
        pf3(r + 2, r + 2 >= 4)
    elif st == 2:
        chall(r >= 2)
        Sset(r, 0)
        Sset(r, 1)
        Sset(r, 2)
        A('s_waitcnt vmcnt(3) lgkmcnt(0)')
        A('s_barrier')
        Gset(r + 1, 0)
        Gset(r + 1, 1)
        Gthird(r + 1)
        pf1(ps, r + 2, r + 2 >= 4); pf1(ps, r + 3, r + 3 >= 4)
        pf3(r + 2, r + 2 >= 4)
    if r == 3:
        A('s_mov_b64 exec, -1')
        A('s_add_u32 s33, s33, 1')
        A('s_cmp_eq_u32 s33, 3')
        A('s_cselect_b64 s[18:19], 1, -1')
        for s_ in range(2):
            for k in range(0, 7): A(f'v_mov_b32 v{OF(s_,k)}, v{OF(s_,k+2)}')
    wait3(r + 2, 2, ' lgkmcnt(0)')
A('s_branch Q_LOOP')
L('Q_LAST')
Sset(3, 0)
Sset(3, 1)
Sset(3, 2)
A('s_mov_b64 exec, -1')
A('s_waitcnt lgkmcnt(0)')
stamp2()
A('s_barrier')
A('v_lshlrev_b32 v3, 3, v0')
RA = 8
for k in range(7):
    if k == 6: A('s_mov_b64 exec, s[24:25]')
    A(f'ds_read_b64 v[{RA+4*k}:{RA+4*k+1}], v3 offset:{k*8192}')
A('s_mov_b64 exec, -1')
A(f'v_add_u32 v4, {L_ARB}, v3')
for k in range(7):
    if k == 6: A('s_mov_b64 exec, s[24:25]')
    A(f'ds_read_b64 v[{RA+4*k+2}:{RA+4*k+3}], v4 offset:{k*8192}')
A('s_mov_b64 exec, -1')
A('s_and_b32 s16, s3, 3'); A(f's_mul_i32 s16, s16, {E*8}')
A('s_lshr_b32 s17, s3, 2'); A(f's_mul_i32 s17, s17, {CH*8}')
A('s_add_u32 s16, s16, s17'); A(f's_add_u32 s16, s16, {PART_BASE:#x}')
A('v_mov_b32 v5, 0')
A(f's_mov_b32 s36, {f32bits(2.0**-10):#x}')
A(f's_mov_b32 s37, {f32bits(2.0**-13):#x}')
A('s_mov_b32 s38, s37'); A('s_mov_b32 s39, s37')
A('s_sub_i32 s40, s27, 135')
A('v_mov_b32 v6, 1.0')
A('v_ldexp_f32 v6, v6, s40')
A('s_lshl_b32 s41, s3, 2')
A(f's_add_u32 s41, s41, {SCL_BASE:#x}')
A('v_cmp_eq_u32 vcc, 0, v0')
A('s_mov_b64 exec, vcc')
A(f'buffer_store_dword v6, v5, s[{S_WS}:{S_WS+3}], s41 offen')
A('s_mov_b64 exec, -1')
X = 40
for k in range(7):
    a0, a1, b0, b1 = RA + 4*k, RA + 4*k + 1, RA + 4*k + 2, RA + 4*k + 3
    c = X; P = X + 2; t = X + 4
    A(f's_waitcnt lgkmcnt({max(0,5-k)})')
    if k == 6: A('s_mov_b64 exec, s[24:25]')
    A(f'v_lshrrev_b32 v{c}, 26, v{a0}')
    A(f'v_and_b32 v{a0}, 0x3ffffff, v{a0}')
    A(f'v_mad_u64_u32 v[{P}:{P+1}], vcc, v{c}, s28, 0')
    A(f'v_lshlrev_b32 v{t}, 19, v{c}')
    A(f'v_add_u32 v5, v5, v{c}')
    A(f'v_sub_u32 v{a0}, v{a0}, v{t}')
    A(f'v_sub_u32 v{a1}, v{a1}, v{P}')
    A(f'v_add_u32 v{P+1}, v{P+1}, v{P}')
    A(f'v_sub_co_u32 v{b0}, vcc, v{b0}, v{P}')
    A(f'v_cvt_f32_i32 v{a0}, v{a0}')
    A(f'v_cvt_f32_i32 v{a1}, v{a1}')
    A(f'v_subb_co_u32 v{b1}, vcc, v{b1}, v{P+1}, vcc')
    A(f'v_ashrrev_i32 v{t}, 31, v{b0}')
    A(f'v_cvt_f32_i32 v{b0}, v{b0}')
    A(f'v_sub_u32 v{b1}, v{b1}, v{t}')
    A(f'v_pk_mul_f32 v[{a0}:{a1}], v[{a0}:{a1}], s[36:37]')
    A(f'v_cvt_f32_i32 v{b1}, v{b1}')
    A(f'v_cvt_pk_f16_f32 v{a0}, v{a0}, v{a1}')
    A(f'v_pk_mul_f32 v[{b0}:{b1}], v[{b0}:{b1}], s[38:39]')
    A(f'v_cvt_pk_f16_f32 v{a1}, v{b0}, v{b1}')
    A(f'buffer_store_dwordx2 v[{a0}:{a1}], v3, s[{S_WS}:{S_WS+3}], s16 offen {OPT["st_part"]}')
    A('s_add_u32 s16, s16, 8192')
A('s_mov_b64 exec, -1')
dpp_scan('v_add_u32', 5)
A('s_nop 1')
A('v_readlane_b32 s42, v5, 63')
A('s_nop 3')
A('s_lshl_b32 s42, s42, 2')
A('s_add_u32 s42, s42, s32')
A('v_mov_b32 v6, s42')
A('v_mov_b32 v7, s32')
A('s_mov_b64 exec, 1')
A('ds_add_u32 v126, v6')
A('ds_sub_u32 v126, v7 offset:4')
A('s_mov_b64 exec, -1')
A('s_waitcnt lgkmcnt(0)')
A('s_barrier')
A('ds_read_b64 v[6:7], v126')
A('s_waitcnt lgkmcnt(0)')
A('v_readfirstlane_b32 s42, v6')
A('v_readfirstlane_b32 s43, v7')
A('s_nop 3')
if OPT['forcefb']: A('s_mov_b32 s42, 1')
A('s_cmp_gt_u32 s29, 249')
A('s_cselect_b32 s42, 1, s42')
A('s_cmp_eq_u32 s42, 0')
A('s_cbranch_scc1 Q_FIN')
A('s_waitcnt vmcnt(0)')
A('s_min_u32 s27, s29, 254')
A('s_add_u32 s45, s27, 923')
A('s_lshl_b32 s45, s45, 20')
A('s_or_b32 s45, s45, 0x80000')
A('s_mov_b32 s44, 0')
A('s_lshr_b32 s43, s43, 2')
A('s_flbit_i32_b32 s46, s43')
A('s_max_i32 s46, s46, 0')
A('s_sub_u32 s46, 32, s46')
A('s_sub_i32 s47, -11, s46')
A('s_add_u32 s40, s27, s46')
A('s_sub_i32 s40, s40, 141')
A('v_mov_b32 v6, 1.0')
A('v_ldexp_f32 v6, v6, s40')
A('v_mov_b32 v5, 0')
A('v_cmp_eq_u32 vcc, 0, v0')
A('s_mov_b64 exec, vcc')
A(f'buffer_store_dword v6, v5, s[{S_WS}:{S_WS+3}], s41 offen')
A('s_mov_b64 exec, -1')
A('v_lshrrev_b32 v8, 1, v0')
A(f'v_mul_u32_u24 v9, {OFS}, v8')
A(f's_mov_b32 s16, {RS}')
A('v_mul_lo_u32 v8, v8, s16')
A('v_and_b32 v10, 1, v0')
for r in range(12, 16): A(f'v_mov_b32 v{r}, 0')
A('v_add_u32 v11, 65536, v2')
A('s_mov_b32 s48, 0')
L('Q_FH')
A('s_barrier')
for j in range(4): A(f'ds_write_b128 v2, v[12:15] offset:{j*16384}')
for j in range(2): A(f'ds_write_b128 v11, v[12:15] offset:{j*16384}')
A('s_mov_b64 exec, s[24:25]')
A(f'ds_write_b128 v11, v[12:15] offset:{2*16384}')
A('s_mov_b64 exec, -1')
A('s_waitcnt lgkmcnt(0)')
A('s_barrier')
A('s_lshl_b32 s49, s3, 5')
A(f's_add_u32 s49, s49, {OFF_BASE:#x}')
A('s_and_b32 s50, s3, 3')
A(f's_mul_i32 s50, s50, {16*CH*8}')
A('s_mov_b32 s51, 0')
L('Q_FR')
A(f'buffer_load_ushort v16, v9, s[{S_WS}:{S_WS+3}], s49 offen')
A(f'buffer_load_ushort v17, v9, s[{S_WS}:{S_WS+3}], s49 offen offset:2')
A('s_waitcnt vmcnt(0)')
A('v_add_u32 v16, v16, v10')
L('Q_FI')
A('v_cmp_lt_u32 vcc, v16, v17')
A('s_and_b64 exec, exec, vcc')
A('s_cbranch_execz Q_FRN')
A('s_mov_b64 s[52:53], exec')
A('v_and_b32 v18, 3, v16')
A('v_lshl_add_u32 v19, v16, 2, v8')
A('v_or_b32 v20, 3, v16')
A('v_lshl_add_u32 v20, v20, 2, v8')
A('v_add_u32 v20, v20, v18')
A(f'buffer_load_dword v21, v19, s[{S_WS}:{S_WS+3}], 0 offen')
A(f'buffer_load_ubyte v22, v20, s[{S_WS}:{S_WS+3}], 0 offen')
A('s_waitcnt vmcnt(0)')
A('v_bfe_u32 v23, v21, 13, 13')
A('v_subrev_u32 v23, s48, v23')
A('s_movk_i32 s16, 3125')
A('v_cmp_gt_u32 vcc, s16, v23')
A('v_cmp_ne_u32 s[54:55], 3, v18')
A('s_and_b64 vcc, vcc, s[54:55]')
A('v_bfe_u32 v24, v21, 0, 13')
A('v_lshlrev_b32 v24, 3, v24')
A('s_and_b64 exec, exec, vcc')
A('s_cbranch_execz Q_FIN2')
A(f'buffer_load_dwordx2 v[26:27], v24, s[{S_M}:{S_M+3}], s50 offen')
A('v_lshlrev_b32 v22, 2, v22')
A('v_lshrrev_b32 v25, 16, v21')
A('v_and_b32 v25, 0xfc00, v25')
A('v_or_b32 v25, v25, v22')
A('v_cvt_f32_f16 v25, v25')
A('v_cvt_f64_f32 v[28:29], v25')
A('v_lshlrev_b32 v23, 3, v23')
A('v_add_u32 v38, 50000, v23')
A('s_waitcnt vmcnt(0)')
A('v_lshlrev_b32 v30, 16, v26'); A('v_and_b32 v32, s30, v26')
A('v_lshlrev_b32 v34, 16, v27'); A('v_and_b32 v36, s30, v27')
for j, r in enumerate((30, 32, 34, 36)):
    A(f'v_cvt_f64_f32 v[{r}:{r+1}], v{r}')
    A(f'v_fma_f64 v[{r}:{r+1}], v[{r}:{r+1}], v[28:29], s[44:45]')
    A(f'ds_add_u64 v{23 if j < 2 else 38}, v[{r}:{r+1}] offset:{(j & 1) * 25000}')
L('Q_FIN2')
A('s_mov_b64 exec, s[52:53]')
A('v_add_u32 v16, 2, v16')
A('s_branch Q_FI')
L('Q_FRN')
A('s_mov_b64 exec, -1')
A('s_add_u32 s49, s49, 2')
A(f's_add_u32 s50, s50, {CH*8}')
A('s_add_u32 s51, s51, 1')
A('s_cmp_lt_u32 s51, 16')
A('s_cbranch_scc1 Q_FR')
A('s_waitcnt lgkmcnt(0)')
A('s_barrier')
A('s_and_b32 s16, s3, 3'); A(f's_mul_i32 s16, s16, {E*8}')
A('s_lshr_b32 s17, s3, 2'); A(f's_mul_i32 s17, s17, {CH*8}')
A('s_add_u32 s16, s16, s17'); A(f's_add_u32 s16, s16, {PART_BASE:#x}')
A('s_lshl_b32 s17, s48, 3'); A('s_add_u32 s16, s16, s17')
A('s_mov_b32 s52, 0'); A('s_mov_b32 s53, 0x41f00000')
A('v_mov_b32 v16, v3')
L('Q_FC')
A('s_movk_i32 s17, 25000')
A('v_cmp_gt_u32 vcc, s17, v16')
A('s_and_b64 exec, exec, vcc')
A('s_cbranch_execz Q_FCD')
A('v_add_u32 v17, 50000, v16')
for j in range(4):
    A(f'ds_read_b64 v[{18+2*j}:{19+2*j}], v{16 if j < 2 else 17} offset:{(j & 1) * 25000}')
A('s_waitcnt lgkmcnt(0)')
for j in range(4):
    lo, hi = 18 + 2*j, 19 + 2*j
    A(f'v_bfe_i32 v{hi}, v{hi}, 0, 19')
    A(f'v_cvt_f64_u32 v[26:27], v{lo}')
    A(f'v_cvt_f64_i32 v[28:29], v{hi}')
    A('v_fma_f64 v[26:27], v[28:29], s[52:53], v[26:27]')
    A('v_ldexp_f64 v[26:27], v[26:27], s47')
    A(f'v_cvt_f32_f64 v{30+j}, v[26:27]')
A('v_cvt_pk_f16_f32 v34, v30, v31')
A('v_cvt_pk_f16_f32 v35, v32, v33')
A(f'buffer_store_dwordx2 v[34:35], v16, s[{S_WS}:{S_WS+3}], s16 offen')
A('v_add_u32 v16, 8192, v16')
A('s_branch Q_FC')
L('Q_FCD')
A('s_mov_b64 exec, -1')
A('s_add_u32 s48, s48, 3125')
A('s_cmp_lt_u32 s48, 6250')
A('s_cbranch_scc1 Q_FH')
L('Q_FIN')
stamp2()
if OPT['stamp2'] >= 0:
    A('s_waitcnt vmcnt(0)')
    stamp2()
    A('v_readfirstlane_b32 s54, v0')
    A('s_nop 3')
    A(f's_cmp_lg_u32 s2, {OPT["stamp2"]}')
    A('s_cbranch_scc1 Q_END')
    A(f's_cmp_lg_u32 s54, {64*OPT.get("swave", 0)}')
    A('s_cbranch_scc1 Q_END')
    A('s_load_dwordx2 s[4:5], s[0:1], 96')
    A('s_waitcnt lgkmcnt(0)')
    srd(72, 4, 256)
    A('v_readlane_b32 s54, v127, 2')
    A('v_and_b32 v4, 63, v0')
    A('v_lshlrev_b32 v4, 2, v4')
    A('v_subrev_u32 v127, s54, v127')
    A('buffer_store_dword v127, v4, s[72:75], 0 offen')
abs_end(127, 64, 1, 16)
L('Q_END')
A('s_endpgm')

khead('fin_kernel')
A(f's_cmp_ge_u32 s2, {G3}')
A('s_cbranch_scc1 F_END')
abs_start(83)
A('s_load_dwordx2 s[4:5], s[0:1], 0')
A('s_load_dwordx2 s[6:7], s[0:1], 104')
A('s_load_dwordx2 s[8:9], s[0:1], 24')
A('s_load_dwordx2 s[10:11], s[0:1], 88')
A('s_load_dwordx2 s[96:97], s[0:1], 40')
A('s_load_dwordx4 s[32:35], s[0:1], 56')
A('s_load_dwordx4 s[28:31], s[0:1], 72')
S_M, S_WS, S_DIST, S_O = 12, 16, 20, 24
A('s_lshl_b32 s3, s2, 9')
A('s_waitcnt lgkmcnt(0)')
A('s_load_dwordx4 s[40:43], s[96:97], 0')
A('s_load_dwordx16 s[44:59], s[32:33], 0')
A('s_load_dwordx16 s[60:75], s[34:35], 0')
A('s_load_dwordx8 s[76:83], s[28:29], 0')
A('s_load_dwordx8 s[84:91], s[30:31], 0')
srd(S_M, 4, E * 8); srd(S_WS, 6, WS_BYTES); srd(S_DIST, 8, E * 2); srd(S_O, 10, E * 8)
A('s_mov_b32 s38, 0xffff0000')
VB = 2
def R(i, n): return VB + 40 * i + n
for i in range(2):
    e, t = R(i, 1), R(i, 2)
    A(f'v_add_u32 v{e}, s3, v0')
    if i: A(f'v_add_u32 v{e}, 256, v{e}')
    A(f'v_lshlrev_b32 v{t}, 1, v{e}')
    A(f'buffer_load_ushort v{R(i,3)}, v{t}, s[{S_DIST}:{S_DIST+3}], 0 offen')
for i in range(2):
    e, t = R(i, 1), R(i, 2)
    A(f'v_min_u32 v{t}, {E-1}, v{e}')
    A(f'v_lshlrev_b32 v{R(i,0)}, 3, v{t}')
    A(f'v_mul_hi_u32_u24 v{t}, {MAGIC_DIV:#x}, v{t}')
    A(f'v_lshlrev_b32 v{t}, 4, v{t}')
    A(f's_mov_b32 s39, {SCL_BASE:#x}')
    A(f'buffer_load_dwordx4 v[{R(i,6)}:{R(i,9)}], v{t}, s[{S_WS}:{S_WS+3}], s39 offen')
    for p in range(4):
        A(f's_mov_b32 s39, {PART_BASE + p*E*8:#x}')
        A(f'buffer_load_dwordx2 v[{R(i,32+2*p)}:{R(i,33+2*p)}], v{R(i,0)}, s[{S_WS}:{S_WS+3}], s39 offen {OPT["ld_part"]}')
    A(f'v_lshlrev_b32 v{e}, 3, v{e}')
    A(f'buffer_load_dwordx2 v[{R(i,4)}:{R(i,5)}], v{e}, s[{S_M}:{S_M+3}], 0 offen')
def sw(base, idx, dst):
    s = base + idx // 2
    if idx & 1: A(f's_and_b32 s{dst}, s{s}, 0xffff0000')
    else: A(f's_lshl_b32 s{dst}, s{s}, 16')
def rnd2(a, b, t):
    A(f'v_cvt_pk_bf16_f32 v{t}, v{a}, v{b}')
    A(f'v_lshlrev_b32 v{a}, 16, v{t}')
    A(f'v_and_b32 v{b}, s38, v{t}')
A('s_waitcnt vmcnt(12) lgkmcnt(0)')
A(f's_mov_b32 s94, {f32bits(-10.0):#x}')
A(f's_mov_b32 s95, {f32bits(math.log2(math.e)):#x}')
for i in range(2): A(f'v_lshlrev_b32 v{R(i,3)}, 16, v{R(i,3)}')
for r in range(0, 8, 2):
    sw(40, r, 92); sw(40, r + 1, 93)
    for i in range(2):
        a, b, t = R(i, 14 + r), R(i, 15 + r), R(i, 2)
        A(f'v_subrev_f32 v{a}, s92, v{R(i,3)}')
        A(f'v_subrev_f32 v{b}, s93, v{R(i,3)}')
        rnd2(a, b, t)
        A(f'v_mul_f32 v{a}, v{a}, v{a}')
        A(f'v_mul_f32 v{b}, v{b}, v{b}')
        rnd2(a, b, t)
        A(f'v_mul_f32 v{a}, s94, v{a}')
        A(f'v_mul_f32 v{b}, s94, v{b}')
        rnd2(a, b, t)
        A(f'v_mul_f32 v{a}, s95, v{a}')
        A(f'v_mul_f32 v{b}, s95, v{b}')
        A(f'v_exp_f32 v{a}, v{a}')
        A(f'v_exp_f32 v{b}, v{b}')
        A('s_nop 0')
        rnd2(a, b, t)
for base, dst in ((60, 22), (44, 26)):
    for d in range(4):
        for r in range(8):
            sw(base, r*4 + d, 92)
            for i in range(2):
                if r == 0: A(f'v_mul_f32 v{R(i,dst+d)}, s92, v{R(i,14+r)}')
                else: A(f'v_fmac_f32 v{R(i,dst+d)}, s92, v{R(i,14+r)}')
A('s_waitcnt vmcnt(0)')
for i in range(2):
    for d in range(4):
        for p in range(4):
            c = '0' if p == 0 else f'v{R(i,14+d)}'
            A(f'v_fma_mix_f32 v{R(i,14+d)}, v{R(i,32+2*p+d//2)}, v{R(i,6+p)}, {c} op_sel:[{d&1},0,0] op_sel_hi:[1,0,0]')
for d in range(4):
    for k in range(4):
        sw(76, k*4 + d, 92)
        for i in range(2):
            if k == 0: A(f'v_mul_f32 v{R(i,10+d)}, s92, v{R(i,14+k)}')
            else: A(f'v_fmac_f32 v{R(i,10+d)}, s92, v{R(i,14+k)}')
for i in range(2):
    for d in range(4):
        A(f'v_mul_f32 v{R(i,10+d)}, v{R(i,10+d)}, v{R(i,22+d)}')
    rnd2(R(i,10), R(i,11), R(i,2)); rnd2(R(i,12), R(i,13), R(i,2))
    rnd2(R(i,26), R(i,27), R(i,2)); rnd2(R(i,28), R(i,29), R(i,2))
for d in range(4):
    for k in range(4):
        sw(84, k*4 + d, 92)
        for i in range(2):
            if k == 0: A(f'v_mul_f32 v{R(i,22+d)}, s92, v{R(i,10+k)}')
            else: A(f'v_fmac_f32 v{R(i,22+d)}, s92, v{R(i,10+k)}')
for i in range(2):
    rnd2(R(i,22), R(i,23), R(i,2)); rnd2(R(i,24), R(i,25), R(i,2))
    for d in range(4):
        A(f'v_mul_f32 v{R(i,22+d)}, v{R(i,22+d)}, v{R(i,26+d)}')
    rnd2(R(i,22), R(i,23), R(i,2)); rnd2(R(i,24), R(i,25), R(i,2))
    A(f'v_lshlrev_b32 v{R(i,26)}, 16, v{R(i,4)}')
    A(f'v_and_b32 v{R(i,27)}, s38, v{R(i,4)}')
    A(f'v_lshlrev_b32 v{R(i,28)}, 16, v{R(i,5)}')
    A(f'v_and_b32 v{R(i,29)}, s38, v{R(i,5)}')
    for d in range(4):
        A(f'v_add_f32 v{R(i,22+d)}, v{R(i,22+d)}, v{R(i,26+d)}')
    A(f'v_cvt_pk_bf16_f32 v{R(i,30)}, v{R(i,22)}, v{R(i,23)}')
    A(f'v_cvt_pk_bf16_f32 v{R(i,31)}, v{R(i,24)}, v{R(i,25)}')
    A(f'buffer_store_dwordx2 v[{R(i,30)}:{R(i,31)}], v{R(i,1)}, s[{S_O}:{S_O+3}], 0 offen')
abs_end(83, 64, 2, 4)
L('F_END')
A('s_endpgm')

out.append('.section .rodata,"a"')
for name, vg in (('part_kernel', 128), ('acc_kernel', 128), ('fin_kernel', 84)):
    out.append('.p2align 6')
    out.append(f'.amdhsa_kernel {name}')
    out.append(f'  .amdhsa_next_free_vgpr {vg}')
    out.append('  .amdhsa_next_free_sgpr 102')
    out.append(f'  .amdhsa_accum_offset {vg}')
    out.append('  .amdhsa_group_segment_fixed_size 0')
    out.append('  .amdhsa_kernarg_size 112')
    out.append('  .amdhsa_user_sgpr_count 2')
    out.append('  .amdhsa_user_sgpr_kernarg_segment_ptr 1')
    out.append('  .amdhsa_system_sgpr_workgroup_id_x 1')
    out.append('  .amdhsa_float_denorm_mode_32 3')
    out.append('.end_amdhsa_kernel')
open(sys.argv[1], 'w').write('\n'.join(out) + '\n')
```

```python
import struct, sys, math

E = 400000
T = 12800000
CH = 6250
S = 25000
NTILE = 512
NBLK = (S + 2) // 3
RS = 133376
OFS = 8208
OFF_BASE = 0x4400000
MAX_BASE = 0x4C00000
SCL_BASE = 0x4C01000
PART_BASE = 0x5000000
WS_BYTES = 268435456
MAGIC_DIV = (2**32 + CH - 1) // CH
MINI = S - 6 * 4096
assert NTILE * RS <= OFF_BASE and OFF_BASE + NTILE * OFS <= MAX_BASE

OPT = dict(ld_in='nt', st_ws='sc0 sc1', ld_ent='', ld_ch='', st_part='sc0 sc1', ld_part='', NB=2, skip_s=0, skip_g=0, skip_fill=0, skip_e=0,
           stamp=-1, stamp2=-1, prio=1, ilv='2:0,3:1,4:2,5:3', pre=1, npb=1, bps=1, vpos='123456', skip_ch=0, skip_pf=0, pmap=0, cpos=0, epos=1, unpair=0, k2prio=0, pa=2, pb=2, struct=0, forcefb=0, abst=0, wsoff=0, cpf=0)
for a in sys.argv[2:]:
    k, v = a.split('=')
    OPT[k] = int(v) if (v.lstrip('-').isdigit() and k != 'vpos') else v.replace('_', ' ')

def f32bits(x): return struct.unpack('<I', struct.pack('<f', x))[0]
out = []
def A(s): out.append('    ' + s)
def L(s): out.append(s + ':')
_lab = [0]
def newlab(p='L'):
    _lab[0] += 1
    return f'{p}_{_lab[0]}'
def srd(d, b, nbytes):
    if nbytes == WS_BYTES and OPT['wsoff']:
        off = OPT['wsoff'] << 20
        A(f's_add_u32 s{d}, s{b}, {off:#x}')
        A(f's_addc_u32 s{d+1}, s{b+1}, 0')
        A(f's_and_b32 s{d+1}, s{d+1}, 0xffff')
        A(f's_mov_b32 s{d+2}, {nbytes - off:#x}')
        A(f's_mov_b32 s{d+3}, 0x00020000')
        return
    A(f's_mov_b32 s{d}, s{b}')
    A(f's_and_b32 s{d+1}, s{b+1}, 0xffff')
    A(f's_mov_b32 s{d+2}, {nbytes:#x}')
    A(f's_mov_b32 s{d+3}, 0x00020000')
def dpp_scan(op, v):
    for sh in (1, 2, 4, 8):
        A('s_nop 1')
        A(f'{op}_dpp v{v}, v{v}, v{v} row_shr:{sh} row_mask:0xf bank_mask:0xf bound_ctrl:0')
    A('s_nop 1')
    A(f'{op}_dpp v{v}, v{v}, v{v} row_bcast:15 row_mask:0xa bank_mask:0xf')
    A('s_nop 1')
    A(f'{op}_dpp v{v}, v{v}, v{v} row_bcast:31 row_mask:0xc bank_mask:0xf')
def khead(name):
    out.append(f'.globl {name}')
    out.append('.p2align 8')
    out.append(f'.type {name},@function')
    L(name)
SD = 'dst_sel:DWORD dst_unused:UNUSED_PAD'
def abs_start(v):
    if not OPT['abst']: return
    A('s_memrealtime s[4:5]')
    A('s_waitcnt lgkmcnt(0)')
    A(f'v_mov_b32 v{v}, s4')
def abs_end(v, sr, kid, wpb):
    if not OPT['abst']: return
    A('s_mov_b64 exec, -1')
    A('s_waitcnt vmcnt(0)')
    A('s_load_dwordx2 s[4:5], s[0:1], 104')
    A('s_memrealtime s[6:7]')
    A('s_waitcnt lgkmcnt(0)')
    srd(sr, 4, WS_BYTES)
    A('v_lshrrev_b32 v1, 6, v0')
    A(f's_mul_i32 s7, s2, {wpb}')
    A('v_add_u32 v1, s7, v1')
    A('v_lshlrev_b32 v1, 3, v1')
    A(f'v_mov_b32 v2, v{v}')
    A('v_mov_b32 v3, s6')
    A(f's_mov_b32 s7, {0xF000000 + kid*65536:#x}')
    A('s_mov_b64 exec, 1')
    A(f'buffer_store_dwordx2 v[2:3], v1, s[{sr}:{sr+3}], s7 offen')

stampn = [0]
def stamp(key):
    if OPT[key] < 0: return
    n = stampn[0]; stampn[0] += 1
    A(OPT.get('clk','s_memtime').replace(' ','_') + ' s[98:99]')
    A('s_waitcnt lgkmcnt(0)')
    A(f's_mov_b32 s{76+n}, s98')
def stamp_flush(key, swave, vz, wave=0):
    if OPT[key] < 0: return
    lab = newlab('STF')
    A(f's_cmp_lg_u32 s2, {OPT[key]}')
    A(f's_cbranch_scc1 {lab}')
    A(f's_cmp_lg_u32 s{swave}, {wave}')
    A(f's_cbranch_scc1 {lab}')
    A('s_load_dwordx2 s[4:5], s[0:1], 96')
    A('s_waitcnt lgkmcnt(0)')
    srd(72, 4, 256)
    A('s_mov_b64 exec, 1')
    A(f'v_mov_b32 v{vz}, 0')
    for n in range(stampn[0]):
        A(f's_sub_u32 s98, s{76+n}, s76')
        A(f'v_mov_b32 v{vz+1}, s98')
        A(f'buffer_store_dword v{vz+1}, v{vz}, s[72:75], 0 offen offset:{4*n}')
        A('s_nop 1')
    L(lab)

L_H, L_SC, L_ST = 0, 16384, 16640
L_X = L_ST
L_W = L_X + NBLK * 4 + 8
LDS1 = L_W + NBLK * 12
assert L_W < 65536 and L_W % 16 == 0
L_ARB, L_CH, L_SC2 = 50000, 100000, 150000
LDS2 = 150000 + 64
G3 = (E + 511) // 512

hdr = open('standalone__molecular_angular_gemnet__graph.s.ref').read().split('; Override launch')[0]
out.append(hdr.rstrip())
out.append(f'; @launch kernel=part_kernel grid=(256,1,1) block=(1024,1,1) lds={LDS1}')
out.append(f'; @launch kernel=acc_kernel grid=(256,1,1) block=(1024,1,1) lds={LDS2}')
out.append(f'; @launch kernel=fin_kernel grid=({G3},1,1) block=(256,1,1) lds=0')
out.append('.amdgcn_target "amdgcn-amd-amdhsa--gfx950"')
out.append('.text')

khead('part_kernel')
A('s_cmp_ge_u32 s2, 256')
A('s_cbranch_scc1 P_END')
abs_start(87)
A('s_load_dwordx4 s[4:7], s[0:1], 0')
A('s_load_dwordx2 s[8:9], s[0:1], 16')
A('s_load_dwordx2 s[10:11], s[0:1], 32')
A('s_load_dwordx2 s[12:13], s[0:1], 48')
A('s_load_dwordx2 s[14:15], s[0:1], 104')
S_IN, S_OUT, S_ANG, S_WS, S_M = 16, 20, 24, 28, 32
if OPT['prio']: A('s_setprio 3')
if OPT['cpf'] >= 2:
    A('s_getpc_b64 s[58:59]')
    A('v_lshlrev_b32 v48, 7, v0')
    A('v_cmp_gt_u32 vcc, 88, v0')
    A('s_and_saveexec_b64 s[56:57], vcc')
    A('s_cbranch_execz P_NOSPF')
    A('global_load_dword v87, v48, s[58:59]')
    L('P_NOSPF')
    A('s_mov_b64 exec, s[56:57]')
A('v_lshlrev_b32 v1, 4, v0')
A('v_lshlrev_b32 v2, 3, v0')
A('v_mov_b32 v3, 1')
A('v_mov_b32 v4, 0x10000')
A('v_mov_b32 v5, 0')
A('v_lshlrev_b32 v6, 2, v0')
A('v_lshlrev_b32 v7, 1, v0')
TT = 8
for r in range(4): A(f'v_mov_b32 v{TT+4+r}, 0')
A('v_readfirstlane_b32 s50, v0')
A(f'ds_write_b128 v1, v[{TT+4}:{TT+7}]')
A(f'ds_write_b32 v6, v5 offset:{L_SC}')
A(f's_movk_i32 s42, {MINI}')
A('v_cmp_gt_u32 s[40:41], s42, v0')
A('s_waitcnt lgkmcnt(0)')
A('s_load_dword s36, s[12:13], 0')
srd(S_IN, 6, T * 4); srd(S_OUT, 8, T * 4); srd(S_ANG, 10, T * 2); srd(S_WS, 14, WS_BYTES); srd(S_M, 4, E * 8)
A('s_lshr_b32 s50, s50, 6')
A(f's_mul_i32 s37, s2, {2*S*4}')
A(f's_mul_i32 s38, s2, {2*S*2}')
UA = 24
unitA = [(UA + 10*k, UA + 10*k + 4, UA + 10*k + 8) for k in range(6)] + [(84, 85, 86)]
unitB = [(88 + 10*k, 88 + 10*k + 4, 88 + 10*k + 8) for k in range(4)] + [unitA[0], unitA[1], (44, 45, 46)]
vm = []
ldf = OPT['ld_in']
def load_unit(tag, k):
    vi, vo, va = (unitA if tag == 'A' else unitB)[k]
    tile = 0 if tag == 'A' else 1
    A(f's_add_u32 s43, s37, {tile*S*4 + k*16384}')
    A(f's_add_u32 s44, s38, {tile*S*2 + k*8192}')
    if k < 6:
        A(f'buffer_load_dwordx4 v[{vo}:{vo+3}], v1, s[{S_OUT}:{S_OUT+3}], s43 offen {ldf}')
        A(f'buffer_load_dwordx4 v[{vi}:{vi+3}], v1, s[{S_IN}:{S_IN+3}], s43 offen {ldf}')
        A(f'buffer_load_dwordx2 v[{va}:{va+1}], v2, s[{S_ANG}:{S_ANG+3}], s44 offen {ldf}')
    else:
        A('s_or_b64 exec, s[40:41], 1')
        A(f'buffer_load_dword v{vo}, v6, s[{S_OUT}:{S_OUT+3}], s43 offen {ldf}')
        A(f'buffer_load_dword v{vi}, v6, s[{S_IN}:{S_IN+3}], s43 offen {ldf}')
        A(f'buffer_load_ushort v{va}, v7, s[{S_ANG}:{S_ANG+3}], s44 offen {ldf}')
        A('s_mov_b64 exec, -1')
    vm.extend([(tag, k)] * 3)
def vwait(tag):
    idx = max(i for i, t in enumerate(vm) if t == tag)
    A(f's_waitcnt vmcnt({min(len(vm)-1-idx, 63)})')
stamp('stamp')
for k in range(OPT['pre']): load_unit('A', k)
A('s_barrier')
A(f's_mul_i32 s39, s2, {782*16}')
A(f'buffer_load_dwordx4 v[{TT}:{TT+3}], v1, s[{S_M}:{S_M+3}], s39 offen'); vm.append('M')
for k in range(OPT['pre'], 7): load_unit('A', k)
if OPT['prio']: A('s_setprio 0')
A(f's_mov_b32 s46, {f32bits(1/(2*math.pi)):#x}')
A(f's_mov_b32 s47, {f32bits(1/(2*math.pi)):#x}')
A('s_mov_b32 s48, 0xfc000000')
A('s_mov_b32 s49, 0xffff0000')
A(f's_mov_b32 s51, {(-CH) & 0xffffffff:#x}')
A('s_mov_b32 s52, 0x00020002')
A('s_mov_b32 s53, 0x55555556')
A('s_waitcnt lgkmcnt(0)')
A('s_lshl_b32 s36, s36, 16')

PT = TT + 11
def process(tag, k):
    vi0, vo0, va0 = (unitA if tag == 'A' else unitB)[k]
    inc = 3 if tag == 'A' else 4
    n = 4 if k < 6 else 1
    vwait((tag, k))
    skip = None
    if k == 6:
        skip = newlab('P_MS')
        A('s_mov_b64 exec, s[40:41]')
        A(f's_cbranch_execz {skip}')
    tj, ti, t1 = PT, PT + 1, PT + 2
    for j in range(n):
        vi, vo = vi0 + j, vo0 + j
        A(f'v_mul_hi_u32_u24 v{tj}, {MAGIC_DIV:#x}, v{vi}')
        A(f'v_mul_hi_u32_u24 v{ti}, {MAGIC_DIV:#x}, v{vo}')
        A(f'v_lshl_add_u32 v{vi}, v{vo}, 13, v{vi}')
        A(f'v_lshl_add_u32 v{vo}, v{ti}, 6, v{tj}')
        A(f'v_lshl_add_u32 v{t1}, v{ti}, 13, v{tj}')
        A(f'v_lshlrev_b32 v{vo}, 2, v{vo}')
        A(f'v_mad_i32_i24 v{vi}, v{t1}, s51, v{vi}')
        A(f'ds_add_u32 v{vo}, v{inc} offset:{L_H}')
    a0, a1 = PT + 3, PT + 4
    assert a0 % 2 == 0
    npair = (n + 1) // 2
    nf = newlab('P_NF')
    A('s_cmp_eq_u32 s36, 0x3f800000')
    A(f's_cbranch_scc1 {nf}')
    for p in range(npair):
        va = va0 + p
        A(f'v_lshlrev_b32 v{a0}, 16, v{va}')
        A(f'v_and_b32 v{a1}, s49, v{va}')
        A(f'v_mul_f32 v{a0}, s36, v{a0}')
        A(f'v_mul_f32 v{a1}, s36, v{a1}')
        A(f'v_cvt_pk_bf16_f32 v{va}, v{a0}, v{a1}')
    L(nf)
    for p in range(npair):
        va = va0 + p
        A(f'v_lshlrev_b32 v{a0}, 16, v{va}')
        A(f'v_and_b32 v{a1}, s49, v{va}')
        A(f'v_pk_mul_f32 v[{a0}:{a1}], v[{a0}:{a1}], s[46:47]')
        A(f'v_fract_f32 v{a0}, v{a0}')
        A(f'v_fract_f32 v{a1}, v{a1}')
        A(f'v_cos_f32 v{a0}, v{a0}')
        A(f'v_cos_f32 v{a1}, v{a1}')
        A('s_nop 0')
        A(f'v_cvt_pk_f16_f32 v{va}, v{a0}, v{a1}')
        A(f'v_pk_add_u16 v{va}, v{va}, s52')
        e0, e1 = 2*p, 2*p + 1
        A(f'v_lshlrev_b32 v{a0}, 16, v{va}')
        if e1 < n: A(f'v_and_or_b32 v{vi0+e1}, v{va}, s48, v{vi0+e1}')
        A(f'v_and_or_b32 v{vi0+e0}, v{a0}, s48, v{vi0+e0}')
        A(f'v_lshrrev_b32 v{va}, 2, v{va}')
    if k == 6:
        L(skip)
        A('s_mov_b64 exec, -1')

def maxm():
    vwait('M')
    A('s_mov_b32 s42, 0x7fff7fff')
    for j in range(4): A(f'v_and_b32 v{TT+j}, s42, v{TT+j}')
    A(f'v_pk_max_u16 v{TT}, v{TT}, v{TT+2}')
    A(f'v_pk_max_u16 v{TT+1}, v{TT+1}, v{TT+3}')
    A(f'v_pk_max_u16 v{TT}, v{TT}, v{TT+1}')
    A(f'v_lshrrev_b32 v{TT+1}, 16, v{TT}')
    A(f'v_and_b32 v{TT}, 0xffff, v{TT}')
    A(f'v_max_u32 v{TT}, v{TT}, v{TT+1}')
    dpp_scan('v_max_u32', TT)
    A('s_nop 1')
    A(f'v_readlane_b32 s42, v{TT}, 63')
    A('s_nop 1')
    A(f'v_mov_b32 v{TT}, s42')
    A('s_mov_b64 exec, 1')
    A(f'ds_max_u32 v5, v{TT} offset:{L_SC+128}')
    A('s_mov_b64 exec, -1')

def scan(tile, scoff):
    h = TT
    A('s_waitcnt lgkmcnt(0)')
    A('s_barrier')
    A(f'ds_read_b128 v[{h}:{h+3}], v1 offset:{L_H}')
    A(f'v_and_b32 v{h+5}, 63, v0')
    A(f'v_cmp_lt_u32 vcc, s50, v{h+5}')
    A(f'v_lshlrev_b32 v{h+5}, 2, v{h+5}')
    A('s_and_b64 s[56:57], vcc, 0xffff')
    A('s_waitcnt lgkmcnt(0)')
    if tile == 1:
        for j in range(4): A(f'v_lshrrev_b32 v{h+j}, 16, v{h+j}')
    for j in range(1, 4): A(f'v_add_u32 v{h+j}, v{h+j-1}, v{h+j}')
    A(f'v_mov_b32 v{h+4}, v{h+3}')
    dpp_scan('v_add_u32', h + 4)
    A('s_nop 1')
    A(f'v_readlane_b32 s42, v{h+4}, 63')
    A('s_nop 1')
    A(f'v_mov_b32 v{h+6}, s42')
    A('s_mov_b64 exec, s[56:57]')
    A(f'ds_add_u32 v{h+5}, v{h+6} offset:{scoff}')
    A('s_mov_b64 exec, -1')
    A('s_lshl_b32 s42, s50, 2')
    A(f'v_mov_b32 v{h+5}, s42')
    A(f'v_sub_u32 v{h+4}, v{h+4}, v{h+3}')
    A('s_waitcnt lgkmcnt(0)')
    A('s_barrier')
    A(f'ds_read_b32 v{h+5}, v{h+5} offset:{scoff}')
    if tile == 0: A(f'ds_read_b32 v{h+6}, v5 offset:{L_SC+128}')
    A(f's_mul_i32 s42, s2, {2*OFS}')
    A(f's_add_u32 s42, s42, {OFF_BASE + tile*OFS:#x}')
    A('s_waitcnt lgkmcnt(0)')
    A(f'v_add_u32 v{h+4}, v{h+4}, v{h+5}')
    for j in (3, 2, 1): A(f'v_add_u32 v{h+j}, v{h+4}, v{h+j-1}')
    A(f'v_mov_b32 v{h}, v{h+4}')
    A(f'ds_write_b128 v1, v[{h}:{h+3}] offset:{L_H}')
    for j in range(4):
        A(f'v_mul_hi_u32 v{h+10+j}, v{h+j}, s53')
        A(f'v_add_u32 v{h+10+j}, v{h+10+j}, v{h+j}')
    A(f'v_lshl_or_b32 v{h+8}, v{h+11}, 16, v{h+10}')
    A(f'v_lshl_or_b32 v{h+9}, v{h+13}, 16, v{h+12}')
    A(f'buffer_store_dwordx2 v[{h+8}:{h+9}], v2, s[{S_WS}:{S_WS+3}], s42 offen')
    vm.append(('OFS', tile))
    done = newlab('P_SC')
    A('s_cmp_lg_u32 s50, 0')
    A(f's_cbranch_scc1 {done}')
    A('s_mov_b64 exec, 1')
    A(f'v_mov_b32 v{h+5}, {S + S//3}')
    A('s_add_u32 s42, s42, 8192')
    A(f'buffer_store_dword v{h+5}, v5, s[{S_WS}:{S_WS+3}], s42 offen')
    if tile == 0:
        A(f's_add_u32 s42, s2, {MAX_BASE:#x}')
        A(f'v_lshrrev_b32 v{h+6}, 7, v{h+6}')
        A(f'buffer_store_byte v{h+6}, v5, s[{S_WS}:{S_WS+3}], s42 offen')
    A('s_mov_b64 exec, -1')
    L(done)
    A('s_waitcnt lgkmcnt(0)')
    A('s_barrier')

def scatter(tag, after_wait, after_fin):
    units = unitA if tag == 'A' else unitB
    lg = []
    def issue(k):
        vi0, vo0, _ = units[k]
        n = 4 if k < 6 else 1
        if k == 6: A('s_mov_b64 exec, s[40:41]')
        for j in range(n):
            A(f'ds_add_rtn_u32 v{TT+4*(k&1)+j}, v{vo0+j}, v3 offset:{L_H}')
            lg.append(('R', k))
        if k == 6: A('s_mov_b64 exec, -1')
    def fin(k):
        vi0, vo0, va0 = units[k]
        n = 4 if k < 6 else 1
        if k == 6: A('s_mov_b64 exec, s[40:41]')
        for j in range(n):
            t = TT + 4*(k & 1) + j
            q, a = TT + 8, TT + 9 + (j & 1)
            if tag == 'A': A(f'v_and_b32 v{t}, 0xffff, v{t}')
            A(f'v_mul_hi_u32 v{q}, v{t}, s53')
            A(f'v_lshlrev_b32 v{a}, 2, v{t}')
            A(f'v_add_u32 v{t}, v{q}, v{t}')
            A(f'ds_write_b32 v{a}, v{vi0+j} offset:{L_W}')
            A(f'ds_write_b8{"_d16_hi" if j & 1 else ""} v{t}, v{va0+j//2} offset:{L_X}')
            lg.extend([('W', k)] * 2)
        if k == 6: A('s_mov_b64 exec, -1')
    issue(0)
    for k in range(7):
        if k + 1 < 7: issue(k + 1)
        idx = max(i for i, t in enumerate(lg) if t == ('R', k) or t == ('W', k - 1))
        ny = sum(1 for t in lg[idx+1:] if t[1] != 6)
        A(f's_waitcnt lgkmcnt({min(ny, 15)})')
        if k in after_wait: after_wait[k]()
        fin(k)
        if k in after_fin:
            after_fin[k]()
            lg.extend([('H', k)] * 4)
    A('s_waitcnt lgkmcnt(0)')
    A('s_barrier')

RC = (NBLK + 1023) // 1024
lastc = NBLK - (RC - 1) * 1024
def copyout(tile, regs, ar):
    A(f's_movk_i32 s42, {lastc}')
    A('v_cmp_gt_u32 s[56:57], s42, v0')
    A(f'v_mul_u32_u24 v{ar[0]}, 12, v0')
    A(f'v_add_u32 v{ar[0]}, {L_W}, v{ar[0]}')
    A(f's_mul_i32 s42, s2, {2*RS}')
    if tile: A(f's_add_u32 s42, s42, {RS}')
    def rd(j):
        r = regs[j]
        if j == RC - 1: A('s_mov_b64 exec, s[56:57]')
        A(f'ds_read2_b32 v[{r}:{r+1}], v{ar[0]} offset0:0 offset1:1')
        A(f'ds_read_b32 v{r+2}, v{ar[0]} offset:8')
        A(f'ds_read_b32 v{r+3}, v6 offset:{L_X + j*4096}')
        if j == RC - 1: A('s_mov_b64 exec, -1')
        else: A(f'v_add_u32 v{ar[0]}, {12*1024}, v{ar[0]}')
    LA = 4
    for j in range(LA): rd(j)
    for j in range(RC):
        if j + LA < RC: rd(j + LA)
        A(f's_waitcnt lgkmcnt({3*max(0, min(LA, RC-2-j))})')
        if j == RC - 1: A('s_mov_b64 exec, s[56:57]')
        A(f'buffer_store_dwordx4 v[{regs[j]}:{regs[j]+3}], v1, s[{S_WS}:{S_WS+3}], s42 offen {OPT["st_ws"]}')
        if j < RC - 1: vm.append(('ST', tile, j))
        if j < RC - 1: A('s_add_u32 s42, s42, 16384')
    A('s_mov_b64 exec, -1')

stamp('stamp')
process('A', 0)
stamp('stamp')
maxm()
for k in range(1, 7): process('A', k)
stamp('stamp')
NPB = OPT['npb']
for k in range(NPB): load_unit('B', k)
scan(0, L_SC)
stamp('stamp')
ilv = dict((int(x.split(':')[0]), int(x.split(':')[1])) for x in OPT['ilv'].split(',')) if OPT['ilv'] else {}
pend = list(range(NPB, 7))
aw = {}
for k in range(7):
    take = []
    while pend and len(take) < OPT['bps'] and (pend[0] < 4 or k >= pend[0] - 3):
        take.append(pend.pop(0))
    if k == 6: take += pend; pend = []
    if take: aw[k] = (lambda tk=take: [load_unit('B', b) for b in tk])
scatter('A', aw, {k: (lambda b=b: process('B', b)) for k, b in ilv.items()})
stamp('stamp')
copyout(0, [48 + 4*j for j in range(RC)], [TT, TT + 1, TT + 2])
stamp('stamp')
for k in range(7):
    if k not in ilv.values(): process('B', k)
stamp('stamp')
scan(1, L_SC + 64)
if OPT['cpf']:
    A('s_cmp_lg_u32 s50, 15')
    A('s_cbranch_scc1 P_NOCPF')
    A('s_getpc_b64 s[58:59]')
    L('P_PC')
    A('s_add_u32 s58, s58, acc_kernel-P_PC')
    A('s_addc_u32 s59, s59, 0')
    A('v_and_b32 v48, 63, v0')
    A('v_lshlrev_b32 v48, 7, v48')
    for j in range(3):
        A(f'v_min_u32 v49, CODE_END-acc_kernel-4, v48')
        A(f'global_load_dword v87, v49, s[58:59]')
        A('v_add_u32 v48, 8192, v48')
    L('P_NOCPF')
stamp('stamp')
scatter('B', {}, {})
stamp('stamp')
copyout(1, [48 + 4*j for j in range(RC)], [TT, TT + 1, TT + 2])
stamp('stamp')
if OPT['stamp'] >= 0: A('s_waitcnt vmcnt(0)')
stamp('stamp')
stamp_flush('stamp', 50, TT, OPT.get('swave', 0))
abs_end(87, 64, 0, 16)
L('P_END')
A('s_endpgm')

st2n = [0]
def stamp2():
    if OPT['stamp2'] < 0: return
    n = st2n[0]; st2n[0] += 1
    A(OPT.get('clk','s_memtime').replace(' ','_') + ' s[4:5]')
    A('s_waitcnt lgkmcnt(0)')
    A(f'v_writelane_b32 v127, s4, {n+2}')
khead('acc_kernel')
A('s_cmp_ge_u32 s2, 256')
A('s_cbranch_scc1 Q_END')
abs_start(127)
A('s_load_dwordx2 s[4:5], s[0:1], 0')
A('s_load_dwordx2 s[6:7], s[0:1], 104')
S_M, S_WS = 8, 12
A('s_and_b32 s3, s2, 7')
A('s_lshl_b32 s3, s3, 5')
A('s_lshr_b32 s16, s2, 3')
A('s_add_u32 s3, s3, s16')
VTB = 5; VOF = 8
VEB = VOF + 18
def EB(slot, s): return VEB + (slot * 3 + s) * 4
VG = VEB + 48
def G(s, e): return VG + (s * 3 + e) * 2
VCH = VG + 18
VT = VCH + 16
VA = VT + 1
VSH, VFC = VT + 10, VT + 11
VOV = VT + 12
VRM = VOV + 2
assert VOV % 2 == 0 and VRM + 4 <= 127
def OF(s, k): return VOF + 9*s + k
def MK(slot, s, e):
    if s == 2 and e > 0: return 36 + 2 * e
    return 46 + slot * 14 + (s * 3 + e) * 2
A('v_and_b32 v1, 3, v0')
A('v_lshlrev_b32 v2, 4, v0')
A('v_lshrrev_b32 v3, 2, v0')
A('v_and_b32 v4, 1, v0')
A(f'v_bfe_u32 v{VT}, v0, 1, 1')
A(f'v_lshl_add_u32 v{VT}, v{VT}, 8, v3')
A(f'v_mul_u32_u24 v{VT}, {OFS}, v{VT}')
A(f'v_lshl_add_u32 v{VT+1}, v4, 4, v{VT}')
A(f'v_and_b32 v{VT+2}, 63, v0')
A(f'v_lshlrev_b32 v{VT+2}, 2, v{VT+2}')
if not OPT['abst']: A('v_mov_b32 v127, 0')
A('s_lshl_b32 s17, s3, 5')
A(f's_add_u32 s17, s17, {OFF_BASE:#x}')
A(f's_mov_b32 s19, {MAX_BASE:#x}')
A('s_and_b32 s20, s3, 3')
A(f's_mul_i32 s20, s20, {16*CH*8}')
A('v_cmp_gt_u32 s[22:23], 53, v0')
A('s_waitcnt lgkmcnt(0)')
srd(S_M, 4, E * 8); srd(S_WS, 6, WS_BYTES)
TO = VG
A(f'buffer_load_dwordx4 v[{TO}:{TO+3}], v{VT+1}, s[{S_WS}:{S_WS+3}], s17 offen')
A(f'buffer_load_ushort v{TO+4}, v{VT}, s[{S_WS}:{S_WS+3}], s17 offen offset:32')
A(f'buffer_load_dword v{VT+9}, v{VT+2}, s[{S_WS}:{S_WS+3}], s19 offen')
stamp2()
INLOOP = [0]
def ch1(j, live=False):
    sk = None
    if j == 3:
        A('s_and_b64 exec, s[22:23], s[18:19]' if live else 's_mov_b64 exec, s[22:23]')
        sk = newlab('Q_C')
        A(f's_cbranch_execz {sk}')
    else:
        A('s_mov_b64 exec, s[18:19]' if live else 's_mov_b64 exec, -1')
    A(f's_add_u32 s21, s20, {j*16384}')
    if not (OPT['skip_ch'] and INLOOP[0]): A(f'buffer_load_dwordx4 v[{VCH+4*j}:{VCH+4*j+3}], v2, s[{S_M}:{S_M+3}], s21 offen {OPT["ld_ch"]}')
    if j == 3: L(sk)
def chall(live=False):
    for j in (3, 0, 1, 2): ch1(j, live)
    A(f's_add_u32 s20, s20, {CH*8}')
def fill():
    if OPT['skip_fill']: return
    sk = newlab('Q_F')
    A('s_mov_b64 exec, s[22:23]')
    A(f's_cbranch_execz {sk}')
    A(f'ds_write_b128 v3, v[{VCH+12}:{VCH+15}] offset:{3*16384}')
    L(sk)
    A('s_mov_b64 exec, -1')
    for j in range(3):
        A(f'ds_write_b128 v3, v[{VCH+4*j}:{VCH+4*j+3}] offset:{j*16384}')
chall()
A(f's_mov_b32 s16, {RS}')
A(f'v_mul_lo_u32 v{VTB}, v3, s16')
A(f'v_add_u32 v{VTB+1}, {256*RS}, v{VTB}')
A('v_cmp_lt_u32 s[36:37], 1, v1')
A('v_lshl_add_u32 v4, v4, 2, 16')
A('v_lshlrev_b32 v1, 2, v1')
A(f'v_add_u32 v{VTB+2}, 16, v1')
A(f'v_add_u32 v3, {L_CH}, v2')
z = VEB + 44
for r in range(4): A(f'v_mov_b32 v{z+r}, 0')
for j in range(4): A(f'ds_write_b128 v2, v[{z}:{z+3}] offset:{j*16384}')
A(f'v_add_u32 v{VT+6}, 65536, v2')
for j in range(2): A(f'ds_write_b128 v{VT+6}, v[{z}:{z+3}] offset:{j*16384}')
A('s_movk_i32 s16, 106')
A('v_cmp_gt_u32 s[24:25], s16, v0')
A('s_mov_b64 exec, s[24:25]')
A(f'ds_write_b128 v{VT+6}, v[{z}:{z+3}] offset:{2*16384}')
A('s_mov_b64 exec, -1')
A(f'v_mov_b32 v126, {L_SC2}')
VONE = VSH
A('s_mov_b64 exec, 1')
A(f'ds_write_b128 v126, v[{z}:{z+3}]')
A('s_mov_b64 exec, -1')
A('s_mov_b32 s30, 0xffff0000')
A(f's_mov_b32 s31, {L_CH}')
A('s_mov_b32 s35, 0xfc000000')
A(f'v_mov_b32 v{VSH}, 18')
A(f'v_mov_b32 v{VFC}, 0xfffc')
A('s_waitcnt vmcnt(3)')
for s_ in range(2):
    for k in range(9):
        ln = 2*s_ + (1 if 4 <= k < 8 else 0)
        src = TO + (k % 4 if k < 8 else 4)
        A(f'v_mov_b32_dpp v{OF(s_,k)}, v{src} quad_perm:[{ln},{ln},{ln},{ln}] row_mask:0xf bank_mask:0xf')

def third_sel(r, t, rem, skip=None, ad=None):
    if ad is None: ad = t
    r0, h0, r1, h1 = r >> 1, r & 1, (r + 1) >> 1, (r + 1) & 1
    y0, y1, q0, q1, off = t, t + 1, t + 2, t + 3, t + 4
    for s_, y, q in ((0, y0, q0), (1, y1, q1)):
        A(f'v_and_b32_sdwa v{y}, v{OF(s_,r0)}, v{VFC} {SD} src0_sel:WORD_{h0} src1_sel:DWORD')
        A(f'v_sub_u32_sdwa v{q}, v{OF(s_,r1)}, v{y} {SD} src0_sel:WORD_{h1} src1_sel:DWORD')
    A(f'v_cmp_lt_i32 s[42:43], 16, v{q0}')
    A(f'v_cmp_lt_i32 s[44:45], 16, v{q1}')
    if skip:
        A('s_or_b64 vcc, s[42:43], s[44:45]')
        if skip[1]: A('s_and_b64 vcc, vcc, s[18:19]')
        A(f's_cbranch_scc0 {skip[0]}')
    A('s_orn2_b64 vcc, s[36:37], s[42:43]')
    A('s_and_b64 vcc, vcc, s[44:45]')
    A('s_and_b64 s[42:43], s[42:43], s[44:45]')
    A(f'v_cndmask_b32 v{off}, v{VTB+2}, v4, s[42:43]')
    A(f'v_cndmask_b32 v{y0}, v{y0}, v{y1}, vcc')
    A(f'v_cndmask_b32 v{q0}, v{q0}, v{q1}, vcc')
    A(f'v_cndmask_b32 v{y1}, v{VTB}, v{VTB+1}, vcc')
    A(f'v_add_u32 v{y0}, v{y0}, v{off}')
    A(f'v_sub_u32 v{rem}, v{q0}, v{off}')
    A(f'v_lshl_add_u32 v{ad}, v{y0}, 2, v{y1}')

def pf1c(s_, r, ad):
    slot = r % 4
    r0, h0, r1, h1 = r >> 1, r & 1, (r + 1) >> 1, (r + 1) & 1
    y, d, ln = VT, VT + 2, VT + 3
    a, b = OF(s_, r0), OF(s_, r1)
    m = [MK(slot, s_, k) for k in range(3)]
    A(f'v_and_b32_sdwa v{y}, v{a}, v{VFC} {SD} src0_sel:WORD_{h0} src1_sel:DWORD')
    A(f'v_sub_u32_sdwa v{ln}, v{b}, v{a} {SD} src0_sel:WORD_{h1} src1_sel:WORD_{h0}')
    A(f'v_add_u32 v{y}, v{y}, v1')
    A(f'v_sub_u32_sdwa v{d}, v{y}, v{a} {SD} src0_sel:DWORD src1_sel:WORD_{h0}')
    A(f'v_lshl_add_u32 v{ad}, v{y}, 2, v{VTB+s_}')
    A(f'v_cmp_lt_u32 s[{m[0]}:{m[0]+1}], v{d}, v{ln}')
    A(f'v_add_u32 v{d}, 1, v{d}')
    A(f'v_cmp_lt_u32 s[{m[1]}:{m[1]+1}], v{d}, v{ln}')
    A(f'v_add_u32 v{d}, 1, v{d}')
    A(f'v_cmp_lt_u32 s[{m[2]}:{m[2]+1}], v{d}, v{ln}')
def pf1i(s_, r, ad, live=False):
    slot = r % 4
    m = [MK(slot, s_, k) for k in range(3)]
    e = EB(slot, s_)
    A(f's_or_b64 vcc, s[{m[0]}:{m[0]+1}], s[{m[1]}:{m[1]+1}]')
    A(f's_or_b64 vcc, vcc, s[{m[2]}:{m[2]+1}]')
    if live: A('s_and_b64 vcc, vcc, s[18:19]')
    A('s_or_b64 exec, vcc, 1')
    if not (OPT['skip_pf'] and INLOOP[0]): A(f'buffer_load_dwordx4 v[{e}:{e+3}], v{ad}, s[{S_WS}:{S_WS+3}], 0 offen {OPT["ld_ent"]}')
def pf3c(r, ad, live=False):
    slot = r % 4
    m = MK(slot, 2, 0)
    sk = newlab('Q_T')
    A(f's_mov_b64 s[{m}:{m+1}], 0')
    third_sel(r, VT, VRM + slot, (sk, live), ad)
    A(f'v_cmp_lt_i32 s[{m}:{m+1}], 0, v{VRM+slot}')
    L(sk)
def pf3i(r, ad):
    slot = r % 4
    m = MK(slot, 2, 0); e = EB(slot, 2)
    sk = newlab('Q_T')
    A(f's_mov_b64 exec, s[{m}:{m+1}]')
    A(f's_cbranch_execz {sk}')
    A(f'buffer_load_dwordx4 v[{e}:{e+3}], v{ad}, s[{S_WS}:{S_WS+3}], 0 offen {OPT["ld_ent"]}')
    L(sk)
def pf1(s_, r, live=False):
    A('s_mov_b64 exec, -1'); pf1c(s_, r, VA); pf1i(s_, r, VA, live)
def pf3(r, live=False):
    A('s_mov_b64 exec, -1'); pf3c(r, VT, live); pf3i(r, VT)
def wait3(r, n, extra=''):
    m3 = MK(r % 4, 2, 0)
    w1 = newlab('Q_W'); w2 = newlab('Q_W')
    A(f's_cmp_eq_u64 s[{m3}:{m3+1}], 0')
    A(f's_cbranch_scc1 {w1}')
    A(f's_waitcnt vmcnt({n+1}){extra}')
    A(f's_branch {w2}')
    L(w1)
    A(f's_waitcnt vmcnt({n}){extra}')
    L(w2)

def gath1(w, g):
    A(f'v_bfe_u32 v{g}, v{w}, 0, 13')
    A(f'v_lshl_add_u32 v{g}, v{g}, 3, s31')
    if not OPT['skip_g']: A(f'ds_read_b64 v[{g}:{g+1}], v{g}')

def scat1(w, xr, e, g):
    x, ad = VT, VT + 1
    p0, p2 = VT + 2, VT + 4
    A(f'v_lshlrev_b32_sdwa v{x}, v{VSH}, v{xr} {SD} src0_sel:DWORD src1_sel:BYTE_{e}')
    A(f'v_lshlrev_b32 v{p2}, 16, v{g+1}')
    A(f'v_and_b32 v{p2+1}, s30, v{g+1}')
    A(f'v_and_or_b32 v{x}, v{w}, s35, v{x}')
    A(f'v_lshrrev_b32 v{ad}, 10, v{w}')
    A(f'v_lshlrev_b32 v{p0}, 16, v{g}')
    A(f'v_and_b32 v{p0+1}, s30, v{g}')
    for r in (p2, p2 + 1, p0, p0 + 1):
        A(f'v_fma_mix_f32 v{r}, v{r}, v{x}, s{26 if r == p0 else 28} op_sel:[0,1,0] op_sel_hi:[0,1,0]')
        if r == p2: A(f'v_and_b32 v{ad}, 0xfff8, v{ad}')
        if r == p2 + 1: A(f'ds_add_u64 v{ad}, v[{p2}:{p2+1}] offset:{L_ARB}')
    A(f'v_add_u32 v{p0}, s34, v{p0}')
    A(f'ds_add_u64 v{ad}, v[{p0}:{p0+1}]')

def Gset(r, s_):
    slot = r % 4
    for e in range(3):
        m = MK(slot, s_, e)
        A(f's_mov_b64 exec, s[{m}:{m+1}]')
        gath1(EB(slot, s_) + e, G(s_, e))
def Gthird(r):
    slot = r % 4
    done = newlab('Q_GI')
    m = MK(slot, 2, 0)
    A(f's_mov_b64 exec, s[{m}:{m+1}]')
    A(f's_cbranch_execz {done}')
    gath1(EB(slot, 2), G(2, 0))
    rem = VRM + slot
    A(f'v_cmp_lt_i32 s[38:39], 1, v{rem}')
    A(f'v_cmp_lt_i32 s[40:41], 2, v{rem}')
    A(f'v_cmp_lt_i32 s[42:43], 8, v{rem}')
    for e in (1, 2):
        A(f's_mov_b64 exec, s[{36+2*e}:{37+2*e}]')
        A(f's_cbranch_execz {done}')
        gath1(EB(slot, 2) + e, G(2, e))
    A('s_mov_b64 exec, s[42:43]')
    A(f's_cbranch_execz {done}')
    A('s_mov_b64 exec, -1')
    third_sel(r, VT, rem)
    ad, stp, w, xr = VT + 6, VT + 7, VT + 8, VT + 9
    A(f'v_mov_b32 v{ad}, v{VT}')
    A(f'v_cndmask_b32 v{stp}, 16, 8, s[42:43]')
    lp = newlab('Q_SL')
    L(lp)
    A(f'v_sub_u32 v{rem}, v{rem}, v{stp}')
    A(f'v_lshl_add_u32 v{ad}, v{stp}, 2, v{ad}')
    A(f'v_cmpx_lt_i32 vcc, 0, v{rem}')
    A(f's_cbranch_execz {done}')
    A('s_mov_b64 s[44:45], exec')
    nx = newlab('Q_SN')
    for e in range(3):
        A(f'buffer_load_dword v{w}, v{ad}, s[{S_WS}:{S_WS+3}], 0 offen offset:{4*e}')
        A(f'buffer_load_dword v{xr}, v{ad}, s[{S_WS}:{S_WS+3}], 0 offen offset:12')
        A('s_waitcnt vmcnt(0)')
        A(f'v_bfe_u32 v{VOV}, v{w}, 0, 13')
        A(f'v_lshl_add_u32 v{VOV}, v{VOV}, 3, s31')
        A(f'ds_read_b64 v[{VOV}:{VOV+1}], v{VOV}')
        A('s_waitcnt lgkmcnt(0)')
        scat1(w, xr, e, VOV)
        if e < 2:
            A(f'v_cmpx_lt_i32 vcc, {1+e}, v{rem}')
            A(f's_cbranch_execz {nx}')
    L(nx)
    A('s_mov_b64 exec, s[44:45]')
    A(f's_branch {lp}')
    L(done)
def Sset(r, s_, hooks={}):
    slot = r % 4
    done = newlab('Q_S')
    for e in range(3):
        if e in hooks: hooks[e]()
        m = MK(slot, s_, e)
        A(f's_mov_b64 exec, s[{m}:{m+1}]')
        if s_ == 2: A(f's_cbranch_execz {done}')
        b = EB(slot, s_)
        if not OPT['skip_s']: scat1(b + e, b + 3, e, G(s_, e))
    L(done)

pf1(0, 0); pf1(1, 0); pf3(0); pf1(0, 1)
A('s_mov_b64 exec, -1')
A(f'v_max_u32_sdwa v{VT+2}, v{VT+9}, v{VT+9} {SD} src0_sel:BYTE_0 src1_sel:BYTE_1')
A(f'v_max_u32_sdwa v{VT+3}, v{VT+9}, v{VT+9} {SD} src0_sel:BYTE_2 src1_sel:BYTE_3')
A(f'v_max_u32 v{VT+9}, v{VT+2}, v{VT+3}')
dpp_scan('v_max_u32', VT + 9)
A('s_nop 1')
A(f'v_readlane_b32 s29, v{VT+9}, 63')
for s_ in range(2):
    A(f'v_and_b32 v{VT+2}, 0xffff, v{OF(s_,0)}')
    A(f'v_lshrrev_b32 v{VT+3}, 2, v{VT+2}')
    A(f'v_sub_u32 v{VT+2}, v{VT+2}, v{VT+3}')
    A(f'v_lshrrev_b32 v{VT+3}, 2, v{OF(s_,8)}')
    A(f'v_add_u32 v{VT+2}, v{VT+2}, v{VT+3}')
    A(f'v_sub_u32 v{VT+4+s_}, v{VT+2}, v{OF(s_,8)}')
A(f'v_add_u32 v{VT+2}, v{VT+4}, v{VT+5}')
dpp_scan('v_add_u32', VT + 2)
A('s_nop 1')
A(f'v_readlane_b32 s32, v{VT+2}, 63')
A('s_min_u32 s27, s29, 249')
A('s_add_u32 s28, s27, 2')
A('s_lshl_b32 s28, s28, 23')
A('s_or_b32 s28, s28, 0x400000')
A('s_add_u32 s26, s27, 5')
A('s_lshl_b32 s26, s26, 23')
A('s_sub_u32 s34, 0x4000000, s26')
A('s_or_b32 s26, s26, 0x80000')
A('s_waitcnt vmcnt(3)')
fill()
chall()
A('s_mov_b32 s33, 0')
A('s_mov_b64 s[18:19], -1')
A('s_waitcnt vmcnt(4) lgkmcnt(0)')
stamp2()
A('s_barrier')
Gset(0, 0); Gset(0, 1); Gthird(0)
pf1(1, 1); pf1(1, 2); pf3(1)
wait3(1, 2, ' lgkmcnt(0)')
if OPT['skip_pf']:
    pf1(0, 2); pf1(0, 3); pf1(1, 3); A('s_waitcnt vmcnt(0)')
INLOOP[0] = 1
L('Q_LOOP')
for r in range(4):
    ps = r & 1
    if r == 1: stamp2()
    A('s_barrier')
    if r == 1: stamp2()
    lastr = newlab('Q_SK')
    if r == 3:
        A('s_cmp_eq_u32 s33, 3')
        A(f's_cbranch_scc1 Q_LAST')
    fill()
    st = OPT['struct']
    if st == 0:
        chall(r >= 2)
        Sset(r, 0)
        A('s_waitcnt vmcnt(3) lgkmcnt(0)')
        if r == 1: stamp2()
        A('s_barrier')
        if r == 1: stamp2()
        Gset(r + 1, 0)
        Sset(r, 1, {1: lambda: pf1(ps, r + 2, r + 2 >= 4), 2: lambda: pf1(ps, r + 3, r + 3 >= 4)})
        Gset(r + 1, 1)
        Sset(r, 2)
        Gthird(r + 1)
        pf3(r + 2, r + 2 >= 4)
    elif st == 1:
        chall(r >= 2)
        Sset(r, 0)
        Sset(r, 2)
        A('s_waitcnt vmcnt(3) lgkmcnt(0)')
        A('s_barrier')
        Gset(r + 1, 0)
        Gthird(r + 1)
        Sset(r, 1)
        Gset(r + 1, 1)
        pf1(ps, r + 2, r + 2 >= 4); pf1(ps, r + 3, r + 3 >= 4)
        pf3(r + 2, r + 2 >= 4)
    elif st == 2:
        chall(r >= 2)
        Sset(r, 0)
        Sset(r, 1)
        Sset(r, 2)
        A('s_waitcnt vmcnt(3) lgkmcnt(0)')
        A('s_barrier')
        Gset(r + 1, 0)
        Gset(r + 1, 1)
        Gthird(r + 1)
        pf1(ps, r + 2, r + 2 >= 4); pf1(ps, r + 3, r + 3 >= 4)
        pf3(r + 2, r + 2 >= 4)
    if r == 3:
        A('s_mov_b64 exec, -1')
        A('s_add_u32 s33, s33, 1')
        A('s_cmp_eq_u32 s33, 3')
        A('s_cselect_b64 s[18:19], 1, -1')
        for s_ in range(2):
            for k in range(0, 7): A(f'v_mov_b32 v{OF(s_,k)}, v{OF(s_,k+2)}')
    wait3(r + 2, 2, ' lgkmcnt(0)')
A('s_branch Q_LOOP')
L('Q_LAST')
Sset(3, 0)
Sset(3, 1)
Sset(3, 2)
A('s_mov_b64 exec, -1')
A('s_waitcnt lgkmcnt(0)')
stamp2()
A('s_barrier')
A('v_lshlrev_b32 v3, 3, v0')
RA = 8
for k in range(7):
    if k == 6: A('s_mov_b64 exec, s[24:25]')
    A(f'ds_read_b64 v[{RA+4*k}:{RA+4*k+1}], v3 offset:{k*8192}')
A('s_mov_b64 exec, -1')
A(f'v_add_u32 v4, {L_ARB}, v3')
for k in range(7):
    if k == 6: A('s_mov_b64 exec, s[24:25]')
    A(f'ds_read_b64 v[{RA+4*k+2}:{RA+4*k+3}], v4 offset:{k*8192}')
A('s_mov_b64 exec, -1')
A('s_and_b32 s16, s3, 3'); A(f's_mul_i32 s16, s16, {E*8}')
A('s_lshr_b32 s17, s3, 2'); A(f's_mul_i32 s17, s17, {CH*8}')
A('s_add_u32 s16, s16, s17'); A(f's_add_u32 s16, s16, {PART_BASE:#x}')
A('v_mov_b32 v5, 0')
A(f's_mov_b32 s36, {f32bits(2.0**-10):#x}')
A(f's_mov_b32 s37, {f32bits(2.0**-13):#x}')
A('s_mov_b32 s38, s37'); A('s_mov_b32 s39, s37')
A('s_sub_i32 s40, s27, 135')
A('v_mov_b32 v6, 1.0')
A('v_ldexp_f32 v6, v6, s40')
A('s_lshl_b32 s41, s3, 2')
A(f's_add_u32 s41, s41, {SCL_BASE:#x}')
A('v_cmp_eq_u32 vcc, 0, v0')
A('s_mov_b64 exec, vcc')
A(f'buffer_store_dword v6, v5, s[{S_WS}:{S_WS+3}], s41 offen')
A('s_mov_b64 exec, -1')
X = 40
for k in range(7):
    a0, a1, b0, b1 = RA + 4*k, RA + 4*k + 1, RA + 4*k + 2, RA + 4*k + 3
    c = X; P = X + 2; t = X + 4
    A(f's_waitcnt lgkmcnt({max(0,5-k)})')
    if k == 6: A('s_mov_b64 exec, s[24:25]')
    A(f'v_lshrrev_b32 v{c}, 26, v{a0}')
    A(f'v_and_b32 v{a0}, 0x3ffffff, v{a0}')
    A(f'v_mad_u64_u32 v[{P}:{P+1}], vcc, v{c}, s28, 0')
    A(f'v_lshlrev_b32 v{t}, 19, v{c}')
    A(f'v_add_u32 v5, v5, v{c}')
    A(f'v_sub_u32 v{a0}, v{a0}, v{t}')
    A(f'v_sub_u32 v{a1}, v{a1}, v{P}')
    A(f'v_add_u32 v{P+1}, v{P+1}, v{P}')
    A(f'v_sub_co_u32 v{b0}, vcc, v{b0}, v{P}')
    A(f'v_cvt_f32_i32 v{a0}, v{a0}')
    A(f'v_cvt_f32_i32 v{a1}, v{a1}')
    A(f'v_subb_co_u32 v{b1}, vcc, v{b1}, v{P+1}, vcc')
    A(f'v_ashrrev_i32 v{t}, 31, v{b0}')
    A(f'v_cvt_f32_i32 v{b0}, v{b0}')
    A(f'v_sub_u32 v{b1}, v{b1}, v{t}')
    A(f'v_pk_mul_f32 v[{a0}:{a1}], v[{a0}:{a1}], s[36:37]')
    A(f'v_cvt_f32_i32 v{b1}, v{b1}')
    A(f'v_cvt_pk_f16_f32 v{a0}, v{a0}, v{a1}')
    A(f'v_pk_mul_f32 v[{b0}:{b1}], v[{b0}:{b1}], s[38:39]')
    A(f'v_cvt_pk_f16_f32 v{a1}, v{b0}, v{b1}')
    A(f'buffer_store_dwordx2 v[{a0}:{a1}], v3, s[{S_WS}:{S_WS+3}], s16 offen {OPT["st_part"]}')
    A('s_add_u32 s16, s16, 8192')
A('s_mov_b64 exec, -1')
dpp_scan('v_add_u32', 5)
A('s_nop 1')
A('v_readlane_b32 s42, v5, 63')
A('s_nop 3')
A('s_lshl_b32 s42, s42, 2')
A('s_add_u32 s42, s42, s32')
A('v_mov_b32 v6, s42')
A('v_mov_b32 v7, s32')
A('s_mov_b64 exec, 1')
A('ds_add_u32 v126, v6')
A('ds_sub_u32 v126, v7 offset:4')
A('s_mov_b64 exec, -1')
A('s_waitcnt lgkmcnt(0)')
A('s_barrier')
A('ds_read_b64 v[6:7], v126')
A('s_waitcnt lgkmcnt(0)')
A('v_readfirstlane_b32 s42, v6')
A('v_readfirstlane_b32 s43, v7')
A('s_nop 3')
if OPT['forcefb']: A('s_mov_b32 s42, 1')
A('s_cmp_gt_u32 s29, 249')
A('s_cselect_b32 s42, 1, s42')
A('s_cmp_eq_u32 s42, 0')
A('s_cbranch_scc1 Q_FIN')
A('s_waitcnt vmcnt(0)')
A('s_min_u32 s27, s29, 254')
A('s_add_u32 s45, s27, 923')
A('s_lshl_b32 s45, s45, 20')
A('s_or_b32 s45, s45, 0x80000')
A('s_mov_b32 s44, 0')
A('s_lshr_b32 s43, s43, 2')
A('s_flbit_i32_b32 s46, s43')
A('s_max_i32 s46, s46, 0')
A('s_sub_u32 s46, 32, s46')
A('s_sub_i32 s47, -11, s46')
A('s_add_u32 s40, s27, s46')
A('s_sub_i32 s40, s40, 141')
A('v_mov_b32 v6, 1.0')
A('v_ldexp_f32 v6, v6, s40')
A('v_mov_b32 v5, 0')
A('v_cmp_eq_u32 vcc, 0, v0')
A('s_mov_b64 exec, vcc')
A(f'buffer_store_dword v6, v5, s[{S_WS}:{S_WS+3}], s41 offen')
A('s_mov_b64 exec, -1')
A('v_lshrrev_b32 v8, 1, v0')
A(f'v_mul_u32_u24 v9, {OFS}, v8')
A(f's_mov_b32 s16, {RS}')
A('v_mul_lo_u32 v8, v8, s16')
A('v_and_b32 v10, 1, v0')
for r in range(12, 16): A(f'v_mov_b32 v{r}, 0')
A('v_add_u32 v11, 65536, v2')
A('s_mov_b32 s48, 0')
L('Q_FH')
A('s_barrier')
for j in range(4): A(f'ds_write_b128 v2, v[12:15] offset:{j*16384}')
for j in range(2): A(f'ds_write_b128 v11, v[12:15] offset:{j*16384}')
A('s_mov_b64 exec, s[24:25]')
A(f'ds_write_b128 v11, v[12:15] offset:{2*16384}')
A('s_mov_b64 exec, -1')
A('s_waitcnt lgkmcnt(0)')
A('s_barrier')
A('s_lshl_b32 s49, s3, 5')
A(f's_add_u32 s49, s49, {OFF_BASE:#x}')
A('s_and_b32 s50, s3, 3')
A(f's_mul_i32 s50, s50, {16*CH*8}')
A('s_mov_b32 s51, 0')
L('Q_FR')
A(f'buffer_load_ushort v16, v9, s[{S_WS}:{S_WS+3}], s49 offen')
A(f'buffer_load_ushort v17, v9, s[{S_WS}:{S_WS+3}], s49 offen offset:2')
A('s_waitcnt vmcnt(0)')
A('v_add_u32 v16, v16, v10')
L('Q_FI')
A('v_cmp_lt_u32 vcc, v16, v17')
A('s_and_b64 exec, exec, vcc')
A('s_cbranch_execz Q_FRN')
A('s_mov_b64 s[52:53], exec')
A('v_and_b32 v18, 3, v16')
A('v_lshl_add_u32 v19, v16, 2, v8')
A('v_or_b32 v20, 3, v16')
A('v_lshl_add_u32 v20, v20, 2, v8')
A('v_add_u32 v20, v20, v18')
A(f'buffer_load_dword v21, v19, s[{S_WS}:{S_WS+3}], 0 offen')
A(f'buffer_load_ubyte v22, v20, s[{S_WS}:{S_WS+3}], 0 offen')
A('s_waitcnt vmcnt(0)')
A('v_bfe_u32 v23, v21, 13, 13')
A('v_subrev_u32 v23, s48, v23')
A('s_movk_i32 s16, 3125')
A('v_cmp_gt_u32 vcc, s16, v23')
A('v_cmp_ne_u32 s[54:55], 3, v18')
A('s_and_b64 vcc, vcc, s[54:55]')
A('v_bfe_u32 v24, v21, 0, 13')
A('v_lshlrev_b32 v24, 3, v24')
A('s_and_b64 exec, exec, vcc')
A('s_cbranch_execz Q_FIN2')
A(f'buffer_load_dwordx2 v[26:27], v24, s[{S_M}:{S_M+3}], s50 offen')
A('v_lshlrev_b32 v22, 2, v22')
A('v_lshrrev_b32 v25, 16, v21')
A('v_and_b32 v25, 0xfc00, v25')
A('v_or_b32 v25, v25, v22')
A('v_cvt_f32_f16 v25, v25')
A('v_cvt_f64_f32 v[28:29], v25')
A('v_lshlrev_b32 v23, 3, v23')
A('v_add_u32 v38, 50000, v23')
A('s_waitcnt vmcnt(0)')
A('v_lshlrev_b32 v30, 16, v26'); A('v_and_b32 v32, s30, v26')
A('v_lshlrev_b32 v34, 16, v27'); A('v_and_b32 v36, s30, v27')
for j, r in enumerate((30, 32, 34, 36)):
    A(f'v_cvt_f64_f32 v[{r}:{r+1}], v{r}')
    A(f'v_fma_f64 v[{r}:{r+1}], v[{r}:{r+1}], v[28:29], s[44:45]')
    A(f'ds_add_u64 v{23 if j < 2 else 38}, v[{r}:{r+1}] offset:{(j & 1) * 25000}')
L('Q_FIN2')
A('s_mov_b64 exec, s[52:53]')
A('v_add_u32 v16, 2, v16')
A('s_branch Q_FI')
L('Q_FRN')
A('s_mov_b64 exec, -1')
A('s_add_u32 s49, s49, 2')
A(f's_add_u32 s50, s50, {CH*8}')
A('s_add_u32 s51, s51, 1')
A('s_cmp_lt_u32 s51, 16')
A('s_cbranch_scc1 Q_FR')
A('s_waitcnt lgkmcnt(0)')
A('s_barrier')
A('s_and_b32 s16, s3, 3'); A(f's_mul_i32 s16, s16, {E*8}')
A('s_lshr_b32 s17, s3, 2'); A(f's_mul_i32 s17, s17, {CH*8}')
A('s_add_u32 s16, s16, s17'); A(f's_add_u32 s16, s16, {PART_BASE:#x}')
A('s_lshl_b32 s17, s48, 3'); A('s_add_u32 s16, s16, s17')
A('s_mov_b32 s52, 0'); A('s_mov_b32 s53, 0x41f00000')
A('v_mov_b32 v16, v3')
L('Q_FC')
A('s_movk_i32 s17, 25000')
A('v_cmp_gt_u32 vcc, s17, v16')
A('s_and_b64 exec, exec, vcc')
A('s_cbranch_execz Q_FCD')
A('v_add_u32 v17, 50000, v16')
for j in range(4):
    A(f'ds_read_b64 v[{18+2*j}:{19+2*j}], v{16 if j < 2 else 17} offset:{(j & 1) * 25000}')
A('s_waitcnt lgkmcnt(0)')
for j in range(4):
    lo, hi = 18 + 2*j, 19 + 2*j
    A(f'v_bfe_i32 v{hi}, v{hi}, 0, 19')
    A(f'v_cvt_f64_u32 v[26:27], v{lo}')
    A(f'v_cvt_f64_i32 v[28:29], v{hi}')
    A('v_fma_f64 v[26:27], v[28:29], s[52:53], v[26:27]')
    A('v_ldexp_f64 v[26:27], v[26:27], s47')
    A(f'v_cvt_f32_f64 v{30+j}, v[26:27]')
A('v_cvt_pk_f16_f32 v34, v30, v31')
A('v_cvt_pk_f16_f32 v35, v32, v33')
A(f'buffer_store_dwordx2 v[34:35], v16, s[{S_WS}:{S_WS+3}], s16 offen')
A('v_add_u32 v16, 8192, v16')
A('s_branch Q_FC')
L('Q_FCD')
A('s_mov_b64 exec, -1')
A('s_add_u32 s48, s48, 3125')
A('s_cmp_lt_u32 s48, 6250')
A('s_cbranch_scc1 Q_FH')
L('Q_FIN')
stamp2()
if OPT['stamp2'] >= 0:
    A('s_waitcnt vmcnt(0)')
    stamp2()
    A('v_readfirstlane_b32 s54, v0')
    A('s_nop 3')
    A(f's_cmp_lg_u32 s2, {OPT["stamp2"]}')
    A('s_cbranch_scc1 Q_END')
    A(f's_cmp_lg_u32 s54, {64*OPT.get("swave", 0)}')
    A('s_cbranch_scc1 Q_END')
    A('s_load_dwordx2 s[4:5], s[0:1], 96')
    A('s_waitcnt lgkmcnt(0)')
    srd(72, 4, 256)
    A('v_readlane_b32 s54, v127, 2')
    A('v_and_b32 v4, 63, v0')
    A('v_lshlrev_b32 v4, 2, v4')
    A('v_subrev_u32 v127, s54, v127')
    A('buffer_store_dword v127, v4, s[72:75], 0 offen')
abs_end(127, 64, 1, 16)
L('Q_END')
A('s_endpgm')

khead('fin_kernel')
A(f's_cmp_ge_u32 s2, {G3}')
A('s_cbranch_scc1 F_END')
abs_start(83)
A('s_load_dwordx2 s[4:5], s[0:1], 0')
A('s_load_dwordx2 s[6:7], s[0:1], 104')
A('s_load_dwordx2 s[8:9], s[0:1], 24')
A('s_load_dwordx2 s[10:11], s[0:1], 88')
A('s_load_dwordx2 s[96:97], s[0:1], 40')
A('s_load_dwordx4 s[32:35], s[0:1], 56')
A('s_load_dwordx4 s[28:31], s[0:1], 72')
S_M, S_WS, S_DIST, S_O = 12, 16, 20, 24
A('s_lshl_b32 s3, s2, 9')
A('s_waitcnt lgkmcnt(0)')
A('s_load_dwordx4 s[40:43], s[96:97], 0')
A('s_load_dwordx16 s[44:59], s[32:33], 0')
A('s_load_dwordx16 s[60:75], s[34:35], 0')
A('s_load_dwordx8 s[76:83], s[28:29], 0')
A('s_load_dwordx8 s[84:91], s[30:31], 0')
srd(S_M, 4, E * 8); srd(S_WS, 6, WS_BYTES); srd(S_DIST, 8, E * 2); srd(S_O, 10, E * 8)
A('s_mov_b32 s38, 0xffff0000')
VB = 2
def R(i, n): return VB + 40 * i + n
for i in range(2):
    e, t = R(i, 1), R(i, 2)
    A(f'v_add_u32 v{e}, s3, v0')
    if i: A(f'v_add_u32 v{e}, 256, v{e}')
    A(f'v_lshlrev_b32 v{t}, 1, v{e}')
    A(f'buffer_load_ushort v{R(i,3)}, v{t}, s[{S_DIST}:{S_DIST+3}], 0 offen')
for i in range(2):
    e, t = R(i, 1), R(i, 2)
    A(f'v_min_u32 v{t}, {E-1}, v{e}')
    A(f'v_lshlrev_b32 v{R(i,0)}, 3, v{t}')
    A(f'v_mul_hi_u32_u24 v{t}, {MAGIC_DIV:#x}, v{t}')
    A(f'v_lshlrev_b32 v{t}, 4, v{t}')
    A(f's_mov_b32 s39, {SCL_BASE:#x}')
    A(f'buffer_load_dwordx4 v[{R(i,6)}:{R(i,9)}], v{t}, s[{S_WS}:{S_WS+3}], s39 offen')
    for p in range(4):
        A(f's_mov_b32 s39, {PART_BASE + p*E*8:#x}')
        A(f'buffer_load_dwordx2 v[{R(i,32+2*p)}:{R(i,33+2*p)}], v{R(i,0)}, s[{S_WS}:{S_WS+3}], s39 offen {OPT["ld_part"]}')
    A(f'v_lshlrev_b32 v{e}, 3, v{e}')
    A(f'buffer_load_dwordx2 v[{R(i,4)}:{R(i,5)}], v{e}, s[{S_M}:{S_M+3}], 0 offen')
def sw(base, idx, dst):
    s = base + idx // 2
    if idx & 1: A(f's_and_b32 s{dst}, s{s}, 0xffff0000')
    else: A(f's_lshl_b32 s{dst}, s{s}, 16')
def rnd2(a, b, t):
    A(f'v_cvt_pk_bf16_f32 v{t}, v{a}, v{b}')
    A(f'v_lshlrev_b32 v{a}, 16, v{t}')
    A(f'v_and_b32 v{b}, s38, v{t}')
A('s_waitcnt vmcnt(12) lgkmcnt(0)')
A(f's_mov_b32 s94, {f32bits(-10.0):#x}')
A(f's_mov_b32 s95, {f32bits(math.log2(math.e)):#x}')
for i in range(2): A(f'v_lshlrev_b32 v{R(i,3)}, 16, v{R(i,3)}')
for r in range(0, 8, 2):
    sw(40, r, 92); sw(40, r + 1, 93)
    for i in range(2):
        a, b, t = R(i, 14 + r), R(i, 15 + r), R(i, 2)
        A(f'v_subrev_f32 v{a}, s92, v{R(i,3)}')
        A(f'v_subrev_f32 v{b}, s93, v{R(i,3)}')
        rnd2(a, b, t)
        A(f'v_mul_f32 v{a}, v{a}, v{a}')
        A(f'v_mul_f32 v{b}, v{b}, v{b}')
        rnd2(a, b, t)
        A(f'v_mul_f32 v{a}, s94, v{a}')
        A(f'v_mul_f32 v{b}, s94, v{b}')
        rnd2(a, b, t)
        A(f'v_mul_f32 v{a}, s95, v{a}')
        A(f'v_mul_f32 v{b}, s95, v{b}')
        A(f'v_exp_f32 v{a}, v{a}')
        A(f'v_exp_f32 v{b}, v{b}')
        A('s_nop 0')
        rnd2(a, b, t)
for base, dst in ((60, 22), (44, 26)):
    for d in range(4):
        for r in range(8):
            sw(base, r*4 + d, 92)
            for i in range(2):
                if r == 0: A(f'v_mul_f32 v{R(i,dst+d)}, s92, v{R(i,14+r)}')
                else: A(f'v_fmac_f32 v{R(i,dst+d)}, s92, v{R(i,14+r)}')
A('s_waitcnt vmcnt(0)')
for i in range(2):
    for d in range(4):
        for p in range(4):
            c = '0' if p == 0 else f'v{R(i,14+d)}'
            A(f'v_fma_mix_f32 v{R(i,14+d)}, v{R(i,32+2*p+d//2)}, v{R(i,6+p)}, {c} op_sel:[{d&1},0,0] op_sel_hi:[1,0,0]')
for d in range(4):
    for k in range(4):
        sw(76, k*4 + d, 92)
        for i in range(2):
            if k == 0: A(f'v_mul_f32 v{R(i,10+d)}, s92, v{R(i,14+k)}')
            else: A(f'v_fmac_f32 v{R(i,10+d)}, s92, v{R(i,14+k)}')
for i in range(2):
    for d in range(4):
        A(f'v_mul_f32 v{R(i,10+d)}, v{R(i,10+d)}, v{R(i,22+d)}')
    rnd2(R(i,10), R(i,11), R(i,2)); rnd2(R(i,12), R(i,13), R(i,2))
    rnd2(R(i,26), R(i,27), R(i,2)); rnd2(R(i,28), R(i,29), R(i,2))
for d in range(4):
    for k in range(4):
        sw(84, k*4 + d, 92)
        for i in range(2):
            if k == 0: A(f'v_mul_f32 v{R(i,22+d)}, s92, v{R(i,10+k)}')
            else: A(f'v_fmac_f32 v{R(i,22+d)}, s92, v{R(i,10+k)}')
for i in range(2):
    rnd2(R(i,22), R(i,23), R(i,2)); rnd2(R(i,24), R(i,25), R(i,2))
    for d in range(4):
        A(f'v_mul_f32 v{R(i,22+d)}, v{R(i,22+d)}, v{R(i,26+d)}')
    rnd2(R(i,22), R(i,23), R(i,2)); rnd2(R(i,24), R(i,25), R(i,2))
    A(f'v_lshlrev_b32 v{R(i,26)}, 16, v{R(i,4)}')
    A(f'v_and_b32 v{R(i,27)}, s38, v{R(i,4)}')
    A(f'v_lshlrev_b32 v{R(i,28)}, 16, v{R(i,5)}')
    A(f'v_and_b32 v{R(i,29)}, s38, v{R(i,5)}')
    for d in range(4):
        A(f'v_add_f32 v{R(i,22+d)}, v{R(i,22+d)}, v{R(i,26+d)}')
    A(f'v_cvt_pk_bf16_f32 v{R(i,30)}, v{R(i,22)}, v{R(i,23)}')
    A(f'v_cvt_pk_bf16_f32 v{R(i,31)}, v{R(i,24)}, v{R(i,25)}')
    A(f'buffer_store_dwordx2 v[{R(i,30)}:{R(i,31)}], v{R(i,1)}, s[{S_O}:{S_O+3}], 0 offen')
abs_end(83, 64, 2, 4)
L('F_END')
A('s_endpgm')
L('CODE_END')

out.append('.section .rodata,"a"')
for name, vg in (('part_kernel', 128), ('acc_kernel', 128), ('fin_kernel', 84)):
    out.append('.p2align 6')
    out.append(f'.amdhsa_kernel {name}')
    out.append(f'  .amdhsa_next_free_vgpr {vg}')
    out.append('  .amdhsa_next_free_sgpr 102')
    out.append(f'  .amdhsa_accum_offset {vg}')
    out.append('  .amdhsa_group_segment_fixed_size 0')
    out.append('  .amdhsa_kernarg_size 112')
    out.append('  .amdhsa_user_sgpr_count 2')
    out.append('  .amdhsa_user_sgpr_kernarg_segment_ptr 1')
    out.append('  .amdhsa_system_sgpr_workgroup_id_x 1')
    out.append('  .amdhsa_float_denorm_mode_32 3')
    out.append('.end_amdhsa_kernel')
open(sys.argv[1], 'w').write('\n'.join(out) + '\n')
```

```python
import struct, sys, math

E = 400000
T = 12800000
CH = 6250
S = 25000
NTILE = 512
NBLK = (S + 2) // 3
RS = 133376
OFS = 8208
OFF_BASE = 0x4400000
MAX_BASE = 0x4C00000
SCL_BASE = 0x4C01000
PART_BASE = 0x5000000
WS_BYTES = 268435456
MAGIC_DIV = (2**32 + CH - 1) // CH
MINI = S - 6 * 4096
assert NTILE * RS <= OFF_BASE and OFF_BASE + NTILE * OFS <= MAX_BASE

OPT = dict(ld_in='nt', st_ws='sc0 sc1', ld_ent='', ld_ch='', st_part='sc0 sc1', ld_part='', NB=2, skip_s=0, skip_g=0, skip_fill=0, skip_e=0,
           stamp=-1, stamp2=-1, prio=1, ilv='2:0,3:1,4:2,5:3', pre=1, npb=1, bps=1, vpos='123456', skip_ch=0, skip_pf=0, pmap=0, cpos=0, epos=1, unpair=0, k2prio=0, pa=2, pb=2, struct=0, forcefb=0, abst=0, wsoff=0, cpf=0)
for a in sys.argv[2:]:
    k, v = a.split('=')
    OPT[k] = int(v) if (v.lstrip('-').isdigit() and k != 'vpos') else v.replace('_', ' ')

def f32bits(x): return struct.unpack('<I', struct.pack('<f', x))[0]
out = []
def A(s): out.append('    ' + s)
def L(s): out.append(s + ':')
_lab = [0]
def newlab(p='L'):
    _lab[0] += 1
    return f'{p}_{_lab[0]}'
def srd(d, b, nbytes):
    if nbytes == WS_BYTES and OPT['wsoff']:
        off = OPT['wsoff'] << 20
        A(f's_add_u32 s{d}, s{b}, {off:#x}')
        A(f's_addc_u32 s{d+1}, s{b+1}, 0')
        A(f's_and_b32 s{d+1}, s{d+1}, 0xffff')
        A(f's_mov_b32 s{d+2}, {nbytes - off:#x}')
        A(f's_mov_b32 s{d+3}, 0x00020000')
        return
    A(f's_mov_b32 s{d}, s{b}')
    A(f's_and_b32 s{d+1}, s{b+1}, 0xffff')
    A(f's_mov_b32 s{d+2}, {nbytes:#x}')
    A(f's_mov_b32 s{d+3}, 0x00020000')
def dpp_scan(op, v):
    for sh in (1, 2, 4, 8):
        A('s_nop 1')
        A(f'{op}_dpp v{v}, v{v}, v{v} row_shr:{sh} row_mask:0xf bank_mask:0xf bound_ctrl:0')
    A('s_nop 1')
    A(f'{op}_dpp v{v}, v{v}, v{v} row_bcast:15 row_mask:0xa bank_mask:0xf')
    A('s_nop 1')
    A(f'{op}_dpp v{v}, v{v}, v{v} row_bcast:31 row_mask:0xc bank_mask:0xf')
def khead(name):
    out.append(f'.globl {name}')
    out.append('.p2align 8')
    out.append(f'.type {name},@function')
    L(name)
SD = 'dst_sel:DWORD dst_unused:UNUSED_PAD'
def abs_start(v):
    if not OPT['abst']: return
    A('s_memrealtime s[4:5]')
    A('s_waitcnt lgkmcnt(0)')
    A(f'v_mov_b32 v{v}, s4')
def abs_end(v, sr, kid, wpb):
    if not OPT['abst']: return
    A('s_mov_b64 exec, -1')
    A('s_waitcnt vmcnt(0)')
    A('s_load_dwordx2 s[4:5], s[0:1], 104')
    A('s_memrealtime s[6:7]')
    A('s_waitcnt lgkmcnt(0)')
    srd(sr, 4, WS_BYTES)
    A('v_lshrrev_b32 v1, 6, v0')
    A(f's_mul_i32 s7, s2, {wpb}')
    A('v_add_u32 v1, s7, v1')
    A('v_lshlrev_b32 v1, 3, v1')
    A(f'v_mov_b32 v2, v{v}')
    A('v_mov_b32 v3, s6')
    A(f's_mov_b32 s7, {0xF000000 + kid*65536:#x}')
    A('s_mov_b64 exec, 1')
    A(f'buffer_store_dwordx2 v[2:3], v1, s[{sr}:{sr+3}], s7 offen')

stampn = [0]
def stamp(key):
    if OPT[key] < 0: return
    n = stampn[0]; stampn[0] += 1
    A(OPT.get('clk','s_memtime').replace(' ','_') + ' s[98:99]')
    A('s_waitcnt lgkmcnt(0)')
    A(f's_mov_b32 s{76+n}, s98')
def stamp_flush(key, swave, vz, wave=0):
    if OPT[key] < 0: return
    lab = newlab('STF')
    A(f's_cmp_lg_u32 s2, {OPT[key]}')
    A(f's_cbranch_scc1 {lab}')
    A(f's_cmp_lg_u32 s{swave}, {wave}')
    A(f's_cbranch_scc1 {lab}')
    A('s_load_dwordx2 s[4:5], s[0:1], 96')
    A('s_waitcnt lgkmcnt(0)')
    srd(72, 4, 256)
    A('s_mov_b64 exec, 1')
    A(f'v_mov_b32 v{vz}, 0')
    for n in range(stampn[0]):
        A(f's_sub_u32 s98, s{76+n}, s76')
        A(f'v_mov_b32 v{vz+1}, s98')
        A(f'buffer_store_dword v{vz+1}, v{vz}, s[72:75], 0 offen offset:{4*n}')
        A('s_nop 1')
    L(lab)

L_H, L_SC, L_ST = 0, 16384, 16640
L_X = L_ST
L_W = L_X + NBLK * 4 + 8
LDS1 = L_W + NBLK * 12
assert L_W < 65536 and L_W % 16 == 0
L_ARB, L_CH, L_SC2 = 50000, 100000, 150000
LDS2 = 150000 + 64
G3 = (E + 511) // 512

hdr = open('standalone__molecular_angular_gemnet__graph.s.ref').read().split('; Override launch')[0]
out.append(hdr.rstrip())
out.append(f'; @launch kernel=part_kernel grid=(256,1,1) block=(1024,1,1) lds={LDS1}')
out.append(f'; @launch kernel=acc_kernel grid=(256,1,1) block=(1024,1,1) lds={LDS2}')
out.append(f'; @launch kernel=fin_kernel grid=({G3},1,1) block=(256,1,1) lds=0')
out.append('.amdgcn_target "amdgcn-amd-amdhsa--gfx950"')
out.append('.text')

khead('part_kernel')
A('s_cmp_ge_u32 s2, 256')
A('s_cbranch_scc1 P_END')
abs_start(87)
A('s_load_dwordx4 s[4:7], s[0:1], 0')
A('s_load_dwordx2 s[8:9], s[0:1], 16')
A('s_load_dwordx2 s[10:11], s[0:1], 32')
A('s_load_dwordx2 s[12:13], s[0:1], 48')
A('s_load_dwordx2 s[14:15], s[0:1], 104')
S_IN, S_OUT, S_ANG, S_WS, S_M = 16, 20, 24, 28, 32
if OPT['prio']: A('s_setprio 3')
if OPT['cpf'] >= 2:
    A('s_getpc_b64 s[58:59]')
    A('v_lshlrev_b32 v48, 7, v0')
    A('v_cmp_gt_u32 vcc, 88, v0')
    A('s_and_saveexec_b64 s[56:57], vcc')
    A('s_cbranch_execz P_NOSPF')
    A('global_load_dword v87, v48, s[58:59]')
    L('P_NOSPF')
    A('s_mov_b64 exec, s[56:57]')
A('v_lshlrev_b32 v1, 4, v0')
A('v_lshlrev_b32 v2, 3, v0')
A('v_mov_b32 v3, 1')
A('v_mov_b32 v4, 0x10000')
A('v_mov_b32 v5, 0')
A('v_lshlrev_b32 v6, 2, v0')
A('v_lshlrev_b32 v7, 1, v0')
TT = 8
for r in range(4): A(f'v_mov_b32 v{TT+4+r}, 0')
A('v_readfirstlane_b32 s50, v0')
A(f'ds_write_b128 v1, v[{TT+4}:{TT+7}]')
A(f'ds_write_b32 v6, v5 offset:{L_SC}')
A(f's_movk_i32 s42, {MINI}')
A('v_cmp_gt_u32 s[40:41], s42, v0')
A('s_waitcnt lgkmcnt(0)')
A('s_load_dword s36, s[12:13], 0')
srd(S_IN, 6, T * 4); srd(S_OUT, 8, T * 4); srd(S_ANG, 10, T * 2); srd(S_WS, 14, WS_BYTES); srd(S_M, 4, E * 8)
A('s_lshr_b32 s50, s50, 6')
A(f's_mul_i32 s37, s2, {2*S*4}')
A(f's_mul_i32 s38, s2, {2*S*2}')
UA = 24
unitA = [(UA + 10*k, UA + 10*k + 4, UA + 10*k + 8) for k in range(6)] + [(84, 85, 86)]
unitB = [(88 + 10*k, 88 + 10*k + 4, 88 + 10*k + 8) for k in range(4)] + [unitA[0], unitA[1], (44, 45, 46)]
vm = []
ldf = OPT['ld_in']
def load_unit(tag, k):
    vi, vo, va = (unitA if tag == 'A' else unitB)[k]
    tile = 0 if tag == 'A' else 1
    A(f's_add_u32 s43, s37, {tile*S*4 + k*16384}')
    A(f's_add_u32 s44, s38, {tile*S*2 + k*8192}')
    if k < 6:
        A(f'buffer_load_dwordx4 v[{vo}:{vo+3}], v1, s[{S_OUT}:{S_OUT+3}], s43 offen {ldf}')
        A(f'buffer_load_dwordx4 v[{vi}:{vi+3}], v1, s[{S_IN}:{S_IN+3}], s43 offen {ldf}')
        A(f'buffer_load_dwordx2 v[{va}:{va+1}], v2, s[{S_ANG}:{S_ANG+3}], s44 offen {ldf}')
    else:
        A('s_or_b64 exec, s[40:41], 1')
        A(f'buffer_load_dword v{vo}, v6, s[{S_OUT}:{S_OUT+3}], s43 offen {ldf}')
        A(f'buffer_load_dword v{vi}, v6, s[{S_IN}:{S_IN+3}], s43 offen {ldf}')
        A(f'buffer_load_ushort v{va}, v7, s[{S_ANG}:{S_ANG+3}], s44 offen {ldf}')
        A('s_mov_b64 exec, -1')
    vm.extend([(tag, k)] * 3)
def vwait(tag):
    idx = max(i for i, t in enumerate(vm) if t == tag)
    A(f's_waitcnt vmcnt({min(len(vm)-1-idx, 63)})')
stamp('stamp')
for k in range(OPT['pre']): load_unit('A', k)
A('s_barrier')
A(f's_mul_i32 s39, s2, {782*16}')
A(f'buffer_load_dwordx4 v[{TT}:{TT+3}], v1, s[{S_M}:{S_M+3}], s39 offen'); vm.append('M')
for k in range(OPT['pre'], 7): load_unit('A', k)
if OPT['prio']: A('s_setprio 0')
A(f's_mov_b32 s46, {f32bits(1/(2*math.pi)):#x}')
A(f's_mov_b32 s47, {f32bits(1/(2*math.pi)):#x}')
A('s_mov_b32 s48, 0xfc000000')
A('s_mov_b32 s49, 0xffff0000')
A(f's_mov_b32 s51, {(-CH) & 0xffffffff:#x}')
A('s_mov_b32 s52, 0x00020002')
A('s_mov_b32 s53, 0x55555556')
A('s_waitcnt lgkmcnt(0)')
A('s_lshl_b32 s36, s36, 16')

PT = TT + 11
def process(tag, k):
    vi0, vo0, va0 = (unitA if tag == 'A' else unitB)[k]
    inc = 3 if tag == 'A' else 4
    n = 4 if k < 6 else 1
    vwait((tag, k))
    skip = None
    if k == 6:
        skip = newlab('P_MS')
        A('s_mov_b64 exec, s[40:41]')
        A(f's_cbranch_execz {skip}')
    tj, ti, t1 = PT, PT + 1, PT + 2
    for j in range(n):
        vi, vo = vi0 + j, vo0 + j
        A(f'v_mul_hi_u32_u24 v{tj}, {MAGIC_DIV:#x}, v{vi}')
        A(f'v_mul_hi_u32_u24 v{ti}, {MAGIC_DIV:#x}, v{vo}')
        A(f'v_lshl_add_u32 v{vi}, v{vo}, 13, v{vi}')
        A(f'v_lshl_add_u32 v{vo}, v{ti}, 6, v{tj}')
        A(f'v_lshl_add_u32 v{t1}, v{ti}, 13, v{tj}')
        A(f'v_lshlrev_b32 v{vo}, 2, v{vo}')
        A(f'v_mad_i32_i24 v{vi}, v{t1}, s51, v{vi}')
        A(f'ds_add_u32 v{vo}, v{inc} offset:{L_H}')
    a0, a1 = PT + 3, PT + 4
    assert a0 % 2 == 0
    npair = (n + 1) // 2
    nf = newlab('P_NF')
    A('s_cmp_eq_u32 s36, 0x3f800000')
    A(f's_cbranch_scc1 {nf}')
    for p in range(npair):
        va = va0 + p
        A(f'v_lshlrev_b32 v{a0}, 16, v{va}')
        A(f'v_and_b32 v{a1}, s49, v{va}')
        A(f'v_mul_f32 v{a0}, s36, v{a0}')
        A(f'v_mul_f32 v{a1}, s36, v{a1}')
        A(f'v_cvt_pk_bf16_f32 v{va}, v{a0}, v{a1}')
    L(nf)
    for p in range(npair):
        va = va0 + p
        A(f'v_lshlrev_b32 v{a0}, 16, v{va}')
        A(f'v_and_b32 v{a1}, s49, v{va}')
        A(f'v_pk_mul_f32 v[{a0}:{a1}], v[{a0}:{a1}], s[46:47]')
        A(f'v_fract_f32 v{a0}, v{a0}')
        A(f'v_fract_f32 v{a1}, v{a1}')
        A(f'v_cos_f32 v{a0}, v{a0}')
        A(f'v_cos_f32 v{a1}, v{a1}')
        A('s_nop 0')
        A(f'v_cvt_pk_f16_f32 v{va}, v{a0}, v{a1}')
        A(f'v_pk_add_u16 v{va}, v{va}, s52')
        e0, e1 = 2*p, 2*p + 1
        A(f'v_lshlrev_b32 v{a0}, 16, v{va}')
        if e1 < n: A(f'v_and_or_b32 v{vi0+e1}, v{va}, s48, v{vi0+e1}')
        A(f'v_and_or_b32 v{vi0+e0}, v{a0}, s48, v{vi0+e0}')
        A(f'v_lshrrev_b32 v{va}, 2, v{va}')
    if k == 6:
        L(skip)
        A('s_mov_b64 exec, -1')

def maxm():
    vwait('M')
    A('s_mov_b32 s42, 0x7fff7fff')
    for j in range(4): A(f'v_and_b32 v{TT+j}, s42, v{TT+j}')
    A(f'v_pk_max_u16 v{TT}, v{TT}, v{TT+2}')
    A(f'v_pk_max_u16 v{TT+1}, v{TT+1}, v{TT+3}')
    A(f'v_pk_max_u16 v{TT}, v{TT}, v{TT+1}')
    A(f'v_lshrrev_b32 v{TT+1}, 16, v{TT}')
    A(f'v_and_b32 v{TT}, 0xffff, v{TT}')
    A(f'v_max_u32 v{TT}, v{TT}, v{TT+1}')
    dpp_scan('v_max_u32', TT)
    A('s_nop 1')
    A(f'v_readlane_b32 s42, v{TT}, 63')
    A('s_nop 1')
    A(f'v_mov_b32 v{TT}, s42')
    A('s_mov_b64 exec, 1')
    A(f'ds_max_u32 v5, v{TT} offset:{L_SC+128}')
    A('s_mov_b64 exec, -1')

def scan(tile, scoff):
    h = TT
    A('s_waitcnt lgkmcnt(0)')
    A('s_barrier')
    A(f'ds_read_b128 v[{h}:{h+3}], v1 offset:{L_H}')
    A(f'v_and_b32 v{h+5}, 63, v0')
    A(f'v_cmp_lt_u32 vcc, s50, v{h+5}')
    A(f'v_lshlrev_b32 v{h+5}, 2, v{h+5}')
    A('s_and_b64 s[56:57], vcc, 0xffff')
    A('s_waitcnt lgkmcnt(0)')
    if tile == 1:
        for j in range(4): A(f'v_lshrrev_b32 v{h+j}, 16, v{h+j}')
    for j in range(1, 4): A(f'v_add_u32 v{h+j}, v{h+j-1}, v{h+j}')
    A(f'v_mov_b32 v{h+4}, v{h+3}')
    dpp_scan('v_add_u32', h + 4)
    A('s_nop 1')
    A(f'v_readlane_b32 s42, v{h+4}, 63')
    A('s_nop 1')
    A(f'v_mov_b32 v{h+6}, s42')
    A('s_mov_b64 exec, s[56:57]')
    A(f'ds_add_u32 v{h+5}, v{h+6} offset:{scoff}')
    A('s_mov_b64 exec, -1')
    A('s_lshl_b32 s42, s50, 2')
    A(f'v_mov_b32 v{h+5}, s42')
    A(f'v_sub_u32 v{h+4}, v{h+4}, v{h+3}')
    A('s_waitcnt lgkmcnt(0)')
    A('s_barrier')
    A(f'ds_read_b32 v{h+5}, v{h+5} offset:{scoff}')
    if tile == 0: A(f'ds_read_b32 v{h+6}, v5 offset:{L_SC+128}')
    A(f's_mul_i32 s42, s2, {2*OFS}')
    A(f's_add_u32 s42, s42, {OFF_BASE + tile*OFS:#x}')
    A('s_waitcnt lgkmcnt(0)')
    A(f'v_add_u32 v{h+4}, v{h+4}, v{h+5}')
    for j in (3, 2, 1): A(f'v_add_u32 v{h+j}, v{h+4}, v{h+j-1}')
    A(f'v_mov_b32 v{h}, v{h+4}')
    A(f'ds_write_b128 v1, v[{h}:{h+3}] offset:{L_H}')
    for j in range(4):
        A(f'v_mul_hi_u32 v{h+10+j}, v{h+j}, s53')
        A(f'v_add_u32 v{h+10+j}, v{h+10+j}, v{h+j}')
    A(f'v_lshl_or_b32 v{h+8}, v{h+11}, 16, v{h+10}')
    A(f'v_lshl_or_b32 v{h+9}, v{h+13}, 16, v{h+12}')
    A(f'buffer_store_dwordx2 v[{h+8}:{h+9}], v2, s[{S_WS}:{S_WS+3}], s42 offen')
    vm.append(('OFS', tile))
    done = newlab('P_SC')
    A('s_cmp_lg_u32 s50, 0')
    A(f's_cbranch_scc1 {done}')
    A('s_mov_b64 exec, 1')
    A(f'v_mov_b32 v{h+5}, {S + S//3}')
    A('s_add_u32 s42, s42, 8192')
    A(f'buffer_store_dword v{h+5}, v5, s[{S_WS}:{S_WS+3}], s42 offen')
    if tile == 0:
        A(f's_add_u32 s42, s2, {MAX_BASE:#x}')
        A(f'v_lshrrev_b32 v{h+6}, 7, v{h+6}')
        A(f'buffer_store_byte v{h+6}, v5, s[{S_WS}:{S_WS+3}], s42 offen')
    A('s_mov_b64 exec, -1')
    L(done)
    A('s_waitcnt lgkmcnt(0)')
    A('s_barrier')

def scatter(tag, after_wait, after_fin):
    units = unitA if tag == 'A' else unitB
    lg = []
    def issue(k):
        vi0, vo0, _ = units[k]
        n = 4 if k < 6 else 1
        if k == 6: A('s_mov_b64 exec, s[40:41]')
        for j in range(n):
            A(f'ds_add_rtn_u32 v{TT+4*(k&1)+j}, v{vo0+j}, v3 offset:{L_H}')
            lg.append(('R', k))
        if k == 6: A('s_mov_b64 exec, -1')
    def fin(k):
        vi0, vo0, va0 = units[k]
        n = 4 if k < 6 else 1
        if k == 6: A('s_mov_b64 exec, s[40:41]')
        for j in range(n):
            t = TT + 4*(k & 1) + j
            q, a = TT + 8, TT + 9 + (j & 1)
            if tag == 'A': A(f'v_and_b32 v{t}, 0xffff, v{t}')
            A(f'v_mul_hi_u32 v{q}, v{t}, s53')
            A(f'v_lshlrev_b32 v{a}, 2, v{t}')
            A(f'v_add_u32 v{t}, v{q}, v{t}')
            A(f'ds_write_b32 v{a}, v{vi0+j} offset:{L_W}')
            A(f'ds_write_b8{"_d16_hi" if j & 1 else ""} v{t}, v{va0+j//2} offset:{L_X}')
            lg.extend([('W', k)] * 2)
        if k == 6: A('s_mov_b64 exec, -1')
    issue(0)
    for k in range(7):
        if k + 1 < 7: issue(k + 1)
        idx = max(i for i, t in enumerate(lg) if t == ('R', k) or t == ('W', k - 1))
        ny = sum(1 for t in lg[idx+1:] if t[1] != 6)
        A(f's_waitcnt lgkmcnt({min(ny, 15)})')
        if k in after_wait: after_wait[k]()
        fin(k)
        if k in after_fin:
            after_fin[k]()
            lg.extend([('H', k)] * 4)
    A('s_waitcnt lgkmcnt(0)')
    A('s_barrier')

RC = (NBLK + 1023) // 1024
lastc = NBLK - (RC - 1) * 1024
def copyout(tile, regs, ar):
    A(f's_movk_i32 s42, {lastc}')
    A('v_cmp_gt_u32 s[56:57], s42, v0')
    A(f'v_mul_u32_u24 v{ar[0]}, 12, v0')
    A(f'v_add_u32 v{ar[0]}, {L_W}, v{ar[0]}')
    A(f's_mul_i32 s42, s2, {2*RS}')
    if tile: A(f's_add_u32 s42, s42, {RS}')
    def rd(j):
        r = regs[j]
        if j == RC - 1: A('s_mov_b64 exec, s[56:57]')
        A(f'ds_read2_b32 v[{r}:{r+1}], v{ar[0]} offset0:0 offset1:1')
        A(f'ds_read_b32 v{r+2}, v{ar[0]} offset:8')
        A(f'ds_read_b32 v{r+3}, v6 offset:{L_X + j*4096}')
        if j == RC - 1: A('s_mov_b64 exec, -1')
        else: A(f'v_add_u32 v{ar[0]}, {12*1024}, v{ar[0]}')
    LA = 4
    for j in range(LA): rd(j)
    for j in range(RC):
        if j + LA < RC: rd(j + LA)
        A(f's_waitcnt lgkmcnt({3*max(0, min(LA, RC-2-j))})')
        if j == RC - 1: A('s_mov_b64 exec, s[56:57]')
        A(f'buffer_store_dwordx4 v[{regs[j]}:{regs[j]+3}], v1, s[{S_WS}:{S_WS+3}], s42 offen {OPT["st_ws"]}')
        if j < RC - 1: vm.append(('ST', tile, j))
        if j < RC - 1: A('s_add_u32 s42, s42, 16384')
    A('s_mov_b64 exec, -1')

stamp('stamp')
process('A', 0)
stamp('stamp')
maxm()
for k in range(1, 7): process('A', k)
stamp('stamp')
NPB = OPT['npb']
for k in range(NPB): load_unit('B', k)
scan(0, L_SC)
stamp('stamp')
ilv = dict((int(x.split(':')[0]), int(x.split(':')[1])) for x in OPT['ilv'].split(',')) if OPT['ilv'] else {}
pend = list(range(NPB, 7))
aw = {}
for k in range(7):
    take = []
    while pend and len(take) < OPT['bps'] and (pend[0] < 4 or k >= pend[0] - 3):
        take.append(pend.pop(0))
    if k == 6: take += pend; pend = []
    if take: aw[k] = (lambda tk=take: [load_unit('B', b) for b in tk])
scatter('A', aw, {k: (lambda b=b: process('B', b)) for k, b in ilv.items()})
stamp('stamp')
copyout(0, [48 + 4*j for j in range(RC)], [TT, TT + 1, TT + 2])
stamp('stamp')
for k in range(7):
    if k not in ilv.values(): process('B', k)
stamp('stamp')
scan(1, L_SC + 64)
if OPT['cpf']:
    A('s_cmp_lg_u32 s50, 15')
    A('s_cbranch_scc1 P_NOCPF')
    A('s_getpc_b64 s[58:59]')
    L('P_PC')
    A('s_add_u32 s58, s58, acc_kernel-P_PC')
    A('s_addc_u32 s59, s59, 0')
    A('v_and_b32 v48, 63, v0')
    A('v_lshlrev_b32 v48, 7, v48')
    for j in range(3):
        A(f'v_min_u32 v49, CODE_END-acc_kernel-4, v48')
        A(f'global_load_dword v87, v49, s[58:59]')
        A('v_add_u32 v48, 8192, v48')
    L('P_NOCPF')
stamp('stamp')
scatter('B', {}, {})
stamp('stamp')
copyout(1, [48 + 4*j for j in range(RC)], [TT, TT + 1, TT + 2])
stamp('stamp')
if OPT['stamp'] >= 0: A('s_waitcnt vmcnt(0)')
stamp('stamp')
stamp_flush('stamp', 50, TT, OPT.get('swave', 0))
abs_end(87, 64, 0, 16)
L('P_END')
A('s_endpgm')

st2n = [0]
def stamp2():
    if OPT['stamp2'] < 0: return
    n = st2n[0]; st2n[0] += 1
    A(OPT.get('clk','s_memtime').replace(' ','_') + ' s[4:5]')
    A('s_waitcnt lgkmcnt(0)')
    A(f'v_writelane_b32 v127, s4, {n+2}')
khead('acc_kernel')
A('s_cmp_ge_u32 s2, 256')
A('s_cbranch_scc1 Q_END')
abs_start(127)
A('s_load_dwordx2 s[4:5], s[0:1], 0')
A('s_load_dwordx2 s[6:7], s[0:1], 104')
S_M, S_WS = 8, 12
A('s_and_b32 s3, s2, 7')
A('s_lshl_b32 s3, s3, 5')
A('s_lshr_b32 s16, s2, 3')
A('s_add_u32 s3, s3, s16')
VTB = 5; VOF = 8
VEB = VOF + 18
def EB(slot, s): return VEB + (slot * 3 + s) * 4
VG = VEB + 48
def G(s, e): return VG + (s * 3 + e) * 2
VCH = VG + 18
VT = VCH + 16
VA = VT + 1
VSH, VFC = VT + 10, VT + 11
VOV = VT + 12
VRM = VOV + 2
assert VOV % 2 == 0 and VRM + 4 <= 127
def OF(s, k): return VOF + 9*s + k
def MK(slot, s, e):
    if s == 2 and e > 0: return 36 + 2 * e
    return 46 + slot * 14 + (s * 3 + e) * 2
A('v_and_b32 v1, 3, v0')
A('v_lshlrev_b32 v2, 4, v0')
A('v_lshrrev_b32 v3, 2, v0')
A('v_and_b32 v4, 1, v0')
A(f'v_bfe_u32 v{VT}, v0, 1, 1')
A(f'v_lshl_add_u32 v{VT}, v{VT}, 8, v3')
A(f'v_mul_u32_u24 v{VT}, {OFS}, v{VT}')
A(f'v_lshl_add_u32 v{VT+1}, v4, 4, v{VT}')
A(f'v_and_b32 v{VT+2}, 63, v0')
A(f'v_lshlrev_b32 v{VT+2}, 2, v{VT+2}')
if not OPT['abst']: A('v_mov_b32 v127, 0')
A('s_lshl_b32 s17, s3, 5')
A(f's_add_u32 s17, s17, {OFF_BASE:#x}')
A(f's_mov_b32 s19, {MAX_BASE:#x}')
A('s_and_b32 s20, s3, 3')
A(f's_mul_i32 s20, s20, {16*CH*8}')
A('v_cmp_gt_u32 s[22:23], 53, v0')
A('s_waitcnt lgkmcnt(0)')
srd(S_M, 4, E * 8); srd(S_WS, 6, WS_BYTES)
TO = VG
A(f'buffer_load_dwordx4 v[{TO}:{TO+3}], v{VT+1}, s[{S_WS}:{S_WS+3}], s17 offen')
A(f'buffer_load_ushort v{TO+4}, v{VT}, s[{S_WS}:{S_WS+3}], s17 offen offset:32')
A(f'buffer_load_dword v{VT+9}, v{VT+2}, s[{S_WS}:{S_WS+3}], s19 offen')
stamp2()
INLOOP = [0]
def ch1(j, live=False):
    sk = None
    if j == 3:
        A('s_and_b64 exec, s[22:23], s[18:19]' if live else 's_mov_b64 exec, s[22:23]')
        sk = newlab('Q_C')
        A(f's_cbranch_execz {sk}')
    else:
        A('s_mov_b64 exec, s[18:19]' if live else 's_mov_b64 exec, -1')
    A(f's_add_u32 s21, s20, {j*16384}')
    if not (OPT['skip_ch'] and INLOOP[0]): A(f'buffer_load_dwordx4 v[{VCH+4*j}:{VCH+4*j+3}], v2, s[{S_M}:{S_M+3}], s21 offen {OPT["ld_ch"]}')
    if j == 3: L(sk)
def chall(live=False):
    for j in (3, 0, 1, 2): ch1(j, live)
    A(f's_add_u32 s20, s20, {CH*8}')
def fill():
    if OPT['skip_fill']: return
    sk = newlab('Q_F')
    A('s_mov_b64 exec, s[22:23]')
    A(f's_cbranch_execz {sk}')
    A(f'ds_write_b128 v3, v[{VCH+12}:{VCH+15}] offset:{3*16384}')
    L(sk)
    A('s_mov_b64 exec, -1')
    for j in range(3):
        A(f'ds_write_b128 v3, v[{VCH+4*j}:{VCH+4*j+3}] offset:{j*16384}')
chall()
A(f's_mov_b32 s16, {RS}')
A(f'v_mul_lo_u32 v{VTB}, v3, s16')
A(f'v_add_u32 v{VTB+1}, {256*RS}, v{VTB}')
A('v_cmp_lt_u32 s[36:37], 1, v1')
A('v_lshl_add_u32 v4, v4, 2, 16')
A('v_lshlrev_b32 v1, 2, v1')
A(f'v_add_u32 v{VTB+2}, 16, v1')
A(f'v_add_u32 v3, {L_CH}, v2')
z = VEB + 44
for r in range(4): A(f'v_mov_b32 v{z+r}, 0')
for j in range(4): A(f'ds_write_b128 v2, v[{z}:{z+3}] offset:{j*16384}')
A(f'v_add_u32 v{VT+6}, 65536, v2')
for j in range(2): A(f'ds_write_b128 v{VT+6}, v[{z}:{z+3}] offset:{j*16384}')
A('s_movk_i32 s16, 106')
A('v_cmp_gt_u32 s[24:25], s16, v0')
A('s_mov_b64 exec, s[24:25]')
A(f'ds_write_b128 v{VT+6}, v[{z}:{z+3}] offset:{2*16384}')
A('s_mov_b64 exec, -1')
A(f'v_mov_b32 v126, {L_SC2}')
VONE = VSH
A('s_mov_b64 exec, 1')
A(f'ds_write_b128 v126, v[{z}:{z+3}]')
A('s_mov_b64 exec, -1')
A('s_mov_b32 s30, 0xffff0000')
A(f's_mov_b32 s31, {L_CH}')
A('s_mov_b32 s35, 0xfc000000')
A(f'v_mov_b32 v{VSH}, 18')
A(f'v_mov_b32 v{VFC}, 0xfffc')
A('s_waitcnt vmcnt(3)')
for s_ in range(2):
    for k in range(9):
        ln = 2*s_ + (1 if 4 <= k < 8 else 0)
        src = TO + (k % 4 if k < 8 else 4)
        A(f'v_mov_b32_dpp v{OF(s_,k)}, v{src} quad_perm:[{ln},{ln},{ln},{ln}] row_mask:0xf bank_mask:0xf')

def third_sel(r, t, rem, skip=None, ad=None):
    if ad is None: ad = t
    r0, h0, r1, h1 = r >> 1, r & 1, (r + 1) >> 1, (r + 1) & 1
    y0, y1, q0, q1, off = t, t + 1, t + 2, t + 3, t + 4
    for s_, y, q in ((0, y0, q0), (1, y1, q1)):
        A(f'v_and_b32_sdwa v{y}, v{OF(s_,r0)}, v{VFC} {SD} src0_sel:WORD_{h0} src1_sel:DWORD')
        A(f'v_sub_u32_sdwa v{q}, v{OF(s_,r1)}, v{y} {SD} src0_sel:WORD_{h1} src1_sel:DWORD')
    A(f'v_cmp_lt_i32 s[42:43], 16, v{q0}')
    A(f'v_cmp_lt_i32 s[44:45], 16, v{q1}')
    if skip:
        A('s_or_b64 vcc, s[42:43], s[44:45]')
        if skip[1]: A('s_and_b64 vcc, vcc, s[18:19]')
        A(f's_cbranch_scc0 {skip[0]}')
    A('s_orn2_b64 vcc, s[36:37], s[42:43]')
    A('s_and_b64 vcc, vcc, s[44:45]')
    A('s_and_b64 s[42:43], s[42:43], s[44:45]')
    A(f'v_cndmask_b32 v{off}, v{VTB+2}, v4, s[42:43]')
    A(f'v_cndmask_b32 v{y0}, v{y0}, v{y1}, vcc')
    A(f'v_cndmask_b32 v{q0}, v{q0}, v{q1}, vcc')
    A(f'v_cndmask_b32 v{y1}, v{VTB}, v{VTB+1}, vcc')
    A(f'v_add_u32 v{y0}, v{y0}, v{off}')
    A(f'v_sub_u32 v{rem}, v{q0}, v{off}')
    A(f'v_lshl_add_u32 v{ad}, v{y0}, 2, v{y1}')

def pf1c(s_, r, ad):
    slot = r % 4
    r0, h0, r1, h1 = r >> 1, r & 1, (r + 1) >> 1, (r + 1) & 1
    y, d, ln = VT, VT + 2, VT + 3
    a, b = OF(s_, r0), OF(s_, r1)
    m = [MK(slot, s_, k) for k in range(3)]
    A(f'v_and_b32_sdwa v{y}, v{a}, v{VFC} {SD} src0_sel:WORD_{h0} src1_sel:DWORD')
    A(f'v_sub_u32_sdwa v{ln}, v{b}, v{a} {SD} src0_sel:WORD_{h1} src1_sel:WORD_{h0}')
    A(f'v_add_u32 v{y}, v{y}, v1')
    A(f'v_sub_u32_sdwa v{d}, v{y}, v{a} {SD} src0_sel:DWORD src1_sel:WORD_{h0}')
    A(f'v_lshl_add_u32 v{ad}, v{y}, 2, v{VTB+s_}')
    A(f'v_cmp_lt_u32 s[{m[0]}:{m[0]+1}], v{d}, v{ln}')
    A(f'v_add_u32 v{d}, 1, v{d}')
    A(f'v_cmp_lt_u32 s[{m[1]}:{m[1]+1}], v{d}, v{ln}')
    A(f'v_add_u32 v{d}, 1, v{d}')
    A(f'v_cmp_lt_u32 s[{m[2]}:{m[2]+1}], v{d}, v{ln}')
def pf1i(s_, r, ad, live=False):
    slot = r % 4
    m = [MK(slot, s_, k) for k in range(3)]
    e = EB(slot, s_)
    A(f's_or_b64 vcc, s[{m[0]}:{m[0]+1}], s[{m[1]}:{m[1]+1}]')
    A(f's_or_b64 vcc, vcc, s[{m[2]}:{m[2]+1}]')
    if live: A('s_and_b64 vcc, vcc, s[18:19]')
    A('s_or_b64 exec, vcc, 1')
    if not (OPT['skip_pf'] and INLOOP[0]): A(f'buffer_load_dwordx4 v[{e}:{e+3}], v{ad}, s[{S_WS}:{S_WS+3}], 0 offen {OPT["ld_ent"]}')
def pf3c(r, ad, live=False):
    slot = r % 4
    m = MK(slot, 2, 0)
    sk = newlab('Q_T')
    A(f's_mov_b64 s[{m}:{m+1}], 0')
    third_sel(r, VT, VRM + slot, (sk, live), ad)
    A(f'v_cmp_lt_i32 s[{m}:{m+1}], 0, v{VRM+slot}')
    L(sk)
def pf3i(r, ad):
    slot = r % 4
    m = MK(slot, 2, 0); e = EB(slot, 2)
    sk = newlab('Q_T')
    A(f's_mov_b64 exec, s[{m}:{m+1}]')
    A(f's_cbranch_execz {sk}')
    A(f'buffer_load_dwordx4 v[{e}:{e+3}], v{ad}, s[{S_WS}:{S_WS+3}], 0 offen {OPT["ld_ent"]}')
    L(sk)
def pf1(s_, r, live=False):
    A('s_mov_b64 exec, -1'); pf1c(s_, r, VA); pf1i(s_, r, VA, live)
def pf3(r, live=False):
    A('s_mov_b64 exec, -1'); pf3c(r, VT, live); pf3i(r, VT)
def wait3(r, n, extra=''):
    m3 = MK(r % 4, 2, 0)
    w1 = newlab('Q_W'); w2 = newlab('Q_W')
    A(f's_cmp_eq_u64 s[{m3}:{m3+1}], 0')
    A(f's_cbranch_scc1 {w1}')
    A(f's_waitcnt vmcnt({n+1}){extra}')
    A(f's_branch {w2}')
    L(w1)
    A(f's_waitcnt vmcnt({n}){extra}')
    L(w2)

def gath1(w, g):
    A(f'v_bfe_u32 v{g}, v{w}, 0, 13')
    A(f'v_lshl_add_u32 v{g}, v{g}, 3, s31')
    if not OPT['skip_g']: A(f'ds_read_b64 v[{g}:{g+1}], v{g}')

def scat1(w, xr, e, g):
    x, ad = VT, VT + 1
    p0, p2 = VT + 2, VT + 4
    A(f'v_lshlrev_b32_sdwa v{x}, v{VSH}, v{xr} {SD} src0_sel:DWORD src1_sel:BYTE_{e}')
    A(f'v_lshlrev_b32 v{p2}, 16, v{g+1}')
    A(f'v_and_b32 v{p2+1}, s30, v{g+1}')
    A(f'v_and_or_b32 v{x}, v{w}, s35, v{x}')
    A(f'v_lshrrev_b32 v{ad}, 10, v{w}')
    A(f'v_lshlrev_b32 v{p0}, 16, v{g}')
    A(f'v_and_b32 v{p0+1}, s30, v{g}')
    for r in (p2, p2 + 1, p0, p0 + 1):
        A(f'v_fma_mix_f32 v{r}, v{r}, v{x}, s{26 if r == p0 else 28} op_sel:[0,1,0] op_sel_hi:[0,1,0]')
        if r == p2: A(f'v_and_b32 v{ad}, 0xfff8, v{ad}')
        if r == p2 + 1: A(f'ds_add_u64 v{ad}, v[{p2}:{p2+1}] offset:{L_ARB}')
    A(f'v_add_u32 v{p0}, s34, v{p0}')
    A(f'ds_add_u64 v{ad}, v[{p0}:{p0+1}]')

def Gset(r, s_):
    slot = r % 4
    for e in range(3):
        m = MK(slot, s_, e)
        A(f's_mov_b64 exec, s[{m}:{m+1}]')
        gath1(EB(slot, s_) + e, G(s_, e))
def Gthird(r):
    slot = r % 4
    done = newlab('Q_GI')
    m = MK(slot, 2, 0)
    A(f's_mov_b64 exec, s[{m}:{m+1}]')
    A(f's_cbranch_execz {done}')
    gath1(EB(slot, 2), G(2, 0))
    rem = VRM + slot
    A(f'v_cmp_lt_i32 s[38:39], 1, v{rem}')
    A(f'v_cmp_lt_i32 s[40:41], 2, v{rem}')
    A(f'v_cmp_lt_i32 s[42:43], 8, v{rem}')
    for e in (1, 2):
        A(f's_mov_b64 exec, s[{36+2*e}:{37+2*e}]')
        A(f's_cbranch_execz {done}')
        gath1(EB(slot, 2) + e, G(2, e))
    A('s_mov_b64 exec, s[42:43]')
    A(f's_cbranch_execz {done}')
    A('s_mov_b64 exec, -1')
    third_sel(r, VT, rem)
    ad, stp, w, xr = VT + 6, VT + 7, VT + 8, VT + 9
    A(f'v_mov_b32 v{ad}, v{VT}')
    A(f'v_cndmask_b32 v{stp}, 16, 8, s[42:43]')
    lp = newlab('Q_SL')
    L(lp)
    A(f'v_sub_u32 v{rem}, v{rem}, v{stp}')
    A(f'v_lshl_add_u32 v{ad}, v{stp}, 2, v{ad}')
    A(f'v_cmpx_lt_i32 vcc, 0, v{rem}')
    A(f's_cbranch_execz {done}')
    A('s_mov_b64 s[44:45], exec')
    nx = newlab('Q_SN')
    for e in range(3):
        A(f'buffer_load_dword v{w}, v{ad}, s[{S_WS}:{S_WS+3}], 0 offen offset:{4*e}')
        A(f'buffer_load_dword v{xr}, v{ad}, s[{S_WS}:{S_WS+3}], 0 offen offset:12')
        A('s_waitcnt vmcnt(0)')
        A(f'v_bfe_u32 v{VOV}, v{w}, 0, 13')
        A(f'v_lshl_add_u32 v{VOV}, v{VOV}, 3, s31')
        A(f'ds_read_b64 v[{VOV}:{VOV+1}], v{VOV}')
        A('s_waitcnt lgkmcnt(0)')
        scat1(w, xr, e, VOV)
        if e < 2:
            A(f'v_cmpx_lt_i32 vcc, {1+e}, v{rem}')
            A(f's_cbranch_execz {nx}')
    L(nx)
    A('s_mov_b64 exec, s[44:45]')
    A(f's_branch {lp}')
    L(done)
def Sset(r, s_, hooks={}):
    slot = r % 4
    done = newlab('Q_S')
    for e in range(3):
        if e in hooks: hooks[e]()
        m = MK(slot, s_, e)
        A(f's_mov_b64 exec, s[{m}:{m+1}]')
        if s_ == 2: A(f's_cbranch_execz {done}')
        b = EB(slot, s_)
        if not OPT['skip_s']: scat1(b + e, b + 3, e, G(s_, e))
    L(done)

pf1(0, 0); pf1(1, 0); pf3(0); pf1(0, 1)
A('s_mov_b64 exec, -1')
A(f'v_max_u32_sdwa v{VT+2}, v{VT+9}, v{VT+9} {SD} src0_sel:BYTE_0 src1_sel:BYTE_1')
A(f'v_max_u32_sdwa v{VT+3}, v{VT+9}, v{VT+9} {SD} src0_sel:BYTE_2 src1_sel:BYTE_3')
A(f'v_max_u32 v{VT+9}, v{VT+2}, v{VT+3}')
dpp_scan('v_max_u32', VT + 9)
A('s_nop 1')
A(f'v_readlane_b32 s29, v{VT+9}, 63')
for s_ in range(2):
    A(f'v_and_b32 v{VT+2}, 0xffff, v{OF(s_,0)}')
    A(f'v_lshrrev_b32 v{VT+3}, 2, v{VT+2}')
    A(f'v_sub_u32 v{VT+2}, v{VT+2}, v{VT+3}')
    A(f'v_lshrrev_b32 v{VT+3}, 2, v{OF(s_,8)}')
    A(f'v_add_u32 v{VT+2}, v{VT+2}, v{VT+3}')
    A(f'v_sub_u32 v{VT+4+s_}, v{VT+2}, v{OF(s_,8)}')
A(f'v_add_u32 v{VT+2}, v{VT+4}, v{VT+5}')
dpp_scan('v_add_u32', VT + 2)
A('s_nop 1')
A(f'v_readlane_b32 s32, v{VT+2}, 63')
A('s_min_u32 s27, s29, 249')
A('s_add_u32 s28, s27, 2')
A('s_lshl_b32 s28, s28, 23')
A('s_or_b32 s28, s28, 0x400000')
A('s_add_u32 s26, s27, 5')
A('s_lshl_b32 s26, s26, 23')
A('s_sub_u32 s34, 0x4000000, s26')
A('s_or_b32 s26, s26, 0x80000')
A('s_waitcnt vmcnt(3)')
fill()
chall()
A('s_mov_b32 s33, 0')
A('s_mov_b64 s[18:19], -1')
A('s_waitcnt vmcnt(4) lgkmcnt(0)')
stamp2()
A('s_barrier')
Gset(0, 0); Gset(0, 1); Gthird(0)
pf1(1, 1); pf1(1, 2); pf3(1)
wait3(1, 2, ' lgkmcnt(0)')
if OPT['skip_pf']:
    pf1(0, 2); pf1(0, 3); pf1(1, 3); A('s_waitcnt vmcnt(0)')
INLOOP[0] = 1
L('Q_LOOP')
for r in range(4):
    ps = r & 1
    if r == 1: stamp2()
    A('s_barrier')
    if r == 1: stamp2()
    lastr = newlab('Q_SK')
    if r == 3:
        A('s_cmp_eq_u32 s33, 3')
        A(f's_cbranch_scc1 Q_LAST')
    fill()
    st = OPT['struct']
    if st == 0:
        chall(r >= 2)
        Sset(r, 0)
        A('s_waitcnt vmcnt(3) lgkmcnt(0)')
        if r == 1: stamp2()
        A('s_barrier')
        if r == 1: stamp2()
        Gset(r + 1, 0)
        Sset(r, 1, {1: lambda: pf1(ps, r + 2, r + 2 >= 4), 2: lambda: pf1(ps, r + 3, r + 3 >= 4)})
        Gset(r + 1, 1)
        Sset(r, 2)
        Gthird(r + 1)
        pf3(r + 2, r + 2 >= 4)
    elif st == 1:
        chall(r >= 2)
        Sset(r, 0)
        Sset(r, 2)
        A('s_waitcnt vmcnt(3) lgkmcnt(0)')
        A('s_barrier')
        Gset(r + 1, 0)
        Gthird(r + 1)
        Sset(r, 1)
        Gset(r + 1, 1)
        pf1(ps, r + 2, r + 2 >= 4); pf1(ps, r + 3, r + 3 >= 4)
        pf3(r + 2, r + 2 >= 4)
    elif st == 2:
        chall(r >= 2)
        Sset(r, 0)
        Sset(r, 1)
        Sset(r, 2)
        A('s_waitcnt vmcnt(3) lgkmcnt(0)')
        A('s_barrier')
        Gset(r + 1, 0)
        Gset(r + 1, 1)
        Gthird(r + 1)
        pf1(ps, r + 2, r + 2 >= 4); pf1(ps, r + 3, r + 3 >= 4)
        pf3(r + 2, r + 2 >= 4)
    if r == 3:
        A('s_mov_b64 exec, -1')
        A('s_add_u32 s33, s33, 1')
        A('s_cmp_eq_u32 s33, 3')
        A('s_cselect_b64 s[18:19], 1, -1')
        for s_ in range(2):
            for k in range(0, 7): A(f'v_mov_b32 v{OF(s_,k)}, v{OF(s_,k+2)}')
    wait3(r + 2, 2, ' lgkmcnt(0)')
A('s_branch Q_LOOP')
L('Q_LAST')
Sset(3, 0)
Sset(3, 1)
Sset(3, 2)
A('s_mov_b64 exec, -1')
A('s_waitcnt lgkmcnt(0)')
stamp2()
A('s_barrier')
A('v_lshlrev_b32 v3, 3, v0')
RA = 8
for k in range(7):
    if k == 6: A('s_mov_b64 exec, s[24:25]')
    A(f'ds_read_b64 v[{RA+4*k}:{RA+4*k+1}], v3 offset:{k*8192}')
A('s_mov_b64 exec, -1')
A(f'v_add_u32 v4, {L_ARB}, v3')
for k in range(7):
    if k == 6: A('s_mov_b64 exec, s[24:25]')
    A(f'ds_read_b64 v[{RA+4*k+2}:{RA+4*k+3}], v4 offset:{k*8192}')
A('s_mov_b64 exec, -1')
A('s_and_b32 s16, s3, 3'); A(f's_mul_i32 s16, s16, {E*8}')
A('s_lshr_b32 s17, s3, 2'); A(f's_mul_i32 s17, s17, {CH*8}')
A('s_add_u32 s16, s16, s17'); A(f's_add_u32 s16, s16, {PART_BASE:#x}')
A('v_mov_b32 v5, 0')
A(f's_mov_b32 s36, {f32bits(2.0**-10):#x}')
A(f's_mov_b32 s37, {f32bits(2.0**-13):#x}')
A('s_mov_b32 s38, s37'); A('s_mov_b32 s39, s37')
A('s_sub_i32 s40, s27, 135')
A('v_mov_b32 v6, 1.0')
A('v_ldexp_f32 v6, v6, s40')
A('s_lshl_b32 s41, s3, 2')
A(f's_add_u32 s41, s41, {SCL_BASE:#x}')
A('v_cmp_eq_u32 vcc, 0, v0')
A('s_mov_b64 exec, vcc')
A(f'buffer_store_dword v6, v5, s[{S_WS}:{S_WS+3}], s41 offen')
A('s_mov_b64 exec, -1')
X = 40
for k in range(7):
    a0, a1, b0, b1 = RA + 4*k, RA + 4*k + 1, RA + 4*k + 2, RA + 4*k + 3
    c = X; P = X + 2; t = X + 4
    A(f's_waitcnt lgkmcnt({max(0,5-k)})')
    if k == 6: A('s_mov_b64 exec, s[24:25]')
    A(f'v_lshrrev_b32 v{c}, 26, v{a0}')
    A(f'v_and_b32 v{a0}, 0x3ffffff, v{a0}')
    A(f'v_mad_u64_u32 v[{P}:{P+1}], vcc, v{c}, s28, 0')
    A(f'v_lshlrev_b32 v{t}, 19, v{c}')
    A(f'v_add_u32 v5, v5, v{c}')
    A(f'v_sub_u32 v{a0}, v{a0}, v{t}')
    A(f'v_sub_u32 v{a1}, v{a1}, v{P}')
    A(f'v_add_u32 v{P+1}, v{P+1}, v{P}')
    A(f'v_sub_co_u32 v{b0}, vcc, v{b0}, v{P}')
    A(f'v_cvt_f32_i32 v{a0}, v{a0}')
    A(f'v_cvt_f32_i32 v{a1}, v{a1}')
    A(f'v_subb_co_u32 v{b1}, vcc, v{b1}, v{P+1}, vcc')
    A(f'v_ashrrev_i32 v{t}, 31, v{b0}')
    A(f'v_cvt_f32_i32 v{b0}, v{b0}')
    A(f'v_sub_u32 v{b1}, v{b1}, v{t}')
    A(f'v_pk_mul_f32 v[{a0}:{a1}], v[{a0}:{a1}], s[36:37]')
    A(f'v_cvt_f32_i32 v{b1}, v{b1}')
    A(f'v_cvt_pk_f16_f32 v{a0}, v{a0}, v{a1}')
    A(f'v_pk_mul_f32 v[{b0}:{b1}], v[{b0}:{b1}], s[38:39]')
    A(f'v_cvt_pk_f16_f32 v{a1}, v{b0}, v{b1}')
    A(f'buffer_store_dwordx2 v[{a0}:{a1}], v3, s[{S_WS}:{S_WS+3}], s16 offen {OPT["st_part"]}')
    A('s_add_u32 s16, s16, 8192')
A('s_mov_b64 exec, -1')
dpp_scan('v_add_u32', 5)
A('s_nop 1')
A('v_readlane_b32 s42, v5, 63')
A('s_nop 3')
A('s_lshl_b32 s42, s42, 2')
A('s_add_u32 s42, s42, s32')
A('v_mov_b32 v6, s42')
A('v_mov_b32 v7, s32')
A('s_mov_b64 exec, 1')
A('ds_add_u32 v126, v6')
A('ds_sub_u32 v126, v7 offset:4')
A('s_mov_b64 exec, -1')
A('s_waitcnt lgkmcnt(0)')
A('s_barrier')
A('ds_read_b64 v[6:7], v126')
A('s_waitcnt lgkmcnt(0)')
A('v_readfirstlane_b32 s42, v6')
A('v_readfirstlane_b32 s43, v7')
A('s_nop 3')
if OPT['forcefb']: A('s_mov_b32 s42, 1')
A('s_cmp_gt_u32 s29, 249')
A('s_cselect_b32 s42, 1, s42')
A('s_cmp_eq_u32 s42, 0')
A('s_cbranch_scc1 Q_FIN')
A('s_waitcnt vmcnt(0)')
A('s_min_u32 s27, s29, 254')
A('s_add_u32 s45, s27, 923')
A('s_lshl_b32 s45, s45, 20')
A('s_or_b32 s45, s45, 0x80000')
A('s_mov_b32 s44, 0')
A('s_lshr_b32 s43, s43, 2')
A('s_flbit_i32_b32 s46, s43')
A('s_max_i32 s46, s46, 0')
A('s_sub_u32 s46, 32, s46')
A('s_sub_i32 s47, -11, s46')
A('s_add_u32 s40, s27, s46')
A('s_sub_i32 s40, s40, 141')
A('v_mov_b32 v6, 1.0')
A('v_ldexp_f32 v6, v6, s40')
A('v_mov_b32 v5, 0')
A('v_cmp_eq_u32 vcc, 0, v0')
A('s_mov_b64 exec, vcc')
A(f'buffer_store_dword v6, v5, s[{S_WS}:{S_WS+3}], s41 offen')
A('s_mov_b64 exec, -1')
A('v_lshrrev_b32 v8, 1, v0')
A(f'v_mul_u32_u24 v9, {OFS}, v8')
A(f's_mov_b32 s16, {RS}')
A('v_mul_lo_u32 v8, v8, s16')
A('v_and_b32 v10, 1, v0')
for r in range(12, 16): A(f'v_mov_b32 v{r}, 0')
A('v_add_u32 v11, 65536, v2')
A('s_mov_b32 s48, 0')
L('Q_FH')
A('s_barrier')
for j in range(4): A(f'ds_write_b128 v2, v[12:15] offset:{j*16384}')
for j in range(2): A(f'ds_write_b128 v11, v[12:15] offset:{j*16384}')
A('s_mov_b64 exec, s[24:25]')
A(f'ds_write_b128 v11, v[12:15] offset:{2*16384}')
A('s_mov_b64 exec, -1')
A('s_waitcnt lgkmcnt(0)')
A('s_barrier')
A('s_lshl_b32 s49, s3, 5')
A(f's_add_u32 s49, s49, {OFF_BASE:#x}')
A('s_and_b32 s50, s3, 3')
A(f's_mul_i32 s50, s50, {16*CH*8}')
A('s_mov_b32 s51, 0')
L('Q_FR')
A(f'buffer_load_ushort v16, v9, s[{S_WS}:{S_WS+3}], s49 offen')
A(f'buffer_load_ushort v17, v9, s[{S_WS}:{S_WS+3}], s49 offen offset:2')
A('s_waitcnt vmcnt(0)')
A('v_add_u32 v16, v16, v10')
L('Q_FI')
A('v_cmp_lt_u32 vcc, v16, v17')
A('s_and_b64 exec, exec, vcc')
A('s_cbranch_execz Q_FRN')
A('s_mov_b64 s[52:53], exec')
A('v_and_b32 v18, 3, v16')
A('v_lshl_add_u32 v19, v16, 2, v8')
A('v_or_b32 v20, 3, v16')
A('v_lshl_add_u32 v20, v20, 2, v8')
A('v_add_u32 v20, v20, v18')
A(f'buffer_load_dword v21, v19, s[{S_WS}:{S_WS+3}], 0 offen')
A(f'buffer_load_ubyte v22, v20, s[{S_WS}:{S_WS+3}], 0 offen')
A('s_waitcnt vmcnt(0)')
A('v_bfe_u32 v23, v21, 13, 13')
A('v_subrev_u32 v23, s48, v23')
A('s_movk_i32 s16, 3125')
A('v_cmp_gt_u32 vcc, s16, v23')
A('v_cmp_ne_u32 s[54:55], 3, v18')
A('s_and_b64 vcc, vcc, s[54:55]')
A('v_bfe_u32 v24, v21, 0, 13')
A('v_lshlrev_b32 v24, 3, v24')
A('s_and_b64 exec, exec, vcc')
A('s_cbranch_execz Q_FIN2')
A(f'buffer_load_dwordx2 v[26:27], v24, s[{S_M}:{S_M+3}], s50 offen')
A('v_lshlrev_b32 v22, 2, v22')
A('v_lshrrev_b32 v25, 16, v21')
A('v_and_b32 v25, 0xfc00, v25')
A('v_or_b32 v25, v25, v22')
A('v_cvt_f32_f16 v25, v25')
A('v_cvt_f64_f32 v[28:29], v25')
A('v_lshlrev_b32 v23, 3, v23')
A('v_add_u32 v38, 50000, v23')
A('s_waitcnt vmcnt(0)')
A('v_lshlrev_b32 v30, 16, v26'); A('v_and_b32 v32, s30, v26')
A('v_lshlrev_b32 v34, 16, v27'); A('v_and_b32 v36, s30, v27')
for j, r in enumerate((30, 32, 34, 36)):
    A(f'v_cvt_f64_f32 v[{r}:{r+1}], v{r}')
    A(f'v_fma_f64 v[{r}:{r+1}], v[{r}:{r+1}], v[28:29], s[44:45]')
    A(f'ds_add_u64 v{23 if j < 2 else 38}, v[{r}:{r+1}] offset:{(j & 1) * 25000}')
L('Q_FIN2')
A('s_mov_b64 exec, s[52:53]')
A('v_add_u32 v16, 2, v16')
A('s_branch Q_FI')
L('Q_FRN')
A('s_mov_b64 exec, -1')
A('s_add_u32 s49, s49, 2')
A(f's_add_u32 s50, s50, {CH*8}')
A('s_add_u32 s51, s51, 1')
A('s_cmp_lt_u32 s51, 16')
A('s_cbranch_scc1 Q_FR')
A('s_waitcnt lgkmcnt(0)')
A('s_barrier')
A('s_and_b32 s16, s3, 3'); A(f's_mul_i32 s16, s16, {E*8}')
A('s_lshr_b32 s17, s3, 2'); A(f's_mul_i32 s17, s17, {CH*8}')
A('s_add_u32 s16, s16, s17'); A(f's_add_u32 s16, s16, {PART_BASE:#x}')
A('s_lshl_b32 s17, s48, 3'); A('s_add_u32 s16, s16, s17')
A('s_mov_b32 s52, 0'); A('s_mov_b32 s53, 0x41f00000')
A('v_mov_b32 v16, v3')
L('Q_FC')
A('s_movk_i32 s17, 25000')
A('v_cmp_gt_u32 vcc, s17, v16')
A('s_and_b64 exec, exec, vcc')
A('s_cbranch_execz Q_FCD')
A('v_add_u32 v17, 50000, v16')
for j in range(4):
    A(f'ds_read_b64 v[{18+2*j}:{19+2*j}], v{16 if j < 2 else 17} offset:{(j & 1) * 25000}')
A('s_waitcnt lgkmcnt(0)')
for j in range(4):
    lo, hi = 18 + 2*j, 19 + 2*j
    A(f'v_bfe_i32 v{hi}, v{hi}, 0, 19')
    A(f'v_cvt_f64_u32 v[26:27], v{lo}')
    A(f'v_cvt_f64_i32 v[28:29], v{hi}')
    A('v_fma_f64 v[26:27], v[28:29], s[52:53], v[26:27]')
    A('v_ldexp_f64 v[26:27], v[26:27], s47')
    A(f'v_cvt_f32_f64 v{30+j}, v[26:27]')
A('v_cvt_pk_f16_f32 v34, v30, v31')
A('v_cvt_pk_f16_f32 v35, v32, v33')
A(f'buffer_store_dwordx2 v[34:35], v16, s[{S_WS}:{S_WS+3}], s16 offen')
A('v_add_u32 v16, 8192, v16')
A('s_branch Q_FC')
L('Q_FCD')
A('s_mov_b64 exec, -1')
A('s_add_u32 s48, s48, 3125')
A('s_cmp_lt_u32 s48, 6250')
A('s_cbranch_scc1 Q_FH')
L('Q_FIN')
stamp2()
if OPT['stamp2'] >= 0:
    A('s_waitcnt vmcnt(0)')
    stamp2()
    A('v_readfirstlane_b32 s54, v0')
    A('s_nop 3')
    A(f's_cmp_lg_u32 s2, {OPT["stamp2"]}')
    A('s_cbranch_scc1 Q_END')
    A(f's_cmp_lg_u32 s54, {64*OPT.get("swave", 0)}')
    A('s_cbranch_scc1 Q_END')
    A('s_load_dwordx2 s[4:5], s[0:1], 96')
    A('s_waitcnt lgkmcnt(0)')
    srd(72, 4, 256)
    A('v_readlane_b32 s54, v127, 2')
    A('v_and_b32 v4, 63, v0')
    A('v_lshlrev_b32 v4, 2, v4')
    A('v_subrev_u32 v127, s54, v127')
    A('buffer_store_dword v127, v4, s[72:75], 0 offen')
abs_end(127, 64, 1, 16)
L('Q_END')
A('s_endpgm')

khead('fin_kernel')
A(f's_cmp_ge_u32 s2, {G3}')
A('s_cbranch_scc1 F_END')
abs_start(83)
A('s_load_dwordx2 s[4:5], s[0:1], 0')
A('s_load_dwordx2 s[6:7], s[0:1], 104')
A('s_load_dwordx2 s[8:9], s[0:1], 24')
A('s_load_dwordx2 s[10:11], s[0:1], 88')
A('s_load_dwordx2 s[96:97], s[0:1], 40')
A('s_load_dwordx4 s[32:35], s[0:1], 56')
A('s_load_dwordx4 s[28:31], s[0:1], 72')
S_M, S_WS, S_DIST, S_O = 12, 16, 20, 24
A('s_lshl_b32 s3, s2, 9')
A('s_waitcnt lgkmcnt(0)')
A('s_load_dwordx4 s[40:43], s[96:97], 0')
A('s_load_dwordx16 s[44:59], s[32:33], 0')
A('s_load_dwordx16 s[60:75], s[34:35], 0')
A('s_load_dwordx8 s[76:83], s[28:29], 0')
A('s_load_dwordx8 s[84:91], s[30:31], 0')
srd(S_M, 4, E * 8); srd(S_WS, 6, WS_BYTES); srd(S_DIST, 8, E * 2); srd(S_O, 10, E * 8)
A('s_mov_b32 s38, 0xffff0000')
VB = 2
def R(i, n): return VB + 40 * i + n
for i in range(2):
    e, t = R(i, 1), R(i, 2)
    A(f'v_add_u32 v{e}, s3, v0')
    if i: A(f'v_add_u32 v{e}, 256, v{e}')
    A(f'v_lshlrev_b32 v{t}, 1, v{e}')
    A(f'buffer_load_ushort v{R(i,3)}, v{t}, s[{S_DIST}:{S_DIST+3}], 0 offen')
for i in range(2):
    e, t = R(i, 1), R(i, 2)
    A(f'v_min_u32 v{t}, {E-1}, v{e}')
    A(f'v_lshlrev_b32 v{R(i,0)}, 3, v{t}')
    A(f'v_mul_hi_u32_u24 v{t}, {MAGIC_DIV:#x}, v{t}')
    A(f'v_lshlrev_b32 v{t}, 4, v{t}')
    A(f's_mov_b32 s39, {SCL_BASE:#x}')
    A(f'buffer_load_dwordx4 v[{R(i,6)}:{R(i,9)}], v{t}, s[{S_WS}:{S_WS+3}], s39 offen')
    for p in range(4):
        A(f's_mov_b32 s39, {PART_BASE + p*E*8:#x}')
        A(f'buffer_load_dwordx2 v[{R(i,32+2*p)}:{R(i,33+2*p)}], v{R(i,0)}, s[{S_WS}:{S_WS+3}], s39 offen {OPT["ld_part"]}')
    A(f'v_lshlrev_b32 v{e}, 3, v{e}')
    A(f'buffer_load_dwordx2 v[{R(i,4)}:{R(i,5)}], v{e}, s[{S_M}:{S_M+3}], 0 offen')
def sw(base, idx, dst):
    s = base + idx // 2
    if idx & 1: A(f's_and_b32 s{dst}, s{s}, 0xffff0000')
    else: A(f's_lshl_b32 s{dst}, s{s}, 16')
def rnd2(a, b, t):
    A(f'v_cvt_pk_bf16_f32 v{t}, v{a}, v{b}')
    A(f'v_lshlrev_b32 v{a}, 16, v{t}')
    A(f'v_and_b32 v{b}, s38, v{t}')
A('s_waitcnt vmcnt(12) lgkmcnt(0)')
A(f's_mov_b32 s94, {f32bits(-10.0):#x}')
A(f's_mov_b32 s95, {f32bits(math.log2(math.e)):#x}')
for i in range(2): A(f'v_lshlrev_b32 v{R(i,3)}, 16, v{R(i,3)}')
for r in range(0, 8, 2):
    sw(40, r, 92); sw(40, r + 1, 93)
    for i in range(2):
        a, b, t = R(i, 14 + r), R(i, 15 + r), R(i, 2)
        A(f'v_subrev_f32 v{a}, s92, v{R(i,3)}')
        A(f'v_subrev_f32 v{b}, s93, v{R(i,3)}')
        rnd2(a, b, t)
        A(f'v_mul_f32 v{a}, v{a}, v{a}')
        A(f'v_mul_f32 v{b}, v{b}, v{b}')
        rnd2(a, b, t)
        A(f'v_mul_f32 v{a}, s94, v{a}')
        A(f'v_mul_f32 v{b}, s94, v{b}')
        rnd2(a, b, t)
        A(f'v_mul_f32 v{a}, s95, v{a}')
        A(f'v_mul_f32 v{b}, s95, v{b}')
        A(f'v_exp_f32 v{a}, v{a}')
        A(f'v_exp_f32 v{b}, v{b}')
        A('s_nop 0')
        rnd2(a, b, t)
for base, dst in ((60, 22), (44, 26)):
    for d in range(4):
        for r in range(8):
            sw(base, r*4 + d, 92)
            for i in range(2):
                if r == 0: A(f'v_mul_f32 v{R(i,dst+d)}, s92, v{R(i,14+r)}')
                else: A(f'v_fmac_f32 v{R(i,dst+d)}, s92, v{R(i,14+r)}')
A('s_waitcnt vmcnt(0)')
for i in range(2):
    for d in range(4):
        for p in range(4):
            c = '0' if p == 0 else f'v{R(i,14+d)}'
            A(f'v_fma_mix_f32 v{R(i,14+d)}, v{R(i,32+2*p+d//2)}, v{R(i,6+p)}, {c} op_sel:[{d&1},0,0] op_sel_hi:[1,0,0]')
for d in range(4):
    for k in range(4):
        sw(76, k*4 + d, 92)
        for i in range(2):
            if k == 0: A(f'v_mul_f32 v{R(i,10+d)}, s92, v{R(i,14+k)}')
            else: A(f'v_fmac_f32 v{R(i,10+d)}, s92, v{R(i,14+k)}')
for i in range(2):
    for d in range(4):
        A(f'v_mul_f32 v{R(i,10+d)}, v{R(i,10+d)}, v{R(i,22+d)}')
    rnd2(R(i,10), R(i,11), R(i,2)); rnd2(R(i,12), R(i,13), R(i,2))
    rnd2(R(i,26), R(i,27), R(i,2)); rnd2(R(i,28), R(i,29), R(i,2))
for d in range(4):
    for k in range(4):
        sw(84, k*4 + d, 92)
        for i in range(2):
            if k == 0: A(f'v_mul_f32 v{R(i,22+d)}, s92, v{R(i,10+k)}')
            else: A(f'v_fmac_f32 v{R(i,22+d)}, s92, v{R(i,10+k)}')
for i in range(2):
    rnd2(R(i,22), R(i,23), R(i,2)); rnd2(R(i,24), R(i,25), R(i,2))
    for d in range(4):
        A(f'v_mul_f32 v{R(i,22+d)}, v{R(i,22+d)}, v{R(i,26+d)}')
    rnd2(R(i,22), R(i,23), R(i,2)); rnd2(R(i,24), R(i,25), R(i,2))
    A(f'v_lshlrev_b32 v{R(i,26)}, 16, v{R(i,4)}')
    A(f'v_and_b32 v{R(i,27)}, s38, v{R(i,4)}')
    A(f'v_lshlrev_b32 v{R(i,28)}, 16, v{R(i,5)}')
    A(f'v_and_b32 v{R(i,29)}, s38, v{R(i,5)}')
    for d in range(4):
        A(f'v_add_f32 v{R(i,22+d)}, v{R(i,22+d)}, v{R(i,26+d)}')
    A(f'v_cvt_pk_bf16_f32 v{R(i,30)}, v{R(i,22)}, v{R(i,23)}')
    A(f'v_cvt_pk_bf16_f32 v{R(i,31)}, v{R(i,24)}, v{R(i,25)}')
    A(f'buffer_store_dwordx2 v[{R(i,30)}:{R(i,31)}], v{R(i,1)}, s[{S_O}:{S_O+3}], 0 offen')
abs_end(83, 64, 2, 4)
if OPT['abst'] == 2:
    A('s_mov_b64 exec, -1')
    A('v_readfirstlane_b32 s8, v0')
    A('s_nop 3')
    A('s_or_b32 s8, s8, s2')
    A('s_cmp_lg_u32 s8, 0')
    A('s_cbranch_scc1 F_END')
    A('s_load_dwordx2 s[4:5], s[0:1], 96')
    A('s_waitcnt lgkmcnt(0) vmcnt(0)')
    srd(68, 4, 256)
    A('v_lshrrev_b32 v1, 2, v0')
    A('v_min_u32 v1, 2, v1')
    A('v_lshlrev_b32 v1, 16, v1')
    A('v_bfe_u32 v2, v0, 1, 1')
    A(f'v_mul_u32_u24 v2, {(133*16+15)*8}, v2')
    A('v_and_b32 v3, 1, v0')
    A('v_lshl_add_u32 v1, v3, 2, v1')
    A('v_add_u32 v1, v1, v2')
    A('s_mov_b32 s7, 0xF000000')
    A('buffer_load_dword v4, v1, s[64:67], s7 offen sc1')
    A('v_lshlrev_b32 v5, 2, v0')
    A('s_waitcnt vmcnt(0)')
    A('buffer_store_dword v4, v5, s[68:71], 0 offen')
L('F_END')
A('s_endpgm')
L('CODE_END')

out.append('.section .rodata,"a"')
for name, vg in (('part_kernel', 128), ('acc_kernel', 128), ('fin_kernel', 84)):
    out.append('.p2align 6')
    out.append(f'.amdhsa_kernel {name}')
    out.append(f'  .amdhsa_next_free_vgpr {vg}')
    out.append('  .amdhsa_next_free_sgpr 102')
    out.append(f'  .amdhsa_accum_offset {vg}')
    out.append('  .amdhsa_group_segment_fixed_size 0')
    out.append('  .amdhsa_kernarg_size 112')
    out.append('  .amdhsa_user_sgpr_count 2')
    out.append('  .amdhsa_user_sgpr_kernarg_segment_ptr 1')
    out.append('  .amdhsa_system_sgpr_workgroup_id_x 1')
    out.append('  .amdhsa_float_denorm_mode_32 3')
    out.append('.end_amdhsa_kernel')
open(sys.argv[1], 'w').write('\n'.join(out) + '\n')
```

```python
import struct, sys, math

E = 400000
T = 12800000
CH = 6250
S = 25000
NTILE = 512
NBLK = (S + 2) // 3
RS = 133376
OFS = 8208
OFF_BASE = 0x4400000
MAX_BASE = 0x4C00000
SCL_BASE = 0x4C01000
PART_BASE = 0x5000000
WS_BYTES = 268435456
MAGIC_DIV = (2**32 + CH - 1) // CH
MINI = S - 6 * 4096
assert NTILE * RS <= OFF_BASE and OFF_BASE + NTILE * OFS <= MAX_BASE

OPT = dict(ld_in='nt', st_ws='sc0 sc1', ld_ent='', ld_ch='', st_part='sc0 sc1', ld_part='', NB=2, skip_s=0, skip_g=0, skip_fill=0, skip_e=0,
           stamp=-1, stamp2=-1, prio=1, ilv='2:0,3:1,4:2,5:3', pre=1, npb=1, bps=1, vpos='123456', skip_ch=0, skip_pf=0, pmap=0, cpos=0, epos=1, unpair=0, k2prio=0, pa=2, pb=2, struct=0, forcefb=0, abst=0, wsoff=0, cpf=0, ne=1, pp=0, st_mp='sc0 sc1', dst='002211111')
for a in sys.argv[2:]:
    k, v = a.split('=')
    OPT[k] = int(v) if (v.lstrip('-').isdigit() and k not in ('vpos', 'dst')) else v.replace('_', ' ')

def f32bits(x): return struct.unpack('<I', struct.pack('<f', x))[0]
out = []
def A(s): out.append('    ' + s)
def L(s): out.append(s + ':')
_lab = [0]
def newlab(p='L'):
    _lab[0] += 1
    return f'{p}_{_lab[0]}'
def srd(d, b, nbytes):
    if nbytes == WS_BYTES and OPT['wsoff']:
        off = OPT['wsoff'] << 20
        A(f's_add_u32 s{d}, s{b}, {off:#x}')
        A(f's_addc_u32 s{d+1}, s{b+1}, 0')
        A(f's_and_b32 s{d+1}, s{d+1}, 0xffff')
        A(f's_mov_b32 s{d+2}, {nbytes - off:#x}')
        A(f's_mov_b32 s{d+3}, 0x00020000')
        return
    A(f's_mov_b32 s{d}, s{b}')
    A(f's_and_b32 s{d+1}, s{b+1}, 0xffff')
    A(f's_mov_b32 s{d+2}, {nbytes:#x}')
    A(f's_mov_b32 s{d+3}, 0x00020000')
def dpp_scan(op, v):
    for sh in (1, 2, 4, 8):
        A('s_nop 1')
        A(f'{op}_dpp v{v}, v{v}, v{v} row_shr:{sh} row_mask:0xf bank_mask:0xf bound_ctrl:0')
    A('s_nop 1')
    A(f'{op}_dpp v{v}, v{v}, v{v} row_bcast:15 row_mask:0xa bank_mask:0xf')
    A('s_nop 1')
    A(f'{op}_dpp v{v}, v{v}, v{v} row_bcast:31 row_mask:0xc bank_mask:0xf')
def khead(name):
    out.append(f'.globl {name}')
    out.append('.p2align 8')
    out.append(f'.type {name},@function')
    L(name)
SD = 'dst_sel:DWORD dst_unused:UNUSED_PAD'
def abs_start(v):
    if not OPT['abst']: return
    A('s_memrealtime s[4:5]')
    A('s_waitcnt lgkmcnt(0)')
    A(f'v_mov_b32 v{v}, s4')
def abs_end(v, sr, kid, wpb):
    if not OPT['abst']: return
    A('s_mov_b64 exec, -1')
    A('s_waitcnt vmcnt(0)')
    A('s_load_dwordx2 s[4:5], s[0:1], 104')
    A('s_memrealtime s[6:7]')
    A('s_waitcnt lgkmcnt(0)')
    srd(sr, 4, WS_BYTES)
    A('v_lshrrev_b32 v1, 6, v0')
    A(f's_mul_i32 s7, s2, {wpb}')
    A('v_add_u32 v1, s7, v1')
    A('v_lshlrev_b32 v1, 3, v1')
    A(f'v_mov_b32 v2, v{v}')
    A('v_mov_b32 v3, s6')
    A(f's_mov_b32 s7, {0xF000000 + kid*65536:#x}')
    A('s_mov_b64 exec, 1')
    A(f'buffer_store_dwordx2 v[2:3], v1, s[{sr}:{sr+3}], s7 offen')

stampn = [0]
def stamp(key):
    if OPT[key] < 0: return
    n = stampn[0]; stampn[0] += 1
    A(OPT.get('clk','s_memtime').replace(' ','_') + ' s[98:99]')
    A('s_waitcnt lgkmcnt(0)')
    A(f's_mov_b32 s{76+n}, s98')
def stamp_flush(key, swave, vz, wave=0):
    if OPT[key] < 0: return
    lab = newlab('STF')
    A(f's_cmp_lg_u32 s2, {OPT[key]}')
    A(f's_cbranch_scc1 {lab}')
    A(f's_cmp_lg_u32 s{swave}, {wave}')
    A(f's_cbranch_scc1 {lab}')
    A('s_load_dwordx2 s[4:5], s[0:1], 96')
    A('s_waitcnt lgkmcnt(0)')
    srd(72, 4, 256)
    A('s_mov_b64 exec, 1')
    A(f'v_mov_b32 v{vz}, 0')
    for n in range(stampn[0]):
        A(f's_sub_u32 s98, s{76+n}, s76')
        A(f'v_mov_b32 v{vz+1}, s98')
        A(f'buffer_store_dword v{vz+1}, v{vz}, s[72:75], 0 offen offset:{4*n}')
        A('s_nop 1')
    L(lab)

L_H, L_SC, L_ST = 0, 16384, 16640
L_X = L_ST
L_W = L_X + NBLK * 4 + 8
LDS1 = L_W + NBLK * 12
assert L_W < 65536 and L_W % 16 == 0
L_ARB, L_A, L_SC2 = 50000, 50176, 150176
LDS2 = L_SC2 + 64
MP_BASE = 0x4C10000
CHS = 50176
G3 = (E + 256*OPT['ne'] - 1) // (256*OPT['ne'])

hdr = open('standalone__molecular_angular_gemnet__graph.s.ref').read().split('; Override launch')[0]
out.append(hdr.rstrip())
out.append(f'; @launch kernel=part_kernel grid=(256,1,1) block=(1024,1,1) lds={LDS1}')
out.append(f'; @launch kernel=acc_kernel grid=(256,1,1) block=(1024,1,1) lds={LDS2}')
out.append(f'; @launch kernel=fin_kernel grid=({G3},1,1) block=(256,1,1) lds=0')
out.append('.amdgcn_target "amdgcn-amd-amdhsa--gfx950"')
out.append('.text')

khead('part_kernel')
A('s_cmp_ge_u32 s2, 256')
A('s_cbranch_scc1 P_END')
abs_start(7+0) if False else abs_start(87)
A('s_load_dwordx4 s[4:7], s[0:1], 0')
A('s_load_dwordx2 s[8:9], s[0:1], 16')
A('s_load_dwordx2 s[10:11], s[0:1], 32')
A('s_load_dwordx2 s[12:13], s[0:1], 48')
A('s_load_dwordx2 s[14:15], s[0:1], 104')
S_IN, S_OUT, S_ANG, S_WS, S_M = 16, 20, 24, 28, 32
if OPT['prio']: A('s_setprio 3')
if OPT['cpf'] >= 2:
    A('s_getpc_b64 s[58:59]')
    A('v_lshlrev_b32 v48, 7, v0')
    A('v_cmp_gt_u32 vcc, 88, v0')
    A('s_and_saveexec_b64 s[56:57], vcc')
    A('s_cbranch_execz P_NOSPF')
    A('global_load_dword v87, v48, s[58:59]')
    L('P_NOSPF')
    A('s_mov_b64 exec, s[56:57]')
A('v_lshlrev_b32 v1, 4, v0')
A('v_lshlrev_b32 v2, 3, v0')
A('v_mov_b32 v3, 1')
A('v_mov_b32 v4, 0x10000')
A('v_mov_b32 v5, 0')
A('v_lshlrev_b32 v6, 2, v0')
A('v_lshlrev_b32 v7, 1, v0')
TT = 8
for r in range(4): A(f'v_mov_b32 v{TT+4+r}, 0')
A('v_readfirstlane_b32 s50, v0')
A(f'ds_write_b128 v1, v[{TT+4}:{TT+7}]')
A(f'ds_write_b32 v6, v5 offset:{L_SC}')
A(f's_movk_i32 s42, {MINI}')
A('v_cmp_gt_u32 s[40:41], s42, v0')
A('s_waitcnt lgkmcnt(0)')
A('s_load_dword s36, s[12:13], 0')
srd(S_IN, 6, T * 4); srd(S_OUT, 8, T * 4); srd(S_ANG, 10, T * 2); srd(S_WS, 14, WS_BYTES); srd(S_M, 4, E * 8)
A('s_lshr_b32 s50, s50, 6')
A(f's_mul_i32 s37, s2, {2*S*4}')
A(f's_mul_i32 s38, s2, {2*S*2}')
UA = 24
unitA = [(UA + 10*k, UA + 10*k + 4, UA + 10*k + 8) for k in range(6)] + [(84, 85, 86)]
unitB = [(88 + 10*k, 88 + 10*k + 4, 88 + 10*k + 8) for k in range(4)] + [unitA[0], unitA[1], (44, 45, 46)]
vm = []
ldf = OPT['ld_in']
def load_unit(tag, k):
    vi, vo, va = (unitA if tag == 'A' else unitB)[k]
    tile = 0 if tag == 'A' else 1
    A(f's_add_u32 s43, s37, {tile*S*4 + k*16384}')
    A(f's_add_u32 s44, s38, {tile*S*2 + k*8192}')
    if k < 6:
        A(f'buffer_load_dwordx4 v[{vo}:{vo+3}], v1, s[{S_OUT}:{S_OUT+3}], s43 offen {ldf}')
        A(f'buffer_load_dwordx4 v[{vi}:{vi+3}], v1, s[{S_IN}:{S_IN+3}], s43 offen {ldf}')
        A(f'buffer_load_dwordx2 v[{va}:{va+1}], v2, s[{S_ANG}:{S_ANG+3}], s44 offen {ldf}')
    else:
        A('s_or_b64 exec, s[40:41], 1')
        A(f'buffer_load_dword v{vo}, v6, s[{S_OUT}:{S_OUT+3}], s43 offen {ldf}')
        A(f'buffer_load_dword v{vi}, v6, s[{S_IN}:{S_IN+3}], s43 offen {ldf}')
        A(f'buffer_load_ushort v{va}, v7, s[{S_ANG}:{S_ANG+3}], s44 offen {ldf}')
        A('s_mov_b64 exec, -1')
    vm.extend([(tag, k)] * 3)
def vwait(tag):
    idx = max(i for i, t in enumerate(vm) if t == tag)
    A(f's_waitcnt vmcnt({min(len(vm)-1-idx, 63)})')
stamp('stamp')
for k in range(OPT['pre']): load_unit('A', k)
A('s_barrier')
A('s_min_u32 s39, s50, 12')
A('s_and_b32 s42, s2, 3')
A('s_mul_i32 s42, s42, 13')
A('s_add_u32 s39, s39, s42')
A('s_min_u32 s39, s39, 48')
A('s_lshl_b32 s39, s39, 10')
A('s_lshr_b32 s42, s2, 2')
A(f's_mul_i32 s45, s42, {CHS}')
A(f's_mul_i32 s42, s42, {CH*8}')
A('s_add_u32 s45, s45, s39')
A(f's_add_u32 s45, s45, {MP_BASE:#x}')
A('s_add_u32 s39, s39, s42')
A(f'v_and_b32 v{TT+4}, 0xfc, v6')
A(f'v_and_b32 v{TT+5}, 0x3f0, v1')
for k in range(4):
    A(f'buffer_load_dword v{TT+k}, v{TT+4}, s[{S_M}:{S_M+3}], s39 offen offset:{256*k}'); vm.append('M')
for k in range(OPT['pre'], 7): load_unit('A', k)
if OPT['prio']: A('s_setprio 0')
A(f's_mov_b32 s46, {f32bits(1/(2*math.pi)):#x}')
A(f's_mov_b32 s47, {f32bits(1/(2*math.pi)):#x}')
A('s_mov_b32 s48, 0xfc000000')
A('s_mov_b32 s49, 0xffff0000')
A(f's_mov_b32 s51, {(-CH) & 0xffffffff:#x}')
A('s_mov_b32 s52, 0x00020002')
A('s_mov_b32 s53, 0x55555556')
A('s_waitcnt lgkmcnt(0)')
A('s_lshl_b32 s36, s36, 16')

PT = TT + 11
def process(tag, k):
    vi0, vo0, va0 = (unitA if tag == 'A' else unitB)[k]
    inc = 3 if tag == 'A' else 4
    n = 4 if k < 6 else 1
    vwait((tag, k))
    skip = None
    if k == 6:
        skip = newlab('P_MS')
        A('s_mov_b64 exec, s[40:41]')
        A(f's_cbranch_execz {skip}')
    tj, ti, t1 = PT, PT + 1, PT + 2
    for j in range(n):
        vi, vo = vi0 + j, vo0 + j
        A(f'v_mul_hi_u32_u24 v{tj}, {MAGIC_DIV:#x}, v{vi}')
        A(f'v_mul_hi_u32_u24 v{ti}, {MAGIC_DIV:#x}, v{vo}')
        A(f'v_lshl_add_u32 v{vi}, v{vo}, 13, v{vi}')
        A(f'v_lshl_add_u32 v{vo}, v{ti}, 6, v{tj}')
        A(f'v_lshl_add_u32 v{t1}, v{ti}, 13, v{tj}')
        A(f'v_lshlrev_b32 v{vo}, 2, v{vo}')
        A(f'v_mad_i32_i24 v{vi}, v{t1}, s51, v{vi}')
        A(f'ds_add_u32 v{vo}, v{inc} offset:{L_H}')
    a0, a1 = PT + 3, PT + 4
    assert a0 % 2 == 0
    npair = (n + 1) // 2
    nf = newlab('P_NF')
    A('s_cmp_eq_u32 s36, 0x3f800000')
    A(f's_cbranch_scc1 {nf}')
    for p in range(npair):
        va = va0 + p
        A(f'v_lshlrev_b32 v{a0}, 16, v{va}')
        A(f'v_and_b32 v{a1}, s49, v{va}')
        A(f'v_mul_f32 v{a0}, s36, v{a0}')
        A(f'v_mul_f32 v{a1}, s36, v{a1}')
        A(f'v_cvt_pk_bf16_f32 v{va}, v{a0}, v{a1}')
    L(nf)
    for p in range(npair):
        va = va0 + p
        A(f'v_lshlrev_b32 v{a0}, 16, v{va}')
        A(f'v_and_b32 v{a1}, s49, v{va}')
        A(f'v_pk_mul_f32 v[{a0}:{a1}], v[{a0}:{a1}], s[46:47]')
        A(f'v_fract_f32 v{a0}, v{a0}')
        A(f'v_fract_f32 v{a1}, v{a1}')
        A(f'v_cos_f32 v{a0}, v{a0}')
        A(f'v_cos_f32 v{a1}, v{a1}')
        A('s_nop 0')
        A(f'v_cvt_pk_f16_f32 v{va}, v{a0}, v{a1}')
        A(f'v_pk_add_u16 v{va}, v{va}, s52')
        e0, e1 = 2*p, 2*p + 1
        A(f'v_lshlrev_b32 v{a0}, 16, v{va}')
        if e1 < n: A(f'v_and_or_b32 v{vi0+e1}, v{va}, s48, v{vi0+e1}')
        A(f'v_and_or_b32 v{vi0+e0}, v{a0}, s48, v{vi0+e0}')
        A(f'v_lshrrev_b32 v{va}, 2, v{va}')
    if k == 6:
        L(skip)
        A('s_mov_b64 exec, -1')

def maxm():
    vwait('M')
    M = TT + 6
    A('s_mov_b32 s42, 0x7fff7fff')
    for j in range(4): A(f'v_and_b32 v{M+j}, s42, v{TT+j}')
    A(f'v_pk_max_u16 v{M}, v{M}, v{M+2}')
    A(f'v_pk_max_u16 v{M+1}, v{M+1}, v{M+3}')
    A(f'v_pk_max_u16 v{M}, v{M}, v{M+1}')
    A(f'v_lshrrev_b32 v{M+1}, 16, v{M}')
    A(f'v_and_b32 v{M}, 0xffff, v{M}')
    A(f'v_max_u32 v{M}, v{M}, v{M+1}')
    dpp_scan('v_max_u32', M)
    A('s_nop 1')
    A(f'v_readlane_b32 s42, v{M}, 63')
    A('s_nop 1')
    A(f'v_mov_b32 v{M}, s42')
    A('s_mov_b64 exec, 1')
    A(f'ds_max_u32 v5, v{M} offset:{L_SC+128}')
    A('s_mov_b64 exec, -1')
def mpload():
    A('v_and_b32 v47, 0xfc, v6')
    for k in range(4):
        A(f'buffer_load_dword v{84+k}, v47, s[{S_M}:{S_M+3}], s39 offen offset:{256*k}'); vm.append('M2')
def mpstore():
    vwait('M2')
    A('v_and_b32 v47, 0x3f0, v1')
    A(f'buffer_store_dwordx4 v[84:87], v47, s[{S_WS}:{S_WS+3}], s45 offen {OPT["st_mp"]}'); vm.append('MPS')

def zrow(src, h, tile):
    for j in range(4):
        A(f'v_mul_hi_u32 v{h+8}, v{src+j}, s53')
        A(f'v_add_u32 v{h+10+j}, v{h+8}, v{src+j}')
    A(f'v_lshl_or_b32 v{h+8}, v{h+11}, 16, v{h+10}')
    A(f'v_lshl_or_b32 v{h+9}, v{h+13}, 16, v{h+12}')
    A(f's_mul_i32 s42, s2, {2*OFS}')
    A(f's_add_u32 s42, s42, {OFF_BASE + tile*OFS:#x}')
    A(f'buffer_store_dwordx2 v[{h+8}:{h+9}], v2, s[{S_WS}:{S_WS+3}], s42 offen offset:16')
    vm.append(('OFS', tile))

def scan(tile, scoff):
    h = TT
    A('s_waitcnt lgkmcnt(0)')
    A('s_barrier')
    A(f'ds_read_b128 v[{h}:{h+3}], v1 offset:{L_H}')
    A(f'v_and_b32 v{h+5}, 63, v0')
    A(f'v_cmp_lt_u32 vcc, s50, v{h+5}')
    A(f'v_lshlrev_b32 v{h+5}, 2, v{h+5}')
    A('s_and_b64 s[56:57], vcc, 0xffff')
    A('s_waitcnt lgkmcnt(0)')
    if tile == 1:
        for j in range(4): A(f'v_and_b32 v{h+10+j}, 0xffff, v{h+j}')
        for j in range(4): A(f'v_lshrrev_b32 v{h+j}, 16, v{h+j}')
    for j in range(1, 4): A(f'v_add_u32 v{h+j}, v{h+j-1}, v{h+j}')
    A(f'v_mov_b32 v{h+4}, v{h+3}')
    dpp_scan('v_add_u32', h + 4)
    A('s_nop 1')
    A(f'v_readlane_b32 s42, v{h+4}, 63')
    A('s_nop 1')
    A(f'v_mov_b32 v{h+6}, s42')
    A('s_mov_b64 exec, s[56:57]')
    A(f'ds_add_u32 v{h+5}, v{h+6} offset:{scoff}')
    A('s_mov_b64 exec, -1')
    A('s_lshl_b32 s42, s50, 2')
    A(f'v_mov_b32 v{h+5}, s42')
    A(f'v_sub_u32 v{h+4}, v{h+4}, v{h+3}')
    if tile == 1: zrow(h + 10, h, 0)
    A('s_waitcnt lgkmcnt(0)')
    A('s_barrier')
    A(f'ds_read_b32 v{h+5}, v{h+5} offset:{scoff}')
    if tile == 1: A(f'ds_read_b32 v{h+6}, v5 offset:{L_SC+128}')
    A('s_waitcnt lgkmcnt(0)')
    A(f'v_add_u32 v{h+4}, v{h+4}, v{h+5}')
    if tile == 1:
        for j in range(4): A(f'v_add_u32 v{h+10+j}, v{h+4}, v{h+j}')
    for j in (3, 2, 1): A(f'v_add_u32 v{h+j}, v{h+4}, v{h+j-1}')
    A(f'v_mov_b32 v{h}, v{h+4}')
    A(f'ds_write_b128 v1, v[{h}:{h+3}] offset:{L_H}')
    if tile == 1:
        zrow(h + 10, h, 1)
        done = newlab('P_SC')
        A('s_cmp_lg_u32 s50, 0')
        A(f's_cbranch_scc1 {done}')
        A('s_mov_b64 exec, 1')
        A(f'buffer_store_dword v5, v5, s[{S_WS}:{S_WS+3}], s42 offen offset:12')
        A(f's_sub_u32 s42, s42, {OFS}')
        A(f'buffer_store_dword v5, v5, s[{S_WS}:{S_WS+3}], s42 offen offset:12')
        A(f's_add_u32 s42, s2, {MAX_BASE:#x}')
        A(f'v_lshrrev_b32 v{h+6}, 7, v{h+6}')
        A(f'buffer_store_byte v{h+6}, v5, s[{S_WS}:{S_WS+3}], s42 offen')
        A('s_mov_b64 exec, -1')
        L(done)
    A('s_waitcnt lgkmcnt(0)')
    A('s_barrier')

def scatter(tag, after_wait, after_fin):
    units = unitA if tag == 'A' else unitB
    lg = []
    def issue(k):
        vi0, vo0, _ = units[k]
        n = 4 if k < 6 else 1
        if k == 6: A('s_mov_b64 exec, s[40:41]')
        for j in range(n):
            A(f'ds_add_rtn_u32 v{TT+4*(k&1)+j}, v{vo0+j}, v3 offset:{L_H}')
            lg.append(('R', k))
        if k == 6: A('s_mov_b64 exec, -1')
    def fin(k):
        vi0, vo0, va0 = units[k]
        n = 4 if k < 6 else 1
        if k == 6: A('s_mov_b64 exec, s[40:41]')
        for j in range(n):
            t = TT + 4*(k & 1) + j
            q, a = TT + 8, TT + 9 + (j & 1)
            if tag == 'A': A(f'v_and_b32 v{t}, 0xffff, v{t}')
            A(f'v_mul_hi_u32 v{q}, v{t}, s53')
            A(f'v_lshlrev_b32 v{a}, 2, v{t}')
            A(f'v_add_u32 v{t}, v{q}, v{t}')
            A(f'ds_write_b32 v{a}, v{vi0+j} offset:{L_W}')
            A(f'ds_write_b8{"_d16_hi" if j & 1 else ""} v{t}, v{va0+j//2} offset:{L_X}')
            lg.extend([('W', k)] * 2)
        if k == 6: A('s_mov_b64 exec, -1')
    issue(0)
    for k in range(7):
        if k + 1 < 7: issue(k + 1)
        idx = max(i for i, t in enumerate(lg) if t == ('R', k) or t == ('W', k - 1))
        ny = sum(1 for t in lg[idx+1:] if t[1] != 6)
        A(f's_waitcnt lgkmcnt({min(ny, 15)})')
        if k in after_wait: after_wait[k]()
        fin(k)
        if k in after_fin:
            after_fin[k]()
            lg.extend([('H', k)] * 4)
    A('s_waitcnt lgkmcnt(0)')
    A('s_barrier')

RC = (NBLK + 1023) // 1024
lastc = NBLK - (RC - 1) * 1024
def copyout(tile, regs, ar):
    A(f's_movk_i32 s42, {lastc}')
    A('v_cmp_gt_u32 s[56:57], s42, v0')
    A(f'v_mul_u32_u24 v{ar[0]}, 12, v0')
    A(f'v_add_u32 v{ar[0]}, {L_W}, v{ar[0]}')
    A(f's_mul_i32 s42, s2, {2*RS}')
    if tile: A(f's_add_u32 s42, s42, {RS}')
    def rd(j):
        r = regs[j]
        if j == RC - 1: A('s_mov_b64 exec, s[56:57]')
        A(f'ds_read2_b32 v[{r}:{r+1}], v{ar[0]} offset0:0 offset1:1')
        A(f'ds_read_b32 v{r+2}, v{ar[0]} offset:8')
        A(f'ds_read_b32 v{r+3}, v6 offset:{L_X + j*4096}')
        if j == RC - 1: A('s_mov_b64 exec, -1')
        else: A(f'v_add_u32 v{ar[0]}, {12*1024}, v{ar[0]}')
    LA = 4
    for j in range(LA): rd(j)
    for j in range(RC):
        if j + LA < RC: rd(j + LA)
        A(f's_waitcnt lgkmcnt({3*max(0, min(LA, RC-2-j))})')
        if j == RC - 1: A('s_mov_b64 exec, s[56:57]')
        A(f'buffer_store_dwordx4 v[{regs[j]}:{regs[j]+3}], v1, s[{S_WS}:{S_WS+3}], s42 offen {OPT["st_ws"]}')
        if j < RC - 1: vm.append(('ST', tile, j))
        if j < RC - 1: A('s_add_u32 s42, s42, 16384')
    A('s_mov_b64 exec, -1')

stamp('stamp')
process('A', 0)
stamp('stamp')
maxm()
for k in range(1, 7): process('A', k)
stamp('stamp')
NPB = OPT['npb']
for k in range(NPB): load_unit('B', k)
scan(0, L_SC)
stamp('stamp')
ilv = dict((int(x.split(':')[0]), int(x.split(':')[1])) for x in OPT['ilv'].split(',')) if OPT['ilv'] else {}
pend = list(range(NPB, 7))
aw = {}
for k in range(7):
    take = []
    while pend and len(take) < OPT['bps'] and (pend[0] < 4 or k >= pend[0] - 3):
        take.append(pend.pop(0))
    if k == 6: take += pend; pend = []
    if take: aw[k] = (lambda tk=take: [load_unit('B', b) for b in tk])
scatter('A', aw, {k: (lambda b=b: process('B', b)) for k, b in ilv.items()})
def cpf_code():
    if OPT['cpf']:
        A('s_cmp_lg_u32 s50, 15')
        A('s_cbranch_scc1 P_NOCPF')
        A('s_getpc_b64 s[58:59]')
        L('P_PC')
        A('s_add_u32 s58, s58, acc_kernel-P_PC')
        A('s_addc_u32 s59, s59, 0')
        A('v_and_b32 v48, 63, v0')
        A('v_lshlrev_b32 v48, 7, v48')
        for j in range(3):
            A(f'v_min_u32 v49, CODE_END-acc_kernel-4, v48')
            A(f'global_load_dword v87, v49, s[58:59]')
            A('v_add_u32 v48, 8192, v48')
        L('P_NOCPF')
stamp('stamp')
CR = [48 + 4*j for j in range(RC)]
mpload()
if OPT['dst'] == '':
    copyout(0, CR, [TT, TT + 1, TT + 2])
    stamp('stamp')
    for k in range(7):
        if k not in ilv.values(): process('B', k)
    stamp('stamp')
    scan(1, L_SC + 64)
    cpf_code()
    stamp('stamp')
    scatter('B', {}, {})
else:
    A(f's_movk_i32 s42, {lastc}')
    A('v_cmp_gt_u32 s[64:65], s42, v0')
    A(f'v_mul_u32_u24 v{TT}, 12, v0')
    A(f'v_add_u32 v{TT}, {L_W}, v{TT}')
    A(f's_mul_i32 s66, s2, {2*RS}')
    for j in range(RC):
        r = CR[j]
        if j == RC - 1: A('s_mov_b64 exec, s[64:65]')
        A(f'ds_read2_b32 v[{r}:{r+1}], v{TT} offset0:0 offset1:1')
        A(f'ds_read_b32 v{r+2}, v{TT} offset:8')
        A(f'ds_read_b32 v{r+3}, v6 offset:{L_X + j*4096}')
        if j == RC - 1: A('s_mov_b64 exec, -1')
        else: A(f'v_add_u32 v{TT}, {12*1024}, v{TT}')
    nst = [0]
    def st(n):
        for _ in range(n):
            j = nst[0]
            if j >= RC: return
            nst[0] += 1
            if j == RC - 1: A('s_mov_b64 exec, s[64:65]')
            A(f'buffer_store_dwordx4 v[{CR[j]}:{CR[j]+3}], v1, s[{S_WS}:{S_WS+3}], s66 offen {OPT["st_ws"]}')
            if j < RC - 1:
                vm.append(('ST', 0, j)); A('s_add_u32 s66, s66, 16384')
            else: A('s_mov_b64 exec, -1')
    sch = [int(c) for c in OPT['dst']]
    rest = [k for k in range(7) if k not in ilv.values()]
    process('B', rest[0])
    A('s_waitcnt lgkmcnt(0)')
    st(sch[0])
    stamp('stamp')
    for k in rest[1:]: process('B', k)
    st(sch[1])
    stamp('stamp')
    scan(1, L_SC + 64)
    cpf_code()
    stamp('stamp')
    scatter('B', {k: (lambda n=sch[2+k]: st(n)) for k in range(7)}, {})
    assert nst[0] == RC
mpstore()
stamp('stamp')
copyout(1, [48 + 4*j for j in range(RC)], [TT, TT + 1, TT + 2])
stamp('stamp')
if OPT['stamp'] >= 0: A('s_waitcnt vmcnt(0)')
stamp('stamp')
stamp_flush('stamp', 50, TT, OPT.get('swave', 0))
abs_end(87, 64, 0, 16)
L('P_END')
A('s_endpgm')

st2n = [0]
def stamp2():
    if OPT['stamp2'] < 0: return
    n = st2n[0]; st2n[0] += 1
    A(OPT.get('clk','s_memtime').replace(' ','_') + ' s[4:5]')
    A('s_waitcnt lgkmcnt(0)')
    A(f'v_writelane_b32 v127, s4, {n+2}')
khead('acc_kernel')
A('s_cmp_ge_u32 s2, 256')
A('s_cbranch_scc1 Q_END')
abs_start(127)
A('s_load_dwordx2 s[4:5], s[0:1], 0')
A('s_load_dwordx2 s[6:7], s[0:1], 104')
if OPT['pp']: A('s_setprio 3')
S_M, S_WS = 8, 12
A('s_and_b32 s3, s2, 7')
A('s_lshl_b32 s3, s3, 5')
A('s_lshr_b32 s16, s2, 3')
A('s_add_u32 s3, s3, s16')
VTB = 5; VOF = 8
VEB = VOF + 18
def EB(slot, s): return VEB + (slot * 3 + s) * 4
VG = VEB + 48
def G(s, e): return VG + (s * 3 + e) * 2
VCH = VG + 18
VT = VCH + 16
VA = VT + 1
VSH, VFC = VT + 10, VT + 11
VOV = VT + 12
VRM = VOV + 2
assert VOV % 2 == 0 and VRM + 4 <= 127
def OF(s, k): return VOF + 9*s + k
def MK(slot, s, e):
    if s == 2 and e > 0: return 36 + 2 * e
    return 46 + slot * 14 + (s * 3 + e) * 2
A('v_and_b32 v1, 3, v0')
A('v_lshlrev_b32 v2, 4, v0')
A('v_lshrrev_b32 v3, 2, v0')
A('v_and_b32 v4, 1, v0')
A(f'v_bfe_u32 v{VT}, v0, 1, 1')
A(f'v_lshl_add_u32 v{VT}, v{VT}, 8, v3')
A(f'v_mul_u32_u24 v{VT}, {OFS}, v{VT}')
A(f'v_lshl_add_u32 v{VT+1}, v4, 4, v{VT}')
A(f'v_and_b32 v{VT+2}, 63, v0')
A(f'v_lshlrev_b32 v{VT+2}, 2, v{VT+2}')
if not OPT['abst']: A('v_mov_b32 v127, 0')
A('s_lshl_b32 s17, s3, 5')
A(f's_add_u32 s17, s17, {OFF_BASE:#x}')
A(f's_mov_b32 s19, {MAX_BASE:#x}')
A('s_and_b32 s20, s3, 3')
A(f's_mul_i32 s20, s20, {16*CHS}')
A(f's_add_u32 s20, s20, {MP_BASE:#x}')
A('v_cmp_gt_u32 s[22:23], 64, v0')
A('v_readfirstlane_b32 s21, v0')
A('s_nop 3')
A('s_lshl_b32 m0, s21, 4')
A('s_waitcnt lgkmcnt(0)')
srd(S_M, 4, E * 8); srd(S_WS, 6, WS_BYTES)
TO = VG
A(f'buffer_load_dwordx4 v[{TO}:{TO+3}], v{VT+1}, s[{S_WS}:{S_WS+3}], s17 offen offset:16')
A(f'buffer_load_dword v{TO+4}, v{VT}, s[{S_WS}:{S_WS+3}], s17 offen offset:12')
A(f'buffer_load_dword v{VT+9}, v{VT+2}, s[{S_WS}:{S_WS+3}], s19 offen')
if OPT['pp']: A('s_setprio 1' if OPT['pp'] == 2 else 's_setprio 2')
stamp2()
INLOOP = [0]
def ch1(j, live=False):
    sk = None
    if j == 3:
        A('s_and_b64 exec, s[22:23], s[18:19]' if live else 's_mov_b64 exec, s[22:23]')
        sk = newlab('Q_C')
        A(f's_cbranch_execz {sk}')
    else:
        A('s_mov_b64 exec, s[18:19]' if live else 's_mov_b64 exec, -1')
    A(f's_add_u32 s21, s20, {j*16384}')
    if not (OPT['skip_ch'] and INLOOP[0]): A(f'buffer_load_dwordx4 v[{VCH+4*j}:{VCH+4*j+3}], v2, s[{S_WS}:{S_WS+3}], s21 offen {OPT["ld_ch"]}')
    if j == 3: L(sk)
def chall(live=False):
    for j in (3, 0, 1, 2): ch1(j, live)
    A(f's_add_u32 s20, s20, {CHS}')
def fill():
    if OPT['skip_fill']: return
    sk = newlab('Q_F')
    A('s_mov_b64 exec, s[22:23]')
    A(f's_cbranch_execz {sk}')
    for k in range(4): A(f'ds_write_addtid_b32 v{VCH+12+k} offset:{3*16384+256*k}')
    L(sk)
    A('s_mov_b64 exec, -1')
    for j in range(3):
        for k in range(4): A(f'ds_write_addtid_b32 v{VCH+4*j+k} offset:{j*16384+256*k}')
chall()
A(f's_mov_b32 s16, {RS}')
A(f'v_mul_lo_u32 v{VTB}, v3, s16')
A(f'v_add_u32 v{VTB+1}, {256*RS}, v{VTB}')
A('v_cmp_lt_u32 s[36:37], 1, v1')
A('v_lshl_add_u32 v4, v4, 2, 16')
A('v_lshlrev_b32 v1, 2, v1')
A(f'v_add_u32 v{VTB+2}, 16, v1')
A(f'v_add_u32 v3, {L_A}, v2')
z = VEB + 44
for r in range(4): A(f'v_mov_b32 v{z+r}, 0')
for j in range(4): A(f'ds_write_b128 v3, v[{z}:{z+3}] offset:{j*16384}')
A(f'v_add_u32 v{VT+6}, 65536, v3')
for j in range(2): A(f'ds_write_b128 v{VT+6}, v[{z}:{z+3}] offset:{j*16384}')
A('s_movk_i32 s16, 106')
A('v_cmp_gt_u32 s[24:25], s16, v0')
A('s_mov_b64 exec, s[24:25]')
A(f'ds_write_b128 v{VT+6}, v[{z}:{z+3}] offset:{2*16384}')
A('s_mov_b64 exec, -1')
A(f'v_mov_b32 v126, {L_SC2}')
VONE = VSH
A('s_mov_b64 exec, 1')
A(f'ds_write_b128 v126, v[{z}:{z+3}]')
A('s_mov_b64 exec, -1')
A('s_mov_b32 s30, 0xffff0000')
A(f's_mov_b32 s31, {L_A}')
A('s_mov_b32 s35, 0xfc000000')
A(f'v_mov_b32 v{VSH}, 18')
A(f'v_mov_b32 v{VFC}, 0xfffc')
A('s_waitcnt vmcnt(3)')
for s_ in range(2):
    for k in range(9):
        ln = 2*s_ + (1 if k >= 5 else 0)
        src = TO + ((k - 1) % 4 if k > 0 else 4)
        A(f'v_mov_b32_dpp v{OF(s_,k)}, v{src} quad_perm:[{ln},{ln},{ln},{ln}] row_mask:0xf bank_mask:0xf')

def third_sel(r, t, rem, skip=None, ad=None):
    if ad is None: ad = t
    r0, h0, r1, h1 = (r + 1) >> 1, (r + 1) & 1, (r + 2) >> 1, r & 1
    y0, y1, q0, q1, off = t, t + 1, t + 2, t + 3, t + 4
    for s_, y, q in ((0, y0, q0), (1, y1, q1)):
        A(f'v_and_b32_sdwa v{y}, v{OF(s_,r0)}, v{VFC} {SD} src0_sel:WORD_{h0} src1_sel:DWORD')
        A(f'v_sub_u32_sdwa v{q}, v{OF(s_,r1)}, v{y} {SD} src0_sel:WORD_{h1} src1_sel:DWORD')
    A(f'v_cmp_lt_i32 s[42:43], 16, v{q0}')
    A(f'v_cmp_lt_i32 s[44:45], 16, v{q1}')
    if skip:
        A('s_or_b64 vcc, s[42:43], s[44:45]')
        if skip[1]: A('s_and_b64 vcc, vcc, s[18:19]')
        A(f's_cbranch_scc0 {skip[0]}')
    A('s_orn2_b64 vcc, s[36:37], s[42:43]')
    A('s_and_b64 vcc, vcc, s[44:45]')
    A('s_and_b64 s[42:43], s[42:43], s[44:45]')
    A(f'v_cndmask_b32 v{off}, v{VTB+2}, v4, s[42:43]')
    A(f'v_cndmask_b32 v{y0}, v{y0}, v{y1}, vcc')
    A(f'v_cndmask_b32 v{q0}, v{q0}, v{q1}, vcc')
    A(f'v_cndmask_b32 v{y1}, v{VTB}, v{VTB+1}, vcc')
    A(f'v_add_u32 v{y0}, v{y0}, v{off}')
    A(f'v_sub_u32 v{rem}, v{q0}, v{off}')
    A(f'v_lshl_add_u32 v{ad}, v{y0}, 2, v{y1}')

def pf1c(s_, r, ad):
    slot = r % 4
    r0, h0, r1, h1 = (r + 1) >> 1, (r + 1) & 1, (r + 2) >> 1, r & 1
    y, d, ln = VT, VT + 2, VT + 3
    a, b = OF(s_, r0), OF(s_, r1)
    m = [MK(slot, s_, k) for k in range(3)]
    A(f'v_and_b32_sdwa v{y}, v{a}, v{VFC} {SD} src0_sel:WORD_{h0} src1_sel:DWORD')
    A(f'v_sub_u32_sdwa v{ln}, v{b}, v{a} {SD} src0_sel:WORD_{h1} src1_sel:WORD_{h0}')
    A(f'v_add_u32 v{y}, v{y}, v1')
    A(f'v_sub_u32_sdwa v{d}, v{y}, v{a} {SD} src0_sel:DWORD src1_sel:WORD_{h0}')
    A(f'v_lshl_add_u32 v{ad}, v{y}, 2, v{VTB+s_}')
    A(f'v_cmp_lt_u32 s[{m[0]}:{m[0]+1}], v{d}, v{ln}')
    A(f'v_add_u32 v{d}, 1, v{d}')
    A(f'v_cmp_lt_u32 s[{m[1]}:{m[1]+1}], v{d}, v{ln}')
    A(f'v_add_u32 v{d}, 1, v{d}')
    A(f'v_cmp_lt_u32 s[{m[2]}:{m[2]+1}], v{d}, v{ln}')
def pf1i(s_, r, ad, live=False):
    slot = r % 4
    m = [MK(slot, s_, k) for k in range(3)]
    e = EB(slot, s_)
    A(f's_or_b64 vcc, s[{m[0]}:{m[0]+1}], s[{m[1]}:{m[1]+1}]')
    A(f's_or_b64 vcc, vcc, s[{m[2]}:{m[2]+1}]')
    if live: A('s_and_b64 vcc, vcc, s[18:19]')
    A('s_or_b64 exec, vcc, 1')
    if not (OPT['skip_pf'] and INLOOP[0]): A(f'buffer_load_dwordx4 v[{e}:{e+3}], v{ad}, s[{S_WS}:{S_WS+3}], 0 offen {OPT["ld_ent"]}')
def pf3c(r, ad, live=False):
    slot = r % 4
    m = MK(slot, 2, 0)
    sk = newlab('Q_T')
    A(f's_mov_b64 s[{m}:{m+1}], 0')
    third_sel(r, VT, VRM + slot, (sk, live), ad)
    A(f'v_cmp_lt_i32 s[{m}:{m+1}], 0, v{VRM+slot}')
    L(sk)
def pf3i(r, ad):
    slot = r % 4
    m = MK(slot, 2, 0); e = EB(slot, 2)
    sk = newlab('Q_T')
    A(f's_mov_b64 exec, s[{m}:{m+1}]')
    A(f's_cbranch_execz {sk}')
    A(f'buffer_load_dwordx4 v[{e}:{e+3}], v{ad}, s[{S_WS}:{S_WS+3}], 0 offen {OPT["ld_ent"]}')
    L(sk)
def pf1(s_, r, live=False):
    A('s_mov_b64 exec, -1'); pf1c(s_, r, VA); pf1i(s_, r, VA, live)
def pf3(r, live=False):
    A('s_mov_b64 exec, -1'); pf3c(r, VT, live); pf3i(r, VT)
def wait3(r, n, extra=''):
    m3 = MK(r % 4, 2, 0)
    w1 = newlab('Q_W'); w2 = newlab('Q_W')
    A(f's_cmp_eq_u64 s[{m3}:{m3+1}], 0')
    A(f's_cbranch_scc1 {w1}')
    A(f's_waitcnt vmcnt({n+1}){extra}')
    A(f's_branch {w2}')
    L(w1)
    A(f's_waitcnt vmcnt({n}){extra}')
    L(w2)

def gath1(w, g):
    A(f'v_lshlrev_b32 v{g}, 3, v{w}')
    A(f'v_and_b32 v{g}, 0xfff8, v{g}')
    if not OPT['skip_g']: A(f'ds_read_b64 v[{g}:{g+1}], v{g}')

def scat1(w, xr, e, g):
    x, ad = VT, VT + 1
    p0, p2 = VT + 2, VT + 4
    A(f'v_lshlrev_b32_sdwa v{x}, v{VSH}, v{xr} {SD} src0_sel:DWORD src1_sel:BYTE_{e}')
    A(f'v_lshlrev_b32 v{p2}, 16, v{g+1}')
    A(f'v_and_b32 v{p2+1}, s30, v{g+1}')
    A(f'v_and_or_b32 v{x}, v{w}, s35, v{x}')
    A(f'v_bfe_u32 v{ad}, v{w}, 13, 13')
    A(f'v_lshlrev_b32 v{p0}, 16, v{g}')
    A(f'v_and_b32 v{p0+1}, s30, v{g}')
    for r in (p2, p2 + 1, p0, p0 + 1):
        A(f'v_fma_mix_f32 v{r}, v{r}, v{x}, s{26 if r == p0 else 28} op_sel:[0,1,0] op_sel_hi:[0,1,0]')
        if r == p2: A(f'v_lshl_add_u32 v{ad}, v{ad}, 3, s31')
        if r == p2 + 1: A(f'ds_add_u64 v{ad}, v[{p2}:{p2+1}] offset:{L_ARB}')
    A(f'v_add_u32 v{p0}, s34, v{p0}')
    A(f'ds_add_u64 v{ad}, v[{p0}:{p0+1}]')

def Gset(r, s_):
    slot = r % 4
    for e in range(3):
        m = MK(slot, s_, e)
        A(f's_mov_b64 exec, s[{m}:{m+1}]')
        gath1(EB(slot, s_) + e, G(s_, e))
def Gthird(r):
    slot = r % 4
    done = newlab('Q_GI')
    m = MK(slot, 2, 0)
    A(f's_mov_b64 exec, s[{m}:{m+1}]')
    A(f's_cbranch_execz {done}')
    gath1(EB(slot, 2), G(2, 0))
    rem = VRM + slot
    A(f'v_cmp_lt_i32 s[38:39], 1, v{rem}')
    A(f'v_cmp_lt_i32 s[40:41], 2, v{rem}')
    A(f'v_cmp_lt_i32 s[42:43], 8, v{rem}')
    for e in (1, 2):
        A(f's_mov_b64 exec, s[{36+2*e}:{37+2*e}]')
        A(f's_cbranch_execz {done}')
        gath1(EB(slot, 2) + e, G(2, e))
    A('s_mov_b64 exec, s[42:43]')
    A(f's_cbranch_execz {done}')
    A('s_mov_b64 exec, -1')
    third_sel(r, VT, rem)
    ad, stp, w, xr = VT + 6, VT + 7, VT + 8, VT + 9
    A(f'v_mov_b32 v{ad}, v{VT}')
    A(f'v_cndmask_b32 v{stp}, 16, 8, s[42:43]')
    lp = newlab('Q_SL')
    L(lp)
    A(f'v_sub_u32 v{rem}, v{rem}, v{stp}')
    A(f'v_lshl_add_u32 v{ad}, v{stp}, 2, v{ad}')
    A(f'v_cmpx_lt_i32 vcc, 0, v{rem}')
    A(f's_cbranch_execz {done}')
    A('s_mov_b64 s[44:45], exec')
    nx = newlab('Q_SN')
    for e in range(3):
        A(f'buffer_load_dword v{w}, v{ad}, s[{S_WS}:{S_WS+3}], 0 offen offset:{4*e}')
        A(f'buffer_load_dword v{xr}, v{ad}, s[{S_WS}:{S_WS+3}], 0 offen offset:12')
        A('s_waitcnt vmcnt(0)')
        A(f'v_lshlrev_b32 v{VOV}, 3, v{w}')
        A(f'v_and_b32 v{VOV}, 0xfff8, v{VOV}')
        A(f'ds_read_b64 v[{VOV}:{VOV+1}], v{VOV}')
        A('s_waitcnt lgkmcnt(0)')
        scat1(w, xr, e, VOV)
        if e < 2:
            A(f'v_cmpx_lt_i32 vcc, {1+e}, v{rem}')
            A(f's_cbranch_execz {nx}')
    L(nx)
    A('s_mov_b64 exec, s[44:45]')
    A(f's_branch {lp}')
    L(done)
def Sset(r, s_, hooks={}):
    slot = r % 4
    done = newlab('Q_S')
    for e in range(3):
        if e in hooks: hooks[e]()
        m = MK(slot, s_, e)
        A(f's_mov_b64 exec, s[{m}:{m+1}]')
        if s_ == 2: A(f's_cbranch_execz {done}')
        b = EB(slot, s_)
        if not OPT['skip_s']: scat1(b + e, b + 3, e, G(s_, e))
    L(done)

if OPT['pp']: A('s_setprio 2' if OPT['pp'] == 2 else 's_setprio 1')
pf1(0, 0); pf1(1, 0); pf3(0)
if OPT['pp']: A('s_setprio 0')
pf1(0, 1)
A('s_mov_b64 exec, -1')
A(f'v_max_u32_sdwa v{VT+2}, v{VT+9}, v{VT+9} {SD} src0_sel:BYTE_0 src1_sel:BYTE_1')
A(f'v_max_u32_sdwa v{VT+3}, v{VT+9}, v{VT+9} {SD} src0_sel:BYTE_2 src1_sel:BYTE_3')
A(f'v_max_u32 v{VT+9}, v{VT+2}, v{VT+3}')
dpp_scan('v_max_u32', VT + 9)
A('s_nop 1')
A(f'v_readlane_b32 s29, v{VT+9}, 63')
for s_ in range(2):
    A(f'v_lshrrev_b32 v{VT+2}, 16, v{OF(s_,0)}')
    A(f'v_lshrrev_b32 v{VT+3}, 18, v{OF(s_,0)}')
    A(f'v_sub_u32 v{VT+2}, v{VT+2}, v{VT+3}')
    A(f'v_lshrrev_b32 v{VT+3}, 18, v{OF(s_,8)}')
    A(f'v_add_u32 v{VT+2}, v{VT+2}, v{VT+3}')
    A(f'v_lshrrev_b32 v{VT+3}, 16, v{OF(s_,8)}')
    A(f'v_sub_u32 v{VT+4+s_}, v{VT+2}, v{VT+3}')
A(f'v_add_u32 v{VT+2}, v{VT+4}, v{VT+5}')
dpp_scan('v_add_u32', VT + 2)
A('s_nop 1')
A(f'v_readlane_b32 s32, v{VT+2}, 63')
A('s_min_u32 s27, s29, 249')
A('s_add_u32 s28, s27, 2')
A('s_lshl_b32 s28, s28, 23')
A('s_or_b32 s28, s28, 0x400000')
A('s_add_u32 s26, s27, 5')
A('s_lshl_b32 s26, s26, 23')
A('s_sub_u32 s34, 0x4000000, s26')
A('s_or_b32 s26, s26, 0x80000')
A('s_waitcnt vmcnt(3)')
fill()
chall()
A('s_mov_b32 s33, 0')
A('s_mov_b64 s[18:19], -1')
A('s_waitcnt vmcnt(4) lgkmcnt(0)')
stamp2()
A('s_barrier')
Gset(0, 0); Gset(0, 1); Gthird(0)
pf1(1, 1); pf1(1, 2); pf3(1)
wait3(1, 2, ' lgkmcnt(0)')
if OPT['skip_pf']:
    pf1(0, 2); pf1(0, 3); pf1(1, 3); A('s_waitcnt vmcnt(0)')
INLOOP[0] = 1
A('s_mov_b64 exec, -1')
A(f'v_mov_b32 v{VT+8}, 0')
L('Q_LOOP')
for r in range(4):
    ps = r & 1
    if r == 1: stamp2()
    A('s_barrier')
    if r == 1: stamp2()
    lastr = newlab('Q_SK')
    if r == 3:
        A('s_cmp_eq_u32 s33, 3')
        A(f's_cbranch_scc1 Q_LAST')
    fill()
    st = OPT['struct']
    if st == 0:
        chall(r >= 2)
        Sset(r, 0)
        A('s_waitcnt vmcnt(3) lgkmcnt(0)')
        if r == 1: stamp2()
        A('s_barrier')
        if r == 1: stamp2()
        Gset(r + 1, 0)
        Sset(r, 1, {1: lambda: pf1(ps, r + 2, r + 2 >= 4), 2: lambda: pf1(ps, r + 3, r + 3 >= 4)})
        Gset(r + 1, 1)
        Sset(r, 2)
        Gthird(r + 1)
        pf3(r + 2, r + 2 >= 4)
    elif st == 3:
        chall(r >= 2)
        Sset(r, 0, {0: lambda: pf1(ps, r + 2, r + 2 >= 4), 1: lambda: pf1(ps, r + 3, r + 3 >= 4), 2: lambda: pf3(r + 2, r + 2 >= 4)})
        wait3(r + 2, 5, ' lgkmcnt(0)')
        A('s_barrier')
        Gset(r + 1, 0)
        Sset(r, 1)
        Gset(r + 1, 1)
        Sset(r, 2)
        Gthird(r + 1)
    elif st == 4:
        chall(r >= 2)
        Sset(r, 0, {1: lambda: pf1(ps, r + 2, r + 2 >= 4), 2: lambda: pf1(ps, r + 3, r + 3 >= 4)})
        A('s_waitcnt vmcnt(5) lgkmcnt(0)')
        A('s_barrier')
        Gset(r + 1, 0)
        Sset(r, 2)
        Gthird(r + 1)
        Sset(r, 1, {0: lambda: pf3(r + 2, r + 2 >= 4)})
        Gset(r + 1, 1)
    elif st in (5, 6, 7):
        full = lambda: A('s_mov_b64 exec, -1')
        chall(r >= 2)
        Sset(r, 0, {0: lambda: (full(), pf1c(ps, r + 2, VT + 6)), 1: lambda: (full(), pf1c(ps, r + 3, VT + 7)), 2: lambda: (full(), pf3c(r + 2, VT + 8, r + 2 >= 4))})
        A('s_waitcnt vmcnt(3) lgkmcnt(0)')
        A('s_barrier')
        i0 = lambda: pf1i(ps, r + 2, VT + 6, r + 2 >= 4)
        i1 = lambda: pf1i(ps, r + 3, VT + 7, r + 3 >= 4)
        i2 = lambda: pf3i(r + 2, VT + 8)
        Gset(r + 1, 0)
        if st == 5: Sset(r, 1, {0: i0, 1: i1, 2: i2})
        if st == 6: Sset(r, 1, {0: lambda: (i0(), i1(), i2())})
        if st == 7: Sset(r, 1, {1: i0, 2: i1})
        Gset(r + 1, 1)
        if st == 7: i2()
        Sset(r, 2)
        Gthird(r + 1)
    elif st == 1:
        chall(r >= 2)
        Sset(r, 0)
        Sset(r, 2)
        A('s_waitcnt vmcnt(3) lgkmcnt(0)')
        A('s_barrier')
        Gset(r + 1, 0)
        Gthird(r + 1)
        Sset(r, 1)
        Gset(r + 1, 1)
        pf1(ps, r + 2, r + 2 >= 4); pf1(ps, r + 3, r + 3 >= 4)
        pf3(r + 2, r + 2 >= 4)
    elif st == 2:
        chall(r >= 2)
        Sset(r, 0)
        Sset(r, 1)
        Sset(r, 2)
        A('s_waitcnt vmcnt(3) lgkmcnt(0)')
        A('s_barrier')
        Gset(r + 1, 0)
        Gset(r + 1, 1)
        Gthird(r + 1)
        pf1(ps, r + 2, r + 2 >= 4); pf1(ps, r + 3, r + 3 >= 4)
        pf3(r + 2, r + 2 >= 4)
    if r == 3:
        A('s_mov_b64 exec, -1')
        A('s_add_u32 s33, s33, 1')
        A('s_cmp_eq_u32 s33, 3')
        A('s_cselect_b64 s[18:19], 1, -1')
        for s_ in range(2):
            for k in range(0, 7): A(f'v_mov_b32 v{OF(s_,k)}, v{OF(s_,k+2)}')
    wait3(r + 2, 2, ' lgkmcnt(0)')
A('s_branch Q_LOOP')
L('Q_LAST')
Sset(3, 0)
Sset(3, 1)
Sset(3, 2)
A('s_mov_b64 exec, -1')
A('s_waitcnt lgkmcnt(0)')
stamp2()
A('s_barrier')
A('v_lshlrev_b32 v3, 3, v0')
A(f'v_add_u32 v7, {L_A}, v3')
RA = 8
for k in range(7):
    if k == 6: A('s_mov_b64 exec, s[24:25]')
    A(f'ds_read_b64 v[{RA+4*k}:{RA+4*k+1}], v7 offset:{k*8192}')
A('s_mov_b64 exec, -1')
A(f'v_add_u32 v4, {L_ARB}, v7')
for k in range(7):
    if k == 6: A('s_mov_b64 exec, s[24:25]')
    A(f'ds_read_b64 v[{RA+4*k+2}:{RA+4*k+3}], v4 offset:{k*8192}')
A('s_mov_b64 exec, -1')
A('s_and_b32 s16, s3, 3'); A(f's_mul_i32 s16, s16, {E*8}')
A('s_lshr_b32 s17, s3, 2'); A(f's_mul_i32 s17, s17, {CH*8}')
A('s_add_u32 s16, s16, s17'); A(f's_add_u32 s16, s16, {PART_BASE:#x}')
A('v_mov_b32 v5, 0')
A(f's_mov_b32 s36, {f32bits(2.0**-10):#x}')
A(f's_mov_b32 s37, {f32bits(2.0**-13):#x}')
A('s_mov_b32 s38, s37'); A('s_mov_b32 s39, s37')
A('s_sub_i32 s40, s27, 135')
A('v_mov_b32 v6, 1.0')
A('v_ldexp_f32 v6, v6, s40')
A('s_lshl_b32 s41, s3, 2')
A(f's_add_u32 s41, s41, {SCL_BASE:#x}')
A('v_cmp_eq_u32 vcc, 0, v0')
A('s_mov_b64 exec, vcc')
A(f'buffer_store_dword v6, v5, s[{S_WS}:{S_WS+3}], s41 offen')
A('s_mov_b64 exec, -1')
X = 40
for k in range(7):
    a0, a1, b0, b1 = RA + 4*k, RA + 4*k + 1, RA + 4*k + 2, RA + 4*k + 3
    c = X; P = X + 2; t = X + 4
    A(f's_waitcnt lgkmcnt({max(0,5-k)})')
    if k == 6: A('s_mov_b64 exec, s[24:25]')
    A(f'v_lshrrev_b32 v{c}, 26, v{a0}')
    A(f'v_and_b32 v{a0}, 0x3ffffff, v{a0}')
    A(f'v_mad_u64_u32 v[{P}:{P+1}], vcc, v{c}, s28, 0')
    A(f'v_lshlrev_b32 v{t}, 19, v{c}')
    A(f'v_add_u32 v5, v5, v{c}')
    A(f'v_sub_u32 v{a0}, v{a0}, v{t}')
    A(f'v_sub_u32 v{a1}, v{a1}, v{P}')
    A(f'v_add_u32 v{P+1}, v{P+1}, v{P}')
    A(f'v_sub_co_u32 v{b0}, vcc, v{b0}, v{P}')
    A(f'v_cvt_f32_i32 v{a0}, v{a0}')
    A(f'v_cvt_f32_i32 v{a1}, v{a1}')
    A(f'v_subb_co_u32 v{b1}, vcc, v{b1}, v{P+1}, vcc')
    A(f'v_ashrrev_i32 v{t}, 31, v{b0}')
    A(f'v_cvt_f32_i32 v{b0}, v{b0}')
    A(f'v_sub_u32 v{b1}, v{b1}, v{t}')
    A(f'v_pk_mul_f32 v[{a0}:{a1}], v[{a0}:{a1}], s[36:37]')
    A(f'v_cvt_f32_i32 v{b1}, v{b1}')
    A(f'v_cvt_pk_f16_f32 v{a0}, v{a0}, v{a1}')
    A(f'v_pk_mul_f32 v[{b0}:{b1}], v[{b0}:{b1}], s[38:39]')
    A(f'v_cvt_pk_f16_f32 v{a1}, v{b0}, v{b1}')
    A(f'buffer_store_dwordx2 v[{a0}:{a1}], v3, s[{S_WS}:{S_WS+3}], s16 offen {OPT["st_part"]}')
    A('s_add_u32 s16, s16, 8192')
A('s_mov_b64 exec, -1')
dpp_scan('v_add_u32', 5)
A('s_nop 1')
A('v_readlane_b32 s42, v5, 63')
A('s_nop 3')
A('s_lshl_b32 s42, s42, 2')
A('s_add_u32 s42, s42, s32')
A('v_mov_b32 v6, s42')
A('v_mov_b32 v7, s32')
A('s_mov_b64 exec, 1')
A('ds_add_u32 v126, v6')
A('ds_sub_u32 v126, v7 offset:4')
A('s_mov_b64 exec, -1')
A('s_waitcnt lgkmcnt(0)')
A('s_barrier')
A('ds_read_b64 v[6:7], v126')
A('s_waitcnt lgkmcnt(0)')
A('v_readfirstlane_b32 s42, v6')
A('v_readfirstlane_b32 s43, v7')
A('s_nop 3')
if OPT['forcefb']: A('s_mov_b32 s42, 1')
A('s_cmp_gt_u32 s29, 249')
A('s_cselect_b32 s42, 1, s42')
A('s_cmp_eq_u32 s42, 0')
A('s_cbranch_scc1 Q_FIN')
A('s_waitcnt vmcnt(0)')
A('s_min_u32 s27, s29, 254')
A('s_add_u32 s45, s27, 923')
A('s_lshl_b32 s45, s45, 20')
A('s_or_b32 s45, s45, 0x80000')
A('s_mov_b32 s44, 0')
A('s_lshr_b32 s43, s43, 2')
A('s_flbit_i32_b32 s46, s43')
A('s_max_i32 s46, s46, 0')
A('s_sub_u32 s46, 32, s46')
A('s_sub_i32 s47, -11, s46')
A('s_add_u32 s40, s27, s46')
A('s_sub_i32 s40, s40, 141')
A('v_mov_b32 v6, 1.0')
A('v_ldexp_f32 v6, v6, s40')
A('v_mov_b32 v5, 0')
A('v_cmp_eq_u32 vcc, 0, v0')
A('s_mov_b64 exec, vcc')
A(f'buffer_store_dword v6, v5, s[{S_WS}:{S_WS+3}], s41 offen')
A('s_mov_b64 exec, -1')
A('v_lshrrev_b32 v8, 1, v0')
A(f'v_mul_u32_u24 v9, {OFS}, v8')
A(f's_mov_b32 s16, {RS}')
A('v_mul_lo_u32 v8, v8, s16')
A('v_and_b32 v10, 1, v0')
for r in range(12, 16): A(f'v_mov_b32 v{r}, 0')
A('v_add_u32 v11, 65536, v2')
A('s_mov_b32 s48, 0')
L('Q_FH')
A('s_barrier')
for j in range(4): A(f'ds_write_b128 v2, v[12:15] offset:{j*16384}')
for j in range(2): A(f'ds_write_b128 v11, v[12:15] offset:{j*16384}')
A('s_mov_b64 exec, s[24:25]')
A(f'ds_write_b128 v11, v[12:15] offset:{2*16384}')
A('s_mov_b64 exec, -1')
A('s_waitcnt lgkmcnt(0)')
A('s_barrier')
A('s_lshl_b32 s49, s3, 5')
A(f's_add_u32 s49, s49, {OFF_BASE:#x}')
A('s_and_b32 s50, s3, 3')
A(f's_mul_i32 s50, s50, {16*CH*8}')
A('s_mov_b32 s51, 0')
L('Q_FR')
A(f'buffer_load_ushort v16, v9, s[{S_WS}:{S_WS+3}], s49 offen offset:14')
A(f'buffer_load_ushort v17, v9, s[{S_WS}:{S_WS+3}], s49 offen offset:16')
A('s_waitcnt vmcnt(0)')
A('v_add_u32 v16, v16, v10')
L('Q_FI')
A('v_cmp_lt_u32 vcc, v16, v17')
A('s_and_b64 exec, exec, vcc')
A('s_cbranch_execz Q_FRN')
A('s_mov_b64 s[52:53], exec')
A('v_and_b32 v18, 3, v16')
A('v_lshl_add_u32 v19, v16, 2, v8')
A('v_or_b32 v20, 3, v16')
A('v_lshl_add_u32 v20, v20, 2, v8')
A('v_add_u32 v20, v20, v18')
A(f'buffer_load_dword v21, v19, s[{S_WS}:{S_WS+3}], 0 offen')
A(f'buffer_load_ubyte v22, v20, s[{S_WS}:{S_WS+3}], 0 offen')
A('s_waitcnt vmcnt(0)')
A('v_bfe_u32 v23, v21, 13, 13')
A('v_subrev_u32 v23, s48, v23')
A('s_movk_i32 s16, 3125')
A('v_cmp_gt_u32 vcc, s16, v23')
A('v_cmp_ne_u32 s[54:55], 3, v18')
A('s_and_b64 vcc, vcc, s[54:55]')
A('v_bfe_u32 v24, v21, 0, 13')
A('v_lshlrev_b32 v24, 3, v24')
A('s_and_b64 exec, exec, vcc')
A('s_cbranch_execz Q_FIN2')
A(f'buffer_load_dwordx2 v[26:27], v24, s[{S_M}:{S_M+3}], s50 offen')
A('v_lshlrev_b32 v22, 2, v22')
A('v_lshrrev_b32 v25, 16, v21')
A('v_and_b32 v25, 0xfc00, v25')
A('v_or_b32 v25, v25, v22')
A('v_cvt_f32_f16 v25, v25')
A('v_cvt_f64_f32 v[28:29], v25')
A('v_lshlrev_b32 v23, 3, v23')
A('v_add_u32 v38, 50000, v23')
A('s_waitcnt vmcnt(0)')
A('v_lshlrev_b32 v30, 16, v26'); A('v_and_b32 v32, s30, v26')
A('v_lshlrev_b32 v34, 16, v27'); A('v_and_b32 v36, s30, v27')
for j, r in enumerate((30, 32, 34, 36)):
    A(f'v_cvt_f64_f32 v[{r}:{r+1}], v{r}')
    A(f'v_fma_f64 v[{r}:{r+1}], v[{r}:{r+1}], v[28:29], s[44:45]')
    A(f'ds_add_u64 v{23 if j < 2 else 38}, v[{r}:{r+1}] offset:{(j & 1) * 25000}')
L('Q_FIN2')
A('s_mov_b64 exec, s[52:53]')
A('v_add_u32 v16, 2, v16')
A('s_branch Q_FI')
L('Q_FRN')
A('s_mov_b64 exec, -1')
A('s_add_u32 s49, s49, 2')
A(f's_add_u32 s50, s50, {CH*8}')
A('s_add_u32 s51, s51, 1')
A('s_cmp_lt_u32 s51, 16')
A('s_cbranch_scc1 Q_FR')
A('s_waitcnt lgkmcnt(0)')
A('s_barrier')
A('s_and_b32 s16, s3, 3'); A(f's_mul_i32 s16, s16, {E*8}')
A('s_lshr_b32 s17, s3, 2'); A(f's_mul_i32 s17, s17, {CH*8}')
A('s_add_u32 s16, s16, s17'); A(f's_add_u32 s16, s16, {PART_BASE:#x}')
A('s_lshl_b32 s17, s48, 3'); A('s_add_u32 s16, s16, s17')
A('s_mov_b32 s52, 0'); A('s_mov_b32 s53, 0x41f00000')
A('v_mov_b32 v16, v3')
L('Q_FC')
A('s_movk_i32 s17, 25000')
A('v_cmp_gt_u32 vcc, s17, v16')
A('s_and_b64 exec, exec, vcc')
A('s_cbranch_execz Q_FCD')
A('v_add_u32 v17, 50000, v16')
for j in range(4):
    A(f'ds_read_b64 v[{18+2*j}:{19+2*j}], v{16 if j < 2 else 17} offset:{(j & 1) * 25000}')
A('s_waitcnt lgkmcnt(0)')
for j in range(4):
    lo, hi = 18 + 2*j, 19 + 2*j
    A(f'v_bfe_i32 v{hi}, v{hi}, 0, 19')
    A(f'v_cvt_f64_u32 v[26:27], v{lo}')
    A(f'v_cvt_f64_i32 v[28:29], v{hi}')
    A('v_fma_f64 v[26:27], v[28:29], s[52:53], v[26:27]')
    A('v_ldexp_f64 v[26:27], v[26:27], s47')
    A(f'v_cvt_f32_f64 v{30+j}, v[26:27]')
A('v_cvt_pk_f16_f32 v34, v30, v31')
A('v_cvt_pk_f16_f32 v35, v32, v33')
A(f'buffer_store_dwordx2 v[34:35], v16, s[{S_WS}:{S_WS+3}], s16 offen')
A('v_add_u32 v16, 8192, v16')
A('s_branch Q_FC')
L('Q_FCD')
A('s_mov_b64 exec, -1')
A('s_add_u32 s48, s48, 3125')
A('s_cmp_lt_u32 s48, 6250')
A('s_cbranch_scc1 Q_FH')
L('Q_FIN')
stamp2()
if OPT['stamp2'] >= 0:
    A('s_waitcnt vmcnt(0)')
    stamp2()
    A('v_readfirstlane_b32 s54, v0')
    A('s_nop 3')
    A(f's_cmp_lg_u32 s2, {OPT["stamp2"]}')
    A('s_cbranch_scc1 Q_END')
    A(f's_cmp_lg_u32 s54, {64*OPT.get("swave", 0)}')
    A('s_cbranch_scc1 Q_END')
    A('s_load_dwordx2 s[4:5], s[0:1], 96')
    A('s_waitcnt lgkmcnt(0)')
    srd(72, 4, 256)
    A('v_readlane_b32 s54, v127, 2')
    A('v_and_b32 v4, 63, v0')
    A('v_lshlrev_b32 v4, 2, v4')
    A('v_subrev_u32 v127, s54, v127')
    A('buffer_store_dword v127, v4, s[72:75], 0 offen')
abs_end(127, 64, 1, 16)
L('Q_END')
A('s_endpgm')

NE = OPT['ne']
khead('fin_kernel')
A(f's_cmp_ge_u32 s2, {G3}')
A('s_cbranch_scc1 F_END')
abs_start(1)
A('s_load_dwordx2 s[4:5], s[0:1], 0')
A('s_load_dwordx2 s[6:7], s[0:1], 104')
A('s_load_dwordx2 s[8:9], s[0:1], 24')
A('s_load_dwordx2 s[10:11], s[0:1], 88')
A('s_load_dwordx2 s[28:29], s[0:1], 40')
A('s_load_dwordx8 s[64:71], s[0:1], 56')
S_M, S_WS, S_DIST, S_O = 12, 16, 20, 24
A(f's_mul_i32 s3, s2, {256*NE}')
VB = 2
def R(i, n): return VB + 40 * i + n
for i in range(NE):
    e, t = R(i, 1), R(i, 2)
    A(f'v_add_u32 v{e}, s3, v0')
    if i: A(f'v_add_u32 v{e}, {256*i}, v{e}')
    A(f'v_lshlrev_b32 v{R(i,3)}, 1, v{e}')
    A(f'v_min_u32 v{t}, {E-1}, v{e}')
    A(f'v_lshlrev_b32 v{R(i,0)}, 3, v{t}')
    A(f'v_mul_hi_u32_u24 v{t}, {MAGIC_DIV:#x}, v{t}')
    A(f'v_lshlrev_b32 v{t}, 4, v{t}')
    A(f'v_lshlrev_b32 v{e}, 3, v{e}')
A('s_waitcnt lgkmcnt(0)')
srd(S_DIST, 8, E * 2)
for i in range(NE):
    A(f'buffer_load_ushort v{R(i,3)}, v{R(i,3)}, s[{S_DIST}:{S_DIST+3}], 0 offen')
A('s_load_dwordx4 s[28:31], s[28:29], 0')
A('s_load_dwordx16 s[32:47], s[64:65], 0')
A('s_load_dwordx16 s[48:63], s[66:67], 0')
A('s_load_dwordx8 s[72:79], s[70:71], 0')
A('s_load_dwordx8 s[64:71], s[68:69], 0')
srd(S_WS, 6, WS_BYTES); srd(S_M, 4, E * 8); srd(S_O, 10, E * 8)
for i in range(NE):
    A(f's_mov_b32 s4, {SCL_BASE:#x}')
    A(f'buffer_load_dwordx4 v[{R(i,6)}:{R(i,9)}], v{R(i,2)}, s[{S_WS}:{S_WS+3}], s4 offen')
    for p in range(4):
        A(f's_mov_b32 s4, {PART_BASE + p*E*8:#x}')
        A(f'buffer_load_dwordx2 v[{R(i,32+2*p)}:{R(i,33+2*p)}], v{R(i,0)}, s[{S_WS}:{S_WS+3}], s4 offen {OPT["ld_part"]}')
    A(f'buffer_load_dwordx2 v[{R(i,4)}:{R(i,5)}], v{R(i,1)}, s[{S_M}:{S_M+3}], 0 offen')
A('s_mov_b32 s5, 0xffff0000')
A(f's_mov_b32 s8, {f32bits(-10.0):#x}')
A(f's_mov_b32 s9, {f32bits(math.log2(math.e)):#x}')
def sw(base, idx, dst):
    sr = base + idx // 2
    if idx & 1: A(f's_and_b32 s{dst}, s{sr}, 0xffff0000')
    else: A(f's_lshl_b32 s{dst}, s{sr}, 16')
def spk(base, r, d, dst):
    op = 's_pack_hh_b32_b16' if d & 1 else 's_pack_ll_b32_b16'
    A(f'{op} s{dst}, s{base + r*2 + d//2}, s{base + (r+1)*2 + d//2}')
def unp(a, b, t):
    A(f'v_lshlrev_b32 v{a}, 16, v{t}')
    A(f'v_and_b32 v{b}, s5, v{t}')
def rnd2(a, b, t):
    A(f'v_cvt_pk_bf16_f32 v{t}, v{a}, v{b}')
    unp(a, b, t)
A(f's_waitcnt vmcnt({6*NE}) lgkmcnt(0)')
for i in range(NE): A(f'v_lshlrev_b32 v{R(i,3)}, 16, v{R(i,3)}')
for r in range(0, 8, 2):
    sw(28, r, 6); sw(28, r + 1, 7)
    for i in range(NE):
        a_, b_, t = R(i, 14), R(i, 15), R(i, 2)
        A(f'v_subrev_f32 v{a_}, s6, v{R(i,3)}')
        A(f'v_subrev_f32 v{b_}, s7, v{R(i,3)}')
        rnd2(a_, b_, t)
        A(f'v_mul_f32 v{a_}, v{a_}, v{a_}')
        A(f'v_mul_f32 v{b_}, v{b_}, v{b_}')
        rnd2(a_, b_, t)
        A(f'v_mul_f32 v{a_}, s8, v{a_}')
        A(f'v_mul_f32 v{b_}, s8, v{b_}')
        rnd2(a_, b_, t)
        A(f'v_mul_f32 v{a_}, s9, v{a_}')
        A(f'v_mul_f32 v{b_}, s9, v{b_}')
        A(f'v_exp_f32 v{a_}, v{a_}')
        A(f'v_exp_f32 v{b_}, v{b_}')
        A('s_nop 0')
        A(f'v_cvt_pk_bf16_f32 v{R(i,18+r//2)}, v{a_}, v{b_}')
for r in range(0, 8, 2):
    for base, dst in ((48, 22), (32, 26)):
        for d in range(4):
            spk(base, r, d, 6 + (d & 1))
            for i in range(NE):
                c = '0' if r == 0 else f'v{R(i,dst+d)}'
                A(f'v_dot2_f32_bf16 v{R(i,dst+d)}, v{R(i,18+r//2)}, s{6+(d&1)}, {c}')
A('s_nop 2')
for i in range(NE):
    rnd2(R(i,26), R(i,27), R(i,2)); rnd2(R(i,28), R(i,29), R(i,2))
A('s_waitcnt vmcnt(0)')
for i in range(NE):
    for p in range(4):
        for d in range(4):
            c = '0' if p == 0 else f'v{R(i,14+d)}'
            A(f'v_fma_mix_f32 v{R(i,14+d)}, v{R(i,32+2*p+d//2)}, v{R(i,6+p)}, {c} op_sel:[{d&1},0,0] op_sel_hi:[1,0,0]')
for k in range(4):
    for d in range(4):
        sw(64, k*4 + d, 6 + (d & 1))
        for i in range(NE):
            if k == 0: A(f'v_mul_f32 v{R(i,10+d)}, s{6+(d&1)}, v{R(i,14+k)}')
            else: A(f'v_fmac_f32 v{R(i,10+d)}, s{6+(d&1)}, v{R(i,14+k)}')
for i in range(NE):
    for d in range(4):
        A(f'v_mul_f32 v{R(i,10+d)}, v{R(i,10+d)}, v{R(i,22+d)}')
    A(f'v_cvt_pk_bf16_f32 v{R(i,18)}, v{R(i,10)}, v{R(i,11)}')
    A(f'v_cvt_pk_bf16_f32 v{R(i,19)}, v{R(i,12)}, v{R(i,13)}')
for k in (0, 2):
    for d in range(4):
        spk(72, k, d, 6 + (d & 1))
        for i in range(NE):
            c = '0' if k == 0 else f'v{R(i,22+d)}'
            A(f'v_dot2_f32_bf16 v{R(i,22+d)}, v{R(i,18+k//2)}, s{6+(d&1)}, {c}')
for i in range(NE):
    unp(R(i,10), R(i,11), R(i,4)); unp(R(i,12), R(i,13), R(i,5))
A('s_nop 0')
for i in range(NE):
    rnd2(R(i,22), R(i,23), R(i,2)); rnd2(R(i,24), R(i,25), R(i,2))
    for d in range(4):
        A(f'v_mul_f32 v{R(i,22+d)}, v{R(i,22+d)}, v{R(i,26+d)}')
    rnd2(R(i,22), R(i,23), R(i,2)); rnd2(R(i,24), R(i,25), R(i,2))
    for d in range(4):
        A(f'v_add_f32 v{R(i,22+d)}, v{R(i,22+d)}, v{R(i,10+d)}')
    A(f'v_cvt_pk_bf16_f32 v{R(i,30)}, v{R(i,22)}, v{R(i,23)}')
    A(f'v_cvt_pk_bf16_f32 v{R(i,31)}, v{R(i,24)}, v{R(i,25)}')
    A(f'buffer_store_dwordx2 v[{R(i,30)}:{R(i,31)}], v{R(i,1)}, s[{S_O}:{S_O+3}], 0 offen')
L('F_END')
A('s_endpgm')
L('CODE_END')

out.append('.section .rodata,"a"')
for name, vg, sg in (('part_kernel', 128, 102), ('acc_kernel', 128, 102), ('fin_kernel', 4 + 40*OPT['ne'], 80)):
    out.append('.p2align 6')
    out.append(f'.amdhsa_kernel {name}')
    out.append(f'  .amdhsa_next_free_vgpr {vg}')
    out.append(f'  .amdhsa_next_free_sgpr {sg}')
    out.append(f'  .amdhsa_accum_offset {vg}')
    out.append('  .amdhsa_group_segment_fixed_size 0')
    out.append('  .amdhsa_kernarg_size 112')
    out.append('  .amdhsa_user_sgpr_count 2')
    out.append('  .amdhsa_user_sgpr_kernarg_segment_ptr 1')
    out.append('  .amdhsa_system_sgpr_workgroup_id_x 1')
    out.append('  .amdhsa_float_denorm_mode_32 3')
    out.append('.end_amdhsa_kernel')
open(sys.argv[1], 'w').write('\n'.join(out) + '\n')
```

```python
import struct, sys, math

E = 400000
T = 12800000
CH = 6250
S = 25000
NTILE = 512
NBLK = (S + 2) // 3
RS = 133376
OFS = 8208
OFF_BASE = 0x4400000
MAX_BASE = 0x4C00000
SCL_BASE = 0x4C01000
PART_BASE = 0x5000000
WS_BYTES = 268435456
MAGIC_DIV = (2**32 + CH - 1) // CH
MINI = S - 6 * 4096
assert NTILE * RS <= OFF_BASE and OFF_BASE + NTILE * OFS <= MAX_BASE

OPT = dict(ld_in='nt', st_ws='sc0 sc1', ld_ent='', ld_ch='', st_part='sc0 sc1', ld_part='', NB=2, skip_s=0, skip_g=0, skip_fill=0, skip_e=0,
           stamp=-1, stamp2=-1, prio=1, ilv='2:0,3:1,4:2,5:3', pre=1, npb=1, bps=1, vpos='123456', skip_ch=0, skip_pf=0, pmap=0, cpos=0, epos=1, unpair=0, k2prio=0, pa=2, pb=2, struct=0, forcefb=0, abst=0, wsoff=0, cpf=0, ne=1, pp=0, st_mp='sc0 sc1', dst='002211111')
for a in sys.argv[2:]:
    k, v = a.split('=')
    OPT[k] = int(v) if (v.lstrip('-').isdigit() and k not in ('vpos', 'dst')) else v.replace('_', ' ')

def f32bits(x): return struct.unpack('<I', struct.pack('<f', x))[0]
out = []
def A(s): out.append('    ' + s)
def L(s): out.append(s + ':')
_lab = [0]
def newlab(p='L'):
    _lab[0] += 1
    return f'{p}_{_lab[0]}'
def srd(d, b, nbytes):
    if nbytes == WS_BYTES and OPT['wsoff']:
        off = OPT['wsoff'] << 20
        A(f's_add_u32 s{d}, s{b}, {off:#x}')
        A(f's_addc_u32 s{d+1}, s{b+1}, 0')
        A(f's_and_b32 s{d+1}, s{d+1}, 0xffff')
        A(f's_mov_b32 s{d+2}, {nbytes - off:#x}')
        A(f's_mov_b32 s{d+3}, 0x00020000')
        return
    A(f's_mov_b32 s{d}, s{b}')
    A(f's_and_b32 s{d+1}, s{b+1}, 0xffff')
    A(f's_mov_b32 s{d+2}, {nbytes:#x}')
    A(f's_mov_b32 s{d+3}, 0x00020000')
def dpp_scan(op, v):
    for sh in (1, 2, 4, 8):
        A('s_nop 1')
        A(f'{op}_dpp v{v}, v{v}, v{v} row_shr:{sh} row_mask:0xf bank_mask:0xf bound_ctrl:0')
    A('s_nop 1')
    A(f'{op}_dpp v{v}, v{v}, v{v} row_bcast:15 row_mask:0xa bank_mask:0xf')
    A('s_nop 1')
    A(f'{op}_dpp v{v}, v{v}, v{v} row_bcast:31 row_mask:0xc bank_mask:0xf')
def khead(name):
    out.append(f'.globl {name}')
    out.append('.p2align 8')
    out.append(f'.type {name},@function')
    L(name)
SD = 'dst_sel:DWORD dst_unused:UNUSED_PAD'
def abs_start(v):
    if not OPT['abst']: return
    A('s_memrealtime s[4:5]')
    A('s_waitcnt lgkmcnt(0)')
    A(f'v_mov_b32 v{v}, s4')
def abs_end(v, sr, kid, wpb):
    if not OPT['abst']: return
    A('s_mov_b64 exec, -1')
    A('s_waitcnt vmcnt(0)')
    A('s_load_dwordx2 s[4:5], s[0:1], 104')
    A('s_memrealtime s[6:7]')
    A('s_waitcnt lgkmcnt(0)')
    srd(sr, 4, WS_BYTES)
    A('v_lshrrev_b32 v1, 6, v0')
    A(f's_mul_i32 s7, s2, {wpb}')
    A('v_add_u32 v1, s7, v1')
    A('v_lshlrev_b32 v1, 3, v1')
    A(f'v_mov_b32 v2, v{v}')
    A('v_mov_b32 v3, s6')
    A(f's_mov_b32 s7, {0xF000000 + kid*65536:#x}')
    A('s_mov_b64 exec, 1')
    A(f'buffer_store_dwordx2 v[2:3], v1, s[{sr}:{sr+3}], s7 offen')

stampn = [0]
def stamp(key):
    if OPT[key] < 0: return
    n = stampn[0]; stampn[0] += 1
    A(OPT.get('clk','s_memtime').replace(' ','_') + ' s[98:99]')
    A('s_waitcnt lgkmcnt(0)')
    A(f's_mov_b32 s{76+n}, s98')
def stamp_flush(key, swave, vz, wave=0):
    if OPT[key] < 0: return
    lab = newlab('STF')
    A(f's_cmp_lg_u32 s2, {OPT[key]}')
    A(f's_cbranch_scc1 {lab}')
    A(f's_cmp_lg_u32 s{swave}, {wave}')
    A(f's_cbranch_scc1 {lab}')
    A('s_load_dwordx2 s[4:5], s[0:1], 96')
    A('s_waitcnt lgkmcnt(0)')
    srd(72, 4, 256)
    A('s_mov_b64 exec, 1')
    A(f'v_mov_b32 v{vz}, 0')
    for n in range(stampn[0]):
        A(f's_sub_u32 s98, s{76+n}, s76')
        A(f'v_mov_b32 v{vz+1}, s98')
        A(f'buffer_store_dword v{vz+1}, v{vz}, s[72:75], 0 offen offset:{4*n}')
        A('s_nop 1')
    L(lab)

L_H, L_SC, L_ST = 0, 16384, 16640
L_X = L_ST
L_W = L_X + NBLK * 4 + 8
LDS1 = L_W + NBLK * 12
assert L_W < 65536 and L_W % 16 == 0
L_ARB, L_A, L_SC2 = 50000, 50176, 150176
LDS2 = L_SC2 + 64
MP_BASE = 0x4C10000
CHS = 50176
G3 = (E + 256*OPT['ne'] - 1) // (256*OPT['ne'])

hdr = open('standalone__molecular_angular_gemnet__graph.s.ref').read().split('; Override launch')[0]
out.append(hdr.rstrip())
out.append(f'; @launch kernel=part_kernel grid=(256,1,1) block=(1024,1,1) lds={LDS1}')
out.append(f'; @launch kernel=acc_kernel grid=(256,1,1) block=(1024,1,1) lds={LDS2}')
out.append(f'; @launch kernel=fin_kernel grid=({G3},1,1) block=(256,1,1) lds=0')
out.append('.amdgcn_target "amdgcn-amd-amdhsa--gfx950"')
out.append('.text')

khead('part_kernel')
A('s_cmp_ge_u32 s2, 256')
A('s_cbranch_scc1 P_END')
abs_start(7+0) if False else abs_start(87)
A('s_load_dwordx4 s[4:7], s[0:1], 0')
A('s_load_dwordx2 s[8:9], s[0:1], 16')
A('s_load_dwordx2 s[10:11], s[0:1], 32')
A('s_load_dwordx2 s[12:13], s[0:1], 48')
A('s_load_dwordx2 s[14:15], s[0:1], 104')
S_IN, S_OUT, S_ANG, S_WS, S_M = 16, 20, 24, 28, 32
if OPT['prio']: A('s_setprio 3')
if OPT['cpf'] >= 2:
    A('s_getpc_b64 s[58:59]')
    A('v_lshlrev_b32 v48, 7, v0')
    A('v_cmp_gt_u32 vcc, 88, v0')
    A('s_and_saveexec_b64 s[56:57], vcc')
    A('s_cbranch_execz P_NOSPF')
    A('global_load_dword v87, v48, s[58:59]')
    L('P_NOSPF')
    A('s_mov_b64 exec, s[56:57]')
A('v_lshlrev_b32 v1, 4, v0')
A('v_lshlrev_b32 v2, 3, v0')
A('v_mov_b32 v3, 1')
A('v_mov_b32 v4, 0x10000')
A('v_mov_b32 v5, 0')
A('v_lshlrev_b32 v6, 2, v0')
A('v_lshlrev_b32 v7, 1, v0')
TT = 8
for r in range(4): A(f'v_mov_b32 v{TT+4+r}, 0')
A('v_readfirstlane_b32 s50, v0')
A(f'ds_write_b128 v1, v[{TT+4}:{TT+7}]')
A(f'ds_write_b32 v6, v5 offset:{L_SC}')
A(f's_movk_i32 s42, {MINI}')
A('v_cmp_gt_u32 s[40:41], s42, v0')
A('s_waitcnt lgkmcnt(0)')
A('s_load_dword s36, s[12:13], 0')
srd(S_IN, 6, T * 4); srd(S_OUT, 8, T * 4); srd(S_ANG, 10, T * 2); srd(S_WS, 14, WS_BYTES); srd(S_M, 4, E * 8)
A('s_lshr_b32 s50, s50, 6')
A(f's_mul_i32 s37, s2, {2*S*4}')
A(f's_mul_i32 s38, s2, {2*S*2}')
UA = 24
unitA = [(UA + 10*k, UA + 10*k + 4, UA + 10*k + 8) for k in range(6)] + [(84, 85, 86)]
unitB = [(88 + 10*k, 88 + 10*k + 4, 88 + 10*k + 8) for k in range(4)] + [unitA[0], unitA[1], (44, 45, 46)]
vm = []
ldf = OPT['ld_in']
def load_unit(tag, k):
    vi, vo, va = (unitA if tag == 'A' else unitB)[k]
    tile = 0 if tag == 'A' else 1
    A(f's_add_u32 s43, s37, {tile*S*4 + k*16384}')
    A(f's_add_u32 s44, s38, {tile*S*2 + k*8192}')
    if k < 6:
        A(f'buffer_load_dwordx4 v[{vo}:{vo+3}], v1, s[{S_OUT}:{S_OUT+3}], s43 offen {ldf}')
        A(f'buffer_load_dwordx4 v[{vi}:{vi+3}], v1, s[{S_IN}:{S_IN+3}], s43 offen {ldf}')
        A(f'buffer_load_dwordx2 v[{va}:{va+1}], v2, s[{S_ANG}:{S_ANG+3}], s44 offen {ldf}')
    else:
        A('s_or_b64 exec, s[40:41], 1')
        A(f'buffer_load_dword v{vo}, v6, s[{S_OUT}:{S_OUT+3}], s43 offen {ldf}')
        A(f'buffer_load_dword v{vi}, v6, s[{S_IN}:{S_IN+3}], s43 offen {ldf}')
        A(f'buffer_load_ushort v{va}, v7, s[{S_ANG}:{S_ANG+3}], s44 offen {ldf}')
        A('s_mov_b64 exec, -1')
    vm.extend([(tag, k)] * 3)
def vwait(tag):
    idx = max(i for i, t in enumerate(vm) if t == tag)
    A(f's_waitcnt vmcnt({min(len(vm)-1-idx, 63)})')
stamp('stamp')
for k in range(OPT['pre']): load_unit('A', k)
A('s_barrier')
A('s_min_u32 s39, s50, 12')
A('s_and_b32 s42, s2, 3')
A('s_mul_i32 s42, s42, 13')
A('s_add_u32 s39, s39, s42')
A('s_min_u32 s39, s39, 48')
A('s_lshl_b32 s39, s39, 10')
A('s_lshr_b32 s42, s2, 2')
A(f's_mul_i32 s45, s42, {CHS}')
A(f's_mul_i32 s42, s42, {CH*8}')
A('s_add_u32 s45, s45, s39')
A(f's_add_u32 s45, s45, {MP_BASE:#x}')
A('s_add_u32 s39, s39, s42')
A(f'v_and_b32 v{TT+4}, 0xfc, v6')
A(f'v_and_b32 v{TT+5}, 0x3f0, v1')
for k in range(4):
    A(f'buffer_load_dword v{TT+k}, v{TT+4}, s[{S_M}:{S_M+3}], s39 offen offset:{256*k}'); vm.append('M')
for k in range(OPT['pre'], 7): load_unit('A', k)
if OPT['prio']: A('s_setprio 0')
A(f's_mov_b32 s46, {f32bits(1/(2*math.pi)):#x}')
A(f's_mov_b32 s47, {f32bits(1/(2*math.pi)):#x}')
A('s_mov_b32 s48, 0xfc000000')
A('s_mov_b32 s49, 0xffff0000')
A(f's_mov_b32 s51, {(-CH) & 0xffffffff:#x}')
A('s_mov_b32 s52, 0x00020002')
A('s_mov_b32 s53, 0x55555556')
A('s_waitcnt lgkmcnt(0)')
A('s_lshl_b32 s36, s36, 16')

PT = TT + 11
def process(tag, k):
    vi0, vo0, va0 = (unitA if tag == 'A' else unitB)[k]
    inc = 3 if tag == 'A' else 4
    n = 4 if k < 6 else 1
    vwait((tag, k))
    skip = None
    if k == 6:
        skip = newlab('P_MS')
        A('s_mov_b64 exec, s[40:41]')
        A(f's_cbranch_execz {skip}')
    tj, ti, t1 = PT, PT + 1, PT + 2
    for j in range(n):
        vi, vo = vi0 + j, vo0 + j
        A(f'v_mul_hi_u32_u24 v{tj}, {MAGIC_DIV:#x}, v{vi}')
        A(f'v_mul_hi_u32_u24 v{ti}, {MAGIC_DIV:#x}, v{vo}')
        A(f'v_lshl_add_u32 v{vi}, v{vo}, 13, v{vi}')
        A(f'v_lshl_add_u32 v{vo}, v{ti}, 6, v{tj}')
        A(f'v_lshl_add_u32 v{t1}, v{ti}, 13, v{tj}')
        A(f'v_lshlrev_b32 v{vo}, 2, v{vo}')
        A(f'v_mad_i32_i24 v{vi}, v{t1}, s51, v{vi}')
        A(f'ds_add_u32 v{vo}, v{inc} offset:{L_H}')
    a0, a1 = PT + 3, PT + 4
    assert a0 % 2 == 0
    npair = (n + 1) // 2
    nf = newlab('P_NF')
    A('s_cmp_eq_u32 s36, 0x3f800000')
    A(f's_cbranch_scc1 {nf}')
    for p in range(npair):
        va = va0 + p
        A(f'v_lshlrev_b32 v{a0}, 16, v{va}')
        A(f'v_and_b32 v{a1}, s49, v{va}')
        A(f'v_mul_f32 v{a0}, s36, v{a0}')
        A(f'v_mul_f32 v{a1}, s36, v{a1}')
        A(f'v_cvt_pk_bf16_f32 v{va}, v{a0}, v{a1}')
    L(nf)
    for p in range(npair):
        va = va0 + p
        A(f'v_lshlrev_b32 v{a0}, 16, v{va}')
        A(f'v_and_b32 v{a1}, s49, v{va}')
        A(f'v_pk_mul_f32 v[{a0}:{a1}], v[{a0}:{a1}], s[46:47]')
        A(f'v_fract_f32 v{a0}, v{a0}')
        A(f'v_fract_f32 v{a1}, v{a1}')
        A(f'v_cos_f32 v{a0}, v{a0}')
        A(f'v_cos_f32 v{a1}, v{a1}')
        A('s_nop 0')
        A(f'v_cvt_pk_f16_f32 v{va}, v{a0}, v{a1}')
        A(f'v_pk_add_u16 v{va}, v{va}, s52')
        e0, e1 = 2*p, 2*p + 1
        A(f'v_lshlrev_b32 v{a0}, 16, v{va}')
        if e1 < n: A(f'v_and_or_b32 v{vi0+e1}, v{va}, s48, v{vi0+e1}')
        A(f'v_and_or_b32 v{vi0+e0}, v{a0}, s48, v{vi0+e0}')
        A(f'v_lshrrev_b32 v{va}, 2, v{va}')
    if k == 6:
        L(skip)
        A('s_mov_b64 exec, -1')

def maxm():
    vwait('M')
    M = TT + 6
    A('s_mov_b32 s42, 0x7fff7fff')
    for j in range(4): A(f'v_and_b32 v{M+j}, s42, v{TT+j}')
    A(f'v_pk_max_u16 v{M}, v{M}, v{M+2}')
    A(f'v_pk_max_u16 v{M+1}, v{M+1}, v{M+3}')
    A(f'v_pk_max_u16 v{M}, v{M}, v{M+1}')
    A(f'v_lshrrev_b32 v{M+1}, 16, v{M}')
    A(f'v_and_b32 v{M}, 0xffff, v{M}')
    A(f'v_max_u32 v{M}, v{M}, v{M+1}')
    dpp_scan('v_max_u32', M)
    A('s_nop 1')
    A(f'v_readlane_b32 s42, v{M}, 63')
    A('s_nop 1')
    A(f'v_mov_b32 v{M}, s42')
    A('s_mov_b64 exec, 1')
    A(f'ds_max_u32 v5, v{M} offset:{L_SC+128}')
    A('s_mov_b64 exec, -1')
def mpload():
    A('v_and_b32 v47, 0xfc, v6')
    for k in range(4):
        A(f'buffer_load_dword v{84+k}, v47, s[{S_M}:{S_M+3}], s39 offen offset:{256*k}'); vm.append('M2')
def mpstore():
    vwait('M2')
    A('v_and_b32 v47, 0x3f0, v1')
    A(f'buffer_store_dwordx4 v[84:87], v47, s[{S_WS}:{S_WS+3}], s45 offen {OPT["st_mp"]}'); vm.append('MPS')

def zrow(src, h, tile):
    for j in range(4):
        A(f'v_mul_hi_u32 v{h+8}, v{src+j}, s53')
        A(f'v_add_u32 v{h+10+j}, v{h+8}, v{src+j}')
    A(f'v_lshl_or_b32 v{h+8}, v{h+11}, 16, v{h+10}')
    A(f'v_lshl_or_b32 v{h+9}, v{h+13}, 16, v{h+12}')
    A(f's_mul_i32 s42, s2, {2*OFS}')
    A(f's_add_u32 s42, s42, {OFF_BASE + tile*OFS:#x}')
    A(f'buffer_store_dwordx2 v[{h+8}:{h+9}], v2, s[{S_WS}:{S_WS+3}], s42 offen offset:16')
    vm.append(('OFS', tile))

def scan(tile, scoff):
    h = TT
    A('s_waitcnt lgkmcnt(0)')
    A('s_barrier')
    A(f'ds_read_b128 v[{h}:{h+3}], v1 offset:{L_H}')
    A(f'v_and_b32 v{h+5}, 63, v0')
    A(f'v_cmp_lt_u32 vcc, s50, v{h+5}')
    A(f'v_lshlrev_b32 v{h+5}, 2, v{h+5}')
    A('s_and_b64 s[56:57], vcc, 0xffff')
    A('s_waitcnt lgkmcnt(0)')
    if tile == 1:
        for j in range(4): A(f'v_and_b32 v{h+10+j}, 0xffff, v{h+j}')
        for j in range(4): A(f'v_lshrrev_b32 v{h+j}, 16, v{h+j}')
    for j in range(1, 4): A(f'v_add_u32 v{h+j}, v{h+j-1}, v{h+j}')
    A(f'v_mov_b32 v{h+4}, v{h+3}')
    dpp_scan('v_add_u32', h + 4)
    A('s_nop 1')
    A(f'v_readlane_b32 s42, v{h+4}, 63')
    A('s_nop 1')
    A(f'v_mov_b32 v{h+6}, s42')
    A('s_mov_b64 exec, s[56:57]')
    A(f'ds_add_u32 v{h+5}, v{h+6} offset:{scoff}')
    A('s_mov_b64 exec, -1')
    A('s_lshl_b32 s42, s50, 2')
    A(f'v_mov_b32 v{h+5}, s42')
    A(f'v_sub_u32 v{h+4}, v{h+4}, v{h+3}')
    if tile == 1: zrow(h + 10, h, 0)
    A('s_waitcnt lgkmcnt(0)')
    A('s_barrier')
    A(f'ds_read_b32 v{h+5}, v{h+5} offset:{scoff}')
    if tile == 1: A(f'ds_read_b32 v{h+6}, v5 offset:{L_SC+128}')
    A('s_waitcnt lgkmcnt(0)')
    A(f'v_add_u32 v{h+4}, v{h+4}, v{h+5}')
    if tile == 1:
        for j in range(4): A(f'v_add_u32 v{h+10+j}, v{h+4}, v{h+j}')
    for j in (3, 2, 1): A(f'v_add_u32 v{h+j}, v{h+4}, v{h+j-1}')
    A(f'v_mov_b32 v{h}, v{h+4}')
    A(f'ds_write_b128 v1, v[{h}:{h+3}] offset:{L_H}')
    if tile == 1:
        zrow(h + 10, h, 1)
        done = newlab('P_SC')
        A('s_cmp_lg_u32 s50, 0')
        A(f's_cbranch_scc1 {done}')
        A('s_mov_b64 exec, 1')
        A(f'buffer_store_dword v5, v5, s[{S_WS}:{S_WS+3}], s42 offen offset:12')
        A(f's_sub_u32 s42, s42, {OFS}')
        A(f'buffer_store_dword v5, v5, s[{S_WS}:{S_WS+3}], s42 offen offset:12')
        A(f's_add_u32 s42, s2, {MAX_BASE:#x}')
        A(f'v_lshrrev_b32 v{h+6}, 7, v{h+6}')
        A(f'buffer_store_byte v{h+6}, v5, s[{S_WS}:{S_WS+3}], s42 offen')
        A('s_mov_b64 exec, -1')
        L(done)
    A('s_waitcnt lgkmcnt(0)')
    A('s_barrier')

def scatter(tag, after_wait, after_fin):
    units = unitA if tag == 'A' else unitB
    lg = []
    def issue(k):
        vi0, vo0, _ = units[k]
        n = 4 if k < 6 else 1
        if k == 6: A('s_mov_b64 exec, s[40:41]')
        for j in range(n):
            A(f'ds_add_rtn_u32 v{TT+4*(k&1)+j}, v{vo0+j}, v3 offset:{L_H}')
            lg.append(('R', k))
        if k == 6: A('s_mov_b64 exec, -1')
    def fin(k):
        vi0, vo0, va0 = units[k]
        n = 4 if k < 6 else 1
        if k == 6: A('s_mov_b64 exec, s[40:41]')
        for j in range(n):
            t = TT + 4*(k & 1) + j
            q, a = TT + 8, TT + 9 + (j & 1)
            if tag == 'A': A(f'v_and_b32 v{t}, 0xffff, v{t}')
            A(f'v_mul_hi_u32 v{q}, v{t}, s53')
            A(f'v_lshlrev_b32 v{a}, 2, v{t}')
            A(f'v_add_u32 v{t}, v{q}, v{t}')
            A(f'ds_write_b32 v{a}, v{vi0+j} offset:{L_W}')
            A(f'ds_write_b8{"_d16_hi" if j & 1 else ""} v{t}, v{va0+j//2} offset:{L_X}')
            lg.extend([('W', k)] * 2)
        if k == 6: A('s_mov_b64 exec, -1')
    issue(0)
    for k in range(7):
        if k + 1 < 7: issue(k + 1)
        idx = max(i for i, t in enumerate(lg) if t == ('R', k) or t == ('W', k - 1))
        ny = sum(1 for t in lg[idx+1:] if t[1] != 6)
        A(f's_waitcnt lgkmcnt({min(ny, 15)})')
        if k in after_wait: after_wait[k]()
        fin(k)
        if k in after_fin:
            after_fin[k]()
            lg.extend([('H', k)] * 4)
    A('s_waitcnt lgkmcnt(0)')
    A('s_barrier')

RC = (NBLK + 1023) // 1024
lastc = NBLK - (RC - 1) * 1024
def copyout(tile, regs, ar):
    A(f's_movk_i32 s42, {lastc}')
    A('v_cmp_gt_u32 s[56:57], s42, v0')
    A(f'v_mul_u32_u24 v{ar[0]}, 12, v0')
    A(f'v_add_u32 v{ar[0]}, {L_W}, v{ar[0]}')
    A(f's_mul_i32 s42, s2, {2*RS}')
    if tile: A(f's_add_u32 s42, s42, {RS}')
    def rd(j):
        r = regs[j]
        if j == RC - 1: A('s_mov_b64 exec, s[56:57]')
        A(f'ds_read2_b32 v[{r}:{r+1}], v{ar[0]} offset0:0 offset1:1')
        A(f'ds_read_b32 v{r+2}, v{ar[0]} offset:8')
        A(f'ds_read_b32 v{r+3}, v6 offset:{L_X + j*4096}')
        if j == RC - 1: A('s_mov_b64 exec, -1')
        else: A(f'v_add_u32 v{ar[0]}, {12*1024}, v{ar[0]}')
    LA = 4
    for j in range(LA): rd(j)
    for j in range(RC):
        if j + LA < RC: rd(j + LA)
        A(f's_waitcnt lgkmcnt({3*max(0, min(LA, RC-2-j))})')
        if j == RC - 1: A('s_mov_b64 exec, s[56:57]')
        A(f'buffer_store_dwordx4 v[{regs[j]}:{regs[j]+3}], v1, s[{S_WS}:{S_WS+3}], s42 offen {OPT["st_ws"]}')
        if j < RC - 1: vm.append(('ST', tile, j))
        if j < RC - 1: A('s_add_u32 s42, s42, 16384')
    A('s_mov_b64 exec, -1')

stamp('stamp')
process('A', 0)
stamp('stamp')
maxm()
for k in range(1, 7): process('A', k)
stamp('stamp')
NPB = OPT['npb']
for k in range(NPB): load_unit('B', k)
scan(0, L_SC)
stamp('stamp')
ilv = dict((int(x.split(':')[0]), int(x.split(':')[1])) for x in OPT['ilv'].split(',')) if OPT['ilv'] else {}
pend = list(range(NPB, 7))
aw = {}
for k in range(7):
    take = []
    while pend and len(take) < OPT['bps'] and (pend[0] < 4 or k >= pend[0] - 3):
        take.append(pend.pop(0))
    if k == 6: take += pend; pend = []
    if take: aw[k] = (lambda tk=take: [load_unit('B', b) for b in tk])
scatter('A', aw, {k: (lambda b=b: process('B', b)) for k, b in ilv.items()})
def cpf_code():
    if OPT['cpf']:
        A('s_cmp_lg_u32 s50, 15')
        A('s_cbranch_scc1 P_NOCPF')
        A('s_getpc_b64 s[58:59]')
        L('P_PC')
        A('s_add_u32 s58, s58, acc_kernel-P_PC')
        A('s_addc_u32 s59, s59, 0')
        A('v_and_b32 v19, 63, v0')
        A('v_lshlrev_b32 v19, 7, v19')
        for j in range(3):
            A(f'v_min_u32 v20, CODE_END-acc_kernel-4, v19')
            A(f'global_load_dword v21, v20, s[58:59]')
            A('v_add_u32 v19, 8192, v19')
        L('P_NOCPF')
stamp('stamp')
CR = [48 + 4*j for j in range(RC)]
mpload()
if OPT['dst'] == '':
    copyout(0, CR, [TT, TT + 1, TT + 2])
    stamp('stamp')
    for k in range(7):
        if k not in ilv.values(): process('B', k)
    stamp('stamp')
    scan(1, L_SC + 64)
    cpf_code()
    stamp('stamp')
    scatter('B', {}, {})
else:
    A(f's_movk_i32 s42, {lastc}')
    A('v_cmp_gt_u32 s[64:65], s42, v0')
    A(f'v_mul_u32_u24 v{TT}, 12, v0')
    A(f'v_add_u32 v{TT}, {L_W}, v{TT}')
    A(f's_mul_i32 s66, s2, {2*RS}')
    for j in range(RC):
        r = CR[j]
        if j == RC - 1: A('s_mov_b64 exec, s[64:65]')
        A(f'ds_read2_b32 v[{r}:{r+1}], v{TT} offset0:0 offset1:1')
        A(f'ds_read_b32 v{r+2}, v{TT} offset:8')
        A(f'ds_read_b32 v{r+3}, v6 offset:{L_X + j*4096}')
        if j == RC - 1: A('s_mov_b64 exec, -1')
        else: A(f'v_add_u32 v{TT}, {12*1024}, v{TT}')
    nst = [0]
    def st(n):
        for _ in range(n):
            j = nst[0]
            if j >= RC: return
            nst[0] += 1
            if j == RC - 1: A('s_mov_b64 exec, s[64:65]')
            A(f'buffer_store_dwordx4 v[{CR[j]}:{CR[j]+3}], v1, s[{S_WS}:{S_WS+3}], s66 offen {OPT["st_ws"]}')
            if j < RC - 1:
                vm.append(('ST', 0, j)); A('s_add_u32 s66, s66, 16384')
            else: A('s_mov_b64 exec, -1')
    sch = [int(c) for c in OPT['dst']]
    rest = [k for k in range(7) if k not in ilv.values()]
    process('B', rest[0])
    A('s_waitcnt lgkmcnt(0)')
    st(sch[0])
    stamp('stamp')
    for k in rest[1:]: process('B', k)
    st(sch[1])
    stamp('stamp')
    scan(1, L_SC + 64)
    cpf_code()
    stamp('stamp')
    scatter('B', {k: (lambda n=sch[2+k]: st(n)) for k in range(7)}, {})
    assert nst[0] == RC
mpstore()
stamp('stamp')
copyout(1, [48 + 4*j for j in range(RC)], [TT, TT + 1, TT + 2])
stamp('stamp')
if OPT['stamp'] >= 0: A('s_waitcnt vmcnt(0)')
stamp('stamp')
stamp_flush('stamp', 50, TT, OPT.get('swave', 0))
abs_end(87, 64, 0, 16)
L('P_END')
A('s_endpgm')

st2n = [0]
def stamp2():
    if OPT['stamp2'] < 0: return
    n = st2n[0]; st2n[0] += 1
    A(OPT.get('clk','s_memtime').replace(' ','_') + ' s[4:5]')
    A('s_waitcnt lgkmcnt(0)')
    A(f'v_writelane_b32 v127, s4, {n+2}')
khead('acc_kernel')
A('s_cmp_ge_u32 s2, 256')
A('s_cbranch_scc1 Q_END')
abs_start(127)
A('s_load_dwordx2 s[4:5], s[0:1], 0')
A('s_load_dwordx2 s[6:7], s[0:1], 104')
if OPT['pp']: A('s_setprio 3')
S_M, S_WS = 8, 12
A('s_and_b32 s3, s2, 7')
A('s_lshl_b32 s3, s3, 5')
A('s_lshr_b32 s16, s2, 3')
A('s_add_u32 s3, s3, s16')
VTB = 5; VOF = 8
VEB = VOF + 18
def EB(slot, s): return VEB + (slot * 3 + s) * 4
VG = VEB + 48
def G(s, e): return VG + (s * 3 + e) * 2
VCH = VG + 18
VT = VCH + 16
VA = VT + 1
VSH, VFC = VT + 10, VT + 11
VOV = VT + 12
VRM = VOV + 2
assert VOV % 2 == 0 and VRM + 4 <= 127
def OF(s, k): return VOF + 9*s + k
def MK(slot, s, e):
    if s == 2 and e > 0: return 36 + 2 * e
    return 46 + slot * 14 + (s * 3 + e) * 2
A('v_and_b32 v1, 3, v0')
A('v_lshlrev_b32 v2, 4, v0')
A('v_lshrrev_b32 v3, 2, v0')
A('v_and_b32 v4, 1, v0')
A(f'v_bfe_u32 v{VT}, v0, 1, 1')
A(f'v_lshl_add_u32 v{VT}, v{VT}, 8, v3')
A(f'v_mul_u32_u24 v{VT}, {OFS}, v{VT}')
A(f'v_lshl_add_u32 v{VT+1}, v4, 4, v{VT}')
A(f'v_and_b32 v{VT+2}, 63, v0')
A(f'v_lshlrev_b32 v{VT+2}, 2, v{VT+2}')
if not OPT['abst']: A('v_mov_b32 v127, 0')
A('s_lshl_b32 s17, s3, 5')
A(f's_add_u32 s17, s17, {OFF_BASE:#x}')
A(f's_mov_b32 s19, {MAX_BASE:#x}')
A('s_and_b32 s20, s3, 3')
A(f's_mul_i32 s20, s20, {16*CHS}')
A(f's_add_u32 s20, s20, {MP_BASE:#x}')
A('v_cmp_gt_u32 s[22:23], 64, v0')
A('v_readfirstlane_b32 s21, v0')
A('s_nop 3')
A('s_lshl_b32 m0, s21, 4')
A('s_waitcnt lgkmcnt(0)')
srd(S_M, 4, E * 8); srd(S_WS, 6, WS_BYTES)
TO = VG
A(f'buffer_load_dwordx4 v[{TO}:{TO+3}], v{VT+1}, s[{S_WS}:{S_WS+3}], s17 offen offset:16')
A(f'buffer_load_dword v{TO+4}, v{VT}, s[{S_WS}:{S_WS+3}], s17 offen offset:12')
A(f'buffer_load_dword v{VT+9}, v{VT+2}, s[{S_WS}:{S_WS+3}], s19 offen')
if OPT['pp']: A('s_setprio 1' if OPT['pp'] == 2 else 's_setprio 2')
stamp2()
INLOOP = [0]
def ch1(j, live=False):
    sk = None
    if j == 3:
        A('s_and_b64 exec, s[22:23], s[18:19]' if live else 's_mov_b64 exec, s[22:23]')
        sk = newlab('Q_C')
        A(f's_cbranch_execz {sk}')
    else:
        A('s_mov_b64 exec, s[18:19]' if live else 's_mov_b64 exec, -1')
    A(f's_add_u32 s21, s20, {j*16384}')
    if not (OPT['skip_ch'] and INLOOP[0]): A(f'buffer_load_dwordx4 v[{VCH+4*j}:{VCH+4*j+3}], v2, s[{S_WS}:{S_WS+3}], s21 offen {OPT["ld_ch"]}')
    if j == 3: L(sk)
def chall(live=False):
    for j in (3, 0, 1, 2): ch1(j, live)
    A(f's_add_u32 s20, s20, {CHS}')
def fill():
    if OPT['skip_fill']: return
    sk = newlab('Q_F')
    A('s_mov_b64 exec, s[22:23]')
    A(f's_cbranch_execz {sk}')
    for k in range(4): A(f'ds_write_addtid_b32 v{VCH+12+k} offset:{3*16384+256*k}')
    L(sk)
    A('s_mov_b64 exec, -1')
    for j in range(3):
        for k in range(4): A(f'ds_write_addtid_b32 v{VCH+4*j+k} offset:{j*16384+256*k}')
chall()
A(f's_mov_b32 s16, {RS}')
A(f'v_mul_lo_u32 v{VTB}, v3, s16')
A(f'v_add_u32 v{VTB+1}, {256*RS}, v{VTB}')
A('v_cmp_lt_u32 s[36:37], 1, v1')
A('v_lshl_add_u32 v4, v4, 2, 16')
A('v_lshlrev_b32 v1, 2, v1')
A(f'v_add_u32 v{VTB+2}, 16, v1')
A(f'v_add_u32 v3, {L_A}, v2')
z = VEB + 44
for r in range(4): A(f'v_mov_b32 v{z+r}, 0')
for j in range(4): A(f'ds_write_b128 v3, v[{z}:{z+3}] offset:{j*16384}')
A(f'v_add_u32 v{VT+6}, 65536, v3')
for j in range(2): A(f'ds_write_b128 v{VT+6}, v[{z}:{z+3}] offset:{j*16384}')
A('s_movk_i32 s16, 106')
A('v_cmp_gt_u32 s[24:25], s16, v0')
A('s_mov_b64 exec, s[24:25]')
A(f'ds_write_b128 v{VT+6}, v[{z}:{z+3}] offset:{2*16384}')
A('s_mov_b64 exec, -1')
A(f'v_mov_b32 v126, {L_SC2}')
VONE = VSH
A('s_mov_b64 exec, 1')
A(f'ds_write_b128 v126, v[{z}:{z+3}]')
A('s_mov_b64 exec, -1')
A('s_mov_b32 s30, 0xffff0000')
A(f's_mov_b32 s31, {L_A}')
A('s_mov_b32 s35, 0xfc000000')
A(f'v_mov_b32 v{VSH}, 18')
A(f'v_mov_b32 v{VFC}, 0xfffc')
A('s_waitcnt vmcnt(3)')
for s_ in range(2):
    for k in range(9):
        ln = 2*s_ + (1 if k >= 5 else 0)
        src = TO + ((k - 1) % 4 if k > 0 else 4)
        A(f'v_mov_b32_dpp v{OF(s_,k)}, v{src} quad_perm:[{ln},{ln},{ln},{ln}] row_mask:0xf bank_mask:0xf')

def third_sel(r, t, rem, skip=None, ad=None):
    if ad is None: ad = t
    r0, h0, r1, h1 = (r + 1) >> 1, (r + 1) & 1, (r + 2) >> 1, r & 1
    y0, y1, q0, q1, off = t, t + 1, t + 2, t + 3, t + 4
    for s_, y, q in ((0, y0, q0), (1, y1, q1)):
        A(f'v_and_b32_sdwa v{y}, v{OF(s_,r0)}, v{VFC} {SD} src0_sel:WORD_{h0} src1_sel:DWORD')
        A(f'v_sub_u32_sdwa v{q}, v{OF(s_,r1)}, v{y} {SD} src0_sel:WORD_{h1} src1_sel:DWORD')
    A(f'v_cmp_lt_i32 s[42:43], 16, v{q0}')
    A(f'v_cmp_lt_i32 s[44:45], 16, v{q1}')
    if skip:
        A('s_or_b64 vcc, s[42:43], s[44:45]')
        if skip[1]: A('s_and_b64 vcc, vcc, s[18:19]')
        A(f's_cbranch_scc0 {skip[0]}')
    A('s_orn2_b64 vcc, s[36:37], s[42:43]')
    A('s_and_b64 vcc, vcc, s[44:45]')
    A('s_and_b64 s[42:43], s[42:43], s[44:45]')
    A(f'v_cndmask_b32 v{off}, v{VTB+2}, v4, s[42:43]')
    A(f'v_cndmask_b32 v{y0}, v{y0}, v{y1}, vcc')
    A(f'v_cndmask_b32 v{q0}, v{q0}, v{q1}, vcc')
    A(f'v_cndmask_b32 v{y1}, v{VTB}, v{VTB+1}, vcc')
    A(f'v_add_u32 v{y0}, v{y0}, v{off}')
    A(f'v_sub_u32 v{rem}, v{q0}, v{off}')
    A(f'v_lshl_add_u32 v{ad}, v{y0}, 2, v{y1}')

def pf1c(s_, r, ad):
    slot = r % 4
    r0, h0, r1, h1 = (r + 1) >> 1, (r + 1) & 1, (r + 2) >> 1, r & 1
    y, d, ln = VT, VT + 2, VT + 3
    a, b = OF(s_, r0), OF(s_, r1)
    m = [MK(slot, s_, k) for k in range(3)]
    A(f'v_and_b32_sdwa v{y}, v{a}, v{VFC} {SD} src0_sel:WORD_{h0} src1_sel:DWORD')
    A(f'v_sub_u32_sdwa v{ln}, v{b}, v{a} {SD} src0_sel:WORD_{h1} src1_sel:WORD_{h0}')
    A(f'v_add_u32 v{y}, v{y}, v1')
    A(f'v_sub_u32_sdwa v{d}, v{y}, v{a} {SD} src0_sel:DWORD src1_sel:WORD_{h0}')
    A(f'v_lshl_add_u32 v{ad}, v{y}, 2, v{VTB+s_}')
    A(f'v_cmp_lt_u32 s[{m[0]}:{m[0]+1}], v{d}, v{ln}')
    A(f'v_add_u32 v{d}, 1, v{d}')
    A(f'v_cmp_lt_u32 s[{m[1]}:{m[1]+1}], v{d}, v{ln}')
    A(f'v_add_u32 v{d}, 1, v{d}')
    A(f'v_cmp_lt_u32 s[{m[2]}:{m[2]+1}], v{d}, v{ln}')
def pf1i(s_, r, ad, live=False):
    slot = r % 4
    m = [MK(slot, s_, k) for k in range(3)]
    e = EB(slot, s_)
    A(f's_or_b64 vcc, s[{m[0]}:{m[0]+1}], s[{m[1]}:{m[1]+1}]')
    A(f's_or_b64 vcc, vcc, s[{m[2]}:{m[2]+1}]')
    if live: A('s_and_b64 vcc, vcc, s[18:19]')
    A('s_or_b64 exec, vcc, 1')
    if not (OPT['skip_pf'] and INLOOP[0]): A(f'buffer_load_dwordx4 v[{e}:{e+3}], v{ad}, s[{S_WS}:{S_WS+3}], 0 offen {OPT["ld_ent"]}')
def pf3c(r, ad, live=False):
    slot = r % 4
    m = MK(slot, 2, 0)
    sk = newlab('Q_T')
    A(f's_mov_b64 s[{m}:{m+1}], 0')
    third_sel(r, VT, VRM + slot, (sk, live), ad)
    A(f'v_cmp_lt_i32 s[{m}:{m+1}], 0, v{VRM+slot}')
    L(sk)
def pf3i(r, ad):
    slot = r % 4
    m = MK(slot, 2, 0); e = EB(slot, 2)
    sk = newlab('Q_T')
    A(f's_mov_b64 exec, s[{m}:{m+1}]')
    A(f's_cbranch_execz {sk}')
    A(f'buffer_load_dwordx4 v[{e}:{e+3}], v{ad}, s[{S_WS}:{S_WS+3}], 0 offen {OPT["ld_ent"]}')
    L(sk)
def pf1(s_, r, live=False):
    A('s_mov_b64 exec, -1'); pf1c(s_, r, VA); pf1i(s_, r, VA, live)
def pf3(r, live=False):
    A('s_mov_b64 exec, -1'); pf3c(r, VT, live); pf3i(r, VT)
def wait3(r, n, extra=''):
    m3 = MK(r % 4, 2, 0)
    w1 = newlab('Q_W'); w2 = newlab('Q_W')
    A(f's_cmp_eq_u64 s[{m3}:{m3+1}], 0')
    A(f's_cbranch_scc1 {w1}')
    A(f's_waitcnt vmcnt({n+1}){extra}')
    A(f's_branch {w2}')
    L(w1)
    A(f's_waitcnt vmcnt({n}){extra}')
    L(w2)

def gath1(w, g):
    A(f'v_lshlrev_b32 v{g}, 3, v{w}')
    A(f'v_and_b32 v{g}, 0xfff8, v{g}')
    if not OPT['skip_g']: A(f'ds_read_b64 v[{g}:{g+1}], v{g}')

def scat1(w, xr, e, g):
    x, ad = VT, VT + 1
    p0, p2 = VT + 2, VT + 4
    A(f'v_lshlrev_b32_sdwa v{x}, v{VSH}, v{xr} {SD} src0_sel:DWORD src1_sel:BYTE_{e}')
    A(f'v_lshlrev_b32 v{p2}, 16, v{g+1}')
    A(f'v_and_b32 v{p2+1}, s30, v{g+1}')
    A(f'v_and_or_b32 v{x}, v{w}, s35, v{x}')
    A(f'v_bfe_u32 v{ad}, v{w}, 13, 13')
    A(f'v_lshlrev_b32 v{p0}, 16, v{g}')
    A(f'v_and_b32 v{p0+1}, s30, v{g}')
    for r in (p2, p2 + 1, p0, p0 + 1):
        A(f'v_fma_mix_f32 v{r}, v{r}, v{x}, s{26 if r == p0 else 28} op_sel:[0,1,0] op_sel_hi:[0,1,0]')
        if r == p2: A(f'v_lshl_add_u32 v{ad}, v{ad}, 3, s31')
        if r == p2 + 1: A(f'ds_add_u64 v{ad}, v[{p2}:{p2+1}] offset:{L_ARB}')
    A(f'v_add_u32 v{p0}, s34, v{p0}')
    A(f'ds_add_u64 v{ad}, v[{p0}:{p0+1}]')

def Gset(r, s_):
    slot = r % 4
    for e in range(3):
        m = MK(slot, s_, e)
        A(f's_mov_b64 exec, s[{m}:{m+1}]')
        gath1(EB(slot, s_) + e, G(s_, e))
def Gthird(r):
    slot = r % 4
    done = newlab('Q_GI')
    m = MK(slot, 2, 0)
    A(f's_mov_b64 exec, s[{m}:{m+1}]')
    A(f's_cbranch_execz {done}')
    gath1(EB(slot, 2), G(2, 0))
    rem = VRM + slot
    A(f'v_cmp_lt_i32 s[38:39], 1, v{rem}')
    A(f'v_cmp_lt_i32 s[40:41], 2, v{rem}')
    A(f'v_cmp_lt_i32 s[42:43], 8, v{rem}')
    for e in (1, 2):
        A(f's_mov_b64 exec, s[{36+2*e}:{37+2*e}]')
        A(f's_cbranch_execz {done}')
        gath1(EB(slot, 2) + e, G(2, e))
    A('s_mov_b64 exec, s[42:43]')
    A(f's_cbranch_execz {done}')
    A('s_mov_b64 exec, -1')
    third_sel(r, VT, rem)
    ad, stp, w, xr = VT + 6, VT + 7, VT + 8, VT + 9
    A(f'v_mov_b32 v{ad}, v{VT}')
    A(f'v_cndmask_b32 v{stp}, 16, 8, s[42:43]')
    lp = newlab('Q_SL')
    L(lp)
    A(f'v_sub_u32 v{rem}, v{rem}, v{stp}')
    A(f'v_lshl_add_u32 v{ad}, v{stp}, 2, v{ad}')
    A(f'v_cmpx_lt_i32 vcc, 0, v{rem}')
    A(f's_cbranch_execz {done}')
    A('s_mov_b64 s[44:45], exec')
    nx = newlab('Q_SN')
    for e in range(3):
        A(f'buffer_load_dword v{w}, v{ad}, s[{S_WS}:{S_WS+3}], 0 offen offset:{4*e}')
        A(f'buffer_load_dword v{xr}, v{ad}, s[{S_WS}:{S_WS+3}], 0 offen offset:12')
        A('s_waitcnt vmcnt(0)')
        A(f'v_lshlrev_b32 v{VOV}, 3, v{w}')
        A(f'v_and_b32 v{VOV}, 0xfff8, v{VOV}')
        A(f'ds_read_b64 v[{VOV}:{VOV+1}], v{VOV}')
        A('s_waitcnt lgkmcnt(0)')
        scat1(w, xr, e, VOV)
        if e < 2:
            A(f'v_cmpx_lt_i32 vcc, {1+e}, v{rem}')
            A(f's_cbranch_execz {nx}')
    L(nx)
    A('s_mov_b64 exec, s[44:45]')
    A(f's_branch {lp}')
    L(done)
def Sset(r, s_, hooks={}):
    slot = r % 4
    done = newlab('Q_S')
    for e in range(3):
        if e in hooks: hooks[e]()
        m = MK(slot, s_, e)
        A(f's_mov_b64 exec, s[{m}:{m+1}]')
        if s_ == 2: A(f's_cbranch_execz {done}')
        b = EB(slot, s_)
        if not OPT['skip_s']: scat1(b + e, b + 3, e, G(s_, e))
    L(done)

if OPT['pp']: A('s_setprio 2' if OPT['pp'] == 2 else 's_setprio 1')
pf1(0, 0); pf1(1, 0); pf3(0)
if OPT['pp']: A('s_setprio 0')
pf1(0, 1)
A('s_mov_b64 exec, -1')
A(f'v_max_u32_sdwa v{VT+2}, v{VT+9}, v{VT+9} {SD} src0_sel:BYTE_0 src1_sel:BYTE_1')
A(f'v_max_u32_sdwa v{VT+3}, v{VT+9}, v{VT+9} {SD} src0_sel:BYTE_2 src1_sel:BYTE_3')
A(f'v_max_u32 v{VT+9}, v{VT+2}, v{VT+3}')
dpp_scan('v_max_u32', VT + 9)
A('s_nop 1')
A(f'v_readlane_b32 s29, v{VT+9}, 63')
for s_ in range(2):
    A(f'v_lshrrev_b32 v{VT+2}, 16, v{OF(s_,0)}')
    A(f'v_lshrrev_b32 v{VT+3}, 18, v{OF(s_,0)}')
    A(f'v_sub_u32 v{VT+2}, v{VT+2}, v{VT+3}')
    A(f'v_lshrrev_b32 v{VT+3}, 18, v{OF(s_,8)}')
    A(f'v_add_u32 v{VT+2}, v{VT+2}, v{VT+3}')
    A(f'v_lshrrev_b32 v{VT+3}, 16, v{OF(s_,8)}')
    A(f'v_sub_u32 v{VT+4+s_}, v{VT+2}, v{VT+3}')
A(f'v_add_u32 v{VT+2}, v{VT+4}, v{VT+5}')
dpp_scan('v_add_u32', VT + 2)
A('s_nop 1')
A(f'v_readlane_b32 s32, v{VT+2}, 63')
A('s_min_u32 s27, s29, 249')
A('s_add_u32 s28, s27, 2')
A('s_lshl_b32 s28, s28, 23')
A('s_or_b32 s28, s28, 0x400000')
A('s_add_u32 s26, s27, 5')
A('s_lshl_b32 s26, s26, 23')
A('s_sub_u32 s34, 0x4000000, s26')
A('s_or_b32 s26, s26, 0x80000')
A('s_waitcnt vmcnt(3)')
fill()
chall()
A('s_mov_b32 s33, 0')
A('s_mov_b64 s[18:19], -1')
A('s_waitcnt vmcnt(4) lgkmcnt(0)')
stamp2()
A('s_barrier')
Gset(0, 0); Gset(0, 1); Gthird(0)
pf1(1, 1); pf1(1, 2); pf3(1)
wait3(1, 2, ' lgkmcnt(0)')
if OPT['skip_pf']:
    pf1(0, 2); pf1(0, 3); pf1(1, 3); A('s_waitcnt vmcnt(0)')
INLOOP[0] = 1
A('s_mov_b64 exec, -1')
A(f'v_mov_b32 v{VT+8}, 0')
L('Q_LOOP')
for r in range(4):
    ps = r & 1
    if r == 1: stamp2()
    A('s_barrier')
    if r == 1: stamp2()
    lastr = newlab('Q_SK')
    if r == 3:
        A('s_cmp_eq_u32 s33, 3')
        A(f's_cbranch_scc1 Q_LAST')
    fill()
    st = OPT['struct']
    if st == 0:
        chall(r >= 2)
        Sset(r, 0)
        A('s_waitcnt vmcnt(3) lgkmcnt(0)')
        if r == 1: stamp2()
        A('s_barrier')
        if r == 1: stamp2()
        Gset(r + 1, 0)
        Sset(r, 1, {1: lambda: pf1(ps, r + 2, r + 2 >= 4), 2: lambda: pf1(ps, r + 3, r + 3 >= 4)})
        Gset(r + 1, 1)
        Sset(r, 2)
        Gthird(r + 1)
        pf3(r + 2, r + 2 >= 4)
    elif st == 3:
        chall(r >= 2)
        Sset(r, 0, {0: lambda: pf1(ps, r + 2, r + 2 >= 4), 1: lambda: pf1(ps, r + 3, r + 3 >= 4), 2: lambda: pf3(r + 2, r + 2 >= 4)})
        wait3(r + 2, 5, ' lgkmcnt(0)')
        A('s_barrier')
        Gset(r + 1, 0)
        Sset(r, 1)
        Gset(r + 1, 1)
        Sset(r, 2)
        Gthird(r + 1)
    elif st == 4:
        chall(r >= 2)
        Sset(r, 0, {1: lambda: pf1(ps, r + 2, r + 2 >= 4), 2: lambda: pf1(ps, r + 3, r + 3 >= 4)})
        A('s_waitcnt vmcnt(5) lgkmcnt(0)')
        A('s_barrier')
        Gset(r + 1, 0)
        Sset(r, 2)
        Gthird(r + 1)
        Sset(r, 1, {0: lambda: pf3(r + 2, r + 2 >= 4)})
        Gset(r + 1, 1)
    elif st in (5, 6, 7):
        full = lambda: A('s_mov_b64 exec, -1')
        chall(r >= 2)
        Sset(r, 0, {0: lambda: (full(), pf1c(ps, r + 2, VT + 6)), 1: lambda: (full(), pf1c(ps, r + 3, VT + 7)), 2: lambda: (full(), pf3c(r + 2, VT + 8, r + 2 >= 4))})
        A('s_waitcnt vmcnt(3) lgkmcnt(0)')
        A('s_barrier')
        i0 = lambda: pf1i(ps, r + 2, VT + 6, r + 2 >= 4)
        i1 = lambda: pf1i(ps, r + 3, VT + 7, r + 3 >= 4)
        i2 = lambda: pf3i(r + 2, VT + 8)
        Gset(r + 1, 0)
        if st == 5: Sset(r, 1, {0: i0, 1: i1, 2: i2})
        if st == 6: Sset(r, 1, {0: lambda: (i0(), i1(), i2())})
        if st == 7: Sset(r, 1, {1: i0, 2: i1})
        Gset(r + 1, 1)
        if st == 7: i2()
        Sset(r, 2)
        Gthird(r + 1)
    elif st == 1:
        chall(r >= 2)
        Sset(r, 0)
        Sset(r, 2)
        A('s_waitcnt vmcnt(3) lgkmcnt(0)')
        A('s_barrier')
        Gset(r + 1, 0)
        Gthird(r + 1)
        Sset(r, 1)
        Gset(r + 1, 1)
        pf1(ps, r + 2, r + 2 >= 4); pf1(ps, r + 3, r + 3 >= 4)
        pf3(r + 2, r + 2 >= 4)
    elif st == 2:
        chall(r >= 2)
        Sset(r, 0)
        Sset(r, 1)
        Sset(r, 2)
        A('s_waitcnt vmcnt(3) lgkmcnt(0)')
        A('s_barrier')
        Gset(r + 1, 0)
        Gset(r + 1, 1)
        Gthird(r + 1)
        pf1(ps, r + 2, r + 2 >= 4); pf1(ps, r + 3, r + 3 >= 4)
        pf3(r + 2, r + 2 >= 4)
    if r == 3:
        A('s_mov_b64 exec, -1')
        A('s_add_u32 s33, s33, 1')
        A('s_cmp_eq_u32 s33, 3')
        A('s_cselect_b64 s[18:19], 1, -1')
        for s_ in range(2):
            for k in range(0, 7): A(f'v_mov_b32 v{OF(s_,k)}, v{OF(s_,k+2)}')
    wait3(r + 2, 2, ' lgkmcnt(0)')
A('s_branch Q_LOOP')
L('Q_LAST')
Sset(3, 0)
Sset(3, 1)
Sset(3, 2)
A('s_mov_b64 exec, -1')
A('s_waitcnt lgkmcnt(0)')
stamp2()
A('s_barrier')
A('v_lshlrev_b32 v3, 3, v0')
A(f'v_add_u32 v7, {L_A}, v3')
RA = 8
for k in range(7):
    if k == 6: A('s_mov_b64 exec, s[24:25]')
    A(f'ds_read_b64 v[{RA+4*k}:{RA+4*k+1}], v7 offset:{k*8192}')
A('s_mov_b64 exec, -1')
A(f'v_add_u32 v4, {L_ARB}, v7')
for k in range(7):
    if k == 6: A('s_mov_b64 exec, s[24:25]')
    A(f'ds_read_b64 v[{RA+4*k+2}:{RA+4*k+3}], v4 offset:{k*8192}')
A('s_mov_b64 exec, -1')
A('s_and_b32 s16, s3, 3'); A(f's_mul_i32 s16, s16, {E*8}')
A('s_lshr_b32 s17, s3, 2'); A(f's_mul_i32 s17, s17, {CH*8}')
A('s_add_u32 s16, s16, s17'); A(f's_add_u32 s16, s16, {PART_BASE:#x}')
A('v_mov_b32 v5, 0')
A(f's_mov_b32 s36, {f32bits(2.0**-10):#x}')
A(f's_mov_b32 s37, {f32bits(2.0**-13):#x}')
A('s_mov_b32 s38, s37'); A('s_mov_b32 s39, s37')
A('s_sub_i32 s40, s27, 135')
A('v_mov_b32 v6, 1.0')
A('v_ldexp_f32 v6, v6, s40')
A('s_lshl_b32 s41, s3, 2')
A(f's_add_u32 s41, s41, {SCL_BASE:#x}')
A('v_cmp_eq_u32 vcc, 0, v0')
A('s_mov_b64 exec, vcc')
A(f'buffer_store_dword v6, v5, s[{S_WS}:{S_WS+3}], s41 offen')
A('s_mov_b64 exec, -1')
X = 40
for k in range(7):
    a0, a1, b0, b1 = RA + 4*k, RA + 4*k + 1, RA + 4*k + 2, RA + 4*k + 3
    c = X; P = X + 2; t = X + 4
    A(f's_waitcnt lgkmcnt({max(0,5-k)})')
    if k == 6: A('s_mov_b64 exec, s[24:25]')
    A(f'v_lshrrev_b32 v{c}, 26, v{a0}')
    A(f'v_and_b32 v{a0}, 0x3ffffff, v{a0}')
    A(f'v_mad_u64_u32 v[{P}:{P+1}], vcc, v{c}, s28, 0')
    A(f'v_lshlrev_b32 v{t}, 19, v{c}')
    A(f'v_add_u32 v5, v5, v{c}')
    A(f'v_sub_u32 v{a0}, v{a0}, v{t}')
    A(f'v_sub_u32 v{a1}, v{a1}, v{P}')
    A(f'v_add_u32 v{P+1}, v{P+1}, v{P}')
    A(f'v_sub_co_u32 v{b0}, vcc, v{b0}, v{P}')
    A(f'v_cvt_f32_i32 v{a0}, v{a0}')
    A(f'v_cvt_f32_i32 v{a1}, v{a1}')
    A(f'v_subb_co_u32 v{b1}, vcc, v{b1}, v{P+1}, vcc')
    A(f'v_ashrrev_i32 v{t}, 31, v{b0}')
    A(f'v_cvt_f32_i32 v{b0}, v{b0}')
    A(f'v_sub_u32 v{b1}, v{b1}, v{t}')
    A(f'v_pk_mul_f32 v[{a0}:{a1}], v[{a0}:{a1}], s[36:37]')
    A(f'v_cvt_f32_i32 v{b1}, v{b1}')
    A(f'v_cvt_pk_f16_f32 v{a0}, v{a0}, v{a1}')
    A(f'v_pk_mul_f32 v[{b0}:{b1}], v[{b0}:{b1}], s[38:39]')
    A(f'v_cvt_pk_f16_f32 v{a1}, v{b0}, v{b1}')
    A(f'buffer_store_dwordx2 v[{a0}:{a1}], v3, s[{S_WS}:{S_WS+3}], s16 offen {OPT["st_part"]}')
    A('s_add_u32 s16, s16, 8192')
A('s_mov_b64 exec, -1')
dpp_scan('v_add_u32', 5)
A('s_nop 1')
A('v_readlane_b32 s42, v5, 63')
A('s_nop 3')
A('s_lshl_b32 s42, s42, 2')
A('s_add_u32 s42, s42, s32')
A('v_mov_b32 v6, s42')
A('v_mov_b32 v7, s32')
A('s_mov_b64 exec, 1')
A('ds_add_u32 v126, v6')
A('ds_sub_u32 v126, v7 offset:4')
A('s_mov_b64 exec, -1')
A('s_waitcnt lgkmcnt(0)')
A('s_barrier')
A('ds_read_b64 v[6:7], v126')
A('s_waitcnt lgkmcnt(0)')
A('v_readfirstlane_b32 s42, v6')
A('v_readfirstlane_b32 s43, v7')
A('s_nop 3')
if OPT['forcefb']: A('s_mov_b32 s42, 1')
A('s_cmp_gt_u32 s29, 249')
A('s_cselect_b32 s42, 1, s42')
A('s_cmp_eq_u32 s42, 0')
A('s_cbranch_scc1 Q_FIN')
A('s_waitcnt vmcnt(0)')
A('s_min_u32 s27, s29, 254')
A('s_add_u32 s45, s27, 923')
A('s_lshl_b32 s45, s45, 20')
A('s_or_b32 s45, s45, 0x80000')
A('s_mov_b32 s44, 0')
A('s_lshr_b32 s43, s43, 2')
A('s_flbit_i32_b32 s46, s43')
A('s_max_i32 s46, s46, 0')
A('s_sub_u32 s46, 32, s46')
A('s_sub_i32 s47, -11, s46')
A('s_add_u32 s40, s27, s46')
A('s_sub_i32 s40, s40, 141')
A('v_mov_b32 v6, 1.0')
A('v_ldexp_f32 v6, v6, s40')
A('v_mov_b32 v5, 0')
A('v_cmp_eq_u32 vcc, 0, v0')
A('s_mov_b64 exec, vcc')
A(f'buffer_store_dword v6, v5, s[{S_WS}:{S_WS+3}], s41 offen')
A('s_mov_b64 exec, -1')
A('v_lshrrev_b32 v8, 1, v0')
A(f'v_mul_u32_u24 v9, {OFS}, v8')
A(f's_mov_b32 s16, {RS}')
A('v_mul_lo_u32 v8, v8, s16')
A('v_and_b32 v10, 1, v0')
for r in range(12, 16): A(f'v_mov_b32 v{r}, 0')
A('v_add_u32 v11, 65536, v2')
A('s_mov_b32 s48, 0')
L('Q_FH')
A('s_barrier')
for j in range(4): A(f'ds_write_b128 v2, v[12:15] offset:{j*16384}')
for j in range(2): A(f'ds_write_b128 v11, v[12:15] offset:{j*16384}')
A('s_mov_b64 exec, s[24:25]')
A(f'ds_write_b128 v11, v[12:15] offset:{2*16384}')
A('s_mov_b64 exec, -1')
A('s_waitcnt lgkmcnt(0)')
A('s_barrier')
A('s_lshl_b32 s49, s3, 5')
A(f's_add_u32 s49, s49, {OFF_BASE:#x}')
A('s_and_b32 s50, s3, 3')
A(f's_mul_i32 s50, s50, {16*CH*8}')
A('s_mov_b32 s51, 0')
L('Q_FR')
A(f'buffer_load_ushort v16, v9, s[{S_WS}:{S_WS+3}], s49 offen offset:14')
A(f'buffer_load_ushort v17, v9, s[{S_WS}:{S_WS+3}], s49 offen offset:16')
A('s_waitcnt vmcnt(0)')
A('v_add_u32 v16, v16, v10')
L('Q_FI')
A('v_cmp_lt_u32 vcc, v16, v17')
A('s_and_b64 exec, exec, vcc')
A('s_cbranch_execz Q_FRN')
A('s_mov_b64 s[52:53], exec')
A('v_and_b32 v18, 3, v16')
A('v_lshl_add_u32 v19, v16, 2, v8')
A('v_or_b32 v20, 3, v16')
A('v_lshl_add_u32 v20, v20, 2, v8')
A('v_add_u32 v20, v20, v18')
A(f'buffer_load_dword v21, v19, s[{S_WS}:{S_WS+3}], 0 offen')
A(f'buffer_load_ubyte v22, v20, s[{S_WS}:{S_WS+3}], 0 offen')
A('s_waitcnt vmcnt(0)')
A('v_bfe_u32 v23, v21, 13, 13')
A('v_subrev_u32 v23, s48, v23')
A('s_movk_i32 s16, 3125')
A('v_cmp_gt_u32 vcc, s16, v23')
A('v_cmp_ne_u32 s[54:55], 3, v18')
A('s_and_b64 vcc, vcc, s[54:55]')
A('v_bfe_u32 v24, v21, 0, 13')
A('v_lshlrev_b32 v24, 3, v24')
A('s_and_b64 exec, exec, vcc')
A('s_cbranch_execz Q_FIN2')
A(f'buffer_load_dwordx2 v[26:27], v24, s[{S_M}:{S_M+3}], s50 offen')
A('v_lshlrev_b32 v22, 2, v22')
A('v_lshrrev_b32 v25, 16, v21')
A('v_and_b32 v25, 0xfc00, v25')
A('v_or_b32 v25, v25, v22')
A('v_cvt_f32_f16 v25, v25')
A('v_cvt_f64_f32 v[28:29], v25')
A('v_lshlrev_b32 v23, 3, v23')
A('v_add_u32 v38, 50000, v23')
A('s_waitcnt vmcnt(0)')
A('v_lshlrev_b32 v30, 16, v26'); A('v_and_b32 v32, s30, v26')
A('v_lshlrev_b32 v34, 16, v27'); A('v_and_b32 v36, s30, v27')
for j, r in enumerate((30, 32, 34, 36)):
    A(f'v_cvt_f64_f32 v[{r}:{r+1}], v{r}')
    A(f'v_fma_f64 v[{r}:{r+1}], v[{r}:{r+1}], v[28:29], s[44:45]')
    A(f'ds_add_u64 v{23 if j < 2 else 38}, v[{r}:{r+1}] offset:{(j & 1) * 25000}')
L('Q_FIN2')
A('s_mov_b64 exec, s[52:53]')
A('v_add_u32 v16, 2, v16')
A('s_branch Q_FI')
L('Q_FRN')
A('s_mov_b64 exec, -1')
A('s_add_u32 s49, s49, 2')
A(f's_add_u32 s50, s50, {CH*8}')
A('s_add_u32 s51, s51, 1')
A('s_cmp_lt_u32 s51, 16')
A('s_cbranch_scc1 Q_FR')
A('s_waitcnt lgkmcnt(0)')
A('s_barrier')
A('s_and_b32 s16, s3, 3'); A(f's_mul_i32 s16, s16, {E*8}')
A('s_lshr_b32 s17, s3, 2'); A(f's_mul_i32 s17, s17, {CH*8}')
A('s_add_u32 s16, s16, s17'); A(f's_add_u32 s16, s16, {PART_BASE:#x}')
A('s_lshl_b32 s17, s48, 3'); A('s_add_u32 s16, s16, s17')
A('s_mov_b32 s52, 0'); A('s_mov_b32 s53, 0x41f00000')
A('v_mov_b32 v16, v3')
L('Q_FC')
A('s_movk_i32 s17, 25000')
A('v_cmp_gt_u32 vcc, s17, v16')
A('s_and_b64 exec, exec, vcc')
A('s_cbranch_execz Q_FCD')
A('v_add_u32 v17, 50000, v16')
for j in range(4):
    A(f'ds_read_b64 v[{18+2*j}:{19+2*j}], v{16 if j < 2 else 17} offset:{(j & 1) * 25000}')
A('s_waitcnt lgkmcnt(0)')
for j in range(4):
    lo, hi = 18 + 2*j, 19 + 2*j
    A(f'v_bfe_i32 v{hi}, v{hi}, 0, 19')
    A(f'v_cvt_f64_u32 v[26:27], v{lo}')
    A(f'v_cvt_f64_i32 v[28:29], v{hi}')
    A('v_fma_f64 v[26:27], v[28:29], s[52:53], v[26:27]')
    A('v_ldexp_f64 v[26:27], v[26:27], s47')
    A(f'v_cvt_f32_f64 v{30+j}, v[26:27]')
A('v_cvt_pk_f16_f32 v34, v30, v31')
A('v_cvt_pk_f16_f32 v35, v32, v33')
A(f'buffer_store_dwordx2 v[34:35], v16, s[{S_WS}:{S_WS+3}], s16 offen')
A('v_add_u32 v16, 8192, v16')
A('s_branch Q_FC')
L('Q_FCD')
A('s_mov_b64 exec, -1')
A('s_add_u32 s48, s48, 3125')
A('s_cmp_lt_u32 s48, 6250')
A('s_cbranch_scc1 Q_FH')
L('Q_FIN')
stamp2()
if OPT['stamp2'] >= 0:
    A('s_waitcnt vmcnt(0)')
    stamp2()
    A('v_readfirstlane_b32 s54, v0')
    A('s_nop 3')
    A(f's_cmp_lg_u32 s2, {OPT["stamp2"]}')
    A('s_cbranch_scc1 Q_END')
    A(f's_cmp_lg_u32 s54, {64*OPT.get("swave", 0)}')
    A('s_cbranch_scc1 Q_END')
    A('s_load_dwordx2 s[4:5], s[0:1], 96')
    A('s_waitcnt lgkmcnt(0)')
    srd(72, 4, 256)
    A('v_readlane_b32 s54, v127, 2')
    A('v_and_b32 v4, 63, v0')
    A('v_lshlrev_b32 v4, 2, v4')
    A('v_subrev_u32 v127, s54, v127')
    A('buffer_store_dword v127, v4, s[72:75], 0 offen')
abs_end(127, 64, 1, 16)
L('Q_END')
A('s_endpgm')

NE = OPT['ne']
khead('fin_kernel')
A(f's_cmp_ge_u32 s2, {G3}')
A('s_cbranch_scc1 F_END')
abs_start(1)
A('s_load_dwordx2 s[4:5], s[0:1], 0')
A('s_load_dwordx2 s[6:7], s[0:1], 104')
A('s_load_dwordx2 s[8:9], s[0:1], 24')
A('s_load_dwordx2 s[10:11], s[0:1], 88')
A('s_load_dwordx2 s[28:29], s[0:1], 40')
A('s_load_dwordx8 s[64:71], s[0:1], 56')
S_M, S_WS, S_DIST, S_O = 12, 16, 20, 24
A(f's_mul_i32 s3, s2, {256*NE}')
VB = 2
def R(i, n): return VB + 40 * i + n
for i in range(NE):
    e, t = R(i, 1), R(i, 2)
    A(f'v_add_u32 v{e}, s3, v0')
    if i: A(f'v_add_u32 v{e}, {256*i}, v{e}')
    A(f'v_lshlrev_b32 v{R(i,3)}, 1, v{e}')
    A(f'v_min_u32 v{t}, {E-1}, v{e}')
    A(f'v_lshlrev_b32 v{R(i,0)}, 3, v{t}')
    A(f'v_mul_hi_u32_u24 v{t}, {MAGIC_DIV:#x}, v{t}')
    A(f'v_lshlrev_b32 v{t}, 4, v{t}')
    A(f'v_lshlrev_b32 v{e}, 3, v{e}')
A('s_waitcnt lgkmcnt(0)')
srd(S_DIST, 8, E * 2)
for i in range(NE):
    A(f'buffer_load_ushort v{R(i,3)}, v{R(i,3)}, s[{S_DIST}:{S_DIST+3}], 0 offen')
A('s_load_dwordx4 s[28:31], s[28:29], 0')
A('s_load_dwordx16 s[32:47], s[64:65], 0')
A('s_load_dwordx16 s[48:63], s[66:67], 0')
A('s_load_dwordx8 s[72:79], s[70:71], 0')
A('s_load_dwordx8 s[64:71], s[68:69], 0')
srd(S_WS, 6, WS_BYTES); srd(S_M, 4, E * 8); srd(S_O, 10, E * 8)
for i in range(NE):
    A(f's_mov_b32 s4, {SCL_BASE:#x}')
    A(f'buffer_load_dwordx4 v[{R(i,6)}:{R(i,9)}], v{R(i,2)}, s[{S_WS}:{S_WS+3}], s4 offen')
    for p in range(4):
        A(f's_mov_b32 s4, {PART_BASE + p*E*8:#x}')
        A(f'buffer_load_dwordx2 v[{R(i,32+2*p)}:{R(i,33+2*p)}], v{R(i,0)}, s[{S_WS}:{S_WS+3}], s4 offen {OPT["ld_part"]}')
    A(f'buffer_load_dwordx2 v[{R(i,4)}:{R(i,5)}], v{R(i,1)}, s[{S_M}:{S_M+3}], 0 offen')
A('s_mov_b32 s5, 0xffff0000')
A(f's_mov_b32 s8, {f32bits(-10.0):#x}')
A(f's_mov_b32 s9, {f32bits(math.log2(math.e)):#x}')
def sw(base, idx, dst):
    sr = base + idx // 2
    if idx & 1: A(f's_and_b32 s{dst}, s{sr}, 0xffff0000')
    else: A(f's_lshl_b32 s{dst}, s{sr}, 16')
def spk(base, r, d, dst):
    op = 's_pack_hh_b32_b16' if d & 1 else 's_pack_ll_b32_b16'
    A(f'{op} s{dst}, s{base + r*2 + d//2}, s{base + (r+1)*2 + d//2}')
def unp(a, b, t):
    A(f'v_lshlrev_b32 v{a}, 16, v{t}')
    A(f'v_and_b32 v{b}, s5, v{t}')
def rnd2(a, b, t):
    A(f'v_cvt_pk_bf16_f32 v{t}, v{a}, v{b}')
    unp(a, b, t)
A(f's_waitcnt vmcnt({6*NE}) lgkmcnt(0)')
for i in range(NE): A(f'v_lshlrev_b32 v{R(i,3)}, 16, v{R(i,3)}')
for r in range(0, 8, 2):
    sw(28, r, 6); sw(28, r + 1, 7)
    for i in range(NE):
        a_, b_, t = R(i, 14), R(i, 15), R(i, 2)
        A(f'v_subrev_f32 v{a_}, s6, v{R(i,3)}')
        A(f'v_subrev_f32 v{b_}, s7, v{R(i,3)}')
        rnd2(a_, b_, t)
        A(f'v_mul_f32 v{a_}, v{a_}, v{a_}')
        A(f'v_mul_f32 v{b_}, v{b_}, v{b_}')
        rnd2(a_, b_, t)
        A(f'v_mul_f32 v{a_}, s8, v{a_}')
        A(f'v_mul_f32 v{b_}, s8, v{b_}')
        rnd2(a_, b_, t)
        A(f'v_mul_f32 v{a_}, s9, v{a_}')
        A(f'v_mul_f32 v{b_}, s9, v{b_}')
        A(f'v_exp_f32 v{a_}, v{a_}')
        A(f'v_exp_f32 v{b_}, v{b_}')
        A('s_nop 0')
        A(f'v_cvt_pk_bf16_f32 v{R(i,18+r//2)}, v{a_}, v{b_}')
for r in range(0, 8, 2):
    for base, dst in ((48, 22), (32, 26)):
        for d in range(4):
            spk(base, r, d, 6 + (d & 1))
            for i in range(NE):
                c = '0' if r == 0 else f'v{R(i,dst+d)}'
                A(f'v_dot2_f32_bf16 v{R(i,dst+d)}, v{R(i,18+r//2)}, s{6+(d&1)}, {c}')
A('s_nop 2')
for i in range(NE):
    rnd2(R(i,26), R(i,27), R(i,2)); rnd2(R(i,28), R(i,29), R(i,2))
A('s_waitcnt vmcnt(0)')
for i in range(NE):
    for p in range(4):
        for d in range(4):
            c = '0' if p == 0 else f'v{R(i,14+d)}'
            A(f'v_fma_mix_f32 v{R(i,14+d)}, v{R(i,32+2*p+d//2)}, v{R(i,6+p)}, {c} op_sel:[{d&1},0,0] op_sel_hi:[1,0,0]')
for k in range(4):
    for d in range(4):
        sw(64, k*4 + d, 6 + (d & 1))
        for i in range(NE):
            if k == 0: A(f'v_mul_f32 v{R(i,10+d)}, s{6+(d&1)}, v{R(i,14+k)}')
            else: A(f'v_fmac_f32 v{R(i,10+d)}, s{6+(d&1)}, v{R(i,14+k)}')
for i in range(NE):
    for d in range(4):
        A(f'v_mul_f32 v{R(i,10+d)}, v{R(i,10+d)}, v{R(i,22+d)}')
    A(f'v_cvt_pk_bf16_f32 v{R(i,18)}, v{R(i,10)}, v{R(i,11)}')
    A(f'v_cvt_pk_bf16_f32 v{R(i,19)}, v{R(i,12)}, v{R(i,13)}')
for k in (0, 2):
    for d in range(4):
        spk(72, k, d, 6 + (d & 1))
        for i in range(NE):
            c = '0' if k == 0 else f'v{R(i,22+d)}'
            A(f'v_dot2_f32_bf16 v{R(i,22+d)}, v{R(i,18+k//2)}, s{6+(d&1)}, {c}')
for i in range(NE):
    unp(R(i,10), R(i,11), R(i,4)); unp(R(i,12), R(i,13), R(i,5))
A('s_nop 0')
for i in range(NE):
    rnd2(R(i,22), R(i,23), R(i,2)); rnd2(R(i,24), R(i,25), R(i,2))
    for d in range(4):
        A(f'v_mul_f32 v{R(i,22+d)}, v{R(i,22+d)}, v{R(i,26+d)}')
    rnd2(R(i,22), R(i,23), R(i,2)); rnd2(R(i,24), R(i,25), R(i,2))
    for d in range(4):
        A(f'v_add_f32 v{R(i,22+d)}, v{R(i,22+d)}, v{R(i,10+d)}')
    A(f'v_cvt_pk_bf16_f32 v{R(i,30)}, v{R(i,22)}, v{R(i,23)}')
    A(f'v_cvt_pk_bf16_f32 v{R(i,31)}, v{R(i,24)}, v{R(i,25)}')
    A(f'buffer_store_dwordx2 v[{R(i,30)}:{R(i,31)}], v{R(i,1)}, s[{S_O}:{S_O+3}], 0 offen')
L('F_END')
A('s_endpgm')
L('CODE_END')

out.append('.section .rodata,"a"')
for name, vg, sg in (('part_kernel', 128, 102), ('acc_kernel', 128, 102), ('fin_kernel', 4 + 40*OPT['ne'], 80)):
    out.append('.p2align 6')
    out.append(f'.amdhsa_kernel {name}')
    out.append(f'  .amdhsa_next_free_vgpr {vg}')
    out.append(f'  .amdhsa_next_free_sgpr {sg}')
    out.append(f'  .amdhsa_accum_offset {vg}')
    out.append('  .amdhsa_group_segment_fixed_size 0')
    out.append('  .amdhsa_kernarg_size 112')
    out.append('  .amdhsa_user_sgpr_count 2')
    out.append('  .amdhsa_user_sgpr_kernarg_segment_ptr 1')
    out.append('  .amdhsa_system_sgpr_workgroup_id_x 1')
    out.append('  .amdhsa_float_denorm_mode_32 3')
    out.append('.end_amdhsa_kernel')
open(sys.argv[1], 'w').write('\n'.join(out) + '\n')
```

```python
import struct, sys, math

E = 400000
T = 12800000
CH = 6250
S = 25000
NTILE = 512
NBLK = (S + 2) // 3
RS = 133376
OFS = 16448
OFF_BASE = 0x4400000
MAX_BASE = 0x4C00000
SCL_BASE = 0x4C01000
PART_BASE = 0x5000000
WS_BYTES = 268435456
MAGIC_DIV = (2**32 + CH - 1) // CH
NR = int([a for a in sys.argv[2:] if a.startswith('NR=')][0][3:]) if any(a.startswith('NR=') for a in sys.argv[2:]) else 14
CHI = (E + 4*NR - 1) // (4*NR)
MAGIC_I = (2**32 + CHI - 1) // CHI
assert MAGIC_I < 2**24 and all((x*MAGIC_I) >> 32 == x // CHI for x in range(0, E, 1))
NBK = (CHI*8 + 1023) // 1024
MINI = S - 6 * 4096
assert NTILE * RS <= OFF_BASE and OFF_BASE + 256 * OFS <= MAX_BASE

OPT = dict(ld_in='nt', st_ws='sc0 sc1', ld_ent='', ld_ch='', st_part='sc0 sc1', ld_part='', NB=2, skip_s=0, skip_g=0, skip_fill=0, skip_e=0,
           stamp=-1, stamp2=-1, prio=1, ilv='2:0,3:1,4:2,5:3', pre=1, npb=1, bps=1, vpos='123456', skip_ch=0, skip_pf=0, pmap=0, cpos=0, epos=1, unpair=0, k2prio=0, pa=2, pb=2, struct=0, forcefb=0, abst=0, wsoff=0, cpf=0, ne=1, pp=0, ilp=0, hp='01', NR=14, detp=0, st_mp='sc0 sc1', dst='002211111')
for a in sys.argv[2:]:
    k, v = a.split('=')
    OPT[k] = int(v) if (v.lstrip('-').isdigit() and k not in ('vpos', 'dst', 'hp')) else v.replace('_', ' ')

def f32bits(x): return struct.unpack('<I', struct.pack('<f', x))[0]
out = []
def A(s): out.append('    ' + s)
def L(s): out.append(s + ':')
_lab = [0]
def newlab(p='L'):
    _lab[0] += 1
    return f'{p}_{_lab[0]}'
def srd(d, b, nbytes):
    if nbytes == WS_BYTES and OPT['wsoff']:
        off = OPT['wsoff'] << 20
        A(f's_add_u32 s{d}, s{b}, {off:#x}')
        A(f's_addc_u32 s{d+1}, s{b+1}, 0')
        A(f's_and_b32 s{d+1}, s{d+1}, 0xffff')
        A(f's_mov_b32 s{d+2}, {nbytes - off:#x}')
        A(f's_mov_b32 s{d+3}, 0x00020000')
        return
    A(f's_mov_b32 s{d}, s{b}')
    A(f's_and_b32 s{d+1}, s{b+1}, 0xffff')
    A(f's_mov_b32 s{d+2}, {nbytes:#x}')
    A(f's_mov_b32 s{d+3}, 0x00020000')
def dpp_scan(op, v):
    for sh in (1, 2, 4, 8):
        A('s_nop 1')
        A(f'{op}_dpp v{v}, v{v}, v{v} row_shr:{sh} row_mask:0xf bank_mask:0xf bound_ctrl:0')
    A('s_nop 1')
    A(f'{op}_dpp v{v}, v{v}, v{v} row_bcast:15 row_mask:0xa bank_mask:0xf')
    A('s_nop 1')
    A(f'{op}_dpp v{v}, v{v}, v{v} row_bcast:31 row_mask:0xc bank_mask:0xf')
def khead(name):
    out.append(f'.globl {name}')
    out.append('.p2align 8')
    out.append(f'.type {name},@function')
    L(name)
SD = 'dst_sel:DWORD dst_unused:UNUSED_PAD'
def abs_start(v):
    if not OPT['abst']: return
    A('s_memrealtime s[4:5]')
    A('s_waitcnt lgkmcnt(0)')
    A(f'v_mov_b32 v{v}, s4')
def abs_end(v, sr, kid, wpb):
    if not OPT['abst']: return
    A('s_mov_b64 exec, -1')
    A('s_waitcnt vmcnt(0)')
    A('s_load_dwordx2 s[4:5], s[0:1], 104')
    A('s_memrealtime s[6:7]')
    A('s_waitcnt lgkmcnt(0)')
    srd(sr, 4, WS_BYTES)
    A('v_lshrrev_b32 v1, 6, v0')
    A(f's_mul_i32 s7, s2, {wpb}')
    A('v_add_u32 v1, s7, v1')
    A('v_lshlrev_b32 v1, 3, v1')
    A(f'v_mov_b32 v2, v{v}')
    A('v_mov_b32 v3, s6')
    A(f's_mov_b32 s7, {0xF000000 + kid*65536:#x}')
    A('s_mov_b64 exec, 1')
    A(f'buffer_store_dwordx2 v[2:3], v1, s[{sr}:{sr+3}], s7 offen')

stampn = [0]
def stamp(key):
    if OPT[key] < 0: return
    n = stampn[0]; stampn[0] += 1
    A(OPT.get('clk','s_memtime').replace(' ','_') + ' s[98:99]')
    A('s_waitcnt lgkmcnt(0)')
    A(f's_mov_b32 s{76+n}, s98')
def stamp_flush(key, swave, vz, wave=0):
    if OPT[key] < 0: return
    lab = newlab('STF')
    A(f's_cmp_lg_u32 s2, {OPT[key]}')
    A(f's_cbranch_scc1 {lab}')
    A(f's_cmp_lg_u32 s{swave}, {wave}')
    A(f's_cbranch_scc1 {lab}')
    A('s_load_dwordx2 s[4:5], s[0:1], 96')
    A('s_waitcnt lgkmcnt(0)')
    srd(72, 4, 256)
    A('s_mov_b64 exec, 1')
    A(f'v_mov_b32 v{vz}, 0')
    for n in range(stampn[0]):
        A(f's_sub_u32 s98, s{76+n}, s76')
        A(f'v_mov_b32 v{vz+1}, s98')
        A(f'buffer_store_dword v{vz+1}, v{vz}, s[72:75], 0 offen offset:{4*n}')
        A('s_nop 1')
    L(lab)

L_H, L_SC, L_ST = 0, 16384, 16640
L_X = L_ST
L_W = L_X + NBLK * 4 + 8
LDS1 = L_W + NBLK * 12
assert L_W < 65536 and L_W % 16 == 0
L_ARB, L_A = 50000, NBK*1024
L_SC2 = L_A + 100000
LDS2 = L_SC2 + 64
assert LDS2 <= 163840
MP_BASE = 0x4C10000
CHS = NBK*1024
assert MP_BASE + 4*NR*CHS + CHS <= PART_BASE
G3 = (E + 256*OPT['ne'] - 1) // (256*OPT['ne'])

hdr = open('standalone__molecular_angular_gemnet__graph.s.ref').read().split('; Override launch')[0]
out.append(hdr.rstrip())
out.append(f'; @launch kernel=part_kernel grid=(256,1,1) block=(1024,1,1) lds={LDS1}')
out.append(f'; @launch kernel=acc_kernel grid=(256,1,1) block=(1024,1,1) lds={LDS2}')
out.append(f'; @launch kernel=fin_kernel grid=({G3},1,1) block=(256,1,1) lds=0')
out.append('.amdgcn_target "amdgcn-amd-amdhsa--gfx950"')
out.append('.text')

khead('part_kernel')
A('s_cmp_ge_u32 s2, 256')
A('s_cbranch_scc1 P_END')
abs_start(7+0) if False else abs_start(87)
A('s_load_dwordx4 s[4:7], s[0:1], 0')
A('s_load_dwordx2 s[8:9], s[0:1], 16')
A('s_load_dwordx2 s[10:11], s[0:1], 32')
A('s_load_dwordx2 s[12:13], s[0:1], 48')
A('s_load_dwordx2 s[14:15], s[0:1], 104')
S_IN, S_OUT, S_ANG, S_WS, S_M = 16, 20, 24, 28, 32
if OPT['prio']: A('s_setprio 3')
if OPT['cpf'] >= 2:
    A('s_getpc_b64 s[58:59]')
    A('v_lshlrev_b32 v48, 7, v0')
    A('v_cmp_gt_u32 vcc, 88, v0')
    A('s_and_saveexec_b64 s[56:57], vcc')
    A('s_cbranch_execz P_NOSPF')
    A('global_load_dword v87, v48, s[58:59]')
    L('P_NOSPF')
    A('s_mov_b64 exec, s[56:57]')
A('v_lshlrev_b32 v1, 4, v0')
A('v_lshlrev_b32 v2, 3, v0')
A('v_mov_b32 v3, 1')
A('v_mov_b32 v4, 0x10000')
A('v_mov_b32 v5, 0')
A('v_lshlrev_b32 v6, 2, v0')
A('v_lshlrev_b32 v7, 1, v0')
TT = 8
for r in range(4): A(f'v_mov_b32 v{TT+4+r}, 0')
A('v_readfirstlane_b32 s50, v0')
A(f'ds_write_b128 v1, v[{TT+4}:{TT+7}]')
A(f'ds_write_b32 v6, v5 offset:{L_SC}')
A(f's_movk_i32 s42, {MINI}')
A('v_cmp_gt_u32 s[40:41], s42, v0')
A('s_waitcnt lgkmcnt(0)')
A('s_load_dword s36, s[12:13], 0')
srd(S_IN, 6, T * 4); srd(S_OUT, 8, T * 4); srd(S_ANG, 10, T * 2); srd(S_WS, 14, WS_BYTES); srd(S_M, 4, E * 8)
A('s_lshr_b32 s50, s50, 6')
A(f's_mul_i32 s37, s2, {2*S*4}')
A(f's_mul_i32 s38, s2, {2*S*2}')
UA = 24
unitA = [(UA + 10*k, UA + 10*k + 4, UA + 10*k + 8) for k in range(6)] + [(84, 85, 86)]
unitB = [(88 + 10*k, 88 + 10*k + 4, 88 + 10*k + 8) for k in range(4)] + [unitA[0], unitA[1], (44, 45, 46)]
vm = []
ldf = OPT['ld_in']
def load_unit(tag, k):
    vi, vo, va = (unitA if tag == 'A' else unitB)[k]
    tile = 0 if tag == 'A' else 1
    A(f's_add_u32 s43, s37, {tile*S*4 + k*16384}')
    A(f's_add_u32 s44, s38, {tile*S*2 + k*8192}')
    if k < 6:
        A(f'buffer_load_dwordx4 v[{vo}:{vo+3}], v1, s[{S_OUT}:{S_OUT+3}], s43 offen {ldf}')
        A(f'buffer_load_dwordx4 v[{vi}:{vi+3}], v1, s[{S_IN}:{S_IN+3}], s43 offen {ldf}')
        A(f'buffer_load_dwordx2 v[{va}:{va+1}], v2, s[{S_ANG}:{S_ANG+3}], s44 offen {ldf}')
    else:
        A('s_or_b64 exec, s[40:41], 1')
        A(f'buffer_load_dword v{vo}, v6, s[{S_OUT}:{S_OUT+3}], s43 offen {ldf}')
        A(f'buffer_load_dword v{vi}, v6, s[{S_IN}:{S_IN+3}], s43 offen {ldf}')
        A(f'buffer_load_ushort v{va}, v7, s[{S_ANG}:{S_ANG+3}], s44 offen {ldf}')
        A('s_mov_b64 exec, -1')
    vm.extend([(tag, k)] * 3)
def vwait(tag):
    idx = max(i for i, t in enumerate(vm) if t == tag)
    A(f's_waitcnt vmcnt({min(len(vm)-1-idx, 63)})')
stamp('stamp')
for k in range(OPT['pre']): load_unit('A', k)
A('s_barrier')
A('s_lshl_b32 s39, s2, 4')
A('s_add_u32 s39, s39, s50')
A(f's_sub_u32 s42, s39, {4*NR*NBK}')
A(f's_cmp_ge_u32 s39, {4*NR*NBK}')
A('s_cselect_b32 s39, s42, s39')
A('s_lshl_b32 s45, s39, 10')
A(f's_mul_hi_u32 s42, s39, {(2**32 + NBK - 1)//NBK:#x}')
A(f's_mul_i32 s42, s42, {CHS - CHI*8}')
A('s_sub_u32 s39, s45, s42')
A(f's_add_u32 s45, s45, {MP_BASE:#x}')
A(f'v_and_b32 v{TT+4}, 0xfc, v6')
A(f'v_and_b32 v{TT+5}, 0x3f0, v1')
for k in range(4):
    A(f'buffer_load_dword v{TT+k}, v{TT+4}, s[{S_M}:{S_M+3}], s39 offen offset:{256*k}'); vm.append('M')
for k in range(OPT['pre'], 7): load_unit('A', k)
if OPT['prio']: A('s_setprio 0')
A(f's_mov_b32 s46, {f32bits(1/(2*math.pi)):#x}')
A(f's_mov_b32 s47, {f32bits(1/(2*math.pi)):#x}')
A('s_mov_b32 s48, 0xfc000000')
A('s_mov_b32 s49, 0xffff0000')
A(f's_mov_b32 s51, {(-CH) & 0xffffffff:#x}')
A('s_mov_b32 s52, 0x00020002')
A(f's_movk_i32 s55, {1024-NR}')
A(f's_mov_b32 s54, {(-CHI) & 0xffffffff:#x}')
A('s_mov_b32 s53, 0x55555556')
A('s_waitcnt lgkmcnt(0)')
A('s_lshl_b32 s36, s36, 16')

PT = TT + 11
def process(tag, k):
    vi0, vo0, va0 = (unitA if tag == 'A' else unitB)[k]
    inc = 3 if tag == 'A' else 4
    n = 4 if k < 6 else 1
    vwait((tag, k))
    skip = None
    if k == 6:
        skip = newlab('P_MS')
        A('s_mov_b64 exec, s[40:41]')
        A(f's_cbranch_execz {skip}')
    tj, ti, t1 = PT, PT + 1, PT + 2
    for j in range(n):
        vi, vo = vi0 + j, vo0 + j
        A(f'v_mul_hi_u32_u24 v{tj}, {MAGIC_I:#x}, v{vi}')
        A(f'v_mul_hi_u32_u24 v{ti}, {MAGIC_DIV:#x}, v{vo}')
        A(f'v_mul_u32_u24 v{t1}, {(65536 + NR - 1)//NR}, v{tj}')
        A(f'v_mad_i32_i24 v{vi}, v{tj}, s54, v{vi}')
        A(f'v_mad_i32_i24 v{vo}, v{ti}, s51, v{vo}')
        A(f'v_lshrrev_b32 v{t1}, 16, v{t1}')
        A(f'v_lshl_or_b32 v{vi}, v{vo}, 13, v{vi}')
        A(f'v_lshl_add_u32 v{vo}, v{ti}, 4, v{tj}')
        A(f'v_mad_u32_u24 v{vo}, v{t1}, s55, v{vo}')
        A(f'v_lshlrev_b32 v{vo}, 2, v{vo}')
        A(f'ds_add_u32 v{vo}, v{inc} offset:{L_H}')
    a0, a1 = PT + 3, PT + 4
    assert a0 % 2 == 0
    npair = (n + 1) // 2
    nf = newlab('P_NF')
    A('s_cmp_eq_u32 s36, 0x3f800000')
    A(f's_cbranch_scc1 {nf}')
    for p in range(npair):
        va = va0 + p
        A(f'v_lshlrev_b32 v{a0}, 16, v{va}')
        A(f'v_and_b32 v{a1}, s49, v{va}')
        A(f'v_mul_f32 v{a0}, s36, v{a0}')
        A(f'v_mul_f32 v{a1}, s36, v{a1}')
        A(f'v_cvt_pk_bf16_f32 v{va}, v{a0}, v{a1}')
    L(nf)
    for p in range(npair):
        va = va0 + p
        A(f'v_lshlrev_b32 v{a0}, 16, v{va}')
        A(f'v_and_b32 v{a1}, s49, v{va}')
        A(f'v_pk_mul_f32 v[{a0}:{a1}], v[{a0}:{a1}], s[46:47]')
        A(f'v_fract_f32 v{a0}, v{a0}')
        A(f'v_fract_f32 v{a1}, v{a1}')
        A(f'v_cos_f32 v{a0}, v{a0}')
        A(f'v_cos_f32 v{a1}, v{a1}')
        A('s_nop 0')
        A(f'v_cvt_pk_f16_f32 v{va}, v{a0}, v{a1}')
        A(f'v_pk_add_u16 v{va}, v{va}, s52')
        e0, e1 = 2*p, 2*p + 1
        A(f'v_lshlrev_b32 v{a0}, 16, v{va}')
        if e1 < n: A(f'v_and_or_b32 v{vi0+e1}, v{va}, s48, v{vi0+e1}')
        A(f'v_and_or_b32 v{vi0+e0}, v{a0}, s48, v{vi0+e0}')
        A(f'v_lshrrev_b32 v{va}, 2, v{va}')
    if k == 6:
        L(skip)
        A('s_mov_b64 exec, -1')

def maxm():
    vwait('M')
    M = TT + 6
    A('s_mov_b32 s42, 0x7fff7fff')
    for j in range(4): A(f'v_and_b32 v{M+j}, s42, v{TT+j}')
    A(f'v_pk_max_u16 v{M}, v{M}, v{M+2}')
    A(f'v_pk_max_u16 v{M+1}, v{M+1}, v{M+3}')
    A(f'v_pk_max_u16 v{M}, v{M}, v{M+1}')
    A(f'v_lshrrev_b32 v{M+1}, 16, v{M}')
    A(f'v_and_b32 v{M}, 0xffff, v{M}')
    A(f'v_max_u32 v{M}, v{M}, v{M+1}')
    dpp_scan('v_max_u32', M)
    A('s_nop 1')
    A(f'v_readlane_b32 s42, v{M}, 63')
    A('s_nop 1')
    A(f'v_mov_b32 v{M}, s42')
    A('s_mov_b64 exec, 1')
    A(f'ds_max_u32 v5, v{M} offset:{L_SC+128}')
    A('s_mov_b64 exec, -1')
def mpload():
    A('v_and_b32 v47, 0xfc, v6')
    for k in range(4):
        A(f'buffer_load_dword v{84+k}, v47, s[{S_M}:{S_M+3}], s39 offen offset:{256*k}'); vm.append('M2')
def mpstore():
    vwait('M2')
    A('v_and_b32 v47, 0x3f0, v1')
    A(f'buffer_store_dwordx4 v[84:87], v47, s[{S_WS}:{S_WS+3}], s45 offen {OPT["st_mp"]}'); vm.append('MPS')

def zrow(src, h, tile):
    for j in range(4):
        A(f'v_mul_hi_u32 v{h+8}, v{src+j}, s53')
        A(f'v_add_u32 v{h+10+j}, v{h+8}, v{src+j}')
    A(f'v_lshl_or_b32 v{h+8}, v{h+11}, 16, v{h+10}')
    A(f'v_lshl_or_b32 v{h+9}, v{h+13}, 16, v{h+12}')
    if tile == 0:
        A(f'v_and_b32 v{h+14}, -32, v2')
        A(f'v_add_u32 v{h+14}, v{h+14}, v2')
    A(f's_mul_i32 s42, s2, {OFS}')
    A(f's_add_u32 s42, s42, {OFF_BASE:#x}')
    A(f'buffer_store_dwordx2 v[{h+8}:{h+9}], v{h+14}, s[{S_WS}:{S_WS+3}], s42 offen offset:{64+32*tile}')
    vm.append(('OFS', tile))

def scan(tile, scoff):
    h = TT
    A('s_waitcnt lgkmcnt(0)')
    A('s_barrier')
    A(f'ds_read_b128 v[{h}:{h+3}], v1 offset:{L_H}')
    A(f'v_and_b32 v{h+5}, 63, v0')
    A(f'v_cmp_lt_u32 vcc, s50, v{h+5}')
    A(f'v_lshlrev_b32 v{h+5}, 2, v{h+5}')
    A('s_and_b64 s[56:57], vcc, 0xffff')
    A('s_waitcnt lgkmcnt(0)')
    if tile == 1:
        for j in range(4): A(f'v_and_b32 v{h+10+j}, 0xffff, v{h+j}')
        for j in range(4): A(f'v_lshrrev_b32 v{h+j}, 16, v{h+j}')
    for j in range(1, 4): A(f'v_add_u32 v{h+j}, v{h+j-1}, v{h+j}')
    A(f'v_mov_b32 v{h+4}, v{h+3}')
    dpp_scan('v_add_u32', h + 4)
    A('s_nop 1')
    A(f'v_readlane_b32 s42, v{h+4}, 63')
    A('s_nop 1')
    A(f'v_mov_b32 v{h+6}, s42')
    A('s_mov_b64 exec, s[56:57]')
    A(f'ds_add_u32 v{h+5}, v{h+6} offset:{scoff}')
    A('s_mov_b64 exec, -1')
    A('s_lshl_b32 s42, s50, 2')
    A(f'v_mov_b32 v{h+5}, s42')
    A(f'v_sub_u32 v{h+4}, v{h+4}, v{h+3}')
    if tile == 1: zrow(h + 10, h, 0)
    A('s_waitcnt lgkmcnt(0)')
    A('s_barrier')
    A(f'ds_read_b32 v{h+5}, v{h+5} offset:{scoff}')
    if tile == 1: A(f'ds_read_b32 v{h+6}, v5 offset:{L_SC+128}')
    A('s_waitcnt lgkmcnt(0)')
    A(f'v_add_u32 v{h+4}, v{h+4}, v{h+5}')
    if tile == 1:
        for j in range(4): A(f'v_add_u32 v{h+10+j}, v{h+4}, v{h+j}')
    for j in (3, 2, 1): A(f'v_add_u32 v{h+j}, v{h+4}, v{h+j-1}')
    A(f'v_mov_b32 v{h}, v{h+4}')
    A(f'ds_write_b128 v1, v[{h}:{h+3}] offset:{L_H}')
    if tile == 1:
        zrow(h + 10, h, 1)
        done = newlab('P_SC')
        A('s_cmp_lg_u32 s50, 0')
        A(f's_cbranch_scc1 {done}')
        A('s_mov_b64 exec, 1')
        A(f'buffer_store_dword v5, v5, s[{S_WS}:{S_WS+3}], s42 offen offset:28')
        A(f'buffer_store_dword v5, v5, s[{S_WS}:{S_WS+3}], s42 offen offset:60')
        A(f's_add_u32 s42, s2, {MAX_BASE:#x}')
        A(f'v_lshrrev_b32 v{h+6}, 7, v{h+6}')
        A(f'buffer_store_byte v{h+6}, v5, s[{S_WS}:{S_WS+3}], s42 offen')
        A('s_mov_b64 exec, -1')
        L(done)
    A('s_waitcnt lgkmcnt(0)')
    A('s_barrier')

def scatter(tag, after_wait, after_fin):
    units = unitA if tag == 'A' else unitB
    lg = []
    def issue(k):
        vi0, vo0, _ = units[k]
        n = 4 if k < 6 else 1
        if k == 6: A('s_mov_b64 exec, s[40:41]')
        for j in range(n):
            A(f'ds_add_rtn_u32 v{TT+4*(k&1)+j}, v{vo0+j}, v3 offset:{L_H}')
            lg.append(('R', k))
        if k == 6: A('s_mov_b64 exec, -1')
    def fin(k):
        vi0, vo0, va0 = units[k]
        n = 4 if k < 6 else 1
        if k == 6: A('s_mov_b64 exec, s[40:41]')
        for j in range(n):
            t = TT + 4*(k & 1) + j
            q, a = TT + 8, TT + 9 + (j & 1)
            if tag == 'A': A(f'v_and_b32 v{t}, 0xffff, v{t}')
            A(f'v_mul_hi_u32 v{q}, v{t}, s53')
            A(f'v_lshlrev_b32 v{a}, 2, v{t}')
            A(f'v_add_u32 v{t}, v{q}, v{t}')
            A(f'ds_write_b32 v{a}, v{vi0+j} offset:{L_W}')
            A(f'ds_write_b8{"_d16_hi" if j & 1 else ""} v{t}, v{va0+j//2} offset:{L_X}')
            lg.extend([('W', k)] * 2)
        if k == 6: A('s_mov_b64 exec, -1')
    issue(0)
    for k in range(7):
        if k + 1 < 7: issue(k + 1)
        idx = max(i for i, t in enumerate(lg) if t == ('R', k) or t == ('W', k - 1))
        ny = sum(1 for t in lg[idx+1:] if t[1] != 6)
        A(f's_waitcnt lgkmcnt({min(ny, 15)})')
        if k in after_wait: after_wait[k]()
        fin(k)
        if k in after_fin:
            after_fin[k]()
            lg.extend([('H', k)] * 4)
    A('s_waitcnt lgkmcnt(0)')
    A('s_barrier')

RC = (NBLK + 1023) // 1024
lastc = NBLK - (RC - 1) * 1024
def copyout(tile, regs, ar):
    A(f's_movk_i32 s42, {lastc}')
    A('v_cmp_gt_u32 s[56:57], s42, v0')
    A(f'v_mul_u32_u24 v{ar[0]}, 12, v0')
    A(f'v_add_u32 v{ar[0]}, {L_W}, v{ar[0]}')
    A(f's_mul_i32 s42, s2, {2*RS}')
    if tile: A(f's_add_u32 s42, s42, {RS}')
    def rd(j):
        r = regs[j]
        if j == RC - 1: A('s_mov_b64 exec, s[56:57]')
        A(f'ds_read2_b32 v[{r}:{r+1}], v{ar[0]} offset0:0 offset1:1')
        A(f'ds_read_b32 v{r+2}, v{ar[0]} offset:8')
        A(f'ds_read_b32 v{r+3}, v6 offset:{L_X + j*4096}')
        if j == RC - 1: A('s_mov_b64 exec, -1')
        else: A(f'v_add_u32 v{ar[0]}, {12*1024}, v{ar[0]}')
    LA = 4
    for j in range(LA): rd(j)
    for j in range(RC):
        if j + LA < RC: rd(j + LA)
        A(f's_waitcnt lgkmcnt({3*max(0, min(LA, RC-2-j))})')
        if j == RC - 1: A('s_mov_b64 exec, s[56:57]')
        A(f'buffer_store_dwordx4 v[{regs[j]}:{regs[j]+3}], v1, s[{S_WS}:{S_WS+3}], s42 offen {OPT["st_ws"]}')
        if j < RC - 1: vm.append(('ST', tile, j))
        if j < RC - 1: A('s_add_u32 s42, s42, 16384')
    A('s_mov_b64 exec, -1')

stamp('stamp')
process('A', 0)
stamp('stamp')
maxm()
for k in range(1, 7): process('A', k)
stamp('stamp')
NPB = OPT['npb']
for k in range(NPB): load_unit('B', k)
scan(0, L_SC)
stamp('stamp')
ilv = dict((int(x.split(':')[0]), int(x.split(':')[1])) for x in OPT['ilv'].split(',')) if OPT['ilv'] else {}
pend = list(range(NPB, 7))
aw = {}
for k in range(7):
    take = []
    while pend and len(take) < OPT['bps'] and (pend[0] < 4 or k >= pend[0] - 3):
        take.append(pend.pop(0))
    if k == 6: take += pend; pend = []
    if take: aw[k] = (lambda tk=take: [load_unit('B', b) for b in tk])
scatter('A', aw, {k: (lambda b=b: process('B', b)) for k, b in ilv.items()})
def cpf_code():
    if OPT['cpf']:
        A('s_cmp_lg_u32 s50, 15')
        A('s_cbranch_scc1 P_NOCPF')
        A('s_getpc_b64 s[58:59]')
        L('P_PC')
        A('s_add_u32 s58, s58, acc_kernel-P_PC')
        A('s_addc_u32 s59, s59, 0')
        A('v_and_b32 v19, 63, v0')
        A('v_lshlrev_b32 v19, 7, v19')
        for j in range(3):
            A(f'v_min_u32 v20, CODE_END-acc_kernel-4, v19')
            A(f'global_load_dword v21, v20, s[58:59]')
            A('v_add_u32 v19, 8192, v19')
        L('P_NOCPF')
stamp('stamp')
CR = [48 + 4*j for j in range(RC)]
mpload()
if OPT['dst'] == '':
    copyout(0, CR, [TT, TT + 1, TT + 2])
    stamp('stamp')
    for k in range(7):
        if k not in ilv.values(): process('B', k)
    stamp('stamp')
    scan(1, L_SC + 64)
    cpf_code()
    stamp('stamp')
    scatter('B', {}, {})
else:
    A(f's_movk_i32 s42, {lastc}')
    A('v_cmp_gt_u32 s[64:65], s42, v0')
    A(f'v_mul_u32_u24 v{TT}, 12, v0')
    A(f'v_add_u32 v{TT}, {L_W}, v{TT}')
    A(f's_mul_i32 s66, s2, {2*RS}')
    for j in range(RC):
        r = CR[j]
        if j == RC - 1: A('s_mov_b64 exec, s[64:65]')
        A(f'ds_read2_b32 v[{r}:{r+1}], v{TT} offset0:0 offset1:1')
        A(f'ds_read_b32 v{r+2}, v{TT} offset:8')
        A(f'ds_read_b32 v{r+3}, v6 offset:{L_X + j*4096}')
        if j == RC - 1: A('s_mov_b64 exec, -1')
        else: A(f'v_add_u32 v{TT}, {12*1024}, v{TT}')
    nst = [0]
    def st(n):
        for _ in range(n):
            j = nst[0]
            if j >= RC: return
            nst[0] += 1
            if j == RC - 1: A('s_mov_b64 exec, s[64:65]')
            A(f'buffer_store_dwordx4 v[{CR[j]}:{CR[j]+3}], v1, s[{S_WS}:{S_WS+3}], s66 offen {OPT["st_ws"]}')
            if j < RC - 1:
                vm.append(('ST', 0, j)); A('s_add_u32 s66, s66, 16384')
            else: A('s_mov_b64 exec, -1')
    sch = [int(c) for c in OPT['dst']]
    rest = [k for k in range(7) if k not in ilv.values()]
    process('B', rest[0])
    A('s_waitcnt lgkmcnt(0)')
    st(sch[0])
    stamp('stamp')
    for k in rest[1:]: process('B', k)
    st(sch[1])
    stamp('stamp')
    scan(1, L_SC + 64)
    cpf_code()
    stamp('stamp')
    scatter('B', {k: (lambda n=sch[2+k]: st(n)) for k in range(7)}, {})
    assert nst[0] == RC
mpstore()
stamp('stamp')
copyout(1, [48 + 4*j for j in range(RC)], [TT, TT + 1, TT + 2])
stamp('stamp')
if OPT['stamp'] >= 0: A('s_waitcnt vmcnt(0)')
stamp('stamp')
stamp_flush('stamp', 50, TT, OPT.get('swave', 0))
abs_end(87, 64, 0, 16)
L('P_END')
A('s_endpgm')

st2n = [0]
def stamp2():
    if OPT['stamp2'] < 0: return
    n = st2n[0]; st2n[0] += 1
    A(OPT.get('clk','s_memtime').replace(' ','_') + ' s[4:5]')
    A('s_waitcnt lgkmcnt(0)')
    A(f'v_writelane_b32 v127, s4, {n+2}')
khead('acc_kernel')
A('s_cmp_ge_u32 s2, 256')
A('s_cbranch_scc1 Q_END')
abs_start(127)
A('s_load_dwordx2 s[4:5], s[0:1], 0')
A('s_load_dwordx2 s[6:7], s[0:1], 104')
if OPT['pp']: A('s_setprio 3')
S_M, S_WS = 8, 12
A('s_and_b32 s3, s2, 7')
A('s_lshl_b32 s3, s3, 5')
A('s_lshr_b32 s16, s2, 3')
A('s_add_u32 s3, s3, s16')
VTB = 5; VOF = 8
VEB = VOF + 18
def EB(slot, s): return VEB + (slot * 2 + s) * 4
VG = VEB + 32
def G(s, e): return VG + (s * 3 + e) * 2
VCH = VG + 12
VT = VCH + 16
VA = VT + 6
VSH, VFC = VT + 10, VT + 11
VLA, VLB = VT + 12, VT + 13
VFB = VT + 14
VFG = VFB + 4
VL2 = VFG + 6
V3 = VL2
assert VFB % 2 == 0 and VL2 + 2 <= 126
def OF(s, k): return VOF + 9*s + k
def MK(slot, s, e): return 54 + slot * 12 + (s * 3 + e) * 2
A('v_and_b32 v1, 3, v0')
A('v_lshlrev_b32 v2, 4, v0')
A('v_lshrrev_b32 v3, 2, v0')
A('v_and_b32 v4, 1, v0')
A(f'v_mul_u32_u24 v{VT}, {OFS}, v3')
A(f'v_lshl_add_u32 v{VT+1}, v1, 4, v{VT}')
A(f'v_and_b32 v{VT}, -32, v{VT+1}')
A(f'v_and_b32 v{VT+2}, 63, v0')
A(f'v_lshlrev_b32 v{VT+2}, 2, v{VT+2}')
if not OPT['abst']: A('v_mov_b32 v127, 0')
A('s_lshl_b32 s17, s3, 6')
A(f's_add_u32 s17, s17, {OFF_BASE:#x}')
A(f's_mov_b32 s19, {MAX_BASE:#x}')
A('s_lshr_b32 s20, s3, 6')
A(f's_mul_i32 s20, s20, {NR*CHS}')
A(f's_add_u32 s20, s20, {MP_BASE:#x}')
A('v_cmp_gt_u32 s[22:23], 64, v0')
A('v_readfirstlane_b32 s21, v0')
A('s_nop 3')
A('s_lshl_b32 s50, s21, 4')
A('s_mov_b32 m0, s50')
A('s_waitcnt lgkmcnt(0)')
srd(S_M, 4, E * 8); srd(S_WS, 6, WS_BYTES)
TO = VG
A(f'buffer_load_dwordx4 v[{TO}:{TO+3}], v{VT+1}, s[{S_WS}:{S_WS+3}], s17 offen offset:64')
A(f'buffer_load_dword v{TO+4}, v{VT}, s[{S_WS}:{S_WS+3}], s17 offen offset:28')
A(f'buffer_load_dword v{VT+9}, v{VT+2}, s[{S_WS}:{S_WS+3}], s19 offen')
if OPT['pp']: A('s_setprio 1' if OPT['pp'] == 2 else 's_setprio 2')
stamp2()
INLOOP = [0]
ool = []
def chall(lastchk=False):
    sk = newlab('Q_C')
    if lastchk:
        A(f's_cmp_eq_u32 s33, {(NR-2)//4}')
        A('s_cselect_b64 exec, 1, -1')
    else: A('s_mov_b64 exec, -1')
    A(f's_cmp_ge_u32 s50, {(NBK-48)*1024}')
    A(f's_cbranch_scc1 {sk}')
    A(f's_add_u32 s21, s20, {3*16384}')
    if not (OPT['skip_ch'] and INLOOP[0]): A(f'buffer_load_dwordx4 v[{VCH+12}:{VCH+15}], v2, s[{S_WS}:{S_WS+3}], s21 offen {OPT["ld_ch"]}')
    L(sk)
    for j in range(3):
        A(f's_add_u32 s21, s20, {j*16384}')
        if not (OPT['skip_ch'] and INLOOP[0]): A(f'buffer_load_dwordx4 v[{VCH+4*j}:{VCH+4*j+3}], v2, s[{S_WS}:{S_WS+3}], s21 offen {OPT["ld_ch"]}')
    A(f's_add_u32 s20, s20, {CHS}')
def fill():
    if OPT['skip_fill']: return
    sk = newlab('Q_F')
    A('s_mov_b64 exec, -1')
    for j in range(4):
        if j == 3:
            A(f's_cmp_ge_u32 s50, {(NBK-48)*1024}')
            A(f's_cbranch_scc1 {sk}')
        for k in range(4): A(f'ds_write_addtid_b32 v{VCH+4*j+k} offset:{j*16384+256*k}')
    L(sk)
chall()
A(f's_mov_b32 s16, {2*RS}')
A(f'v_mul_lo_u32 v{VTB}, v3, s16')
A(f'v_add_u32 v{VTB+1}, {RS}, v{VTB}')
A('v_cmp_eq_u32 s[36:37], 3, v1')
A('v_and_b32 v4, 63, v0')
A('v_lshlrev_b32 v1, 2, v1')
A('s_mov_b32 s44, 0')
A('s_lshr_b32 s45, s3, 6')
A(f's_mul_i32 s45, s45, {NR*CHI*8}')
A(f'v_add_u32 v3, {L_A}, v2')
z = VEB + 28
for r in range(4): A(f'v_mov_b32 v{z+r}, 0')
for j in range(4): A(f'ds_write_b128 v3, v[{z}:{z+3}] offset:{j*16384}')
A(f'v_add_u32 v{VT+6}, 65536, v3')
for j in range(2): A(f'ds_write_b128 v{VT+6}, v[{z}:{z+3}] offset:{j*16384}')
A('s_movk_i32 s16, 106')
A('v_cmp_gt_u32 s[24:25], s16, v0')
A('s_mov_b64 exec, s[24:25]')
A(f'ds_write_b128 v{VT+6}, v[{z}:{z+3}] offset:{2*16384}')
A('s_mov_b64 exec, -1')
A(f'v_mov_b32 v126, {L_SC2}')
VONE = VSH
A('s_mov_b64 exec, 1')
A(f'ds_write_b128 v126, v[{z}:{z+3}]')
A('s_mov_b64 exec, -1')
A('s_mov_b32 s30, 0xffff0000')
A(f's_mov_b32 s31, {L_A}')
A('s_mov_b32 s35, 0xfc000000')
A(f'v_mov_b32 v{VSH}, 18')
A(f'v_mov_b32 v{V3}, 3')
A(f'v_mov_b32 v{VFC}, 0xfffc')
A('s_waitcnt vmcnt(3)')
for s_ in range(2):
    for k in range(9):
        ln = 2*s_ + (1 if k >= 5 else 0)
        src = TO + ((k - 1) % 4 if k > 0 else 4)
        A(f'v_mov_b32_dpp v{OF(s_,k)}, v{src} quad_perm:[{ln},{ln},{ln},{ln}] row_mask:0xf bank_mask:0xf')

def pfcalc(s_, r, masks=True):
    slot = r % 4
    r0, h0, r1, h1 = (r + 1) >> 1, (r + 1) & 1, (r + 2) >> 1, r & 1
    y, d, ln, ad = VT, VT + 7, VT + 8, VA
    a, b = OF(s_, r0), OF(s_, r1)
    m = [MK(slot, s_, k) for k in range(3)]
    A('s_mov_b64 exec, -1')
    A(f'v_and_b32_sdwa v{y}, v{a}, v{VFC} {SD} src0_sel:WORD_{h0} src1_sel:DWORD')
    A(f'v_sub_u32_sdwa v{ln}, v{b}, v{a} {SD} src0_sel:WORD_{h1} src1_sel:WORD_{h0}')
    A(f'v_add_u32 v{y}, v{y}, v1')
    A(f'v_sub_u32_sdwa v{d}, v{y}, v{a} {SD} src0_sel:DWORD src1_sel:WORD_{h0}')
    A(f'v_lshl_add_u32 v{ad}, v{y}, 2, v{VTB+s_}')
    if masks:
        A(f'v_cmp_lt_u32 s[{m[0]}:{m[0]+1}], v{d}, v{ln}')
        A(f'v_add_u32 v{d}, 1, v{d}')
        A(f'v_cmp_lt_u32 s[{m[1]}:{m[1]+1}], v{d}, v{ln}')
        A(f'v_add_u32 v{d}, 1, v{d}')
        A(f'v_cmp_lt_u32 s[{m[2]}:{m[2]+1}], v{d}, v{ln}')
def pf1(s_, r, live=False, det=True):
    slot = r % 4
    m = [MK(slot, s_, k) for k in range(3)]
    e = EB(slot, s_)
    pfcalc(s_, r)
    A(f's_or_b64 vcc, s[{m[0]}:{m[0]+1}], s[{m[1]}:{m[1]+1}]')
    A(f's_or_b64 vcc, vcc, s[{m[2]}:{m[2]+1}]')
    if live: A('s_and_b64 vcc, vcc, s[18:19]')
    A('s_or_b64 exec, vcc, 1' if not OPT['skip_pf'] else 's_mov_b64 exec, -1')
    if not (OPT['skip_pf'] and INLOOP[0]): A(f'buffer_load_dwordx4 v[{e}:{e+3}], v{VA}, s[{S_WS}:{S_WS+3}], 0 offen {OPT["ld_ent"]}')
def xl(r):
    A('s_mov_b64 exec, -1')
    A(f's_add_u32 s47, s46, {r}')
    A(f'v_cmp_eq_u32 vcc, s47, v{VLB}')
    A('s_or_b64 exec, vcc, s[48:49]')
    A(f'buffer_load_dwordx4 v[{VFB}:{VFB+3}], v{VLA}, s[{S_WS}:{S_WS+3}], 0 offen')
def xg(r):
    A('s_mov_b64 exec, -1')
    A(f's_add_u32 s47, s46, {r}')
    A(f'v_cmpx_eq_u32 vcc, s47, v{VLB}')
    for e in range(3): gaddr(VFB + e, VFG + 2*e)
    for e in range(3):
        A(f's_and_b64 exec, vcc, s[{40+2*e}:{41+2*e}]')
        if not OPT['skip_g']: A(f'ds_read_b64 v[{VFG+2*e}:{VFG+2*e+1}], v{VFG+2*e}')
def xs():
    for e in range(3):
        A(f's_mov_b64 exec, s[{40+2*e}:{41+2*e}]')
        scat1(VFB + e, VFB + 3, e, VFG + 2*e)

def gath1(w, g):
    A(f'v_lshlrev_b32 v{g}, 3, v{w}')
    A(f'v_and_b32 v{g}, 0xfff8, v{g}')
    if not OPT['skip_g']: A(f'ds_read_b64 v[{g}:{g+1}], v{g}')

def scat1(w, xr, e, g):
    x, ad = VT, VT + 1
    p0, p2 = VT + 2, VT + 4
    A(f'v_lshlrev_b32_sdwa v{x}, v{VSH}, v{xr} {SD} src0_sel:DWORD src1_sel:BYTE_{e}')
    A(f'v_lshlrev_b32 v{p2}, 16, v{g+1}')
    A(f'v_and_b32 v{p2+1}, s30, v{g+1}')
    A(f'v_and_or_b32 v{x}, v{w}, s35, v{x}')
    A(f'v_bfe_u32 v{ad}, v{w}, 13, 13')
    A(f'v_lshlrev_b32 v{p0}, 16, v{g}')
    A(f'v_and_b32 v{p0+1}, s30, v{g}')
    for r in (p2, p2 + 1, p0, p0 + 1):
        A(f'v_fma_mix_f32 v{r}, v{r}, v{x}, s{26 if r == p0 else 28} op_sel:[0,1,0] op_sel_hi:[0,1,0]')
        if r == p2: A(f'v_lshl_add_u32 v{ad}, v{ad}, 3, s31')
        if r == p2 + 1: A(f'ds_add_u64 v{ad}, v[{p2}:{p2+1}] offset:{L_ARB}')
    A(f'v_add_u32 v{p0}, s34, v{p0}')
    A(f'ds_add_u64 v{ad}, v[{p0}:{p0+1}]')

def gaddr(w, g):
    A(f'v_lshlrev_b32_sdwa v{g}, v{V3}, v{w} dst_sel:WORD_0 dst_unused:UNUSED_PAD src0_sel:DWORD src1_sel:DWORD')
def Gset(r, s_):
    slot = r % 4
    A('s_mov_b64 exec, -1')
    for e in range(3): gaddr(EB(slot, s_) + e, G(s_, e))
    for e in range(3):
        m = MK(slot, s_, e); g = G(s_, e)
        A(f's_mov_b64 exec, s[{m}:{m+1}]')
        if not OPT['skip_g']: A(f'ds_read_b64 v[{g}:{g+1}], v{g}')
def Sset(r, s_, hooks={}):
    slot = r % 4
    for e in range(3):
        if e in hooks: hooks[e]()
        m = MK(slot, s_, e)
        A(f's_mov_b64 exec, s[{m}:{m+1}]')
        b = EB(slot, s_)
        if not OPT['skip_s']: scat1(b + e, b + 3, e, G(s_, e))

A(f'v_mov_b32 v{VT+1}, 0')
pf1(0, 0, det=False); pf1(1, 0, det=False); pf1(0, 1, det=False)
A('s_mov_b64 exec, -1')
A(f'v_max_u32_sdwa v{VT+2}, v{VT+9}, v{VT+9} {SD} src0_sel:BYTE_0 src1_sel:BYTE_1')
A(f'v_max_u32_sdwa v{VT+3}, v{VT+9}, v{VT+9} {SD} src0_sel:BYTE_2 src1_sel:BYTE_3')
A(f'v_max_u32 v{VT+9}, v{VT+2}, v{VT+3}')
dpp_scan('v_max_u32', VT + 9)
A('s_nop 1')
A(f'v_readlane_b32 s29, v{VT+9}, 63')
for s_ in range(2):
    A(f'v_lshrrev_b32 v{VT+2}, 16, v{OF(s_,0)}')
    A(f'v_lshrrev_b32 v{VT+3}, 18, v{OF(s_,0)}')
    A(f'v_sub_u32 v{VT+2}, v{VT+2}, v{VT+3}')
    A(f'v_lshrrev_b32 v{VT+3}, 18, v{OF(s_,8)}')
    A(f'v_add_u32 v{VT+2}, v{VT+2}, v{VT+3}')
    A(f'v_lshrrev_b32 v{VT+3}, 16, v{OF(s_,8)}')
    A(f'v_sub_u32 v{VT+4+s_}, v{VT+2}, v{VT+3}')
A(f'v_add_u32 v{VT+2}, v{VT+4}, v{VT+5}')
dpp_scan('v_add_u32', VT + 2)
A('s_nop 1')
A(f'v_readlane_b32 s32, v{VT+2}, 63')
A('s_min_u32 s27, s29, 249')
A('s_add_u32 s28, s27, 2')
A('s_lshl_b32 s28, s28, 23')
A('s_or_b32 s28, s28, 0x400000')
A('s_add_u32 s26, s27, 5')
A('s_lshl_b32 s26, s26, 23')
A('s_sub_u32 s34, 0x4000000, s26')
A('s_or_b32 s26, s26, 0x80000')
if OPT['detp'] == 0:
    PV, TBL, CBL, LW = VFB, VFB + 1, VFB + 2, VFB + 3
    D0, D1 = VFG, VFG + 1
    A('s_mov_b64 exec, -1')
    A(f'v_mov_b32_dpp v{PV}, v{TO+3} quad_perm:[0,0,2,2] row_mask:0xf bank_mask:0xf')
    A(f'v_and_b32 v{CBL}, 1, v0')
    A(f'v_cmp_eq_u32 vcc, 0, v{CBL}')
    A(f'v_lshlrev_b32 v{CBL}, 5, v{CBL}')
    A('v_cmp_lt_u32 s[38:39], 4, v1')
    A(f'v_cndmask_b32 v{PV}, v{PV}, v{TO+4}, vcc')
    A('s_nop 0')
    A(f'v_cndmask_b32 v{TBL}, v{VTB}, v{VTB+1}, s[38:39]')
    A(f'v_add_u32 v{TBL}, 64, v{TBL}')
    A('s_mov_b32 s46, s50')
    for t in range(8):
        sa, ha = (PV, 1) if t == 0 else (TO + (t - 1) // 2, (t - 1) & 1)
        sb, hb = TO + t // 2, t & 1
        nx = newlab('Q_D'); lp = newlab('Q_D')
        y, rem = VT, VT + 1
        A(f'v_and_b32_sdwa v{y}, v{sa}, v{VFC} {SD} src0_sel:WORD_{ha} src1_sel:DWORD')
        A(f'v_sub_u32_sdwa v{rem}, v{sb}, v{y} {SD} src0_sel:WORD_{hb} src1_sel:DWORD')
        A(f'v_cmpx_lt_i32 vcc, 16, v{rem}')
        A(f's_cbranch_execz {nx}')
        A(f'v_lshl_add_u32 v{D0}, v{y}, 2, v{TBL}')
        A(f'v_subrev_u32 v{rem}, 16, v{rem}')
        L(lp)
        A(f'v_mbcnt_lo_u32_b32 v{LW}, exec_lo, 0')
        A(f'v_mbcnt_hi_u32_b32 v{LW}, exec_hi, v{LW}')
        A(f'v_min_u32 v{D1}, 3, v{rem}')
        A(f'v_add_u32 v{LW}, s44, v{LW}')
        A(f'v_add3_u32 v{D1}, v{D1}, v{CBL}, s47' if False else f'v_add_u32 v{D1}, v{D1}, v{CBL}')
        if t: A(f'v_add_u32 v{D1}, {t*4}, v{D1}')
        A('s_bcnt1_i32_b64 s47, exec')
        A(f'v_min_u32 v{LW}, 63, v{LW}')
        A('s_add_u32 s44, s44, s47')
        A(f'v_lshl_add_u32 v{LW}, v{LW}, 3, s46')
        A(f'ds_write_b64 v{LW}, v[{D0}:{D1}]')
        A(f'v_cmpx_lt_i32 vcc, 4, v{rem}')
        A(f's_cbranch_execz {nx}')
        A('s_cmp_ge_u32 s44, 64')
        A(f's_cbranch_scc1 {nx}')
        A(f'v_add_u32 v{D0}, 16, v{D0}')
        A(f'v_subrev_u32 v{rem}, 4, v{rem}')
        A(f's_branch {lp}')
        L(nx)
        A('s_mov_b64 exec, -1')
    A(f'v_lshl_add_u32 v{LW}, v4, 3, s46')
    A(f'ds_read_b64 v[{VLA}:{VLB}], v{LW}')
    A('v_cmp_gt_u32 s[38:39], s44, v4')
    A('s_waitcnt lgkmcnt(0)')
    A(f'v_and_b32 v{LW}, 3, v{VLB}')
    A(f'v_lshrrev_b32 v{VLB}, 2, v{VLB}')
    A(f'v_cndmask_b32 v{LW}, 0, v{LW}, s[38:39]')
    A(f'v_cndmask_b32 v{VLB}, -1, v{VLB}, s[38:39]')
    for e in range(3): A(f'v_cmp_lt_u32 s[{40+2*e}:{41+2*e}], {e}, v{LW}')
    A('s_mov_b32 s46, 0')
A('s_mov_b64 s[48:49], 1')
xl(0)
A('s_waitcnt vmcnt(4)')
fill()
chall()
A('s_mov_b32 s33, 0')
A('s_waitcnt vmcnt(3) lgkmcnt(0)')
stamp2()
A('s_barrier')
Gset(0, 0); Gset(0, 1); xg(0)
pf1(1, 1); pf1(1, 2); xl(1)
if OPT['skip_pf']:
    pf1(0, 2); pf1(0, 3); pf1(1, 3); A('s_waitcnt vmcnt(0)')
A('s_waitcnt vmcnt(3) lgkmcnt(0)')
stamp2()
INLOOP[0] = 1
L('Q_LOOP')
for r in range(4):
    ps = r & 1
    if r == 1: stamp2()
    A('s_barrier')
    if r == 1: stamp2()
    if r == (NR - 1) % 4:
        A(f's_cmp_eq_u32 s33, {(NR-1)//4}')
        A(f's_cbranch_scc1 Q_LAST')
    fill()
    chall(r == (NR - 2) % 4)
    Sset(r, 0)
    A('s_waitcnt vmcnt(3) lgkmcnt(0)')
    if r == 1: stamp2()
    A('s_barrier')
    if r == 1: stamp2()
    Gset(r + 1, 0)
    xg(r + 1)
    hp = OPT['hp']
    Sset(r, 1, {int(hp[0]): lambda: pf1(ps, r + 2), int(hp[1]): lambda: (pf1(ps, r + 3), xl(r + 2))})
    Gset(r + 1, 1)
    if r == 3:
        A('s_mov_b64 exec, -1')
        A('s_add_u32 s33, s33, 1')
        A('s_add_u32 s46, s46, 4')
        for s_ in range(2):
            for k in range(0, 7): A(f'v_mov_b32 v{OF(s_,k)}, v{OF(s_,k+2)}')
    A('s_waitcnt vmcnt(3) lgkmcnt(0)')
A('s_branch Q_LOOP')
L('Q_LAST')
Sset((NR - 1) % 4, 0)
Sset((NR - 1) % 4, 1)
A('s_waitcnt vmcnt(0)')
xs()
A('s_mov_b64 exec, -1')
A('s_waitcnt lgkmcnt(0)')
stamp2()
A('s_barrier')
A('v_lshlrev_b32 v3, 3, v0')
A(f'v_add_u32 v7, {L_A}, v3')
RA = 8
for k in range(7):
    if k == 6: A('s_mov_b64 exec, s[24:25]')
    A(f'ds_read_b64 v[{RA+4*k}:{RA+4*k+1}], v7 offset:{k*8192}')
A('s_mov_b64 exec, -1')
A(f'v_add_u32 v4, {L_ARB}, v7')
for k in range(7):
    if k == 6: A('s_mov_b64 exec, s[24:25]')
    A(f'ds_read_b64 v[{RA+4*k+2}:{RA+4*k+3}], v4 offset:{k*8192}')
A('s_mov_b64 exec, -1')
A('s_lshr_b32 s16, s3, 6'); A(f's_mul_i32 s16, s16, {E*8}')
A('s_and_b32 s17, s3, 63'); A(f's_mul_i32 s17, s17, {CH*8}')
A('s_add_u32 s16, s16, s17'); A(f's_add_u32 s16, s16, {PART_BASE:#x}')
A('v_mov_b32 v5, 0')
A(f's_mov_b32 s36, {f32bits(2.0**-10):#x}')
A(f's_mov_b32 s37, {f32bits(2.0**-13):#x}')
A('s_mov_b32 s38, s37'); A('s_mov_b32 s39, s37')
A('s_sub_i32 s40, s27, 135')
A('v_mov_b32 v6, 1.0')
A('v_ldexp_f32 v6, v6, s40')
A('s_and_b32 s41, s3, 63')
A('s_lshl_b32 s41, s41, 2')
A('s_lshr_b32 s42, s3, 6')
A('s_add_u32 s41, s41, s42')
A('s_lshl_b32 s41, s41, 2')
A(f's_add_u32 s41, s41, {SCL_BASE:#x}')
A('v_cmp_eq_u32 vcc, 0, v0')
A('s_mov_b64 exec, vcc')
A(f'buffer_store_dword v6, v5, s[{S_WS}:{S_WS+3}], s41 offen')
A('s_mov_b64 exec, -1')
X = 40
for k in range(7):
    a0, a1, b0, b1 = RA + 4*k, RA + 4*k + 1, RA + 4*k + 2, RA + 4*k + 3
    c = X; P = X + 2; t = X + 4
    A(f's_waitcnt lgkmcnt({max(0,5-k)})')
    if k == 6: A('s_mov_b64 exec, s[24:25]')
    A(f'v_lshrrev_b32 v{c}, 26, v{a0}')
    A(f'v_and_b32 v{a0}, 0x3ffffff, v{a0}')
    A(f'v_mad_u64_u32 v[{P}:{P+1}], vcc, v{c}, s28, 0')
    A(f'v_lshlrev_b32 v{t}, 19, v{c}')
    A(f'v_add_u32 v5, v5, v{c}')
    A(f'v_sub_u32 v{a0}, v{a0}, v{t}')
    A(f'v_sub_u32 v{a1}, v{a1}, v{P}')
    A(f'v_add_u32 v{P+1}, v{P+1}, v{P}')
    A(f'v_sub_co_u32 v{b0}, vcc, v{b0}, v{P}')
    A(f'v_cvt_f32_i32 v{a0}, v{a0}')
    A(f'v_cvt_f32_i32 v{a1}, v{a1}')
    A(f'v_subb_co_u32 v{b1}, vcc, v{b1}, v{P+1}, vcc')
    A(f'v_ashrrev_i32 v{t}, 31, v{b0}')
    A(f'v_cvt_f32_i32 v{b0}, v{b0}')
    A(f'v_sub_u32 v{b1}, v{b1}, v{t}')
    A(f'v_pk_mul_f32 v[{a0}:{a1}], v[{a0}:{a1}], s[36:37]')
    A(f'v_cvt_f32_i32 v{b1}, v{b1}')
    A(f'v_cvt_pk_f16_f32 v{a0}, v{a0}, v{a1}')
    A(f'v_pk_mul_f32 v[{b0}:{b1}], v[{b0}:{b1}], s[38:39]')
    A(f'v_cvt_pk_f16_f32 v{a1}, v{b0}, v{b1}')
    A(f'buffer_store_dwordx2 v[{a0}:{a1}], v3, s[{S_WS}:{S_WS+3}], s16 offen {OPT["st_part"]}')
    A('s_add_u32 s16, s16, 8192')
A('s_mov_b64 exec, -1')
dpp_scan('v_add_u32', 5)
A('s_nop 1')
A('v_readlane_b32 s42, v5, 63')
A('s_nop 3')
A('s_lshl_b32 s42, s42, 2')
A('s_add_u32 s42, s42, s32')
A('v_mov_b32 v6, s42')
A('v_mov_b32 v7, s32')
A('s_mov_b64 exec, 1')
A('ds_add_u32 v126, v6')
A('ds_sub_u32 v126, v7 offset:4')
A('s_mov_b64 exec, -1')
A('s_waitcnt lgkmcnt(0)')
A('s_barrier')
A('ds_read_b64 v[6:7], v126')
A('s_waitcnt lgkmcnt(0)')
A('v_readfirstlane_b32 s42, v6')
A('v_readfirstlane_b32 s43, v7')
A('s_nop 3')
if OPT['forcefb'] == 1: A('s_mov_b32 s42, 1')
if OPT['forcefb'] == -1: A('s_mov_b32 s42, 0')
A('s_cmp_gt_u32 s29, 249')
A('s_cselect_b32 s42, 1, s42')
A('s_cmp_eq_u32 s42, 0')
A('s_cbranch_scc1 Q_FIN')
A('s_waitcnt vmcnt(0)')
A('s_min_u32 s27, s29, 254')
A('s_add_u32 s45, s27, 923')
A('s_lshl_b32 s45, s45, 20')
A('s_or_b32 s45, s45, 0x80000')
A('s_mov_b32 s44, 0')
A('s_lshr_b32 s43, s43, 2')
A('s_flbit_i32_b32 s46, s43')
A('s_max_i32 s46, s46, 0')
A('s_sub_u32 s46, 32, s46')
A('s_sub_i32 s47, -11, s46')
A('s_add_u32 s40, s27, s46')
A('s_sub_i32 s40, s40, 141')
A('v_mov_b32 v6, 1.0')
A('v_ldexp_f32 v6, v6, s40')
A('v_mov_b32 v5, 0')
A('v_cmp_eq_u32 vcc, 0, v0')
A('s_mov_b64 exec, vcc')
A(f'buffer_store_dword v6, v5, s[{S_WS}:{S_WS+3}], s41 offen')
A('s_mov_b64 exec, -1')
A('v_lshrrev_b32 v8, 1, v0')
A('v_lshrrev_b32 v9, 2, v0')
A(f'v_mul_u32_u24 v9, {OFS}, v9')
A('v_and_b32 v39, 1, v8')
A('v_lshl_add_u32 v9, v39, 5, v9')
A(f's_mov_b32 s16, {RS}')
A('v_mul_lo_u32 v8, v8, s16')
A('v_and_b32 v10, 1, v0')
for r in range(12, 16): A(f'v_mov_b32 v{r}, 0')
A('v_add_u32 v11, 65536, v2')
A('s_mov_b32 s48, 0')
L('Q_FH')
A('s_barrier')
for j in range(4): A(f'ds_write_b128 v2, v[12:15] offset:{j*16384}')
for j in range(2): A(f'ds_write_b128 v11, v[12:15] offset:{j*16384}')
A('s_mov_b64 exec, s[24:25]')
A(f'ds_write_b128 v11, v[12:15] offset:{2*16384}')
A('s_mov_b64 exec, -1')
A('s_waitcnt lgkmcnt(0)')
A('s_barrier')
A('s_lshl_b32 s49, s3, 6')
A(f's_add_u32 s49, s49, {OFF_BASE:#x}')
A(f'buffer_load_ushort v17, v9, s[{S_WS}:{S_WS+3}], s49 offen offset:30')
A('s_waitcnt vmcnt(0)')
A('s_lshr_b32 s50, s3, 6')
A(f's_mul_i32 s50, s50, {NR*CHI*8}')
A('s_mov_b32 s51, 0')
L('Q_FR')
A('v_add_u32 v16, v17, v10')
A(f'buffer_load_ushort v17, v9, s[{S_WS}:{S_WS+3}], s49 offen offset:64')
A('s_waitcnt vmcnt(0)')
L('Q_FI')
A('v_cmp_lt_u32 vcc, v16, v17')
A('s_and_b64 exec, exec, vcc')
A('s_cbranch_execz Q_FRN')
A('s_mov_b64 s[52:53], exec')
A('v_and_b32 v18, 3, v16')
A('v_lshl_add_u32 v19, v16, 2, v8')
A('v_or_b32 v20, 3, v16')
A('v_lshl_add_u32 v20, v20, 2, v8')
A('v_add_u32 v20, v20, v18')
A(f'buffer_load_dword v21, v19, s[{S_WS}:{S_WS+3}], 0 offen')
A(f'buffer_load_ubyte v22, v20, s[{S_WS}:{S_WS+3}], 0 offen')
A('s_waitcnt vmcnt(0)')
A('v_bfe_u32 v23, v21, 13, 13')
A('v_subrev_u32 v23, s48, v23')
A('s_movk_i32 s16, 3125')
A('v_cmp_gt_u32 vcc, s16, v23')
A('v_cmp_ne_u32 s[54:55], 3, v18')
A('s_and_b64 vcc, vcc, s[54:55]')
A('v_bfe_u32 v24, v21, 0, 13')
A('v_lshlrev_b32 v24, 3, v24')
A('s_and_b64 exec, exec, vcc')
A('s_cbranch_execz Q_FIN2')
A(f'buffer_load_dwordx2 v[26:27], v24, s[{S_M}:{S_M+3}], s50 offen')
A('v_lshlrev_b32 v22, 2, v22')
A('v_lshrrev_b32 v25, 16, v21')
A('v_and_b32 v25, 0xfc00, v25')
A('v_or_b32 v25, v25, v22')
A('v_cvt_f32_f16 v25, v25')
A('v_cvt_f64_f32 v[28:29], v25')
A('v_lshlrev_b32 v23, 3, v23')
A('v_add_u32 v38, 50000, v23')
A('s_waitcnt vmcnt(0)')
A('v_lshlrev_b32 v30, 16, v26'); A('v_and_b32 v32, s30, v26')
A('v_lshlrev_b32 v34, 16, v27'); A('v_and_b32 v36, s30, v27')
for j, r in enumerate((30, 32, 34, 36)):
    A(f'v_cvt_f64_f32 v[{r}:{r+1}], v{r}')
    A(f'v_fma_f64 v[{r}:{r+1}], v[{r}:{r+1}], v[28:29], s[44:45]')
    A(f'ds_add_u64 v{23 if j < 2 else 38}, v[{r}:{r+1}] offset:{(j & 1) * 25000}')
L('Q_FIN2')
A('s_mov_b64 exec, s[52:53]')
A('v_add_u32 v16, 2, v16')
A('s_branch Q_FI')
L('Q_FRN')
A('s_mov_b64 exec, -1')
A('s_add_u32 s49, s49, 2')
A(f's_add_u32 s50, s50, {CHI*8}')
A('s_add_u32 s51, s51, 1')
A('s_cmp_lt_u32 s51, 16')
A('s_cbranch_scc1 Q_FR')
A('s_waitcnt lgkmcnt(0)')
A('s_barrier')
A('s_lshr_b32 s16, s3, 6'); A(f's_mul_i32 s16, s16, {E*8}')
A('s_and_b32 s17, s3, 63'); A(f's_mul_i32 s17, s17, {CH*8}')
A('s_add_u32 s16, s16, s17'); A(f's_add_u32 s16, s16, {PART_BASE:#x}')
A('s_lshl_b32 s17, s48, 3'); A('s_add_u32 s16, s16, s17')
A('s_mov_b32 s52, 0'); A('s_mov_b32 s53, 0x41f00000')
A('v_mov_b32 v16, v3')
L('Q_FC')
A('s_movk_i32 s17, 25000')
A('v_cmp_gt_u32 vcc, s17, v16')
A('s_and_b64 exec, exec, vcc')
A('s_cbranch_execz Q_FCD')
A('v_add_u32 v17, 50000, v16')
for j in range(4):
    A(f'ds_read_b64 v[{18+2*j}:{19+2*j}], v{16 if j < 2 else 17} offset:{(j & 1) * 25000}')
A('s_waitcnt lgkmcnt(0)')
for j in range(4):
    lo, hi = 18 + 2*j, 19 + 2*j
    A(f'v_bfe_i32 v{hi}, v{hi}, 0, 19')
    A(f'v_cvt_f64_u32 v[26:27], v{lo}')
    A(f'v_cvt_f64_i32 v[28:29], v{hi}')
    A('v_fma_f64 v[26:27], v[28:29], s[52:53], v[26:27]')
    A('v_ldexp_f64 v[26:27], v[26:27], s47')
    A(f'v_cvt_f32_f64 v{30+j}, v[26:27]')
A('v_cvt_pk_f16_f32 v34, v30, v31')
A('v_cvt_pk_f16_f32 v35, v32, v33')
A(f'buffer_store_dwordx2 v[34:35], v16, s[{S_WS}:{S_WS+3}], s16 offen')
A('v_add_u32 v16, 8192, v16')
A('s_branch Q_FC')
L('Q_FCD')
A('s_mov_b64 exec, -1')
A('s_add_u32 s48, s48, 3125')
A('s_cmp_lt_u32 s48, 6250')
A('s_cbranch_scc1 Q_FH')
L('Q_FIN')
stamp2()
if OPT['stamp2'] >= 0:
    A('s_waitcnt vmcnt(0)')
    stamp2()
    A('v_readfirstlane_b32 s54, v0')
    A('s_nop 3')
    A(f's_cmp_lg_u32 s2, {OPT["stamp2"]}')
    A('s_cbranch_scc1 Q_END')
    A(f's_cmp_lg_u32 s54, {64*OPT.get("swave", 0)}')
    A('s_cbranch_scc1 Q_END')
    A('s_load_dwordx2 s[4:5], s[0:1], 96')
    A('s_waitcnt lgkmcnt(0)')
    srd(72, 4, 256)
    A('v_readlane_b32 s54, v127, 2')
    A('v_and_b32 v4, 63, v0')
    A('v_lshlrev_b32 v4, 2, v4')
    A('v_subrev_u32 v127, s54, v127')
    A('buffer_store_dword v127, v4, s[72:75], 0 offen')
abs_end(127, 64, 1, 16)
L('Q_END')
A('s_endpgm')

NE = OPT['ne']
khead('fin_kernel')
A(f's_cmp_ge_u32 s2, {G3}')
A('s_cbranch_scc1 F_END')
abs_start(1)
A('s_load_dwordx2 s[4:5], s[0:1], 0')
A('s_load_dwordx2 s[6:7], s[0:1], 104')
A('s_load_dwordx2 s[8:9], s[0:1], 24')
A('s_load_dwordx2 s[10:11], s[0:1], 88')
A('s_load_dwordx2 s[28:29], s[0:1], 40')
A('s_load_dwordx8 s[64:71], s[0:1], 56')
S_M, S_WS, S_DIST, S_O = 12, 16, 20, 24
A(f's_mul_i32 s3, s2, {256*NE}')
VB = 2
def R(i, n): return VB + 40 * i + n
for i in range(NE):
    e, t = R(i, 1), R(i, 2)
    A(f'v_add_u32 v{e}, s3, v0')
    if i: A(f'v_add_u32 v{e}, {256*i}, v{e}')
    A(f'v_lshlrev_b32 v{R(i,3)}, 1, v{e}')
    A(f'v_min_u32 v{t}, {E-1}, v{e}')
    A(f'v_lshlrev_b32 v{R(i,0)}, 3, v{t}')
    A(f'v_mul_hi_u32_u24 v{t}, {MAGIC_DIV:#x}, v{t}')
    A(f'v_lshlrev_b32 v{t}, 4, v{t}')
    A(f'v_lshlrev_b32 v{e}, 3, v{e}')
A('s_waitcnt lgkmcnt(0)')
srd(S_DIST, 8, E * 2)
for i in range(NE):
    A(f'buffer_load_ushort v{R(i,3)}, v{R(i,3)}, s[{S_DIST}:{S_DIST+3}], 0 offen')
A('s_load_dwordx4 s[28:31], s[28:29], 0')
A('s_load_dwordx16 s[32:47], s[64:65], 0')
A('s_load_dwordx16 s[48:63], s[66:67], 0')
A('s_load_dwordx8 s[72:79], s[70:71], 0')
A('s_load_dwordx8 s[64:71], s[68:69], 0')
srd(S_WS, 6, WS_BYTES); srd(S_M, 4, E * 8); srd(S_O, 10, E * 8)
for i in range(NE):
    A(f's_mov_b32 s4, {SCL_BASE:#x}')
    A(f'buffer_load_dwordx4 v[{R(i,6)}:{R(i,9)}], v{R(i,2)}, s[{S_WS}:{S_WS+3}], s4 offen')
    for p in range(4):
        A(f's_mov_b32 s4, {PART_BASE + p*E*8:#x}')
        A(f'buffer_load_dwordx2 v[{R(i,32+2*p)}:{R(i,33+2*p)}], v{R(i,0)}, s[{S_WS}:{S_WS+3}], s4 offen {OPT["ld_part"]}')
    A(f'buffer_load_dwordx2 v[{R(i,4)}:{R(i,5)}], v{R(i,1)}, s[{S_M}:{S_M+3}], 0 offen')
A('s_mov_b32 s5, 0xffff0000')
A(f's_mov_b32 s8, {f32bits(-10.0):#x}')
A(f's_mov_b32 s9, {f32bits(math.log2(math.e)):#x}')
def sw(base, idx, dst):
    sr = base + idx // 2
    if idx & 1: A(f's_and_b32 s{dst}, s{sr}, 0xffff0000')
    else: A(f's_lshl_b32 s{dst}, s{sr}, 16')
def spk(base, r, d, dst):
    op = 's_pack_hh_b32_b16' if d & 1 else 's_pack_ll_b32_b16'
    A(f'{op} s{dst}, s{base + r*2 + d//2}, s{base + (r+1)*2 + d//2}')
def unp(a, b, t):
    A(f'v_lshlrev_b32 v{a}, 16, v{t}')
    A(f'v_and_b32 v{b}, s5, v{t}')
def rnd2(a, b, t):
    A(f'v_cvt_pk_bf16_f32 v{t}, v{a}, v{b}')
    unp(a, b, t)
A(f's_waitcnt vmcnt({6*NE}) lgkmcnt(0)')
for i in range(NE): A(f'v_lshlrev_b32 v{R(i,3)}, 16, v{R(i,3)}')
for r in range(0, 8, 2):
    sw(28, r, 6); sw(28, r + 1, 7)
    for i in range(NE):
        a_, b_, t = R(i, 14), R(i, 15), R(i, 2)
        A(f'v_subrev_f32 v{a_}, s6, v{R(i,3)}')
        A(f'v_subrev_f32 v{b_}, s7, v{R(i,3)}')
        rnd2(a_, b_, t)
        A(f'v_mul_f32 v{a_}, v{a_}, v{a_}')
        A(f'v_mul_f32 v{b_}, v{b_}, v{b_}')
        rnd2(a_, b_, t)
        A(f'v_mul_f32 v{a_}, s8, v{a_}')
        A(f'v_mul_f32 v{b_}, s8, v{b_}')
        rnd2(a_, b_, t)
        A(f'v_mul_f32 v{a_}, s9, v{a_}')
        A(f'v_mul_f32 v{b_}, s9, v{b_}')
        A(f'v_exp_f32 v{a_}, v{a_}')
        A(f'v_exp_f32 v{b_}, v{b_}')
        A('s_nop 0')
        A(f'v_cvt_pk_bf16_f32 v{R(i,18+r//2)}, v{a_}, v{b_}')
for r in range(0, 8, 2):
    for base, dst in ((48, 22), (32, 26)):
        for d in range(4):
            spk(base, r, d, 6 + (d & 1))
            for i in range(NE):
                c = '0' if r == 0 else f'v{R(i,dst+d)}'
                A(f'v_dot2_f32_bf16 v{R(i,dst+d)}, v{R(i,18+r//2)}, s{6+(d&1)}, {c}')
A('s_nop 2')
for i in range(NE):
    rnd2(R(i,26), R(i,27), R(i,2)); rnd2(R(i,28), R(i,29), R(i,2))
A('s_waitcnt vmcnt(0)')
for i in range(NE):
    for p in range(4):
        for d in range(4):
            c = '0' if p == 0 else f'v{R(i,14+d)}'
            A(f'v_fma_mix_f32 v{R(i,14+d)}, v{R(i,32+2*p+d//2)}, v{R(i,6+p)}, {c} op_sel:[{d&1},0,0] op_sel_hi:[1,0,0]')
for k in range(4):
    for d in range(4):
        sw(64, k*4 + d, 6 + (d & 1))
        for i in range(NE):
            if k == 0: A(f'v_mul_f32 v{R(i,10+d)}, s{6+(d&1)}, v{R(i,14+k)}')
            else: A(f'v_fmac_f32 v{R(i,10+d)}, s{6+(d&1)}, v{R(i,14+k)}')
for i in range(NE):
    for d in range(4):
        A(f'v_mul_f32 v{R(i,10+d)}, v{R(i,10+d)}, v{R(i,22+d)}')
    A(f'v_cvt_pk_bf16_f32 v{R(i,18)}, v{R(i,10)}, v{R(i,11)}')
    A(f'v_cvt_pk_bf16_f32 v{R(i,19)}, v{R(i,12)}, v{R(i,13)}')
for k in (0, 2):
    for d in range(4):
        spk(72, k, d, 6 + (d & 1))
        for i in range(NE):
            c = '0' if k == 0 else f'v{R(i,22+d)}'
            A(f'v_dot2_f32_bf16 v{R(i,22+d)}, v{R(i,18+k//2)}, s{6+(d&1)}, {c}')
for i in range(NE):
    unp(R(i,10), R(i,11), R(i,4)); unp(R(i,12), R(i,13), R(i,5))
A('s_nop 0')
for i in range(NE):
    rnd2(R(i,22), R(i,23), R(i,2)); rnd2(R(i,24), R(i,25), R(i,2))
    for d in range(4):
        A(f'v_mul_f32 v{R(i,22+d)}, v{R(i,22+d)}, v{R(i,26+d)}')
    rnd2(R(i,22), R(i,23), R(i,2)); rnd2(R(i,24), R(i,25), R(i,2))
    for d in range(4):
        A(f'v_add_f32 v{R(i,22+d)}, v{R(i,22+d)}, v{R(i,10+d)}')
    A(f'v_cvt_pk_bf16_f32 v{R(i,30)}, v{R(i,22)}, v{R(i,23)}')
    A(f'v_cvt_pk_bf16_f32 v{R(i,31)}, v{R(i,24)}, v{R(i,25)}')
    A(f'buffer_store_dwordx2 v[{R(i,30)}:{R(i,31)}], v{R(i,1)}, s[{S_O}:{S_O+3}], 0 offen')
L('F_END')
A('s_endpgm')
L('CODE_END')

out.append('.section .rodata,"a"')
for name, vg, sg in (('part_kernel', 128, 102), ('acc_kernel', 128, 102), ('fin_kernel', 4 + 40*OPT['ne'], 80)):
    out.append('.p2align 6')
    out.append(f'.amdhsa_kernel {name}')
    out.append(f'  .amdhsa_next_free_vgpr {vg}')
    out.append(f'  .amdhsa_next_free_sgpr {sg}')
    out.append(f'  .amdhsa_accum_offset {vg}')
    out.append('  .amdhsa_group_segment_fixed_size 0')
    out.append('  .amdhsa_kernarg_size 112')
    out.append('  .amdhsa_user_sgpr_count 2')
    out.append('  .amdhsa_user_sgpr_kernarg_segment_ptr 1')
    out.append('  .amdhsa_system_sgpr_workgroup_id_x 1')
    out.append('  .amdhsa_float_denorm_mode_32 3')
    out.append('.end_amdhsa_kernel')
open(sys.argv[1], 'w').write('\n'.join(out) + '\n')
```

```python
import struct, sys, math

E = 400000
T = 12800000
CH = 6250
S = 25000
NTILE = 512
NBLK = (S + 2) // 3
RS = 133376
OFS = 16448
OFF_BASE = 0x4400000
MAX_BASE = 0x4C00000
SCL_BASE = 0x4C01000
PART_BASE = 0x5000000
TAB_BASE = 0x6000000
WS_BYTES = 268435456
MAGIC_DIV = (2**32 + CH - 1) // CH
NR = int([a for a in sys.argv[2:] if a.startswith('NR=')][0][3:]) if any(a.startswith('NR=') for a in sys.argv[2:]) else 14
CHI = (E + 4*NR - 1) // (4*NR)
MAGIC_I = (2**32 + CHI - 1) // CHI
assert MAGIC_I < 2**24 and all((x*MAGIC_I) >> 32 == x // CHI for x in range(0, E, 1))
NBK = (CHI*8 + 1023) // 1024
MINI = S - 6 * 4096
assert NTILE * RS <= OFF_BASE and OFF_BASE + 256 * OFS <= MAX_BASE

OPT = dict(ld_in='nt', st_ws='sc0 sc1', ld_ent='', ld_ch='', st_part='sc0 sc1', ld_part='', NB=2, skip_s=0, skip_g=0, skip_fill=0, skip_e=0,
           stamp=-1, stamp2=-1, prio=1, ilv='2:0,3:1,4:2,5:3', pre=1, npb=1, bps=1, vpos='123456', skip_ch=0, skip_pf=0, pmap=0, cpos=0, epos=1, unpair=0, k2prio=0, pa=2, pb=2, struct=0, forcefb=0, abst=0, wsoff=0, cpf=0, ne=1, pp=0, ilp=0, hp='01', NR=14, nd=1, tab=0, adj=0, st_out='sc0 sc1', warm=0, detp=0, st_mp='sc0 sc1', dst='002211111')
for a in sys.argv[2:]:
    k, v = a.split('=')
    OPT[k] = int(v) if (v.lstrip('-').isdigit() and k not in ('vpos', 'dst', 'hp')) else v.replace('_', ' ')

def f32bits(x): return struct.unpack('<I', struct.pack('<f', x))[0]
out = []
def A(s): out.append('    ' + s)
def L(s): out.append(s + ':')
_lab = [0]
def newlab(p='L'):
    _lab[0] += 1
    return f'{p}_{_lab[0]}'
def srd(d, b, nbytes):
    if nbytes == WS_BYTES and OPT['wsoff']:
        off = OPT['wsoff'] << 20
        A(f's_add_u32 s{d}, s{b}, {off:#x}')
        A(f's_addc_u32 s{d+1}, s{b+1}, 0')
        A(f's_and_b32 s{d+1}, s{d+1}, 0xffff')
        A(f's_mov_b32 s{d+2}, {nbytes - off:#x}')
        A(f's_mov_b32 s{d+3}, 0x00020000')
        return
    A(f's_mov_b32 s{d}, s{b}')
    A(f's_and_b32 s{d+1}, s{b+1}, 0xffff')
    A(f's_mov_b32 s{d+2}, {nbytes:#x}')
    A(f's_mov_b32 s{d+3}, 0x00020000')
def dpp_scan(op, v):
    for sh in (1, 2, 4, 8):
        A('s_nop 1')
        A(f'{op}_dpp v{v}, v{v}, v{v} row_shr:{sh} row_mask:0xf bank_mask:0xf bound_ctrl:0')
    A('s_nop 1')
    A(f'{op}_dpp v{v}, v{v}, v{v} row_bcast:15 row_mask:0xa bank_mask:0xf')
    A('s_nop 1')
    A(f'{op}_dpp v{v}, v{v}, v{v} row_bcast:31 row_mask:0xc bank_mask:0xf')
def khead(name):
    out.append(f'.globl {name}')
    out.append('.p2align 8')
    out.append(f'.type {name},@function')
    L(name)
SD = 'dst_sel:DWORD dst_unused:UNUSED_PAD'
def abs_start(v):
    if not OPT['abst']: return
    A('s_memrealtime s[4:5]')
    A('s_waitcnt lgkmcnt(0)')
    A(f'v_mov_b32 v{v}, s4')
def abs_end(v, sr, kid, wpb):
    if not OPT['abst']: return
    A('s_mov_b64 exec, -1')
    A('s_waitcnt vmcnt(0)')
    A('s_load_dwordx2 s[4:5], s[0:1], 104')
    A('s_memrealtime s[6:7]')
    A('s_waitcnt lgkmcnt(0)')
    srd(sr, 4, WS_BYTES)
    A('v_lshrrev_b32 v1, 6, v0')
    A(f's_mul_i32 s7, s2, {wpb}')
    A('v_add_u32 v1, s7, v1')
    A('v_lshlrev_b32 v1, 3, v1')
    A(f'v_mov_b32 v2, v{v}')
    A('v_mov_b32 v3, s6')
    A(f's_mov_b32 s7, {0xF000000 + kid*65536:#x}')
    A('s_mov_b64 exec, 1')
    A(f'buffer_store_dwordx2 v[2:3], v1, s[{sr}:{sr+3}], s7 offen')

stampn = [0]
def stamp(key):
    if OPT[key] < 0: return
    n = stampn[0]; stampn[0] += 1
    A(OPT.get('clk','s_memtime').replace(' ','_') + ' s[98:99]')
    A('s_waitcnt lgkmcnt(0)')
    A(f's_mov_b32 s{76+n}, s98')
def stamp_flush(key, swave, vz, wave=0):
    if OPT[key] < 0: return
    lab = newlab('STF')
    A(f's_cmp_lg_u32 s2, {OPT[key]}')
    A(f's_cbranch_scc1 {lab}')
    A(f's_cmp_lg_u32 s{swave}, {wave}')
    A(f's_cbranch_scc1 {lab}')
    A('s_load_dwordx2 s[4:5], s[0:1], 96')
    A('s_waitcnt lgkmcnt(0)')
    srd(72, 4, 256)
    A('s_mov_b64 exec, 1')
    A(f'v_mov_b32 v{vz}, 0')
    for n in range(stampn[0]):
        A(f's_sub_u32 s98, s{76+n}, s76')
        A(f'v_mov_b32 v{vz+1}, s98')
        A(f'buffer_store_dword v{vz+1}, v{vz}, s[72:75], 0 offen offset:{4*n}')
        A('s_nop 1')
    L(lab)

L_H, L_SC, L_ST = 0, 16384, 16640
L_X = L_ST
L_W = L_X + NBLK * 4 + 8
LDS1 = L_W + NBLK * 12
assert L_W < 65536 and L_W % 16 == 0
L_ARB, L_A = 50000, NBK*1024
L_SC2 = L_A + 100000
LDS2 = L_SC2 + 64
assert LDS2 <= 163840
MP_BASE = 0x4C10000
CHS = NBK*1024
assert MP_BASE + 4*NR*CHS + CHS <= PART_BASE
G3 = (E + 256*OPT['ne'] - 1) // (256*OPT['ne'])

hdr = open('standalone__molecular_angular_gemnet__graph.s.ref').read().split('; Override launch')[0]
out.append(hdr.rstrip())
out.append(f'; @launch kernel=part_kernel grid=(256,1,1) block=(1024,1,1) lds={LDS1}')
out.append(f'; @launch kernel=acc_kernel grid=(256,1,1) block=(1024,1,1) lds={LDS2}')
out.append(f'; @launch kernel=fin_kernel grid=({G3},1,1) block=(256,1,1) lds=0')
out.append('.amdgcn_target "amdgcn-amd-amdhsa--gfx950"')
out.append('.text')

khead('part_kernel')
A('s_cmp_ge_u32 s2, 256')
A('s_cbranch_scc1 P_END')
abs_start(7+0) if False else abs_start(87)
A('s_load_dwordx4 s[4:7], s[0:1], 0')
A('s_load_dwordx2 s[8:9], s[0:1], 16')
A('s_load_dwordx2 s[10:11], s[0:1], 32')
A('s_load_dwordx2 s[12:13], s[0:1], 48')
A('s_load_dwordx2 s[14:15], s[0:1], 104')
S_IN, S_OUT, S_ANG, S_WS, S_M = 16, 20, 24, 28, 32
if OPT['prio']: A('s_setprio 3')
if OPT['cpf'] >= 2:
    A('s_getpc_b64 s[58:59]')
    A('v_lshlrev_b32 v48, 7, v0')
    A('v_cmp_gt_u32 vcc, 88, v0')
    A('s_and_saveexec_b64 s[56:57], vcc')
    A('s_cbranch_execz P_NOSPF')
    A('global_load_dword v87, v48, s[58:59]')
    L('P_NOSPF')
    A('s_mov_b64 exec, s[56:57]')
A('v_lshlrev_b32 v1, 4, v0')
A('v_lshlrev_b32 v2, 3, v0')
A('v_mov_b32 v3, 1')
A('v_mov_b32 v4, 0x10000')
A('v_mov_b32 v5, 0')
A('v_lshlrev_b32 v6, 2, v0')
A('v_lshlrev_b32 v7, 1, v0')
TT = 8
for r in range(4): A(f'v_mov_b32 v{TT+4+r}, 0')
A('v_readfirstlane_b32 s50, v0')
A(f'ds_write_b128 v1, v[{TT+4}:{TT+7}]')
A(f'ds_write_b32 v6, v5 offset:{L_SC}')
A(f's_movk_i32 s42, {MINI}')
A('v_cmp_gt_u32 s[40:41], s42, v0')
A('s_waitcnt lgkmcnt(0)')
A('s_load_dword s36, s[12:13], 0')
srd(S_IN, 6, T * 4); srd(S_OUT, 8, T * 4); srd(S_ANG, 10, T * 2); srd(S_WS, 14, WS_BYTES); srd(S_M, 4, E * 8)
A('s_lshr_b32 s50, s50, 6')
A(f's_mul_i32 s37, s2, {2*S*4}')
A(f's_mul_i32 s38, s2, {2*S*2}')
UA = 24
unitA = [(UA + 10*k, UA + 10*k + 4, UA + 10*k + 8) for k in range(6)] + [(84, 85, 86)]
unitB = [(88 + 10*k, 88 + 10*k + 4, 88 + 10*k + 8) for k in range(4)] + [unitA[0], unitA[1], (44, 45, 46)]
vm = []
ldf = OPT['ld_in']
def load_unit(tag, k):
    vi, vo, va = (unitA if tag == 'A' else unitB)[k]
    tile = 0 if tag == 'A' else 1
    A(f's_add_u32 s43, s37, {tile*S*4 + k*16384}')
    A(f's_add_u32 s44, s38, {tile*S*2 + k*8192}')
    if k < 6:
        A(f'buffer_load_dwordx4 v[{vo}:{vo+3}], v1, s[{S_OUT}:{S_OUT+3}], s43 offen {ldf}')
        A(f'buffer_load_dwordx4 v[{vi}:{vi+3}], v1, s[{S_IN}:{S_IN+3}], s43 offen {ldf}')
        A(f'buffer_load_dwordx2 v[{va}:{va+1}], v2, s[{S_ANG}:{S_ANG+3}], s44 offen {ldf}')
    else:
        A('s_or_b64 exec, s[40:41], 1')
        A(f'buffer_load_dword v{vo}, v6, s[{S_OUT}:{S_OUT+3}], s43 offen {ldf}')
        A(f'buffer_load_dword v{vi}, v6, s[{S_IN}:{S_IN+3}], s43 offen {ldf}')
        A(f'buffer_load_ushort v{va}, v7, s[{S_ANG}:{S_ANG+3}], s44 offen {ldf}')
        A('s_mov_b64 exec, -1')
    vm.extend([(tag, k)] * 3)
def vwait(tag):
    idx = max(i for i, t in enumerate(vm) if t == tag)
    A(f's_waitcnt vmcnt({min(len(vm)-1-idx, 63)})')
stamp('stamp')
for k in range(OPT['pre']): load_unit('A', k)
A('s_barrier')
A('s_lshl_b32 s39, s2, 4')
A('s_add_u32 s39, s39, s50')
A(f's_sub_u32 s42, s39, {4*NR*NBK}')
A(f's_cmp_ge_u32 s39, {4*NR*NBK}')
A('s_cselect_b32 s39, s42, s39')
A('s_lshl_b32 s45, s39, 10')
A(f's_mul_hi_u32 s42, s39, {(2**32 + NBK - 1)//NBK:#x}')
A(f's_mul_i32 s42, s42, {CHS - CHI*8}')
A('s_sub_u32 s39, s45, s42')
A(f's_add_u32 s45, s45, {MP_BASE:#x}')
A(f'v_and_b32 v{TT+4}, 0xfc, v6')
A(f'v_and_b32 v{TT+5}, 0x3f0, v1')
for k in range(4):
    A(f'buffer_load_dword v{TT+k}, v{TT+4}, s[{S_M}:{S_M+3}], s39 offen offset:{256*k}'); vm.append('M')
for k in range(OPT['pre'], 7): load_unit('A', k)
if OPT['prio']: A('s_setprio 0')
A(f's_mov_b32 s46, {f32bits(1/(2*math.pi)):#x}')
A(f's_mov_b32 s47, {f32bits(1/(2*math.pi)):#x}')
A('s_mov_b32 s48, 0xfc000000')
A('s_mov_b32 s49, 0xffff0000')
A(f's_mov_b32 s51, {(-CH) & 0xffffffff:#x}')
A('s_mov_b32 s52, 0x00020002')
A(f's_movk_i32 s55, {1024-NR}')
A(f's_mov_b32 s54, {(-CHI) & 0xffffffff:#x}')
A('s_mov_b32 s53, 0x55555556')
A('s_waitcnt lgkmcnt(0)')
A('s_lshl_b32 s36, s36, 16')

PT = TT + 11
def process(tag, k):
    vi0, vo0, va0 = (unitA if tag == 'A' else unitB)[k]
    inc = 3 if tag == 'A' else 4
    n = 4 if k < 6 else 1
    vwait((tag, k))
    skip = None
    if k == 6:
        skip = newlab('P_MS')
        A('s_mov_b64 exec, s[40:41]')
        A(f's_cbranch_execz {skip}')
    tj, ti, t1 = PT, PT + 1, PT + 2
    for j in range(n):
        vi, vo = vi0 + j, vo0 + j
        A(f'v_mul_hi_u32_u24 v{tj}, {MAGIC_I:#x}, v{vi}')
        A(f'v_mul_hi_u32_u24 v{ti}, {MAGIC_DIV:#x}, v{vo}')
        A(f'v_mul_u32_u24 v{t1}, {(65536 + NR - 1)//NR}, v{tj}')
        A(f'v_mad_i32_i24 v{vi}, v{tj}, s54, v{vi}')
        A(f'v_mad_i32_i24 v{vo}, v{ti}, s51, v{vo}')
        A(f'v_lshrrev_b32 v{t1}, 16, v{t1}')
        A(f'v_lshl_or_b32 v{vi}, v{vo}, 13, v{vi}')
        A(f'v_lshl_add_u32 v{vo}, v{ti}, 4, v{tj}')
        A(f'v_mad_u32_u24 v{vo}, v{t1}, s55, v{vo}')
        A(f'v_lshlrev_b32 v{vo}, 2, v{vo}')
        A(f'ds_add_u32 v{vo}, v{inc} offset:{L_H}')
    a0, a1 = PT + 3, PT + 4
    assert a0 % 2 == 0
    npair = (n + 1) // 2
    nf = newlab('P_NF')
    A('s_cmp_eq_u32 s36, 0x3f800000')
    A(f's_cbranch_scc1 {nf}')
    for p in range(npair):
        va = va0 + p
        A(f'v_lshlrev_b32 v{a0}, 16, v{va}')
        A(f'v_and_b32 v{a1}, s49, v{va}')
        A(f'v_mul_f32 v{a0}, s36, v{a0}')
        A(f'v_mul_f32 v{a1}, s36, v{a1}')
        A(f'v_cvt_pk_bf16_f32 v{va}, v{a0}, v{a1}')
    L(nf)
    for p in range(npair):
        va = va0 + p
        A(f'v_lshlrev_b32 v{a0}, 16, v{va}')
        A(f'v_and_b32 v{a1}, s49, v{va}')
        A(f'v_pk_mul_f32 v[{a0}:{a1}], v[{a0}:{a1}], s[46:47]')
        A(f'v_fract_f32 v{a0}, v{a0}')
        A(f'v_fract_f32 v{a1}, v{a1}')
        A(f'v_cos_f32 v{a0}, v{a0}')
        A(f'v_cos_f32 v{a1}, v{a1}')
        A('s_nop 0')
        A(f'v_cvt_pk_f16_f32 v{va}, v{a0}, v{a1}')
        A(f'v_pk_add_u16 v{va}, v{va}, s52')
        e0, e1 = 2*p, 2*p + 1
        A(f'v_lshlrev_b32 v{a0}, 16, v{va}')
        if e1 < n: A(f'v_and_or_b32 v{vi0+e1}, v{va}, s48, v{vi0+e1}')
        A(f'v_and_or_b32 v{vi0+e0}, v{a0}, s48, v{vi0+e0}')
        A(f'v_lshrrev_b32 v{va}, 2, v{va}')
    if k == 6:
        L(skip)
        A('s_mov_b64 exec, -1')

def maxm():
    vwait('M')
    M = TT + 6
    A('s_mov_b32 s42, 0x7fff7fff')
    for j in range(4): A(f'v_and_b32 v{M+j}, s42, v{TT+j}')
    A(f'v_pk_max_u16 v{M}, v{M}, v{M+2}')
    A(f'v_pk_max_u16 v{M+1}, v{M+1}, v{M+3}')
    A(f'v_pk_max_u16 v{M}, v{M}, v{M+1}')
    A(f'v_lshrrev_b32 v{M+1}, 16, v{M}')
    A(f'v_and_b32 v{M}, 0xffff, v{M}')
    A(f'v_max_u32 v{M}, v{M}, v{M+1}')
    dpp_scan('v_max_u32', M)
    A('s_nop 1')
    A(f'v_readlane_b32 s42, v{M}, 63')
    A('s_nop 1')
    A(f'v_mov_b32 v{M}, s42')
    A('s_mov_b64 exec, 1')
    A(f'ds_max_u32 v5, v{M} offset:{L_SC+128}')
    A('s_mov_b64 exec, -1')
def mpload():
    A('v_and_b32 v47, 0xfc, v6')
    for k in range(4):
        A(f'buffer_load_dword v{84+k}, v47, s[{S_M}:{S_M+3}], s39 offen offset:{256*k}'); vm.append('M2')
def mpstore():
    vwait('M2')
    A('v_and_b32 v47, 0x3f0, v1')
    A(f'buffer_store_dwordx4 v[84:87], v47, s[{S_WS}:{S_WS+3}], s45 offen {OPT["st_mp"]}'); vm.append('MPS')

def zrow(src, h, tile):
    for j in range(4):
        A(f'v_mul_hi_u32 v{h+8}, v{src+j}, s53')
        A(f'v_add_u32 v{h+10+j}, v{h+8}, v{src+j}')
    A(f'v_lshl_or_b32 v{h+8}, v{h+11}, 16, v{h+10}')
    A(f'v_lshl_or_b32 v{h+9}, v{h+13}, 16, v{h+12}')
    if tile == 0:
        A(f'v_and_b32 v{h+14}, -32, v2')
        A(f'v_add_u32 v{h+14}, v{h+14}, v2')
    A(f's_mul_i32 s42, s2, {OFS}')
    A(f's_add_u32 s42, s42, {OFF_BASE:#x}')
    A(f'buffer_store_dwordx2 v[{h+8}:{h+9}], v{h+14}, s[{S_WS}:{S_WS+3}], s42 offen offset:{64+32*tile}')
    vm.append(('OFS', tile))

def scan(tile, scoff):
    h = TT
    A('s_waitcnt lgkmcnt(0)')
    A('s_barrier')
    A(f'ds_read_b128 v[{h}:{h+3}], v1 offset:{L_H}')
    A(f'v_and_b32 v{h+5}, 63, v0')
    A(f'v_cmp_lt_u32 vcc, s50, v{h+5}')
    A(f'v_lshlrev_b32 v{h+5}, 2, v{h+5}')
    A('s_and_b64 s[56:57], vcc, 0xffff')
    A('s_waitcnt lgkmcnt(0)')
    if tile == 1:
        for j in range(4): A(f'v_and_b32 v{h+10+j}, 0xffff, v{h+j}')
        for j in range(4): A(f'v_lshrrev_b32 v{h+j}, 16, v{h+j}')
    for j in range(1, 4): A(f'v_add_u32 v{h+j}, v{h+j-1}, v{h+j}')
    A(f'v_mov_b32 v{h+4}, v{h+3}')
    dpp_scan('v_add_u32', h + 4)
    A('s_nop 1')
    A(f'v_readlane_b32 s42, v{h+4}, 63')
    A('s_nop 1')
    A(f'v_mov_b32 v{h+6}, s42')
    A('s_mov_b64 exec, s[56:57]')
    A(f'ds_add_u32 v{h+5}, v{h+6} offset:{scoff}')
    A('s_mov_b64 exec, -1')
    A('s_lshl_b32 s42, s50, 2')
    A(f'v_mov_b32 v{h+5}, s42')
    A(f'v_sub_u32 v{h+4}, v{h+4}, v{h+3}')
    if tile == 1: zrow(h + 10, h, 0)
    A('s_waitcnt lgkmcnt(0)')
    A('s_barrier')
    A(f'ds_read_b32 v{h+5}, v{h+5} offset:{scoff}')
    if tile == 1: A(f'ds_read_b32 v{h+6}, v5 offset:{L_SC+128}')
    A('s_waitcnt lgkmcnt(0)')
    A(f'v_add_u32 v{h+4}, v{h+4}, v{h+5}')
    if tile == 1:
        for j in range(4): A(f'v_add_u32 v{h+10+j}, v{h+4}, v{h+j}')
    for j in (3, 2, 1): A(f'v_add_u32 v{h+j}, v{h+4}, v{h+j-1}')
    A(f'v_mov_b32 v{h}, v{h+4}')
    A(f'ds_write_b128 v1, v[{h}:{h+3}] offset:{L_H}')
    if tile == 1:
        zrow(h + 10, h, 1)
        done = newlab('P_SC')
        A('s_cmp_lg_u32 s50, 0')
        A(f's_cbranch_scc1 {done}')
        A('s_mov_b64 exec, 1')
        A(f'buffer_store_dword v5, v5, s[{S_WS}:{S_WS+3}], s42 offen offset:28')
        A(f'buffer_store_dword v5, v5, s[{S_WS}:{S_WS+3}], s42 offen offset:60')
        A(f's_add_u32 s42, s2, {MAX_BASE:#x}')
        A(f'v_lshrrev_b32 v{h+6}, 7, v{h+6}')
        A(f'buffer_store_byte v{h+6}, v5, s[{S_WS}:{S_WS+3}], s42 offen')
        A('s_mov_b64 exec, -1')
        L(done)
    A('s_waitcnt lgkmcnt(0)')
    A('s_barrier')

def scatter(tag, after_wait, after_fin):
    units = unitA if tag == 'A' else unitB
    lg = []
    def issue(k):
        vi0, vo0, _ = units[k]
        n = 4 if k < 6 else 1
        if k == 6: A('s_mov_b64 exec, s[40:41]')
        for j in range(n):
            A(f'ds_add_rtn_u32 v{TT+4*(k&1)+j}, v{vo0+j}, v3 offset:{L_H}')
            lg.append(('R', k))
        if k == 6: A('s_mov_b64 exec, -1')
    def fin(k):
        vi0, vo0, va0 = units[k]
        n = 4 if k < 6 else 1
        if k == 6: A('s_mov_b64 exec, s[40:41]')
        for j in range(n):
            t = TT + 4*(k & 1) + j
            q, a = TT + 8, TT + 9 + (j & 1)
            if tag == 'A': A(f'v_and_b32 v{t}, 0xffff, v{t}')
            A(f'v_mul_hi_u32 v{q}, v{t}, s53')
            A(f'v_lshlrev_b32 v{a}, 2, v{t}')
            A(f'v_add_u32 v{t}, v{q}, v{t}')
            A(f'ds_write_b32 v{a}, v{vi0+j} offset:{L_W}')
            A(f'ds_write_b8{"_d16_hi" if j & 1 else ""} v{t}, v{va0+j//2} offset:{L_X}')
            lg.extend([('W', k)] * 2)
        if k == 6: A('s_mov_b64 exec, -1')
    issue(0)
    for k in range(7):
        if k + 1 < 7: issue(k + 1)
        idx = max(i for i, t in enumerate(lg) if t == ('R', k) or t == ('W', k - 1))
        ny = sum(1 for t in lg[idx+1:] if t[1] != 6)
        A(f's_waitcnt lgkmcnt({min(ny, 15)})')
        if k in after_wait: after_wait[k]()
        fin(k)
        if k in after_fin:
            after_fin[k]()
            lg.extend([('H', k)] * 4)
    A('s_waitcnt lgkmcnt(0)')
    A('s_barrier')

RC = (NBLK + 1023) // 1024
lastc = NBLK - (RC - 1) * 1024
def copyout(tile, regs, ar):
    A(f's_movk_i32 s42, {lastc}')
    A('v_cmp_gt_u32 s[56:57], s42, v0')
    A(f'v_mul_u32_u24 v{ar[0]}, 12, v0')
    A(f'v_add_u32 v{ar[0]}, {L_W}, v{ar[0]}')
    A(f's_mul_i32 s42, s2, {2*RS}')
    if tile: A(f's_add_u32 s42, s42, {RS}')
    def rd(j):
        r = regs[j]
        if j == RC - 1: A('s_mov_b64 exec, s[56:57]')
        A(f'ds_read2_b32 v[{r}:{r+1}], v{ar[0]} offset0:0 offset1:1')
        A(f'ds_read_b32 v{r+2}, v{ar[0]} offset:8')
        A(f'ds_read_b32 v{r+3}, v6 offset:{L_X + j*4096}')
        if j == RC - 1: A('s_mov_b64 exec, -1')
        else: A(f'v_add_u32 v{ar[0]}, {12*1024}, v{ar[0]}')
    LA = 4
    for j in range(LA): rd(j)
    for j in range(RC):
        if j + LA < RC: rd(j + LA)
        A(f's_waitcnt lgkmcnt({3*max(0, min(LA, RC-2-j))})')
        if j == RC - 1: A('s_mov_b64 exec, s[56:57]')
        A(f'buffer_store_dwordx4 v[{regs[j]}:{regs[j]+3}], v1, s[{S_WS}:{S_WS+3}], s42 offen {OPT["st_ws"]}')
        if j < RC - 1: vm.append(('ST', tile, j))
        if j < RC - 1: A('s_add_u32 s42, s42, 16384')
    A('s_mov_b64 exec, -1')

stamp('stamp')
process('A', 0)
stamp('stamp')
maxm()
for k in range(1, 7): process('A', k)
stamp('stamp')
NPB = OPT['npb']
for k in range(NPB): load_unit('B', k)
scan(0, L_SC)
stamp('stamp')
ilv = dict((int(x.split(':')[0]), int(x.split(':')[1])) for x in OPT['ilv'].split(',')) if OPT['ilv'] else {}
pend = list(range(NPB, 7))
aw = {}
for k in range(7):
    take = []
    while pend and len(take) < OPT['bps'] and (pend[0] < 4 or k >= pend[0] - 3):
        take.append(pend.pop(0))
    if k == 6: take += pend; pend = []
    if take: aw[k] = (lambda tk=take: [load_unit('B', b) for b in tk])
scatter('A', aw, {k: (lambda b=b: process('B', b)) for k, b in ilv.items()})
def cpf_code():
    if OPT['cpf']:
        A('s_cmp_lg_u32 s50, 15')
        A('s_cbranch_scc1 P_NOCPF')
        A('s_getpc_b64 s[58:59]')
        L('P_PC')
        A('s_add_u32 s58, s58, acc_kernel-P_PC')
        A('s_addc_u32 s59, s59, 0')
        A('v_and_b32 v19, 63, v0')
        A('v_lshlrev_b32 v19, 7, v19')
        for j in range(3):
            A(f'v_min_u32 v20, CODE_END-acc_kernel-4, v19')
            A(f'global_load_dword v21, v20, s[58:59]')
            A('v_add_u32 v19, 8192, v19')
        L('P_NOCPF')
stamp('stamp')
CR = [48 + 4*j for j in range(RC)]
mpload()
if OPT['dst'] == '':
    copyout(0, CR, [TT, TT + 1, TT + 2])
    stamp('stamp')
    for k in range(7):
        if k not in ilv.values(): process('B', k)
    stamp('stamp')
    scan(1, L_SC + 64)
    cpf_code()
    stamp('stamp')
    scatter('B', {}, {})
else:
    A(f's_movk_i32 s42, {lastc}')
    A('v_cmp_gt_u32 s[64:65], s42, v0')
    A(f'v_mul_u32_u24 v{TT}, 12, v0')
    A(f'v_add_u32 v{TT}, {L_W}, v{TT}')
    A(f's_mul_i32 s66, s2, {2*RS}')
    for j in range(RC):
        r = CR[j]
        if j == RC - 1: A('s_mov_b64 exec, s[64:65]')
        A(f'ds_read2_b32 v[{r}:{r+1}], v{TT} offset0:0 offset1:1')
        A(f'ds_read_b32 v{r+2}, v{TT} offset:8')
        A(f'ds_read_b32 v{r+3}, v6 offset:{L_X + j*4096}')
        if j == RC - 1: A('s_mov_b64 exec, -1')
        else: A(f'v_add_u32 v{TT}, {12*1024}, v{TT}')
    nst = [0]
    def st(n):
        for _ in range(n):
            j = nst[0]
            if j >= RC: return
            nst[0] += 1
            if j == RC - 1: A('s_mov_b64 exec, s[64:65]')
            A(f'buffer_store_dwordx4 v[{CR[j]}:{CR[j]+3}], v1, s[{S_WS}:{S_WS+3}], s66 offen {OPT["st_ws"]}')
            if j < RC - 1:
                vm.append(('ST', 0, j)); A('s_add_u32 s66, s66, 16384')
            else: A('s_mov_b64 exec, -1')
    sch = [int(c) for c in OPT['dst']]
    rest = [k for k in range(7) if k not in ilv.values()]
    process('B', rest[0])
    A('s_waitcnt lgkmcnt(0)')
    st(sch[0])
    stamp('stamp')
    for k in rest[1:]: process('B', k)
    st(sch[1])
    stamp('stamp')
    scan(1, L_SC + 64)
    cpf_code()
    stamp('stamp')
    scatter('B', {k: (lambda n=sch[2+k]: st(n)) for k in range(7)}, {})
    assert nst[0] == RC
mpstore()

def tabgen():
    A('s_cmp_ge_u32 s50, 4')
    A('s_cbranch_scc1 P_NOTAB')
    A('s_load_dwordx2 s[4:5], s[0:1], 40')
    A('s_load_dwordx4 s[8:11], s[0:1], 56')
    A('s_lshl_b32 s42, s2, 8')
    D, a_, b_, t, RB, O = 8, 9, 10, 11, 12, 88
    A(f'v_add_u32 v{D}, s42, v0')
    A(f'v_lshlrev_b32 v16, 5, v{D}')
    A(f'v_lshlrev_b32 v{D}, 16, v{D}')
    A('s_waitcnt lgkmcnt(0)')
    A('s_load_dwordx4 s[4:7], s[4:5], 0')
    A('s_load_dwordx16 s[68:83], s[8:9], 0')
    A('s_load_dwordx16 s[84:99], s[10:11], 0')
    A(f's_mov_b32 s44, {f32bits(-10.0):#x}')
    A(f's_mov_b32 s45, {f32bits(math.log2(math.e)):#x}')
    def rnd():
        A(f'v_cvt_pk_bf16_f32 v{t}, v{a_}, v{b_}')
        A(f'v_lshlrev_b32 v{a_}, 16, v{t}')
        A(f'v_and_b32 v{b_}, s49, v{t}')
    A('s_waitcnt lgkmcnt(0)')
    for r in range(0, 8, 2):
        A(f's_lshl_b32 s42, s{4+r//2}, 16')
        A(f's_and_b32 s43, s{4+r//2}, 0xffff0000')
        A(f'v_subrev_f32 v{a_}, s42, v{D}')
        A(f'v_subrev_f32 v{b_}, s43, v{D}')
        rnd()
        A(f'v_mul_f32 v{a_}, v{a_}, v{a_}')
        A(f'v_mul_f32 v{b_}, v{b_}, v{b_}')
        rnd()
        A(f'v_mul_f32 v{a_}, s44, v{a_}')
        A(f'v_mul_f32 v{b_}, s44, v{b_}')
        rnd()
        A(f'v_mul_f32 v{a_}, s45, v{a_}')
        A(f'v_mul_f32 v{b_}, s45, v{b_}')
        A(f'v_exp_f32 v{a_}, v{a_}')
        A(f'v_exp_f32 v{b_}, v{b_}')
        A('s_nop 0')
        A(f'v_cvt_pk_bf16_f32 v{RB+r//2}, v{a_}, v{b_}')
    for r in range(0, 8, 2):
        for base, dst in ((84, O), (68, O + 4)):
            for d in range(4):
                op = 's_pack_hh_b32_b16' if d & 1 else 's_pack_ll_b32_b16'
                A(f'{op} s{42+(d&1)}, s{base + r*2 + d//2}, s{base + (r+1)*2 + d//2}')
                c = '0' if r == 0 else f'v{dst+d}'
                A(f'v_dot2_f32_bf16 v{dst+d}, v{RB+r//2}, s{42+(d&1)}, {c}')
    A('s_nop 2')
    A(f'v_cvt_pk_bf16_f32 v{O+4}, v{O+4}, v{O+5}')
    A(f'v_cvt_pk_bf16_f32 v{O+5}, v{O+6}, v{O+7}')
    A(f's_mov_b32 s42, {TAB_BASE:#x}')
    A(f'buffer_store_dwordx4 v[{O}:{O+3}], v16, s[{S_WS}:{S_WS+3}], s42 offen')
    A(f'buffer_store_dwordx4 v[{O+4}:{O+7}], v16, s[{S_WS}:{S_WS+3}], s42 offen offset:16')
    L('P_NOTAB')
stamp('stamp')
copyout(1, [48 + 4*j for j in range(RC)], [TT, TT + 1, TT + 2])
if OPT['tab']: tabgen()
stamp('stamp')
if OPT['stamp'] >= 0: A('s_waitcnt vmcnt(0)')
stamp('stamp')
stamp_flush('stamp', 50, TT, OPT.get('swave', 0))
abs_end(87, 64, 0, 16)
L('P_END')
A('s_endpgm')

st2n = [0]
def stamp2():
    if OPT['stamp2'] < 0: return
    n = st2n[0]; st2n[0] += 1
    A(OPT.get('clk','s_memtime').replace(' ','_') + ' s[4:5]')
    A('s_waitcnt lgkmcnt(0)')
    A(f'v_writelane_b32 v127, s4, {n+2}')
khead('acc_kernel')
A('s_cmp_ge_u32 s2, 256')
A('s_cbranch_scc1 Q_END')
abs_start(127)
A('s_load_dwordx2 s[4:5], s[0:1], 0')
A('s_load_dwordx2 s[6:7], s[0:1], 104')
if OPT['pp']: A('s_setprio 3')
S_M, S_WS = 8, 12
A('s_and_b32 s3, s2, 7')
A('s_lshl_b32 s3, s3, 5')
A('s_lshr_b32 s16, s2, 3')
A('s_add_u32 s3, s3, s16')
VTB = 5; VOF = 8
VEB = VOF + 18
def EB(slot, s): return VEB + (slot * 2 + s) * 4
VG = VEB + 32
GP = [0]
def G(s, e): return VG + ((s + (GP[0] if s else 0)) * 3 + e) * 2
VCH = VG + 18
VT = VCH + 16
VA = VT + 6
VSH, VFC = VT + 10, VT + 11
VLA, VLB = VT + 12, VT + 13
VFB = VT + 14
VFG = VFB + 4
VL2 = VFG + 6
V3 = VL2
assert VFB % 2 == 0 and VL2 + 2 <= 126
def OF(s, k): return VOF + 9*s + k
def MK(slot, s, e): return 54 + slot * 12 + (s * 3 + e) * 2
A('v_and_b32 v1, 3, v0')
A('v_lshlrev_b32 v2, 4, v0')
A('v_lshrrev_b32 v3, 2, v0')
A('v_and_b32 v4, 1, v0')
A(f'v_mul_u32_u24 v{VT}, {OFS}, v3')
A(f'v_lshl_add_u32 v{VT+1}, v1, 4, v{VT}')
A(f'v_and_b32 v{VT}, -32, v{VT+1}')
A(f'v_and_b32 v{VT+2}, 63, v0')
A(f'v_lshlrev_b32 v{VT+2}, 2, v{VT+2}')
if not OPT['abst']: A('v_mov_b32 v127, 0')
A('s_lshl_b32 s17, s3, 6')
A(f's_add_u32 s17, s17, {OFF_BASE:#x}')
A(f's_mov_b32 s19, {MAX_BASE:#x}')
A('s_lshr_b32 s20, s3, 6')
A(f's_mul_i32 s20, s20, {NR*CHS}')
A(f's_add_u32 s20, s20, {MP_BASE:#x}')
A('v_cmp_gt_u32 s[22:23], 64, v0')
A('v_readfirstlane_b32 s21, v0')
A('s_nop 3')
A('s_lshl_b32 s50, s21, 4')
A('s_mov_b32 m0, s50')
A('s_waitcnt lgkmcnt(0)')
srd(S_M, 4, E * 8); srd(S_WS, 6, WS_BYTES)
TO = VG
A(f'buffer_load_dwordx4 v[{TO}:{TO+3}], v{VT+1}, s[{S_WS}:{S_WS+3}], s17 offen offset:64')
A(f'buffer_load_dword v{TO+4}, v{VT}, s[{S_WS}:{S_WS+3}], s17 offen offset:28')
A(f'buffer_load_dword v{VT+9}, v{VT+2}, s[{S_WS}:{S_WS+3}], s19 offen')
if OPT['pp']: A('s_setprio 1' if OPT['pp'] == 2 else 's_setprio 2')
stamp2()
INLOOP = [0]
ool = []
def chall(lastchk=False):
    sk = newlab('Q_C')
    if lastchk:
        A(f's_cmp_eq_u32 s33, {(NR-2)//4}')
        A('s_cselect_b64 exec, 1, -1')
    else: A('s_mov_b64 exec, -1')
    A(f's_cmp_ge_u32 s50, {(NBK-48)*1024}')
    A(f's_cbranch_scc1 {sk}')
    A(f's_add_u32 s21, s20, {3*16384}')
    if not (OPT['skip_ch'] and INLOOP[0]): A(f'buffer_load_dwordx4 v[{VCH+12}:{VCH+15}], v2, s[{S_WS}:{S_WS+3}], s21 offen {OPT["ld_ch"]}')
    L(sk)
    for j in range(3):
        A(f's_add_u32 s21, s20, {j*16384}')
        if not (OPT['skip_ch'] and INLOOP[0]): A(f'buffer_load_dwordx4 v[{VCH+4*j}:{VCH+4*j+3}], v2, s[{S_WS}:{S_WS+3}], s21 offen {OPT["ld_ch"]}')
    A(f's_add_u32 s20, s20, {CHS}')
def fill():
    if OPT['skip_fill']: return
    sk = newlab('Q_F')
    A('s_mov_b64 exec, -1')
    for j in range(4):
        if j == 3:
            A(f's_cmp_ge_u32 s50, {(NBK-48)*1024}')
            A(f's_cbranch_scc1 {sk}')
        for k in range(4): A(f'ds_write_addtid_b32 v{VCH+4*j+k} offset:{j*16384+256*k}')
    L(sk)
chall()
A(f's_mov_b32 s16, {2*RS}')
A(f'v_mul_lo_u32 v{VTB}, v3, s16')
A(f'v_add_u32 v{VTB+1}, {RS}, v{VTB}')
A('v_cmp_eq_u32 s[36:37], 3, v1')
A('v_and_b32 v4, 63, v0')
A('v_lshlrev_b32 v1, 2, v1')
A('s_mov_b32 s44, 0')
A('s_lshr_b32 s45, s3, 6')
A(f's_mul_i32 s45, s45, {NR*CHI*8}')
A(f'v_add_u32 v3, {L_A}, v2')
z = VEB + 28
for r in range(4): A(f'v_mov_b32 v{z+r}, 0')
for j in range(4): A(f'ds_write_b128 v3, v[{z}:{z+3}] offset:{j*16384}')
A(f'v_add_u32 v{VT+6}, 65536, v3')
for j in range(2): A(f'ds_write_b128 v{VT+6}, v[{z}:{z+3}] offset:{j*16384}')
A('s_movk_i32 s16, 106')
A('v_cmp_gt_u32 s[24:25], s16, v0')
A('s_mov_b64 exec, s[24:25]')
A(f'ds_write_b128 v{VT+6}, v[{z}:{z+3}] offset:{2*16384}')
A('s_mov_b64 exec, -1')
A(f'v_mov_b32 v126, {L_SC2}')
VONE = VSH
A('s_mov_b64 exec, 1')
A(f'ds_write_b128 v126, v[{z}:{z+3}]')
A('s_mov_b64 exec, -1')
A('s_mov_b32 s30, 0xffff0000')
A(f's_mov_b32 s31, {L_A}')
A('s_mov_b32 s35, 0xfc000000')
A(f'v_mov_b32 v{VSH}, 18')
A(f'v_mov_b32 v{V3}, 3')
A(f'v_mov_b32 v{VFC}, 0xfffc')
A('s_waitcnt vmcnt(3)')
for s_ in range(2):
    for k in range(9):
        ln = 2*s_ + (1 if k >= 5 else 0)
        src = TO + ((k - 1) % 4 if k > 0 else 4)
        A(f'v_mov_b32_dpp v{OF(s_,k)}, v{src} quad_perm:[{ln},{ln},{ln},{ln}] row_mask:0xf bank_mask:0xf')

def pfcalc(s_, r, masks=True):
    slot = r % 4
    r0, h0, r1, h1 = (r + 1) >> 1, (r + 1) & 1, (r + 2) >> 1, r & 1
    y, d, ln, ad = VT, VT + 7, VT + 8, VA
    a, b = OF(s_, r0), OF(s_, r1)
    m = [MK(slot, s_, k) for k in range(3)]
    A('s_mov_b64 exec, -1')
    A(f'v_and_b32_sdwa v{y}, v{a}, v{VFC} {SD} src0_sel:WORD_{h0} src1_sel:DWORD')
    A(f'v_sub_u32_sdwa v{ln}, v{b}, v{a} {SD} src0_sel:WORD_{h1} src1_sel:WORD_{h0}')
    A(f'v_add_u32 v{y}, v{y}, v1')
    A(f'v_sub_u32_sdwa v{d}, v{y}, v{a} {SD} src0_sel:DWORD src1_sel:WORD_{h0}')
    A(f'v_lshl_add_u32 v{ad}, v{y}, 2, v{VTB+s_}')
    if masks:
        A(f'v_cmp_lt_u32 s[{m[0]}:{m[0]+1}], v{d}, v{ln}')
        A(f'v_add_u32 v{d}, 1, v{d}')
        A(f'v_cmp_lt_u32 s[{m[1]}:{m[1]+1}], v{d}, v{ln}')
        A(f'v_add_u32 v{d}, 1, v{d}')
        A(f'v_cmp_lt_u32 s[{m[2]}:{m[2]+1}], v{d}, v{ln}')
def pf1(s_, r, live=False, det=True):
    slot = r % 4
    m = [MK(slot, s_, k) for k in range(3)]
    e = EB(slot, s_)
    pfcalc(s_, r)
    A(f's_or_b64 vcc, s[{m[0]}:{m[0]+1}], s[{m[1]}:{m[1]+1}]')
    A(f's_or_b64 vcc, vcc, s[{m[2]}:{m[2]+1}]')
    if live: A('s_and_b64 vcc, vcc, s[18:19]')
    A('s_or_b64 exec, vcc, 1' if not OPT['skip_pf'] else 's_mov_b64 exec, -1')
    if not (OPT['skip_pf'] and INLOOP[0]): A(f'buffer_load_dwordx4 v[{e}:{e+3}], v{VA}, s[{S_WS}:{S_WS+3}], 0 offen {OPT["ld_ent"]}')
def xl(r):
    A('s_mov_b64 exec, -1')
    A(f's_add_u32 s47, s46, {r}')
    A(f'v_cmp_eq_u32 vcc, s47, v{VLB}')
    A('s_or_b64 exec, vcc, s[48:49]')
    A(f'buffer_load_dwordx4 v[{VFB}:{VFB+3}], v{VLA}, s[{S_WS}:{S_WS+3}], 0 offen')
def xg(r):
    A('s_mov_b64 exec, -1')
    A(f's_add_u32 s47, s46, {r}')
    A(f'v_cmpx_eq_u32 vcc, s47, v{VLB}')
    for e in range(3): gaddr(VFB + e, VFG + 2*e)
    for e in range(3):
        A(f's_and_b64 exec, vcc, s[{40+2*e}:{41+2*e}]')
        if not OPT['skip_g']: A(f'ds_read_b64 v[{VFG+2*e}:{VFG+2*e+1}], v{VFG+2*e}')
def xs():
    for e in range(3):
        A(f's_mov_b64 exec, s[{40+2*e}:{41+2*e}]')
        scat1(VFB + e, VFB + 3, e, VFG + 2*e)

def gath1(w, g):
    A(f'v_lshlrev_b32 v{g}, 3, v{w}')
    A(f'v_and_b32 v{g}, 0xfff8, v{g}')
    if not OPT['skip_g']: A(f'ds_read_b64 v[{g}:{g+1}], v{g}')

def scat1(w, xr, e, g, wait=False):
    x, ad = VT, VT + 1
    p0, p2 = VT + 2, VT + 4
    A(f'v_lshlrev_b32_sdwa v{x}, v{VSH}, v{xr} {SD} src0_sel:DWORD src1_sel:BYTE_{e}')
    A(f'v_lshlrev_b32 v{p2}, 16, v{g+1}')
    A(f'v_and_b32 v{p2+1}, s30, v{g+1}')
    A(f'v_and_or_b32 v{x}, v{w}, s35, v{x}')
    A(f'v_bfe_u32 v{ad}, v{w}, 13, 13')
    A(f'v_lshlrev_b32 v{p0}, 16, v{g}')
    A(f'v_and_b32 v{p0+1}, s30, v{g}')
    for r in (p2, p2 + 1, p0, p0 + 1):
        A(f'v_fma_mix_f32 v{r}, v{r}, v{x}, s{26 if r == p0 else 28} op_sel:[0,1,0] op_sel_hi:[0,1,0]')
        if r == p2: A(f'v_lshl_add_u32 v{ad}, v{ad}, 3, s31')
        if r == p2 + 1:
            if wait: A('s_waitcnt lgkmcnt(0)')
            A(f'ds_add_u64 v{ad}, v[{p2}:{p2+1}] offset:{L_ARB}')
    A(f'v_add_u32 v{p0}, s34, v{p0}')
    A(f'ds_add_u64 v{ad}, v[{p0}:{p0+1}]')

def gaddr(w, g):
    A(f'v_lshlrev_b32_sdwa v{g}, v{V3}, v{w} dst_sel:WORD_0 dst_unused:UNUSED_PAD src0_sel:DWORD src1_sel:DWORD')
def Gset(r, s_):
    slot = r % 4
    GP[0] = (r & 1) if OPT['nd'] else 0
    A('s_mov_b64 exec, -1')
    for e in range(3): gaddr(EB(slot, s_) + e, G(s_, e))
    for e in range(3):
        m = MK(slot, s_, e); g = G(s_, e)
        A(f's_mov_b64 exec, s[{m}:{m+1}]')
        if not OPT['skip_g']: A(f'ds_read_b64 v[{g}:{g+1}], v{g}')
def Sset(r, s_, hooks={}, w0=False):
    slot = r % 4
    GP[0] = (r & 1) if OPT['nd'] else 0
    for e in range(3):
        if e in hooks: hooks[e]()
        m = MK(slot, s_, e)
        A(f's_mov_b64 exec, s[{m}:{m+1}]')
        b = EB(slot, s_)
        if not OPT['skip_s']: scat1(b + e, b + 3, e, G(s_, e), w0 and e == 0)

A(f'v_mov_b32 v{VT+1}, 0')
pf1(0, 0, det=False); pf1(1, 0, det=False); pf1(0, 1, det=False)
A('s_mov_b64 exec, -1')
A(f'v_max_u32_sdwa v{VT+2}, v{VT+9}, v{VT+9} {SD} src0_sel:BYTE_0 src1_sel:BYTE_1')
A(f'v_max_u32_sdwa v{VT+3}, v{VT+9}, v{VT+9} {SD} src0_sel:BYTE_2 src1_sel:BYTE_3')
A(f'v_max_u32 v{VT+9}, v{VT+2}, v{VT+3}')
dpp_scan('v_max_u32', VT + 9)
A('s_nop 1')
A(f'v_readlane_b32 s29, v{VT+9}, 63')
for s_ in range(2):
    A(f'v_lshrrev_b32 v{VT+2}, 16, v{OF(s_,0)}')
    A(f'v_lshrrev_b32 v{VT+3}, 18, v{OF(s_,0)}')
    A(f'v_sub_u32 v{VT+2}, v{VT+2}, v{VT+3}')
    A(f'v_lshrrev_b32 v{VT+3}, 18, v{OF(s_,8)}')
    A(f'v_add_u32 v{VT+2}, v{VT+2}, v{VT+3}')
    A(f'v_lshrrev_b32 v{VT+3}, 16, v{OF(s_,8)}')
    A(f'v_sub_u32 v{VT+4+s_}, v{VT+2}, v{VT+3}')
A(f'v_add_u32 v{VT+2}, v{VT+4}, v{VT+5}')
dpp_scan('v_add_u32', VT + 2)
A('s_nop 1')
A(f'v_readlane_b32 s32, v{VT+2}, 63')
A('s_min_u32 s27, s29, 249')
A('s_add_u32 s28, s27, 2')
A('s_lshl_b32 s28, s28, 23')
A('s_or_b32 s28, s28, 0x400000')
A('s_add_u32 s26, s27, 5')
A('s_lshl_b32 s26, s26, 23')
A('s_sub_u32 s34, 0x4000000, s26')
A('s_or_b32 s26, s26, 0x80000')
if OPT['detp'] == 0:
    PV, TBL, CBL, LW = VFB, VFB + 1, VFB + 2, VFB + 3
    D0, D1 = VFG, VFG + 1
    A('s_mov_b64 exec, -1')
    A(f'v_mov_b32_dpp v{PV}, v{TO+3} quad_perm:[0,0,2,2] row_mask:0xf bank_mask:0xf')
    A(f'v_and_b32 v{CBL}, 1, v0')
    A(f'v_cmp_eq_u32 vcc, 0, v{CBL}')
    A(f'v_lshlrev_b32 v{CBL}, 5, v{CBL}')
    A('v_cmp_lt_u32 s[38:39], 4, v1')
    A(f'v_cndmask_b32 v{PV}, v{PV}, v{TO+4}, vcc')
    A('s_nop 0')
    A(f'v_cndmask_b32 v{TBL}, v{VTB}, v{VTB+1}, s[38:39]')
    A(f'v_add_u32 v{TBL}, 64, v{TBL}')
    A('s_mov_b32 s46, s50')
    for t in range(8):
        sa, ha = (PV, 1) if t == 0 else (TO + (t - 1) // 2, (t - 1) & 1)
        sb, hb = TO + t // 2, t & 1
        nx = newlab('Q_D'); lp = newlab('Q_D')
        y, rem = VT, VT + 1
        A(f'v_and_b32_sdwa v{y}, v{sa}, v{VFC} {SD} src0_sel:WORD_{ha} src1_sel:DWORD')
        A(f'v_sub_u32_sdwa v{rem}, v{sb}, v{y} {SD} src0_sel:WORD_{hb} src1_sel:DWORD')
        A(f'v_cmpx_lt_i32 vcc, 16, v{rem}')
        A(f's_cbranch_execz {nx}')
        A(f'v_lshl_add_u32 v{D0}, v{y}, 2, v{TBL}')
        A(f'v_subrev_u32 v{rem}, 16, v{rem}')
        L(lp)
        A(f'v_mbcnt_lo_u32_b32 v{LW}, exec_lo, 0')
        A(f'v_mbcnt_hi_u32_b32 v{LW}, exec_hi, v{LW}')
        A(f'v_min_u32 v{D1}, 3, v{rem}')
        A(f'v_add_u32 v{LW}, s44, v{LW}')
        A(f'v_add3_u32 v{D1}, v{D1}, v{CBL}, s47' if False else f'v_add_u32 v{D1}, v{D1}, v{CBL}')
        if t: A(f'v_add_u32 v{D1}, {t*4}, v{D1}')
        A('s_bcnt1_i32_b64 s47, exec')
        A(f'v_min_u32 v{LW}, 63, v{LW}')
        A('s_add_u32 s44, s44, s47')
        A(f'v_lshl_add_u32 v{LW}, v{LW}, 3, s46')
        A(f'ds_write_b64 v{LW}, v[{D0}:{D1}]')
        A(f'v_cmpx_lt_i32 vcc, 4, v{rem}')
        A(f's_cbranch_execz {nx}')
        A('s_cmp_ge_u32 s44, 64')
        A(f's_cbranch_scc1 {nx}')
        A(f'v_add_u32 v{D0}, 16, v{D0}')
        A(f'v_subrev_u32 v{rem}, 4, v{rem}')
        A(f's_branch {lp}')
        L(nx)
        A('s_mov_b64 exec, -1')
    A(f'v_lshl_add_u32 v{LW}, v4, 3, s46')
    A(f'ds_read_b64 v[{VLA}:{VLB}], v{LW}')
    A('v_cmp_gt_u32 s[38:39], s44, v4')
    A('s_waitcnt lgkmcnt(0)')
    A(f'v_and_b32 v{LW}, 3, v{VLB}')
    A(f'v_lshrrev_b32 v{VLB}, 2, v{VLB}')
    A(f'v_cndmask_b32 v{LW}, 0, v{LW}, s[38:39]')
    A(f'v_cndmask_b32 v{VLB}, -1, v{VLB}, s[38:39]')
    for e in range(3): A(f'v_cmp_lt_u32 s[{40+2*e}:{41+2*e}], {e}, v{LW}')
    A('s_mov_b32 s46, 0')
A('s_mov_b64 s[48:49], 1')
xl(0)
A('s_waitcnt vmcnt(4)')
fill()
chall()
A('s_mov_b32 s33, 0')
A('s_waitcnt vmcnt(3) lgkmcnt(0)')
stamp2()
A('s_barrier')
Gset(0, 0); Gset(0, 1); xg(0)
pf1(1, 1); pf1(1, 2); xl(1)
if OPT['skip_pf']:
    pf1(0, 2); pf1(0, 3); pf1(1, 3); A('s_waitcnt vmcnt(0)')
A('s_waitcnt vmcnt(3) lgkmcnt(0)')
stamp2()
INLOOP[0] = 1
L('Q_LOOP')
for r in range(4):
    ps = r & 1
    if r == 1: stamp2()
    A('s_barrier')
    if r == 1: stamp2()
    if r == (NR - 1) % 4:
        A(f's_cmp_eq_u32 s33, {(NR-1)//4}')
        A(f's_cbranch_scc1 Q_LAST')
    fill()
    chall(r == (NR - 2) % 4)
    nd = OPT['nd']
    hp = OPT['hp']
    Sset(r, 0, w0=nd > 0)
    A('s_waitcnt vmcnt(3)' if nd else 's_waitcnt vmcnt(3) lgkmcnt(0)')
    if r == 1: stamp2()
    A('s_barrier')
    if r == 1: stamp2()
    Gset(r + 1, 0)
    if nd == 2: Gset(r + 1, 1)
    xg(r + 1)
    Sset(r, 1, {int(hp[0]): lambda: pf1(ps, r + 2), int(hp[1]): lambda: (pf1(ps, r + 3), xl(r + 2))}, w0=nd == 2)
    if nd != 2: Gset(r + 1, 1)
    if r == 3:
        A('s_mov_b64 exec, -1')
        A('s_add_u32 s33, s33, 1')
        A('s_add_u32 s46, s46, 4')
        for s_ in range(2):
            for k in range(0, 7): A(f'v_mov_b32 v{OF(s_,k)}, v{OF(s_,k+2)}')
    A('s_waitcnt vmcnt(3)' if OPT['nd'] == 2 else 's_waitcnt vmcnt(3) lgkmcnt(0)')
A('s_branch Q_LOOP')
L('Q_LAST')
if OPT['warm']:
    A('s_cmp_lg_u32 s50, 0')
    A('s_cbranch_scc1 Q_NOWARM')
    A('s_load_dwordx2 s[4:5], s[0:1], 24')
    A('s_load_dwordx2 s[6:7], s[0:1], 40')
    A('s_load_dwordx8 s[56:63], s[0:1], 56' if (NR - 1) % 4 != 0 else 'ERR')
    A('s_mov_b64 exec, -1')
    A('s_mul_i32 s16, s2, 3200')
    A(f'v_lshl_add_u32 v{VT}, v4, 6, s16')
    A(f'v_min_u32 v{VT}, {E*2-4}, v{VT}')
    A('s_waitcnt lgkmcnt(0)')
    A(f'global_load_dword v{VCH}, v{VT}, s[4:5]')
    A('s_load_dword s16, s[6:7], 0')
    for k in range(4): A(f's_load_dword s{17+k}, s[{56+2*k}:{57+2*k}], 0')
    L('Q_NOWARM')
Sset((NR - 1) % 4, 0)
Sset((NR - 1) % 4, 1)
A('s_waitcnt vmcnt(0)')
xs()
A('s_mov_b64 exec, -1')
A('s_waitcnt lgkmcnt(0)')
stamp2()
A('s_barrier')
A('v_lshlrev_b32 v3, 3, v0')
A(f'v_add_u32 v7, {L_A}, v3')
RA = 8
for k in range(7):
    if k == 6: A('s_mov_b64 exec, s[24:25]')
    A(f'ds_read_b64 v[{RA+4*k}:{RA+4*k+1}], v7 offset:{k*8192}')
A('s_mov_b64 exec, -1')
A(f'v_add_u32 v4, {L_ARB}, v7')
for k in range(7):
    if k == 6: A('s_mov_b64 exec, s[24:25]')
    A(f'ds_read_b64 v[{RA+4*k+2}:{RA+4*k+3}], v4 offset:{k*8192}')
A('s_mov_b64 exec, -1')
A('s_lshr_b32 s16, s3, 6'); A(f's_mul_i32 s16, s16, {E*8}')
A('s_and_b32 s17, s3, 63'); A(f's_mul_i32 s17, s17, {CH*8}')
A('s_add_u32 s16, s16, s17'); A(f's_add_u32 s16, s16, {PART_BASE:#x}')
A('v_mov_b32 v5, 0')
A(f's_mov_b32 s36, {f32bits(2.0**-10):#x}')
A(f's_mov_b32 s37, {f32bits(2.0**-13):#x}')
A('s_mov_b32 s38, s37'); A('s_mov_b32 s39, s37')
A('s_sub_i32 s40, s27, 135')
A('v_mov_b32 v6, 1.0')
A('v_ldexp_f32 v6, v6, s40')
A('s_and_b32 s41, s3, 63')
A('s_lshl_b32 s41, s41, 2')
A('s_lshr_b32 s42, s3, 6')
A('s_add_u32 s41, s41, s42')
A('s_lshl_b32 s41, s41, 2')
A(f's_add_u32 s41, s41, {SCL_BASE:#x}')
A('v_cmp_eq_u32 vcc, 0, v0')
A('s_mov_b64 exec, vcc')
A(f'buffer_store_dword v6, v5, s[{S_WS}:{S_WS+3}], s41 offen')
A('s_mov_b64 exec, -1')
X = 40
for k in range(7):
    a0, a1, b0, b1 = RA + 4*k, RA + 4*k + 1, RA + 4*k + 2, RA + 4*k + 3
    c = X; P = X + 2; t = X + 4
    A(f's_waitcnt lgkmcnt({max(0,5-k)})')
    if k == 6: A('s_mov_b64 exec, s[24:25]')
    A(f'v_lshrrev_b32 v{c}, 26, v{a0}')
    A(f'v_and_b32 v{a0}, 0x3ffffff, v{a0}')
    A(f'v_mad_u64_u32 v[{P}:{P+1}], vcc, v{c}, s28, 0')
    A(f'v_lshlrev_b32 v{t}, 19, v{c}')
    A(f'v_add_u32 v5, v5, v{c}')
    A(f'v_sub_u32 v{a0}, v{a0}, v{t}')
    A(f'v_sub_u32 v{a1}, v{a1}, v{P}')
    A(f'v_add_u32 v{P+1}, v{P+1}, v{P}')
    A(f'v_sub_co_u32 v{b0}, vcc, v{b0}, v{P}')
    A(f'v_cvt_f32_i32 v{a0}, v{a0}')
    A(f'v_cvt_f32_i32 v{a1}, v{a1}')
    A(f'v_subb_co_u32 v{b1}, vcc, v{b1}, v{P+1}, vcc')
    A(f'v_ashrrev_i32 v{t}, 31, v{b0}')
    A(f'v_cvt_f32_i32 v{b0}, v{b0}')
    A(f'v_sub_u32 v{b1}, v{b1}, v{t}')
    A(f'v_pk_mul_f32 v[{a0}:{a1}], v[{a0}:{a1}], s[36:37]')
    A(f'v_cvt_f32_i32 v{b1}, v{b1}')
    A(f'v_cvt_pk_f16_f32 v{a0}, v{a0}, v{a1}')
    A(f'v_pk_mul_f32 v[{b0}:{b1}], v[{b0}:{b1}], s[38:39]')
    A(f'v_cvt_pk_f16_f32 v{a1}, v{b0}, v{b1}')
    A(f'buffer_store_dwordx2 v[{a0}:{a1}], v3, s[{S_WS}:{S_WS+3}], s16 offen {OPT["st_part"]}')
    A('s_add_u32 s16, s16, 8192')
A('s_mov_b64 exec, -1')
dpp_scan('v_add_u32', 5)
A('s_nop 1')
A('v_readlane_b32 s42, v5, 63')
A('s_nop 3')
A('s_lshl_b32 s42, s42, 2')
A('s_add_u32 s42, s42, s32')
A('v_mov_b32 v6, s42')
A('v_mov_b32 v7, s32')
A('s_mov_b64 exec, 1')
A('ds_add_u32 v126, v6')
A('ds_sub_u32 v126, v7 offset:4')
A('s_mov_b64 exec, -1')
A('s_waitcnt lgkmcnt(0)')
A('s_barrier')
A('ds_read_b64 v[6:7], v126')
A('s_waitcnt lgkmcnt(0)')
A('v_readfirstlane_b32 s42, v6')
A('v_readfirstlane_b32 s43, v7')
A('s_nop 3')
if OPT['forcefb'] == 1: A('s_mov_b32 s42, 1')
if OPT['forcefb'] == -1: A('s_mov_b32 s42, 0')
A('s_cmp_gt_u32 s29, 249')
A('s_cselect_b32 s42, 1, s42')
A('s_cmp_eq_u32 s42, 0')
A('s_cbranch_scc1 Q_FIN')
A('s_waitcnt vmcnt(0)')
A('s_min_u32 s27, s29, 254')
A('s_add_u32 s45, s27, 923')
A('s_lshl_b32 s45, s45, 20')
A('s_or_b32 s45, s45, 0x80000')
A('s_mov_b32 s44, 0')
A('s_lshr_b32 s43, s43, 2')
A('s_flbit_i32_b32 s46, s43')
A('s_max_i32 s46, s46, 0')
A('s_sub_u32 s46, 32, s46')
A('s_sub_i32 s47, -11, s46')
A('s_add_u32 s40, s27, s46')
A('s_sub_i32 s40, s40, 141')
A('v_mov_b32 v6, 1.0')
A('v_ldexp_f32 v6, v6, s40')
A('v_mov_b32 v5, 0')
A('v_cmp_eq_u32 vcc, 0, v0')
A('s_mov_b64 exec, vcc')
A(f'buffer_store_dword v6, v5, s[{S_WS}:{S_WS+3}], s41 offen')
A('s_mov_b64 exec, -1')
A('v_lshrrev_b32 v8, 1, v0')
A('v_lshrrev_b32 v9, 2, v0')
A(f'v_mul_u32_u24 v9, {OFS}, v9')
A('v_and_b32 v39, 1, v8')
A('v_lshl_add_u32 v9, v39, 5, v9')
A(f's_mov_b32 s16, {RS}')
A('v_mul_lo_u32 v8, v8, s16')
A('v_and_b32 v10, 1, v0')
for r in range(12, 16): A(f'v_mov_b32 v{r}, 0')
A('v_add_u32 v11, 65536, v2')
A('s_mov_b32 s48, 0')
L('Q_FH')
A('s_barrier')
for j in range(4): A(f'ds_write_b128 v2, v[12:15] offset:{j*16384}')
for j in range(2): A(f'ds_write_b128 v11, v[12:15] offset:{j*16384}')
A('s_mov_b64 exec, s[24:25]')
A(f'ds_write_b128 v11, v[12:15] offset:{2*16384}')
A('s_mov_b64 exec, -1')
A('s_waitcnt lgkmcnt(0)')
A('s_barrier')
A('s_lshl_b32 s49, s3, 6')
A(f's_add_u32 s49, s49, {OFF_BASE:#x}')
A(f'buffer_load_ushort v17, v9, s[{S_WS}:{S_WS+3}], s49 offen offset:30')
A('s_waitcnt vmcnt(0)')
A('s_lshr_b32 s50, s3, 6')
A(f's_mul_i32 s50, s50, {NR*CHI*8}')
A('s_mov_b32 s51, 0')
L('Q_FR')
A('v_add_u32 v16, v17, v10')
A(f'buffer_load_ushort v17, v9, s[{S_WS}:{S_WS+3}], s49 offen offset:64')
A('s_waitcnt vmcnt(0)')
L('Q_FI')
A('v_cmp_lt_u32 vcc, v16, v17')
A('s_and_b64 exec, exec, vcc')
A('s_cbranch_execz Q_FRN')
A('s_mov_b64 s[52:53], exec')
A('v_and_b32 v18, 3, v16')
A('v_lshl_add_u32 v19, v16, 2, v8')
A('v_or_b32 v20, 3, v16')
A('v_lshl_add_u32 v20, v20, 2, v8')
A('v_add_u32 v20, v20, v18')
A(f'buffer_load_dword v21, v19, s[{S_WS}:{S_WS+3}], 0 offen')
A(f'buffer_load_ubyte v22, v20, s[{S_WS}:{S_WS+3}], 0 offen')
A('s_waitcnt vmcnt(0)')
A('v_bfe_u32 v23, v21, 13, 13')
A('v_subrev_u32 v23, s48, v23')
A('s_movk_i32 s16, 3125')
A('v_cmp_gt_u32 vcc, s16, v23')
A('v_cmp_ne_u32 s[54:55], 3, v18')
A('s_and_b64 vcc, vcc, s[54:55]')
A('v_bfe_u32 v24, v21, 0, 13')
A('v_lshlrev_b32 v24, 3, v24')
A('s_and_b64 exec, exec, vcc')
A('s_cbranch_execz Q_FIN2')
A(f'buffer_load_dwordx2 v[26:27], v24, s[{S_M}:{S_M+3}], s50 offen')
A('v_lshlrev_b32 v22, 2, v22')
A('v_lshrrev_b32 v25, 16, v21')
A('v_and_b32 v25, 0xfc00, v25')
A('v_or_b32 v25, v25, v22')
A('v_cvt_f32_f16 v25, v25')
A('v_cvt_f64_f32 v[28:29], v25')
A('v_lshlrev_b32 v23, 3, v23')
A('v_add_u32 v38, 50000, v23')
A('s_waitcnt vmcnt(0)')
A('v_lshlrev_b32 v30, 16, v26'); A('v_and_b32 v32, s30, v26')
A('v_lshlrev_b32 v34, 16, v27'); A('v_and_b32 v36, s30, v27')
for j, r in enumerate((30, 32, 34, 36)):
    A(f'v_cvt_f64_f32 v[{r}:{r+1}], v{r}')
    A(f'v_fma_f64 v[{r}:{r+1}], v[{r}:{r+1}], v[28:29], s[44:45]')
    A(f'ds_add_u64 v{23 if j < 2 else 38}, v[{r}:{r+1}] offset:{(j & 1) * 25000}')
L('Q_FIN2')
A('s_mov_b64 exec, s[52:53]')
A('v_add_u32 v16, 2, v16')
A('s_branch Q_FI')
L('Q_FRN')
A('s_mov_b64 exec, -1')
A('s_add_u32 s49, s49, 2')
A(f's_add_u32 s50, s50, {CHI*8}')
A('s_add_u32 s51, s51, 1')
A('s_cmp_lt_u32 s51, 16')
A('s_cbranch_scc1 Q_FR')
A('s_waitcnt lgkmcnt(0)')
A('s_barrier')
A('s_lshr_b32 s16, s3, 6'); A(f's_mul_i32 s16, s16, {E*8}')
A('s_and_b32 s17, s3, 63'); A(f's_mul_i32 s17, s17, {CH*8}')
A('s_add_u32 s16, s16, s17'); A(f's_add_u32 s16, s16, {PART_BASE:#x}')
A('s_lshl_b32 s17, s48, 3'); A('s_add_u32 s16, s16, s17')
A('s_mov_b32 s52, 0'); A('s_mov_b32 s53, 0x41f00000')
A('v_mov_b32 v16, v3')
L('Q_FC')
A('s_movk_i32 s17, 25000')
A('v_cmp_gt_u32 vcc, s17, v16')
A('s_and_b64 exec, exec, vcc')
A('s_cbranch_execz Q_FCD')
A('v_add_u32 v17, 50000, v16')
for j in range(4):
    A(f'ds_read_b64 v[{18+2*j}:{19+2*j}], v{16 if j < 2 else 17} offset:{(j & 1) * 25000}')
A('s_waitcnt lgkmcnt(0)')
for j in range(4):
    lo, hi = 18 + 2*j, 19 + 2*j
    A(f'v_bfe_i32 v{hi}, v{hi}, 0, 19')
    A(f'v_cvt_f64_u32 v[26:27], v{lo}')
    A(f'v_cvt_f64_i32 v[28:29], v{hi}')
    A('v_fma_f64 v[26:27], v[28:29], s[52:53], v[26:27]')
    A('v_ldexp_f64 v[26:27], v[26:27], s47')
    A(f'v_cvt_f32_f64 v{30+j}, v[26:27]')
A('v_cvt_pk_f16_f32 v34, v30, v31')
A('v_cvt_pk_f16_f32 v35, v32, v33')
A(f'buffer_store_dwordx2 v[34:35], v16, s[{S_WS}:{S_WS+3}], s16 offen')
A('v_add_u32 v16, 8192, v16')
A('s_branch Q_FC')
L('Q_FCD')
A('s_mov_b64 exec, -1')
A('s_add_u32 s48, s48, 3125')
A('s_cmp_lt_u32 s48, 6250')
A('s_cbranch_scc1 Q_FH')
L('Q_FIN')
stamp2()
if OPT['stamp2'] >= 0:
    A('s_waitcnt vmcnt(0)')
    stamp2()
    A('v_readfirstlane_b32 s54, v0')
    A('s_nop 3')
    A(f's_cmp_lg_u32 s2, {OPT["stamp2"]}')
    A('s_cbranch_scc1 Q_END')
    A(f's_cmp_lg_u32 s54, {64*OPT.get("swave", 0)}')
    A('s_cbranch_scc1 Q_END')
    A('s_load_dwordx2 s[4:5], s[0:1], 96')
    A('s_waitcnt lgkmcnt(0)')
    srd(72, 4, 256)
    A('v_readlane_b32 s54, v127, 2')
    A('v_and_b32 v4, 63, v0')
    A('v_lshlrev_b32 v4, 2, v4')
    A('v_subrev_u32 v127, s54, v127')
    A('buffer_store_dword v127, v4, s[72:75], 0 offen')
abs_end(127, 64, 1, 16)
L('Q_END')
A('s_endpgm')

NE = OPT['ne']
khead('fin_kernel')
A(f's_cmp_ge_u32 s2, {G3}')
A('s_cbranch_scc1 F_END')
abs_start(1)
A('s_load_dwordx2 s[4:5], s[0:1], 0')
A('s_load_dwordx2 s[6:7], s[0:1], 104')
A('s_load_dwordx2 s[8:9], s[0:1], 24')
A('s_load_dwordx2 s[10:11], s[0:1], 88')
A('s_load_dwordx2 s[28:29], s[0:1], 40')
A('s_load_dwordx8 s[64:71], s[0:1], 56')
S_M, S_WS, S_DIST, S_O = 12, 16, 20, 24
if not OPT['adj']:
    A(f's_mul_i32 s3, s2, {256*NE}')
    VB = 2
    def R(i, n): return VB + 40 * i + n
    for i in range(NE):
        e, t = R(i, 1), R(i, 2)
        A(f'v_add_u32 v{e}, s3, v0')
        if i: A(f'v_add_u32 v{e}, {256*i}, v{e}')
        A(f'v_lshlrev_b32 v{R(i,3)}, 1, v{e}')
        A(f'v_min_u32 v{t}, {E-1}, v{e}')
        A(f'v_lshlrev_b32 v{R(i,0)}, 3, v{t}')
        A(f'v_mul_hi_u32_u24 v{t}, {MAGIC_DIV:#x}, v{t}')
        A(f'v_lshlrev_b32 v{t}, 4, v{t}')
        A(f'v_lshlrev_b32 v{e}, 3, v{e}')
    A('s_waitcnt lgkmcnt(0)')
    srd(S_DIST, 8, E * 2)
    for i in range(NE):
        A(f'buffer_load_ushort v{R(i,3)}, v{R(i,3)}, s[{S_DIST}:{S_DIST+3}], 0 offen')
    if not OPT['tab']:
        A('s_load_dwordx4 s[28:31], s[28:29], 0')
        A('s_load_dwordx16 s[32:47], s[64:65], 0')
        A('s_load_dwordx16 s[48:63], s[66:67], 0')
    A('s_load_dwordx8 s[72:79], s[70:71], 0')
    A('s_load_dwordx8 s[64:71], s[68:69], 0')
    srd(S_WS, 6, WS_BYTES); srd(S_M, 4, E * 8); srd(S_O, 10, E * 8)
    for i in range(NE):
        A(f's_mov_b32 s4, {SCL_BASE:#x}')
        A(f'buffer_load_dwordx4 v[{R(i,6)}:{R(i,9)}], v{R(i,2)}, s[{S_WS}:{S_WS+3}], s4 offen')
        for p in range(4):
            A(f's_mov_b32 s4, {PART_BASE + p*E*8:#x}')
            A(f'buffer_load_dwordx2 v[{R(i,32+2*p)}:{R(i,33+2*p)}], v{R(i,0)}, s[{S_WS}:{S_WS+3}], s4 offen {OPT["ld_part"]}')
        A(f'buffer_load_dwordx2 v[{R(i,4)}:{R(i,5)}], v{R(i,1)}, s[{S_M}:{S_M+3}], 0 offen')
else:
    assert NE == 2 and not OPT['tab']
    A('s_lshl_b32 s3, s2, 8')
    VB = 2
    PQ, MQ, OQ, SC = 84, 100, 104, 8
    def R(i, n):
        if 32 <= n < 40: return PQ + ((n - 32) // 2) * 4 + 2 * i + (n & 1)
        if n in (4, 5): return MQ + 2 * i + (n - 4)
        if n in (30, 31): return OQ + 2 * i + (n - 30)
        if 6 <= n < 10: return VB + n
        return VB + 40 * i + n
    e, t = R(0, 1), R(0, 2)
    A(f'v_add_u32 v{e}, s3, v0')
    A(f'v_lshlrev_b32 v{R(0,3)}, 2, v{e}')
    A(f'v_min_u32 v{t}, {E//2-1}, v{e}')
    A(f'v_lshlrev_b32 v{R(0,0)}, 4, v{t}')
    A(f'v_lshlrev_b32 v{t}, 1, v{t}')
    A(f'v_mul_hi_u32_u24 v{t}, {MAGIC_DIV:#x}, v{t}')
    A(f'v_lshlrev_b32 v{t}, 4, v{t}')
    A(f'v_lshlrev_b32 v{e}, 4, v{e}')
    A('s_waitcnt lgkmcnt(0)')
    srd(S_DIST, 8, E * 2)
    A(f'buffer_load_dword v{R(0,3)}, v{R(0,3)}, s[{S_DIST}:{S_DIST+3}], 0 offen')
    A('s_load_dwordx4 s[28:31], s[28:29], 0')
    A('s_load_dwordx16 s[32:47], s[64:65], 0')
    A('s_load_dwordx16 s[48:63], s[66:67], 0')
    A('s_load_dwordx8 s[72:79], s[70:71], 0')
    A('s_load_dwordx8 s[64:71], s[68:69], 0')
    srd(S_WS, 6, WS_BYTES); srd(S_M, 4, E * 8); srd(S_O, 10, E * 8)
    for p in range(4):
        A(f's_mov_b32 s4, {PART_BASE + p*E*8:#x}')
        A(f'buffer_load_dwordx4 v[{PQ+4*p}:{PQ+4*p+3}], v{R(0,0)}, s[{S_WS}:{S_WS+3}], s4 offen {OPT["ld_part"]}')
    A(f's_mov_b32 s4, {SCL_BASE:#x}')
    A(f'buffer_load_dwordx4 v[{SC}:{SC+3}], v{t}, s[{S_WS}:{S_WS+3}], s4 offen')
    A(f'buffer_load_dwordx4 v[{MQ}:{MQ+3}], v{e}, s[{S_M}:{S_M+3}], 0 offen')
A('s_mov_b32 s5, 0xffff0000')
A(f's_mov_b32 s8, {f32bits(-10.0):#x}')
A(f's_mov_b32 s9, {f32bits(math.log2(math.e)):#x}')
def sw(base, idx, dst):
    sr = base + idx // 2
    if idx & 1: A(f's_and_b32 s{dst}, s{sr}, 0xffff0000')
    else: A(f's_lshl_b32 s{dst}, s{sr}, 16')
def spk(base, r, d, dst):
    op = 's_pack_hh_b32_b16' if d & 1 else 's_pack_ll_b32_b16'
    A(f'{op} s{dst}, s{base + r*2 + d//2}, s{base + (r+1)*2 + d//2}')
def unp(a, b, t):
    A(f'v_lshlrev_b32 v{a}, 16, v{t}')
    A(f'v_and_b32 v{b}, s5, v{t}')
def rnd2(a, b, t):
    A(f'v_cvt_pk_bf16_f32 v{t}, v{a}, v{b}')
    unp(a, b, t)
if not OPT['tab']:
    if OPT['adj']:
        A('s_waitcnt vmcnt(6) lgkmcnt(0)')
        A(f'v_and_b32 v{R(1,3)}, s5, v{R(0,3)}')
        A(f'v_lshlrev_b32 v{R(0,3)}, 16, v{R(0,3)}')
    else:
        A(f's_waitcnt vmcnt({6*NE}) lgkmcnt(0)')
        for i in range(NE): A(f'v_lshlrev_b32 v{R(i,3)}, 16, v{R(i,3)}')
    for r in range(0, 8, 2):
        sw(28, r, 6); sw(28, r + 1, 7)
        for i in range(NE):
            a_, b_, t = R(i, 14), R(i, 15), R(i, 2)
            A(f'v_subrev_f32 v{a_}, s6, v{R(i,3)}')
            A(f'v_subrev_f32 v{b_}, s7, v{R(i,3)}')
            rnd2(a_, b_, t)
            A(f'v_mul_f32 v{a_}, v{a_}, v{a_}')
            A(f'v_mul_f32 v{b_}, v{b_}, v{b_}')
            rnd2(a_, b_, t)
            A(f'v_mul_f32 v{a_}, s8, v{a_}')
            A(f'v_mul_f32 v{b_}, s8, v{b_}')
            rnd2(a_, b_, t)
            A(f'v_mul_f32 v{a_}, s9, v{a_}')
            A(f'v_mul_f32 v{b_}, s9, v{b_}')
            A(f'v_exp_f32 v{a_}, v{a_}')
            A(f'v_exp_f32 v{b_}, v{b_}')
            A('s_nop 0')
            A(f'v_cvt_pk_bf16_f32 v{R(i,18+r//2)}, v{a_}, v{b_}')
    for r in range(0, 8, 2):
        for base, dst in ((48, 22), (32, 26)):
            for d in range(4):
                spk(base, r, d, 6 + (d & 1))
                for i in range(NE):
                    c = '0' if r == 0 else f'v{R(i,dst+d)}'
                    A(f'v_dot2_f32_bf16 v{R(i,dst+d)}, v{R(i,18+r//2)}, s{6+(d&1)}, {c}')
    A('s_nop 2')
    for i in range(NE):
        rnd2(R(i,26), R(i,27), R(i,2)); rnd2(R(i,28), R(i,29), R(i,2))
else:
    A(f's_waitcnt vmcnt({6*NE})')
    A(f's_mov_b32 s4, {TAB_BASE:#x}')
    for i in range(NE):
        A(f'v_lshlrev_b32 v{R(i,3)}, 5, v{R(i,3)}')
        A(f'buffer_load_dwordx4 v[{R(i,22)}:{R(i,25)}], v{R(i,3)}, s[{S_WS}:{S_WS+3}], s4 offen')
        A(f'buffer_load_dwordx2 v[{R(i,20)}:{R(i,21)}], v{R(i,3)}, s[{S_WS}:{S_WS+3}], s4 offen offset:16')
A(f's_waitcnt vmcnt({2*NE}) lgkmcnt(0)' if OPT['tab'] else 's_waitcnt vmcnt(0)')
for i in range(NE):
    for p in range(4):
        for d in range(4):
            c = '0' if p == 0 else f'v{R(i,14+d)}'
            A(f'v_fma_mix_f32 v{R(i,14+d)}, v{R(i,32+2*p+d//2)}, v{R(i,6+p)}, {c} op_sel:[{d&1},0,0] op_sel_hi:[1,0,0]')
for k in range(4):
    for d in range(4):
        sw(64, k*4 + d, 6 + (d & 1))
        for i in range(NE):
            if k == 0: A(f'v_mul_f32 v{R(i,10+d)}, s{6+(d&1)}, v{R(i,14+k)}')
            else: A(f'v_fmac_f32 v{R(i,10+d)}, s{6+(d&1)}, v{R(i,14+k)}')
if OPT['tab']:
    A('s_waitcnt vmcnt(0)')
    for i in range(NE):
        unp(R(i,26), R(i,27), R(i,20)); unp(R(i,28), R(i,29), R(i,21))
for i in range(NE):
    for d in range(4):
        A(f'v_mul_f32 v{R(i,10+d)}, v{R(i,10+d)}, v{R(i,22+d)}')
    A(f'v_cvt_pk_bf16_f32 v{R(i,18)}, v{R(i,10)}, v{R(i,11)}')
    A(f'v_cvt_pk_bf16_f32 v{R(i,19)}, v{R(i,12)}, v{R(i,13)}')
for k in (0, 2):
    for d in range(4):
        spk(72, k, d, 6 + (d & 1))
        for i in range(NE):
            c = '0' if k == 0 else f'v{R(i,22+d)}'
            A(f'v_dot2_f32_bf16 v{R(i,22+d)}, v{R(i,18+k//2)}, s{6+(d&1)}, {c}')
for i in range(NE):
    unp(R(i,10), R(i,11), R(i,4)); unp(R(i,12), R(i,13), R(i,5))
A('s_nop 0')
for i in range(NE):
    rnd2(R(i,22), R(i,23), R(i,2)); rnd2(R(i,24), R(i,25), R(i,2))
    for d in range(4):
        A(f'v_mul_f32 v{R(i,22+d)}, v{R(i,22+d)}, v{R(i,26+d)}')
    rnd2(R(i,22), R(i,23), R(i,2)); rnd2(R(i,24), R(i,25), R(i,2))
    for d in range(4):
        A(f'v_add_f32 v{R(i,22+d)}, v{R(i,22+d)}, v{R(i,10+d)}')
    A(f'v_cvt_pk_bf16_f32 v{R(i,30)}, v{R(i,22)}, v{R(i,23)}')
    A(f'v_cvt_pk_bf16_f32 v{R(i,31)}, v{R(i,24)}, v{R(i,25)}')
    if not OPT['adj']: A(f'buffer_store_dwordx2 v[{R(i,30)}:{R(i,31)}], v{R(i,1)}, s[{S_O}:{S_O+3}], 0 offen {OPT["st_out"]}')
if OPT['adj']: A(f'buffer_store_dwordx4 v[{OQ}:{OQ+3}], v{R(0,1)}, s[{S_O}:{S_O+3}], 0 offen {OPT["st_out"]}')
L('F_END')
A('s_endpgm')
L('CODE_END')

out.append('.section .rodata,"a"')
for name, vg, sg in (('part_kernel', 128, 102), ('acc_kernel', 128, 102), ('fin_kernel', 108 if OPT['adj'] else 4 + 40*OPT['ne'], 80)):
    out.append('.p2align 6')
    out.append(f'.amdhsa_kernel {name}')
    out.append(f'  .amdhsa_next_free_vgpr {vg}')
    out.append(f'  .amdhsa_next_free_sgpr {sg}')
    out.append(f'  .amdhsa_accum_offset {vg}')
    out.append('  .amdhsa_group_segment_fixed_size 0')
    out.append('  .amdhsa_kernarg_size 112')
    out.append('  .amdhsa_user_sgpr_count 2')
    out.append('  .amdhsa_user_sgpr_kernarg_segment_ptr 1')
    out.append('  .amdhsa_system_sgpr_workgroup_id_x 1')
    out.append('  .amdhsa_float_denorm_mode_32 3')
    out.append('.end_amdhsa_kernel')
open(sys.argv[1], 'w').write('\n'.join(out) + '\n')
```

```python
import struct, sys, math

E = 400000
T = 12800000
CH = 6250
S = 25000
NTILE = 512
NBLK = (S + 2) // 3
RS = 133376
OFS = 16448
OFF_BASE = 0x4400000
MAX_BASE = 0x4C00000
SCL_BASE = 0x4C01000
PART_BASE = 0x5000000
TAB_BASE = 0x6000000
WS_BYTES = 268435456
MAGIC_DIV = (2**32 + CH - 1) // CH
NR = int([a for a in sys.argv[2:] if a.startswith('NR=')][0][3:]) if any(a.startswith('NR=') for a in sys.argv[2:]) else 14
CHI = (E + 4*NR - 1) // (4*NR)
MAGIC_I = (2**32 + CHI - 1) // CHI
assert MAGIC_I < 2**24 and all((x*MAGIC_I) >> 32 == x // CHI for x in range(0, E, 1))
NBK = (CHI*8 + 1023) // 1024
MINI = S - 6 * 4096
assert NTILE * RS <= OFF_BASE and OFF_BASE + 256 * OFS <= MAX_BASE

OPT = dict(ld_in='nt', st_ws='sc0 sc1', ld_ent='', ld_ch='', st_part='sc0 sc1', ld_part='', NB=2, skip_s=0, skip_g=0, skip_fill=0, skip_e=0,
           stamp=-1, stamp2=-1, prio=1, ilv='2:0,3:1,4:2,5:3', pre=1, npb=1, bps=1, vpos='123456', skip_ch=0, skip_pf=0, pmap=0, cpos=0, epos=1, unpair=0, k2prio=0, pa=2, pb=2, struct=0, forcefb=0, abst=0, wsoff=0, cpf=0, ne=1, pp=0, ilp=0, hp='01', NR=14, nd=1, tab=0, adj=0, st_out='sc0 sc1', warm=1, il=5, detp=0, st_mp='sc0 sc1', dst='002211111')
for a in sys.argv[2:]:
    k, v = a.split('=')
    OPT[k] = int(v) if (v.lstrip('-').isdigit() and k not in ('vpos', 'dst', 'hp')) else v.replace('_', ' ')

def f32bits(x): return struct.unpack('<I', struct.pack('<f', x))[0]
out = []
def A(s): out.append('    ' + s)
def L(s): out.append(s + ':')
_lab = [0]
def newlab(p='L'):
    _lab[0] += 1
    return f'{p}_{_lab[0]}'
def srd(d, b, nbytes):
    if nbytes == WS_BYTES and OPT['wsoff']:
        off = OPT['wsoff'] << 20
        A(f's_add_u32 s{d}, s{b}, {off:#x}')
        A(f's_addc_u32 s{d+1}, s{b+1}, 0')
        A(f's_and_b32 s{d+1}, s{d+1}, 0xffff')
        A(f's_mov_b32 s{d+2}, {nbytes - off:#x}')
        A(f's_mov_b32 s{d+3}, 0x00020000')
        return
    A(f's_mov_b32 s{d}, s{b}')
    A(f's_and_b32 s{d+1}, s{b+1}, 0xffff')
    A(f's_mov_b32 s{d+2}, {nbytes:#x}')
    A(f's_mov_b32 s{d+3}, 0x00020000')
def dpp_scan(op, v):
    for sh in (1, 2, 4, 8):
        A('s_nop 1')
        A(f'{op}_dpp v{v}, v{v}, v{v} row_shr:{sh} row_mask:0xf bank_mask:0xf bound_ctrl:0')
    A('s_nop 1')
    A(f'{op}_dpp v{v}, v{v}, v{v} row_bcast:15 row_mask:0xa bank_mask:0xf')
    A('s_nop 1')
    A(f'{op}_dpp v{v}, v{v}, v{v} row_bcast:31 row_mask:0xc bank_mask:0xf')
def khead(name):
    out.append(f'.globl {name}')
    out.append('.p2align 8')
    out.append(f'.type {name},@function')
    L(name)
SD = 'dst_sel:DWORD dst_unused:UNUSED_PAD'
def abs_start(v):
    if not OPT['abst']: return
    A('s_memrealtime s[4:5]')
    A('s_waitcnt lgkmcnt(0)')
    A(f'v_mov_b32 v{v}, s4')
def abs_end(v, sr, kid, wpb):
    if not OPT['abst']: return
    A('s_mov_b64 exec, -1')
    A('s_waitcnt vmcnt(0)')
    A('s_load_dwordx2 s[4:5], s[0:1], 104')
    A('s_memrealtime s[6:7]')
    A('s_waitcnt lgkmcnt(0)')
    srd(sr, 4, WS_BYTES)
    A('v_lshrrev_b32 v1, 6, v0')
    A(f's_mul_i32 s7, s2, {wpb}')
    A('v_add_u32 v1, s7, v1')
    A('v_lshlrev_b32 v1, 3, v1')
    A(f'v_mov_b32 v2, v{v}')
    A('v_mov_b32 v3, s6')
    A(f's_mov_b32 s7, {0xF000000 + kid*65536:#x}')
    A('s_mov_b64 exec, 1')
    A(f'buffer_store_dwordx2 v[2:3], v1, s[{sr}:{sr+3}], s7 offen')

stampn = [0]
def stamp(key):
    if OPT[key] < 0: return
    n = stampn[0]; stampn[0] += 1
    A(OPT.get('clk','s_memtime').replace(' ','_') + ' s[98:99]')
    A('s_waitcnt lgkmcnt(0)')
    A(f's_mov_b32 s{76+n}, s98')
def stamp_flush(key, swave, vz, wave=0):
    if OPT[key] < 0: return
    lab = newlab('STF')
    A(f's_cmp_lg_u32 s2, {OPT[key]}')
    A(f's_cbranch_scc1 {lab}')
    A(f's_cmp_lg_u32 s{swave}, {wave}')
    A(f's_cbranch_scc1 {lab}')
    A('s_load_dwordx2 s[4:5], s[0:1], 96')
    A('s_waitcnt lgkmcnt(0)')
    srd(72, 4, 256)
    A('s_mov_b64 exec, 1')
    A(f'v_mov_b32 v{vz}, 0')
    for n in range(stampn[0]):
        A(f's_sub_u32 s98, s{76+n}, s76')
        A(f'v_mov_b32 v{vz+1}, s98')
        A(f'buffer_store_dword v{vz+1}, v{vz}, s[72:75], 0 offen offset:{4*n}')
        A('s_nop 1')
    L(lab)

L_H, L_SC, L_ST = 0, 16384, 16640
L_X = L_ST
L_W = L_X + NBLK * 4 + 8
LDS1 = L_W + NBLK * 12
assert L_W < 65536 and L_W % 16 == 0
L_ARB, L_A = 50000, NBK*1024
L_SC2 = L_A + 100000
LDS2 = L_SC2 + 64
assert LDS2 <= 163840
MP_BASE = 0x4C10000
CHS = NBK*1024
assert MP_BASE + 4*NR*CHS + CHS <= PART_BASE
G3 = (E + 256*OPT['ne'] - 1) // (256*OPT['ne'])

hdr = open('standalone__molecular_angular_gemnet__graph.s.ref').read().split('; Override launch')[0]
out.append(hdr.rstrip())
out.append(f'; @launch kernel=part_kernel grid=(256,1,1) block=(1024,1,1) lds={LDS1}')
out.append(f'; @launch kernel=acc_kernel grid=(256,1,1) block=(1024,1,1) lds={LDS2}')
out.append(f'; @launch kernel=fin_kernel grid=({G3},1,1) block=(256,1,1) lds=0')
out.append('.amdgcn_target "amdgcn-amd-amdhsa--gfx950"')
out.append('.text')

khead('part_kernel')
A('s_cmp_ge_u32 s2, 256')
A('s_cbranch_scc1 P_END')
abs_start(7+0) if False else abs_start(87)
A('s_load_dwordx4 s[4:7], s[0:1], 0')
A('s_load_dwordx2 s[8:9], s[0:1], 16')
A('s_load_dwordx2 s[10:11], s[0:1], 32')
A('s_load_dwordx2 s[12:13], s[0:1], 48')
A('s_load_dwordx2 s[14:15], s[0:1], 104')
S_IN, S_OUT, S_ANG, S_WS, S_M = 16, 20, 24, 28, 32
if OPT['prio']: A('s_setprio 3')
if OPT['cpf'] >= 2:
    A('s_getpc_b64 s[58:59]')
    A('v_lshlrev_b32 v48, 7, v0')
    A('v_cmp_gt_u32 vcc, 88, v0')
    A('s_and_saveexec_b64 s[56:57], vcc')
    A('s_cbranch_execz P_NOSPF')
    A('global_load_dword v87, v48, s[58:59]')
    L('P_NOSPF')
    A('s_mov_b64 exec, s[56:57]')
A('v_lshlrev_b32 v1, 4, v0')
A('v_lshlrev_b32 v2, 3, v0')
A('v_mov_b32 v3, 1')
A('v_mov_b32 v4, 0x10000')
A('v_mov_b32 v5, 0')
A('v_lshlrev_b32 v6, 2, v0')
A('v_lshlrev_b32 v7, 1, v0')
TT = 8
for r in range(4): A(f'v_mov_b32 v{TT+4+r}, 0')
A('v_readfirstlane_b32 s50, v0')
A(f'ds_write_b128 v1, v[{TT+4}:{TT+7}]')
A(f'ds_write_b32 v6, v5 offset:{L_SC}')
A(f's_movk_i32 s42, {MINI}')
A('v_cmp_gt_u32 s[40:41], s42, v0')
A('s_waitcnt lgkmcnt(0)')
A('s_load_dword s36, s[12:13], 0')
srd(S_IN, 6, T * 4); srd(S_OUT, 8, T * 4); srd(S_ANG, 10, T * 2); srd(S_WS, 14, WS_BYTES); srd(S_M, 4, E * 8)
A('s_lshr_b32 s50, s50, 6')
if OPT['il']:
    if OPT['il'] == 1:
        A('s_lshl_b32 s37, s2, 14')
    elif OPT['il'] == 5:
        A(f's_mul_i32 s37, s50, {256*6144 - 1024}')
        A('s_mul_i32 s38, s2, 6144')
        A('s_add_u32 s37, s37, s38')
    elif OPT['il'] == 6:
        A(f's_mul_i32 s37, s50, {6144 - 1024}')
        A(f's_mul_i32 s38, s2, {96*1024}')
        A('s_add_u32 s37, s37, s38')
    elif OPT['il'] == 7:
        A(f's_mul_i32 s37, s2, {96*1024}')
    elif OPT['il'] == 8:
        A('s_lshr_b32 s38, s2, 3')
        A('s_add_u32 s38, s38, s50')
        A('s_and_b32 s38, s38, 15')
        A('s_sub_i32 s38, s38, s50')
        A('s_lshl_b32 s38, s38, 10')
        A('s_lshl_b32 s37, s2, 14')
        A('s_add_i32 s37, s37, s38')
    else:
        G_ = OPT['il']
        A(f's_lshr_b32 s38, s50, {G_-2}')
        A(f's_mul_i32 s37, s38, {255 * (1024 << (G_-2))}')
        A(f's_lshl_b32 s38, s2, {10 + G_ - 2}')
        A('s_add_u32 s37, s37, s38')
    A('s_lshr_b32 s38, s37, 1')
    A(f's_mul_i32 s68, s2, {MINI*4}')
    A(f's_mul_i32 s69, s2, {MINI*2}')
else:
    A(f's_mul_i32 s37, s2, {2*S*4}')
    A(f's_mul_i32 s38, s2, {2*S*2}')
UA = 24
unitA = [(UA + 10*k, UA + 10*k + 4, UA + 10*k + 8) for k in range(6)] + [(84, 85, 86)]
unitB = [(88 + 10*k, 88 + 10*k + 4, 88 + 10*k + 8) for k in range(4)] + [unitA[0], unitA[1], (44, 45, 46)]
vm = []
ldf = OPT['ld_in']
def load_unit(tag, k):
    vi, vo, va = (unitA if tag == 'A' else unitB)[k]
    tile = 0 if tag == 'A' else 1
    if OPT['il'] and k < 6:
        us = {5: 1024, 6: 1024, 7: 16384}.get(OPT['il'], 256 * 16384)
        A(f's_add_u32 s43, s37, {tile*6*256*16384 + k*us}')
        A(f's_add_u32 s44, s38, {tile*6*256*8192 + k*us//2}')
    elif OPT['il']:
        A(f's_add_u32 s43, s68, {12*256*16384 + tile*256*MINI*4}')
        A(f's_add_u32 s44, s69, {12*256*8192 + tile*256*MINI*2}')
    else:
        A(f's_add_u32 s43, s37, {tile*S*4 + k*16384}')
        A(f's_add_u32 s44, s38, {tile*S*2 + k*8192}')
    if k < 6:
        A(f'buffer_load_dwordx4 v[{vo}:{vo+3}], v1, s[{S_OUT}:{S_OUT+3}], s43 offen {ldf}')
        A(f'buffer_load_dwordx4 v[{vi}:{vi+3}], v1, s[{S_IN}:{S_IN+3}], s43 offen {ldf}')
        A(f'buffer_load_dwordx2 v[{va}:{va+1}], v2, s[{S_ANG}:{S_ANG+3}], s44 offen {ldf}')
    else:
        A('s_or_b64 exec, s[40:41], 1')
        A(f'buffer_load_dword v{vo}, v6, s[{S_OUT}:{S_OUT+3}], s43 offen {ldf}')
        A(f'buffer_load_dword v{vi}, v6, s[{S_IN}:{S_IN+3}], s43 offen {ldf}')
        A(f'buffer_load_ushort v{va}, v7, s[{S_ANG}:{S_ANG+3}], s44 offen {ldf}')
        A('s_mov_b64 exec, -1')
    vm.extend([(tag, k)] * 3)
def vwait(tag):
    idx = max(i for i, t in enumerate(vm) if t == tag)
    A(f's_waitcnt vmcnt({min(len(vm)-1-idx, 63)})')
stamp('stamp')
for k in range(OPT['pre']): load_unit('A', k)
A('s_barrier')
A('s_lshl_b32 s39, s2, 4')
A('s_add_u32 s39, s39, s50')
A(f's_sub_u32 s42, s39, {4*NR*NBK}')
A(f's_cmp_ge_u32 s39, {4*NR*NBK}')
A('s_cselect_b32 s39, s42, s39')
A('s_lshl_b32 s45, s39, 10')
A(f's_mul_hi_u32 s42, s39, {(2**32 + NBK - 1)//NBK:#x}')
A(f's_mul_i32 s42, s42, {CHS - CHI*8}')
A('s_sub_u32 s39, s45, s42')
A(f's_add_u32 s45, s45, {MP_BASE:#x}')
A(f'v_and_b32 v{TT+4}, 0xfc, v6')
A(f'v_and_b32 v{TT+5}, 0x3f0, v1')
for k in range(4):
    A(f'buffer_load_dword v{TT+k}, v{TT+4}, s[{S_M}:{S_M+3}], s39 offen offset:{256*k}'); vm.append('M')
for k in range(OPT['pre'], 7): load_unit('A', k)
if OPT['prio']: A('s_setprio 0')
A(f's_mov_b32 s46, {f32bits(1/(2*math.pi)):#x}')
A(f's_mov_b32 s47, {f32bits(1/(2*math.pi)):#x}')
A('s_mov_b32 s48, 0xfc000000')
A('s_mov_b32 s49, 0xffff0000')
A(f's_mov_b32 s51, {(-CH) & 0xffffffff:#x}')
A('s_mov_b32 s52, 0x00020002')
A(f's_movk_i32 s55, {1024-NR}')
A(f's_mov_b32 s54, {(-CHI) & 0xffffffff:#x}')
A('s_mov_b32 s53, 0x55555556')
A('s_waitcnt lgkmcnt(0)')
A('s_lshl_b32 s36, s36, 16')

PT = TT + 11
def process(tag, k):
    vi0, vo0, va0 = (unitA if tag == 'A' else unitB)[k]
    inc = 3 if tag == 'A' else 4
    n = 4 if k < 6 else 1
    vwait((tag, k))
    skip = None
    if k == 6:
        skip = newlab('P_MS')
        A('s_mov_b64 exec, s[40:41]')
        A(f's_cbranch_execz {skip}')
    tj, ti, t1 = PT, PT + 1, PT + 2
    for j in range(n):
        vi, vo = vi0 + j, vo0 + j
        A(f'v_mul_hi_u32_u24 v{tj}, {MAGIC_I:#x}, v{vi}')
        A(f'v_mul_hi_u32_u24 v{ti}, {MAGIC_DIV:#x}, v{vo}')
        A(f'v_mul_u32_u24 v{t1}, {(65536 + NR - 1)//NR}, v{tj}')
        A(f'v_mad_i32_i24 v{vi}, v{tj}, s54, v{vi}')
        A(f'v_mad_i32_i24 v{vo}, v{ti}, s51, v{vo}')
        A(f'v_lshrrev_b32 v{t1}, 16, v{t1}')
        A(f'v_lshl_or_b32 v{vi}, v{vo}, 13, v{vi}')
        A(f'v_lshl_add_u32 v{vo}, v{ti}, 4, v{tj}')
        A(f'v_mad_u32_u24 v{vo}, v{t1}, s55, v{vo}')
        A(f'v_lshlrev_b32 v{vo}, 2, v{vo}')
        A(f'ds_add_u32 v{vo}, v{inc} offset:{L_H}')
    a0, a1 = PT + 3, PT + 4
    assert a0 % 2 == 0
    npair = (n + 1) // 2
    nf = newlab('P_NF')
    A('s_cmp_eq_u32 s36, 0x3f800000')
    A(f's_cbranch_scc1 {nf}')
    for p in range(npair):
        va = va0 + p
        A(f'v_lshlrev_b32 v{a0}, 16, v{va}')
        A(f'v_and_b32 v{a1}, s49, v{va}')
        A(f'v_mul_f32 v{a0}, s36, v{a0}')
        A(f'v_mul_f32 v{a1}, s36, v{a1}')
        A(f'v_cvt_pk_bf16_f32 v{va}, v{a0}, v{a1}')
    L(nf)
    for p in range(npair):
        va = va0 + p
        A(f'v_lshlrev_b32 v{a0}, 16, v{va}')
        A(f'v_and_b32 v{a1}, s49, v{va}')
        A(f'v_pk_mul_f32 v[{a0}:{a1}], v[{a0}:{a1}], s[46:47]')
        A(f'v_fract_f32 v{a0}, v{a0}')
        A(f'v_fract_f32 v{a1}, v{a1}')
        A(f'v_cos_f32 v{a0}, v{a0}')
        A(f'v_cos_f32 v{a1}, v{a1}')
        A('s_nop 0')
        A(f'v_cvt_pk_f16_f32 v{va}, v{a0}, v{a1}')
        A(f'v_pk_add_u16 v{va}, v{va}, s52')
        e0, e1 = 2*p, 2*p + 1
        A(f'v_lshlrev_b32 v{a0}, 16, v{va}')
        if e1 < n: A(f'v_and_or_b32 v{vi0+e1}, v{va}, s48, v{vi0+e1}')
        A(f'v_and_or_b32 v{vi0+e0}, v{a0}, s48, v{vi0+e0}')
        A(f'v_lshrrev_b32 v{va}, 2, v{va}')
    if k == 6:
        L(skip)
        A('s_mov_b64 exec, -1')

def maxm():
    vwait('M')
    M = TT + 6
    A('s_mov_b32 s42, 0x7fff7fff')
    for j in range(4): A(f'v_and_b32 v{M+j}, s42, v{TT+j}')
    A(f'v_pk_max_u16 v{M}, v{M}, v{M+2}')
    A(f'v_pk_max_u16 v{M+1}, v{M+1}, v{M+3}')
    A(f'v_pk_max_u16 v{M}, v{M}, v{M+1}')
    A(f'v_lshrrev_b32 v{M+1}, 16, v{M}')
    A(f'v_and_b32 v{M}, 0xffff, v{M}')
    A(f'v_max_u32 v{M}, v{M}, v{M+1}')
    dpp_scan('v_max_u32', M)
    A('s_nop 1')
    A(f'v_readlane_b32 s42, v{M}, 63')
    A('s_nop 1')
    A(f'v_mov_b32 v{M}, s42')
    A('s_mov_b64 exec, 1')
    A(f'ds_max_u32 v5, v{M} offset:{L_SC+128}')
    A('s_mov_b64 exec, -1')
def mpload():
    A('v_and_b32 v47, 0xfc, v6')
    for k in range(4):
        A(f'buffer_load_dword v{84+k}, v47, s[{S_M}:{S_M+3}], s39 offen offset:{256*k}'); vm.append('M2')
def mpstore():
    vwait('M2')
    A('v_and_b32 v47, 0x3f0, v1')
    A(f'buffer_store_dwordx4 v[84:87], v47, s[{S_WS}:{S_WS+3}], s45 offen {OPT["st_mp"]}'); vm.append('MPS')

def zrow(src, h, tile):
    for j in range(4):
        A(f'v_mul_hi_u32 v{h+8}, v{src+j}, s53')
        A(f'v_add_u32 v{h+10+j}, v{h+8}, v{src+j}')
    A(f'v_lshl_or_b32 v{h+8}, v{h+11}, 16, v{h+10}')
    A(f'v_lshl_or_b32 v{h+9}, v{h+13}, 16, v{h+12}')
    if tile == 0:
        A(f'v_and_b32 v{h+14}, -32, v2')
        A(f'v_add_u32 v{h+14}, v{h+14}, v2')
    A(f's_mul_i32 s42, s2, {OFS}')
    A(f's_add_u32 s42, s42, {OFF_BASE:#x}')
    A(f'buffer_store_dwordx2 v[{h+8}:{h+9}], v{h+14}, s[{S_WS}:{S_WS+3}], s42 offen offset:{64+32*tile}')
    vm.append(('OFS', tile))

def scan(tile, scoff):
    h = TT
    A('s_waitcnt lgkmcnt(0)')
    A('s_barrier')
    A(f'ds_read_b128 v[{h}:{h+3}], v1 offset:{L_H}')
    A(f'v_and_b32 v{h+5}, 63, v0')
    A(f'v_cmp_lt_u32 vcc, s50, v{h+5}')
    A(f'v_lshlrev_b32 v{h+5}, 2, v{h+5}')
    A('s_and_b64 s[56:57], vcc, 0xffff')
    A('s_waitcnt lgkmcnt(0)')
    if tile == 1:
        for j in range(4): A(f'v_and_b32 v{h+10+j}, 0xffff, v{h+j}')
        for j in range(4): A(f'v_lshrrev_b32 v{h+j}, 16, v{h+j}')
    for j in range(1, 4): A(f'v_add_u32 v{h+j}, v{h+j-1}, v{h+j}')
    A(f'v_mov_b32 v{h+4}, v{h+3}')
    dpp_scan('v_add_u32', h + 4)
    A('s_nop 1')
    A(f'v_readlane_b32 s42, v{h+4}, 63')
    A('s_nop 1')
    A(f'v_mov_b32 v{h+6}, s42')
    A('s_mov_b64 exec, s[56:57]')
    A(f'ds_add_u32 v{h+5}, v{h+6} offset:{scoff}')
    A('s_mov_b64 exec, -1')
    A('s_lshl_b32 s42, s50, 2')
    A(f'v_mov_b32 v{h+5}, s42')
    A(f'v_sub_u32 v{h+4}, v{h+4}, v{h+3}')
    if tile == 1: zrow(h + 10, h, 0)
    A('s_waitcnt lgkmcnt(0)')
    A('s_barrier')
    A(f'ds_read_b32 v{h+5}, v{h+5} offset:{scoff}')
    if tile == 1: A(f'ds_read_b32 v{h+6}, v5 offset:{L_SC+128}')
    A('s_waitcnt lgkmcnt(0)')
    A(f'v_add_u32 v{h+4}, v{h+4}, v{h+5}')
    if tile == 1:
        for j in range(4): A(f'v_add_u32 v{h+10+j}, v{h+4}, v{h+j}')
    for j in (3, 2, 1): A(f'v_add_u32 v{h+j}, v{h+4}, v{h+j-1}')
    A(f'v_mov_b32 v{h}, v{h+4}')
    A(f'ds_write_b128 v1, v[{h}:{h+3}] offset:{L_H}')
    if tile == 1:
        zrow(h + 10, h, 1)
        done = newlab('P_SC')
        A('s_cmp_lg_u32 s50, 0')
        A(f's_cbranch_scc1 {done}')
        A('s_mov_b64 exec, 1')
        A(f'buffer_store_dword v5, v5, s[{S_WS}:{S_WS+3}], s42 offen offset:28')
        A(f'buffer_store_dword v5, v5, s[{S_WS}:{S_WS+3}], s42 offen offset:60')
        A(f's_add_u32 s42, s2, {MAX_BASE:#x}')
        A(f'v_lshrrev_b32 v{h+6}, 7, v{h+6}')
        A(f'buffer_store_byte v{h+6}, v5, s[{S_WS}:{S_WS+3}], s42 offen')
        A('s_mov_b64 exec, -1')
        L(done)
    A('s_waitcnt lgkmcnt(0)')
    A('s_barrier')

def scatter(tag, after_wait, after_fin):
    units = unitA if tag == 'A' else unitB
    lg = []
    def issue(k):
        vi0, vo0, _ = units[k]
        n = 4 if k < 6 else 1
        if k == 6: A('s_mov_b64 exec, s[40:41]')
        for j in range(n):
            A(f'ds_add_rtn_u32 v{TT+4*(k&1)+j}, v{vo0+j}, v3 offset:{L_H}')
            lg.append(('R', k))
        if k == 6: A('s_mov_b64 exec, -1')
    def fin(k):
        vi0, vo0, va0 = units[k]
        n = 4 if k < 6 else 1
        if k == 6: A('s_mov_b64 exec, s[40:41]')
        for j in range(n):
            t = TT + 4*(k & 1) + j
            q, a = TT + 8, TT + 9 + (j & 1)
            if tag == 'A': A(f'v_and_b32 v{t}, 0xffff, v{t}')
            A(f'v_mul_hi_u32 v{q}, v{t}, s53')
            A(f'v_lshlrev_b32 v{a}, 2, v{t}')
            A(f'v_add_u32 v{t}, v{q}, v{t}')
            A(f'ds_write_b32 v{a}, v{vi0+j} offset:{L_W}')
            A(f'ds_write_b8{"_d16_hi" if j & 1 else ""} v{t}, v{va0+j//2} offset:{L_X}')
            lg.extend([('W', k)] * 2)
        if k == 6: A('s_mov_b64 exec, -1')
    issue(0)
    for k in range(7):
        if k + 1 < 7: issue(k + 1)
        idx = max(i for i, t in enumerate(lg) if t == ('R', k) or t == ('W', k - 1))
        ny = sum(1 for t in lg[idx+1:] if t[1] != 6)
        A(f's_waitcnt lgkmcnt({min(ny, 15)})')
        if k in after_wait: after_wait[k]()
        fin(k)
        if k in after_fin:
            after_fin[k]()
            lg.extend([('H', k)] * 4)
    A('s_waitcnt lgkmcnt(0)')
    A('s_barrier')

RC = (NBLK + 1023) // 1024
lastc = NBLK - (RC - 1) * 1024
def copyout(tile, regs, ar):
    A(f's_movk_i32 s42, {lastc}')
    A('v_cmp_gt_u32 s[56:57], s42, v0')
    A(f'v_mul_u32_u24 v{ar[0]}, 12, v0')
    A(f'v_add_u32 v{ar[0]}, {L_W}, v{ar[0]}')
    A(f's_mul_i32 s42, s2, {2*RS}')
    if tile: A(f's_add_u32 s42, s42, {RS}')
    def rd(j):
        r = regs[j]
        if j == RC - 1: A('s_mov_b64 exec, s[56:57]')
        A(f'ds_read2_b32 v[{r}:{r+1}], v{ar[0]} offset0:0 offset1:1')
        A(f'ds_read_b32 v{r+2}, v{ar[0]} offset:8')
        A(f'ds_read_b32 v{r+3}, v6 offset:{L_X + j*4096}')
        if j == RC - 1: A('s_mov_b64 exec, -1')
        else: A(f'v_add_u32 v{ar[0]}, {12*1024}, v{ar[0]}')
    LA = 4
    for j in range(LA): rd(j)
    for j in range(RC):
        if j + LA < RC: rd(j + LA)
        A(f's_waitcnt lgkmcnt({3*max(0, min(LA, RC-2-j))})')
        if j == RC - 1: A('s_mov_b64 exec, s[56:57]')
        A(f'buffer_store_dwordx4 v[{regs[j]}:{regs[j]+3}], v1, s[{S_WS}:{S_WS+3}], s42 offen {OPT["st_ws"]}')
        if j < RC - 1: vm.append(('ST', tile, j))
        if j < RC - 1: A('s_add_u32 s42, s42, 16384')
    A('s_mov_b64 exec, -1')

stamp('stamp')
process('A', 0)
stamp('stamp')
maxm()
for k in range(1, 7): process('A', k)
stamp('stamp')
NPB = OPT['npb']
for k in range(NPB): load_unit('B', k)
scan(0, L_SC)
stamp('stamp')
ilv = dict((int(x.split(':')[0]), int(x.split(':')[1])) for x in OPT['ilv'].split(',')) if OPT['ilv'] else {}
pend = list(range(NPB, 7))
aw = {}
for k in range(7):
    take = []
    while pend and len(take) < OPT['bps'] and (pend[0] < 4 or k >= pend[0] - 3):
        take.append(pend.pop(0))
    if k == 6: take += pend; pend = []
    if take: aw[k] = (lambda tk=take: [load_unit('B', b) for b in tk])
scatter('A', aw, {k: (lambda b=b: process('B', b)) for k, b in ilv.items()})
def cpf_code():
    if OPT['cpf']:
        A('s_cmp_lg_u32 s50, 15')
        A('s_cbranch_scc1 P_NOCPF')
        A('s_getpc_b64 s[58:59]')
        L('P_PC')
        A('s_add_u32 s58, s58, acc_kernel-P_PC')
        A('s_addc_u32 s59, s59, 0')
        A('v_and_b32 v19, 63, v0')
        A('v_lshlrev_b32 v19, 7, v19')
        for j in range(3):
            A(f'v_min_u32 v20, CODE_END-acc_kernel-4, v19')
            A(f'global_load_dword v21, v20, s[58:59]')
            A('v_add_u32 v19, 8192, v19')
        L('P_NOCPF')
stamp('stamp')
CR = [48 + 4*j for j in range(RC)]
mpload()
if OPT['dst'] == '':
    copyout(0, CR, [TT, TT + 1, TT + 2])
    stamp('stamp')
    for k in range(7):
        if k not in ilv.values(): process('B', k)
    stamp('stamp')
    scan(1, L_SC + 64)
    cpf_code()
    stamp('stamp')
    scatter('B', {}, {})
else:
    A(f's_movk_i32 s42, {lastc}')
    A('v_cmp_gt_u32 s[64:65], s42, v0')
    A(f'v_mul_u32_u24 v{TT}, 12, v0')
    A(f'v_add_u32 v{TT}, {L_W}, v{TT}')
    A(f's_mul_i32 s66, s2, {2*RS}')
    for j in range(RC):
        r = CR[j]
        if j == RC - 1: A('s_mov_b64 exec, s[64:65]')
        A(f'ds_read2_b32 v[{r}:{r+1}], v{TT} offset0:0 offset1:1')
        A(f'ds_read_b32 v{r+2}, v{TT} offset:8')
        A(f'ds_read_b32 v{r+3}, v6 offset:{L_X + j*4096}')
        if j == RC - 1: A('s_mov_b64 exec, -1')
        else: A(f'v_add_u32 v{TT}, {12*1024}, v{TT}')
    nst = [0]
    def st(n):
        for _ in range(n):
            j = nst[0]
            if j >= RC: return
            nst[0] += 1
            if j == RC - 1: A('s_mov_b64 exec, s[64:65]')
            A(f'buffer_store_dwordx4 v[{CR[j]}:{CR[j]+3}], v1, s[{S_WS}:{S_WS+3}], s66 offen {OPT["st_ws"]}')
            if j < RC - 1:
                vm.append(('ST', 0, j)); A('s_add_u32 s66, s66, 16384')
            else: A('s_mov_b64 exec, -1')
    sch = [int(c) for c in OPT['dst']]
    rest = [k for k in range(7) if k not in ilv.values()]
    process('B', rest[0])
    A('s_waitcnt lgkmcnt(0)')
    st(sch[0])
    stamp('stamp')
    for k in rest[1:]: process('B', k)
    st(sch[1])
    stamp('stamp')
    scan(1, L_SC + 64)
    cpf_code()
    stamp('stamp')
    scatter('B', {k: (lambda n=sch[2+k]: st(n)) for k in range(7)}, {})
    assert nst[0] == RC
mpstore()

def tabgen():
    A('s_cmp_ge_u32 s50, 4')
    A('s_cbranch_scc1 P_NOTAB')
    A('s_load_dwordx2 s[4:5], s[0:1], 40')
    A('s_load_dwordx4 s[8:11], s[0:1], 56')
    A('s_lshl_b32 s42, s2, 8')
    D, a_, b_, t, RB, O = 8, 9, 10, 11, 12, 88
    A(f'v_add_u32 v{D}, s42, v0')
    A(f'v_lshlrev_b32 v16, 5, v{D}')
    A(f'v_lshlrev_b32 v{D}, 16, v{D}')
    A('s_waitcnt lgkmcnt(0)')
    A('s_load_dwordx4 s[4:7], s[4:5], 0')
    A('s_load_dwordx16 s[68:83], s[8:9], 0')
    A('s_load_dwordx16 s[84:99], s[10:11], 0')
    A(f's_mov_b32 s44, {f32bits(-10.0):#x}')
    A(f's_mov_b32 s45, {f32bits(math.log2(math.e)):#x}')
    def rnd():
        A(f'v_cvt_pk_bf16_f32 v{t}, v{a_}, v{b_}')
        A(f'v_lshlrev_b32 v{a_}, 16, v{t}')
        A(f'v_and_b32 v{b_}, s49, v{t}')
    A('s_waitcnt lgkmcnt(0)')
    for r in range(0, 8, 2):
        A(f's_lshl_b32 s42, s{4+r//2}, 16')
        A(f's_and_b32 s43, s{4+r//2}, 0xffff0000')
        A(f'v_subrev_f32 v{a_}, s42, v{D}')
        A(f'v_subrev_f32 v{b_}, s43, v{D}')
        rnd()
        A(f'v_mul_f32 v{a_}, v{a_}, v{a_}')
        A(f'v_mul_f32 v{b_}, v{b_}, v{b_}')
        rnd()
        A(f'v_mul_f32 v{a_}, s44, v{a_}')
        A(f'v_mul_f32 v{b_}, s44, v{b_}')
        rnd()
        A(f'v_mul_f32 v{a_}, s45, v{a_}')
        A(f'v_mul_f32 v{b_}, s45, v{b_}')
        A(f'v_exp_f32 v{a_}, v{a_}')
        A(f'v_exp_f32 v{b_}, v{b_}')
        A('s_nop 0')
        A(f'v_cvt_pk_bf16_f32 v{RB+r//2}, v{a_}, v{b_}')
    for r in range(0, 8, 2):
        for base, dst in ((84, O), (68, O + 4)):
            for d in range(4):
                op = 's_pack_hh_b32_b16' if d & 1 else 's_pack_ll_b32_b16'
                A(f'{op} s{42+(d&1)}, s{base + r*2 + d//2}, s{base + (r+1)*2 + d//2}')
                c = '0' if r == 0 else f'v{dst+d}'
                A(f'v_dot2_f32_bf16 v{dst+d}, v{RB+r//2}, s{42+(d&1)}, {c}')
    A('s_nop 2')
    A(f'v_cvt_pk_bf16_f32 v{O+4}, v{O+4}, v{O+5}')
    A(f'v_cvt_pk_bf16_f32 v{O+5}, v{O+6}, v{O+7}')
    A(f's_mov_b32 s42, {TAB_BASE:#x}')
    A(f'buffer_store_dwordx4 v[{O}:{O+3}], v16, s[{S_WS}:{S_WS+3}], s42 offen')
    A(f'buffer_store_dwordx4 v[{O+4}:{O+7}], v16, s[{S_WS}:{S_WS+3}], s42 offen offset:16')
    L('P_NOTAB')
stamp('stamp')
copyout(1, [48 + 4*j for j in range(RC)], [TT, TT + 1, TT + 2])
if OPT['tab']: tabgen()
stamp('stamp')
if OPT['stamp'] >= 0: A('s_waitcnt vmcnt(0)')
stamp('stamp')
stamp_flush('stamp', 50, TT, OPT.get('swave', 0))
abs_end(87, 64, 0, 16)
L('P_END')
A('s_endpgm')

st2n = [0]
def stamp2():
    if OPT['stamp2'] < 0: return
    n = st2n[0]; st2n[0] += 1
    A(OPT.get('clk','s_memtime').replace(' ','_') + ' s[4:5]')
    A('s_waitcnt lgkmcnt(0)')
    A(f'v_writelane_b32 v127, s4, {n+2}')
khead('acc_kernel')
A('s_cmp_ge_u32 s2, 256')
A('s_cbranch_scc1 Q_END')
abs_start(127)
A('s_load_dwordx2 s[4:5], s[0:1], 0')
A('s_load_dwordx2 s[6:7], s[0:1], 104')
if OPT['pp']: A('s_setprio 3')
S_M, S_WS = 8, 12
A('s_and_b32 s3, s2, 7')
A('s_lshl_b32 s3, s3, 5')
A('s_lshr_b32 s16, s2, 3')
A('s_add_u32 s3, s3, s16')
VTB = 5; VOF = 8
VEB = VOF + 18
def EB(slot, s): return VEB + (slot * 2 + s) * 4
VG = VEB + 32
GP = [0]
def G(s, e): return VG + ((s + (GP[0] if s else 0)) * 3 + e) * 2
VCH = VG + 18
VT = VCH + 16
VA = VT + 6
VSH, VFC = VT + 10, VT + 11
VLA, VLB = VT + 12, VT + 13
VFB = VT + 14
VFG = VFB + 4
VL2 = VFG + 6
V3 = VL2
assert VFB % 2 == 0 and VL2 + 2 <= 126
def OF(s, k): return VOF + 9*s + k
def MK(slot, s, e): return 54 + slot * 12 + (s * 3 + e) * 2
A('v_and_b32 v1, 3, v0')
A('v_lshlrev_b32 v2, 4, v0')
A('v_lshrrev_b32 v3, 2, v0')
A('v_and_b32 v4, 1, v0')
A(f'v_mul_u32_u24 v{VT}, {OFS}, v3')
A(f'v_lshl_add_u32 v{VT+1}, v1, 4, v{VT}')
A(f'v_and_b32 v{VT}, -32, v{VT+1}')
A(f'v_and_b32 v{VT+2}, 63, v0')
A(f'v_lshlrev_b32 v{VT+2}, 2, v{VT+2}')
if not OPT['abst']: A('v_mov_b32 v127, 0')
A('s_lshl_b32 s17, s3, 6')
A(f's_add_u32 s17, s17, {OFF_BASE:#x}')
A(f's_mov_b32 s19, {MAX_BASE:#x}')
A('s_lshr_b32 s20, s3, 6')
A(f's_mul_i32 s20, s20, {NR*CHS}')
A(f's_add_u32 s20, s20, {MP_BASE:#x}')
A('v_cmp_gt_u32 s[22:23], 64, v0')
A('v_readfirstlane_b32 s21, v0')
A('s_nop 3')
A('s_lshl_b32 s50, s21, 4')
A('s_mov_b32 m0, s50')
A('s_waitcnt lgkmcnt(0)')
srd(S_M, 4, E * 8); srd(S_WS, 6, WS_BYTES)
TO = VG
A(f'buffer_load_dwordx4 v[{TO}:{TO+3}], v{VT+1}, s[{S_WS}:{S_WS+3}], s17 offen offset:64')
A(f'buffer_load_dword v{TO+4}, v{VT}, s[{S_WS}:{S_WS+3}], s17 offen offset:28')
A(f'buffer_load_dword v{VT+9}, v{VT+2}, s[{S_WS}:{S_WS+3}], s19 offen')
if OPT['pp']: A('s_setprio 1' if OPT['pp'] == 2 else 's_setprio 2')
stamp2()
INLOOP = [0]
ool = []
def chall(lastchk=False):
    sk = newlab('Q_C')
    if lastchk:
        A(f's_cmp_eq_u32 s33, {(NR-2)//4}')
        A('s_cselect_b64 exec, 1, -1')
    else: A('s_mov_b64 exec, -1')
    A(f's_cmp_ge_u32 s50, {(NBK-48)*1024}')
    A(f's_cbranch_scc1 {sk}')
    A(f's_add_u32 s21, s20, {3*16384}')
    if not (OPT['skip_ch'] and INLOOP[0]): A(f'buffer_load_dwordx4 v[{VCH+12}:{VCH+15}], v2, s[{S_WS}:{S_WS+3}], s21 offen {OPT["ld_ch"]}')
    L(sk)
    for j in range(3):
        A(f's_add_u32 s21, s20, {j*16384}')
        if not (OPT['skip_ch'] and INLOOP[0]): A(f'buffer_load_dwordx4 v[{VCH+4*j}:{VCH+4*j+3}], v2, s[{S_WS}:{S_WS+3}], s21 offen {OPT["ld_ch"]}')
    A(f's_add_u32 s20, s20, {CHS}')
def fill():
    if OPT['skip_fill']: return
    sk = newlab('Q_F')
    A('s_mov_b64 exec, -1')
    for j in range(4):
        if j == 3:
            A(f's_cmp_ge_u32 s50, {(NBK-48)*1024}')
            A(f's_cbranch_scc1 {sk}')
        for k in range(4): A(f'ds_write_addtid_b32 v{VCH+4*j+k} offset:{j*16384+256*k}')
    L(sk)
chall()
A(f's_mov_b32 s16, {2*RS}')
A(f'v_mul_lo_u32 v{VTB}, v3, s16')
A(f'v_add_u32 v{VTB+1}, {RS}, v{VTB}')
A('v_cmp_eq_u32 s[36:37], 3, v1')
A('v_and_b32 v4, 63, v0')
A('v_lshlrev_b32 v1, 2, v1')
A('s_mov_b32 s44, 0')
A('s_lshr_b32 s45, s3, 6')
A(f's_mul_i32 s45, s45, {NR*CHI*8}')
A(f'v_add_u32 v3, {L_A}, v2')
z = VEB + 28
for r in range(4): A(f'v_mov_b32 v{z+r}, 0')
for j in range(4): A(f'ds_write_b128 v3, v[{z}:{z+3}] offset:{j*16384}')
A(f'v_add_u32 v{VT+6}, 65536, v3')
for j in range(2): A(f'ds_write_b128 v{VT+6}, v[{z}:{z+3}] offset:{j*16384}')
A('s_movk_i32 s16, 106')
A('v_cmp_gt_u32 s[24:25], s16, v0')
A('s_mov_b64 exec, s[24:25]')
A(f'ds_write_b128 v{VT+6}, v[{z}:{z+3}] offset:{2*16384}')
A('s_mov_b64 exec, -1')
A(f'v_mov_b32 v126, {L_SC2}')
VONE = VSH
A('s_mov_b64 exec, 1')
A(f'ds_write_b128 v126, v[{z}:{z+3}]')
A('s_mov_b64 exec, -1')
A('s_mov_b32 s30, 0xffff0000')
A(f's_mov_b32 s31, {L_A}')
A('s_mov_b32 s35, 0xfc000000')
A(f'v_mov_b32 v{VSH}, 18')
A(f'v_mov_b32 v{V3}, 3')
A(f'v_mov_b32 v{VFC}, 0xfffc')
A('s_waitcnt vmcnt(3)')
for s_ in range(2):
    for k in range(9):
        ln = 2*s_ + (1 if k >= 5 else 0)
        src = TO + ((k - 1) % 4 if k > 0 else 4)
        A(f'v_mov_b32_dpp v{OF(s_,k)}, v{src} quad_perm:[{ln},{ln},{ln},{ln}] row_mask:0xf bank_mask:0xf')

def pfcalc(s_, r, masks=True):
    slot = r % 4
    r0, h0, r1, h1 = (r + 1) >> 1, (r + 1) & 1, (r + 2) >> 1, r & 1
    y, d, ln, ad = VT, VT + 7, VT + 8, VA
    a, b = OF(s_, r0), OF(s_, r1)
    m = [MK(slot, s_, k) for k in range(3)]
    A('s_mov_b64 exec, -1')
    A(f'v_and_b32_sdwa v{y}, v{a}, v{VFC} {SD} src0_sel:WORD_{h0} src1_sel:DWORD')
    A(f'v_sub_u32_sdwa v{ln}, v{b}, v{a} {SD} src0_sel:WORD_{h1} src1_sel:WORD_{h0}')
    A(f'v_add_u32 v{y}, v{y}, v1')
    A(f'v_sub_u32_sdwa v{d}, v{y}, v{a} {SD} src0_sel:DWORD src1_sel:WORD_{h0}')
    A(f'v_lshl_add_u32 v{ad}, v{y}, 2, v{VTB+s_}')
    if masks:
        A(f'v_cmp_lt_u32 s[{m[0]}:{m[0]+1}], v{d}, v{ln}')
        A(f'v_add_u32 v{d}, 1, v{d}')
        A(f'v_cmp_lt_u32 s[{m[1]}:{m[1]+1}], v{d}, v{ln}')
        A(f'v_add_u32 v{d}, 1, v{d}')
        A(f'v_cmp_lt_u32 s[{m[2]}:{m[2]+1}], v{d}, v{ln}')
def pf1(s_, r, live=False, det=True):
    slot = r % 4
    m = [MK(slot, s_, k) for k in range(3)]
    e = EB(slot, s_)
    pfcalc(s_, r)
    A(f's_or_b64 vcc, s[{m[0]}:{m[0]+1}], s[{m[1]}:{m[1]+1}]')
    A(f's_or_b64 vcc, vcc, s[{m[2]}:{m[2]+1}]')
    if live: A('s_and_b64 vcc, vcc, s[18:19]')
    A('s_or_b64 exec, vcc, 1' if not OPT['skip_pf'] else 's_mov_b64 exec, -1')
    if not (OPT['skip_pf'] and INLOOP[0]): A(f'buffer_load_dwordx4 v[{e}:{e+3}], v{VA}, s[{S_WS}:{S_WS+3}], 0 offen {OPT["ld_ent"]}')
def xl(r):
    A('s_mov_b64 exec, -1')
    A(f's_add_u32 s47, s46, {r}')
    A(f'v_cmp_eq_u32 vcc, s47, v{VLB}')
    A('s_or_b64 exec, vcc, s[48:49]')
    A(f'buffer_load_dwordx4 v[{VFB}:{VFB+3}], v{VLA}, s[{S_WS}:{S_WS+3}], 0 offen')
def xg(r):
    A('s_mov_b64 exec, -1')
    A(f's_add_u32 s47, s46, {r}')
    A(f'v_cmpx_eq_u32 vcc, s47, v{VLB}')
    for e in range(3): gaddr(VFB + e, VFG + 2*e)
    for e in range(3):
        A(f's_and_b64 exec, vcc, s[{40+2*e}:{41+2*e}]')
        if not OPT['skip_g']: A(f'ds_read_b64 v[{VFG+2*e}:{VFG+2*e+1}], v{VFG+2*e}')
def xs():
    for e in range(3):
        A(f's_mov_b64 exec, s[{40+2*e}:{41+2*e}]')
        scat1(VFB + e, VFB + 3, e, VFG + 2*e)

def gath1(w, g):
    A(f'v_lshlrev_b32 v{g}, 3, v{w}')
    A(f'v_and_b32 v{g}, 0xfff8, v{g}')
    if not OPT['skip_g']: A(f'ds_read_b64 v[{g}:{g+1}], v{g}')

def scat1(w, xr, e, g, wait=False):
    x, ad = VT, VT + 1
    p0, p2 = VT + 2, VT + 4
    A(f'v_lshlrev_b32_sdwa v{x}, v{VSH}, v{xr} {SD} src0_sel:DWORD src1_sel:BYTE_{e}')
    A(f'v_lshlrev_b32 v{p2}, 16, v{g+1}')
    A(f'v_and_b32 v{p2+1}, s30, v{g+1}')
    A(f'v_and_or_b32 v{x}, v{w}, s35, v{x}')
    A(f'v_bfe_u32 v{ad}, v{w}, 13, 13')
    A(f'v_lshlrev_b32 v{p0}, 16, v{g}')
    A(f'v_and_b32 v{p0+1}, s30, v{g}')
    for r in (p2, p2 + 1, p0, p0 + 1):
        A(f'v_fma_mix_f32 v{r}, v{r}, v{x}, s{26 if r == p0 else 28} op_sel:[0,1,0] op_sel_hi:[0,1,0]')
        if r == p2: A(f'v_lshl_add_u32 v{ad}, v{ad}, 3, s31')
        if r == p2 + 1:
            if wait: A('s_waitcnt lgkmcnt(0)')
            A(f'ds_add_u64 v{ad}, v[{p2}:{p2+1}] offset:{L_ARB}')
    A(f'v_add_u32 v{p0}, s34, v{p0}')
    A(f'ds_add_u64 v{ad}, v[{p0}:{p0+1}]')

def gaddr(w, g):
    A(f'v_lshlrev_b32_sdwa v{g}, v{V3}, v{w} dst_sel:WORD_0 dst_unused:UNUSED_PAD src0_sel:DWORD src1_sel:DWORD')
def Gset(r, s_):
    slot = r % 4
    GP[0] = (r & 1) if OPT['nd'] else 0
    A('s_mov_b64 exec, -1')
    for e in range(3): gaddr(EB(slot, s_) + e, G(s_, e))
    for e in range(3):
        m = MK(slot, s_, e); g = G(s_, e)
        A(f's_mov_b64 exec, s[{m}:{m+1}]')
        if not OPT['skip_g']: A(f'ds_read_b64 v[{g}:{g+1}], v{g}')
def Sset(r, s_, hooks={}, w0=False):
    slot = r % 4
    GP[0] = (r & 1) if OPT['nd'] else 0
    for e in range(3):
        if e in hooks: hooks[e]()
        m = MK(slot, s_, e)
        A(f's_mov_b64 exec, s[{m}:{m+1}]')
        b = EB(slot, s_)
        if not OPT['skip_s']: scat1(b + e, b + 3, e, G(s_, e), w0 and e == 0)

A(f'v_mov_b32 v{VT+1}, 0')
pf1(0, 0, det=False); pf1(1, 0, det=False); pf1(0, 1, det=False)
A('s_mov_b64 exec, -1')
A(f'v_max_u32_sdwa v{VT+2}, v{VT+9}, v{VT+9} {SD} src0_sel:BYTE_0 src1_sel:BYTE_1')
A(f'v_max_u32_sdwa v{VT+3}, v{VT+9}, v{VT+9} {SD} src0_sel:BYTE_2 src1_sel:BYTE_3')
A(f'v_max_u32 v{VT+9}, v{VT+2}, v{VT+3}')
dpp_scan('v_max_u32', VT + 9)
A('s_nop 1')
A(f'v_readlane_b32 s29, v{VT+9}, 63')
for s_ in range(2):
    A(f'v_lshrrev_b32 v{VT+2}, 16, v{OF(s_,0)}')
    A(f'v_lshrrev_b32 v{VT+3}, 18, v{OF(s_,0)}')
    A(f'v_sub_u32 v{VT+2}, v{VT+2}, v{VT+3}')
    A(f'v_lshrrev_b32 v{VT+3}, 18, v{OF(s_,8)}')
    A(f'v_add_u32 v{VT+2}, v{VT+2}, v{VT+3}')
    A(f'v_lshrrev_b32 v{VT+3}, 16, v{OF(s_,8)}')
    A(f'v_sub_u32 v{VT+4+s_}, v{VT+2}, v{VT+3}')
A(f'v_add_u32 v{VT+2}, v{VT+4}, v{VT+5}')
dpp_scan('v_add_u32', VT + 2)
A('s_nop 1')
A(f'v_readlane_b32 s32, v{VT+2}, 63')
A('s_min_u32 s27, s29, 249')
A('s_add_u32 s28, s27, 2')
A('s_lshl_b32 s28, s28, 23')
A('s_or_b32 s28, s28, 0x400000')
A('s_add_u32 s26, s27, 5')
A('s_lshl_b32 s26, s26, 23')
A('s_sub_u32 s34, 0x4000000, s26')
A('s_or_b32 s26, s26, 0x80000')
if OPT['detp'] == 0:
    PV, TBL, CBL, LW = VFB, VFB + 1, VFB + 2, VFB + 3
    D0, D1 = VFG, VFG + 1
    A('s_mov_b64 exec, -1')
    A(f'v_mov_b32_dpp v{PV}, v{TO+3} quad_perm:[0,0,2,2] row_mask:0xf bank_mask:0xf')
    A(f'v_and_b32 v{CBL}, 1, v0')
    A(f'v_cmp_eq_u32 vcc, 0, v{CBL}')
    A(f'v_lshlrev_b32 v{CBL}, 5, v{CBL}')
    A('v_cmp_lt_u32 s[38:39], 4, v1')
    A(f'v_cndmask_b32 v{PV}, v{PV}, v{TO+4}, vcc')
    A('s_nop 0')
    A(f'v_cndmask_b32 v{TBL}, v{VTB}, v{VTB+1}, s[38:39]')
    A(f'v_add_u32 v{TBL}, 64, v{TBL}')
    A('s_mov_b32 s46, s50')
    for t in range(8):
        sa, ha = (PV, 1) if t == 0 else (TO + (t - 1) // 2, (t - 1) & 1)
        sb, hb = TO + t // 2, t & 1
        nx = newlab('Q_D'); lp = newlab('Q_D')
        y, rem = VT, VT + 1
        A(f'v_and_b32_sdwa v{y}, v{sa}, v{VFC} {SD} src0_sel:WORD_{ha} src1_sel:DWORD')
        A(f'v_sub_u32_sdwa v{rem}, v{sb}, v{y} {SD} src0_sel:WORD_{hb} src1_sel:DWORD')
        A(f'v_cmpx_lt_i32 vcc, 16, v{rem}')
        A(f's_cbranch_execz {nx}')
        A(f'v_lshl_add_u32 v{D0}, v{y}, 2, v{TBL}')
        A(f'v_subrev_u32 v{rem}, 16, v{rem}')
        L(lp)
        A(f'v_mbcnt_lo_u32_b32 v{LW}, exec_lo, 0')
        A(f'v_mbcnt_hi_u32_b32 v{LW}, exec_hi, v{LW}')
        A(f'v_min_u32 v{D1}, 3, v{rem}')
        A(f'v_add_u32 v{LW}, s44, v{LW}')
        A(f'v_add3_u32 v{D1}, v{D1}, v{CBL}, s47' if False else f'v_add_u32 v{D1}, v{D1}, v{CBL}')
        if t: A(f'v_add_u32 v{D1}, {t*4}, v{D1}')
        A('s_bcnt1_i32_b64 s47, exec')
        A(f'v_min_u32 v{LW}, 63, v{LW}')
        A('s_add_u32 s44, s44, s47')
        A(f'v_lshl_add_u32 v{LW}, v{LW}, 3, s46')
        A(f'ds_write_b64 v{LW}, v[{D0}:{D1}]')
        A(f'v_cmpx_lt_i32 vcc, 4, v{rem}')
        A(f's_cbranch_execz {nx}')
        A('s_cmp_ge_u32 s44, 64')
        A(f's_cbranch_scc1 {nx}')
        A(f'v_add_u32 v{D0}, 16, v{D0}')
        A(f'v_subrev_u32 v{rem}, 4, v{rem}')
        A(f's_branch {lp}')
        L(nx)
        A('s_mov_b64 exec, -1')
    A(f'v_lshl_add_u32 v{LW}, v4, 3, s46')
    A(f'ds_read_b64 v[{VLA}:{VLB}], v{LW}')
    A('v_cmp_gt_u32 s[38:39], s44, v4')
    A('s_waitcnt lgkmcnt(0)')
    A(f'v_and_b32 v{LW}, 3, v{VLB}')
    A(f'v_lshrrev_b32 v{VLB}, 2, v{VLB}')
    A(f'v_cndmask_b32 v{LW}, 0, v{LW}, s[38:39]')
    A(f'v_cndmask_b32 v{VLB}, -1, v{VLB}, s[38:39]')
    for e in range(3): A(f'v_cmp_lt_u32 s[{40+2*e}:{41+2*e}], {e}, v{LW}')
    A('s_mov_b32 s46, 0')
A('s_mov_b64 s[48:49], 1')
xl(0)
A('s_waitcnt vmcnt(4)')
fill()
chall()
A('s_mov_b32 s33, 0')
A('s_waitcnt vmcnt(3) lgkmcnt(0)')
stamp2()
A('s_barrier')
Gset(0, 0); Gset(0, 1); xg(0)
if OPT['warm'] == 2:
    A('s_cmp_lg_u32 s50, 0')
    A('s_cbranch_scc1 Q_NOWARM')
    A('s_load_dwordx2 s[4:5], s[0:1], 24')
    A('s_load_dwordx2 s[6:7], s[0:1], 40')
    A('s_load_dwordx8 s[92:99], s[0:1], 56')
    A('s_mov_b64 exec, -1')
    A('s_mul_i32 s16, s2, 3200')
    A(f'v_lshl_add_u32 v{VT}, v4, 6, s16')
    A(f'v_min_u32 v{VT}, {E*2-4}, v{VT}')
    A('s_waitcnt lgkmcnt(0)')
    A(f'global_load_dword v125, v{VT}, s[4:5]')
    A('s_load_dword s16, s[6:7], 0')
    for k in range(4): A(f's_load_dword s{16+(k&1)}, s[{92+2*k}:{93+2*k}], 0')
    L('Q_NOWARM')
pf1(1, 1); pf1(1, 2); xl(1)
if OPT['skip_pf']:
    pf1(0, 2); pf1(0, 3); pf1(1, 3); A('s_waitcnt vmcnt(0)')
A('s_waitcnt vmcnt(3) lgkmcnt(0)')
stamp2()
INLOOP[0] = 1
L('Q_LOOP')
for r in range(4):
    ps = r & 1
    if r == 1: stamp2()
    A('s_barrier')
    if r == 1: stamp2()
    if r == (NR - 1) % 4:
        A(f's_cmp_eq_u32 s33, {(NR-1)//4}')
        A(f's_cbranch_scc1 Q_LAST')
    fill()
    chall(r == (NR - 2) % 4)
    nd = OPT['nd']
    hp = OPT['hp']
    Sset(r, 0, w0=nd > 0)
    A('s_waitcnt vmcnt(3)' if nd else 's_waitcnt vmcnt(3) lgkmcnt(0)')
    if r == 1: stamp2()
    A('s_barrier')
    if r == 1: stamp2()
    Gset(r + 1, 0)
    if nd == 2: Gset(r + 1, 1)
    xg(r + 1)
    Sset(r, 1, {int(hp[0]): lambda: pf1(ps, r + 2), int(hp[1]): lambda: (pf1(ps, r + 3), xl(r + 2))}, w0=nd == 2)
    if nd != 2: Gset(r + 1, 1)
    if r == 3:
        A('s_mov_b64 exec, -1')
        A('s_add_u32 s33, s33, 1')
        A('s_add_u32 s46, s46, 4')
        for s_ in range(2):
            for k in range(0, 7): A(f'v_mov_b32 v{OF(s_,k)}, v{OF(s_,k+2)}')
    A('s_waitcnt vmcnt(3)' if OPT['nd'] == 2 else 's_waitcnt vmcnt(3) lgkmcnt(0)')
A('s_branch Q_LOOP')
L('Q_LAST')
if OPT['warm'] == 1:
    A('s_cmp_lg_u32 s50, 0')
    A('s_cbranch_scc1 Q_NOWARM')
    A('s_load_dwordx2 s[4:5], s[0:1], 24')
    A('s_load_dwordx2 s[6:7], s[0:1], 40')
    A('s_load_dwordx8 s[56:63], s[0:1], 56' if (NR - 1) % 4 != 0 else 'ERR')
    A('s_mov_b64 exec, -1')
    A('s_mul_i32 s16, s2, 3200')
    A(f'v_lshl_add_u32 v{VT}, v4, 6, s16')
    A(f'v_min_u32 v{VT}, {E*2-4}, v{VT}')
    A('s_waitcnt lgkmcnt(0)')
    A(f'global_load_dword v{VCH}, v{VT}, s[4:5]')
    A('s_load_dword s16, s[6:7], 0')
    for k in range(4): A(f's_load_dword s{17+k}, s[{56+2*k}:{57+2*k}], 0')
    L('Q_NOWARM')
Sset((NR - 1) % 4, 0)
Sset((NR - 1) % 4, 1)
A('s_waitcnt vmcnt(0)')
xs()
A('s_mov_b64 exec, -1')
A('s_waitcnt lgkmcnt(0)')
stamp2()
A('s_barrier')
A('v_lshlrev_b32 v3, 3, v0')
A(f'v_add_u32 v7, {L_A}, v3')
RA = 8
for k in range(7):
    if k == 6: A('s_mov_b64 exec, s[24:25]')
    A(f'ds_read_b64 v[{RA+4*k}:{RA+4*k+1}], v7 offset:{k*8192}')
A('s_mov_b64 exec, -1')
A(f'v_add_u32 v4, {L_ARB}, v7')
for k in range(7):
    if k == 6: A('s_mov_b64 exec, s[24:25]')
    A(f'ds_read_b64 v[{RA+4*k+2}:{RA+4*k+3}], v4 offset:{k*8192}')
A('s_mov_b64 exec, -1')
A('s_lshr_b32 s16, s3, 6'); A(f's_mul_i32 s16, s16, {E*8}')
A('s_and_b32 s17, s3, 63'); A(f's_mul_i32 s17, s17, {CH*8}')
A('s_add_u32 s16, s16, s17'); A(f's_add_u32 s16, s16, {PART_BASE:#x}')
A('v_mov_b32 v5, 0')
A(f's_mov_b32 s36, {f32bits(2.0**-10):#x}')
A(f's_mov_b32 s37, {f32bits(2.0**-13):#x}')
A('s_mov_b32 s38, s37'); A('s_mov_b32 s39, s37')
A('s_sub_i32 s40, s27, 135')
A('v_mov_b32 v6, 1.0')
A('v_ldexp_f32 v6, v6, s40')
A('s_and_b32 s41, s3, 63')
A('s_lshl_b32 s41, s41, 2')
A('s_lshr_b32 s42, s3, 6')
A('s_add_u32 s41, s41, s42')
A('s_lshl_b32 s41, s41, 2')
A(f's_add_u32 s41, s41, {SCL_BASE:#x}')
A('v_cmp_eq_u32 vcc, 0, v0')
A('s_mov_b64 exec, vcc')
A(f'buffer_store_dword v6, v5, s[{S_WS}:{S_WS+3}], s41 offen')
A('s_mov_b64 exec, -1')
X = 40
for k in range(7):
    a0, a1, b0, b1 = RA + 4*k, RA + 4*k + 1, RA + 4*k + 2, RA + 4*k + 3
    c = X; P = X + 2; t = X + 4
    A(f's_waitcnt lgkmcnt({max(0,5-k)})')
    if k == 6: A('s_mov_b64 exec, s[24:25]')
    A(f'v_lshrrev_b32 v{c}, 26, v{a0}')
    A(f'v_and_b32 v{a0}, 0x3ffffff, v{a0}')
    A(f'v_mad_u64_u32 v[{P}:{P+1}], vcc, v{c}, s28, 0')
    A(f'v_lshlrev_b32 v{t}, 19, v{c}')
    A(f'v_add_u32 v5, v5, v{c}')
    A(f'v_sub_u32 v{a0}, v{a0}, v{t}')
    A(f'v_sub_u32 v{a1}, v{a1}, v{P}')
    A(f'v_add_u32 v{P+1}, v{P+1}, v{P}')
    A(f'v_sub_co_u32 v{b0}, vcc, v{b0}, v{P}')
    A(f'v_cvt_f32_i32 v{a0}, v{a0}')
    A(f'v_cvt_f32_i32 v{a1}, v{a1}')
    A(f'v_subb_co_u32 v{b1}, vcc, v{b1}, v{P+1}, vcc')
    A(f'v_ashrrev_i32 v{t}, 31, v{b0}')
    A(f'v_cvt_f32_i32 v{b0}, v{b0}')
    A(f'v_sub_u32 v{b1}, v{b1}, v{t}')
    A(f'v_pk_mul_f32 v[{a0}:{a1}], v[{a0}:{a1}], s[36:37]')
    A(f'v_cvt_f32_i32 v{b1}, v{b1}')
    A(f'v_cvt_pk_f16_f32 v{a0}, v{a0}, v{a1}')
    A(f'v_pk_mul_f32 v[{b0}:{b1}], v[{b0}:{b1}], s[38:39]')
    A(f'v_cvt_pk_f16_f32 v{a1}, v{b0}, v{b1}')
    A(f'buffer_store_dwordx2 v[{a0}:{a1}], v3, s[{S_WS}:{S_WS+3}], s16 offen {OPT["st_part"]}')
    A('s_add_u32 s16, s16, 8192')
A('s_mov_b64 exec, -1')
dpp_scan('v_add_u32', 5)
A('s_nop 1')
A('v_readlane_b32 s42, v5, 63')
A('s_nop 3')
A('s_lshl_b32 s42, s42, 2')
A('s_add_u32 s42, s42, s32')
A('v_mov_b32 v6, s42')
A('v_mov_b32 v7, s32')
A('s_mov_b64 exec, 1')
A('ds_add_u32 v126, v6')
A('ds_sub_u32 v126, v7 offset:4')
A('s_mov_b64 exec, -1')
A('s_waitcnt lgkmcnt(0)')
A('s_barrier')
A('ds_read_b64 v[6:7], v126')
A('s_waitcnt lgkmcnt(0)')
A('v_readfirstlane_b32 s42, v6')
A('v_readfirstlane_b32 s43, v7')
A('s_nop 3')
if OPT['forcefb'] == 1: A('s_mov_b32 s42, 1')
if OPT['forcefb'] == -1: A('s_mov_b32 s42, 0')
A('s_cmp_gt_u32 s29, 249')
A('s_cselect_b32 s42, 1, s42')
A('s_cmp_eq_u32 s42, 0')
A('s_cbranch_scc1 Q_FIN')
A('s_waitcnt vmcnt(0)')
A('s_min_u32 s27, s29, 254')
A('s_add_u32 s45, s27, 923')
A('s_lshl_b32 s45, s45, 20')
A('s_or_b32 s45, s45, 0x80000')
A('s_mov_b32 s44, 0')
A('s_lshr_b32 s43, s43, 2')
A('s_flbit_i32_b32 s46, s43')
A('s_max_i32 s46, s46, 0')
A('s_sub_u32 s46, 32, s46')
A('s_sub_i32 s47, -11, s46')
A('s_add_u32 s40, s27, s46')
A('s_sub_i32 s40, s40, 141')
A('v_mov_b32 v6, 1.0')
A('v_ldexp_f32 v6, v6, s40')
A('v_mov_b32 v5, 0')
A('v_cmp_eq_u32 vcc, 0, v0')
A('s_mov_b64 exec, vcc')
A(f'buffer_store_dword v6, v5, s[{S_WS}:{S_WS+3}], s41 offen')
A('s_mov_b64 exec, -1')
A('v_lshrrev_b32 v8, 1, v0')
A('v_lshrrev_b32 v9, 2, v0')
A(f'v_mul_u32_u24 v9, {OFS}, v9')
A('v_and_b32 v39, 1, v8')
A('v_lshl_add_u32 v9, v39, 5, v9')
A(f's_mov_b32 s16, {RS}')
A('v_mul_lo_u32 v8, v8, s16')
A('v_and_b32 v10, 1, v0')
for r in range(12, 16): A(f'v_mov_b32 v{r}, 0')
A('v_add_u32 v11, 65536, v2')
A('s_mov_b32 s48, 0')
L('Q_FH')
A('s_barrier')
for j in range(4): A(f'ds_write_b128 v2, v[12:15] offset:{j*16384}')
for j in range(2): A(f'ds_write_b128 v11, v[12:15] offset:{j*16384}')
A('s_mov_b64 exec, s[24:25]')
A(f'ds_write_b128 v11, v[12:15] offset:{2*16384}')
A('s_mov_b64 exec, -1')
A('s_waitcnt lgkmcnt(0)')
A('s_barrier')
A('s_lshl_b32 s49, s3, 6')
A(f's_add_u32 s49, s49, {OFF_BASE:#x}')
A(f'buffer_load_ushort v17, v9, s[{S_WS}:{S_WS+3}], s49 offen offset:30')
A('s_waitcnt vmcnt(0)')
A('s_lshr_b32 s50, s3, 6')
A(f's_mul_i32 s50, s50, {NR*CHI*8}')
A('s_mov_b32 s51, 0')
L('Q_FR')
A('v_add_u32 v16, v17, v10')
A(f'buffer_load_ushort v17, v9, s[{S_WS}:{S_WS+3}], s49 offen offset:64')
A('s_waitcnt vmcnt(0)')
L('Q_FI')
A('v_cmp_lt_u32 vcc, v16, v17')
A('s_and_b64 exec, exec, vcc')
A('s_cbranch_execz Q_FRN')
A('s_mov_b64 s[52:53], exec')
A('v_and_b32 v18, 3, v16')
A('v_lshl_add_u32 v19, v16, 2, v8')
A('v_or_b32 v20, 3, v16')
A('v_lshl_add_u32 v20, v20, 2, v8')
A('v_add_u32 v20, v20, v18')
A(f'buffer_load_dword v21, v19, s[{S_WS}:{S_WS+3}], 0 offen')
A(f'buffer_load_ubyte v22, v20, s[{S_WS}:{S_WS+3}], 0 offen')
A('s_waitcnt vmcnt(0)')
A('v_bfe_u32 v23, v21, 13, 13')
A('v_subrev_u32 v23, s48, v23')
A('s_movk_i32 s16, 3125')
A('v_cmp_gt_u32 vcc, s16, v23')
A('v_cmp_ne_u32 s[54:55], 3, v18')
A('s_and_b64 vcc, vcc, s[54:55]')
A('v_bfe_u32 v24, v21, 0, 13')
A('v_lshlrev_b32 v24, 3, v24')
A('s_and_b64 exec, exec, vcc')
A('s_cbranch_execz Q_FIN2')
A(f'buffer_load_dwordx2 v[26:27], v24, s[{S_M}:{S_M+3}], s50 offen')
A('v_lshlrev_b32 v22, 2, v22')
A('v_lshrrev_b32 v25, 16, v21')
A('v_and_b32 v25, 0xfc00, v25')
A('v_or_b32 v25, v25, v22')
A('v_cvt_f32_f16 v25, v25')
A('v_cvt_f64_f32 v[28:29], v25')
A('v_lshlrev_b32 v23, 3, v23')
A('v_add_u32 v38, 50000, v23')
A('s_waitcnt vmcnt(0)')
A('v_lshlrev_b32 v30, 16, v26'); A('v_and_b32 v32, s30, v26')
A('v_lshlrev_b32 v34, 16, v27'); A('v_and_b32 v36, s30, v27')
for j, r in enumerate((30, 32, 34, 36)):
    A(f'v_cvt_f64_f32 v[{r}:{r+1}], v{r}')
    A(f'v_fma_f64 v[{r}:{r+1}], v[{r}:{r+1}], v[28:29], s[44:45]')
    A(f'ds_add_u64 v{23 if j < 2 else 38}, v[{r}:{r+1}] offset:{(j & 1) * 25000}')
L('Q_FIN2')
A('s_mov_b64 exec, s[52:53]')
A('v_add_u32 v16, 2, v16')
A('s_branch Q_FI')
L('Q_FRN')
A('s_mov_b64 exec, -1')
A('s_add_u32 s49, s49, 2')
A(f's_add_u32 s50, s50, {CHI*8}')
A('s_add_u32 s51, s51, 1')
A('s_cmp_lt_u32 s51, 16')
A('s_cbranch_scc1 Q_FR')
A('s_waitcnt lgkmcnt(0)')
A('s_barrier')
A('s_lshr_b32 s16, s3, 6'); A(f's_mul_i32 s16, s16, {E*8}')
A('s_and_b32 s17, s3, 63'); A(f's_mul_i32 s17, s17, {CH*8}')
A('s_add_u32 s16, s16, s17'); A(f's_add_u32 s16, s16, {PART_BASE:#x}')
A('s_lshl_b32 s17, s48, 3'); A('s_add_u32 s16, s16, s17')
A('s_mov_b32 s52, 0'); A('s_mov_b32 s53, 0x41f00000')
A('v_mov_b32 v16, v3')
L('Q_FC')
A('s_movk_i32 s17, 25000')
A('v_cmp_gt_u32 vcc, s17, v16')
A('s_and_b64 exec, exec, vcc')
A('s_cbranch_execz Q_FCD')
A('v_add_u32 v17, 50000, v16')
for j in range(4):
    A(f'ds_read_b64 v[{18+2*j}:{19+2*j}], v{16 if j < 2 else 17} offset:{(j & 1) * 25000}')
A('s_waitcnt lgkmcnt(0)')
for j in range(4):
    lo, hi = 18 + 2*j, 19 + 2*j
    A(f'v_bfe_i32 v{hi}, v{hi}, 0, 19')
    A(f'v_cvt_f64_u32 v[26:27], v{lo}')
    A(f'v_cvt_f64_i32 v[28:29], v{hi}')
    A('v_fma_f64 v[26:27], v[28:29], s[52:53], v[26:27]')
    A('v_ldexp_f64 v[26:27], v[26:27], s47')
    A(f'v_cvt_f32_f64 v{30+j}, v[26:27]')
A('v_cvt_pk_f16_f32 v34, v30, v31')
A('v_cvt_pk_f16_f32 v35, v32, v33')
A(f'buffer_store_dwordx2 v[34:35], v16, s[{S_WS}:{S_WS+3}], s16 offen')
A('v_add_u32 v16, 8192, v16')
A('s_branch Q_FC')
L('Q_FCD')
A('s_mov_b64 exec, -1')
A('s_add_u32 s48, s48, 3125')
A('s_cmp_lt_u32 s48, 6250')
A('s_cbranch_scc1 Q_FH')
L('Q_FIN')
stamp2()
if OPT['stamp2'] >= 0:
    A('s_waitcnt vmcnt(0)')
    stamp2()
    A('v_readfirstlane_b32 s54, v0')
    A('s_nop 3')
    A(f's_cmp_lg_u32 s2, {OPT["stamp2"]}')
    A('s_cbranch_scc1 Q_END')
    A(f's_cmp_lg_u32 s54, {64*OPT.get("swave", 0)}')
    A('s_cbranch_scc1 Q_END')
    A('s_load_dwordx2 s[4:5], s[0:1], 96')
    A('s_waitcnt lgkmcnt(0)')
    srd(72, 4, 256)
    A('v_readlane_b32 s54, v127, 2')
    A('v_and_b32 v4, 63, v0')
    A('v_lshlrev_b32 v4, 2, v4')
    A('v_subrev_u32 v127, s54, v127')
    A('buffer_store_dword v127, v4, s[72:75], 0 offen')
abs_end(127, 64, 1, 16)
L('Q_END')
A('s_endpgm')

NE = OPT['ne']
khead('fin_kernel')
A(f's_cmp_ge_u32 s2, {G3}')
A('s_cbranch_scc1 F_END')
abs_start(1)
A('s_load_dwordx2 s[4:5], s[0:1], 0')
A('s_load_dwordx2 s[6:7], s[0:1], 104')
A('s_load_dwordx2 s[8:9], s[0:1], 24')
A('s_load_dwordx2 s[10:11], s[0:1], 88')
A('s_load_dwordx2 s[28:29], s[0:1], 40')
A('s_load_dwordx8 s[64:71], s[0:1], 56')
S_M, S_WS, S_DIST, S_O = 12, 16, 20, 24
if not OPT['adj']:
    A(f's_mul_i32 s3, s2, {256*NE}')
    VB = 2
    def R(i, n): return VB + 40 * i + n
    for i in range(NE):
        e, t = R(i, 1), R(i, 2)
        A(f'v_add_u32 v{e}, s3, v0')
        if i: A(f'v_add_u32 v{e}, {256*i}, v{e}')
        A(f'v_lshlrev_b32 v{R(i,3)}, 1, v{e}')
        A(f'v_min_u32 v{t}, {E-1}, v{e}')
        A(f'v_lshlrev_b32 v{R(i,0)}, 3, v{t}')
        A(f'v_mul_hi_u32_u24 v{t}, {MAGIC_DIV:#x}, v{t}')
        A(f'v_lshlrev_b32 v{t}, 4, v{t}')
        A(f'v_lshlrev_b32 v{e}, 3, v{e}')
    A('s_waitcnt lgkmcnt(0)')
    srd(S_DIST, 8, E * 2)
    for i in range(NE):
        A(f'buffer_load_ushort v{R(i,3)}, v{R(i,3)}, s[{S_DIST}:{S_DIST+3}], 0 offen')
    if not OPT['tab']:
        A('s_load_dwordx4 s[28:31], s[28:29], 0')
        A('s_load_dwordx16 s[32:47], s[64:65], 0')
        A('s_load_dwordx16 s[48:63], s[66:67], 0')
    A('s_load_dwordx8 s[72:79], s[70:71], 0')
    A('s_load_dwordx8 s[64:71], s[68:69], 0')
    srd(S_WS, 6, WS_BYTES); srd(S_M, 4, E * 8); srd(S_O, 10, E * 8)
    for i in range(NE):
        A(f's_mov_b32 s4, {SCL_BASE:#x}')
        A(f'buffer_load_dwordx4 v[{R(i,6)}:{R(i,9)}], v{R(i,2)}, s[{S_WS}:{S_WS+3}], s4 offen')
        for p in range(4):
            A(f's_mov_b32 s4, {PART_BASE + p*E*8:#x}')
            A(f'buffer_load_dwordx2 v[{R(i,32+2*p)}:{R(i,33+2*p)}], v{R(i,0)}, s[{S_WS}:{S_WS+3}], s4 offen {OPT["ld_part"]}')
        A(f'buffer_load_dwordx2 v[{R(i,4)}:{R(i,5)}], v{R(i,1)}, s[{S_M}:{S_M+3}], 0 offen')
else:
    assert NE == 2 and not OPT['tab']
    A('s_lshl_b32 s3, s2, 8')
    VB = 2
    PQ, MQ, OQ, SC = 84, 100, 104, 8
    def R(i, n):
        if 32 <= n < 40: return PQ + ((n - 32) // 2) * 4 + 2 * i + (n & 1)
        if n in (4, 5): return MQ + 2 * i + (n - 4)
        if n in (30, 31): return OQ + 2 * i + (n - 30)
        if 6 <= n < 10: return VB + n
        return VB + 40 * i + n
    e, t = R(0, 1), R(0, 2)
    A(f'v_add_u32 v{e}, s3, v0')
    A(f'v_lshlrev_b32 v{R(0,3)}, 2, v{e}')
    A(f'v_min_u32 v{t}, {E//2-1}, v{e}')
    A(f'v_lshlrev_b32 v{R(0,0)}, 4, v{t}')
    A(f'v_lshlrev_b32 v{t}, 1, v{t}')
    A(f'v_mul_hi_u32_u24 v{t}, {MAGIC_DIV:#x}, v{t}')
    A(f'v_lshlrev_b32 v{t}, 4, v{t}')
    A(f'v_lshlrev_b32 v{e}, 4, v{e}')
    A('s_waitcnt lgkmcnt(0)')
    srd(S_DIST, 8, E * 2)
    A(f'buffer_load_dword v{R(0,3)}, v{R(0,3)}, s[{S_DIST}:{S_DIST+3}], 0 offen')
    A('s_load_dwordx4 s[28:31], s[28:29], 0')
    A('s_load_dwordx16 s[32:47], s[64:65], 0')
    A('s_load_dwordx16 s[48:63], s[66:67], 0')
    A('s_load_dwordx8 s[72:79], s[70:71], 0')
    A('s_load_dwordx8 s[64:71], s[68:69], 0')
    srd(S_WS, 6, WS_BYTES); srd(S_M, 4, E * 8); srd(S_O, 10, E * 8)
    for p in range(4):
        A(f's_mov_b32 s4, {PART_BASE + p*E*8:#x}')
        A(f'buffer_load_dwordx4 v[{PQ+4*p}:{PQ+4*p+3}], v{R(0,0)}, s[{S_WS}:{S_WS+3}], s4 offen {OPT["ld_part"]}')
    A(f's_mov_b32 s4, {SCL_BASE:#x}')
    A(f'buffer_load_dwordx4 v[{SC}:{SC+3}], v{t}, s[{S_WS}:{S_WS+3}], s4 offen')
    A(f'buffer_load_dwordx4 v[{MQ}:{MQ+3}], v{e}, s[{S_M}:{S_M+3}], 0 offen')
A('s_mov_b32 s5, 0xffff0000')
A(f's_mov_b32 s8, {f32bits(-10.0):#x}')
A(f's_mov_b32 s9, {f32bits(math.log2(math.e)):#x}')
def sw(base, idx, dst):
    sr = base + idx // 2
    if idx & 1: A(f's_and_b32 s{dst}, s{sr}, 0xffff0000')
    else: A(f's_lshl_b32 s{dst}, s{sr}, 16')
def spk(base, r, d, dst):
    op = 's_pack_hh_b32_b16' if d & 1 else 's_pack_ll_b32_b16'
    A(f'{op} s{dst}, s{base + r*2 + d//2}, s{base + (r+1)*2 + d//2}')
def unp(a, b, t):
    A(f'v_lshlrev_b32 v{a}, 16, v{t}')
    A(f'v_and_b32 v{b}, s5, v{t}')
def rnd2(a, b, t):
    A(f'v_cvt_pk_bf16_f32 v{t}, v{a}, v{b}')
    unp(a, b, t)
if not OPT['tab']:
    if OPT['adj']:
        A('s_waitcnt vmcnt(6) lgkmcnt(0)')
        A(f'v_and_b32 v{R(1,3)}, s5, v{R(0,3)}')
        A(f'v_lshlrev_b32 v{R(0,3)}, 16, v{R(0,3)}')
    else:
        A(f's_waitcnt vmcnt({6*NE}) lgkmcnt(0)')
        for i in range(NE): A(f'v_lshlrev_b32 v{R(i,3)}, 16, v{R(i,3)}')
    for r in range(0, 8, 2):
        sw(28, r, 6); sw(28, r + 1, 7)
        for i in range(NE):
            a_, b_, t = R(i, 14), R(i, 15), R(i, 2)
            A(f'v_subrev_f32 v{a_}, s6, v{R(i,3)}')
            A(f'v_subrev_f32 v{b_}, s7, v{R(i,3)}')
            rnd2(a_, b_, t)
            A(f'v_mul_f32 v{a_}, v{a_}, v{a_}')
            A(f'v_mul_f32 v{b_}, v{b_}, v{b_}')
            rnd2(a_, b_, t)
            A(f'v_mul_f32 v{a_}, s8, v{a_}')
            A(f'v_mul_f32 v{b_}, s8, v{b_}')
            rnd2(a_, b_, t)
            A(f'v_mul_f32 v{a_}, s9, v{a_}')
            A(f'v_mul_f32 v{b_}, s9, v{b_}')
            A(f'v_exp_f32 v{a_}, v{a_}')
            A(f'v_exp_f32 v{b_}, v{b_}')
            A('s_nop 0')
            A(f'v_cvt_pk_bf16_f32 v{R(i,18+r//2)}, v{a_}, v{b_}')
    for r in range(0, 8, 2):
        for base, dst in ((48, 22), (32, 26)):
            for d in range(4):
                spk(base, r, d, 6 + (d & 1))
                for i in range(NE):
                    c = '0' if r == 0 else f'v{R(i,dst+d)}'
                    A(f'v_dot2_f32_bf16 v{R(i,dst+d)}, v{R(i,18+r//2)}, s{6+(d&1)}, {c}')
    A('s_nop 2')
    for i in range(NE):
        rnd2(R(i,26), R(i,27), R(i,2)); rnd2(R(i,28), R(i,29), R(i,2))
else:
    A(f's_waitcnt vmcnt({6*NE})')
    A(f's_mov_b32 s4, {TAB_BASE:#x}')
    for i in range(NE):
        A(f'v_lshlrev_b32 v{R(i,3)}, 5, v{R(i,3)}')
        A(f'buffer_load_dwordx4 v[{R(i,22)}:{R(i,25)}], v{R(i,3)}, s[{S_WS}:{S_WS+3}], s4 offen')
        A(f'buffer_load_dwordx2 v[{R(i,20)}:{R(i,21)}], v{R(i,3)}, s[{S_WS}:{S_WS+3}], s4 offen offset:16')
A(f's_waitcnt vmcnt({2*NE}) lgkmcnt(0)' if OPT['tab'] else 's_waitcnt vmcnt(0)')
for i in range(NE):
    for p in range(4):
        for d in range(4):
            c = '0' if p == 0 else f'v{R(i,14+d)}'
            A(f'v_fma_mix_f32 v{R(i,14+d)}, v{R(i,32+2*p+d//2)}, v{R(i,6+p)}, {c} op_sel:[{d&1},0,0] op_sel_hi:[1,0,0]')
for k in range(4):
    for d in range(4):
        sw(64, k*4 + d, 6 + (d & 1))
        for i in range(NE):
            if k == 0: A(f'v_mul_f32 v{R(i,10+d)}, s{6+(d&1)}, v{R(i,14+k)}')
            else: A(f'v_fmac_f32 v{R(i,10+d)}, s{6+(d&1)}, v{R(i,14+k)}')
if OPT['tab']:
    A('s_waitcnt vmcnt(0)')
    for i in range(NE):
        unp(R(i,26), R(i,27), R(i,20)); unp(R(i,28), R(i,29), R(i,21))
for i in range(NE):
    for d in range(4):
        A(f'v_mul_f32 v{R(i,10+d)}, v{R(i,10+d)}, v{R(i,22+d)}')
    A(f'v_cvt_pk_bf16_f32 v{R(i,18)}, v{R(i,10)}, v{R(i,11)}')
    A(f'v_cvt_pk_bf16_f32 v{R(i,19)}, v{R(i,12)}, v{R(i,13)}')
for k in (0, 2):
    for d in range(4):
        spk(72, k, d, 6 + (d & 1))
        for i in range(NE):
            c = '0' if k == 0 else f'v{R(i,22+d)}'
            A(f'v_dot2_f32_bf16 v{R(i,22+d)}, v{R(i,18+k//2)}, s{6+(d&1)}, {c}')
for i in range(NE):
    unp(R(i,10), R(i,11), R(i,4)); unp(R(i,12), R(i,13), R(i,5))
A('s_nop 0')
for i in range(NE):
    rnd2(R(i,22), R(i,23), R(i,2)); rnd2(R(i,24), R(i,25), R(i,2))
    for d in range(4):
        A(f'v_mul_f32 v{R(i,22+d)}, v{R(i,22+d)}, v{R(i,26+d)}')
    rnd2(R(i,22), R(i,23), R(i,2)); rnd2(R(i,24), R(i,25), R(i,2))
    for d in range(4):
        A(f'v_add_f32 v{R(i,22+d)}, v{R(i,22+d)}, v{R(i,10+d)}')
    A(f'v_cvt_pk_bf16_f32 v{R(i,30)}, v{R(i,22)}, v{R(i,23)}')
    A(f'v_cvt_pk_bf16_f32 v{R(i,31)}, v{R(i,24)}, v{R(i,25)}')
    if not OPT['adj']: A(f'buffer_store_dwordx2 v[{R(i,30)}:{R(i,31)}], v{R(i,1)}, s[{S_O}:{S_O+3}], 0 offen {OPT["st_out"]}')
if OPT['adj']: A(f'buffer_store_dwordx4 v[{OQ}:{OQ+3}], v{R(0,1)}, s[{S_O}:{S_O+3}], 0 offen {OPT["st_out"]}')
L('F_END')
A('s_endpgm')
L('CODE_END')

out.append('.section .rodata,"a"')
for name, vg, sg in (('part_kernel', 128, 102), ('acc_kernel', 128, 102), ('fin_kernel', 108 if OPT['adj'] else 4 + 40*OPT['ne'], 80)):
    out.append('.p2align 6')
    out.append(f'.amdhsa_kernel {name}')
    out.append(f'  .amdhsa_next_free_vgpr {vg}')
    out.append(f'  .amdhsa_next_free_sgpr {sg}')
    out.append(f'  .amdhsa_accum_offset {vg}')
    out.append('  .amdhsa_group_segment_fixed_size 0')
    out.append('  .amdhsa_kernarg_size 112')
    out.append('  .amdhsa_user_sgpr_count 2')
    out.append('  .amdhsa_user_sgpr_kernarg_segment_ptr 1')
    out.append('  .amdhsa_system_sgpr_workgroup_id_x 1')
    out.append('  .amdhsa_float_denorm_mode_32 3')
    out.append('.end_amdhsa_kernel')
open(sys.argv[1], 'w').write('\n'.join(out) + '\n')
```

```python
import struct, sys, math

E = 400000
T = 12800000
CH = 6250
S = 25000
NTILE = 512
NBLK = (S + 2) // 3
RS = 128 * (int([a for a in sys.argv[2:] if a.startswith('rsl=')][0][4:]) if any(a.startswith('rsl=') for a in sys.argv[2:]) else 1042)
OFS = 16448
OFF_BASE = 0x4400000
MAX_BASE = 0x4C00000
SCL_BASE = 0x4C01000
PART_BASE = 0x5000000
TAB_BASE = 0x6000000
WS_BYTES = 268435456
MAGIC_DIV = (2**32 + CH - 1) // CH
NR = int([a for a in sys.argv[2:] if a.startswith('NR=')][0][3:]) if any(a.startswith('NR=') for a in sys.argv[2:]) else 14
CHI = (E + 4*NR - 1) // (4*NR)
MAGIC_I = (2**32 + CHI - 1) // CHI
assert MAGIC_I < 2**24 and all((x*MAGIC_I) >> 32 == x // CHI for x in range(0, E, 1))
NBK = (CHI*8 + 1023) // 1024
MINI = S - 6 * 4096
assert NTILE * RS <= OFF_BASE and OFF_BASE + 256 * OFS <= MAX_BASE

OPT = dict(ld_in='nt', st_ws='sc0 sc1', ld_ent='', ld_ch='', st_part='sc0 sc1', ld_part='', NB=2, skip_s=0, skip_g=0, skip_fill=0, skip_e=0,
           stamp=-1, stamp2=-1, prio=1, ilv='2:0,3:1,4:2,5:3', pre=1, npb=1, bps=1, vpos='123456', skip_ch=0, skip_pf=0, pmap=0, cpos=0, epos=1, unpair=0, k2prio=0, pa=2, pb=2, struct=0, forcefb=0, abst=0, wsoff=0, cpf=0, ne=1, pp=0, ilp=0, hp='01', NR=14, nd=1, tab=0, adj=0, st_out='sc0 sc1', warm=1, il=5, cbf=1, rr=0, detp=0, st_mp='sc0 sc1', dst='002211111')
for a in sys.argv[2:]:
    k, v = a.split('=')
    OPT[k] = int(v) if (v.lstrip('-').isdigit() and k not in ('vpos', 'dst', 'hp')) else v.replace('_', ' ')

def f32bits(x): return struct.unpack('<I', struct.pack('<f', x))[0]
out = []
def A(s): out.append('    ' + s)
def L(s): out.append(s + ':')
_lab = [0]
def newlab(p='L'):
    _lab[0] += 1
    return f'{p}_{_lab[0]}'
def srd(d, b, nbytes):
    if nbytes == WS_BYTES and OPT['wsoff']:
        off = OPT['wsoff'] << 20
        A(f's_add_u32 s{d}, s{b}, {off:#x}')
        A(f's_addc_u32 s{d+1}, s{b+1}, 0')
        A(f's_and_b32 s{d+1}, s{d+1}, 0xffff')
        A(f's_mov_b32 s{d+2}, {nbytes - off:#x}')
        A(f's_mov_b32 s{d+3}, 0x00020000')
        return
    A(f's_mov_b32 s{d}, s{b}')
    A(f's_and_b32 s{d+1}, s{b+1}, 0xffff')
    A(f's_mov_b32 s{d+2}, {nbytes:#x}')
    A(f's_mov_b32 s{d+3}, 0x00020000')
def dpp_scan(op, v):
    for sh in (1, 2, 4, 8):
        A('s_nop 1')
        A(f'{op}_dpp v{v}, v{v}, v{v} row_shr:{sh} row_mask:0xf bank_mask:0xf bound_ctrl:0')
    A('s_nop 1')
    A(f'{op}_dpp v{v}, v{v}, v{v} row_bcast:15 row_mask:0xa bank_mask:0xf')
    A('s_nop 1')
    A(f'{op}_dpp v{v}, v{v}, v{v} row_bcast:31 row_mask:0xc bank_mask:0xf')
def khead(name):
    out.append(f'.globl {name}')
    out.append('.p2align 8')
    out.append(f'.type {name},@function')
    L(name)
SD = 'dst_sel:DWORD dst_unused:UNUSED_PAD'
def abs_start(v):
    if not OPT['abst']: return
    A('s_memrealtime s[4:5]')
    A('s_waitcnt lgkmcnt(0)')
    A(f'v_mov_b32 v{v}, s4')
def abs_end(v, sr, kid, wpb):
    if not OPT['abst']: return
    A('s_mov_b64 exec, -1')
    A('s_waitcnt vmcnt(0)')
    A('s_load_dwordx2 s[4:5], s[0:1], 104')
    A('s_memrealtime s[6:7]')
    A('s_waitcnt lgkmcnt(0)')
    srd(sr, 4, WS_BYTES)
    A('v_lshrrev_b32 v1, 6, v0')
    A(f's_mul_i32 s7, s2, {wpb}')
    A('v_add_u32 v1, s7, v1')
    A('v_lshlrev_b32 v1, 3, v1')
    A(f'v_mov_b32 v2, v{v}')
    A('v_mov_b32 v3, s6')
    A(f's_mov_b32 s7, {0xF000000 + kid*65536:#x}')
    A('s_mov_b64 exec, 1')
    A(f'buffer_store_dwordx2 v[2:3], v1, s[{sr}:{sr+3}], s7 offen')

stampn = [0]
def stamp(key):
    if OPT[key] < 0: return
    n = stampn[0]; stampn[0] += 1
    A(OPT.get('clk','s_memtime').replace(' ','_') + ' s[98:99]')
    A('s_waitcnt lgkmcnt(0)')
    A(f's_mov_b32 s{76+n}, s98')
def stamp_flush(key, swave, vz, wave=0):
    if OPT[key] < 0: return
    lab = newlab('STF')
    A(f's_cmp_lg_u32 s2, {OPT[key]}')
    A(f's_cbranch_scc1 {lab}')
    A(f's_cmp_lg_u32 s{swave}, {wave}')
    A(f's_cbranch_scc1 {lab}')
    A('s_load_dwordx2 s[4:5], s[0:1], 96')
    A('s_waitcnt lgkmcnt(0)')
    srd(72, 4, 256)
    A('s_mov_b64 exec, 1')
    A(f'v_mov_b32 v{vz}, 0')
    for n in range(stampn[0]):
        A(f's_sub_u32 s98, s{76+n}, s76')
        A(f'v_mov_b32 v{vz+1}, s98')
        A(f'buffer_store_dword v{vz+1}, v{vz}, s[72:75], 0 offen offset:{4*n}')
        A('s_nop 1')
    L(lab)

L_H, L_SC, L_ST = 0, 16384, 16640
L_X = L_ST
L_W = L_X + NBLK * 4 + 8
LDS1 = L_W + NBLK * 12
assert L_W < 65536 and L_W % 16 == 0
L_ARB, L_A = 50000, NBK*1024
L_SC2 = L_A + 100000
LDS2 = L_SC2 + 64
assert LDS2 <= 163840
MP_BASE = 0x4C10000
CHS = NBK*1024
assert MP_BASE + 4*NR*CHS + CHS <= PART_BASE
G3 = (E + 256*OPT['ne'] - 1) // (256*OPT['ne'])

hdr = open('standalone__molecular_angular_gemnet__graph.s.ref').read().split('; Override launch')[0]
out.append(hdr.rstrip())
out.append(f'; @launch kernel=part_kernel grid=(256,1,1) block=(1024,1,1) lds={LDS1}')
out.append(f'; @launch kernel=acc_kernel grid=(256,1,1) block=(1024,1,1) lds={LDS2}')
out.append(f'; @launch kernel=fin_kernel grid=({G3},1,1) block=(256,1,1) lds=0')
out.append('.amdgcn_target "amdgcn-amd-amdhsa--gfx950"')
out.append('.text')

khead('part_kernel')
A('s_cmp_ge_u32 s2, 256')
A('s_cbranch_scc1 P_END')
abs_start(7+0) if False else abs_start(87)
A('s_load_dwordx4 s[4:7], s[0:1], 0')
A('s_load_dwordx2 s[8:9], s[0:1], 16')
A('s_load_dwordx2 s[10:11], s[0:1], 32')
A('s_load_dwordx2 s[12:13], s[0:1], 48')
A('s_load_dwordx2 s[14:15], s[0:1], 104')
S_IN, S_OUT, S_ANG, S_WS, S_M = 16, 20, 24, 28, 32
if OPT['prio']: A('s_setprio 3')
if OPT['cpf'] >= 2:
    A('s_getpc_b64 s[58:59]')
    A('v_lshlrev_b32 v48, 7, v0')
    A('v_cmp_gt_u32 vcc, 88, v0')
    A('s_and_saveexec_b64 s[56:57], vcc')
    A('s_cbranch_execz P_NOSPF')
    A('global_load_dword v87, v48, s[58:59]')
    L('P_NOSPF')
    A('s_mov_b64 exec, s[56:57]')
A('v_lshlrev_b32 v1, 4, v0')
A('v_lshlrev_b32 v2, 3, v0')
A('v_mov_b32 v3, 1')
A('v_mov_b32 v4, 0x10000')
A('v_mov_b32 v5, 0')
A('v_lshlrev_b32 v6, 2, v0')
A('v_lshlrev_b32 v7, 1, v0')
TT = 8
for r in range(4): A(f'v_mov_b32 v{TT+4+r}, 0')
A('v_readfirstlane_b32 s50, v0')
A(f'ds_write_b128 v1, v[{TT+4}:{TT+7}]')
A(f'ds_write_b32 v6, v5 offset:{L_SC}')
A(f's_movk_i32 s42, {MINI}')
A('v_cmp_gt_u32 s[40:41], s42, v0')
A('s_waitcnt lgkmcnt(0)')
A('s_load_dword s36, s[12:13], 0')
srd(S_IN, 6, T * 4); srd(S_OUT, 8, T * 4); srd(S_ANG, 10, T * 2); srd(S_WS, 14, WS_BYTES); srd(S_M, 4, E * 8)
A('s_lshr_b32 s50, s50, 6')
if OPT['il']:
    if OPT['il'] == 1:
        A('s_lshl_b32 s37, s2, 14')
    elif OPT['il'] == 5:
        A(f's_mul_i32 s37, s50, {256*6144 - 1024}')
        A('s_mul_i32 s38, s2, 6144')
        A('s_add_u32 s37, s37, s38')
    elif OPT['il'] == 6:
        A(f's_mul_i32 s37, s50, {6144 - 1024}')
        A(f's_mul_i32 s38, s2, {96*1024}')
        A('s_add_u32 s37, s37, s38')
    elif OPT['il'] == 7:
        A(f's_mul_i32 s37, s2, {96*1024}')
    elif OPT['il'] == 8:
        A('s_lshr_b32 s38, s2, 3')
        A('s_add_u32 s38, s38, s50')
        A('s_and_b32 s38, s38, 15')
        A('s_sub_i32 s38, s38, s50')
        A('s_lshl_b32 s38, s38, 10')
        A('s_lshl_b32 s37, s2, 14')
        A('s_add_i32 s37, s37, s38')
    else:
        G_ = OPT['il']
        A(f's_lshr_b32 s38, s50, {G_-2}')
        A(f's_mul_i32 s37, s38, {255 * (1024 << (G_-2))}')
        A(f's_lshl_b32 s38, s2, {10 + G_ - 2}')
        A('s_add_u32 s37, s37, s38')
    A('s_lshr_b32 s38, s37, 1')
    A(f's_mul_i32 s68, s2, {MINI*4}')
    A(f's_mul_i32 s69, s2, {MINI*2}')
else:
    A(f's_mul_i32 s37, s2, {2*S*4}')
    A(f's_mul_i32 s38, s2, {2*S*2}')
UA = 24
unitA = [(UA + 10*k, UA + 10*k + 4, UA + 10*k + 8) for k in range(6)] + [(84, 85, 86)]
unitB = [(88 + 10*k, 88 + 10*k + 4, 88 + 10*k + 8) for k in range(4)] + [unitA[0], unitA[1], (44, 45, 46)]
vm = []
ldf = OPT['ld_in']
def load_unit(tag, k):
    vi, vo, va = (unitA if tag == 'A' else unitB)[k]
    tile = 0 if tag == 'A' else 1
    if OPT['il'] and k < 6:
        us = {5: 1024, 6: 1024, 7: 16384}.get(OPT['il'], 256 * 16384)
        A(f's_add_u32 s43, s37, {tile*6*256*16384 + k*us}')
        A(f's_add_u32 s44, s38, {tile*6*256*8192 + k*us//2}')
    elif OPT['il']:
        A(f's_add_u32 s43, s68, {12*256*16384 + tile*256*MINI*4}')
        A(f's_add_u32 s44, s69, {12*256*8192 + tile*256*MINI*2}')
    else:
        A(f's_add_u32 s43, s37, {tile*S*4 + k*16384}')
        A(f's_add_u32 s44, s38, {tile*S*2 + k*8192}')
    if k < 6:
        A(f'buffer_load_dwordx4 v[{vo}:{vo+3}], v1, s[{S_OUT}:{S_OUT+3}], s43 offen {ldf}')
        A(f'buffer_load_dwordx4 v[{vi}:{vi+3}], v1, s[{S_IN}:{S_IN+3}], s43 offen {ldf}')
        A(f'buffer_load_dwordx2 v[{va}:{va+1}], v2, s[{S_ANG}:{S_ANG+3}], s44 offen {ldf}')
    else:
        A('s_or_b64 exec, s[40:41], 1')
        A(f'buffer_load_dword v{vo}, v6, s[{S_OUT}:{S_OUT+3}], s43 offen {ldf}')
        A(f'buffer_load_dword v{vi}, v6, s[{S_IN}:{S_IN+3}], s43 offen {ldf}')
        A(f'buffer_load_ushort v{va}, v7, s[{S_ANG}:{S_ANG+3}], s44 offen {ldf}')
        A('s_mov_b64 exec, -1')
    vm.extend([(tag, k)] * 3)
def vwait(tag):
    idx = max(i for i, t in enumerate(vm) if t == tag)
    A(f's_waitcnt vmcnt({min(len(vm)-1-idx, 63)})')
stamp('stamp')
for k in range(OPT['pre']): load_unit('A', k)
A('s_barrier')
A('s_lshl_b32 s39, s2, 4')
A('s_add_u32 s39, s39, s50')
A(f's_sub_u32 s42, s39, {4*NR*NBK}')
A(f's_cmp_ge_u32 s39, {4*NR*NBK}')
A('s_cselect_b32 s39, s42, s39')
A('s_cselect_b32 s70, 1, 0')
A('s_lshl_b32 s45, s39, 10')
A(f's_mul_hi_u32 s42, s39, {(2**32 + NBK - 1)//NBK:#x}')
A(f's_mul_i32 s42, s42, {CHS - CHI*8}')
A('s_sub_u32 s39, s45, s42')
A(f's_add_u32 s45, s45, {MP_BASE:#x}')
A(f'v_and_b32 v{TT+4}, 0xfc, v6')
A(f'v_and_b32 v{TT+5}, 0x3f0, v1')
for k in range(4):
    A(f'buffer_load_dword v{TT+k}, v{TT+4}, s[{S_M}:{S_M+3}], s39 offen offset:{256*k}'); vm.append('M')
for k in range(OPT['pre'], 7): load_unit('A', k)
if OPT['prio']: A('s_setprio 0')
_hi = f32bits(1/(2*math.pi)) & 0xFFFFFF00
if OPT['rr']:
    A(f's_mov_b32 s46, {_hi:#x}')
    A(f's_mov_b32 s47, {f32bits(1/(2*math.pi) - struct.unpack("<f", struct.pack("<I", _hi))[0]):#x}')
else:
    A(f's_mov_b32 s46, {f32bits(1/(2*math.pi)):#x}')
    A(f's_mov_b32 s47, {f32bits(1/(2*math.pi)):#x}')
A('s_mov_b32 s48, 0xfc000000')
A('s_mov_b32 s49, 0xffff0000')
A(f's_mov_b32 s51, {(-CH) & 0xffffffff:#x}')
A('s_mov_b32 s52, 0x00020002')
A(f's_movk_i32 s55, {1024-NR}')
A(f's_mov_b32 s54, {(-CHI) & 0xffffffff:#x}')
A('s_mov_b32 s53, 0x55555556')
A('s_waitcnt lgkmcnt(0)')
A('s_lshl_b32 s36, s36, 16')

PT = TT + 11
def process(tag, k):
    vi0, vo0, va0 = (unitA if tag == 'A' else unitB)[k]
    inc = 3 if tag == 'A' else 4
    n = 4 if k < 6 else 1
    vwait((tag, k))
    skip = None
    if k == 6:
        skip = newlab('P_MS')
        A('s_mov_b64 exec, s[40:41]')
        A(f's_cbranch_execz {skip}')
    tj, ti, t1 = PT, PT + 1, PT + 2
    for j in range(n):
        vi, vo = vi0 + j, vo0 + j
        A(f'v_mul_hi_u32_u24 v{tj}, {MAGIC_I:#x}, v{vi}')
        A(f'v_mul_hi_u32_u24 v{ti}, {MAGIC_DIV:#x}, v{vo}')
        A(f'v_mul_u32_u24 v{t1}, {(65536 + NR - 1)//NR}, v{tj}')
        A(f'v_mad_i32_i24 v{vi}, v{tj}, s54, v{vi}')
        A(f'v_mad_i32_i24 v{vo}, v{ti}, s51, v{vo}')
        A(f'v_lshrrev_b32 v{t1}, 16, v{t1}')
        A(f'v_lshl_or_b32 v{vi}, v{vo}, 13, v{vi}')
        A(f'v_lshl_add_u32 v{vo}, v{ti}, 4, v{tj}')
        A(f'v_mad_u32_u24 v{vo}, v{t1}, s55, v{vo}')
        A(f'v_lshlrev_b32 v{vo}, 2, v{vo}')
        A(f'ds_add_u32 v{vo}, v{inc} offset:{L_H}')
    a0, a1 = PT + 3, PT + 4
    assert a0 % 2 == 0
    npair = (n + 1) // 2
    nf = newlab('P_NF')
    A('s_cmp_eq_u32 s36, 0x3f800000')
    A(f's_cbranch_scc1 {nf}')
    for p in range(npair):
        va = va0 + p
        A(f'v_lshlrev_b32 v{a0}, 16, v{va}')
        A(f'v_and_b32 v{a1}, s49, v{va}')
        A(f'v_mul_f32 v{a0}, s36, v{a0}')
        A(f'v_mul_f32 v{a1}, s36, v{a1}')
        A(f'v_cvt_pk_bf16_f32 v{va}, v{a0}, v{a1}')
    L(nf)
    for p in range(npair):
        va = va0 + p
        A(f'v_lshlrev_b32 v{a0}, 16, v{va}')
        A(f'v_and_b32 v{a1}, s49, v{va}')
        if OPT['rr']:
            A(f'v_mul_f32 v{tj}, s46, v{a0}')
            A(f'v_mul_f32 v{ti}, s46, v{a1}')
            A(f'v_fract_f32 v{tj}, v{tj}')
            A(f'v_fract_f32 v{ti}, v{ti}')
            A(f'v_fmac_f32 v{tj}, s47, v{a0}')
            A(f'v_fmac_f32 v{ti}, s47, v{a1}')
            A(f'v_cos_f32 v{a0}, v{tj}')
            A(f'v_cos_f32 v{a1}, v{ti}')
        else:
            A(f'v_pk_mul_f32 v[{a0}:{a1}], v[{a0}:{a1}], s[46:47]')
            A(f'v_fract_f32 v{a0}, v{a0}')
            A(f'v_fract_f32 v{a1}, v{a1}')
            A(f'v_cos_f32 v{a0}, v{a0}')
            A(f'v_cos_f32 v{a1}, v{a1}')
        A('s_nop 0')
        if OPT['cbf']:
            A(f'v_cvt_pk_bf16_f32 v{va}, v{a0}, v{a1}')
            A(f'v_lshlrev_b32 v{a0}, 16, v{va}')
            A(f'v_and_b32 v{a1}, s49, v{va}')
            A(f'v_cvt_pk_f16_f32 v{va}, v{a0}, v{a1}')
        else:
            A(f'v_cvt_pk_f16_f32 v{va}, v{a0}, v{a1}')
            A(f'v_pk_add_u16 v{va}, v{va}, s52')
        e0, e1 = 2*p, 2*p + 1
        A(f'v_lshlrev_b32 v{a0}, 16, v{va}')
        if e1 < n: A(f'v_and_or_b32 v{vi0+e1}, v{va}, s48, v{vi0+e1}')
        A(f'v_and_or_b32 v{vi0+e0}, v{a0}, s48, v{vi0+e0}')
        A(f'v_lshrrev_b32 v{va}, 2, v{va}')
    if k == 6:
        L(skip)
        A('s_mov_b64 exec, -1')

def maxm():
    vwait('M')
    M = TT + 6
    A('s_mov_b32 s42, 0x7fff7fff')
    for j in range(4): A(f'v_and_b32 v{M+j}, s42, v{TT+j}')
    A(f'v_pk_max_u16 v{M}, v{M}, v{M+2}')
    A(f'v_pk_max_u16 v{M+1}, v{M+1}, v{M+3}')
    A(f'v_pk_max_u16 v{M}, v{M}, v{M+1}')
    A(f'v_lshrrev_b32 v{M+1}, 16, v{M}')
    A(f'v_and_b32 v{M}, 0xffff, v{M}')
    A(f'v_max_u32 v{M}, v{M}, v{M+1}')
    dpp_scan('v_max_u32', M)
    A('s_nop 1')
    A(f'v_readlane_b32 s42, v{M}, 63')
    A('s_nop 1')
    A(f'v_mov_b32 v{M}, s42')
    A('s_mov_b64 exec, 1')
    A(f'ds_max_u32 v5, v{M} offset:{L_SC+128}')
    A('s_mov_b64 exec, -1')
def mpload():
    A('v_and_b32 v47, 0xfc, v6')
    for k in range(4):
        A(f'buffer_load_dword v{84+k}, v47, s[{S_M}:{S_M+3}], s39 offen offset:{256*k}'); vm.append('M2')
def mpstore():
    A('s_cmp_eq_u32 s70, 1')
    A('s_cbranch_scc1 P_NOMP')
    vwait('M2')
    A('v_and_b32 v47, 0x3f0, v1')
    A(f'buffer_store_dwordx4 v[84:87], v47, s[{S_WS}:{S_WS+3}], s45 offen {OPT["st_mp"]}')
    L('P_NOMP')

def zrow(src, h, tile):
    for j in range(4):
        A(f'v_mul_hi_u32 v{h+8}, v{src+j}, s53')
        A(f'v_add_u32 v{h+10+j}, v{h+8}, v{src+j}')
    A(f'v_lshl_or_b32 v{h+8}, v{h+11}, 16, v{h+10}')
    A(f'v_lshl_or_b32 v{h+9}, v{h+13}, 16, v{h+12}')
    if tile == 0:
        A(f'v_and_b32 v{h+14}, -32, v2')
        A(f'v_add_u32 v{h+14}, v{h+14}, v2')
    A(f's_mul_i32 s42, s2, {OFS}')
    A(f's_add_u32 s42, s42, {OFF_BASE:#x}')
    A(f'buffer_store_dwordx2 v[{h+8}:{h+9}], v{h+14}, s[{S_WS}:{S_WS+3}], s42 offen offset:{64+32*tile}')
    vm.append(('OFS', tile))

def scan(tile, scoff):
    h = TT
    A('s_waitcnt lgkmcnt(0)')
    A('s_barrier')
    A(f'ds_read_b128 v[{h}:{h+3}], v1 offset:{L_H}')
    A(f'v_and_b32 v{h+5}, 63, v0')
    A(f'v_cmp_lt_u32 vcc, s50, v{h+5}')
    A(f'v_lshlrev_b32 v{h+5}, 2, v{h+5}')
    A('s_and_b64 s[56:57], vcc, 0xffff')
    A('s_waitcnt lgkmcnt(0)')
    if tile == 1:
        for j in range(4): A(f'v_and_b32 v{h+10+j}, 0xffff, v{h+j}')
        for j in range(4): A(f'v_lshrrev_b32 v{h+j}, 16, v{h+j}')
    for j in range(1, 4): A(f'v_add_u32 v{h+j}, v{h+j-1}, v{h+j}')
    A(f'v_mov_b32 v{h+4}, v{h+3}')
    dpp_scan('v_add_u32', h + 4)
    A('s_nop 1')
    A(f'v_readlane_b32 s42, v{h+4}, 63')
    A('s_nop 1')
    A(f'v_mov_b32 v{h+6}, s42')
    A('s_mov_b64 exec, s[56:57]')
    A(f'ds_add_u32 v{h+5}, v{h+6} offset:{scoff}')
    A('s_mov_b64 exec, -1')
    A('s_lshl_b32 s42, s50, 2')
    A(f'v_mov_b32 v{h+5}, s42')
    A(f'v_sub_u32 v{h+4}, v{h+4}, v{h+3}')
    if tile == 1: zrow(h + 10, h, 0)
    A('s_waitcnt lgkmcnt(0)')
    A('s_barrier')
    A(f'ds_read_b32 v{h+5}, v{h+5} offset:{scoff}')
    if tile == 1: A(f'ds_read_b32 v{h+6}, v5 offset:{L_SC+128}')
    A('s_waitcnt lgkmcnt(0)')
    A(f'v_add_u32 v{h+4}, v{h+4}, v{h+5}')
    if tile == 1:
        for j in range(4): A(f'v_add_u32 v{h+10+j}, v{h+4}, v{h+j}')
    for j in (3, 2, 1): A(f'v_add_u32 v{h+j}, v{h+4}, v{h+j-1}')
    A(f'v_mov_b32 v{h}, v{h+4}')
    A(f'ds_write_b128 v1, v[{h}:{h+3}] offset:{L_H}')
    if tile == 1:
        zrow(h + 10, h, 1)
        done = newlab('P_SC')
        A('s_cmp_lg_u32 s50, 0')
        A(f's_cbranch_scc1 {done}')
        A('s_mov_b64 exec, 1')
        A(f'buffer_store_dword v5, v5, s[{S_WS}:{S_WS+3}], s42 offen offset:28')
        A(f'buffer_store_dword v5, v5, s[{S_WS}:{S_WS+3}], s42 offen offset:60')
        A(f's_add_u32 s42, s2, {MAX_BASE:#x}')
        A(f'v_lshrrev_b32 v{h+6}, 7, v{h+6}')
        A(f'buffer_store_byte v{h+6}, v5, s[{S_WS}:{S_WS+3}], s42 offen')
        A('s_mov_b64 exec, -1')
        L(done)
    A('s_waitcnt lgkmcnt(0)')
    A('s_barrier')

def scatter(tag, after_wait, after_fin):
    units = unitA if tag == 'A' else unitB
    lg = []
    def issue(k):
        vi0, vo0, _ = units[k]
        n = 4 if k < 6 else 1
        if k == 6: A('s_mov_b64 exec, s[40:41]')
        for j in range(n):
            A(f'ds_add_rtn_u32 v{TT+4*(k&1)+j}, v{vo0+j}, v3 offset:{L_H}')
            lg.append(('R', k))
        if k == 6: A('s_mov_b64 exec, -1')
    def fin(k):
        vi0, vo0, va0 = units[k]
        n = 4 if k < 6 else 1
        if k == 6: A('s_mov_b64 exec, s[40:41]')
        for j in range(n):
            t = TT + 4*(k & 1) + j
            q, a = TT + 8, TT + 9 + (j & 1)
            if tag == 'A': A(f'v_and_b32 v{t}, 0xffff, v{t}')
            A(f'v_mul_hi_u32 v{q}, v{t}, s53')
            A(f'v_lshlrev_b32 v{a}, 2, v{t}')
            A(f'v_add_u32 v{t}, v{q}, v{t}')
            A(f'ds_write_b32 v{a}, v{vi0+j} offset:{L_W}')
            A(f'ds_write_b8{"_d16_hi" if j & 1 else ""} v{t}, v{va0+j//2} offset:{L_X}')
            lg.extend([('W', k)] * 2)
        if k == 6: A('s_mov_b64 exec, -1')
    issue(0)
    for k in range(7):
        if k + 1 < 7: issue(k + 1)
        idx = max(i for i, t in enumerate(lg) if t == ('R', k) or t == ('W', k - 1))
        ny = sum(1 for t in lg[idx+1:] if t[1] != 6)
        A(f's_waitcnt lgkmcnt({min(ny, 15)})')
        if k in after_wait: after_wait[k]()
        fin(k)
        if k in after_fin:
            after_fin[k]()
            lg.extend([('H', k)] * 4)
    A('s_waitcnt lgkmcnt(0)')
    A('s_barrier')

RC = (NBLK + 1023) // 1024
lastc = NBLK - (RC - 1) * 1024
def copyout(tile, regs, ar):
    A(f's_movk_i32 s42, {lastc}')
    A('v_cmp_gt_u32 s[56:57], s42, v0')
    A(f'v_mul_u32_u24 v{ar[0]}, 12, v0')
    A(f'v_add_u32 v{ar[0]}, {L_W}, v{ar[0]}')
    A(f's_mul_i32 s42, s2, {2*RS}')
    if tile: A(f's_add_u32 s42, s42, {RS}')
    def rd(j):
        r = regs[j]
        if j == RC - 1: A('s_mov_b64 exec, s[56:57]')
        A(f'ds_read2_b32 v[{r}:{r+1}], v{ar[0]} offset0:0 offset1:1')
        A(f'ds_read_b32 v{r+2}, v{ar[0]} offset:8')
        A(f'ds_read_b32 v{r+3}, v6 offset:{L_X + j*4096}')
        if j == RC - 1: A('s_mov_b64 exec, -1')
        else: A(f'v_add_u32 v{ar[0]}, {12*1024}, v{ar[0]}')
    LA = 4
    for j in range(LA): rd(j)
    for j in range(RC):
        if j + LA < RC: rd(j + LA)
        A(f's_waitcnt lgkmcnt({3*max(0, min(LA, RC-2-j))})')
        if j == RC - 1: A('s_mov_b64 exec, s[56:57]')
        A(f'buffer_store_dwordx4 v[{regs[j]}:{regs[j]+3}], v1, s[{S_WS}:{S_WS+3}], s42 offen {OPT["st_ws"]}')
        if j < RC - 1: vm.append(('ST', tile, j))
        if j < RC - 1: A('s_add_u32 s42, s42, 16384')
    A('s_mov_b64 exec, -1')

stamp('stamp')
process('A', 0)
stamp('stamp')
maxm()
for k in range(1, 7): process('A', k)
stamp('stamp')
NPB = OPT['npb']
for k in range(NPB): load_unit('B', k)
scan(0, L_SC)
stamp('stamp')
ilv = dict((int(x.split(':')[0]), int(x.split(':')[1])) for x in OPT['ilv'].split(',')) if OPT['ilv'] else {}
pend = list(range(NPB, 7))
aw = {}
for k in range(7):
    take = []
    while pend and len(take) < OPT['bps'] and (pend[0] < 4 or k >= pend[0] - 3):
        take.append(pend.pop(0))
    if k == 6: take += pend; pend = []
    if take: aw[k] = (lambda tk=take: [load_unit('B', b) for b in tk])
scatter('A', aw, {k: (lambda b=b: process('B', b)) for k, b in ilv.items()})
def cpf_code():
    if OPT['cpf']:
        A('s_cmp_lg_u32 s50, 15')
        A('s_cbranch_scc1 P_NOCPF')
        A('s_getpc_b64 s[58:59]')
        L('P_PC')
        A('s_add_u32 s58, s58, acc_kernel-P_PC')
        A('s_addc_u32 s59, s59, 0')
        A('v_and_b32 v19, 63, v0')
        A('v_lshlrev_b32 v19, 7, v19')
        for j in range(3):
            A(f'v_min_u32 v20, CODE_END-acc_kernel-4, v19')
            A(f'global_load_dword v21, v20, s[58:59]')
            A('v_add_u32 v19, 8192, v19')
        L('P_NOCPF')
stamp('stamp')
CR = [48 + 4*j for j in range(RC)]
mpload()
if OPT['dst'] == '':
    copyout(0, CR, [TT, TT + 1, TT + 2])
    stamp('stamp')
    for k in range(7):
        if k not in ilv.values(): process('B', k)
    stamp('stamp')
    scan(1, L_SC + 64)
    cpf_code()
    stamp('stamp')
    scatter('B', {}, {})
else:
    A(f's_movk_i32 s42, {lastc}')
    A('v_cmp_gt_u32 s[64:65], s42, v0')
    A(f'v_mul_u32_u24 v{TT}, 12, v0')
    A(f'v_add_u32 v{TT}, {L_W}, v{TT}')
    A(f's_mul_i32 s66, s2, {2*RS}')
    for j in range(RC):
        r = CR[j]
        if j == RC - 1: A('s_mov_b64 exec, s[64:65]')
        A(f'ds_read2_b32 v[{r}:{r+1}], v{TT} offset0:0 offset1:1')
        A(f'ds_read_b32 v{r+2}, v{TT} offset:8')
        A(f'ds_read_b32 v{r+3}, v6 offset:{L_X + j*4096}')
        if j == RC - 1: A('s_mov_b64 exec, -1')
        else: A(f'v_add_u32 v{TT}, {12*1024}, v{TT}')
    nst = [0]
    def st(n):
        for _ in range(n):
            j = nst[0]
            if j >= RC: return
            nst[0] += 1
            if j == RC - 1: A('s_mov_b64 exec, s[64:65]')
            A(f'buffer_store_dwordx4 v[{CR[j]}:{CR[j]+3}], v1, s[{S_WS}:{S_WS+3}], s66 offen {OPT["st_ws"]}')
            if j < RC - 1:
                vm.append(('ST', 0, j)); A('s_add_u32 s66, s66, 16384')
            else: A('s_mov_b64 exec, -1')
    sch = [int(c) for c in OPT['dst']]
    rest = [k for k in range(7) if k not in ilv.values()]
    process('B', rest[0])
    A('s_waitcnt lgkmcnt(0)')
    st(sch[0])
    stamp('stamp')
    for k in rest[1:]: process('B', k)
    st(sch[1])
    stamp('stamp')
    scan(1, L_SC + 64)
    cpf_code()
    stamp('stamp')
    scatter('B', {k: (lambda n=sch[2+k]: st(n)) for k in range(7)}, {})
    assert nst[0] == RC
mpstore()

def tabgen():
    A('s_cmp_ge_u32 s50, 4')
    A('s_cbranch_scc1 P_NOTAB')
    A('s_load_dwordx2 s[4:5], s[0:1], 40')
    A('s_load_dwordx4 s[8:11], s[0:1], 56')
    A('s_lshl_b32 s42, s2, 8')
    D, a_, b_, t, RB, O = 8, 9, 10, 11, 12, 88
    A(f'v_add_u32 v{D}, s42, v0')
    A(f'v_lshlrev_b32 v16, 5, v{D}')
    A(f'v_lshlrev_b32 v{D}, 16, v{D}')
    A('s_waitcnt lgkmcnt(0)')
    A('s_load_dwordx4 s[4:7], s[4:5], 0')
    A('s_load_dwordx16 s[68:83], s[8:9], 0')
    A('s_load_dwordx16 s[84:99], s[10:11], 0')
    A(f's_mov_b32 s44, {f32bits(-10.0):#x}')
    A(f's_mov_b32 s45, {f32bits(math.log2(math.e)):#x}')
    def rnd():
        A(f'v_cvt_pk_bf16_f32 v{t}, v{a_}, v{b_}')
        A(f'v_lshlrev_b32 v{a_}, 16, v{t}')
        A(f'v_and_b32 v{b_}, s49, v{t}')
    A('s_waitcnt lgkmcnt(0)')
    for r in range(0, 8, 2):
        A(f's_lshl_b32 s42, s{4+r//2}, 16')
        A(f's_and_b32 s43, s{4+r//2}, 0xffff0000')
        A(f'v_subrev_f32 v{a_}, s42, v{D}')
        A(f'v_subrev_f32 v{b_}, s43, v{D}')
        rnd()
        A(f'v_mul_f32 v{a_}, v{a_}, v{a_}')
        A(f'v_mul_f32 v{b_}, v{b_}, v{b_}')
        rnd()
        A(f'v_mul_f32 v{a_}, s44, v{a_}')
        A(f'v_mul_f32 v{b_}, s44, v{b_}')
        rnd()
        A(f'v_mul_f32 v{a_}, s45, v{a_}')
        A(f'v_mul_f32 v{b_}, s45, v{b_}')
        A(f'v_exp_f32 v{a_}, v{a_}')
        A(f'v_exp_f32 v{b_}, v{b_}')
        A('s_nop 0')
        A(f'v_cvt_pk_bf16_f32 v{RB+r//2}, v{a_}, v{b_}')
    for r in range(0, 8, 2):
        for base, dst in ((84, O), (68, O + 4)):
            for d in range(4):
                op = 's_pack_hh_b32_b16' if d & 1 else 's_pack_ll_b32_b16'
                A(f'{op} s{42+(d&1)}, s{base + r*2 + d//2}, s{base + (r+1)*2 + d//2}')
                c = '0' if r == 0 else f'v{dst+d}'
                A(f'v_dot2_f32_bf16 v{dst+d}, v{RB+r//2}, s{42+(d&1)}, {c}')
    A('s_nop 2')
    A(f'v_cvt_pk_bf16_f32 v{O+4}, v{O+4}, v{O+5}')
    A(f'v_cvt_pk_bf16_f32 v{O+5}, v{O+6}, v{O+7}')
    A(f's_mov_b32 s42, {TAB_BASE:#x}')
    A(f'buffer_store_dwordx4 v[{O}:{O+3}], v16, s[{S_WS}:{S_WS+3}], s42 offen')
    A(f'buffer_store_dwordx4 v[{O+4}:{O+7}], v16, s[{S_WS}:{S_WS+3}], s42 offen offset:16')
    L('P_NOTAB')
stamp('stamp')
copyout(1, [48 + 4*j for j in range(RC)], [TT, TT + 1, TT + 2])
if OPT['tab']: tabgen()
stamp('stamp')
if OPT['stamp'] >= 0: A('s_waitcnt vmcnt(0)')
stamp('stamp')
if OPT.get('allst', 0):
    A(f's_cmp_lg_u32 s50, {OPT.get("swave", 0)}')
    A('s_cbranch_scc1 P_END')
    A('s_lshl_b32 s42, s2, 6')
    A('s_add_u32 s42, s42, 0xF000000')
    A('s_mov_b64 exec, 1')
    for n in range(stampn[0]):
        A(f'v_mov_b32 v{TT+1}, s{76+n}')
        A(f'buffer_store_dword v{TT+1}, v5, s[{S_WS}:{S_WS+3}], s42 offen offset:{4*n}')
        A('s_nop 1')
else: stamp_flush('stamp', 50, TT, OPT.get('swave', 0))
abs_end(87, 64, 0, 16)
L('P_END')
A('s_endpgm')

st2n = [0]
def stamp2():
    if OPT['stamp2'] < 0: return
    n = st2n[0]; st2n[0] += 1
    A(OPT.get('clk','s_memtime').replace(' ','_') + ' s[4:5]')
    A('s_waitcnt lgkmcnt(0)')
    A(f'v_writelane_b32 v127, s4, {n+2}')
khead('acc_kernel')
A('s_cmp_ge_u32 s2, 256')
A('s_cbranch_scc1 Q_END')
abs_start(127)
A('s_load_dwordx2 s[4:5], s[0:1], 0')
A('s_load_dwordx2 s[6:7], s[0:1], 104')
if OPT['pp']: A('s_setprio 3')
S_M, S_WS = 8, 12
A('s_and_b32 s3, s2, 7')
A('s_lshl_b32 s3, s3, 5')
A('s_lshr_b32 s16, s2, 3')
A('s_add_u32 s3, s3, s16')
VTB = 5; VOF = 8
VEB = VOF + 18
def EB(slot, s): return VEB + (slot * 2 + s) * 4
VG = VEB + 32
GP = [0]
def G(s, e): return VG + ((s + (GP[0] if s else 0)) * 3 + e) * 2
VCH = VG + 18
VT = VCH + 16
VA = VT + 6
VSH, VFC = VT + 10, VT + 11
VLA, VLB = VT + 12, VT + 13
VFB = VT + 14
VFG = VFB + 4
VL2 = VFG + 6
V3 = VL2
assert VFB % 2 == 0 and VL2 + 2 <= 126
def OF(s, k): return VOF + 9*s + k
def MK(slot, s, e): return 54 + slot * 12 + (s * 3 + e) * 2
A('v_and_b32 v1, 3, v0')
A('v_lshlrev_b32 v2, 4, v0')
A('v_lshrrev_b32 v3, 2, v0')
A('v_and_b32 v4, 1, v0')
A(f'v_mul_u32_u24 v{VT}, {OFS}, v3')
A(f'v_lshl_add_u32 v{VT+1}, v1, 4, v{VT}')
A(f'v_and_b32 v{VT}, -32, v{VT+1}')
A(f'v_and_b32 v{VT+2}, 63, v0')
A(f'v_lshlrev_b32 v{VT+2}, 2, v{VT+2}')
if not OPT['abst']: A('v_mov_b32 v127, 0')
A('s_lshl_b32 s17, s3, 6')
A(f's_add_u32 s17, s17, {OFF_BASE:#x}')
A(f's_mov_b32 s19, {MAX_BASE:#x}')
A('s_lshr_b32 s20, s3, 6')
A(f's_mul_i32 s20, s20, {NR*CHS}')
A(f's_add_u32 s20, s20, {MP_BASE:#x}')
A('v_cmp_gt_u32 s[22:23], 64, v0')
A('v_readfirstlane_b32 s21, v0')
A('s_nop 3')
A('s_lshl_b32 s50, s21, 4')
A('s_mov_b32 m0, s50')
A('s_waitcnt lgkmcnt(0)')
srd(S_M, 4, E * 8); srd(S_WS, 6, WS_BYTES)
TO = VG
A(f'buffer_load_dwordx4 v[{TO}:{TO+3}], v{VT+1}, s[{S_WS}:{S_WS+3}], s17 offen offset:64')
A(f'buffer_load_dword v{TO+4}, v{VT}, s[{S_WS}:{S_WS+3}], s17 offen offset:28')
A(f'buffer_load_dword v{VT+9}, v{VT+2}, s[{S_WS}:{S_WS+3}], s19 offen')
if OPT['pp']: A('s_setprio 1' if OPT['pp'] == 2 else 's_setprio 2')
stamp2()
INLOOP = [0]
ool = []
def chall(lastchk=False):
    sk = newlab('Q_C')
    if lastchk:
        A(f's_cmp_eq_u32 s33, {(NR-2)//4}')
        A('s_cselect_b64 exec, 1, -1')
    else: A('s_mov_b64 exec, -1')
    A(f's_cmp_ge_u32 s50, {(NBK-48)*1024}')
    A(f's_cbranch_scc1 {sk}')
    A(f's_add_u32 s21, s20, {3*16384}')
    if not (OPT['skip_ch'] and INLOOP[0]): A(f'buffer_load_dwordx4 v[{VCH+12}:{VCH+15}], v2, s[{S_WS}:{S_WS+3}], s21 offen {OPT["ld_ch"]}')
    L(sk)
    for j in range(3):
        A(f's_add_u32 s21, s20, {j*16384}')
        if not (OPT['skip_ch'] and INLOOP[0]): A(f'buffer_load_dwordx4 v[{VCH+4*j}:{VCH+4*j+3}], v2, s[{S_WS}:{S_WS+3}], s21 offen {OPT["ld_ch"]}')
    A(f's_add_u32 s20, s20, {CHS}')
def fill():
    if OPT['skip_fill']: return
    sk = newlab('Q_F')
    A('s_mov_b64 exec, -1')
    for j in range(4):
        if j == 3:
            A(f's_cmp_ge_u32 s50, {(NBK-48)*1024}')
            A(f's_cbranch_scc1 {sk}')
        for k in range(4): A(f'ds_write_addtid_b32 v{VCH+4*j+k} offset:{j*16384+256*k}')
    L(sk)
chall()
A(f's_mov_b32 s16, {2*RS}')
A(f'v_mul_lo_u32 v{VTB}, v3, s16')
A(f'v_add_u32 v{VTB+1}, {RS}, v{VTB}')
A('v_cmp_eq_u32 s[36:37], 3, v1')
A('v_and_b32 v4, 63, v0')
A('v_lshlrev_b32 v1, 2, v1')
A('s_mov_b32 s44, 0')
A('s_lshr_b32 s45, s3, 6')
A(f's_mul_i32 s45, s45, {NR*CHI*8}')
A(f'v_add_u32 v3, {L_A}, v2')
z = VEB + 28
for r in range(4): A(f'v_mov_b32 v{z+r}, 0')
for j in range(4): A(f'ds_write_b128 v3, v[{z}:{z+3}] offset:{j*16384}')
A(f'v_add_u32 v{VT+6}, 65536, v3')
for j in range(2): A(f'ds_write_b128 v{VT+6}, v[{z}:{z+3}] offset:{j*16384}')
A('s_movk_i32 s16, 106')
A('v_cmp_gt_u32 s[24:25], s16, v0')
A('s_mov_b64 exec, s[24:25]')
A(f'ds_write_b128 v{VT+6}, v[{z}:{z+3}] offset:{2*16384}')
A('s_mov_b64 exec, -1')
A(f'v_mov_b32 v126, {L_SC2}')
VONE = VSH
A('s_mov_b64 exec, 1')
A(f'ds_write_b128 v126, v[{z}:{z+3}]')
A('s_mov_b64 exec, -1')
A('s_mov_b32 s30, 0xffff0000')
A(f's_mov_b32 s31, {L_A}')
A('s_mov_b32 s35, 0xfc000000')
A(f'v_mov_b32 v{VSH}, 18')
A(f'v_mov_b32 v{V3}, 3')
A(f'v_mov_b32 v{VFC}, 0xfffc')
A('s_waitcnt vmcnt(3)')
for s_ in range(2):
    for k in range(9):
        ln = 2*s_ + (1 if k >= 5 else 0)
        src = TO + ((k - 1) % 4 if k > 0 else 4)
        A(f'v_mov_b32_dpp v{OF(s_,k)}, v{src} quad_perm:[{ln},{ln},{ln},{ln}] row_mask:0xf bank_mask:0xf')

def pfcalc(s_, r, masks=True):
    slot = r % 4
    r0, h0, r1, h1 = (r + 1) >> 1, (r + 1) & 1, (r + 2) >> 1, r & 1
    y, d, ln, ad = VT, VT + 7, VT + 8, VA
    a, b = OF(s_, r0), OF(s_, r1)
    m = [MK(slot, s_, k) for k in range(3)]
    A('s_mov_b64 exec, -1')
    A(f'v_and_b32_sdwa v{y}, v{a}, v{VFC} {SD} src0_sel:WORD_{h0} src1_sel:DWORD')
    A(f'v_sub_u32_sdwa v{ln}, v{b}, v{a} {SD} src0_sel:WORD_{h1} src1_sel:WORD_{h0}')
    A(f'v_add_u32 v{y}, v{y}, v1')
    A(f'v_sub_u32_sdwa v{d}, v{y}, v{a} {SD} src0_sel:DWORD src1_sel:WORD_{h0}')
    A(f'v_lshl_add_u32 v{ad}, v{y}, 2, v{VTB+s_}')
    if masks:
        A(f'v_cmp_lt_u32 s[{m[0]}:{m[0]+1}], v{d}, v{ln}')
        A(f'v_add_u32 v{d}, 1, v{d}')
        A(f'v_cmp_lt_u32 s[{m[1]}:{m[1]+1}], v{d}, v{ln}')
        A(f'v_add_u32 v{d}, 1, v{d}')
        A(f'v_cmp_lt_u32 s[{m[2]}:{m[2]+1}], v{d}, v{ln}')
def pf1(s_, r, live=False, det=True):
    slot = r % 4
    m = [MK(slot, s_, k) for k in range(3)]
    e = EB(slot, s_)
    pfcalc(s_, r)
    A(f's_or_b64 vcc, s[{m[0]}:{m[0]+1}], s[{m[1]}:{m[1]+1}]')
    A(f's_or_b64 vcc, vcc, s[{m[2]}:{m[2]+1}]')
    if live: A('s_and_b64 vcc, vcc, s[18:19]')
    A('s_or_b64 exec, vcc, 1' if not OPT['skip_pf'] else 's_mov_b64 exec, -1')
    if not (OPT['skip_pf'] and INLOOP[0]): A(f'buffer_load_dwordx4 v[{e}:{e+3}], v{VA}, s[{S_WS}:{S_WS+3}], 0 offen {OPT["ld_ent"]}')
def xl(r):
    A('s_mov_b64 exec, -1')
    A(f's_add_u32 s47, s46, {r}')
    A(f'v_cmp_eq_u32 vcc, s47, v{VLB}')
    A('s_or_b64 exec, vcc, s[48:49]')
    A(f'buffer_load_dwordx4 v[{VFB}:{VFB+3}], v{VLA}, s[{S_WS}:{S_WS+3}], 0 offen')
def xg(r):
    A('s_mov_b64 exec, -1')
    A(f's_add_u32 s47, s46, {r}')
    A(f'v_cmpx_eq_u32 vcc, s47, v{VLB}')
    for e in range(3): gaddr(VFB + e, VFG + 2*e)
    for e in range(3):
        A(f's_and_b64 exec, vcc, s[{40+2*e}:{41+2*e}]')
        if not OPT['skip_g']: A(f'ds_read_b64 v[{VFG+2*e}:{VFG+2*e+1}], v{VFG+2*e}')
def xs():
    for e in range(3):
        A(f's_mov_b64 exec, s[{40+2*e}:{41+2*e}]')
        scat1(VFB + e, VFB + 3, e, VFG + 2*e)

def gath1(w, g):
    A(f'v_lshlrev_b32 v{g}, 3, v{w}')
    A(f'v_and_b32 v{g}, 0xfff8, v{g}')
    if not OPT['skip_g']: A(f'ds_read_b64 v[{g}:{g+1}], v{g}')

def scat1(w, xr, e, g, wait=False):
    x, ad = VT, VT + 1
    p0, p2 = VT + 2, VT + 4
    A(f'v_lshlrev_b32_sdwa v{x}, v{VSH}, v{xr} {SD} src0_sel:DWORD src1_sel:BYTE_{e}')
    A(f'v_lshlrev_b32 v{p2}, 16, v{g+1}')
    A(f'v_and_b32 v{p2+1}, s30, v{g+1}')
    A(f'v_and_or_b32 v{x}, v{w}, s35, v{x}')
    A(f'v_bfe_u32 v{ad}, v{w}, 13, 13')
    A(f'v_lshlrev_b32 v{p0}, 16, v{g}')
    A(f'v_and_b32 v{p0+1}, s30, v{g}')
    for r in (p2, p2 + 1, p0, p0 + 1):
        A(f'v_fma_mix_f32 v{r}, v{r}, v{x}, s{26 if r == p0 else 28} op_sel:[0,1,0] op_sel_hi:[0,1,0]')
        if r == p2: A(f'v_lshl_add_u32 v{ad}, v{ad}, 3, s31')
        if r == p2 + 1:
            if wait: A('s_waitcnt lgkmcnt(0)')
            A(f'ds_add_u64 v{ad}, v[{p2}:{p2+1}] offset:{L_ARB}')
    A(f'v_add_u32 v{p0}, s34, v{p0}')
    A(f'ds_add_u64 v{ad}, v[{p0}:{p0+1}]')

def gaddr(w, g):
    A(f'v_lshlrev_b32_sdwa v{g}, v{V3}, v{w} dst_sel:WORD_0 dst_unused:UNUSED_PAD src0_sel:DWORD src1_sel:DWORD')
def Gset(r, s_):
    slot = r % 4
    GP[0] = (r & 1) if OPT['nd'] else 0
    A('s_mov_b64 exec, -1')
    for e in range(3): gaddr(EB(slot, s_) + e, G(s_, e))
    for e in range(3):
        m = MK(slot, s_, e); g = G(s_, e)
        A(f's_mov_b64 exec, s[{m}:{m+1}]')
        if not OPT['skip_g']: A(f'ds_read_b64 v[{g}:{g+1}], v{g}')
def Sset(r, s_, hooks={}, w0=False):
    slot = r % 4
    GP[0] = (r & 1) if OPT['nd'] else 0
    for e in range(3):
        if e in hooks: hooks[e]()
        m = MK(slot, s_, e)
        A(f's_mov_b64 exec, s[{m}:{m+1}]')
        b = EB(slot, s_)
        if not OPT['skip_s']: scat1(b + e, b + 3, e, G(s_, e), w0 and e == 0)

A(f'v_mov_b32 v{VT+1}, 0')
pf1(0, 0, det=False); pf1(1, 0, det=False); pf1(0, 1, det=False)
A('s_mov_b64 exec, -1')
A(f'v_max_u32_sdwa v{VT+2}, v{VT+9}, v{VT+9} {SD} src0_sel:BYTE_0 src1_sel:BYTE_1')
A(f'v_max_u32_sdwa v{VT+3}, v{VT+9}, v{VT+9} {SD} src0_sel:BYTE_2 src1_sel:BYTE_3')
A(f'v_max_u32 v{VT+9}, v{VT+2}, v{VT+3}')
dpp_scan('v_max_u32', VT + 9)
A('s_nop 1')
A(f'v_readlane_b32 s29, v{VT+9}, 63')
for s_ in range(2):
    A(f'v_lshrrev_b32 v{VT+2}, 16, v{OF(s_,0)}')
    A(f'v_lshrrev_b32 v{VT+3}, 18, v{OF(s_,0)}')
    A(f'v_sub_u32 v{VT+2}, v{VT+2}, v{VT+3}')
    A(f'v_lshrrev_b32 v{VT+3}, 18, v{OF(s_,8)}')
    A(f'v_add_u32 v{VT+2}, v{VT+2}, v{VT+3}')
    A(f'v_lshrrev_b32 v{VT+3}, 16, v{OF(s_,8)}')
    A(f'v_sub_u32 v{VT+4+s_}, v{VT+2}, v{VT+3}')
A(f'v_add_u32 v{VT+2}, v{VT+4}, v{VT+5}')
dpp_scan('v_add_u32', VT + 2)
A('s_nop 1')
A(f'v_readlane_b32 s32, v{VT+2}, 63')
A('s_min_u32 s27, s29, 249')
A('s_add_u32 s28, s27, 2')
A('s_lshl_b32 s28, s28, 23')
A('s_or_b32 s28, s28, 0x400000')
A('s_add_u32 s26, s27, 5')
A('s_lshl_b32 s26, s26, 23')
A('s_sub_u32 s34, 0x4000000, s26')
A('s_or_b32 s26, s26, 0x80000')
if OPT['detp'] == 0:
    PV, TBL, CBL, LW = VFB, VFB + 1, VFB + 2, VFB + 3
    D0, D1 = VFG, VFG + 1
    A('s_mov_b64 exec, -1')
    A(f'v_mov_b32_dpp v{PV}, v{TO+3} quad_perm:[0,0,2,2] row_mask:0xf bank_mask:0xf')
    A(f'v_and_b32 v{CBL}, 1, v0')
    A(f'v_cmp_eq_u32 vcc, 0, v{CBL}')
    A(f'v_lshlrev_b32 v{CBL}, 5, v{CBL}')
    A('v_cmp_lt_u32 s[38:39], 4, v1')
    A(f'v_cndmask_b32 v{PV}, v{PV}, v{TO+4}, vcc')
    A('s_nop 0')
    A(f'v_cndmask_b32 v{TBL}, v{VTB}, v{VTB+1}, s[38:39]')
    A(f'v_add_u32 v{TBL}, 64, v{TBL}')
    A('s_mov_b32 s46, s50')
    for t in range(8):
        sa, ha = (PV, 1) if t == 0 else (TO + (t - 1) // 2, (t - 1) & 1)
        sb, hb = TO + t // 2, t & 1
        nx = newlab('Q_D'); lp = newlab('Q_D')
        y, rem = VT, VT + 1
        A(f'v_and_b32_sdwa v{y}, v{sa}, v{VFC} {SD} src0_sel:WORD_{ha} src1_sel:DWORD')
        A(f'v_sub_u32_sdwa v{rem}, v{sb}, v{y} {SD} src0_sel:WORD_{hb} src1_sel:DWORD')
        A(f'v_cmpx_lt_i32 vcc, 16, v{rem}')
        A(f's_cbranch_execz {nx}')
        A(f'v_lshl_add_u32 v{D0}, v{y}, 2, v{TBL}')
        A(f'v_subrev_u32 v{rem}, 16, v{rem}')
        L(lp)
        A(f'v_mbcnt_lo_u32_b32 v{LW}, exec_lo, 0')
        A(f'v_mbcnt_hi_u32_b32 v{LW}, exec_hi, v{LW}')
        A(f'v_min_u32 v{D1}, 3, v{rem}')
        A(f'v_add_u32 v{LW}, s44, v{LW}')
        A(f'v_add3_u32 v{D1}, v{D1}, v{CBL}, s47' if False else f'v_add_u32 v{D1}, v{D1}, v{CBL}')
        if t: A(f'v_add_u32 v{D1}, {t*4}, v{D1}')
        A('s_bcnt1_i32_b64 s47, exec')
        A(f'v_min_u32 v{LW}, 63, v{LW}')
        A('s_add_u32 s44, s44, s47')
        A(f'v_lshl_add_u32 v{LW}, v{LW}, 3, s46')
        A(f'ds_write_b64 v{LW}, v[{D0}:{D1}]')
        A(f'v_cmpx_lt_i32 vcc, 4, v{rem}')
        A(f's_cbranch_execz {nx}')
        A('s_cmp_ge_u32 s44, 64')
        A(f's_cbranch_scc1 {nx}')
        A(f'v_add_u32 v{D0}, 16, v{D0}')
        A(f'v_subrev_u32 v{rem}, 4, v{rem}')
        A(f's_branch {lp}')
        L(nx)
        A('s_mov_b64 exec, -1')
    A(f'v_lshl_add_u32 v{LW}, v4, 3, s46')
    A(f'ds_read_b64 v[{VLA}:{VLB}], v{LW}')
    A('v_cmp_gt_u32 s[38:39], s44, v4')
    A('s_waitcnt lgkmcnt(0)')
    A(f'v_and_b32 v{LW}, 3, v{VLB}')
    A(f'v_lshrrev_b32 v{VLB}, 2, v{VLB}')
    A(f'v_cndmask_b32 v{LW}, 0, v{LW}, s[38:39]')
    A(f'v_cndmask_b32 v{VLB}, -1, v{VLB}, s[38:39]')
    for e in range(3): A(f'v_cmp_lt_u32 s[{40+2*e}:{41+2*e}], {e}, v{LW}')
    A('s_mov_b32 s46, 0')
A('s_mov_b64 s[48:49], 1')
xl(0)
A('s_waitcnt vmcnt(4)')
fill()
chall()
A('s_mov_b32 s33, 0')
A('s_waitcnt vmcnt(3) lgkmcnt(0)')
stamp2()
A('s_barrier')
Gset(0, 0); Gset(0, 1); xg(0)
if OPT['warm'] == 2:
    A('s_cmp_lg_u32 s50, 0')
    A('s_cbranch_scc1 Q_NOWARM')
    A('s_load_dwordx2 s[4:5], s[0:1], 24')
    A('s_load_dwordx2 s[6:7], s[0:1], 40')
    A('s_load_dwordx8 s[92:99], s[0:1], 56')
    A('s_mov_b64 exec, -1')
    A('s_mul_i32 s16, s2, 3200')
    A(f'v_lshl_add_u32 v{VT}, v4, 6, s16')
    A(f'v_min_u32 v{VT}, {E*2-4}, v{VT}')
    A('s_waitcnt lgkmcnt(0)')
    A(f'global_load_dword v125, v{VT}, s[4:5]')
    A('s_load_dword s16, s[6:7], 0')
    for k in range(4): A(f's_load_dword s{16+(k&1)}, s[{92+2*k}:{93+2*k}], 0')
    L('Q_NOWARM')
pf1(1, 1); pf1(1, 2); xl(1)
if OPT['skip_pf']:
    pf1(0, 2); pf1(0, 3); pf1(1, 3); A('s_waitcnt vmcnt(0)')
A('s_waitcnt vmcnt(3) lgkmcnt(0)')
stamp2()
INLOOP[0] = 1
L('Q_LOOP')
for r in range(4):
    ps = r & 1
    if r == 1: stamp2()
    A('s_barrier')
    if r == 1: stamp2()
    if r == (NR - 1) % 4:
        A(f's_cmp_eq_u32 s33, {(NR-1)//4}')
        A(f's_cbranch_scc1 Q_LAST')
    fill()
    chall(r == (NR - 2) % 4)
    nd = OPT['nd']
    hp = OPT['hp']
    Sset(r, 0, w0=nd > 0)
    A('s_waitcnt vmcnt(3)' if nd else 's_waitcnt vmcnt(3) lgkmcnt(0)')
    if r == 1: stamp2()
    A('s_barrier')
    if r == 1: stamp2()
    Gset(r + 1, 0)
    if nd == 2: Gset(r + 1, 1)
    xg(r + 1)
    Sset(r, 1, {int(hp[0]): lambda: pf1(ps, r + 2), int(hp[1]): lambda: (pf1(ps, r + 3), xl(r + 2))}, w0=nd == 2)
    if nd != 2: Gset(r + 1, 1)
    if r == 3:
        A('s_mov_b64 exec, -1')
        A('s_add_u32 s33, s33, 1')
        A('s_add_u32 s46, s46, 4')
        for s_ in range(2):
            for k in range(0, 7): A(f'v_mov_b32 v{OF(s_,k)}, v{OF(s_,k+2)}')
    A('s_waitcnt vmcnt(3)' if OPT['nd'] == 2 else 's_waitcnt vmcnt(3) lgkmcnt(0)')
A('s_branch Q_LOOP')
L('Q_LAST')
if OPT['warm'] == 1:
    A('s_cmp_lg_u32 s50, 0')
    A('s_cbranch_scc1 Q_NOWARM')
    A('s_load_dwordx2 s[4:5], s[0:1], 24')
    A('s_load_dwordx2 s[6:7], s[0:1], 40')
    A('s_load_dwordx8 s[56:63], s[0:1], 56' if (NR - 1) % 4 != 0 else 'ERR')
    A('s_mov_b64 exec, -1')
    A('s_mul_i32 s16, s2, 3200')
    A(f'v_lshl_add_u32 v{VT}, v4, 6, s16')
    A(f'v_min_u32 v{VT}, {E*2-4}, v{VT}')
    A('s_waitcnt lgkmcnt(0)')
    A(f'global_load_dword v{VCH}, v{VT}, s[4:5]')
    A('s_load_dword s16, s[6:7], 0')
    for k in range(4): A(f's_load_dword s{17+k}, s[{56+2*k}:{57+2*k}], 0')
    L('Q_NOWARM')
Sset((NR - 1) % 4, 0)
Sset((NR - 1) % 4, 1)
A('s_waitcnt vmcnt(0)')
xs()
A('s_mov_b64 exec, -1')
A('s_waitcnt lgkmcnt(0)')
stamp2()
A('s_barrier')
A('v_lshlrev_b32 v3, 3, v0')
A(f'v_add_u32 v7, {L_A}, v3')
RA = 8
for k in range(7):
    if k == 6: A('s_mov_b64 exec, s[24:25]')
    A(f'ds_read_b64 v[{RA+4*k}:{RA+4*k+1}], v7 offset:{k*8192}')
A('s_mov_b64 exec, -1')
A(f'v_add_u32 v4, {L_ARB}, v7')
for k in range(7):
    if k == 6: A('s_mov_b64 exec, s[24:25]')
    A(f'ds_read_b64 v[{RA+4*k+2}:{RA+4*k+3}], v4 offset:{k*8192}')
A('s_mov_b64 exec, -1')
A('s_lshr_b32 s16, s3, 6'); A(f's_mul_i32 s16, s16, {E*8}')
A('s_and_b32 s17, s3, 63'); A(f's_mul_i32 s17, s17, {CH*8}')
A('s_add_u32 s16, s16, s17'); A(f's_add_u32 s16, s16, {PART_BASE:#x}')
A('v_mov_b32 v5, 0')
A(f's_mov_b32 s36, {f32bits(2.0**-10):#x}')
A(f's_mov_b32 s37, {f32bits(2.0**-13):#x}')
A('s_mov_b32 s38, s37'); A('s_mov_b32 s39, s37')
A('s_sub_i32 s40, s27, 135')
A('v_mov_b32 v6, 1.0')
A('v_ldexp_f32 v6, v6, s40')
A('s_and_b32 s41, s3, 63')
A('s_lshl_b32 s41, s41, 2')
A('s_lshr_b32 s42, s3, 6')
A('s_add_u32 s41, s41, s42')
A('s_lshl_b32 s41, s41, 2')
A(f's_add_u32 s41, s41, {SCL_BASE:#x}')
A('v_cmp_eq_u32 vcc, 0, v0')
A('s_mov_b64 exec, vcc')
A(f'buffer_store_dword v6, v5, s[{S_WS}:{S_WS+3}], s41 offen')
A('s_mov_b64 exec, -1')
X = 40
for k in range(7):
    a0, a1, b0, b1 = RA + 4*k, RA + 4*k + 1, RA + 4*k + 2, RA + 4*k + 3
    c = X; P = X + 2; t = X + 4
    A(f's_waitcnt lgkmcnt({max(0,5-k)})')
    if k == 6: A('s_mov_b64 exec, s[24:25]')
    A(f'v_lshrrev_b32 v{c}, 26, v{a0}')
    A(f'v_and_b32 v{a0}, 0x3ffffff, v{a0}')
    A(f'v_mad_u64_u32 v[{P}:{P+1}], vcc, v{c}, s28, 0')
    A(f'v_lshlrev_b32 v{t}, 19, v{c}')
    A(f'v_add_u32 v5, v5, v{c}')
    A(f'v_sub_u32 v{a0}, v{a0}, v{t}')
    A(f'v_sub_u32 v{a1}, v{a1}, v{P}')
    A(f'v_add_u32 v{P+1}, v{P+1}, v{P}')
    A(f'v_sub_co_u32 v{b0}, vcc, v{b0}, v{P}')
    A(f'v_cvt_f32_i32 v{a0}, v{a0}')
    A(f'v_cvt_f32_i32 v{a1}, v{a1}')
    A(f'v_subb_co_u32 v{b1}, vcc, v{b1}, v{P+1}, vcc')
    A(f'v_ashrrev_i32 v{t}, 31, v{b0}')
    A(f'v_cvt_f32_i32 v{b0}, v{b0}')
    A(f'v_sub_u32 v{b1}, v{b1}, v{t}')
    A(f'v_pk_mul_f32 v[{a0}:{a1}], v[{a0}:{a1}], s[36:37]')
    A(f'v_cvt_f32_i32 v{b1}, v{b1}')
    A(f'v_cvt_pk_f16_f32 v{a0}, v{a0}, v{a1}')
    A(f'v_pk_mul_f32 v[{b0}:{b1}], v[{b0}:{b1}], s[38:39]')
    A(f'v_cvt_pk_f16_f32 v{a1}, v{b0}, v{b1}')
    A(f'buffer_store_dwordx2 v[{a0}:{a1}], v3, s[{S_WS}:{S_WS+3}], s16 offen {OPT["st_part"]}')
    A('s_add_u32 s16, s16, 8192')
A('s_mov_b64 exec, -1')
dpp_scan('v_add_u32', 5)
A('s_nop 1')
A('v_readlane_b32 s42, v5, 63')
A('s_nop 3')
A('s_lshl_b32 s42, s42, 2')
A('s_add_u32 s42, s42, s32')
A('v_mov_b32 v6, s42')
A('v_mov_b32 v7, s32')
A('s_mov_b64 exec, 1')
A('ds_add_u32 v126, v6')
A('ds_sub_u32 v126, v7 offset:4')
A('s_mov_b64 exec, -1')
A('s_waitcnt lgkmcnt(0)')
A('s_barrier')
A('ds_read_b64 v[6:7], v126')
A('s_waitcnt lgkmcnt(0)')
A('v_readfirstlane_b32 s42, v6')
A('v_readfirstlane_b32 s43, v7')
A('s_nop 3')
if OPT['forcefb'] == 1: A('s_mov_b32 s42, 1')
if OPT['forcefb'] == -1: A('s_mov_b32 s42, 0')
A('s_cmp_gt_u32 s29, 249')
A('s_cselect_b32 s42, 1, s42')
A('s_cmp_eq_u32 s42, 0')
A('s_cbranch_scc1 Q_FIN')
A('s_waitcnt vmcnt(0)')
A('s_min_u32 s27, s29, 254')
A('s_add_u32 s45, s27, 923')
A('s_lshl_b32 s45, s45, 20')
A('s_or_b32 s45, s45, 0x80000')
A('s_mov_b32 s44, 0')
A('s_lshr_b32 s43, s43, 2')
A('s_flbit_i32_b32 s46, s43')
A('s_max_i32 s46, s46, 0')
A('s_sub_u32 s46, 32, s46')
A('s_sub_i32 s47, -11, s46')
A('s_add_u32 s40, s27, s46')
A('s_sub_i32 s40, s40, 141')
A('v_mov_b32 v6, 1.0')
A('v_ldexp_f32 v6, v6, s40')
A('v_mov_b32 v5, 0')
A('v_cmp_eq_u32 vcc, 0, v0')
A('s_mov_b64 exec, vcc')
A(f'buffer_store_dword v6, v5, s[{S_WS}:{S_WS+3}], s41 offen')
A('s_mov_b64 exec, -1')
A('v_lshrrev_b32 v8, 1, v0')
A('v_lshrrev_b32 v9, 2, v0')
A(f'v_mul_u32_u24 v9, {OFS}, v9')
A('v_and_b32 v39, 1, v8')
A('v_lshl_add_u32 v9, v39, 5, v9')
A(f's_mov_b32 s16, {RS}')
A('v_mul_lo_u32 v8, v8, s16')
A('v_and_b32 v10, 1, v0')
for r in range(12, 16): A(f'v_mov_b32 v{r}, 0')
A('v_add_u32 v11, 65536, v2')
A('s_mov_b32 s48, 0')
L('Q_FH')
A('s_barrier')
for j in range(4): A(f'ds_write_b128 v2, v[12:15] offset:{j*16384}')
for j in range(2): A(f'ds_write_b128 v11, v[12:15] offset:{j*16384}')
A('s_mov_b64 exec, s[24:25]')
A(f'ds_write_b128 v11, v[12:15] offset:{2*16384}')
A('s_mov_b64 exec, -1')
A('s_waitcnt lgkmcnt(0)')
A('s_barrier')
A('s_lshl_b32 s49, s3, 6')
A(f's_add_u32 s49, s49, {OFF_BASE:#x}')
A(f'buffer_load_ushort v17, v9, s[{S_WS}:{S_WS+3}], s49 offen offset:30')
A('s_waitcnt vmcnt(0)')
A('s_lshr_b32 s50, s3, 6')
A(f's_mul_i32 s50, s50, {NR*CHI*8}')
A('s_mov_b32 s51, 0')
L('Q_FR')
A('v_add_u32 v16, v17, v10')
A(f'buffer_load_ushort v17, v9, s[{S_WS}:{S_WS+3}], s49 offen offset:64')
A('s_waitcnt vmcnt(0)')
L('Q_FI')
A('v_cmp_lt_u32 vcc, v16, v17')
A('s_and_b64 exec, exec, vcc')
A('s_cbranch_execz Q_FRN')
A('s_mov_b64 s[52:53], exec')
A('v_and_b32 v18, 3, v16')
A('v_lshl_add_u32 v19, v16, 2, v8')
A('v_or_b32 v20, 3, v16')
A('v_lshl_add_u32 v20, v20, 2, v8')
A('v_add_u32 v20, v20, v18')
A(f'buffer_load_dword v21, v19, s[{S_WS}:{S_WS+3}], 0 offen')
A(f'buffer_load_ubyte v22, v20, s[{S_WS}:{S_WS+3}], 0 offen')
A('s_waitcnt vmcnt(0)')
A('v_bfe_u32 v23, v21, 13, 13')
A('v_subrev_u32 v23, s48, v23')
A('s_movk_i32 s16, 3125')
A('v_cmp_gt_u32 vcc, s16, v23')
A('v_cmp_ne_u32 s[54:55], 3, v18')
A('s_and_b64 vcc, vcc, s[54:55]')
A('v_bfe_u32 v24, v21, 0, 13')
A('v_lshlrev_b32 v24, 3, v24')
A('s_and_b64 exec, exec, vcc')
A('s_cbranch_execz Q_FIN2')
A(f'buffer_load_dwordx2 v[26:27], v24, s[{S_M}:{S_M+3}], s50 offen')
A('v_lshlrev_b32 v22, 2, v22')
A('v_lshrrev_b32 v25, 16, v21')
A('v_and_b32 v25, 0xfc00, v25')
A('v_or_b32 v25, v25, v22')
A('v_cvt_f32_f16 v25, v25')
A('v_cvt_f64_f32 v[28:29], v25')
A('v_lshlrev_b32 v23, 3, v23')
A('v_add_u32 v38, 50000, v23')
A('s_waitcnt vmcnt(0)')
A('v_lshlrev_b32 v30, 16, v26'); A('v_and_b32 v32, s30, v26')
A('v_lshlrev_b32 v34, 16, v27'); A('v_and_b32 v36, s30, v27')
for j, r in enumerate((30, 32, 34, 36)):
    A(f'v_cvt_f64_f32 v[{r}:{r+1}], v{r}')
    A(f'v_fma_f64 v[{r}:{r+1}], v[{r}:{r+1}], v[28:29], s[44:45]')
    A(f'ds_add_u64 v{23 if j < 2 else 38}, v[{r}:{r+1}] offset:{(j & 1) * 25000}')
L('Q_FIN2')
A('s_mov_b64 exec, s[52:53]')
A('v_add_u32 v16, 2, v16')
A('s_branch Q_FI')
L('Q_FRN')
A('s_mov_b64 exec, -1')
A('s_add_u32 s49, s49, 2')
A(f's_add_u32 s50, s50, {CHI*8}')
A('s_add_u32 s51, s51, 1')
A('s_cmp_lt_u32 s51, 16')
A('s_cbranch_scc1 Q_FR')
A('s_waitcnt lgkmcnt(0)')
A('s_barrier')
A('s_lshr_b32 s16, s3, 6'); A(f's_mul_i32 s16, s16, {E*8}')
A('s_and_b32 s17, s3, 63'); A(f's_mul_i32 s17, s17, {CH*8}')
A('s_add_u32 s16, s16, s17'); A(f's_add_u32 s16, s16, {PART_BASE:#x}')
A('s_lshl_b32 s17, s48, 3'); A('s_add_u32 s16, s16, s17')
A('s_mov_b32 s52, 0'); A('s_mov_b32 s53, 0x41f00000')
A('v_mov_b32 v16, v3')
L('Q_FC')
A('s_movk_i32 s17, 25000')
A('v_cmp_gt_u32 vcc, s17, v16')
A('s_and_b64 exec, exec, vcc')
A('s_cbranch_execz Q_FCD')
A('v_add_u32 v17, 50000, v16')
for j in range(4):
    A(f'ds_read_b64 v[{18+2*j}:{19+2*j}], v{16 if j < 2 else 17} offset:{(j & 1) * 25000}')
A('s_waitcnt lgkmcnt(0)')
for j in range(4):
    lo, hi = 18 + 2*j, 19 + 2*j
    A(f'v_bfe_i32 v{hi}, v{hi}, 0, 19')
    A(f'v_cvt_f64_u32 v[26:27], v{lo}')
    A(f'v_cvt_f64_i32 v[28:29], v{hi}')
    A('v_fma_f64 v[26:27], v[28:29], s[52:53], v[26:27]')
    A('v_ldexp_f64 v[26:27], v[26:27], s47')
    A(f'v_cvt_f32_f64 v{30+j}, v[26:27]')
A('v_cvt_pk_f16_f32 v34, v30, v31')
A('v_cvt_pk_f16_f32 v35, v32, v33')
A(f'buffer_store_dwordx2 v[34:35], v16, s[{S_WS}:{S_WS+3}], s16 offen')
A('v_add_u32 v16, 8192, v16')
A('s_branch Q_FC')
L('Q_FCD')
A('s_mov_b64 exec, -1')
A('s_add_u32 s48, s48, 3125')
A('s_cmp_lt_u32 s48, 6250')
A('s_cbranch_scc1 Q_FH')
L('Q_FIN')
stamp2()
if OPT['stamp2'] >= 0:
    A('s_waitcnt vmcnt(0)')
    stamp2()
    A('v_readfirstlane_b32 s54, v0')
    A('s_nop 3')
    A(f's_cmp_lg_u32 s2, {OPT["stamp2"]}')
    A('s_cbranch_scc1 Q_END')
    A(f's_cmp_lg_u32 s54, {64*OPT.get("swave", 0)}')
    A('s_cbranch_scc1 Q_END')
    A('s_load_dwordx2 s[4:5], s[0:1], 96')
    A('s_waitcnt lgkmcnt(0)')
    srd(72, 4, 256)
    A('v_readlane_b32 s54, v127, 2')
    A('v_and_b32 v4, 63, v0')
    A('v_lshlrev_b32 v4, 2, v4')
    A('v_subrev_u32 v127, s54, v127')
    A('buffer_store_dword v127, v4, s[72:75], 0 offen')
abs_end(127, 64, 1, 16)
L('Q_END')
A('s_endpgm')

NE = OPT['ne']
khead('fin_kernel')
A(f's_cmp_ge_u32 s2, {G3}')
A('s_cbranch_scc1 F_END')
abs_start(1)
A('s_load_dwordx2 s[4:5], s[0:1], 0')
A('s_load_dwordx2 s[6:7], s[0:1], 104')
A('s_load_dwordx2 s[8:9], s[0:1], 24')
A('s_load_dwordx2 s[10:11], s[0:1], 88')
A('s_load_dwordx2 s[28:29], s[0:1], 40')
A('s_load_dwordx8 s[64:71], s[0:1], 56')
S_M, S_WS, S_DIST, S_O = 12, 16, 20, 24
if not OPT['adj']:
    A(f's_mul_i32 s3, s2, {256*NE}')
    VB = 2
    def R(i, n): return VB + 40 * i + n
    for i in range(NE):
        e, t = R(i, 1), R(i, 2)
        A(f'v_add_u32 v{e}, s3, v0')
        if i: A(f'v_add_u32 v{e}, {256*i}, v{e}')
        A(f'v_lshlrev_b32 v{R(i,3)}, 1, v{e}')
        A(f'v_min_u32 v{t}, {E-1}, v{e}')
        A(f'v_lshlrev_b32 v{R(i,0)}, 3, v{t}')
        A(f'v_mul_hi_u32_u24 v{t}, {MAGIC_DIV:#x}, v{t}')
        A(f'v_lshlrev_b32 v{t}, 4, v{t}')
        A(f'v_lshlrev_b32 v{e}, 3, v{e}')
    A('s_waitcnt lgkmcnt(0)')
    srd(S_DIST, 8, E * 2)
    for i in range(NE):
        A(f'buffer_load_ushort v{R(i,3)}, v{R(i,3)}, s[{S_DIST}:{S_DIST+3}], 0 offen')
    if not OPT['tab']:
        A('s_load_dwordx4 s[28:31], s[28:29], 0')
        A('s_load_dwordx16 s[32:47], s[64:65], 0')
        A('s_load_dwordx16 s[48:63], s[66:67], 0')
    A('s_load_dwordx8 s[72:79], s[70:71], 0')
    A('s_load_dwordx8 s[64:71], s[68:69], 0')
    srd(S_WS, 6, WS_BYTES); srd(S_M, 4, E * 8); srd(S_O, 10, E * 8)
    for i in range(NE):
        A(f's_mov_b32 s4, {SCL_BASE:#x}')
        A(f'buffer_load_dwordx4 v[{R(i,6)}:{R(i,9)}], v{R(i,2)}, s[{S_WS}:{S_WS+3}], s4 offen')
        for p in range(4):
            A(f's_mov_b32 s4, {PART_BASE + p*E*8:#x}')
            A(f'buffer_load_dwordx2 v[{R(i,32+2*p)}:{R(i,33+2*p)}], v{R(i,0)}, s[{S_WS}:{S_WS+3}], s4 offen {OPT["ld_part"]}')
        A(f'buffer_load_dwordx2 v[{R(i,4)}:{R(i,5)}], v{R(i,1)}, s[{S_M}:{S_M+3}], 0 offen')
else:
    assert NE == 2 and not OPT['tab']
    A('s_lshl_b32 s3, s2, 8')
    VB = 2
    PQ, MQ, OQ, SC = 84, 100, 104, 8
    def R(i, n):
        if 32 <= n < 40: return PQ + ((n - 32) // 2) * 4 + 2 * i + (n & 1)
        if n in (4, 5): return MQ + 2 * i + (n - 4)
        if n in (30, 31): return OQ + 2 * i + (n - 30)
        if 6 <= n < 10: return VB + n
        return VB + 40 * i + n
    e, t = R(0, 1), R(0, 2)
    A(f'v_add_u32 v{e}, s3, v0')
    A(f'v_lshlrev_b32 v{R(0,3)}, 2, v{e}')
    A(f'v_min_u32 v{t}, {E//2-1}, v{e}')
    A(f'v_lshlrev_b32 v{R(0,0)}, 4, v{t}')
    A(f'v_lshlrev_b32 v{t}, 1, v{t}')
    A(f'v_mul_hi_u32_u24 v{t}, {MAGIC_DIV:#x}, v{t}')
    A(f'v_lshlrev_b32 v{t}, 4, v{t}')
    A(f'v_lshlrev_b32 v{e}, 4, v{e}')
    A('s_waitcnt lgkmcnt(0)')
    srd(S_DIST, 8, E * 2)
    A(f'buffer_load_dword v{R(0,3)}, v{R(0,3)}, s[{S_DIST}:{S_DIST+3}], 0 offen')
    A('s_load_dwordx4 s[28:31], s[28:29], 0')
    A('s_load_dwordx16 s[32:47], s[64:65], 0')
    A('s_load_dwordx16 s[48:63], s[66:67], 0')
    A('s_load_dwordx8 s[72:79], s[70:71], 0')
    A('s_load_dwordx8 s[64:71], s[68:69], 0')
    srd(S_WS, 6, WS_BYTES); srd(S_M, 4, E * 8); srd(S_O, 10, E * 8)
    for p in range(4):
        A(f's_mov_b32 s4, {PART_BASE + p*E*8:#x}')
        A(f'buffer_load_dwordx4 v[{PQ+4*p}:{PQ+4*p+3}], v{R(0,0)}, s[{S_WS}:{S_WS+3}], s4 offen {OPT["ld_part"]}')
    A(f's_mov_b32 s4, {SCL_BASE:#x}')
    A(f'buffer_load_dwordx4 v[{SC}:{SC+3}], v{t}, s[{S_WS}:{S_WS+3}], s4 offen')
    A(f'buffer_load_dwordx4 v[{MQ}:{MQ+3}], v{e}, s[{S_M}:{S_M+3}], 0 offen')
A('s_mov_b32 s5, 0xffff0000')
A(f's_mov_b32 s8, {f32bits(-10.0):#x}')
A(f's_mov_b32 s9, {f32bits(math.log2(math.e)):#x}')
def sw(base, idx, dst):
    sr = base + idx // 2
    if idx & 1: A(f's_and_b32 s{dst}, s{sr}, 0xffff0000')
    else: A(f's_lshl_b32 s{dst}, s{sr}, 16')
def spk(base, r, d, dst):
    op = 's_pack_hh_b32_b16' if d & 1 else 's_pack_ll_b32_b16'
    A(f'{op} s{dst}, s{base + r*2 + d//2}, s{base + (r+1)*2 + d//2}')
def unp(a, b, t):
    A(f'v_lshlrev_b32 v{a}, 16, v{t}')
    A(f'v_and_b32 v{b}, s5, v{t}')
def rnd2(a, b, t):
    A(f'v_cvt_pk_bf16_f32 v{t}, v{a}, v{b}')
    unp(a, b, t)
if not OPT['tab']:
    if OPT['adj']:
        A('s_waitcnt vmcnt(6) lgkmcnt(0)')
        A(f'v_and_b32 v{R(1,3)}, s5, v{R(0,3)}')
        A(f'v_lshlrev_b32 v{R(0,3)}, 16, v{R(0,3)}')
    else:
        A(f's_waitcnt vmcnt({6*NE}) lgkmcnt(0)')
        for i in range(NE): A(f'v_lshlrev_b32 v{R(i,3)}, 16, v{R(i,3)}')
    for r in range(0, 8, 2):
        sw(28, r, 6); sw(28, r + 1, 7)
        for i in range(NE):
            a_, b_, t = R(i, 14), R(i, 15), R(i, 2)
            A(f'v_subrev_f32 v{a_}, s6, v{R(i,3)}')
            A(f'v_subrev_f32 v{b_}, s7, v{R(i,3)}')
            rnd2(a_, b_, t)
            A(f'v_mul_f32 v{a_}, v{a_}, v{a_}')
            A(f'v_mul_f32 v{b_}, v{b_}, v{b_}')
            rnd2(a_, b_, t)
            A(f'v_mul_f32 v{a_}, s8, v{a_}')
            A(f'v_mul_f32 v{b_}, s8, v{b_}')
            rnd2(a_, b_, t)
            A(f'v_mul_f32 v{a_}, s9, v{a_}')
            A(f'v_mul_f32 v{b_}, s9, v{b_}')
            A(f'v_exp_f32 v{a_}, v{a_}')
            A(f'v_exp_f32 v{b_}, v{b_}')
            A('s_nop 0')
            A(f'v_cvt_pk_bf16_f32 v{R(i,18+r//2)}, v{a_}, v{b_}')
    for r in range(0, 8, 2):
        for base, dst in ((48, 22), (32, 26)):
            for d in range(4):
                spk(base, r, d, 6 + (d & 1))
                for i in range(NE):
                    c = '0' if r == 0 else f'v{R(i,dst+d)}'
                    A(f'v_dot2_f32_bf16 v{R(i,dst+d)}, v{R(i,18+r//2)}, s{6+(d&1)}, {c}')
    A('s_nop 2')
    for i in range(NE):
        rnd2(R(i,26), R(i,27), R(i,2)); rnd2(R(i,28), R(i,29), R(i,2))
else:
    A(f's_waitcnt vmcnt({6*NE})')
    A(f's_mov_b32 s4, {TAB_BASE:#x}')
    for i in range(NE):
        A(f'v_lshlrev_b32 v{R(i,3)}, 5, v{R(i,3)}')
        A(f'buffer_load_dwordx4 v[{R(i,22)}:{R(i,25)}], v{R(i,3)}, s[{S_WS}:{S_WS+3}], s4 offen')
        A(f'buffer_load_dwordx2 v[{R(i,20)}:{R(i,21)}], v{R(i,3)}, s[{S_WS}:{S_WS+3}], s4 offen offset:16')
A(f's_waitcnt vmcnt({2*NE}) lgkmcnt(0)' if OPT['tab'] else 's_waitcnt vmcnt(0)')
for i in range(NE):
    for p in range(4):
        for d in range(4):
            c = '0' if p == 0 else f'v{R(i,14+d)}'
            A(f'v_fma_mix_f32 v{R(i,14+d)}, v{R(i,32+2*p+d//2)}, v{R(i,6+p)}, {c} op_sel:[{d&1},0,0] op_sel_hi:[1,0,0]')
for k in range(4):
    for d in range(4):
        sw(64, k*4 + d, 6 + (d & 1))
        for i in range(NE):
            if k == 0: A(f'v_mul_f32 v{R(i,10+d)}, s{6+(d&1)}, v{R(i,14+k)}')
            else: A(f'v_fmac_f32 v{R(i,10+d)}, s{6+(d&1)}, v{R(i,14+k)}')
if OPT['tab']:
    A('s_waitcnt vmcnt(0)')
    for i in range(NE):
        unp(R(i,26), R(i,27), R(i,20)); unp(R(i,28), R(i,29), R(i,21))
for i in range(NE):
    for d in range(4):
        A(f'v_mul_f32 v{R(i,10+d)}, v{R(i,10+d)}, v{R(i,22+d)}')
    A(f'v_cvt_pk_bf16_f32 v{R(i,18)}, v{R(i,10)}, v{R(i,11)}')
    A(f'v_cvt_pk_bf16_f32 v{R(i,19)}, v{R(i,12)}, v{R(i,13)}')
for k in (0, 2):
    for d in range(4):
        spk(72, k, d, 6 + (d & 1))
        for i in range(NE):
            c = '0' if k == 0 else f'v{R(i,22+d)}'
            A(f'v_dot2_f32_bf16 v{R(i,22+d)}, v{R(i,18+k//2)}, s{6+(d&1)}, {c}')
for i in range(NE):
    unp(R(i,10), R(i,11), R(i,4)); unp(R(i,12), R(i,13), R(i,5))
A('s_nop 0')
for i in range(NE):
    rnd2(R(i,22), R(i,23), R(i,2)); rnd2(R(i,24), R(i,25), R(i,2))
    for d in range(4):
        A(f'v_mul_f32 v{R(i,22+d)}, v{R(i,22+d)}, v{R(i,26+d)}')
    rnd2(R(i,22), R(i,23), R(i,2)); rnd2(R(i,24), R(i,25), R(i,2))
    for d in range(4):
        A(f'v_add_f32 v{R(i,22+d)}, v{R(i,22+d)}, v{R(i,10+d)}')
    A(f'v_cvt_pk_bf16_f32 v{R(i,30)}, v{R(i,22)}, v{R(i,23)}')
    A(f'v_cvt_pk_bf16_f32 v{R(i,31)}, v{R(i,24)}, v{R(i,25)}')
    if not OPT['adj']: A(f'buffer_store_dwordx2 v[{R(i,30)}:{R(i,31)}], v{R(i,1)}, s[{S_O}:{S_O+3}], 0 offen {OPT["st_out"]}')
if OPT['adj']: A(f'buffer_store_dwordx4 v[{OQ}:{OQ+3}], v{R(0,1)}, s[{S_O}:{S_O+3}], 0 offen {OPT["st_out"]}')
L('F_END')
A('s_endpgm')
L('CODE_END')

out.append('.section .rodata,"a"')
for name, vg, sg in (('part_kernel', 128, 102), ('acc_kernel', 128, 102), ('fin_kernel', 108 if OPT['adj'] else 4 + 40*OPT['ne'], 80)):
    out.append('.p2align 6')
    out.append(f'.amdhsa_kernel {name}')
    out.append(f'  .amdhsa_next_free_vgpr {vg}')
    out.append(f'  .amdhsa_next_free_sgpr {sg}')
    out.append(f'  .amdhsa_accum_offset {vg}')
    out.append('  .amdhsa_group_segment_fixed_size 0')
    out.append('  .amdhsa_kernarg_size 112')
    out.append('  .amdhsa_user_sgpr_count 2')
    out.append('  .amdhsa_user_sgpr_kernarg_segment_ptr 1')
    out.append('  .amdhsa_system_sgpr_workgroup_id_x 1')
    out.append('  .amdhsa_float_denorm_mode_32 3')
    out.append('.end_amdhsa_kernel')
open(sys.argv[1], 'w').write('\n'.join(out) + '\n')
```

```python
import struct, sys, math

E = 400000
T = 12800000
CH = 6250
S = 25000
NTILE = 512
NBLK = (S + 2) // 3
RS = 128 * (int([a for a in sys.argv[2:] if a.startswith('rsl=')][0][4:]) if any(a.startswith('rsl=') for a in sys.argv[2:]) else 1042)
OFS = 16448
OFF_BASE = 0x4400000
MAX_BASE = 0x4C00000
SCL_BASE = 0x4C01000
PART_BASE = 0x5000000
TAB_BASE = 0x6000000
WS_BYTES = 268435456
MAGIC_DIV = (2**32 + CH - 1) // CH
NR = int([a for a in sys.argv[2:] if a.startswith('NR=')][0][3:]) if any(a.startswith('NR=') for a in sys.argv[2:]) else 14
CHI = (E + 4*NR - 1) // (4*NR)
MAGIC_I = (2**32 + CHI - 1) // CHI
assert MAGIC_I < 2**24 and all((x*MAGIC_I) >> 32 == x // CHI for x in range(0, E, 1))
NBK = (CHI*8 + 1023) // 1024
MINI = S - 6 * 4096
assert NTILE * RS <= OFF_BASE and OFF_BASE + 256 * OFS <= MAX_BASE

OPT = dict(ld_in='nt', st_ws='sc0 sc1', ld_ent='', ld_ch='', st_part='sc0 sc1', ld_part='', NB=2, skip_s=0, skip_g=0, skip_fill=0, skip_e=0,
           stamp=-1, stamp2=-1, prio=1, ilv='2:0,3:1,4:2,5:3', pre=1, npb=1, bps=1, vpos='123456', skip_ch=0, skip_pf=0, pmap=0, cpos=0, epos=1, unpair=0, k2prio=0, pa=2, pb=2, struct=0, forcefb=0, abst=0, wsoff=0, cpf=0, ne=1, pp=0, ilp=0, hp='01', NR=14, nd=1, tab=0, adj=0, st_out='sc0 sc1', warm=1, il=5, cbf=1, detp=0, st_mp='sc0 sc1', dst='002211111')
for a in sys.argv[2:]:
    k, v = a.split('=')
    OPT[k] = int(v) if (v.lstrip('-').isdigit() and k not in ('vpos', 'dst', 'hp')) else v.replace('_', ' ')

def f32bits(x): return struct.unpack('<I', struct.pack('<f', x))[0]
out = []
def A(s): out.append('    ' + s)
def L(s): out.append(s + ':')
_lab = [0]
def newlab(p='L'):
    _lab[0] += 1
    return f'{p}_{_lab[0]}'
def srd(d, b, nbytes):
    if nbytes == WS_BYTES and OPT['wsoff']:
        off = OPT['wsoff'] << 20
        A(f's_add_u32 s{d}, s{b}, {off:#x}')
        A(f's_addc_u32 s{d+1}, s{b+1}, 0')
        A(f's_and_b32 s{d+1}, s{d+1}, 0xffff')
        A(f's_mov_b32 s{d+2}, {nbytes - off:#x}')
        A(f's_mov_b32 s{d+3}, 0x00020000')
        return
    A(f's_mov_b32 s{d}, s{b}')
    A(f's_and_b32 s{d+1}, s{b+1}, 0xffff')
    A(f's_mov_b32 s{d+2}, {nbytes:#x}')
    A(f's_mov_b32 s{d+3}, 0x00020000')
def dpp_scan(op, v):
    for sh in (1, 2, 4, 8):
        A('s_nop 1')
        A(f'{op}_dpp v{v}, v{v}, v{v} row_shr:{sh} row_mask:0xf bank_mask:0xf bound_ctrl:0')
    A('s_nop 1')
    A(f'{op}_dpp v{v}, v{v}, v{v} row_bcast:15 row_mask:0xa bank_mask:0xf')
    A('s_nop 1')
    A(f'{op}_dpp v{v}, v{v}, v{v} row_bcast:31 row_mask:0xc bank_mask:0xf')
def khead(name):
    out.append(f'.globl {name}')
    out.append('.p2align 8')
    out.append(f'.type {name},@function')
    L(name)
SD = 'dst_sel:DWORD dst_unused:UNUSED_PAD'
def abs_start(v):
    if not OPT['abst']: return
    A('s_memrealtime s[4:5]')
    A('s_waitcnt lgkmcnt(0)')
    A(f'v_mov_b32 v{v}, s4')
def abs_end(v, sr, kid, wpb):
    if not OPT['abst']: return
    A('s_mov_b64 exec, -1')
    A('s_waitcnt vmcnt(0)')
    A('s_load_dwordx2 s[4:5], s[0:1], 104')
    A('s_memrealtime s[6:7]')
    A('s_waitcnt lgkmcnt(0)')
    srd(sr, 4, WS_BYTES)
    A('v_lshrrev_b32 v1, 6, v0')
    A(f's_mul_i32 s7, s2, {wpb}')
    A('v_add_u32 v1, s7, v1')
    A('v_lshlrev_b32 v1, 3, v1')
    A(f'v_mov_b32 v2, v{v}')
    A('v_mov_b32 v3, s6')
    A(f's_mov_b32 s7, {0xF000000 + kid*65536:#x}')
    A('s_mov_b64 exec, 1')
    A(f'buffer_store_dwordx2 v[2:3], v1, s[{sr}:{sr+3}], s7 offen')

stampn = [0]
def stamp(key):
    if OPT[key] < 0: return
    n = stampn[0]; stampn[0] += 1
    A(OPT.get('clk','s_memtime').replace(' ','_') + ' s[98:99]')
    A('s_waitcnt lgkmcnt(0)')
    A(f's_mov_b32 s{76+n}, s98')
def stamp_flush(key, swave, vz, wave=0):
    if OPT[key] < 0: return
    lab = newlab('STF')
    A(f's_cmp_lg_u32 s2, {OPT[key]}')
    A(f's_cbranch_scc1 {lab}')
    A(f's_cmp_lg_u32 s{swave}, {wave}')
    A(f's_cbranch_scc1 {lab}')
    A('s_load_dwordx2 s[4:5], s[0:1], 96')
    A('s_waitcnt lgkmcnt(0)')
    srd(72, 4, 256)
    A('s_mov_b64 exec, 1')
    A(f'v_mov_b32 v{vz}, 0')
    for n in range(stampn[0]):
        A(f's_sub_u32 s98, s{76+n}, s76')
        A(f'v_mov_b32 v{vz+1}, s98')
        A(f'buffer_store_dword v{vz+1}, v{vz}, s[72:75], 0 offen offset:{4*n}')
        A('s_nop 1')
    L(lab)

L_H, L_SC, L_ST = 0, 16384, 16640
L_X = L_ST
L_W = L_X + NBLK * 4 + 8
LDS1 = L_W + NBLK * 12
assert L_W < 65536 and L_W % 16 == 0
L_ARB, L_A = 50000, NBK*1024
L_SC2 = L_A + 100000
LDS2 = L_SC2 + 64
assert LDS2 <= 163840
MP_BASE = 0x4C10000
CHS = NBK*1024
assert MP_BASE + 4*NR*CHS + CHS <= PART_BASE
G3 = (E + 256*OPT['ne'] - 1) // (256*OPT['ne'])

hdr = open('standalone__molecular_angular_gemnet__graph.s.ref').read().split('; Override launch')[0]
out.append(hdr.rstrip())
out.append(f'; @launch kernel=part_kernel grid=(256,1,1) block=(1024,1,1) lds={LDS1}')
out.append(f'; @launch kernel=acc_kernel grid=(256,1,1) block=(1024,1,1) lds={LDS2}')
out.append(f'; @launch kernel=fin_kernel grid=({G3},1,1) block=(256,1,1) lds=0')
out.append('.amdgcn_target "amdgcn-amd-amdhsa--gfx950"')
out.append('.text')

khead('part_kernel')
A('s_cmp_ge_u32 s2, 256')
A('s_cbranch_scc1 P_END')
abs_start(7+0) if False else abs_start(87)
A('s_load_dwordx4 s[4:7], s[0:1], 0')
A('s_load_dwordx2 s[8:9], s[0:1], 16')
A('s_load_dwordx2 s[10:11], s[0:1], 32')
A('s_load_dwordx2 s[12:13], s[0:1], 48')
A('s_load_dwordx2 s[14:15], s[0:1], 104')
S_IN, S_OUT, S_ANG, S_WS, S_M = 16, 20, 24, 28, 32
if OPT['prio']: A('s_setprio 3')
if OPT['cpf'] >= 2:
    A('s_getpc_b64 s[58:59]')
    A('v_lshlrev_b32 v48, 7, v0')
    A('v_cmp_gt_u32 vcc, 88, v0')
    A('s_and_saveexec_b64 s[56:57], vcc')
    A('s_cbranch_execz P_NOSPF')
    A('global_load_dword v87, v48, s[58:59]')
    L('P_NOSPF')
    A('s_mov_b64 exec, s[56:57]')
A('v_lshlrev_b32 v1, 4, v0')
A('v_lshlrev_b32 v2, 3, v0')
A('v_mov_b32 v3, 1')
A('v_mov_b32 v4, 0x10000')
A('v_mov_b32 v5, 0')
A('v_lshlrev_b32 v6, 2, v0')
A('v_lshlrev_b32 v7, 1, v0')
TT = 8
for r in range(4): A(f'v_mov_b32 v{TT+4+r}, 0')
A('v_readfirstlane_b32 s50, v0')
A(f'ds_write_b128 v1, v[{TT+4}:{TT+7}]')
A(f'ds_write_b32 v6, v5 offset:{L_SC}')
A(f's_movk_i32 s42, {MINI}')
A('v_cmp_gt_u32 s[40:41], s42, v0')
A('s_waitcnt lgkmcnt(0)')
A('s_load_dword s36, s[12:13], 0')
srd(S_IN, 6, T * 4); srd(S_OUT, 8, T * 4); srd(S_ANG, 10, T * 2); srd(S_WS, 14, WS_BYTES); srd(S_M, 4, E * 8)
A('s_lshr_b32 s50, s50, 6')
if OPT['il']:
    if OPT['il'] == 1:
        A('s_lshl_b32 s37, s2, 14')
    elif OPT['il'] == 5:
        A(f's_mul_i32 s37, s50, {256*6144 - 1024}')
        A('s_mul_i32 s38, s2, 6144')
        A('s_add_u32 s37, s37, s38')
    elif OPT['il'] == 6:
        A(f's_mul_i32 s37, s50, {6144 - 1024}')
        A(f's_mul_i32 s38, s2, {96*1024}')
        A('s_add_u32 s37, s37, s38')
    elif OPT['il'] == 7:
        A(f's_mul_i32 s37, s2, {96*1024}')
    elif OPT['il'] == 8:
        A('s_lshr_b32 s38, s2, 3')
        A('s_add_u32 s38, s38, s50')
        A('s_and_b32 s38, s38, 15')
        A('s_sub_i32 s38, s38, s50')
        A('s_lshl_b32 s38, s38, 10')
        A('s_lshl_b32 s37, s2, 14')
        A('s_add_i32 s37, s37, s38')
    else:
        G_ = OPT['il']
        A(f's_lshr_b32 s38, s50, {G_-2}')
        A(f's_mul_i32 s37, s38, {255 * (1024 << (G_-2))}')
        A(f's_lshl_b32 s38, s2, {10 + G_ - 2}')
        A('s_add_u32 s37, s37, s38')
    A('s_lshr_b32 s38, s37, 1')
    A(f's_mul_i32 s68, s2, {MINI*4}')
    A(f's_mul_i32 s69, s2, {MINI*2}')
else:
    A(f's_mul_i32 s37, s2, {2*S*4}')
    A(f's_mul_i32 s38, s2, {2*S*2}')
UA = 24
unitA = [(UA + 10*k, UA + 10*k + 4, UA + 10*k + 8) for k in range(6)] + [(84, 85, 86)]
unitB = [(88 + 10*k, 88 + 10*k + 4, 88 + 10*k + 8) for k in range(4)] + [unitA[0], unitA[1], (44, 45, 46)]
vm = []
ldf = OPT['ld_in']
def load_unit(tag, k):
    vi, vo, va = (unitA if tag == 'A' else unitB)[k]
    tile = 0 if tag == 'A' else 1
    if OPT['il'] and k < 6:
        us = {5: 1024, 6: 1024, 7: 16384}.get(OPT['il'], 256 * 16384)
        A(f's_add_u32 s43, s37, {tile*6*256*16384 + k*us}')
        A(f's_add_u32 s44, s38, {tile*6*256*8192 + k*us//2}')
    elif OPT['il']:
        A(f's_add_u32 s43, s68, {12*256*16384 + tile*256*MINI*4}')
        A(f's_add_u32 s44, s69, {12*256*8192 + tile*256*MINI*2}')
    else:
        A(f's_add_u32 s43, s37, {tile*S*4 + k*16384}')
        A(f's_add_u32 s44, s38, {tile*S*2 + k*8192}')
    if k < 6:
        A(f'buffer_load_dwordx4 v[{vo}:{vo+3}], v1, s[{S_OUT}:{S_OUT+3}], s43 offen {ldf}')
        A(f'buffer_load_dwordx4 v[{vi}:{vi+3}], v1, s[{S_IN}:{S_IN+3}], s43 offen {ldf}')
        A(f'buffer_load_dwordx2 v[{va}:{va+1}], v2, s[{S_ANG}:{S_ANG+3}], s44 offen {ldf}')
    else:
        A('s_or_b64 exec, s[40:41], 1')
        A(f'buffer_load_dword v{vo}, v6, s[{S_OUT}:{S_OUT+3}], s43 offen {ldf}')
        A(f'buffer_load_dword v{vi}, v6, s[{S_IN}:{S_IN+3}], s43 offen {ldf}')
        A(f'buffer_load_ushort v{va}, v7, s[{S_ANG}:{S_ANG+3}], s44 offen {ldf}')
        A('s_mov_b64 exec, -1')
    vm.extend([(tag, k)] * 3)
def vwait(tag):
    idx = max(i for i, t in enumerate(vm) if t == tag)
    A(f's_waitcnt vmcnt({min(len(vm)-1-idx, 63)})')
stamp('stamp')
for k in range(OPT['pre']): load_unit('A', k)
A('s_barrier')
A('s_lshl_b32 s39, s2, 4')
A('s_add_u32 s39, s39, s50')
A(f's_sub_u32 s42, s39, {4*NR*NBK}')
A(f's_cmp_ge_u32 s39, {4*NR*NBK}')
A('s_cselect_b32 s39, s42, s39')
A('s_cselect_b32 s70, 1, 0')
A('s_lshl_b32 s45, s39, 10')
A(f's_mul_hi_u32 s42, s39, {(2**32 + NBK - 1)//NBK:#x}')
A(f's_mul_i32 s42, s42, {CHS - CHI*8}')
A('s_sub_u32 s39, s45, s42')
A(f's_add_u32 s45, s45, {MP_BASE:#x}')
A(f'v_and_b32 v{TT+4}, 0xfc, v6')
A(f'v_and_b32 v{TT+5}, 0x3f0, v1')
for k in range(4):
    A(f'buffer_load_dword v{TT+k}, v{TT+4}, s[{S_M}:{S_M+3}], s39 offen offset:{256*k}'); vm.append('M')
for k in range(OPT['pre'], 7): load_unit('A', k)
if OPT['prio']: A('s_setprio 0')
_hi = f32bits(1/(2*math.pi)) & 0xFFFFFF00
A(f's_mov_b32 s46, {_hi:#x}')
A(f's_mov_b32 s47, {f32bits(1/(2*math.pi) - struct.unpack("<f", struct.pack("<I", _hi))[0]):#x}')
A('s_mov_b32 s48, 0xfc000000')
A('s_mov_b32 s49, 0xffff0000')
A(f's_mov_b32 s51, {(-CH) & 0xffffffff:#x}')
A('s_mov_b32 s52, 0x00020002')
A(f's_movk_i32 s55, {1024-NR}')
A(f's_mov_b32 s54, {(-CHI) & 0xffffffff:#x}')
A('s_mov_b32 s53, 0x55555556')
A('s_waitcnt lgkmcnt(0)')
A('s_lshl_b32 s36, s36, 16')

PT = TT + 11
def process(tag, k):
    vi0, vo0, va0 = (unitA if tag == 'A' else unitB)[k]
    inc = 3 if tag == 'A' else 4
    n = 4 if k < 6 else 1
    vwait((tag, k))
    skip = None
    if k == 6:
        skip = newlab('P_MS')
        A('s_mov_b64 exec, s[40:41]')
        A(f's_cbranch_execz {skip}')
    tj, ti, t1 = PT, PT + 1, PT + 2
    for j in range(n):
        vi, vo = vi0 + j, vo0 + j
        A(f'v_mul_hi_u32_u24 v{tj}, {MAGIC_I:#x}, v{vi}')
        A(f'v_mul_hi_u32_u24 v{ti}, {MAGIC_DIV:#x}, v{vo}')
        A(f'v_mul_u32_u24 v{t1}, {(65536 + NR - 1)//NR}, v{tj}')
        A(f'v_mad_i32_i24 v{vi}, v{tj}, s54, v{vi}')
        A(f'v_mad_i32_i24 v{vo}, v{ti}, s51, v{vo}')
        A(f'v_lshrrev_b32 v{t1}, 16, v{t1}')
        A(f'v_lshl_or_b32 v{vi}, v{vo}, 13, v{vi}')
        A(f'v_lshl_add_u32 v{vo}, v{ti}, 4, v{tj}')
        A(f'v_mad_u32_u24 v{vo}, v{t1}, s55, v{vo}')
        A(f'v_lshlrev_b32 v{vo}, 2, v{vo}')
        A(f'ds_add_u32 v{vo}, v{inc} offset:{L_H}')
    a0, a1 = PT + 3, PT + 4
    assert a0 % 2 == 0
    npair = (n + 1) // 2
    nf = newlab('P_NF')
    A('s_cmp_eq_u32 s36, 0x3f800000')
    A(f's_cbranch_scc1 {nf}')
    for p in range(npair):
        va = va0 + p
        A(f'v_lshlrev_b32 v{a0}, 16, v{va}')
        A(f'v_and_b32 v{a1}, s49, v{va}')
        A(f'v_mul_f32 v{a0}, s36, v{a0}')
        A(f'v_mul_f32 v{a1}, s36, v{a1}')
        A(f'v_cvt_pk_bf16_f32 v{va}, v{a0}, v{a1}')
    L(nf)
    for p in range(npair):
        va = va0 + p
        A(f'v_lshlrev_b32 v{a0}, 16, v{va}')
        A(f'v_and_b32 v{a1}, s49, v{va}')
        A(f'v_mul_f32 v{tj}, s46, v{a0}')
        A(f'v_mul_f32 v{ti}, s46, v{a1}')
        A(f'v_fract_f32 v{tj}, v{tj}')
        A(f'v_fract_f32 v{ti}, v{ti}')
        A(f'v_fmac_f32 v{tj}, s47, v{a0}')
        A(f'v_fmac_f32 v{ti}, s47, v{a1}')
        A(f'v_cos_f32 v{a0}, v{tj}')
        A(f'v_cos_f32 v{a1}, v{ti}')
        A('s_nop 0')
        if OPT['cbf']:
            A(f'v_cvt_pk_bf16_f32 v{va}, v{a0}, v{a1}')
            A(f'v_lshlrev_b32 v{a0}, 16, v{va}')
            A(f'v_and_b32 v{a1}, s49, v{va}')
            A(f'v_cvt_pk_f16_f32 v{va}, v{a0}, v{a1}')
        else:
            A(f'v_cvt_pk_f16_f32 v{va}, v{a0}, v{a1}')
            A(f'v_pk_add_u16 v{va}, v{va}, s52')
        e0, e1 = 2*p, 2*p + 1
        A(f'v_lshlrev_b32 v{a0}, 16, v{va}')
        if e1 < n: A(f'v_and_or_b32 v{vi0+e1}, v{va}, s48, v{vi0+e1}')
        A(f'v_and_or_b32 v{vi0+e0}, v{a0}, s48, v{vi0+e0}')
        A(f'v_lshrrev_b32 v{va}, 2, v{va}')
    if k == 6:
        L(skip)
        A('s_mov_b64 exec, -1')

def maxm():
    vwait('M')
    M = TT + 6
    A('s_mov_b32 s42, 0x7fff7fff')
    for j in range(4): A(f'v_and_b32 v{M+j}, s42, v{TT+j}')
    A(f'v_pk_max_u16 v{M}, v{M}, v{M+2}')
    A(f'v_pk_max_u16 v{M+1}, v{M+1}, v{M+3}')
    A(f'v_pk_max_u16 v{M}, v{M}, v{M+1}')
    A(f'v_lshrrev_b32 v{M+1}, 16, v{M}')
    A(f'v_and_b32 v{M}, 0xffff, v{M}')
    A(f'v_max_u32 v{M}, v{M}, v{M+1}')
    dpp_scan('v_max_u32', M)
    A('s_nop 1')
    A(f'v_readlane_b32 s42, v{M}, 63')
    A('s_nop 1')
    A(f'v_mov_b32 v{M}, s42')
    A('s_mov_b64 exec, 1')
    A(f'ds_max_u32 v5, v{M} offset:{L_SC+128}')
    A('s_mov_b64 exec, -1')
def mpload():
    A('v_and_b32 v47, 0xfc, v6')
    for k in range(4):
        A(f'buffer_load_dword v{84+k}, v47, s[{S_M}:{S_M+3}], s39 offen offset:{256*k}'); vm.append('M2')
def mpstore():
    A('s_cmp_eq_u32 s70, 1')
    A('s_cbranch_scc1 P_NOMP')
    vwait('M2')
    A('v_and_b32 v47, 0x3f0, v1')
    A(f'buffer_store_dwordx4 v[84:87], v47, s[{S_WS}:{S_WS+3}], s45 offen {OPT["st_mp"]}')
    L('P_NOMP')

def zrow(src, h, tile):
    for j in range(4):
        A(f'v_mul_hi_u32 v{h+8}, v{src+j}, s53')
        A(f'v_add_u32 v{h+10+j}, v{h+8}, v{src+j}')
    A(f'v_lshl_or_b32 v{h+8}, v{h+11}, 16, v{h+10}')
    A(f'v_lshl_or_b32 v{h+9}, v{h+13}, 16, v{h+12}')
    if tile == 0:
        A(f'v_and_b32 v{h+14}, -32, v2')
        A(f'v_add_u32 v{h+14}, v{h+14}, v2')
    A(f's_mul_i32 s42, s2, {OFS}')
    A(f's_add_u32 s42, s42, {OFF_BASE:#x}')
    A(f'buffer_store_dwordx2 v[{h+8}:{h+9}], v{h+14}, s[{S_WS}:{S_WS+3}], s42 offen offset:{64+32*tile}')
    vm.append(('OFS', tile))

def scan(tile, scoff):
    h = TT
    A('s_waitcnt lgkmcnt(0)')
    A('s_barrier')
    A(f'ds_read_b128 v[{h}:{h+3}], v1 offset:{L_H}')
    A(f'v_and_b32 v{h+5}, 63, v0')
    A(f'v_cmp_lt_u32 vcc, s50, v{h+5}')
    A(f'v_lshlrev_b32 v{h+5}, 2, v{h+5}')
    A('s_and_b64 s[56:57], vcc, 0xffff')
    A('s_waitcnt lgkmcnt(0)')
    if tile == 1:
        for j in range(4): A(f'v_and_b32 v{h+10+j}, 0xffff, v{h+j}')
        for j in range(4): A(f'v_lshrrev_b32 v{h+j}, 16, v{h+j}')
    for j in range(1, 4): A(f'v_add_u32 v{h+j}, v{h+j-1}, v{h+j}')
    A(f'v_mov_b32 v{h+4}, v{h+3}')
    dpp_scan('v_add_u32', h + 4)
    A('s_nop 1')
    A(f'v_readlane_b32 s42, v{h+4}, 63')
    A('s_nop 1')
    A(f'v_mov_b32 v{h+6}, s42')
    A('s_mov_b64 exec, s[56:57]')
    A(f'ds_add_u32 v{h+5}, v{h+6} offset:{scoff}')
    A('s_mov_b64 exec, -1')
    A('s_lshl_b32 s42, s50, 2')
    A(f'v_mov_b32 v{h+5}, s42')
    A(f'v_sub_u32 v{h+4}, v{h+4}, v{h+3}')
    if tile == 1: zrow(h + 10, h, 0)
    A('s_waitcnt lgkmcnt(0)')
    A('s_barrier')
    A(f'ds_read_b32 v{h+5}, v{h+5} offset:{scoff}')
    if tile == 1: A(f'ds_read_b32 v{h+6}, v5 offset:{L_SC+128}')
    A('s_waitcnt lgkmcnt(0)')
    A(f'v_add_u32 v{h+4}, v{h+4}, v{h+5}')
    if tile == 1:
        for j in range(4): A(f'v_add_u32 v{h+10+j}, v{h+4}, v{h+j}')
    for j in (3, 2, 1): A(f'v_add_u32 v{h+j}, v{h+4}, v{h+j-1}')
    A(f'v_mov_b32 v{h}, v{h+4}')
    A(f'ds_write_b128 v1, v[{h}:{h+3}] offset:{L_H}')
    if tile == 1:
        zrow(h + 10, h, 1)
        done = newlab('P_SC')
        A('s_cmp_lg_u32 s50, 0')
        A(f's_cbranch_scc1 {done}')
        A('s_mov_b64 exec, 1')
        A(f'buffer_store_dword v5, v5, s[{S_WS}:{S_WS+3}], s42 offen offset:28')
        A(f'buffer_store_dword v5, v5, s[{S_WS}:{S_WS+3}], s42 offen offset:60')
        A(f's_add_u32 s42, s2, {MAX_BASE:#x}')
        A(f'v_lshrrev_b32 v{h+6}, 7, v{h+6}')
        A(f'buffer_store_byte v{h+6}, v5, s[{S_WS}:{S_WS+3}], s42 offen')
        A('s_mov_b64 exec, -1')
        L(done)
    A('s_waitcnt lgkmcnt(0)')
    A('s_barrier')

def scatter(tag, after_wait, after_fin):
    units = unitA if tag == 'A' else unitB
    lg = []
    def issue(k):
        vi0, vo0, _ = units[k]
        n = 4 if k < 6 else 1
        if k == 6: A('s_mov_b64 exec, s[40:41]')
        for j in range(n):
            A(f'ds_add_rtn_u32 v{TT+4*(k&1)+j}, v{vo0+j}, v3 offset:{L_H}')
            lg.append(('R', k))
        if k == 6: A('s_mov_b64 exec, -1')
    def fin(k):
        vi0, vo0, va0 = units[k]
        n = 4 if k < 6 else 1
        if k == 6: A('s_mov_b64 exec, s[40:41]')
        for j in range(n):
            t = TT + 4*(k & 1) + j
            q, a = TT + 8, TT + 9 + (j & 1)
            if tag == 'A': A(f'v_and_b32 v{t}, 0xffff, v{t}')
            A(f'v_mul_hi_u32 v{q}, v{t}, s53')
            A(f'v_lshlrev_b32 v{a}, 2, v{t}')
            A(f'v_add_u32 v{t}, v{q}, v{t}')
            A(f'ds_write_b32 v{a}, v{vi0+j} offset:{L_W}')
            A(f'ds_write_b8{"_d16_hi" if j & 1 else ""} v{t}, v{va0+j//2} offset:{L_X}')
            lg.extend([('W', k)] * 2)
        if k == 6: A('s_mov_b64 exec, -1')
    issue(0)
    for k in range(7):
        if k + 1 < 7: issue(k + 1)
        idx = max(i for i, t in enumerate(lg) if t == ('R', k) or t == ('W', k - 1))
        ny = sum(1 for t in lg[idx+1:] if t[1] != 6)
        A(f's_waitcnt lgkmcnt({min(ny, 15)})')
        if k in after_wait: after_wait[k]()
        fin(k)
        if k in after_fin:
            after_fin[k]()
            lg.extend([('H', k)] * 4)
    A('s_waitcnt lgkmcnt(0)')
    A('s_barrier')

RC = (NBLK + 1023) // 1024
lastc = NBLK - (RC - 1) * 1024
def copyout(tile, regs, ar):
    A(f's_movk_i32 s42, {lastc}')
    A('v_cmp_gt_u32 s[56:57], s42, v0')
    A(f'v_mul_u32_u24 v{ar[0]}, 12, v0')
    A(f'v_add_u32 v{ar[0]}, {L_W}, v{ar[0]}')
    A(f's_mul_i32 s42, s2, {2*RS}')
    if tile: A(f's_add_u32 s42, s42, {RS}')
    def rd(j):
        r = regs[j]
        if j == RC - 1: A('s_mov_b64 exec, s[56:57]')
        A(f'ds_read2_b32 v[{r}:{r+1}], v{ar[0]} offset0:0 offset1:1')
        A(f'ds_read_b32 v{r+2}, v{ar[0]} offset:8')
        A(f'ds_read_b32 v{r+3}, v6 offset:{L_X + j*4096}')
        if j == RC - 1: A('s_mov_b64 exec, -1')
        else: A(f'v_add_u32 v{ar[0]}, {12*1024}, v{ar[0]}')
    LA = 4
    for j in range(LA): rd(j)
    for j in range(RC):
        if j + LA < RC: rd(j + LA)
        A(f's_waitcnt lgkmcnt({3*max(0, min(LA, RC-2-j))})')
        if j == RC - 1: A('s_mov_b64 exec, s[56:57]')
        A(f'buffer_store_dwordx4 v[{regs[j]}:{regs[j]+3}], v1, s[{S_WS}:{S_WS+3}], s42 offen {OPT["st_ws"]}')
        if j < RC - 1: vm.append(('ST', tile, j))
        if j < RC - 1: A('s_add_u32 s42, s42, 16384')
    A('s_mov_b64 exec, -1')

stamp('stamp')
process('A', 0)
stamp('stamp')
maxm()
for k in range(1, 7): process('A', k)
stamp('stamp')
NPB = OPT['npb']
for k in range(NPB): load_unit('B', k)
scan(0, L_SC)
stamp('stamp')
ilv = dict((int(x.split(':')[0]), int(x.split(':')[1])) for x in OPT['ilv'].split(',')) if OPT['ilv'] else {}
pend = list(range(NPB, 7))
aw = {}
for k in range(7):
    take = []
    while pend and len(take) < OPT['bps'] and (pend[0] < 4 or k >= pend[0] - 3):
        take.append(pend.pop(0))
    if k == 6: take += pend; pend = []
    if take: aw[k] = (lambda tk=take: [load_unit('B', b) for b in tk])
scatter('A', aw, {k: (lambda b=b: process('B', b)) for k, b in ilv.items()})
def cpf_code():
    if OPT['cpf']:
        A('s_cmp_lg_u32 s50, 15')
        A('s_cbranch_scc1 P_NOCPF')
        A('s_getpc_b64 s[58:59]')
        L('P_PC')
        A('s_add_u32 s58, s58, acc_kernel-P_PC')
        A('s_addc_u32 s59, s59, 0')
        A('v_and_b32 v19, 63, v0')
        A('v_lshlrev_b32 v19, 7, v19')
        for j in range(3):
            A(f'v_min_u32 v20, CODE_END-acc_kernel-4, v19')
            A(f'global_load_dword v21, v20, s[58:59]')
            A('v_add_u32 v19, 8192, v19')
        L('P_NOCPF')
stamp('stamp')
CR = [48 + 4*j for j in range(RC)]
mpload()
if OPT['dst'] == '':
    copyout(0, CR, [TT, TT + 1, TT + 2])
    stamp('stamp')
    for k in range(7):
        if k not in ilv.values(): process('B', k)
    stamp('stamp')
    scan(1, L_SC + 64)
    cpf_code()
    stamp('stamp')
    scatter('B', {}, {})
else:
    A(f's_movk_i32 s42, {lastc}')
    A('v_cmp_gt_u32 s[64:65], s42, v0')
    A(f'v_mul_u32_u24 v{TT}, 12, v0')
    A(f'v_add_u32 v{TT}, {L_W}, v{TT}')
    A(f's_mul_i32 s66, s2, {2*RS}')
    for j in range(RC):
        r = CR[j]
        if j == RC - 1: A('s_mov_b64 exec, s[64:65]')
        A(f'ds_read2_b32 v[{r}:{r+1}], v{TT} offset0:0 offset1:1')
        A(f'ds_read_b32 v{r+2}, v{TT} offset:8')
        A(f'ds_read_b32 v{r+3}, v6 offset:{L_X + j*4096}')
        if j == RC - 1: A('s_mov_b64 exec, -1')
        else: A(f'v_add_u32 v{TT}, {12*1024}, v{TT}')
    nst = [0]
    def st(n):
        for _ in range(n):
            j = nst[0]
            if j >= RC: return
            nst[0] += 1
            if j == RC - 1: A('s_mov_b64 exec, s[64:65]')
            A(f'buffer_store_dwordx4 v[{CR[j]}:{CR[j]+3}], v1, s[{S_WS}:{S_WS+3}], s66 offen {OPT["st_ws"]}')
            if j < RC - 1:
                vm.append(('ST', 0, j)); A('s_add_u32 s66, s66, 16384')
            else: A('s_mov_b64 exec, -1')
    sch = [int(c) for c in OPT['dst']]
    rest = [k for k in range(7) if k not in ilv.values()]
    process('B', rest[0])
    A('s_waitcnt lgkmcnt(0)')
    st(sch[0])
    stamp('stamp')
    for k in rest[1:]: process('B', k)
    st(sch[1])
    stamp('stamp')
    scan(1, L_SC + 64)
    cpf_code()
    stamp('stamp')
    scatter('B', {k: (lambda n=sch[2+k]: st(n)) for k in range(7)}, {})
    assert nst[0] == RC
mpstore()

def tabgen():
    A('s_cmp_ge_u32 s50, 4')
    A('s_cbranch_scc1 P_NOTAB')
    A('s_load_dwordx2 s[4:5], s[0:1], 40')
    A('s_load_dwordx4 s[8:11], s[0:1], 56')
    A('s_lshl_b32 s42, s2, 8')
    D, a_, b_, t, RB, O = 8, 9, 10, 11, 12, 88
    A(f'v_add_u32 v{D}, s42, v0')
    A(f'v_lshlrev_b32 v16, 5, v{D}')
    A(f'v_lshlrev_b32 v{D}, 16, v{D}')
    A('s_waitcnt lgkmcnt(0)')
    A('s_load_dwordx4 s[4:7], s[4:5], 0')
    A('s_load_dwordx16 s[68:83], s[8:9], 0')
    A('s_load_dwordx16 s[84:99], s[10:11], 0')
    A(f's_mov_b32 s44, {f32bits(-10.0):#x}')
    A(f's_mov_b32 s45, {f32bits(math.log2(math.e)):#x}')
    def rnd():
        A(f'v_cvt_pk_bf16_f32 v{t}, v{a_}, v{b_}')
        A(f'v_lshlrev_b32 v{a_}, 16, v{t}')
        A(f'v_and_b32 v{b_}, s49, v{t}')
    A('s_waitcnt lgkmcnt(0)')
    for r in range(0, 8, 2):
        A(f's_lshl_b32 s42, s{4+r//2}, 16')
        A(f's_and_b32 s43, s{4+r//2}, 0xffff0000')
        A(f'v_subrev_f32 v{a_}, s42, v{D}')
        A(f'v_subrev_f32 v{b_}, s43, v{D}')
        rnd()
        A(f'v_mul_f32 v{a_}, v{a_}, v{a_}')
        A(f'v_mul_f32 v{b_}, v{b_}, v{b_}')
        rnd()
        A(f'v_mul_f32 v{a_}, s44, v{a_}')
        A(f'v_mul_f32 v{b_}, s44, v{b_}')
        rnd()
        A(f'v_mul_f32 v{a_}, s45, v{a_}')
        A(f'v_mul_f32 v{b_}, s45, v{b_}')
        A(f'v_exp_f32 v{a_}, v{a_}')
        A(f'v_exp_f32 v{b_}, v{b_}')
        A('s_nop 0')
        A(f'v_cvt_pk_bf16_f32 v{RB+r//2}, v{a_}, v{b_}')
    for r in range(0, 8, 2):
        for base, dst in ((84, O), (68, O + 4)):
            for d in range(4):
                op = 's_pack_hh_b32_b16' if d & 1 else 's_pack_ll_b32_b16'
                A(f'{op} s{42+(d&1)}, s{base + r*2 + d//2}, s{base + (r+1)*2 + d//2}')
                c = '0' if r == 0 else f'v{dst+d}'
                A(f'v_dot2_f32_bf16 v{dst+d}, v{RB+r//2}, s{42+(d&1)}, {c}')
    A('s_nop 2')
    A(f'v_cvt_pk_bf16_f32 v{O+4}, v{O+4}, v{O+5}')
    A(f'v_cvt_pk_bf16_f32 v{O+5}, v{O+6}, v{O+7}')
    A(f's_mov_b32 s42, {TAB_BASE:#x}')
    A(f'buffer_store_dwordx4 v[{O}:{O+3}], v16, s[{S_WS}:{S_WS+3}], s42 offen')
    A(f'buffer_store_dwordx4 v[{O+4}:{O+7}], v16, s[{S_WS}:{S_WS+3}], s42 offen offset:16')
    L('P_NOTAB')
stamp('stamp')
copyout(1, [48 + 4*j for j in range(RC)], [TT, TT + 1, TT + 2])
if OPT['tab']: tabgen()
stamp('stamp')
if OPT['stamp'] >= 0: A('s_waitcnt vmcnt(0)')
stamp('stamp')
if OPT.get('allst', 0):
    A(f's_cmp_lg_u32 s50, {OPT.get("swave", 0)}')
    A('s_cbranch_scc1 P_END')
    A('s_lshl_b32 s42, s2, 6')
    A('s_add_u32 s42, s42, 0xF000000')
    A('s_mov_b64 exec, 1')
    for n in range(stampn[0]):
        A(f'v_mov_b32 v{TT+1}, s{76+n}')
        A(f'buffer_store_dword v{TT+1}, v5, s[{S_WS}:{S_WS+3}], s42 offen offset:{4*n}')
        A('s_nop 1')
else: stamp_flush('stamp', 50, TT, OPT.get('swave', 0))
abs_end(87, 64, 0, 16)
L('P_END')
A('s_endpgm')

st2n = [0]
def stamp2():
    if OPT['stamp2'] < 0: return
    n = st2n[0]; st2n[0] += 1
    A(OPT.get('clk','s_memtime').replace(' ','_') + ' s[4:5]')
    A('s_waitcnt lgkmcnt(0)')
    A(f'v_writelane_b32 v127, s4, {n+2}')
khead('acc_kernel')
A('s_cmp_ge_u32 s2, 256')
A('s_cbranch_scc1 Q_END')
abs_start(127)
A('s_load_dwordx2 s[4:5], s[0:1], 0')
A('s_load_dwordx2 s[6:7], s[0:1], 104')
if OPT['pp']: A('s_setprio 3')
S_M, S_WS = 8, 12
A('s_and_b32 s3, s2, 7')
A('s_lshl_b32 s3, s3, 5')
A('s_lshr_b32 s16, s2, 3')
A('s_add_u32 s3, s3, s16')
VTB = 5; VOF = 8
VEB = VOF + 18
def EB(slot, s): return VEB + (slot * 2 + s) * 4
VG = VEB + 32
GP = [0]
def G(s, e): return VG + ((s + (GP[0] if s else 0)) * 3 + e) * 2
VCH = VG + 18
VT = VCH + 16
VA = VT + 6
VSH, VFC = VT + 10, VT + 11
VLA, VLB = VT + 12, VT + 13
VFB = VT + 14
VFG = VFB + 4
VL2 = VFG + 6
V3 = VL2
assert VFB % 2 == 0 and VL2 + 2 <= 126
def OF(s, k): return VOF + 9*s + k
def MK(slot, s, e): return 54 + slot * 12 + (s * 3 + e) * 2
A('v_and_b32 v1, 3, v0')
A('v_lshlrev_b32 v2, 4, v0')
A('v_lshrrev_b32 v3, 2, v0')
A('v_and_b32 v4, 1, v0')
A(f'v_mul_u32_u24 v{VT}, {OFS}, v3')
A(f'v_lshl_add_u32 v{VT+1}, v1, 4, v{VT}')
A(f'v_and_b32 v{VT}, -32, v{VT+1}')
A(f'v_and_b32 v{VT+2}, 63, v0')
A(f'v_lshlrev_b32 v{VT+2}, 2, v{VT+2}')
if not OPT['abst']: A('v_mov_b32 v127, 0')
A('s_lshl_b32 s17, s3, 6')
A(f's_add_u32 s17, s17, {OFF_BASE:#x}')
A(f's_mov_b32 s19, {MAX_BASE:#x}')
A('s_lshr_b32 s20, s3, 6')
A(f's_mul_i32 s20, s20, {NR*CHS}')
A(f's_add_u32 s20, s20, {MP_BASE:#x}')
A('v_cmp_gt_u32 s[22:23], 64, v0')
A('v_readfirstlane_b32 s21, v0')
A('s_nop 3')
A('s_lshl_b32 s50, s21, 4')
A('s_mov_b32 m0, s50')
A('s_waitcnt lgkmcnt(0)')
srd(S_M, 4, E * 8); srd(S_WS, 6, WS_BYTES)
TO = VG
A(f'buffer_load_dwordx4 v[{TO}:{TO+3}], v{VT+1}, s[{S_WS}:{S_WS+3}], s17 offen offset:64')
A(f'buffer_load_dword v{TO+4}, v{VT}, s[{S_WS}:{S_WS+3}], s17 offen offset:28')
A(f'buffer_load_dword v{VT+9}, v{VT+2}, s[{S_WS}:{S_WS+3}], s19 offen')
if OPT['pp']: A('s_setprio 1' if OPT['pp'] == 2 else 's_setprio 2')
stamp2()
INLOOP = [0]
ool = []
def chall(lastchk=False):
    sk = newlab('Q_C')
    if lastchk:
        A(f's_cmp_eq_u32 s33, {(NR-2)//4}')
        A('s_cselect_b64 exec, 1, -1')
    else: A('s_mov_b64 exec, -1')
    A(f's_cmp_ge_u32 s50, {(NBK-48)*1024}')
    A(f's_cbranch_scc1 {sk}')
    A(f's_add_u32 s21, s20, {3*16384}')
    if not (OPT['skip_ch'] and INLOOP[0]): A(f'buffer_load_dwordx4 v[{VCH+12}:{VCH+15}], v2, s[{S_WS}:{S_WS+3}], s21 offen {OPT["ld_ch"]}')
    L(sk)
    for j in range(3):
        A(f's_add_u32 s21, s20, {j*16384}')
        if not (OPT['skip_ch'] and INLOOP[0]): A(f'buffer_load_dwordx4 v[{VCH+4*j}:{VCH+4*j+3}], v2, s[{S_WS}:{S_WS+3}], s21 offen {OPT["ld_ch"]}')
    A(f's_add_u32 s20, s20, {CHS}')
def fill():
    if OPT['skip_fill']: return
    sk = newlab('Q_F')
    A('s_mov_b64 exec, -1')
    for j in range(4):
        if j == 3:
            A(f's_cmp_ge_u32 s50, {(NBK-48)*1024}')
            A(f's_cbranch_scc1 {sk}')
        for k in range(4): A(f'ds_write_addtid_b32 v{VCH+4*j+k} offset:{j*16384+256*k}')
    L(sk)
chall()
A(f's_mov_b32 s16, {2*RS}')
A(f'v_mul_lo_u32 v{VTB}, v3, s16')
A(f'v_add_u32 v{VTB+1}, {RS}, v{VTB}')
A('v_cmp_eq_u32 s[36:37], 3, v1')
A('v_and_b32 v4, 63, v0')
A('v_lshlrev_b32 v1, 2, v1')
A('s_mov_b32 s44, 0')
A('s_lshr_b32 s45, s3, 6')
A(f's_mul_i32 s45, s45, {NR*CHI*8}')
A(f'v_add_u32 v3, {L_A}, v2')
z = VEB + 28
for r in range(4): A(f'v_mov_b32 v{z+r}, 0')
for j in range(4): A(f'ds_write_b128 v3, v[{z}:{z+3}] offset:{j*16384}')
A(f'v_add_u32 v{VT+6}, 65536, v3')
for j in range(2): A(f'ds_write_b128 v{VT+6}, v[{z}:{z+3}] offset:{j*16384}')
A('s_movk_i32 s16, 106')
A('v_cmp_gt_u32 s[24:25], s16, v0')
A('s_mov_b64 exec, s[24:25]')
A(f'ds_write_b128 v{VT+6}, v[{z}:{z+3}] offset:{2*16384}')
A('s_mov_b64 exec, -1')
A(f'v_mov_b32 v126, {L_SC2}')
VONE = VSH
A('s_mov_b64 exec, 1')
A(f'ds_write_b128 v126, v[{z}:{z+3}]')
A('s_mov_b64 exec, -1')
A('s_mov_b32 s30, 0xffff0000')
A(f's_mov_b32 s31, {L_A}')
A('s_mov_b32 s35, 0xfc000000')
A(f'v_mov_b32 v{VSH}, 18')
A(f'v_mov_b32 v{V3}, 3')
A(f'v_mov_b32 v{VFC}, 0xfffc')
A('s_waitcnt vmcnt(3)')
for s_ in range(2):
    for k in range(9):
        ln = 2*s_ + (1 if k >= 5 else 0)
        src = TO + ((k - 1) % 4 if k > 0 else 4)
        A(f'v_mov_b32_dpp v{OF(s_,k)}, v{src} quad_perm:[{ln},{ln},{ln},{ln}] row_mask:0xf bank_mask:0xf')

def pfcalc(s_, r, masks=True):
    slot = r % 4
    r0, h0, r1, h1 = (r + 1) >> 1, (r + 1) & 1, (r + 2) >> 1, r & 1
    y, d, ln, ad = VT, VT + 7, VT + 8, VA
    a, b = OF(s_, r0), OF(s_, r1)
    m = [MK(slot, s_, k) for k in range(3)]
    A('s_mov_b64 exec, -1')
    A(f'v_and_b32_sdwa v{y}, v{a}, v{VFC} {SD} src0_sel:WORD_{h0} src1_sel:DWORD')
    A(f'v_sub_u32_sdwa v{ln}, v{b}, v{a} {SD} src0_sel:WORD_{h1} src1_sel:WORD_{h0}')
    A(f'v_add_u32 v{y}, v{y}, v1')
    A(f'v_sub_u32_sdwa v{d}, v{y}, v{a} {SD} src0_sel:DWORD src1_sel:WORD_{h0}')
    A(f'v_lshl_add_u32 v{ad}, v{y}, 2, v{VTB+s_}')
    if masks:
        A(f'v_cmp_lt_u32 s[{m[0]}:{m[0]+1}], v{d}, v{ln}')
        A(f'v_add_u32 v{d}, 1, v{d}')
        A(f'v_cmp_lt_u32 s[{m[1]}:{m[1]+1}], v{d}, v{ln}')
        A(f'v_add_u32 v{d}, 1, v{d}')
        A(f'v_cmp_lt_u32 s[{m[2]}:{m[2]+1}], v{d}, v{ln}')
def pf1(s_, r, live=False, det=True):
    slot = r % 4
    m = [MK(slot, s_, k) for k in range(3)]
    e = EB(slot, s_)
    pfcalc(s_, r)
    A(f's_or_b64 vcc, s[{m[0]}:{m[0]+1}], s[{m[1]}:{m[1]+1}]')
    A(f's_or_b64 vcc, vcc, s[{m[2]}:{m[2]+1}]')
    if live: A('s_and_b64 vcc, vcc, s[18:19]')
    A('s_or_b64 exec, vcc, 1' if not OPT['skip_pf'] else 's_mov_b64 exec, -1')
    if not (OPT['skip_pf'] and INLOOP[0]): A(f'buffer_load_dwordx4 v[{e}:{e+3}], v{VA}, s[{S_WS}:{S_WS+3}], 0 offen {OPT["ld_ent"]}')
def xl(r):
    A('s_mov_b64 exec, -1')
    A(f's_add_u32 s47, s46, {r}')
    A(f'v_cmp_eq_u32 vcc, s47, v{VLB}')
    A('s_or_b64 exec, vcc, s[48:49]')
    A(f'buffer_load_dwordx4 v[{VFB}:{VFB+3}], v{VLA}, s[{S_WS}:{S_WS+3}], 0 offen')
def xg(r):
    A('s_mov_b64 exec, -1')
    A(f's_add_u32 s47, s46, {r}')
    A(f'v_cmpx_eq_u32 vcc, s47, v{VLB}')
    for e in range(3): gaddr(VFB + e, VFG + 2*e)
    for e in range(3):
        A(f's_and_b64 exec, vcc, s[{40+2*e}:{41+2*e}]')
        if not OPT['skip_g']: A(f'ds_read_b64 v[{VFG+2*e}:{VFG+2*e+1}], v{VFG+2*e}')
def xs():
    for e in range(3):
        A(f's_mov_b64 exec, s[{40+2*e}:{41+2*e}]')
        scat1(VFB + e, VFB + 3, e, VFG + 2*e)

def gath1(w, g):
    A(f'v_lshlrev_b32 v{g}, 3, v{w}')
    A(f'v_and_b32 v{g}, 0xfff8, v{g}')
    if not OPT['skip_g']: A(f'ds_read_b64 v[{g}:{g+1}], v{g}')

def scat1(w, xr, e, g, wait=False):
    x, ad = VT, VT + 1
    p0, p2 = VT + 2, VT + 4
    A(f'v_lshlrev_b32_sdwa v{x}, v{VSH}, v{xr} {SD} src0_sel:DWORD src1_sel:BYTE_{e}')
    A(f'v_lshlrev_b32 v{p2}, 16, v{g+1}')
    A(f'v_and_b32 v{p2+1}, s30, v{g+1}')
    A(f'v_and_or_b32 v{x}, v{w}, s35, v{x}')
    A(f'v_bfe_u32 v{ad}, v{w}, 13, 13')
    A(f'v_lshlrev_b32 v{p0}, 16, v{g}')
    A(f'v_and_b32 v{p0+1}, s30, v{g}')
    for r in (p2, p2 + 1, p0, p0 + 1):
        A(f'v_fma_mix_f32 v{r}, v{r}, v{x}, s{26 if r == p0 else 28} op_sel:[0,1,0] op_sel_hi:[0,1,0]')
        if r == p2: A(f'v_lshl_add_u32 v{ad}, v{ad}, 3, s31')
        if r == p2 + 1:
            if wait: A('s_waitcnt lgkmcnt(0)')
            A(f'ds_add_u64 v{ad}, v[{p2}:{p2+1}] offset:{L_ARB}')
    A(f'v_add_u32 v{p0}, s34, v{p0}')
    A(f'ds_add_u64 v{ad}, v[{p0}:{p0+1}]')

def gaddr(w, g):
    A(f'v_lshlrev_b32_sdwa v{g}, v{V3}, v{w} dst_sel:WORD_0 dst_unused:UNUSED_PAD src0_sel:DWORD src1_sel:DWORD')
def Gset(r, s_):
    slot = r % 4
    GP[0] = (r & 1) if OPT['nd'] else 0
    A('s_mov_b64 exec, -1')
    for e in range(3): gaddr(EB(slot, s_) + e, G(s_, e))
    for e in range(3):
        m = MK(slot, s_, e); g = G(s_, e)
        A(f's_mov_b64 exec, s[{m}:{m+1}]')
        if not OPT['skip_g']: A(f'ds_read_b64 v[{g}:{g+1}], v{g}')
def Sset(r, s_, hooks={}, w0=False):
    slot = r % 4
    GP[0] = (r & 1) if OPT['nd'] else 0
    for e in range(3):
        if e in hooks: hooks[e]()
        m = MK(slot, s_, e)
        A(f's_mov_b64 exec, s[{m}:{m+1}]')
        b = EB(slot, s_)
        if not OPT['skip_s']: scat1(b + e, b + 3, e, G(s_, e), w0 and e == 0)

A(f'v_mov_b32 v{VT+1}, 0')
pf1(0, 0, det=False); pf1(1, 0, det=False); pf1(0, 1, det=False)
A('s_mov_b64 exec, -1')
A(f'v_max_u32_sdwa v{VT+2}, v{VT+9}, v{VT+9} {SD} src0_sel:BYTE_0 src1_sel:BYTE_1')
A(f'v_max_u32_sdwa v{VT+3}, v{VT+9}, v{VT+9} {SD} src0_sel:BYTE_2 src1_sel:BYTE_3')
A(f'v_max_u32 v{VT+9}, v{VT+2}, v{VT+3}')
dpp_scan('v_max_u32', VT + 9)
A('s_nop 1')
A(f'v_readlane_b32 s29, v{VT+9}, 63')
for s_ in range(2):
    A(f'v_lshrrev_b32 v{VT+2}, 16, v{OF(s_,0)}')
    A(f'v_lshrrev_b32 v{VT+3}, 18, v{OF(s_,0)}')
    A(f'v_sub_u32 v{VT+2}, v{VT+2}, v{VT+3}')
    A(f'v_lshrrev_b32 v{VT+3}, 18, v{OF(s_,8)}')
    A(f'v_add_u32 v{VT+2}, v{VT+2}, v{VT+3}')
    A(f'v_lshrrev_b32 v{VT+3}, 16, v{OF(s_,8)}')
    A(f'v_sub_u32 v{VT+4+s_}, v{VT+2}, v{VT+3}')
A(f'v_add_u32 v{VT+2}, v{VT+4}, v{VT+5}')
dpp_scan('v_add_u32', VT + 2)
A('s_nop 1')
A(f'v_readlane_b32 s32, v{VT+2}, 63')
A('s_min_u32 s27, s29, 249')
A('s_add_u32 s28, s27, 2')
A('s_lshl_b32 s28, s28, 23')
A('s_or_b32 s28, s28, 0x400000')
A('s_add_u32 s26, s27, 5')
A('s_lshl_b32 s26, s26, 23')
A('s_sub_u32 s34, 0x4000000, s26')
A('s_or_b32 s26, s26, 0x80000')
if OPT['detp'] == 0:
    PV, TBL, CBL, LW = VFB, VFB + 1, VFB + 2, VFB + 3
    D0, D1 = VFG, VFG + 1
    A('s_mov_b64 exec, -1')
    A(f'v_mov_b32_dpp v{PV}, v{TO+3} quad_perm:[0,0,2,2] row_mask:0xf bank_mask:0xf')
    A(f'v_and_b32 v{CBL}, 1, v0')
    A(f'v_cmp_eq_u32 vcc, 0, v{CBL}')
    A(f'v_lshlrev_b32 v{CBL}, 5, v{CBL}')
    A('v_cmp_lt_u32 s[38:39], 4, v1')
    A(f'v_cndmask_b32 v{PV}, v{PV}, v{TO+4}, vcc')
    A('s_nop 0')
    A(f'v_cndmask_b32 v{TBL}, v{VTB}, v{VTB+1}, s[38:39]')
    A(f'v_add_u32 v{TBL}, 64, v{TBL}')
    A('s_mov_b32 s46, s50')
    for t in range(8):
        sa, ha = (PV, 1) if t == 0 else (TO + (t - 1) // 2, (t - 1) & 1)
        sb, hb = TO + t // 2, t & 1
        nx = newlab('Q_D'); lp = newlab('Q_D')
        y, rem = VT, VT + 1
        A(f'v_and_b32_sdwa v{y}, v{sa}, v{VFC} {SD} src0_sel:WORD_{ha} src1_sel:DWORD')
        A(f'v_sub_u32_sdwa v{rem}, v{sb}, v{y} {SD} src0_sel:WORD_{hb} src1_sel:DWORD')
        A(f'v_cmpx_lt_i32 vcc, 16, v{rem}')
        A(f's_cbranch_execz {nx}')
        A(f'v_lshl_add_u32 v{D0}, v{y}, 2, v{TBL}')
        A(f'v_subrev_u32 v{rem}, 16, v{rem}')
        L(lp)
        A(f'v_mbcnt_lo_u32_b32 v{LW}, exec_lo, 0')
        A(f'v_mbcnt_hi_u32_b32 v{LW}, exec_hi, v{LW}')
        A(f'v_min_u32 v{D1}, 3, v{rem}')
        A(f'v_add_u32 v{LW}, s44, v{LW}')
        A(f'v_add3_u32 v{D1}, v{D1}, v{CBL}, s47' if False else f'v_add_u32 v{D1}, v{D1}, v{CBL}')
        if t: A(f'v_add_u32 v{D1}, {t*4}, v{D1}')
        A('s_bcnt1_i32_b64 s47, exec')
        A(f'v_min_u32 v{LW}, 63, v{LW}')
        A('s_add_u32 s44, s44, s47')
        A(f'v_lshl_add_u32 v{LW}, v{LW}, 3, s46')
        A(f'ds_write_b64 v{LW}, v[{D0}:{D1}]')
        A(f'v_cmpx_lt_i32 vcc, 4, v{rem}')
        A(f's_cbranch_execz {nx}')
        A('s_cmp_ge_u32 s44, 64')
        A(f's_cbranch_scc1 {nx}')
        A(f'v_add_u32 v{D0}, 16, v{D0}')
        A(f'v_subrev_u32 v{rem}, 4, v{rem}')
        A(f's_branch {lp}')
        L(nx)
        A('s_mov_b64 exec, -1')
    A(f'v_lshl_add_u32 v{LW}, v4, 3, s46')
    A(f'ds_read_b64 v[{VLA}:{VLB}], v{LW}')
    A('v_cmp_gt_u32 s[38:39], s44, v4')
    A('s_waitcnt lgkmcnt(0)')
    A(f'v_and_b32 v{LW}, 3, v{VLB}')
    A(f'v_lshrrev_b32 v{VLB}, 2, v{VLB}')
    A(f'v_cndmask_b32 v{LW}, 0, v{LW}, s[38:39]')
    A(f'v_cndmask_b32 v{VLB}, -1, v{VLB}, s[38:39]')
    for e in range(3): A(f'v_cmp_lt_u32 s[{40+2*e}:{41+2*e}], {e}, v{LW}')
    A('s_mov_b32 s46, 0')
A('s_mov_b64 s[48:49], 1')
xl(0)
A('s_waitcnt vmcnt(4)')
fill()
chall()
A('s_mov_b32 s33, 0')
A('s_waitcnt vmcnt(3) lgkmcnt(0)')
stamp2()
A('s_barrier')
Gset(0, 0); Gset(0, 1); xg(0)
if OPT['warm'] == 2:
    A('s_cmp_lg_u32 s50, 0')
    A('s_cbranch_scc1 Q_NOWARM')
    A('s_load_dwordx2 s[4:5], s[0:1], 24')
    A('s_load_dwordx2 s[6:7], s[0:1], 40')
    A('s_load_dwordx8 s[92:99], s[0:1], 56')
    A('s_mov_b64 exec, -1')
    A('s_mul_i32 s16, s2, 3200')
    A(f'v_lshl_add_u32 v{VT}, v4, 6, s16')
    A(f'v_min_u32 v{VT}, {E*2-4}, v{VT}')
    A('s_waitcnt lgkmcnt(0)')
    A(f'global_load_dword v125, v{VT}, s[4:5]')
    A('s_load_dword s16, s[6:7], 0')
    for k in range(4): A(f's_load_dword s{16+(k&1)}, s[{92+2*k}:{93+2*k}], 0')
    L('Q_NOWARM')
pf1(1, 1); pf1(1, 2); xl(1)
if OPT['skip_pf']:
    pf1(0, 2); pf1(0, 3); pf1(1, 3); A('s_waitcnt vmcnt(0)')
A('s_waitcnt vmcnt(3) lgkmcnt(0)')
stamp2()
INLOOP[0] = 1
L('Q_LOOP')
for r in range(4):
    ps = r & 1
    if r == 1: stamp2()
    A('s_barrier')
    if r == 1: stamp2()
    if r == (NR - 1) % 4:
        A(f's_cmp_eq_u32 s33, {(NR-1)//4}')
        A(f's_cbranch_scc1 Q_LAST')
    fill()
    chall(r == (NR - 2) % 4)
    nd = OPT['nd']
    hp = OPT['hp']
    Sset(r, 0, w0=nd > 0)
    A('s_waitcnt vmcnt(3)' if nd else 's_waitcnt vmcnt(3) lgkmcnt(0)')
    if r == 1: stamp2()
    A('s_barrier')
    if r == 1: stamp2()
    Gset(r + 1, 0)
    if nd == 2: Gset(r + 1, 1)
    xg(r + 1)
    Sset(r, 1, {int(hp[0]): lambda: pf1(ps, r + 2), int(hp[1]): lambda: (pf1(ps, r + 3), xl(r + 2))}, w0=nd == 2)
    if nd != 2: Gset(r + 1, 1)
    if r == 3:
        A('s_mov_b64 exec, -1')
        A('s_add_u32 s33, s33, 1')
        A('s_add_u32 s46, s46, 4')
        for s_ in range(2):
            for k in range(0, 7): A(f'v_mov_b32 v{OF(s_,k)}, v{OF(s_,k+2)}')
    A('s_waitcnt vmcnt(3)' if OPT['nd'] == 2 else 's_waitcnt vmcnt(3) lgkmcnt(0)')
A('s_branch Q_LOOP')
L('Q_LAST')
if OPT['warm'] == 1:
    A('s_cmp_lg_u32 s50, 0')
    A('s_cbranch_scc1 Q_NOWARM')
    A('s_load_dwordx2 s[4:5], s[0:1], 24')
    A('s_load_dwordx2 s[6:7], s[0:1], 40')
    A('s_load_dwordx8 s[56:63], s[0:1], 56' if (NR - 1) % 4 != 0 else 'ERR')
    A('s_mov_b64 exec, -1')
    A('s_mul_i32 s16, s2, 3200')
    A(f'v_lshl_add_u32 v{VT}, v4, 6, s16')
    A(f'v_min_u32 v{VT}, {E*2-4}, v{VT}')
    A('s_waitcnt lgkmcnt(0)')
    A(f'global_load_dword v{VCH}, v{VT}, s[4:5]')
    A('s_load_dword s16, s[6:7], 0')
    for k in range(4): A(f's_load_dword s{17+k}, s[{56+2*k}:{57+2*k}], 0')
    L('Q_NOWARM')
Sset((NR - 1) % 4, 0)
Sset((NR - 1) % 4, 1)
A('s_waitcnt vmcnt(0)')
xs()
A('s_mov_b64 exec, -1')
A('s_waitcnt lgkmcnt(0)')
stamp2()
A('s_barrier')
A('v_lshlrev_b32 v3, 3, v0')
A(f'v_add_u32 v7, {L_A}, v3')
RA = 8
for k in range(7):
    if k == 6: A('s_mov_b64 exec, s[24:25]')
    A(f'ds_read_b64 v[{RA+4*k}:{RA+4*k+1}], v7 offset:{k*8192}')
A('s_mov_b64 exec, -1')
A(f'v_add_u32 v4, {L_ARB}, v7')
for k in range(7):
    if k == 6: A('s_mov_b64 exec, s[24:25]')
    A(f'ds_read_b64 v[{RA+4*k+2}:{RA+4*k+3}], v4 offset:{k*8192}')
A('s_mov_b64 exec, -1')
A('s_lshr_b32 s16, s3, 6'); A(f's_mul_i32 s16, s16, {E*8}')
A('s_and_b32 s17, s3, 63'); A(f's_mul_i32 s17, s17, {CH*8}')
A('s_add_u32 s16, s16, s17'); A(f's_add_u32 s16, s16, {PART_BASE:#x}')
A('v_mov_b32 v5, 0')
A(f's_mov_b32 s36, {f32bits(2.0**-10):#x}')
A(f's_mov_b32 s37, {f32bits(2.0**-13):#x}')
A('s_mov_b32 s38, s37'); A('s_mov_b32 s39, s37')
A('s_sub_i32 s40, s27, 135')
A('v_mov_b32 v6, 1.0')
A('v_ldexp_f32 v6, v6, s40')
A('s_and_b32 s41, s3, 63')
A('s_lshl_b32 s41, s41, 2')
A('s_lshr_b32 s42, s3, 6')
A('s_add_u32 s41, s41, s42')
A('s_lshl_b32 s41, s41, 2')
A(f's_add_u32 s41, s41, {SCL_BASE:#x}')
A('v_cmp_eq_u32 vcc, 0, v0')
A('s_mov_b64 exec, vcc')
A(f'buffer_store_dword v6, v5, s[{S_WS}:{S_WS+3}], s41 offen')
A('s_mov_b64 exec, -1')
X = 40
for k in range(7):
    a0, a1, b0, b1 = RA + 4*k, RA + 4*k + 1, RA + 4*k + 2, RA + 4*k + 3
    c = X; P = X + 2; t = X + 4
    A(f's_waitcnt lgkmcnt({max(0,5-k)})')
    if k == 6: A('s_mov_b64 exec, s[24:25]')
    A(f'v_lshrrev_b32 v{c}, 26, v{a0}')
    A(f'v_and_b32 v{a0}, 0x3ffffff, v{a0}')
    A(f'v_mad_u64_u32 v[{P}:{P+1}], vcc, v{c}, s28, 0')
    A(f'v_lshlrev_b32 v{t}, 19, v{c}')
    A(f'v_add_u32 v5, v5, v{c}')
    A(f'v_sub_u32 v{a0}, v{a0}, v{t}')
    A(f'v_sub_u32 v{a1}, v{a1}, v{P}')
    A(f'v_add_u32 v{P+1}, v{P+1}, v{P}')
    A(f'v_sub_co_u32 v{b0}, vcc, v{b0}, v{P}')
    A(f'v_cvt_f32_i32 v{a0}, v{a0}')
    A(f'v_cvt_f32_i32 v{a1}, v{a1}')
    A(f'v_subb_co_u32 v{b1}, vcc, v{b1}, v{P+1}, vcc')
    A(f'v_ashrrev_i32 v{t}, 31, v{b0}')
    A(f'v_cvt_f32_i32 v{b0}, v{b0}')
    A(f'v_sub_u32 v{b1}, v{b1}, v{t}')
    A(f'v_pk_mul_f32 v[{a0}:{a1}], v[{a0}:{a1}], s[36:37]')
    A(f'v_cvt_f32_i32 v{b1}, v{b1}')
    A(f'v_cvt_pk_f16_f32 v{a0}, v{a0}, v{a1}')
    A(f'v_pk_mul_f32 v[{b0}:{b1}], v[{b0}:{b1}], s[38:39]')
    A(f'v_cvt_pk_f16_f32 v{a1}, v{b0}, v{b1}')
    A(f'buffer_store_dwordx2 v[{a0}:{a1}], v3, s[{S_WS}:{S_WS+3}], s16 offen {OPT["st_part"]}')
    A('s_add_u32 s16, s16, 8192')
A('s_mov_b64 exec, -1')
dpp_scan('v_add_u32', 5)
A('s_nop 1')
A('v_readlane_b32 s42, v5, 63')
A('s_nop 3')
A('s_lshl_b32 s42, s42, 2')
A('s_add_u32 s42, s42, s32')
A('v_mov_b32 v6, s42')
A('v_mov_b32 v7, s32')
A('s_mov_b64 exec, 1')
A('ds_add_u32 v126, v6')
A('ds_sub_u32 v126, v7 offset:4')
A('s_mov_b64 exec, -1')
A('s_waitcnt lgkmcnt(0)')
A('s_barrier')
A('ds_read_b64 v[6:7], v126')
A('s_waitcnt lgkmcnt(0)')
A('v_readfirstlane_b32 s42, v6')
A('v_readfirstlane_b32 s43, v7')
A('s_nop 3')
if OPT['forcefb'] == 1: A('s_mov_b32 s42, 1')
if OPT['forcefb'] == -1: A('s_mov_b32 s42, 0')
A('s_cmp_gt_u32 s29, 249')
A('s_cselect_b32 s42, 1, s42')
A('s_cmp_eq_u32 s42, 0')
A('s_cbranch_scc1 Q_FIN')
A('s_waitcnt vmcnt(0)')
A('s_min_u32 s27, s29, 254')
A('s_add_u32 s45, s27, 923')
A('s_lshl_b32 s45, s45, 20')
A('s_or_b32 s45, s45, 0x80000')
A('s_mov_b32 s44, 0')
A('s_lshr_b32 s43, s43, 2')
A('s_flbit_i32_b32 s46, s43')
A('s_max_i32 s46, s46, 0')
A('s_sub_u32 s46, 32, s46')
A('s_sub_i32 s47, -11, s46')
A('s_add_u32 s40, s27, s46')
A('s_sub_i32 s40, s40, 141')
A('v_mov_b32 v6, 1.0')
A('v_ldexp_f32 v6, v6, s40')
A('v_mov_b32 v5, 0')
A('v_cmp_eq_u32 vcc, 0, v0')
A('s_mov_b64 exec, vcc')
A(f'buffer_store_dword v6, v5, s[{S_WS}:{S_WS+3}], s41 offen')
A('s_mov_b64 exec, -1')
A('v_lshrrev_b32 v8, 1, v0')
A('v_lshrrev_b32 v9, 2, v0')
A(f'v_mul_u32_u24 v9, {OFS}, v9')
A('v_and_b32 v39, 1, v8')
A('v_lshl_add_u32 v9, v39, 5, v9')
A(f's_mov_b32 s16, {RS}')
A('v_mul_lo_u32 v8, v8, s16')
A('v_and_b32 v10, 1, v0')
for r in range(12, 16): A(f'v_mov_b32 v{r}, 0')
A('v_add_u32 v11, 65536, v2')
A('s_mov_b32 s48, 0')
L('Q_FH')
A('s_barrier')
for j in range(4): A(f'ds_write_b128 v2, v[12:15] offset:{j*16384}')
for j in range(2): A(f'ds_write_b128 v11, v[12:15] offset:{j*16384}')
A('s_mov_b64 exec, s[24:25]')
A(f'ds_write_b128 v11, v[12:15] offset:{2*16384}')
A('s_mov_b64 exec, -1')
A('s_waitcnt lgkmcnt(0)')
A('s_barrier')
A('s_lshl_b32 s49, s3, 6')
A(f's_add_u32 s49, s49, {OFF_BASE:#x}')
A(f'buffer_load_ushort v17, v9, s[{S_WS}:{S_WS+3}], s49 offen offset:30')
A('s_waitcnt vmcnt(0)')
A('s_lshr_b32 s50, s3, 6')
A(f's_mul_i32 s50, s50, {NR*CHI*8}')
A('s_mov_b32 s51, 0')
L('Q_FR')
A('v_add_u32 v16, v17, v10')
A(f'buffer_load_ushort v17, v9, s[{S_WS}:{S_WS+3}], s49 offen offset:64')
A('s_waitcnt vmcnt(0)')
L('Q_FI')
A('v_cmp_lt_u32 vcc, v16, v17')
A('s_and_b64 exec, exec, vcc')
A('s_cbranch_execz Q_FRN')
A('s_mov_b64 s[52:53], exec')
A('v_and_b32 v18, 3, v16')
A('v_lshl_add_u32 v19, v16, 2, v8')
A('v_or_b32 v20, 3, v16')
A('v_lshl_add_u32 v20, v20, 2, v8')
A('v_add_u32 v20, v20, v18')
A(f'buffer_load_dword v21, v19, s[{S_WS}:{S_WS+3}], 0 offen')
A(f'buffer_load_ubyte v22, v20, s[{S_WS}:{S_WS+3}], 0 offen')
A('s_waitcnt vmcnt(0)')
A('v_bfe_u32 v23, v21, 13, 13')
A('v_subrev_u32 v23, s48, v23')
A('s_movk_i32 s16, 3125')
A('v_cmp_gt_u32 vcc, s16, v23')
A('v_cmp_ne_u32 s[54:55], 3, v18')
A('s_and_b64 vcc, vcc, s[54:55]')
A('v_bfe_u32 v24, v21, 0, 13')
A('v_lshlrev_b32 v24, 3, v24')
A('s_and_b64 exec, exec, vcc')
A('s_cbranch_execz Q_FIN2')
A(f'buffer_load_dwordx2 v[26:27], v24, s[{S_M}:{S_M+3}], s50 offen')
A('v_lshlrev_b32 v22, 2, v22')
A('v_lshrrev_b32 v25, 16, v21')
A('v_and_b32 v25, 0xfc00, v25')
A('v_or_b32 v25, v25, v22')
A('v_cvt_f32_f16 v25, v25')
A('v_cvt_f64_f32 v[28:29], v25')
A('v_lshlrev_b32 v23, 3, v23')
A('v_add_u32 v38, 50000, v23')
A('s_waitcnt vmcnt(0)')
A('v_lshlrev_b32 v30, 16, v26'); A('v_and_b32 v32, s30, v26')
A('v_lshlrev_b32 v34, 16, v27'); A('v_and_b32 v36, s30, v27')
for j, r in enumerate((30, 32, 34, 36)):
    A(f'v_cvt_f64_f32 v[{r}:{r+1}], v{r}')
    A(f'v_fma_f64 v[{r}:{r+1}], v[{r}:{r+1}], v[28:29], s[44:45]')
    A(f'ds_add_u64 v{23 if j < 2 else 38}, v[{r}:{r+1}] offset:{(j & 1) * 25000}')
L('Q_FIN2')
A('s_mov_b64 exec, s[52:53]')
A('v_add_u32 v16, 2, v16')
A('s_branch Q_FI')
L('Q_FRN')
A('s_mov_b64 exec, -1')
A('s_add_u32 s49, s49, 2')
A(f's_add_u32 s50, s50, {CHI*8}')
A('s_add_u32 s51, s51, 1')
A('s_cmp_lt_u32 s51, 16')
A('s_cbranch_scc1 Q_FR')
A('s_waitcnt lgkmcnt(0)')
A('s_barrier')
A('s_lshr_b32 s16, s3, 6'); A(f's_mul_i32 s16, s16, {E*8}')
A('s_and_b32 s17, s3, 63'); A(f's_mul_i32 s17, s17, {CH*8}')
A('s_add_u32 s16, s16, s17'); A(f's_add_u32 s16, s16, {PART_BASE:#x}')
A('s_lshl_b32 s17, s48, 3'); A('s_add_u32 s16, s16, s17')
A('s_mov_b32 s52, 0'); A('s_mov_b32 s53, 0x41f00000')
A('v_mov_b32 v16, v3')
L('Q_FC')
A('s_movk_i32 s17, 25000')
A('v_cmp_gt_u32 vcc, s17, v16')
A('s_and_b64 exec, exec, vcc')
A('s_cbranch_execz Q_FCD')
A('v_add_u32 v17, 50000, v16')
for j in range(4):
    A(f'ds_read_b64 v[{18+2*j}:{19+2*j}], v{16 if j < 2 else 17} offset:{(j & 1) * 25000}')
A('s_waitcnt lgkmcnt(0)')
for j in range(4):
    lo, hi = 18 + 2*j, 19 + 2*j
    A(f'v_bfe_i32 v{hi}, v{hi}, 0, 19')
    A(f'v_cvt_f64_u32 v[26:27], v{lo}')
    A(f'v_cvt_f64_i32 v[28:29], v{hi}')
    A('v_fma_f64 v[26:27], v[28:29], s[52:53], v[26:27]')
    A('v_ldexp_f64 v[26:27], v[26:27], s47')
    A(f'v_cvt_f32_f64 v{30+j}, v[26:27]')
A('v_cvt_pk_f16_f32 v34, v30, v31')
A('v_cvt_pk_f16_f32 v35, v32, v33')
A(f'buffer_store_dwordx2 v[34:35], v16, s[{S_WS}:{S_WS+3}], s16 offen')
A('v_add_u32 v16, 8192, v16')
A('s_branch Q_FC')
L('Q_FCD')
A('s_mov_b64 exec, -1')
A('s_add_u32 s48, s48, 3125')
A('s_cmp_lt_u32 s48, 6250')
A('s_cbranch_scc1 Q_FH')
L('Q_FIN')
stamp2()
if OPT['stamp2'] >= 0:
    A('s_waitcnt vmcnt(0)')
    stamp2()
    A('v_readfirstlane_b32 s54, v0')
    A('s_nop 3')
    A(f's_cmp_lg_u32 s2, {OPT["stamp2"]}')
    A('s_cbranch_scc1 Q_END')
    A(f's_cmp_lg_u32 s54, {64*OPT.get("swave", 0)}')
    A('s_cbranch_scc1 Q_END')
    A('s_load_dwordx2 s[4:5], s[0:1], 96')
    A('s_waitcnt lgkmcnt(0)')
    srd(72, 4, 256)
    A('v_readlane_b32 s54, v127, 2')
    A('v_and_b32 v4, 63, v0')
    A('v_lshlrev_b32 v4, 2, v4')
    A('v_subrev_u32 v127, s54, v127')
    A('buffer_store_dword v127, v4, s[72:75], 0 offen')
abs_end(127, 64, 1, 16)
L('Q_END')
A('s_endpgm')

NE = OPT['ne']
khead('fin_kernel')
A(f's_cmp_ge_u32 s2, {G3}')
A('s_cbranch_scc1 F_END')
abs_start(1)
A('s_load_dwordx2 s[4:5], s[0:1], 0')
A('s_load_dwordx2 s[6:7], s[0:1], 104')
A('s_load_dwordx2 s[8:9], s[0:1], 24')
A('s_load_dwordx2 s[10:11], s[0:1], 88')
A('s_load_dwordx2 s[28:29], s[0:1], 40')
A('s_load_dwordx8 s[64:71], s[0:1], 56')
S_M, S_WS, S_DIST, S_O = 12, 16, 20, 24
if not OPT['adj']:
    A(f's_mul_i32 s3, s2, {256*NE}')
    VB = 2
    def R(i, n): return VB + 40 * i + n
    for i in range(NE):
        e, t = R(i, 1), R(i, 2)
        A(f'v_add_u32 v{e}, s3, v0')
        if i: A(f'v_add_u32 v{e}, {256*i}, v{e}')
        A(f'v_lshlrev_b32 v{R(i,3)}, 1, v{e}')
        A(f'v_min_u32 v{t}, {E-1}, v{e}')
        A(f'v_lshlrev_b32 v{R(i,0)}, 3, v{t}')
        A(f'v_mul_hi_u32_u24 v{t}, {MAGIC_DIV:#x}, v{t}')
        A(f'v_lshlrev_b32 v{t}, 4, v{t}')
        A(f'v_lshlrev_b32 v{e}, 3, v{e}')
    A('s_waitcnt lgkmcnt(0)')
    srd(S_DIST, 8, E * 2)
    for i in range(NE):
        A(f'buffer_load_ushort v{R(i,3)}, v{R(i,3)}, s[{S_DIST}:{S_DIST+3}], 0 offen')
    if not OPT['tab']:
        A('s_load_dwordx4 s[28:31], s[28:29], 0')
        A('s_load_dwordx16 s[32:47], s[64:65], 0')
        A('s_load_dwordx16 s[48:63], s[66:67], 0')
    A('s_load_dwordx8 s[72:79], s[70:71], 0')
    A('s_load_dwordx8 s[64:71], s[68:69], 0')
    srd(S_WS, 6, WS_BYTES); srd(S_M, 4, E * 8); srd(S_O, 10, E * 8)
    for i in range(NE):
        A(f's_mov_b32 s4, {SCL_BASE:#x}')
        A(f'buffer_load_dwordx4 v[{R(i,6)}:{R(i,9)}], v{R(i,2)}, s[{S_WS}:{S_WS+3}], s4 offen')
        for p in range(4):
            A(f's_mov_b32 s4, {PART_BASE + p*E*8:#x}')
            A(f'buffer_load_dwordx2 v[{R(i,32+2*p)}:{R(i,33+2*p)}], v{R(i,0)}, s[{S_WS}:{S_WS+3}], s4 offen {OPT["ld_part"]}')
        A(f'buffer_load_dwordx2 v[{R(i,4)}:{R(i,5)}], v{R(i,1)}, s[{S_M}:{S_M+3}], 0 offen')
else:
    assert NE == 2 and not OPT['tab']
    A('s_lshl_b32 s3, s2, 8')
    VB = 2
    PQ, MQ, OQ, SC = 84, 100, 104, 8
    def R(i, n):
        if 32 <= n < 40: return PQ + ((n - 32) // 2) * 4 + 2 * i + (n & 1)
        if n in (4, 5): return MQ + 2 * i + (n - 4)
        if n in (30, 31): return OQ + 2 * i + (n - 30)
        if 6 <= n < 10: return VB + n
        return VB + 40 * i + n
    e, t = R(0, 1), R(0, 2)
    A(f'v_add_u32 v{e}, s3, v0')
    A(f'v_lshlrev_b32 v{R(0,3)}, 2, v{e}')
    A(f'v_min_u32 v{t}, {E//2-1}, v{e}')
    A(f'v_lshlrev_b32 v{R(0,0)}, 4, v{t}')
    A(f'v_lshlrev_b32 v{t}, 1, v{t}')
    A(f'v_mul_hi_u32_u24 v{t}, {MAGIC_DIV:#x}, v{t}')
    A(f'v_lshlrev_b32 v{t}, 4, v{t}')
    A(f'v_lshlrev_b32 v{e}, 4, v{e}')
    A('s_waitcnt lgkmcnt(0)')
    srd(S_DIST, 8, E * 2)
    A(f'buffer_load_dword v{R(0,3)}, v{R(0,3)}, s[{S_DIST}:{S_DIST+3}], 0 offen')
    A('s_load_dwordx4 s[28:31], s[28:29], 0')
    A('s_load_dwordx16 s[32:47], s[64:65], 0')
    A('s_load_dwordx16 s[48:63], s[66:67], 0')
    A('s_load_dwordx8 s[72:79], s[70:71], 0')
    A('s_load_dwordx8 s[64:71], s[68:69], 0')
    srd(S_WS, 6, WS_BYTES); srd(S_M, 4, E * 8); srd(S_O, 10, E * 8)
    for p in range(4):
        A(f's_mov_b32 s4, {PART_BASE + p*E*8:#x}')
        A(f'buffer_load_dwordx4 v[{PQ+4*p}:{PQ+4*p+3}], v{R(0,0)}, s[{S_WS}:{S_WS+3}], s4 offen {OPT["ld_part"]}')
    A(f's_mov_b32 s4, {SCL_BASE:#x}')
    A(f'buffer_load_dwordx4 v[{SC}:{SC+3}], v{t}, s[{S_WS}:{S_WS+3}], s4 offen')
    A(f'buffer_load_dwordx4 v[{MQ}:{MQ+3}], v{e}, s[{S_M}:{S_M+3}], 0 offen')
A('s_mov_b32 s5, 0xffff0000')
A(f's_mov_b32 s8, {f32bits(-10.0):#x}')
A(f's_mov_b32 s9, {f32bits(math.log2(math.e)):#x}')
def sw(base, idx, dst):
    sr = base + idx // 2
    if idx & 1: A(f's_and_b32 s{dst}, s{sr}, 0xffff0000')
    else: A(f's_lshl_b32 s{dst}, s{sr}, 16')
def spk(base, r, d, dst):
    op = 's_pack_hh_b32_b16' if d & 1 else 's_pack_ll_b32_b16'
    A(f'{op} s{dst}, s{base + r*2 + d//2}, s{base + (r+1)*2 + d//2}')
def unp(a, b, t):
    A(f'v_lshlrev_b32 v{a}, 16, v{t}')
    A(f'v_and_b32 v{b}, s5, v{t}')
def rnd2(a, b, t):
    A(f'v_cvt_pk_bf16_f32 v{t}, v{a}, v{b}')
    unp(a, b, t)
if not OPT['tab']:
    if OPT['adj']:
        A('s_waitcnt vmcnt(6) lgkmcnt(0)')
        A(f'v_and_b32 v{R(1,3)}, s5, v{R(0,3)}')
        A(f'v_lshlrev_b32 v{R(0,3)}, 16, v{R(0,3)}')
    else:
        A(f's_waitcnt vmcnt({6*NE}) lgkmcnt(0)')
        for i in range(NE): A(f'v_lshlrev_b32 v{R(i,3)}, 16, v{R(i,3)}')
    for r in range(0, 8, 2):
        sw(28, r, 6); sw(28, r + 1, 7)
        for i in range(NE):
            a_, b_, t = R(i, 14), R(i, 15), R(i, 2)
            A(f'v_subrev_f32 v{a_}, s6, v{R(i,3)}')
            A(f'v_subrev_f32 v{b_}, s7, v{R(i,3)}')
            rnd2(a_, b_, t)
            A(f'v_mul_f32 v{a_}, v{a_}, v{a_}')
            A(f'v_mul_f32 v{b_}, v{b_}, v{b_}')
            rnd2(a_, b_, t)
            A(f'v_mul_f32 v{a_}, s8, v{a_}')
            A(f'v_mul_f32 v{b_}, s8, v{b_}')
            rnd2(a_, b_, t)
            A(f'v_mul_f32 v{a_}, s9, v{a_}')
            A(f'v_mul_f32 v{b_}, s9, v{b_}')
            A(f'v_exp_f32 v{a_}, v{a_}')
            A(f'v_exp_f32 v{b_}, v{b_}')
            A('s_nop 0')
            A(f'v_cvt_pk_bf16_f32 v{R(i,18+r//2)}, v{a_}, v{b_}')
    for r in range(0, 8, 2):
        for base, dst in ((48, 22), (32, 26)):
            for d in range(4):
                spk(base, r, d, 6 + (d & 1))
                for i in range(NE):
                    c = '0' if r == 0 else f'v{R(i,dst+d)}'
                    A(f'v_dot2_f32_bf16 v{R(i,dst+d)}, v{R(i,18+r//2)}, s{6+(d&1)}, {c}')
    A('s_nop 2')
    for i in range(NE):
        rnd2(R(i,26), R(i,27), R(i,2)); rnd2(R(i,28), R(i,29), R(i,2))
else:
    A(f's_waitcnt vmcnt({6*NE})')
    A(f's_mov_b32 s4, {TAB_BASE:#x}')
    for i in range(NE):
        A(f'v_lshlrev_b32 v{R(i,3)}, 5, v{R(i,3)}')
        A(f'buffer_load_dwordx4 v[{R(i,22)}:{R(i,25)}], v{R(i,3)}, s[{S_WS}:{S_WS+3}], s4 offen')
        A(f'buffer_load_dwordx2 v[{R(i,20)}:{R(i,21)}], v{R(i,3)}, s[{S_WS}:{S_WS+3}], s4 offen offset:16')
A(f's_waitcnt vmcnt({2*NE}) lgkmcnt(0)' if OPT['tab'] else 's_waitcnt vmcnt(0)')
for i in range(NE):
    for p in range(4):
        for d in range(4):
            c = '0' if p == 0 else f'v{R(i,14+d)}'
            A(f'v_fma_mix_f32 v{R(i,14+d)}, v{R(i,32+2*p+d//2)}, v{R(i,6+p)}, {c} op_sel:[{d&1},0,0] op_sel_hi:[1,0,0]')
for k in range(4):
    for d in range(4):
        sw(64, k*4 + d, 6 + (d & 1))
        for i in range(NE):
            if k == 0: A(f'v_mul_f32 v{R(i,10+d)}, s{6+(d&1)}, v{R(i,14+k)}')
            else: A(f'v_fmac_f32 v{R(i,10+d)}, s{6+(d&1)}, v{R(i,14+k)}')
if OPT['tab']:
    A('s_waitcnt vmcnt(0)')
    for i in range(NE):
        unp(R(i,26), R(i,27), R(i,20)); unp(R(i,28), R(i,29), R(i,21))
for i in range(NE):
    for d in range(4):
        A(f'v_mul_f32 v{R(i,10+d)}, v{R(i,10+d)}, v{R(i,22+d)}')
    A(f'v_cvt_pk_bf16_f32 v{R(i,18)}, v{R(i,10)}, v{R(i,11)}')
    A(f'v_cvt_pk_bf16_f32 v{R(i,19)}, v{R(i,12)}, v{R(i,13)}')
for k in (0, 2):
    for d in range(4):
        spk(72, k, d, 6 + (d & 1))
        for i in range(NE):
            c = '0' if k == 0 else f'v{R(i,22+d)}'
            A(f'v_dot2_f32_bf16 v{R(i,22+d)}, v{R(i,18+k//2)}, s{6+(d&1)}, {c}')
for i in range(NE):
    unp(R(i,10), R(i,11), R(i,4)); unp(R(i,12), R(i,13), R(i,5))
A('s_nop 0')
for i in range(NE):
    rnd2(R(i,22), R(i,23), R(i,2)); rnd2(R(i,24), R(i,25), R(i,2))
    for d in range(4):
        A(f'v_mul_f32 v{R(i,22+d)}, v{R(i,22+d)}, v{R(i,26+d)}')
    rnd2(R(i,22), R(i,23), R(i,2)); rnd2(R(i,24), R(i,25), R(i,2))
    for d in range(4):
        A(f'v_add_f32 v{R(i,22+d)}, v{R(i,22+d)}, v{R(i,10+d)}')
    A(f'v_cvt_pk_bf16_f32 v{R(i,30)}, v{R(i,22)}, v{R(i,23)}')
    A(f'v_cvt_pk_bf16_f32 v{R(i,31)}, v{R(i,24)}, v{R(i,25)}')
    if not OPT['adj']: A(f'buffer_store_dwordx2 v[{R(i,30)}:{R(i,31)}], v{R(i,1)}, s[{S_O}:{S_O+3}], 0 offen {OPT["st_out"]}')
if OPT['adj']: A(f'buffer_store_dwordx4 v[{OQ}:{OQ+3}], v{R(0,1)}, s[{S_O}:{S_O+3}], 0 offen {OPT["st_out"]}')
L('F_END')
A('s_endpgm')
L('CODE_END')

out.append('.section .rodata,"a"')
for name, vg, sg in (('part_kernel', 128, 102), ('acc_kernel', 128, 102), ('fin_kernel', 108 if OPT['adj'] else 4 + 40*OPT['ne'], 80)):
    out.append('.p2align 6')
    out.append(f'.amdhsa_kernel {name}')
    out.append(f'  .amdhsa_next_free_vgpr {vg}')
    out.append(f'  .amdhsa_next_free_sgpr {sg}')
    out.append(f'  .amdhsa_accum_offset {vg}')
    out.append('  .amdhsa_group_segment_fixed_size 0')
    out.append('  .amdhsa_kernarg_size 112')
    out.append('  .amdhsa_user_sgpr_count 2')
    out.append('  .amdhsa_user_sgpr_kernarg_segment_ptr 1')
    out.append('  .amdhsa_system_sgpr_workgroup_id_x 1')
    out.append('  .amdhsa_float_denorm_mode_32 3')
    out.append('.end_amdhsa_kernel')
open(sys.argv[1], 'w').write('\n'.join(out) + '\n')
```

```python
import struct, sys, math

E = 400000
T = 12800000
CH = 6250
S = 25000
NTILE = 512
NBLK = (S + 2) // 3
RS = 128 * (int([a for a in sys.argv[2:] if a.startswith('rsl=')][0][4:]) if any(a.startswith('rsl=') for a in sys.argv[2:]) else 1042)
OFS = 16448
OFF_BASE = 0x4400000
MAX_BASE = 0x4C00000
SCL_BASE = 0x4C01000
PART_BASE = 0x5000000
P32_BASE = 0x7000000
TAB_BASE = 0x6000000
WS_BYTES = 268435456
MAGIC_DIV = (2**32 + CH - 1) // CH
NR = int([a for a in sys.argv[2:] if a.startswith('NR=')][0][3:]) if any(a.startswith('NR=') for a in sys.argv[2:]) else 14
CHI = (E + 4*NR - 1) // (4*NR)
MAGIC_I = (2**32 + CHI - 1) // CHI
assert MAGIC_I < 2**24 and all((x*MAGIC_I) >> 32 == x // CHI for x in range(0, E, 1))
NBK = (CHI*8 + 1023) // 1024
MINI = S - 6 * 4096
assert NTILE * RS <= OFF_BASE and OFF_BASE + 256 * OFS <= MAX_BASE

OPT = dict(ld_in='nt', st_ws='sc0 sc1', ld_ent='', ld_ch='', st_part='sc0 sc1', ld_part='', NB=2, skip_s=0, skip_g=0, skip_fill=0, skip_e=0,
           stamp=-1, stamp2=-1, prio=1, ilv='2:0,3:1,4:2,5:3', pre=1, npb=1, bps=1, vpos='123456', skip_ch=0, skip_pf=0, pmap=0, cpos=0, epos=1, unpair=0, k2prio=0, pa=2, pb=2, struct=0, forcefb=0, abst=0, wsoff=0, cpf=0, ne=1, pp=0, ilp=0, hp='01', NR=14, nd=1, tab=0, adj=0, st_out='sc0 sc1', warm=1, il=5, cbf=1, rr=1, detp=0, st_mp='sc0 sc1', dst='002211111')
for a in sys.argv[2:]:
    k, v = a.split('=')
    OPT[k] = int(v) if (v.lstrip('-').isdigit() and k not in ('vpos', 'dst', 'hp')) else v.replace('_', ' ')

def f32bits(x): return struct.unpack('<I', struct.pack('<f', x))[0]
out = []
def A(s): out.append('    ' + s)
def L(s): out.append(s + ':')
_lab = [0]
def newlab(p='L'):
    _lab[0] += 1
    return f'{p}_{_lab[0]}'
def srd(d, b, nbytes):
    if nbytes == WS_BYTES and OPT['wsoff']:
        off = OPT['wsoff'] << 20
        A(f's_add_u32 s{d}, s{b}, {off:#x}')
        A(f's_addc_u32 s{d+1}, s{b+1}, 0')
        A(f's_and_b32 s{d+1}, s{d+1}, 0xffff')
        A(f's_mov_b32 s{d+2}, {nbytes - off:#x}')
        A(f's_mov_b32 s{d+3}, 0x00020000')
        return
    A(f's_mov_b32 s{d}, s{b}')
    A(f's_and_b32 s{d+1}, s{b+1}, 0xffff')
    A(f's_mov_b32 s{d+2}, {nbytes:#x}')
    A(f's_mov_b32 s{d+3}, 0x00020000')
def dpp_scan(op, v):
    for sh in (1, 2, 4, 8):
        A('s_nop 1')
        A(f'{op}_dpp v{v}, v{v}, v{v} row_shr:{sh} row_mask:0xf bank_mask:0xf bound_ctrl:0')
    A('s_nop 1')
    A(f'{op}_dpp v{v}, v{v}, v{v} row_bcast:15 row_mask:0xa bank_mask:0xf')
    A('s_nop 1')
    A(f'{op}_dpp v{v}, v{v}, v{v} row_bcast:31 row_mask:0xc bank_mask:0xf')
def khead(name):
    out.append(f'.globl {name}')
    out.append('.p2align 8')
    out.append(f'.type {name},@function')
    L(name)
SD = 'dst_sel:DWORD dst_unused:UNUSED_PAD'
def abs_start(v):
    if not OPT['abst']: return
    A('s_memrealtime s[4:5]')
    A('s_waitcnt lgkmcnt(0)')
    A(f'v_mov_b32 v{v}, s4')
def abs_end(v, sr, kid, wpb):
    if not OPT['abst']: return
    A('s_mov_b64 exec, -1')
    A('s_waitcnt vmcnt(0)')
    A('s_load_dwordx2 s[4:5], s[0:1], 104')
    A('s_memrealtime s[6:7]')
    A('s_waitcnt lgkmcnt(0)')
    srd(sr, 4, WS_BYTES)
    A('v_lshrrev_b32 v1, 6, v0')
    A(f's_mul_i32 s7, s2, {wpb}')
    A('v_add_u32 v1, s7, v1')
    A('v_lshlrev_b32 v1, 3, v1')
    A(f'v_mov_b32 v2, v{v}')
    A('v_mov_b32 v3, s6')
    A(f's_mov_b32 s7, {0xF000000 + kid*65536:#x}')
    A('s_mov_b64 exec, 1')
    A(f'buffer_store_dwordx2 v[2:3], v1, s[{sr}:{sr+3}], s7 offen')

stampn = [0]
def stamp(key):
    if OPT[key] < 0: return
    n = stampn[0]; stampn[0] += 1
    A(OPT.get('clk','s_memtime').replace(' ','_') + ' s[98:99]')
    A('s_waitcnt lgkmcnt(0)')
    A(f's_mov_b32 s{76+n}, s98')
def stamp_flush(key, swave, vz, wave=0):
    if OPT[key] < 0: return
    lab = newlab('STF')
    A(f's_cmp_lg_u32 s2, {OPT[key]}')
    A(f's_cbranch_scc1 {lab}')
    A(f's_cmp_lg_u32 s{swave}, {wave}')
    A(f's_cbranch_scc1 {lab}')
    A('s_load_dwordx2 s[4:5], s[0:1], 96')
    A('s_waitcnt lgkmcnt(0)')
    srd(72, 4, 256)
    A('s_mov_b64 exec, 1')
    A(f'v_mov_b32 v{vz}, 0')
    for n in range(stampn[0]):
        A(f's_sub_u32 s98, s{76+n}, s76')
        A(f'v_mov_b32 v{vz+1}, s98')
        A(f'buffer_store_dword v{vz+1}, v{vz}, s[72:75], 0 offen offset:{4*n}')
        A('s_nop 1')
    L(lab)

L_H, L_SC, L_ST = 0, 16384, 16640
L_X = L_ST
L_W = L_X + NBLK * 4 + 8
LDS1 = L_W + NBLK * 12
assert L_W < 65536 and L_W % 16 == 0
L_ARB, L_A = 50000, NBK*1024
L_SC2 = L_A + 100000
LDS2 = L_SC2 + 64
assert LDS2 <= 163840
MP_BASE = 0x4C10000
CHS = NBK*1024
assert MP_BASE + 4*NR*CHS + CHS <= PART_BASE
G3 = (E + 256*OPT['ne'] - 1) // (256*OPT['ne'])

hdr = open('standalone__molecular_angular_gemnet__graph.s.ref').read().split('; Override launch')[0]
out.append(hdr.rstrip())
out.append(f'; @launch kernel=part_kernel grid=(256,1,1) block=(1024,1,1) lds={LDS1}')
out.append(f'; @launch kernel=acc_kernel grid=(256,1,1) block=(1024,1,1) lds={LDS2}')
out.append(f'; @launch kernel=fin_kernel grid=({G3},1,1) block=(256,1,1) lds=0')
out.append('.amdgcn_target "amdgcn-amd-amdhsa--gfx950"')
out.append('.text')

khead('part_kernel')
A('s_cmp_ge_u32 s2, 256')
A('s_cbranch_scc1 P_END')
abs_start(7+0) if False else abs_start(87)
A('s_load_dwordx4 s[4:7], s[0:1], 0')
A('s_load_dwordx2 s[8:9], s[0:1], 16')
A('s_load_dwordx2 s[10:11], s[0:1], 32')
A('s_load_dwordx2 s[12:13], s[0:1], 48')
A('s_load_dwordx2 s[14:15], s[0:1], 104')
S_IN, S_OUT, S_ANG, S_WS, S_M = 16, 20, 24, 28, 32
if OPT['prio']: A('s_setprio 3')
if OPT['cpf'] >= 2:
    A('s_getpc_b64 s[58:59]')
    A('v_lshlrev_b32 v48, 7, v0')
    A('v_cmp_gt_u32 vcc, 88, v0')
    A('s_and_saveexec_b64 s[56:57], vcc')
    A('s_cbranch_execz P_NOSPF')
    A('global_load_dword v87, v48, s[58:59]')
    L('P_NOSPF')
    A('s_mov_b64 exec, s[56:57]')
A('v_lshlrev_b32 v1, 4, v0')
A('v_lshlrev_b32 v2, 3, v0')
A('v_mov_b32 v3, 1')
A('v_mov_b32 v4, 0x10000')
A('v_mov_b32 v5, 0')
A('v_lshlrev_b32 v6, 2, v0')
A('v_lshlrev_b32 v7, 1, v0')
TT = 8
for r in range(4): A(f'v_mov_b32 v{TT+4+r}, 0')
A('v_readfirstlane_b32 s50, v0')
A(f'ds_write_b128 v1, v[{TT+4}:{TT+7}]')
A(f'ds_write_b32 v6, v5 offset:{L_SC}')
A(f's_movk_i32 s42, {MINI}')
A('v_cmp_gt_u32 s[40:41], s42, v0')
A('s_waitcnt lgkmcnt(0)')
A('s_load_dword s36, s[12:13], 0')
srd(S_IN, 6, T * 4); srd(S_OUT, 8, T * 4); srd(S_ANG, 10, T * 2); srd(S_WS, 14, WS_BYTES); srd(S_M, 4, E * 8)
A('s_lshr_b32 s50, s50, 6')
if OPT['il']:
    if OPT['il'] == 1:
        A('s_lshl_b32 s37, s2, 14')
    elif OPT['il'] == 5:
        A(f's_mul_i32 s37, s50, {256*6144 - 1024}')
        A('s_mul_i32 s38, s2, 6144')
        A('s_add_u32 s37, s37, s38')
    elif OPT['il'] == 6:
        A(f's_mul_i32 s37, s50, {6144 - 1024}')
        A(f's_mul_i32 s38, s2, {96*1024}')
        A('s_add_u32 s37, s37, s38')
    elif OPT['il'] == 7:
        A(f's_mul_i32 s37, s2, {96*1024}')
    elif OPT['il'] == 8:
        A('s_lshr_b32 s38, s2, 3')
        A('s_add_u32 s38, s38, s50')
        A('s_and_b32 s38, s38, 15')
        A('s_sub_i32 s38, s38, s50')
        A('s_lshl_b32 s38, s38, 10')
        A('s_lshl_b32 s37, s2, 14')
        A('s_add_i32 s37, s37, s38')
    else:
        G_ = OPT['il']
        A(f's_lshr_b32 s38, s50, {G_-2}')
        A(f's_mul_i32 s37, s38, {255 * (1024 << (G_-2))}')
        A(f's_lshl_b32 s38, s2, {10 + G_ - 2}')
        A('s_add_u32 s37, s37, s38')
    A('s_lshr_b32 s38, s37, 1')
    A(f's_mul_i32 s68, s2, {MINI*4}')
    A(f's_mul_i32 s69, s2, {MINI*2}')
else:
    A(f's_mul_i32 s37, s2, {2*S*4}')
    A(f's_mul_i32 s38, s2, {2*S*2}')
UA = 24
unitA = [(UA + 10*k, UA + 10*k + 4, UA + 10*k + 8) for k in range(6)] + [(84, 85, 86)]
unitB = [(88 + 10*k, 88 + 10*k + 4, 88 + 10*k + 8) for k in range(4)] + [unitA[0], unitA[1], (44, 45, 46)]
vm = []
ldf = OPT['ld_in']
def load_unit(tag, k):
    vi, vo, va = (unitA if tag == 'A' else unitB)[k]
    tile = 0 if tag == 'A' else 1
    if OPT['il'] and k < 6:
        us = {5: 1024, 6: 1024, 7: 16384}.get(OPT['il'], 256 * 16384)
        A(f's_add_u32 s43, s37, {tile*6*256*16384 + k*us}')
        A(f's_add_u32 s44, s38, {tile*6*256*8192 + k*us//2}')
    elif OPT['il']:
        A(f's_add_u32 s43, s68, {12*256*16384 + tile*256*MINI*4}')
        A(f's_add_u32 s44, s69, {12*256*8192 + tile*256*MINI*2}')
    else:
        A(f's_add_u32 s43, s37, {tile*S*4 + k*16384}')
        A(f's_add_u32 s44, s38, {tile*S*2 + k*8192}')
    if k < 6:
        A(f'buffer_load_dwordx4 v[{vo}:{vo+3}], v1, s[{S_OUT}:{S_OUT+3}], s43 offen {ldf}')
        A(f'buffer_load_dwordx4 v[{vi}:{vi+3}], v1, s[{S_IN}:{S_IN+3}], s43 offen {ldf}')
        A(f'buffer_load_dwordx2 v[{va}:{va+1}], v2, s[{S_ANG}:{S_ANG+3}], s44 offen {ldf}')
    else:
        A('s_or_b64 exec, s[40:41], 1')
        A(f'buffer_load_dword v{vo}, v6, s[{S_OUT}:{S_OUT+3}], s43 offen {ldf}')
        A(f'buffer_load_dword v{vi}, v6, s[{S_IN}:{S_IN+3}], s43 offen {ldf}')
        A(f'buffer_load_ushort v{va}, v7, s[{S_ANG}:{S_ANG+3}], s44 offen {ldf}')
        A('s_mov_b64 exec, -1')
    vm.extend([(tag, k)] * 3)
def vwait(tag):
    idx = max(i for i, t in enumerate(vm) if t == tag)
    A(f's_waitcnt vmcnt({min(len(vm)-1-idx, 63)})')
stamp('stamp')
for k in range(OPT['pre']): load_unit('A', k)
A('s_barrier')
A('s_lshl_b32 s39, s2, 4')
A('s_add_u32 s39, s39, s50')
A(f's_sub_u32 s42, s39, {4*NR*NBK}')
A(f's_cmp_ge_u32 s39, {4*NR*NBK}')
A('s_cselect_b32 s39, s42, s39')
A('s_cselect_b32 s70, 1, 0')
A('s_lshl_b32 s45, s39, 10')
A(f's_mul_hi_u32 s42, s39, {(2**32 + NBK - 1)//NBK:#x}')
A(f's_mul_i32 s42, s42, {CHS - CHI*8}')
A('s_sub_u32 s39, s45, s42')
A(f's_add_u32 s45, s45, {MP_BASE:#x}')
A(f'v_and_b32 v{TT+4}, 0xfc, v6')
A(f'v_and_b32 v{TT+5}, 0x3f0, v1')
for k in range(4):
    A(f'buffer_load_dword v{TT+k}, v{TT+4}, s[{S_M}:{S_M+3}], s39 offen offset:{256*k}'); vm.append('M')
for k in range(OPT['pre'], 7): load_unit('A', k)
if OPT['prio']: A('s_setprio 0')
_hi = f32bits(1/(2*math.pi)) & 0xFFFFFF00
if OPT['rr']:
    A(f's_mov_b32 s46, {_hi:#x}')
    A(f's_mov_b32 s47, {f32bits(1/(2*math.pi) - struct.unpack("<f", struct.pack("<I", _hi))[0]):#x}')
else:
    A(f's_mov_b32 s46, {f32bits(1/(2*math.pi)):#x}')
    A(f's_mov_b32 s47, {f32bits(1/(2*math.pi)):#x}')
A('s_mov_b32 s48, 0xfc000000')
A('s_mov_b32 s49, 0xffff0000')
A(f's_mov_b32 s51, {(-CH) & 0xffffffff:#x}')
A('s_mov_b32 s52, 0x00020002')
A(f's_movk_i32 s55, {1024-NR}')
A(f's_mov_b32 s54, {(-CHI) & 0xffffffff:#x}')
A('s_mov_b32 s53, 0x55555556')
A('s_waitcnt lgkmcnt(0)')
A('s_lshl_b32 s36, s36, 16')

PT = TT + 11
def process(tag, k):
    vi0, vo0, va0 = (unitA if tag == 'A' else unitB)[k]
    inc = 3 if tag == 'A' else 4
    n = 4 if k < 6 else 1
    vwait((tag, k))
    skip = None
    if k == 6:
        skip = newlab('P_MS')
        A('s_mov_b64 exec, s[40:41]')
        A(f's_cbranch_execz {skip}')
    tj, ti, t1 = PT, PT + 1, PT + 2
    for j in range(n):
        vi, vo = vi0 + j, vo0 + j
        A(f'v_mul_hi_u32_u24 v{tj}, {MAGIC_I:#x}, v{vi}')
        A(f'v_mul_hi_u32_u24 v{ti}, {MAGIC_DIV:#x}, v{vo}')
        A(f'v_mul_u32_u24 v{t1}, {(65536 + NR - 1)//NR}, v{tj}')
        A(f'v_mad_i32_i24 v{vi}, v{tj}, s54, v{vi}')
        A(f'v_mad_i32_i24 v{vo}, v{ti}, s51, v{vo}')
        A(f'v_lshrrev_b32 v{t1}, 16, v{t1}')
        A(f'v_lshl_or_b32 v{vi}, v{vo}, 13, v{vi}')
        A(f'v_lshl_add_u32 v{vo}, v{ti}, 4, v{tj}')
        A(f'v_mad_u32_u24 v{vo}, v{t1}, s55, v{vo}')
        A(f'v_lshlrev_b32 v{vo}, 2, v{vo}')
        A(f'ds_add_u32 v{vo}, v{inc} offset:{L_H}')
    a0, a1 = PT + 3, PT + 4
    assert a0 % 2 == 0
    npair = (n + 1) // 2
    nf = newlab('P_NF')
    A('s_cmp_eq_u32 s36, 0x3f800000')
    A(f's_cbranch_scc1 {nf}')
    for p in range(npair):
        va = va0 + p
        A(f'v_lshlrev_b32 v{a0}, 16, v{va}')
        A(f'v_and_b32 v{a1}, s49, v{va}')
        A(f'v_mul_f32 v{a0}, s36, v{a0}')
        A(f'v_mul_f32 v{a1}, s36, v{a1}')
        A(f'v_cvt_pk_bf16_f32 v{va}, v{a0}, v{a1}')
    L(nf)
    for p in range(npair):
        va = va0 + p
        A(f'v_lshlrev_b32 v{a0}, 16, v{va}')
        A(f'v_and_b32 v{a1}, s49, v{va}')
        if OPT['rr']:
            A(f'v_mul_f32 v{tj}, s46, v{a0}')
            A(f'v_mul_f32 v{ti}, s46, v{a1}')
            A(f'v_fract_f32 v{tj}, v{tj}')
            A(f'v_fract_f32 v{ti}, v{ti}')
            A(f'v_fmac_f32 v{tj}, s47, v{a0}')
            A(f'v_fmac_f32 v{ti}, s47, v{a1}')
            A(f'v_cos_f32 v{a0}, v{tj}')
            A(f'v_cos_f32 v{a1}, v{ti}')
        else:
            A(f'v_pk_mul_f32 v[{a0}:{a1}], v[{a0}:{a1}], s[46:47]')
            A(f'v_fract_f32 v{a0}, v{a0}')
            A(f'v_fract_f32 v{a1}, v{a1}')
            A(f'v_cos_f32 v{a0}, v{a0}')
            A(f'v_cos_f32 v{a1}, v{a1}')
        A('s_nop 0')
        if OPT['cbf']:
            A(f'v_cvt_pk_bf16_f32 v{va}, v{a0}, v{a1}')
            A(f'v_lshlrev_b32 v{a0}, 16, v{va}')
            A(f'v_and_b32 v{a1}, s49, v{va}')
            A(f'v_cvt_pk_f16_f32 v{va}, v{a0}, v{a1}')
        else:
            A(f'v_cvt_pk_f16_f32 v{va}, v{a0}, v{a1}')
            A(f'v_pk_add_u16 v{va}, v{va}, s52')
        e0, e1 = 2*p, 2*p + 1
        A(f'v_lshlrev_b32 v{a0}, 16, v{va}')
        if e1 < n: A(f'v_and_or_b32 v{vi0+e1}, v{va}, s48, v{vi0+e1}')
        A(f'v_and_or_b32 v{vi0+e0}, v{a0}, s48, v{vi0+e0}')
        A(f'v_lshrrev_b32 v{va}, 2, v{va}')
    if k == 6:
        L(skip)
        A('s_mov_b64 exec, -1')

def maxm():
    vwait('M')
    M = TT + 6
    A('s_mov_b32 s42, 0x7fff7fff')
    for j in range(4): A(f'v_and_b32 v{M+j}, s42, v{TT+j}')
    A(f'v_pk_max_u16 v{M}, v{M}, v{M+2}')
    A(f'v_pk_max_u16 v{M+1}, v{M+1}, v{M+3}')
    A(f'v_pk_max_u16 v{M}, v{M}, v{M+1}')
    A(f'v_lshrrev_b32 v{M+1}, 16, v{M}')
    A(f'v_and_b32 v{M}, 0xffff, v{M}')
    A(f'v_max_u32 v{M}, v{M}, v{M+1}')
    dpp_scan('v_max_u32', M)
    A('s_nop 1')
    A(f'v_readlane_b32 s42, v{M}, 63')
    A('s_nop 1')
    A(f'v_mov_b32 v{M}, s42')
    A('s_mov_b64 exec, 1')
    A(f'ds_max_u32 v5, v{M} offset:{L_SC+128}')
    A('s_mov_b64 exec, -1')
def mpload():
    A('v_and_b32 v47, 0xfc, v6')
    for k in range(4):
        A(f'buffer_load_dword v{84+k}, v47, s[{S_M}:{S_M+3}], s39 offen offset:{256*k}'); vm.append('M2')
def mpstore():
    A('s_cmp_eq_u32 s70, 1')
    A('s_cbranch_scc1 P_NOMP')
    vwait('M2')
    A('v_and_b32 v47, 0x3f0, v1')
    A(f'buffer_store_dwordx4 v[84:87], v47, s[{S_WS}:{S_WS+3}], s45 offen {OPT["st_mp"]}')
    L('P_NOMP')

def zrow(src, h, tile):
    for j in range(4):
        A(f'v_mul_hi_u32 v{h+8}, v{src+j}, s53')
        A(f'v_add_u32 v{h+10+j}, v{h+8}, v{src+j}')
    A(f'v_lshl_or_b32 v{h+8}, v{h+11}, 16, v{h+10}')
    A(f'v_lshl_or_b32 v{h+9}, v{h+13}, 16, v{h+12}')
    if tile == 0:
        A(f'v_and_b32 v{h+14}, -32, v2')
        A(f'v_add_u32 v{h+14}, v{h+14}, v2')
    A(f's_mul_i32 s42, s2, {OFS}')
    A(f's_add_u32 s42, s42, {OFF_BASE:#x}')
    A(f'buffer_store_dwordx2 v[{h+8}:{h+9}], v{h+14}, s[{S_WS}:{S_WS+3}], s42 offen offset:{64+32*tile}')
    vm.append(('OFS', tile))

def scan(tile, scoff):
    h = TT
    A('s_waitcnt lgkmcnt(0)')
    A('s_barrier')
    A(f'ds_read_b128 v[{h}:{h+3}], v1 offset:{L_H}')
    A(f'v_and_b32 v{h+5}, 63, v0')
    A(f'v_cmp_lt_u32 vcc, s50, v{h+5}')
    A(f'v_lshlrev_b32 v{h+5}, 2, v{h+5}')
    A('s_and_b64 s[56:57], vcc, 0xffff')
    A('s_waitcnt lgkmcnt(0)')
    if tile == 1:
        for j in range(4): A(f'v_and_b32 v{h+10+j}, 0xffff, v{h+j}')
        for j in range(4): A(f'v_lshrrev_b32 v{h+j}, 16, v{h+j}')
    for j in range(1, 4): A(f'v_add_u32 v{h+j}, v{h+j-1}, v{h+j}')
    A(f'v_mov_b32 v{h+4}, v{h+3}')
    dpp_scan('v_add_u32', h + 4)
    A('s_nop 1')
    A(f'v_readlane_b32 s42, v{h+4}, 63')
    A('s_nop 1')
    A(f'v_mov_b32 v{h+6}, s42')
    A('s_mov_b64 exec, s[56:57]')
    A(f'ds_add_u32 v{h+5}, v{h+6} offset:{scoff}')
    A('s_mov_b64 exec, -1')
    A('s_lshl_b32 s42, s50, 2')
    A(f'v_mov_b32 v{h+5}, s42')
    A(f'v_sub_u32 v{h+4}, v{h+4}, v{h+3}')
    if tile == 1: zrow(h + 10, h, 0)
    A('s_waitcnt lgkmcnt(0)')
    A('s_barrier')
    A(f'ds_read_b32 v{h+5}, v{h+5} offset:{scoff}')
    if tile == 1: A(f'ds_read_b32 v{h+6}, v5 offset:{L_SC+128}')
    A('s_waitcnt lgkmcnt(0)')
    A(f'v_add_u32 v{h+4}, v{h+4}, v{h+5}')
    if tile == 1:
        for j in range(4): A(f'v_add_u32 v{h+10+j}, v{h+4}, v{h+j}')
    for j in (3, 2, 1): A(f'v_add_u32 v{h+j}, v{h+4}, v{h+j-1}')
    A(f'v_mov_b32 v{h}, v{h+4}')
    A(f'ds_write_b128 v1, v[{h}:{h+3}] offset:{L_H}')
    if tile == 1:
        zrow(h + 10, h, 1)
        done = newlab('P_SC')
        A('s_cmp_lg_u32 s50, 0')
        A(f's_cbranch_scc1 {done}')
        A('s_mov_b64 exec, 1')
        A(f'buffer_store_dword v5, v5, s[{S_WS}:{S_WS+3}], s42 offen offset:28')
        A(f'buffer_store_dword v5, v5, s[{S_WS}:{S_WS+3}], s42 offen offset:60')
        A(f's_add_u32 s42, s2, {MAX_BASE:#x}')
        A(f'v_lshrrev_b32 v{h+6}, 7, v{h+6}')
        A(f'buffer_store_byte v{h+6}, v5, s[{S_WS}:{S_WS+3}], s42 offen')
        A('s_mov_b64 exec, -1')
        L(done)
    A('s_waitcnt lgkmcnt(0)')
    A('s_barrier')

def scatter(tag, after_wait, after_fin):
    units = unitA if tag == 'A' else unitB
    lg = []
    def issue(k):
        vi0, vo0, _ = units[k]
        n = 4 if k < 6 else 1
        if k == 6: A('s_mov_b64 exec, s[40:41]')
        for j in range(n):
            A(f'ds_add_rtn_u32 v{TT+4*(k&1)+j}, v{vo0+j}, v3 offset:{L_H}')
            lg.append(('R', k))
        if k == 6: A('s_mov_b64 exec, -1')
    def fin(k):
        vi0, vo0, va0 = units[k]
        n = 4 if k < 6 else 1
        if k == 6: A('s_mov_b64 exec, s[40:41]')
        for j in range(n):
            t = TT + 4*(k & 1) + j
            q, a = TT + 8, TT + 9 + (j & 1)
            if tag == 'A': A(f'v_and_b32 v{t}, 0xffff, v{t}')
            A(f'v_mul_hi_u32 v{q}, v{t}, s53')
            A(f'v_lshlrev_b32 v{a}, 2, v{t}')
            A(f'v_add_u32 v{t}, v{q}, v{t}')
            A(f'ds_write_b32 v{a}, v{vi0+j} offset:{L_W}')
            A(f'ds_write_b8{"_d16_hi" if j & 1 else ""} v{t}, v{va0+j//2} offset:{L_X}')
            lg.extend([('W', k)] * 2)
        if k == 6: A('s_mov_b64 exec, -1')
    issue(0)
    for k in range(7):
        if k + 1 < 7: issue(k + 1)
        idx = max(i for i, t in enumerate(lg) if t == ('R', k) or t == ('W', k - 1))
        ny = sum(1 for t in lg[idx+1:] if t[1] != 6)
        A(f's_waitcnt lgkmcnt({min(ny, 15)})')
        if k in after_wait: after_wait[k]()
        fin(k)
        if k in after_fin:
            after_fin[k]()
            lg.extend([('H', k)] * 4)
    A('s_waitcnt lgkmcnt(0)')
    A('s_barrier')

RC = (NBLK + 1023) // 1024
lastc = NBLK - (RC - 1) * 1024
def copyout(tile, regs, ar):
    A(f's_movk_i32 s42, {lastc}')
    A('v_cmp_gt_u32 s[56:57], s42, v0')
    A(f'v_mul_u32_u24 v{ar[0]}, 12, v0')
    A(f'v_add_u32 v{ar[0]}, {L_W}, v{ar[0]}')
    A(f's_mul_i32 s42, s2, {2*RS}')
    if tile: A(f's_add_u32 s42, s42, {RS}')
    def rd(j):
        r = regs[j]
        if j == RC - 1: A('s_mov_b64 exec, s[56:57]')
        A(f'ds_read2_b32 v[{r}:{r+1}], v{ar[0]} offset0:0 offset1:1')
        A(f'ds_read_b32 v{r+2}, v{ar[0]} offset:8')
        A(f'ds_read_b32 v{r+3}, v6 offset:{L_X + j*4096}')
        if j == RC - 1: A('s_mov_b64 exec, -1')
        else: A(f'v_add_u32 v{ar[0]}, {12*1024}, v{ar[0]}')
    LA = 4
    for j in range(LA): rd(j)
    for j in range(RC):
        if j + LA < RC: rd(j + LA)
        A(f's_waitcnt lgkmcnt({3*max(0, min(LA, RC-2-j))})')
        if j == RC - 1: A('s_mov_b64 exec, s[56:57]')
        A(f'buffer_store_dwordx4 v[{regs[j]}:{regs[j]+3}], v1, s[{S_WS}:{S_WS+3}], s42 offen {OPT["st_ws"]}')
        if j < RC - 1: vm.append(('ST', tile, j))
        if j < RC - 1: A('s_add_u32 s42, s42, 16384')
    A('s_mov_b64 exec, -1')

stamp('stamp')
process('A', 0)
stamp('stamp')
maxm()
for k in range(1, 7): process('A', k)
stamp('stamp')
NPB = OPT['npb']
for k in range(NPB): load_unit('B', k)
scan(0, L_SC)
stamp('stamp')
ilv = dict((int(x.split(':')[0]), int(x.split(':')[1])) for x in OPT['ilv'].split(',')) if OPT['ilv'] else {}
pend = list(range(NPB, 7))
aw = {}
for k in range(7):
    take = []
    while pend and len(take) < OPT['bps'] and (pend[0] < 4 or k >= pend[0] - 3):
        take.append(pend.pop(0))
    if k == 6: take += pend; pend = []
    if take: aw[k] = (lambda tk=take: [load_unit('B', b) for b in tk])
scatter('A', aw, {k: (lambda b=b: process('B', b)) for k, b in ilv.items()})
def cpf_code():
    if OPT['cpf']:
        A('s_cmp_lg_u32 s50, 15')
        A('s_cbranch_scc1 P_NOCPF')
        A('s_getpc_b64 s[58:59]')
        L('P_PC')
        A('s_add_u32 s58, s58, acc_kernel-P_PC')
        A('s_addc_u32 s59, s59, 0')
        A('v_and_b32 v19, 63, v0')
        A('v_lshlrev_b32 v19, 7, v19')
        for j in range(3):
            A(f'v_min_u32 v20, CODE_END-acc_kernel-4, v19')
            A(f'global_load_dword v21, v20, s[58:59]')
            A('v_add_u32 v19, 8192, v19')
        L('P_NOCPF')
stamp('stamp')
CR = [48 + 4*j for j in range(RC)]
mpload()
if OPT['dst'] == '':
    copyout(0, CR, [TT, TT + 1, TT + 2])
    stamp('stamp')
    for k in range(7):
        if k not in ilv.values(): process('B', k)
    stamp('stamp')
    scan(1, L_SC + 64)
    cpf_code()
    stamp('stamp')
    scatter('B', {}, {})
else:
    A(f's_movk_i32 s42, {lastc}')
    A('v_cmp_gt_u32 s[64:65], s42, v0')
    A(f'v_mul_u32_u24 v{TT}, 12, v0')
    A(f'v_add_u32 v{TT}, {L_W}, v{TT}')
    A(f's_mul_i32 s66, s2, {2*RS}')
    for j in range(RC):
        r = CR[j]
        if j == RC - 1: A('s_mov_b64 exec, s[64:65]')
        A(f'ds_read2_b32 v[{r}:{r+1}], v{TT} offset0:0 offset1:1')
        A(f'ds_read_b32 v{r+2}, v{TT} offset:8')
        A(f'ds_read_b32 v{r+3}, v6 offset:{L_X + j*4096}')
        if j == RC - 1: A('s_mov_b64 exec, -1')
        else: A(f'v_add_u32 v{TT}, {12*1024}, v{TT}')
    nst = [0]
    def st(n):
        for _ in range(n):
            j = nst[0]
            if j >= RC: return
            nst[0] += 1
            if j == RC - 1: A('s_mov_b64 exec, s[64:65]')
            A(f'buffer_store_dwordx4 v[{CR[j]}:{CR[j]+3}], v1, s[{S_WS}:{S_WS+3}], s66 offen {OPT["st_ws"]}')
            if j < RC - 1:
                vm.append(('ST', 0, j)); A('s_add_u32 s66, s66, 16384')
            else: A('s_mov_b64 exec, -1')
    sch = [int(c) for c in OPT['dst']]
    rest = [k for k in range(7) if k not in ilv.values()]
    process('B', rest[0])
    A('s_waitcnt lgkmcnt(0)')
    st(sch[0])
    stamp('stamp')
    for k in rest[1:]: process('B', k)
    st(sch[1])
    stamp('stamp')
    scan(1, L_SC + 64)
    cpf_code()
    stamp('stamp')
    scatter('B', {k: (lambda n=sch[2+k]: st(n)) for k in range(7)}, {})
    assert nst[0] == RC
mpstore()

def tabgen():
    A('s_cmp_ge_u32 s50, 4')
    A('s_cbranch_scc1 P_NOTAB')
    A('s_load_dwordx2 s[4:5], s[0:1], 40')
    A('s_load_dwordx4 s[8:11], s[0:1], 56')
    A('s_lshl_b32 s42, s2, 8')
    D, a_, b_, t, RB, O = 8, 9, 10, 11, 12, 88
    A(f'v_add_u32 v{D}, s42, v0')
    A(f'v_lshlrev_b32 v16, 5, v{D}')
    A(f'v_lshlrev_b32 v{D}, 16, v{D}')
    A('s_waitcnt lgkmcnt(0)')
    A('s_load_dwordx4 s[4:7], s[4:5], 0')
    A('s_load_dwordx16 s[68:83], s[8:9], 0')
    A('s_load_dwordx16 s[84:99], s[10:11], 0')
    A(f's_mov_b32 s44, {f32bits(-10.0):#x}')
    A(f's_mov_b32 s45, {f32bits(math.log2(math.e)):#x}')
    def rnd():
        A(f'v_cvt_pk_bf16_f32 v{t}, v{a_}, v{b_}')
        A(f'v_lshlrev_b32 v{a_}, 16, v{t}')
        A(f'v_and_b32 v{b_}, s49, v{t}')
    A('s_waitcnt lgkmcnt(0)')
    for r in range(0, 8, 2):
        A(f's_lshl_b32 s42, s{4+r//2}, 16')
        A(f's_and_b32 s43, s{4+r//2}, 0xffff0000')
        A(f'v_subrev_f32 v{a_}, s42, v{D}')
        A(f'v_subrev_f32 v{b_}, s43, v{D}')
        rnd()
        A(f'v_mul_f32 v{a_}, v{a_}, v{a_}')
        A(f'v_mul_f32 v{b_}, v{b_}, v{b_}')
        rnd()
        A(f'v_mul_f32 v{a_}, s44, v{a_}')
        A(f'v_mul_f32 v{b_}, s44, v{b_}')
        rnd()
        A(f'v_mul_f32 v{a_}, s45, v{a_}')
        A(f'v_mul_f32 v{b_}, s45, v{b_}')
        A(f'v_exp_f32 v{a_}, v{a_}')
        A(f'v_exp_f32 v{b_}, v{b_}')
        A('s_nop 0')
        A(f'v_cvt_pk_bf16_f32 v{RB+r//2}, v{a_}, v{b_}')
    for r in range(0, 8, 2):
        for base, dst in ((84, O), (68, O + 4)):
            for d in range(4):
                op = 's_pack_hh_b32_b16' if d & 1 else 's_pack_ll_b32_b16'
                A(f'{op} s{42+(d&1)}, s{base + r*2 + d//2}, s{base + (r+1)*2 + d//2}')
                c = '0' if r == 0 else f'v{dst+d}'
                A(f'v_dot2_f32_bf16 v{dst+d}, v{RB+r//2}, s{42+(d&1)}, {c}')
    A('s_nop 2')
    A(f'v_cvt_pk_bf16_f32 v{O+4}, v{O+4}, v{O+5}')
    A(f'v_cvt_pk_bf16_f32 v{O+5}, v{O+6}, v{O+7}')
    A(f's_mov_b32 s42, {TAB_BASE:#x}')
    A(f'buffer_store_dwordx4 v[{O}:{O+3}], v16, s[{S_WS}:{S_WS+3}], s42 offen')
    A(f'buffer_store_dwordx4 v[{O+4}:{O+7}], v16, s[{S_WS}:{S_WS+3}], s42 offen offset:16')
    L('P_NOTAB')
stamp('stamp')
copyout(1, [48 + 4*j for j in range(RC)], [TT, TT + 1, TT + 2])
if OPT['tab']: tabgen()
stamp('stamp')
if OPT['stamp'] >= 0: A('s_waitcnt vmcnt(0)')
stamp('stamp')
if OPT.get('allst', 0):
    A(f's_cmp_lg_u32 s50, {OPT.get("swave", 0)}')
    A('s_cbranch_scc1 P_END')
    A('s_lshl_b32 s42, s2, 6')
    A('s_add_u32 s42, s42, 0xF000000')
    A('s_mov_b64 exec, 1')
    for n in range(stampn[0]):
        A(f'v_mov_b32 v{TT+1}, s{76+n}')
        A(f'buffer_store_dword v{TT+1}, v5, s[{S_WS}:{S_WS+3}], s42 offen offset:{4*n}')
        A('s_nop 1')
else: stamp_flush('stamp', 50, TT, OPT.get('swave', 0))
abs_end(87, 64, 0, 16)
L('P_END')
A('s_endpgm')

st2n = [0]
def stamp2():
    if OPT['stamp2'] < 0: return
    n = st2n[0]; st2n[0] += 1
    A(OPT.get('clk','s_memtime').replace(' ','_') + ' s[4:5]')
    A('s_waitcnt lgkmcnt(0)')
    A(f'v_writelane_b32 v127, s4, {n+2}')
khead('acc_kernel')
A('s_cmp_ge_u32 s2, 256')
A('s_cbranch_scc1 Q_END')
abs_start(127)
A('s_load_dwordx2 s[4:5], s[0:1], 0')
A('s_load_dwordx2 s[6:7], s[0:1], 104')
if OPT['pp']: A('s_setprio 3')
S_M, S_WS = 8, 12
A('s_and_b32 s3, s2, 7')
A('s_lshl_b32 s3, s3, 5')
A('s_lshr_b32 s16, s2, 3')
A('s_add_u32 s3, s3, s16')
VTB = 5; VOF = 8
VEB = VOF + 18
def EB(slot, s): return VEB + (slot * 2 + s) * 4
VG = VEB + 32
GP = [0]
def G(s, e): return VG + ((s + (GP[0] if s else 0)) * 3 + e) * 2
VCH = VG + 18
VT = VCH + 16
VA = VT + 6
VSH, VFC = VT + 10, VT + 11
VLA, VLB = VT + 12, VT + 13
VFB = VT + 14
VFG = VFB + 4
VL2 = VFG + 6
V3 = VL2
assert VFB % 2 == 0 and VL2 + 2 <= 126
def OF(s, k): return VOF + 9*s + k
def MK(slot, s, e): return 54 + slot * 12 + (s * 3 + e) * 2
A('v_and_b32 v1, 3, v0')
A('v_lshlrev_b32 v2, 4, v0')
A('v_lshrrev_b32 v3, 2, v0')
A('v_and_b32 v4, 1, v0')
A(f'v_mul_u32_u24 v{VT}, {OFS}, v3')
A(f'v_lshl_add_u32 v{VT+1}, v1, 4, v{VT}')
A(f'v_and_b32 v{VT}, -32, v{VT+1}')
A(f'v_and_b32 v{VT+2}, 63, v0')
A(f'v_lshlrev_b32 v{VT+2}, 2, v{VT+2}')
if not OPT['abst']: A('v_mov_b32 v127, 0')
A('s_lshl_b32 s17, s3, 6')
A(f's_add_u32 s17, s17, {OFF_BASE:#x}')
A(f's_mov_b32 s19, {MAX_BASE:#x}')
A('s_lshr_b32 s20, s3, 6')
A(f's_mul_i32 s20, s20, {NR*CHS}')
A(f's_add_u32 s20, s20, {MP_BASE:#x}')
A('v_cmp_gt_u32 s[22:23], 64, v0')
A('v_readfirstlane_b32 s21, v0')
A('s_nop 3')
A('s_lshl_b32 s50, s21, 4')
A('s_mov_b32 m0, s50')
A('s_waitcnt lgkmcnt(0)')
srd(S_M, 4, E * 8); srd(S_WS, 6, WS_BYTES)
TO = VG
A(f'buffer_load_dwordx4 v[{TO}:{TO+3}], v{VT+1}, s[{S_WS}:{S_WS+3}], s17 offen offset:64')
A(f'buffer_load_dword v{TO+4}, v{VT}, s[{S_WS}:{S_WS+3}], s17 offen offset:28')
A(f'buffer_load_dword v{VT+9}, v{VT+2}, s[{S_WS}:{S_WS+3}], s19 offen')
if OPT['pp']: A('s_setprio 1' if OPT['pp'] == 2 else 's_setprio 2')
stamp2()
INLOOP = [0]
ool = []
def chall(lastchk=False):
    sk = newlab('Q_C')
    if lastchk:
        A(f's_cmp_eq_u32 s33, {(NR-2)//4}')
        A('s_cselect_b64 exec, 1, -1')
    else: A('s_mov_b64 exec, -1')
    A(f's_cmp_ge_u32 s50, {(NBK-48)*1024}')
    A(f's_cbranch_scc1 {sk}')
    A(f's_add_u32 s21, s20, {3*16384}')
    if not (OPT['skip_ch'] and INLOOP[0]): A(f'buffer_load_dwordx4 v[{VCH+12}:{VCH+15}], v2, s[{S_WS}:{S_WS+3}], s21 offen {OPT["ld_ch"]}')
    L(sk)
    for j in range(3):
        A(f's_add_u32 s21, s20, {j*16384}')
        if not (OPT['skip_ch'] and INLOOP[0]): A(f'buffer_load_dwordx4 v[{VCH+4*j}:{VCH+4*j+3}], v2, s[{S_WS}:{S_WS+3}], s21 offen {OPT["ld_ch"]}')
    A(f's_add_u32 s20, s20, {CHS}')
def fill():
    if OPT['skip_fill']: return
    sk = newlab('Q_F')
    A('s_mov_b64 exec, -1')
    for j in range(4):
        if j == 3:
            A(f's_cmp_ge_u32 s50, {(NBK-48)*1024}')
            A(f's_cbranch_scc1 {sk}')
        for k in range(4): A(f'ds_write_addtid_b32 v{VCH+4*j+k} offset:{j*16384+256*k}')
    L(sk)
chall()
A(f's_mov_b32 s16, {2*RS}')
A(f'v_mul_lo_u32 v{VTB}, v3, s16')
A(f'v_add_u32 v{VTB+1}, {RS}, v{VTB}')
A('v_cmp_eq_u32 s[36:37], 3, v1')
A('v_and_b32 v4, 63, v0')
A('v_lshlrev_b32 v1, 2, v1')
A('s_mov_b32 s44, 0')
A('s_lshr_b32 s45, s3, 6')
A(f's_mul_i32 s45, s45, {NR*CHI*8}')
A(f'v_add_u32 v3, {L_A}, v2')
z = VEB + 28
for r in range(4): A(f'v_mov_b32 v{z+r}, 0')
for j in range(4): A(f'ds_write_b128 v3, v[{z}:{z+3}] offset:{j*16384}')
A(f'v_add_u32 v{VT+6}, 65536, v3')
for j in range(2): A(f'ds_write_b128 v{VT+6}, v[{z}:{z+3}] offset:{j*16384}')
A('s_movk_i32 s16, 106')
A('v_cmp_gt_u32 s[24:25], s16, v0')
A('s_mov_b64 exec, s[24:25]')
A(f'ds_write_b128 v{VT+6}, v[{z}:{z+3}] offset:{2*16384}')
A('s_mov_b64 exec, -1')
A(f'v_mov_b32 v126, {L_SC2}')
VONE = VSH
A('s_mov_b64 exec, 1')
A(f'ds_write_b128 v126, v[{z}:{z+3}]')
A('s_mov_b64 exec, -1')
A('s_mov_b32 s30, 0xffff0000')
A(f's_mov_b32 s31, {L_A}')
A('s_mov_b32 s35, 0xfc000000')
A(f'v_mov_b32 v{VSH}, 18')
A(f'v_mov_b32 v{V3}, 3')
A(f'v_mov_b32 v{VFC}, 0xfffc')
A('s_waitcnt vmcnt(3)')
for s_ in range(2):
    for k in range(9):
        ln = 2*s_ + (1 if k >= 5 else 0)
        src = TO + ((k - 1) % 4 if k > 0 else 4)
        A(f'v_mov_b32_dpp v{OF(s_,k)}, v{src} quad_perm:[{ln},{ln},{ln},{ln}] row_mask:0xf bank_mask:0xf')

def pfcalc(s_, r, masks=True):
    slot = r % 4
    r0, h0, r1, h1 = (r + 1) >> 1, (r + 1) & 1, (r + 2) >> 1, r & 1
    y, d, ln, ad = VT, VT + 7, VT + 8, VA
    a, b = OF(s_, r0), OF(s_, r1)
    m = [MK(slot, s_, k) for k in range(3)]
    A('s_mov_b64 exec, -1')
    A(f'v_and_b32_sdwa v{y}, v{a}, v{VFC} {SD} src0_sel:WORD_{h0} src1_sel:DWORD')
    A(f'v_sub_u32_sdwa v{ln}, v{b}, v{a} {SD} src0_sel:WORD_{h1} src1_sel:WORD_{h0}')
    A(f'v_add_u32 v{y}, v{y}, v1')
    A(f'v_sub_u32_sdwa v{d}, v{y}, v{a} {SD} src0_sel:DWORD src1_sel:WORD_{h0}')
    A(f'v_lshl_add_u32 v{ad}, v{y}, 2, v{VTB+s_}')
    if masks:
        A(f'v_cmp_lt_u32 s[{m[0]}:{m[0]+1}], v{d}, v{ln}')
        A(f'v_add_u32 v{d}, 1, v{d}')
        A(f'v_cmp_lt_u32 s[{m[1]}:{m[1]+1}], v{d}, v{ln}')
        A(f'v_add_u32 v{d}, 1, v{d}')
        A(f'v_cmp_lt_u32 s[{m[2]}:{m[2]+1}], v{d}, v{ln}')
def pf1(s_, r, live=False, det=True):
    slot = r % 4
    m = [MK(slot, s_, k) for k in range(3)]
    e = EB(slot, s_)
    pfcalc(s_, r)
    A(f's_or_b64 vcc, s[{m[0]}:{m[0]+1}], s[{m[1]}:{m[1]+1}]')
    A(f's_or_b64 vcc, vcc, s[{m[2]}:{m[2]+1}]')
    if live: A('s_and_b64 vcc, vcc, s[18:19]')
    A('s_or_b64 exec, vcc, 1' if not OPT['skip_pf'] else 's_mov_b64 exec, -1')
    if not (OPT['skip_pf'] and INLOOP[0]): A(f'buffer_load_dwordx4 v[{e}:{e+3}], v{VA}, s[{S_WS}:{S_WS+3}], 0 offen {OPT["ld_ent"]}')
def xl(r):
    A('s_mov_b64 exec, -1')
    A(f's_add_u32 s47, s46, {r}')
    A(f'v_cmp_eq_u32 vcc, s47, v{VLB}')
    A('s_or_b64 exec, vcc, s[48:49]')
    A(f'buffer_load_dwordx4 v[{VFB}:{VFB+3}], v{VLA}, s[{S_WS}:{S_WS+3}], 0 offen')
def xg(r):
    A('s_mov_b64 exec, -1')
    A(f's_add_u32 s47, s46, {r}')
    A(f'v_cmpx_eq_u32 vcc, s47, v{VLB}')
    for e in range(3): gaddr(VFB + e, VFG + 2*e)
    for e in range(3):
        A(f's_and_b64 exec, vcc, s[{40+2*e}:{41+2*e}]')
        if not OPT['skip_g']: A(f'ds_read_b64 v[{VFG+2*e}:{VFG+2*e+1}], v{VFG+2*e}')
def xs():
    for e in range(3):
        A(f's_mov_b64 exec, s[{40+2*e}:{41+2*e}]')
        scat1(VFB + e, VFB + 3, e, VFG + 2*e)

def gath1(w, g):
    A(f'v_lshlrev_b32 v{g}, 3, v{w}')
    A(f'v_and_b32 v{g}, 0xfff8, v{g}')
    if not OPT['skip_g']: A(f'ds_read_b64 v[{g}:{g+1}], v{g}')

def scat1(w, xr, e, g, wait=False):
    x, ad = VT, VT + 1
    p0, p2 = VT + 2, VT + 4
    A(f'v_lshlrev_b32_sdwa v{x}, v{VSH}, v{xr} {SD} src0_sel:DWORD src1_sel:BYTE_{e}')
    A(f'v_lshlrev_b32 v{p2}, 16, v{g+1}')
    A(f'v_and_b32 v{p2+1}, s30, v{g+1}')
    A(f'v_and_or_b32 v{x}, v{w}, s35, v{x}')
    A(f'v_bfe_u32 v{ad}, v{w}, 13, 13')
    A(f'v_lshlrev_b32 v{p0}, 16, v{g}')
    A(f'v_and_b32 v{p0+1}, s30, v{g}')
    for r in (p2, p2 + 1, p0, p0 + 1):
        A(f'v_fma_mix_f32 v{r}, v{r}, v{x}, s{26 if r == p0 else 28} op_sel:[0,1,0] op_sel_hi:[0,1,0]')
        if r == p2: A(f'v_lshl_add_u32 v{ad}, v{ad}, 3, s31')
        if r == p2 + 1:
            if wait: A('s_waitcnt lgkmcnt(0)')
            A(f'ds_add_u64 v{ad}, v[{p2}:{p2+1}] offset:{L_ARB}')
    A(f'v_add_u32 v{p0}, s34, v{p0}')
    A(f'ds_add_u64 v{ad}, v[{p0}:{p0+1}]')

def gaddr(w, g):
    A(f'v_lshlrev_b32_sdwa v{g}, v{V3}, v{w} dst_sel:WORD_0 dst_unused:UNUSED_PAD src0_sel:DWORD src1_sel:DWORD')
def Gset(r, s_):
    slot = r % 4
    GP[0] = (r & 1) if OPT['nd'] else 0
    A('s_mov_b64 exec, -1')
    for e in range(3): gaddr(EB(slot, s_) + e, G(s_, e))
    for e in range(3):
        m = MK(slot, s_, e); g = G(s_, e)
        A(f's_mov_b64 exec, s[{m}:{m+1}]')
        if not OPT['skip_g']: A(f'ds_read_b64 v[{g}:{g+1}], v{g}')
def Sset(r, s_, hooks={}, w0=False):
    slot = r % 4
    GP[0] = (r & 1) if OPT['nd'] else 0
    for e in range(3):
        if e in hooks: hooks[e]()
        m = MK(slot, s_, e)
        A(f's_mov_b64 exec, s[{m}:{m+1}]')
        b = EB(slot, s_)
        if not OPT['skip_s']: scat1(b + e, b + 3, e, G(s_, e), w0 and e == 0)

A(f'v_mov_b32 v{VT+1}, 0')
pf1(0, 0, det=False); pf1(1, 0, det=False); pf1(0, 1, det=False)
A('s_mov_b64 exec, -1')
A(f'v_max_u32_sdwa v{VT+2}, v{VT+9}, v{VT+9} {SD} src0_sel:BYTE_0 src1_sel:BYTE_1')
A(f'v_max_u32_sdwa v{VT+3}, v{VT+9}, v{VT+9} {SD} src0_sel:BYTE_2 src1_sel:BYTE_3')
A(f'v_max_u32 v{VT+9}, v{VT+2}, v{VT+3}')
dpp_scan('v_max_u32', VT + 9)
A('s_nop 1')
A(f'v_readlane_b32 s29, v{VT+9}, 63')
for s_ in range(2):
    A(f'v_lshrrev_b32 v{VT+2}, 16, v{OF(s_,0)}')
    A(f'v_lshrrev_b32 v{VT+3}, 18, v{OF(s_,0)}')
    A(f'v_sub_u32 v{VT+2}, v{VT+2}, v{VT+3}')
    A(f'v_lshrrev_b32 v{VT+3}, 18, v{OF(s_,8)}')
    A(f'v_add_u32 v{VT+2}, v{VT+2}, v{VT+3}')
    A(f'v_lshrrev_b32 v{VT+3}, 16, v{OF(s_,8)}')
    A(f'v_sub_u32 v{VT+4+s_}, v{VT+2}, v{VT+3}')
A(f'v_add_u32 v{VT+2}, v{VT+4}, v{VT+5}')
dpp_scan('v_add_u32', VT + 2)
A('s_nop 1')
A(f'v_readlane_b32 s32, v{VT+2}, 63')
A('s_min_u32 s27, s29, 249')
A('s_add_u32 s28, s27, 2')
A('s_lshl_b32 s28, s28, 23')
A('s_or_b32 s28, s28, 0x400000')
A('s_add_u32 s26, s27, 5')
A('s_lshl_b32 s26, s26, 23')
A('s_sub_u32 s34, 0x4000000, s26')
A('s_or_b32 s26, s26, 0x80000')
if OPT['detp'] == 0:
    PV, TBL, CBL, LW = VFB, VFB + 1, VFB + 2, VFB + 3
    D0, D1 = VFG, VFG + 1
    A('s_mov_b64 exec, -1')
    A(f'v_mov_b32_dpp v{PV}, v{TO+3} quad_perm:[0,0,2,2] row_mask:0xf bank_mask:0xf')
    A(f'v_and_b32 v{CBL}, 1, v0')
    A(f'v_cmp_eq_u32 vcc, 0, v{CBL}')
    A(f'v_lshlrev_b32 v{CBL}, 5, v{CBL}')
    A('v_cmp_lt_u32 s[38:39], 4, v1')
    A(f'v_cndmask_b32 v{PV}, v{PV}, v{TO+4}, vcc')
    A('s_nop 0')
    A(f'v_cndmask_b32 v{TBL}, v{VTB}, v{VTB+1}, s[38:39]')
    A(f'v_add_u32 v{TBL}, 64, v{TBL}')
    A('s_mov_b32 s46, s50')
    for t in range(8):
        sa, ha = (PV, 1) if t == 0 else (TO + (t - 1) // 2, (t - 1) & 1)
        sb, hb = TO + t // 2, t & 1
        nx = newlab('Q_D'); lp = newlab('Q_D')
        y, rem = VT, VT + 1
        A(f'v_and_b32_sdwa v{y}, v{sa}, v{VFC} {SD} src0_sel:WORD_{ha} src1_sel:DWORD')
        A(f'v_sub_u32_sdwa v{rem}, v{sb}, v{y} {SD} src0_sel:WORD_{hb} src1_sel:DWORD')
        A(f'v_cmpx_lt_i32 vcc, 16, v{rem}')
        A(f's_cbranch_execz {nx}')
        A(f'v_lshl_add_u32 v{D0}, v{y}, 2, v{TBL}')
        A(f'v_subrev_u32 v{rem}, 16, v{rem}')
        L(lp)
        A(f'v_mbcnt_lo_u32_b32 v{LW}, exec_lo, 0')
        A(f'v_mbcnt_hi_u32_b32 v{LW}, exec_hi, v{LW}')
        A(f'v_min_u32 v{D1}, 3, v{rem}')
        A(f'v_add_u32 v{LW}, s44, v{LW}')
        A(f'v_add3_u32 v{D1}, v{D1}, v{CBL}, s47' if False else f'v_add_u32 v{D1}, v{D1}, v{CBL}')
        if t: A(f'v_add_u32 v{D1}, {t*4}, v{D1}')
        A('s_bcnt1_i32_b64 s47, exec')
        A(f'v_min_u32 v{LW}, 63, v{LW}')
        A('s_add_u32 s44, s44, s47')
        A(f'v_lshl_add_u32 v{LW}, v{LW}, 3, s46')
        A(f'ds_write_b64 v{LW}, v[{D0}:{D1}]')
        A(f'v_cmpx_lt_i32 vcc, 4, v{rem}')
        A(f's_cbranch_execz {nx}')
        A('s_cmp_ge_u32 s44, 64')
        A(f's_cbranch_scc1 {nx}')
        A(f'v_add_u32 v{D0}, 16, v{D0}')
        A(f'v_subrev_u32 v{rem}, 4, v{rem}')
        A(f's_branch {lp}')
        L(nx)
        A('s_mov_b64 exec, -1')
    A(f'v_lshl_add_u32 v{LW}, v4, 3, s46')
    A(f'ds_read_b64 v[{VLA}:{VLB}], v{LW}')
    A('v_cmp_gt_u32 s[38:39], s44, v4')
    A('s_waitcnt lgkmcnt(0)')
    A(f'v_and_b32 v{LW}, 3, v{VLB}')
    A(f'v_lshrrev_b32 v{VLB}, 2, v{VLB}')
    A(f'v_cndmask_b32 v{LW}, 0, v{LW}, s[38:39]')
    A(f'v_cndmask_b32 v{VLB}, -1, v{VLB}, s[38:39]')
    for e in range(3): A(f'v_cmp_lt_u32 s[{40+2*e}:{41+2*e}], {e}, v{LW}')
    A('s_mov_b32 s46, 0')
A('s_mov_b64 s[48:49], 1')
xl(0)
A('s_waitcnt vmcnt(4)')
fill()
chall()
A('s_mov_b32 s33, 0')
A('s_waitcnt vmcnt(3) lgkmcnt(0)')
stamp2()
A('s_barrier')
Gset(0, 0); Gset(0, 1); xg(0)
if OPT['warm'] == 2:
    A('s_cmp_lg_u32 s50, 0')
    A('s_cbranch_scc1 Q_NOWARM')
    A('s_load_dwordx2 s[4:5], s[0:1], 24')
    A('s_load_dwordx2 s[6:7], s[0:1], 40')
    A('s_load_dwordx8 s[92:99], s[0:1], 56')
    A('s_mov_b64 exec, -1')
    A('s_mul_i32 s16, s2, 3200')
    A(f'v_lshl_add_u32 v{VT}, v4, 6, s16')
    A(f'v_min_u32 v{VT}, {E*2-4}, v{VT}')
    A('s_waitcnt lgkmcnt(0)')
    A(f'global_load_dword v125, v{VT}, s[4:5]')
    A('s_load_dword s16, s[6:7], 0')
    for k in range(4): A(f's_load_dword s{16+(k&1)}, s[{92+2*k}:{93+2*k}], 0')
    L('Q_NOWARM')
pf1(1, 1); pf1(1, 2); xl(1)
if OPT['skip_pf']:
    pf1(0, 2); pf1(0, 3); pf1(1, 3); A('s_waitcnt vmcnt(0)')
A('s_waitcnt vmcnt(3) lgkmcnt(0)')
stamp2()
INLOOP[0] = 1
L('Q_LOOP')
for r in range(4):
    ps = r & 1
    if r == 1: stamp2()
    A('s_barrier')
    if r == 1: stamp2()
    if r == (NR - 1) % 4:
        A(f's_cmp_eq_u32 s33, {(NR-1)//4}')
        A(f's_cbranch_scc1 Q_LAST')
    fill()
    chall(r == (NR - 2) % 4)
    nd = OPT['nd']
    hp = OPT['hp']
    Sset(r, 0, w0=nd > 0)
    A('s_waitcnt vmcnt(3)' if nd else 's_waitcnt vmcnt(3) lgkmcnt(0)')
    if r == 1: stamp2()
    A('s_barrier')
    if r == 1: stamp2()
    Gset(r + 1, 0)
    if nd == 2: Gset(r + 1, 1)
    xg(r + 1)
    Sset(r, 1, {int(hp[0]): lambda: pf1(ps, r + 2), int(hp[1]): lambda: (pf1(ps, r + 3), xl(r + 2))}, w0=nd == 2)
    if nd != 2: Gset(r + 1, 1)
    if r == 3:
        A('s_mov_b64 exec, -1')
        A('s_add_u32 s33, s33, 1')
        A('s_add_u32 s46, s46, 4')
        for s_ in range(2):
            for k in range(0, 7): A(f'v_mov_b32 v{OF(s_,k)}, v{OF(s_,k+2)}')
    A('s_waitcnt vmcnt(3)' if OPT['nd'] == 2 else 's_waitcnt vmcnt(3) lgkmcnt(0)')
A('s_branch Q_LOOP')
L('Q_LAST')
if OPT['warm'] == 1:
    A('s_cmp_lg_u32 s50, 0')
    A('s_cbranch_scc1 Q_NOWARM')
    A('s_load_dwordx2 s[4:5], s[0:1], 24')
    A('s_load_dwordx2 s[6:7], s[0:1], 40')
    A('s_load_dwordx8 s[56:63], s[0:1], 56' if (NR - 1) % 4 != 0 else 'ERR')
    A('s_mov_b64 exec, -1')
    A('s_mul_i32 s16, s2, 3200')
    A(f'v_lshl_add_u32 v{VT}, v4, 6, s16')
    A(f'v_min_u32 v{VT}, {E*2-4}, v{VT}')
    A('s_waitcnt lgkmcnt(0)')
    A(f'global_load_dword v{VCH}, v{VT}, s[4:5]')
    A('s_load_dword s16, s[6:7], 0')
    for k in range(4): A(f's_load_dword s{17+k}, s[{56+2*k}:{57+2*k}], 0')
    L('Q_NOWARM')
Sset((NR - 1) % 4, 0)
Sset((NR - 1) % 4, 1)
A('s_waitcnt vmcnt(0)')
xs()
A('s_mov_b64 exec, -1')
A('s_waitcnt lgkmcnt(0)')
stamp2()
A('s_barrier')
A('v_lshlrev_b32 v3, 3, v0')
A(f'v_add_u32 v7, {L_A}, v3')
RA = 8
for k in range(7):
    if k == 6: A('s_mov_b64 exec, s[24:25]')
    A(f'ds_read_b64 v[{RA+4*k}:{RA+4*k+1}], v7 offset:{k*8192}')
A('s_mov_b64 exec, -1')
A(f'v_add_u32 v4, {L_ARB}, v7')
for k in range(7):
    if k == 6: A('s_mov_b64 exec, s[24:25]')
    A(f'ds_read_b64 v[{RA+4*k+2}:{RA+4*k+3}], v4 offset:{k*8192}')
A('s_mov_b64 exec, -1')
A('s_lshr_b32 s16, s3, 6'); A(f's_mul_i32 s16, s16, {E*8}')
A('s_and_b32 s17, s3, 63'); A(f's_mul_i32 s17, s17, {CH*8}')
A('s_add_u32 s16, s16, s17'); A(f's_add_u32 s16, s16, {PART_BASE:#x}')
A('v_mov_b32 v5, 0')
A(f's_mov_b32 s36, {f32bits(2.0**-10):#x}')
A(f's_mov_b32 s37, {f32bits(2.0**-13):#x}')
A('s_mov_b32 s38, s37'); A('s_mov_b32 s39, s37')
A('s_sub_i32 s40, s27, 135')
A('v_mov_b32 v6, 1.0')
A('v_ldexp_f32 v6, v6, s40')
A('s_and_b32 s41, s3, 63')
A('s_lshl_b32 s41, s41, 2')
A('s_lshr_b32 s42, s3, 6')
A('s_add_u32 s41, s41, s42')
A('s_lshl_b32 s41, s41, 2')
A(f's_add_u32 s41, s41, {SCL_BASE:#x}')
A('v_cmp_eq_u32 vcc, 0, v0')
A('s_mov_b64 exec, vcc')
A(f'buffer_store_dword v6, v5, s[{S_WS}:{S_WS+3}], s41 offen')
A('s_mov_b64 exec, -1')
X = 40
A('s_mov_b32 s51, 0')
A(f's_mov_b32 s52, {f32bits(0.25):#x}')
A(f's_mov_b32 s56, {f32bits(256.0):#x}')
A('s_mov_b32 s57, 0')
for k in range(7):
    a0, a1, b0, b1 = RA + 4*k, RA + 4*k + 1, RA + 4*k + 2, RA + 4*k + 3
    c = X; P = X + 2; t = X + 4
    A(f's_waitcnt lgkmcnt({max(0,5-k)})')
    if k == 6: A('s_mov_b64 exec, s[24:25]')
    A(f'v_lshrrev_b32 v{c}, 26, v{a0}')
    A(f'v_and_b32 v{a0}, 0x3ffffff, v{a0}')
    A(f'v_mad_u64_u32 v[{P}:{P+1}], vcc, v{c}, s28, 0')
    A(f'v_lshlrev_b32 v{t}, 19, v{c}')
    A(f'v_add_u32 v5, v5, v{c}')
    A(f'v_sub_u32 v{a0}, v{a0}, v{t}')
    A(f'v_sub_u32 v{a1}, v{a1}, v{P}')
    A(f'v_add_u32 v{P+1}, v{P+1}, v{P}')
    A(f'v_sub_co_u32 v{b0}, vcc, v{b0}, v{P}')
    A(f'v_cvt_f32_i32 v{a0}, v{a0}')
    A(f'v_cvt_f32_i32 v{a1}, v{a1}')
    A(f'v_subb_co_u32 v{b1}, vcc, v{b1}, v{P+1}, vcc')
    A(f'v_ashrrev_i32 v{t}, 31, v{b0}')
    A(f'v_cvt_f32_i32 v{b0}, v{b0}')
    A(f'v_sub_u32 v{b1}, v{b1}, v{t}')
    A(f'v_min3_f32 v{c}, abs(v{a0}), abs(v{a1}), abs(v{b0})')
    A(f'v_cvt_f32_i32 v{b1}, v{b1}')
    A(f'v_pk_mul_f32 v[{a0}:{a1}], v[{a0}:{a1}], s[36:37]')
    A(f'v_min_f32 v{c}, abs(v{b1}), v{c}')
    A(f'v_pk_mul_f32 v[{b0}:{b1}], v[{b0}:{b1}], s[38:39]')
    A(f'v_max_f32 v{t}, abs(v{a0}), abs(v{a1})')
    A(f'v_cmp_gt_f32 s[54:55], s56, v{c}')
    A(f'v_cvt_pk_f16_f32 v{a0}, v{a0}, v{a1}')
    A(f'v_max3_f32 v{t}, abs(v{b0}), abs(v{b1}), v{t}')
    A(f'v_cvt_pk_f16_f32 v{a1}, v{b0}, v{b1}')
    A(f'v_cmp_gt_f32 vcc, s52, v{t}')
    A('s_and_b64 s[54:55], s[54:55], exec')
    A('s_bcnt1_i32_b64 s53, s[54:55]')
    A('s_add_u32 s57, s57, s53')
    A('s_and_b64 vcc, vcc, exec')
    A('s_bcnt1_i32_b64 s53, vcc')
    A('s_add_u32 s51, s51, s53')
    A(f'buffer_store_dwordx2 v[{a0}:{a1}], v3, s[{S_WS}:{S_WS+3}], s16 offen {OPT["st_part"]}')
    A('s_add_u32 s16, s16, 8192')
A('s_mov_b64 exec, -1')
dpp_scan('v_add_u32', 5)
A('s_nop 1')
A('v_readlane_b32 s42, v5, 63')
A('s_nop 3')
A('s_lshl_b32 s42, s42, 2')
A('s_add_u32 s42, s42, s32')
A('v_mov_b32 v6, s42')
A('s_lshl_b32 s57, s57, 16')
A('s_or_b32 s51, s51, s57')
A('v_mov_b32 v7, s51')
A('s_mov_b64 exec, 1')
A('ds_add_u32 v126, v6')
A('ds_add_u32 v126, v7 offset:4')
A('s_mov_b64 exec, -1')
A('s_waitcnt lgkmcnt(0)')
A('s_barrier')
A('ds_read_b64 v[6:7], v126')
A('s_waitcnt lgkmcnt(0)')
A('v_readfirstlane_b32 s42, v6')
A('v_readfirstlane_b32 s43, v7')
A('s_nop 3')
A(f's_cmp_gt_u32 s43, {1563 << 16:#x}')
A('s_cselect_b32 s42, 1, s42')
A('s_and_b32 s43, s43, 0xffff')
A('s_cmp_gt_u32 s43, 195')
A('s_cselect_b32 s42, 1, s42')
if OPT['forcefb'] == 1: A('s_mov_b32 s42, 1')
if OPT['forcefb'] == -1: A('s_mov_b32 s42, 0')
A('s_cmp_gt_u32 s29, 249')
A('s_cselect_b32 s42, 1, s42')
A('s_cmp_eq_u32 s42, 0')
A('s_cbranch_scc1 Q_FIN')
A('s_waitcnt vmcnt(0)')
A('v_mov_b32 v6, 0x80000000')
A('v_mov_b32 v5, 0')
A('v_cmp_eq_u32 vcc, 0, v0')
A('s_mov_b64 exec, vcc')
A(f'buffer_store_dword v6, v5, s[{S_WS}:{S_WS+3}], s41 offen')
A('s_mov_b64 exec, -1')
A('v_lshrrev_b32 v8, 1, v0')
A('v_lshrrev_b32 v9, 2, v0')
A(f'v_mul_u32_u24 v9, {OFS}, v9')
A('v_and_b32 v39, 1, v8')
A('v_lshl_add_u32 v9, v39, 5, v9')
A(f's_mov_b32 s16, {RS}')
A('v_mul_lo_u32 v8, v8, s16')
A('v_and_b32 v10, 1, v0')
for r in range(12, 16): A(f'v_mov_b32 v{r}, 0')
A('v_add_u32 v11, 65536, v2')
A('s_mov_b32 s48, 0')
L('Q_FH')
A('s_barrier')
for j in range(4): A(f'ds_write_b128 v2, v[12:15] offset:{j*16384}')
for j in range(2): A(f'ds_write_b128 v11, v[12:15] offset:{j*16384}')
A('s_mov_b64 exec, s[24:25]')
A(f'ds_write_b128 v11, v[12:15] offset:{2*16384}')
A('s_mov_b64 exec, -1')
A('s_waitcnt lgkmcnt(0)')
A('s_barrier')
A('s_lshl_b32 s49, s3, 6')
A(f's_add_u32 s49, s49, {OFF_BASE:#x}')
A(f'buffer_load_ushort v17, v9, s[{S_WS}:{S_WS+3}], s49 offen offset:30')
A('s_waitcnt vmcnt(0)')
A('s_lshr_b32 s50, s3, 6')
A(f's_mul_i32 s50, s50, {NR*CHI*8}')
A('s_mov_b32 s51, 0')
L('Q_FR')
A('v_add_u32 v16, v17, v10')
A(f'buffer_load_ushort v17, v9, s[{S_WS}:{S_WS+3}], s49 offen offset:64')
A('s_waitcnt vmcnt(0)')
L('Q_FI')
A('v_cmp_lt_u32 vcc, v16, v17')
A('s_and_b64 exec, exec, vcc')
A('s_cbranch_execz Q_FRN')
A('s_mov_b64 s[52:53], exec')
A('v_and_b32 v18, 3, v16')
A('v_lshl_add_u32 v19, v16, 2, v8')
A('v_or_b32 v20, 3, v16')
A('v_lshl_add_u32 v20, v20, 2, v8')
A('v_add_u32 v20, v20, v18')
A(f'buffer_load_dword v21, v19, s[{S_WS}:{S_WS+3}], 0 offen')
A(f'buffer_load_ubyte v22, v20, s[{S_WS}:{S_WS+3}], 0 offen')
A('s_waitcnt vmcnt(0)')
A('v_bfe_u32 v23, v21, 13, 13')
A('v_subrev_u32 v23, s48, v23')
A('s_movk_i32 s16, 3125')
A('v_cmp_gt_u32 vcc, s16, v23')
A('v_cmp_ne_u32 s[54:55], 3, v18')
A('s_and_b64 vcc, vcc, s[54:55]')
A('v_bfe_u32 v24, v21, 0, 13')
A('v_lshlrev_b32 v24, 3, v24')
A('s_and_b64 exec, exec, vcc')
A('s_cbranch_execz Q_FIN2')
A(f'buffer_load_dwordx2 v[26:27], v24, s[{S_M}:{S_M+3}], s50 offen')
A('v_lshlrev_b32 v22, 2, v22')
A('v_lshrrev_b32 v25, 16, v21')
A('v_and_b32 v25, 0xfc00, v25')
A('v_or_b32 v25, v25, v22')
A('v_cvt_f32_f16 v25, v25')
A('v_cvt_f64_f32 v[28:29], v25')
A('v_lshlrev_b32 v23, 3, v23')
A('v_add_u32 v38, 50000, v23')
A('s_waitcnt vmcnt(0)')
A('v_lshlrev_b32 v30, 16, v26'); A('v_and_b32 v32, s30, v26')
A('v_lshlrev_b32 v34, 16, v27'); A('v_and_b32 v36, s30, v27')
for j, r in enumerate((30, 32, 34, 36)):
    A(f'v_cvt_f64_f32 v[{r}:{r+1}], v{r}')
    A(f'v_mul_f64 v[{r}:{r+1}], v[{r}:{r+1}], v[28:29]')
    A(f'ds_add_f64 v{23 if j < 2 else 38}, v[{r}:{r+1}] offset:{(j & 1) * 25000}')
L('Q_FIN2')
A('s_mov_b64 exec, s[52:53]')
A('v_add_u32 v16, 2, v16')
A('s_branch Q_FI')
L('Q_FRN')
A('s_mov_b64 exec, -1')
A('s_add_u32 s49, s49, 2')
A(f's_add_u32 s50, s50, {CHI*8}')
A('s_add_u32 s51, s51, 1')
A('s_cmp_lt_u32 s51, 16')
A('s_cbranch_scc1 Q_FR')
A('s_waitcnt lgkmcnt(0)')
A('s_barrier')
A('s_lshr_b32 s16, s3, 6'); A(f's_mul_i32 s16, s16, {E*8}')
A('s_and_b32 s17, s3, 63'); A(f's_mul_i32 s17, s17, {CH*8}')
A('s_add_u32 s16, s16, s17'); A(f's_add_u32 s16, s16, {PART_BASE:#x}')
A('s_lshl_b32 s17, s48, 3'); A('s_add_u32 s16, s16, s17')
A(f's_sub_u32 s52, s16, {PART_BASE:#x}')
A('s_lshl_b32 s52, s52, 1')
A(f's_add_u32 s52, s52, {P32_BASE:#x}')
A('v_mov_b32 v16, v3')
L('Q_FC')
A('s_movk_i32 s17, 25000')
A('v_cmp_gt_u32 vcc, s17, v16')
A('s_and_b64 exec, exec, vcc')
A('s_cbranch_execz Q_FCD')
A('v_add_u32 v17, 50000, v16')
for j in range(4):
    A(f'ds_read_b64 v[{18+2*j}:{19+2*j}], v{16 if j < 2 else 17} offset:{(j & 1) * 25000}')
A('s_waitcnt lgkmcnt(0)')
for j in range(4): A(f'v_cvt_f32_f64 v{30+j}, v[{18+2*j}:{19+2*j}]')
A('v_lshlrev_b32 v17, 1, v16')
A(f'buffer_store_dwordx4 v[30:33], v17, s[{S_WS}:{S_WS+3}], s52 offen')
A(f'buffer_store_dwordx2 v[12:13], v16, s[{S_WS}:{S_WS+3}], s16 offen')
A('v_add_u32 v16, 8192, v16')
A('s_branch Q_FC')
L('Q_FCD')
A('s_mov_b64 exec, -1')
A('s_add_u32 s48, s48, 3125')
A('s_cmp_lt_u32 s48, 6250')
A('s_cbranch_scc1 Q_FH')
L('Q_FIN')
stamp2()
if OPT['stamp2'] >= 0:
    A('s_waitcnt vmcnt(0)')
    stamp2()
    A('v_readfirstlane_b32 s54, v0')
    A('s_nop 3')
    A(f's_cmp_lg_u32 s2, {OPT["stamp2"]}')
    A('s_cbranch_scc1 Q_END')
    A(f's_cmp_lg_u32 s54, {64*OPT.get("swave", 0)}')
    A('s_cbranch_scc1 Q_END')
    A('s_load_dwordx2 s[4:5], s[0:1], 96')
    A('s_waitcnt lgkmcnt(0)')
    srd(72, 4, 256)
    A('v_readlane_b32 s54, v127, 2')
    A('v_and_b32 v4, 63, v0')
    A('v_lshlrev_b32 v4, 2, v4')
    A('v_subrev_u32 v127, s54, v127')
    A('buffer_store_dword v127, v4, s[72:75], 0 offen')
abs_end(127, 64, 1, 16)
L('Q_END')
A('s_endpgm')

NE = OPT['ne']
khead('fin_kernel')
A(f's_cmp_ge_u32 s2, {G3}')
A('s_cbranch_scc1 F_END')
abs_start(1)
A('s_load_dwordx2 s[4:5], s[0:1], 0')
A('s_load_dwordx2 s[6:7], s[0:1], 104')
A('s_load_dwordx2 s[8:9], s[0:1], 24')
A('s_load_dwordx2 s[10:11], s[0:1], 88')
A('s_load_dwordx2 s[28:29], s[0:1], 40')
A('s_load_dwordx8 s[64:71], s[0:1], 56')
S_M, S_WS, S_DIST, S_O = 12, 16, 20, 24
if not OPT['adj']:
    A(f's_mul_i32 s3, s2, {256*NE}')
    VB = 2
    def R(i, n): return VB + 40 * i + n
    for i in range(NE):
        e, t = R(i, 1), R(i, 2)
        A(f'v_add_u32 v{e}, s3, v0')
        if i: A(f'v_add_u32 v{e}, {256*i}, v{e}')
        A(f'v_lshlrev_b32 v{R(i,3)}, 1, v{e}')
        A(f'v_min_u32 v{t}, {E-1}, v{e}')
        A(f'v_lshlrev_b32 v{R(i,0)}, 3, v{t}')
        A(f'v_mul_hi_u32_u24 v{t}, {MAGIC_DIV:#x}, v{t}')
        A(f'v_lshlrev_b32 v{t}, 4, v{t}')
        A(f'v_lshlrev_b32 v{e}, 3, v{e}')
    A('s_waitcnt lgkmcnt(0)')
    srd(S_DIST, 8, E * 2)
    for i in range(NE):
        A(f'buffer_load_ushort v{R(i,3)}, v{R(i,3)}, s[{S_DIST}:{S_DIST+3}], 0 offen')
    if not OPT['tab']:
        A('s_load_dwordx4 s[28:31], s[28:29], 0')
        A('s_load_dwordx16 s[32:47], s[64:65], 0')
        A('s_load_dwordx16 s[48:63], s[66:67], 0')
    A('s_load_dwordx8 s[72:79], s[70:71], 0')
    A('s_load_dwordx8 s[64:71], s[68:69], 0')
    srd(S_WS, 6, WS_BYTES); srd(S_M, 4, E * 8); srd(S_O, 10, E * 8)
    for i in range(NE):
        A(f's_mov_b32 s4, {SCL_BASE:#x}')
        A(f'buffer_load_dwordx4 v[{R(i,6)}:{R(i,9)}], v{R(i,2)}, s[{S_WS}:{S_WS+3}], s4 offen')
        for p in range(4):
            A(f's_mov_b32 s4, {PART_BASE + p*E*8:#x}')
            A(f'buffer_load_dwordx2 v[{R(i,32+2*p)}:{R(i,33+2*p)}], v{R(i,0)}, s[{S_WS}:{S_WS+3}], s4 offen {OPT["ld_part"]}')
        A(f'buffer_load_dwordx2 v[{R(i,4)}:{R(i,5)}], v{R(i,1)}, s[{S_M}:{S_M+3}], 0 offen')
else:
    assert NE == 2 and not OPT['tab']
    A('s_lshl_b32 s3, s2, 8')
    VB = 2
    PQ, MQ, OQ, SC = 84, 100, 104, 8
    def R(i, n):
        if 32 <= n < 40: return PQ + ((n - 32) // 2) * 4 + 2 * i + (n & 1)
        if n in (4, 5): return MQ + 2 * i + (n - 4)
        if n in (30, 31): return OQ + 2 * i + (n - 30)
        if 6 <= n < 10: return VB + n
        return VB + 40 * i + n
    e, t = R(0, 1), R(0, 2)
    A(f'v_add_u32 v{e}, s3, v0')
    A(f'v_lshlrev_b32 v{R(0,3)}, 2, v{e}')
    A(f'v_min_u32 v{t}, {E//2-1}, v{e}')
    A(f'v_lshlrev_b32 v{R(0,0)}, 4, v{t}')
    A(f'v_lshlrev_b32 v{t}, 1, v{t}')
    A(f'v_mul_hi_u32_u24 v{t}, {MAGIC_DIV:#x}, v{t}')
    A(f'v_lshlrev_b32 v{t}, 4, v{t}')
    A(f'v_lshlrev_b32 v{e}, 4, v{e}')
    A('s_waitcnt lgkmcnt(0)')
    srd(S_DIST, 8, E * 2)
    A(f'buffer_load_dword v{R(0,3)}, v{R(0,3)}, s[{S_DIST}:{S_DIST+3}], 0 offen')
    A('s_load_dwordx4 s[28:31], s[28:29], 0')
    A('s_load_dwordx16 s[32:47], s[64:65], 0')
    A('s_load_dwordx16 s[48:63], s[66:67], 0')
    A('s_load_dwordx8 s[72:79], s[70:71], 0')
    A('s_load_dwordx8 s[64:71], s[68:69], 0')
    srd(S_WS, 6, WS_BYTES); srd(S_M, 4, E * 8); srd(S_O, 10, E * 8)
    for p in range(4):
        A(f's_mov_b32 s4, {PART_BASE + p*E*8:#x}')
        A(f'buffer_load_dwordx4 v[{PQ+4*p}:{PQ+4*p+3}], v{R(0,0)}, s[{S_WS}:{S_WS+3}], s4 offen {OPT["ld_part"]}')
    A(f's_mov_b32 s4, {SCL_BASE:#x}')
    A(f'buffer_load_dwordx4 v[{SC}:{SC+3}], v{t}, s[{S_WS}:{S_WS+3}], s4 offen')
    A(f'buffer_load_dwordx4 v[{MQ}:{MQ+3}], v{e}, s[{S_M}:{S_M+3}], 0 offen')
A('s_mov_b32 s5, 0xffff0000')
A(f's_mov_b32 s8, {f32bits(-10.0):#x}')
A(f's_mov_b32 s9, {f32bits(math.log2(math.e)):#x}')
def sw(base, idx, dst):
    sr = base + idx // 2
    if idx & 1: A(f's_and_b32 s{dst}, s{sr}, 0xffff0000')
    else: A(f's_lshl_b32 s{dst}, s{sr}, 16')
def spk(base, r, d, dst):
    op = 's_pack_hh_b32_b16' if d & 1 else 's_pack_ll_b32_b16'
    A(f'{op} s{dst}, s{base + r*2 + d//2}, s{base + (r+1)*2 + d//2}')
def unp(a, b, t):
    A(f'v_lshlrev_b32 v{a}, 16, v{t}')
    A(f'v_and_b32 v{b}, s5, v{t}')
def rnd2(a, b, t):
    A(f'v_cvt_pk_bf16_f32 v{t}, v{a}, v{b}')
    unp(a, b, t)
if not OPT['tab']:
    if OPT['adj']:
        A('s_waitcnt vmcnt(6) lgkmcnt(0)')
        A(f'v_and_b32 v{R(1,3)}, s5, v{R(0,3)}')
        A(f'v_lshlrev_b32 v{R(0,3)}, 16, v{R(0,3)}')
    else:
        A(f's_waitcnt vmcnt({6*NE}) lgkmcnt(0)')
        for i in range(NE): A(f'v_lshlrev_b32 v{R(i,3)}, 16, v{R(i,3)}')
    for r in range(0, 8, 2):
        sw(28, r, 6); sw(28, r + 1, 7)
        for i in range(NE):
            a_, b_, t = R(i, 14), R(i, 15), R(i, 2)
            A(f'v_subrev_f32 v{a_}, s6, v{R(i,3)}')
            A(f'v_subrev_f32 v{b_}, s7, v{R(i,3)}')
            rnd2(a_, b_, t)
            A(f'v_mul_f32 v{a_}, v{a_}, v{a_}')
            A(f'v_mul_f32 v{b_}, v{b_}, v{b_}')
            rnd2(a_, b_, t)
            A(f'v_mul_f32 v{a_}, s8, v{a_}')
            A(f'v_mul_f32 v{b_}, s8, v{b_}')
            rnd2(a_, b_, t)
            A(f'v_mul_f32 v{a_}, s9, v{a_}')
            A(f'v_mul_f32 v{b_}, s9, v{b_}')
            A(f'v_exp_f32 v{a_}, v{a_}')
            A(f'v_exp_f32 v{b_}, v{b_}')
            A('s_nop 0')
            A(f'v_cvt_pk_bf16_f32 v{R(i,18+r//2)}, v{a_}, v{b_}')
    for r in range(0, 8, 2):
        for base, dst in ((48, 22), (32, 26)):
            for d in range(4):
                spk(base, r, d, 6 + (d & 1))
                for i in range(NE):
                    c = '0' if r == 0 else f'v{R(i,dst+d)}'
                    A(f'v_dot2_f32_bf16 v{R(i,dst+d)}, v{R(i,18+r//2)}, s{6+(d&1)}, {c}')
    A('s_nop 2')
    for i in range(NE):
        rnd2(R(i,26), R(i,27), R(i,2)); rnd2(R(i,28), R(i,29), R(i,2))
else:
    A(f's_waitcnt vmcnt({6*NE})')
    A(f's_mov_b32 s4, {TAB_BASE:#x}')
    for i in range(NE):
        A(f'v_lshlrev_b32 v{R(i,3)}, 5, v{R(i,3)}')
        A(f'buffer_load_dwordx4 v[{R(i,22)}:{R(i,25)}], v{R(i,3)}, s[{S_WS}:{S_WS+3}], s4 offen')
        A(f'buffer_load_dwordx2 v[{R(i,20)}:{R(i,21)}], v{R(i,3)}, s[{S_WS}:{S_WS+3}], s4 offen offset:16')
A(f's_waitcnt vmcnt({2*NE}) lgkmcnt(0)' if OPT['tab'] else 's_waitcnt vmcnt(0)')
for i in range(NE):
    for p in range(4):
        for d in range(4):
            c = '0' if p == 0 else f'v{R(i,14+d)}'
            A(f'v_fma_mix_f32 v{R(i,14+d)}, v{R(i,32+2*p+d//2)}, v{R(i,6+p)}, {c} op_sel:[{d&1},0,0] op_sel_hi:[1,0,0]')
assert NE == 1
A(f'v_or_b32 v{R(0,2)}, v{R(0,6)}, v{R(0,7)}')
A(f'v_or3_b32 v{R(0,2)}, v{R(0,8)}, v{R(0,9)}, v{R(0,2)}')
A(f'v_cmp_gt_i32 vcc, 0, v{R(0,2)}')
A('s_cbranch_vccnz F_P32')
L('F_BACK')
for k in range(4):
    for d in range(4):
        sw(64, k*4 + d, 6 + (d & 1))
        for i in range(NE):
            if k == 0: A(f'v_mul_f32 v{R(i,10+d)}, s{6+(d&1)}, v{R(i,14+k)}')
            else: A(f'v_fmac_f32 v{R(i,10+d)}, s{6+(d&1)}, v{R(i,14+k)}')
if OPT['tab']:
    A('s_waitcnt vmcnt(0)')
    for i in range(NE):
        unp(R(i,26), R(i,27), R(i,20)); unp(R(i,28), R(i,29), R(i,21))
for i in range(NE):
    for d in range(4):
        A(f'v_mul_f32 v{R(i,10+d)}, v{R(i,10+d)}, v{R(i,22+d)}')
    A(f'v_cvt_pk_bf16_f32 v{R(i,18)}, v{R(i,10)}, v{R(i,11)}')
    A(f'v_cvt_pk_bf16_f32 v{R(i,19)}, v{R(i,12)}, v{R(i,13)}')
for k in (0, 2):
    for d in range(4):
        spk(72, k, d, 6 + (d & 1))
        for i in range(NE):
            c = '0' if k == 0 else f'v{R(i,22+d)}'
            A(f'v_dot2_f32_bf16 v{R(i,22+d)}, v{R(i,18+k//2)}, s{6+(d&1)}, {c}')
for i in range(NE):
    unp(R(i,10), R(i,11), R(i,4)); unp(R(i,12), R(i,13), R(i,5))
A('s_nop 0')
for i in range(NE):
    rnd2(R(i,22), R(i,23), R(i,2)); rnd2(R(i,24), R(i,25), R(i,2))
    for d in range(4):
        A(f'v_mul_f32 v{R(i,22+d)}, v{R(i,22+d)}, v{R(i,26+d)}')
    rnd2(R(i,22), R(i,23), R(i,2)); rnd2(R(i,24), R(i,25), R(i,2))
    for d in range(4):
        A(f'v_add_f32 v{R(i,22+d)}, v{R(i,22+d)}, v{R(i,10+d)}')
    A(f'v_cvt_pk_bf16_f32 v{R(i,30)}, v{R(i,22)}, v{R(i,23)}')
    A(f'v_cvt_pk_bf16_f32 v{R(i,31)}, v{R(i,24)}, v{R(i,25)}')
    if not OPT['adj']: A(f'buffer_store_dwordx2 v[{R(i,30)}:{R(i,31)}], v{R(i,1)}, s[{S_O}:{S_O+3}], 0 offen {OPT["st_out"]}')
if OPT['adj']: A(f'buffer_store_dwordx4 v[{OQ}:{OQ+3}], v{R(0,1)}, s[{S_O}:{S_O+3}], 0 offen {OPT["st_out"]}')
L('F_END')
A('s_endpgm')
L('F_P32')
A(f'v_lshlrev_b32 v{R(0,2)}, 1, v{R(0,0)}')
for p in range(4):
    A(f'v_cmp_gt_i32 vcc, 0, v{R(0,6+p)}')
    A(f's_mov_b32 s4, {P32_BASE + p*E*16:#x}')
    A('s_mov_b64 exec, vcc')
    A(f'buffer_load_dwordx4 v[{R(0,32)}:{R(0,35)}], v{R(0,2)}, s[{S_WS}:{S_WS+3}], s4 offen')
    A('s_waitcnt vmcnt(0)')
    for d in range(4): A(f'v_add_f32 v{R(0,14+d)}, v{R(0,14+d)}, v{R(0,32+d)}')
    A('s_mov_b64 exec, -1')
A('s_branch F_BACK')
L('CODE_END')

out.append('.section .rodata,"a"')
for name, vg, sg in (('part_kernel', 128, 102), ('acc_kernel', 128, 102), ('fin_kernel', 108 if OPT['adj'] else 4 + 40*OPT['ne'], 80)):
    out.append('.p2align 6')
    out.append(f'.amdhsa_kernel {name}')
    out.append(f'  .amdhsa_next_free_vgpr {vg}')
    out.append(f'  .amdhsa_next_free_sgpr {sg}')
    out.append(f'  .amdhsa_accum_offset {vg}')
    out.append('  .amdhsa_group_segment_fixed_size 0')
    out.append('  .amdhsa_kernarg_size 112')
    out.append('  .amdhsa_user_sgpr_count 2')
    out.append('  .amdhsa_user_sgpr_kernarg_segment_ptr 1')
    out.append('  .amdhsa_system_sgpr_workgroup_id_x 1')
    out.append('  .amdhsa_float_denorm_mode_32 3')
    out.append('.end_amdhsa_kernel')
open(sys.argv[1], 'w').write('\n'.join(out) + '\n')
```

```python
import struct, sys, math

E = 400000
T = 12800000
CH = 6250
S = 25000
NTILE = 512
NBLK = (S + 2) // 3
RS = 128 * (int([a for a in sys.argv[2:] if a.startswith('rsl=')][0][4:]) if any(a.startswith('rsl=') for a in sys.argv[2:]) else 1042)
OFS = 16448
OFF_BASE = 0x4400000
MAX_BASE = 0x4C00000
SCL_BASE = 0x4C01000
PART_BASE = 0x5000000
P32_BASE = 0x7000000
TAB_BASE = 0x6000000
WS_BYTES = 268435456
MAGIC_DIV = (2**32 + CH - 1) // CH
NR = int([a for a in sys.argv[2:] if a.startswith('NR=')][0][3:]) if any(a.startswith('NR=') for a in sys.argv[2:]) else 14
CHI = (E + 4*NR - 1) // (4*NR)
MAGIC_I = (2**32 + CHI - 1) // CHI
assert MAGIC_I < 2**24 and all((x*MAGIC_I) >> 32 == x // CHI for x in range(0, E, 1))
NBK = (CHI*8 + 1023) // 1024
MINI = S - 6 * 4096
assert NTILE * RS <= OFF_BASE and OFF_BASE + 256 * OFS <= MAX_BASE

OPT = dict(ld_in='nt', st_ws='sc0 sc1', ld_ent='', ld_ch='', st_part='sc0 sc1', ld_part='', NB=2, skip_s=0, skip_g=0, skip_fill=0, skip_e=0,
           stamp=-1, stamp2=-1, prio=1, ilv='2:0,3:1,4:2,5:3', pre=1, npb=1, bps=1, vpos='123456', skip_ch=0, skip_pf=0, pmap=0, cpos=0, epos=1, unpair=0, k2prio=0, pa=2, pb=2, struct=0, forcefb=0, abst=0, wsoff=0, cpf=0, ne=1, pp=0, ilp=0, hp='01', NR=14, nd=1, tab=0, adj=0, st_out='sc0 sc1', warm=1, il=5, cbf=1, rr=1, detp=0, st_mp='sc0 sc1', dst='002211111')
for a in sys.argv[2:]:
    k, v = a.split('=')
    OPT[k] = int(v) if (v.lstrip('-').isdigit() and k not in ('vpos', 'dst', 'hp')) else v.replace('_', ' ')

def f32bits(x): return struct.unpack('<I', struct.pack('<f', x))[0]
out = []
def A(s): out.append('    ' + s)
def L(s): out.append(s + ':')
_lab = [0]
def newlab(p='L'):
    _lab[0] += 1
    return f'{p}_{_lab[0]}'
def srd(d, b, nbytes):
    if nbytes == WS_BYTES and OPT['wsoff']:
        off = OPT['wsoff'] << 20
        A(f's_add_u32 s{d}, s{b}, {off:#x}')
        A(f's_addc_u32 s{d+1}, s{b+1}, 0')
        A(f's_and_b32 s{d+1}, s{d+1}, 0xffff')
        A(f's_mov_b32 s{d+2}, {nbytes - off:#x}')
        A(f's_mov_b32 s{d+3}, 0x00020000')
        return
    A(f's_mov_b32 s{d}, s{b}')
    A(f's_and_b32 s{d+1}, s{b+1}, 0xffff')
    A(f's_mov_b32 s{d+2}, {nbytes:#x}')
    A(f's_mov_b32 s{d+3}, 0x00020000')
def dpp_scan(op, v):
    for sh in (1, 2, 4, 8):
        A('s_nop 1')
        A(f'{op}_dpp v{v}, v{v}, v{v} row_shr:{sh} row_mask:0xf bank_mask:0xf bound_ctrl:0')
    A('s_nop 1')
    A(f'{op}_dpp v{v}, v{v}, v{v} row_bcast:15 row_mask:0xa bank_mask:0xf')
    A('s_nop 1')
    A(f'{op}_dpp v{v}, v{v}, v{v} row_bcast:31 row_mask:0xc bank_mask:0xf')
def khead(name):
    out.append(f'.globl {name}')
    out.append('.p2align 8')
    out.append(f'.type {name},@function')
    L(name)
SD = 'dst_sel:DWORD dst_unused:UNUSED_PAD'
def abs_start(v):
    if not OPT['abst']: return
    A('s_memrealtime s[4:5]')
    A('s_waitcnt lgkmcnt(0)')
    A(f'v_mov_b32 v{v}, s4')
def abs_end(v, sr, kid, wpb):
    if not OPT['abst']: return
    A('s_mov_b64 exec, -1')
    A('s_waitcnt vmcnt(0)')
    A('s_load_dwordx2 s[4:5], s[0:1], 104')
    A('s_memrealtime s[6:7]')
    A('s_waitcnt lgkmcnt(0)')
    srd(sr, 4, WS_BYTES)
    A('v_lshrrev_b32 v1, 6, v0')
    A(f's_mul_i32 s7, s2, {wpb}')
    A('v_add_u32 v1, s7, v1')
    A('v_lshlrev_b32 v1, 3, v1')
    A(f'v_mov_b32 v2, v{v}')
    A('v_mov_b32 v3, s6')
    A(f's_mov_b32 s7, {0xF000000 + kid*65536:#x}')
    A('s_mov_b64 exec, 1')
    A(f'buffer_store_dwordx2 v[2:3], v1, s[{sr}:{sr+3}], s7 offen')

stampn = [0]
def stamp(key):
    if OPT[key] < 0: return
    n = stampn[0]; stampn[0] += 1
    A(OPT.get('clk','s_memtime').replace(' ','_') + ' s[98:99]')
    A('s_waitcnt lgkmcnt(0)')
    A(f's_mov_b32 s{76+n}, s98')
def stamp_flush(key, swave, vz, wave=0):
    if OPT[key] < 0: return
    lab = newlab('STF')
    A(f's_cmp_lg_u32 s2, {OPT[key]}')
    A(f's_cbranch_scc1 {lab}')
    A(f's_cmp_lg_u32 s{swave}, {wave}')
    A(f's_cbranch_scc1 {lab}')
    A('s_load_dwordx2 s[4:5], s[0:1], 96')
    A('s_waitcnt lgkmcnt(0)')
    srd(72, 4, 256)
    A('s_mov_b64 exec, 1')
    A(f'v_mov_b32 v{vz}, 0')
    for n in range(stampn[0]):
        A(f's_sub_u32 s98, s{76+n}, s76')
        A(f'v_mov_b32 v{vz+1}, s98')
        A(f'buffer_store_dword v{vz+1}, v{vz}, s[72:75], 0 offen offset:{4*n}')
        A('s_nop 1')
    L(lab)

L_H, L_SC, L_ST = 0, 16384, 16640
L_X = L_ST
L_W = L_X + NBLK * 4 + 8
LDS1 = L_W + NBLK * 12
assert L_W < 65536 and L_W % 16 == 0
L_ARB, L_A = 50000, NBK*1024
L_SC2 = L_A + 100000
LDS2 = L_SC2 + 64
assert LDS2 <= 163840
MP_BASE = 0x4C10000
CHS = NBK*1024
assert MP_BASE + 4*NR*CHS + CHS <= PART_BASE
G3 = (E + 256*OPT['ne'] - 1) // (256*OPT['ne'])

hdr = open('standalone__molecular_angular_gemnet__graph.s.ref').read().split('; Override launch')[0]
out.append(hdr.rstrip())
out.append(f'; @launch kernel=part_kernel grid=(256,1,1) block=(1024,1,1) lds={LDS1}')
out.append(f'; @launch kernel=acc_kernel grid=(256,1,1) block=(1024,1,1) lds={LDS2}')
out.append(f'; @launch kernel=fin_kernel grid=({G3},1,1) block=(256,1,1) lds=0')
out.append('.amdgcn_target "amdgcn-amd-amdhsa--gfx950"')
out.append('.text')

khead('part_kernel')
A('s_cmp_ge_u32 s2, 256')
A('s_cbranch_scc1 P_END')
abs_start(7+0) if False else abs_start(87)
A('s_load_dwordx4 s[4:7], s[0:1], 0')
A('s_load_dwordx2 s[8:9], s[0:1], 16')
A('s_load_dwordx2 s[10:11], s[0:1], 32')
A('s_load_dwordx2 s[12:13], s[0:1], 48')
A('s_load_dwordx2 s[14:15], s[0:1], 104')
S_IN, S_OUT, S_ANG, S_WS, S_M = 16, 20, 24, 28, 32
if OPT['prio']: A('s_setprio 3')
if OPT['cpf'] >= 2:
    A('s_getpc_b64 s[58:59]')
    A('v_lshlrev_b32 v48, 7, v0')
    A('v_cmp_gt_u32 vcc, 88, v0')
    A('s_and_saveexec_b64 s[56:57], vcc')
    A('s_cbranch_execz P_NOSPF')
    A('global_load_dword v87, v48, s[58:59]')
    L('P_NOSPF')
    A('s_mov_b64 exec, s[56:57]')
A('v_lshlrev_b32 v1, 4, v0')
A('v_lshlrev_b32 v2, 3, v0')
A('v_mov_b32 v3, 1')
A('v_mov_b32 v4, 0x10000')
A('v_mov_b32 v5, 0')
A('v_lshlrev_b32 v6, 2, v0')
A('v_lshlrev_b32 v7, 1, v0')
TT = 8
for r in range(4): A(f'v_mov_b32 v{TT+4+r}, 0')
A('v_readfirstlane_b32 s50, v0')
A(f'ds_write_b128 v1, v[{TT+4}:{TT+7}]')
A(f'ds_write_b32 v6, v5 offset:{L_SC}')
A(f's_movk_i32 s42, {MINI}')
A('v_cmp_gt_u32 s[40:41], s42, v0')
A('s_waitcnt lgkmcnt(0)')
A('s_load_dword s36, s[12:13], 0')
srd(S_IN, 6, T * 4); srd(S_OUT, 8, T * 4); srd(S_ANG, 10, T * 2); srd(S_WS, 14, WS_BYTES); srd(S_M, 4, E * 8)
A('s_lshr_b32 s50, s50, 6')
if OPT['il']:
    if OPT['il'] == 1:
        A('s_lshl_b32 s37, s2, 14')
    elif OPT['il'] == 5:
        A(f's_mul_i32 s37, s50, {256*6144 - 1024}')
        A('s_mul_i32 s38, s2, 6144')
        A('s_add_u32 s37, s37, s38')
    elif OPT['il'] == 6:
        A(f's_mul_i32 s37, s50, {6144 - 1024}')
        A(f's_mul_i32 s38, s2, {96*1024}')
        A('s_add_u32 s37, s37, s38')
    elif OPT['il'] == 7:
        A(f's_mul_i32 s37, s2, {96*1024}')
    elif OPT['il'] == 8:
        A('s_lshr_b32 s38, s2, 3')
        A('s_add_u32 s38, s38, s50')
        A('s_and_b32 s38, s38, 15')
        A('s_sub_i32 s38, s38, s50')
        A('s_lshl_b32 s38, s38, 10')
        A('s_lshl_b32 s37, s2, 14')
        A('s_add_i32 s37, s37, s38')
    else:
        G_ = OPT['il']
        A(f's_lshr_b32 s38, s50, {G_-2}')
        A(f's_mul_i32 s37, s38, {255 * (1024 << (G_-2))}')
        A(f's_lshl_b32 s38, s2, {10 + G_ - 2}')
        A('s_add_u32 s37, s37, s38')
    A('s_lshr_b32 s38, s37, 1')
    A(f's_mul_i32 s68, s2, {MINI*4}')
    A(f's_mul_i32 s69, s2, {MINI*2}')
else:
    A(f's_mul_i32 s37, s2, {2*S*4}')
    A(f's_mul_i32 s38, s2, {2*S*2}')
UA = 24
unitA = [(UA + 10*k, UA + 10*k + 4, UA + 10*k + 8) for k in range(6)] + [(84, 85, 86)]
unitB = [(88 + 10*k, 88 + 10*k + 4, 88 + 10*k + 8) for k in range(4)] + [unitA[0], unitA[1], (44, 45, 46)]
vm = []
ldf = OPT['ld_in']
def load_unit(tag, k):
    vi, vo, va = (unitA if tag == 'A' else unitB)[k]
    tile = 0 if tag == 'A' else 1
    if OPT['il'] and k < 6:
        us = {5: 1024, 6: 1024, 7: 16384}.get(OPT['il'], 256 * 16384)
        A(f's_add_u32 s43, s37, {tile*6*256*16384 + k*us}')
        A(f's_add_u32 s44, s38, {tile*6*256*8192 + k*us//2}')
    elif OPT['il']:
        A(f's_add_u32 s43, s68, {12*256*16384 + tile*256*MINI*4}')
        A(f's_add_u32 s44, s69, {12*256*8192 + tile*256*MINI*2}')
    else:
        A(f's_add_u32 s43, s37, {tile*S*4 + k*16384}')
        A(f's_add_u32 s44, s38, {tile*S*2 + k*8192}')
    if k < 6:
        A(f'buffer_load_dwordx4 v[{vo}:{vo+3}], v1, s[{S_OUT}:{S_OUT+3}], s43 offen {ldf}')
        A(f'buffer_load_dwordx4 v[{vi}:{vi+3}], v1, s[{S_IN}:{S_IN+3}], s43 offen {ldf}')
        A(f'buffer_load_dwordx2 v[{va}:{va+1}], v2, s[{S_ANG}:{S_ANG+3}], s44 offen {ldf}')
    else:
        A('s_or_b64 exec, s[40:41], 1')
        A(f'buffer_load_dword v{vo}, v6, s[{S_OUT}:{S_OUT+3}], s43 offen {ldf}')
        A(f'buffer_load_dword v{vi}, v6, s[{S_IN}:{S_IN+3}], s43 offen {ldf}')
        A(f'buffer_load_ushort v{va}, v7, s[{S_ANG}:{S_ANG+3}], s44 offen {ldf}')
        A('s_mov_b64 exec, -1')
    vm.extend([(tag, k)] * 3)
def vwait(tag):
    idx = max(i for i, t in enumerate(vm) if t == tag)
    A(f's_waitcnt vmcnt({min(len(vm)-1-idx, 63)})')
stamp('stamp')
for k in range(OPT['pre']): load_unit('A', k)
A('s_barrier')
A('s_lshl_b32 s39, s2, 4')
A('s_add_u32 s39, s39, s50')
A(f's_sub_u32 s42, s39, {4*NR*NBK}')
A(f's_cmp_ge_u32 s39, {4*NR*NBK}')
A('s_cselect_b32 s39, s42, s39')
A('s_cselect_b32 s70, 1, 0')
A('s_lshl_b32 s45, s39, 10')
A(f's_mul_hi_u32 s42, s39, {(2**32 + NBK - 1)//NBK:#x}')
A(f's_mul_i32 s42, s42, {CHS - CHI*8}')
A('s_sub_u32 s39, s45, s42')
A(f's_add_u32 s45, s45, {MP_BASE:#x}')
A(f'v_and_b32 v{TT+4}, 0xfc, v6')
A(f'v_and_b32 v{TT+5}, 0x3f0, v1')
for k in range(4):
    A(f'buffer_load_dword v{TT+k}, v{TT+4}, s[{S_M}:{S_M+3}], s39 offen offset:{256*k}'); vm.append('M')
A('s_mul_i32 s42, s50, 198656')
A(f'buffer_load_dwordx4 v[88:91], v1, s[{S_M}:{S_M+3}], s42 offen'); vm.append('M')
for k in range(OPT['pre'], 7): load_unit('A', k)
if OPT['prio']: A('s_setprio 0')
_hi = f32bits(1/(2*math.pi)) & 0xFFFFFF00
if OPT['rr']:
    A(f's_mov_b32 s46, {_hi:#x}')
    A(f's_mov_b32 s47, {f32bits(1/(2*math.pi) - struct.unpack("<f", struct.pack("<I", _hi))[0]):#x}')
else:
    A(f's_mov_b32 s46, {f32bits(1/(2*math.pi)):#x}')
    A(f's_mov_b32 s47, {f32bits(1/(2*math.pi)):#x}')
A('s_mov_b32 s48, 0xfc000000')
A('s_mov_b32 s49, 0xffff0000')
A(f's_mov_b32 s51, {(-CH) & 0xffffffff:#x}')
A('s_mov_b32 s52, 0x00020002')
A(f's_movk_i32 s55, {1024-NR}')
A(f's_mov_b32 s54, {(-CHI) & 0xffffffff:#x}')
A('s_mov_b32 s53, 0x55555556')
A('s_waitcnt lgkmcnt(0)')
A('s_lshl_b32 s36, s36, 16')

PT = TT + 11
def process(tag, k):
    vi0, vo0, va0 = (unitA if tag == 'A' else unitB)[k]
    inc = 3 if tag == 'A' else 4
    n = 4 if k < 6 else 1
    vwait((tag, k))
    skip = None
    if k == 6:
        skip = newlab('P_MS')
        A('s_mov_b64 exec, s[40:41]')
        A(f's_cbranch_execz {skip}')
    tj, ti, t1 = PT, PT + 1, PT + 2
    for j in range(n):
        vi, vo = vi0 + j, vo0 + j
        A(f'v_mul_hi_u32_u24 v{tj}, {MAGIC_I:#x}, v{vi}')
        A(f'v_mul_hi_u32_u24 v{ti}, {MAGIC_DIV:#x}, v{vo}')
        A(f'v_mul_u32_u24 v{t1}, {(65536 + NR - 1)//NR}, v{tj}')
        A(f'v_mad_i32_i24 v{vi}, v{tj}, s54, v{vi}')
        A(f'v_mad_i32_i24 v{vo}, v{ti}, s51, v{vo}')
        A(f'v_lshrrev_b32 v{t1}, 16, v{t1}')
        A(f'v_lshl_or_b32 v{vi}, v{vo}, 13, v{vi}')
        A(f'v_lshl_add_u32 v{vo}, v{ti}, 4, v{tj}')
        A(f'v_mad_u32_u24 v{vo}, v{t1}, s55, v{vo}')
        A(f'v_lshlrev_b32 v{vo}, 2, v{vo}')
        A(f'ds_add_u32 v{vo}, v{inc} offset:{L_H}')
    a0, a1 = PT + 3, PT + 4
    assert a0 % 2 == 0
    npair = (n + 1) // 2
    nf = newlab('P_NF')
    A('s_cmp_eq_u32 s36, 0x3f800000')
    A(f's_cbranch_scc1 {nf}')
    for p in range(npair):
        va = va0 + p
        A(f'v_lshlrev_b32 v{a0}, 16, v{va}')
        A(f'v_and_b32 v{a1}, s49, v{va}')
        A(f'v_mul_f32 v{a0}, s36, v{a0}')
        A(f'v_mul_f32 v{a1}, s36, v{a1}')
        A(f'v_cvt_pk_bf16_f32 v{va}, v{a0}, v{a1}')
    L(nf)
    for p in range(npair):
        va = va0 + p
        A(f'v_lshlrev_b32 v{a0}, 16, v{va}')
        A(f'v_and_b32 v{a1}, s49, v{va}')
        if OPT['rr']:
            A(f'v_mul_f32 v{tj}, s46, v{a0}')
            A(f'v_mul_f32 v{ti}, s46, v{a1}')
            A(f'v_fract_f32 v{tj}, v{tj}')
            A(f'v_fract_f32 v{ti}, v{ti}')
            A(f'v_fmac_f32 v{tj}, s47, v{a0}')
            A(f'v_fmac_f32 v{ti}, s47, v{a1}')
            A(f'v_cos_f32 v{a0}, v{tj}')
            A(f'v_cos_f32 v{a1}, v{ti}')
        else:
            A(f'v_pk_mul_f32 v[{a0}:{a1}], v[{a0}:{a1}], s[46:47]')
            A(f'v_fract_f32 v{a0}, v{a0}')
            A(f'v_fract_f32 v{a1}, v{a1}')
            A(f'v_cos_f32 v{a0}, v{a0}')
            A(f'v_cos_f32 v{a1}, v{a1}')
        A('s_nop 0')
        if OPT['cbf']:
            A(f'v_cvt_pk_bf16_f32 v{va}, v{a0}, v{a1}')
            A(f'v_lshlrev_b32 v{a0}, 16, v{va}')
            A(f'v_and_b32 v{a1}, s49, v{va}')
            A(f'v_cvt_pk_f16_f32 v{va}, v{a0}, v{a1}')
        else:
            A(f'v_cvt_pk_f16_f32 v{va}, v{a0}, v{a1}')
            A(f'v_pk_add_u16 v{va}, v{va}, s52')
        e0, e1 = 2*p, 2*p + 1
        A(f'v_lshlrev_b32 v{a0}, 16, v{va}')
        if e1 < n: A(f'v_and_or_b32 v{vi0+e1}, v{va}, s48, v{vi0+e1}')
        A(f'v_and_or_b32 v{vi0+e0}, v{a0}, s48, v{vi0+e0}')
        A(f'v_lshrrev_b32 v{va}, 2, v{va}')
    if k == 6:
        L(skip)
        A('s_mov_b64 exec, -1')

def maxm():
    vwait('M')
    M = TT + 6
    A('s_mov_b32 s42, 0x7fff7fff')
    for j in range(4): A(f'v_and_b32 v{M+j}, s42, v{TT+j}')
    A(f'v_pk_max_u16 v{M}, v{M}, v{M+2}')
    A(f'v_pk_max_u16 v{M+1}, v{M+1}, v{M+3}')
    A(f'v_pk_max_u16 v{M}, v{M}, v{M+1}')
    A(f'v_lshrrev_b32 v{M+1}, 16, v{M}')
    A(f'v_and_b32 v{M}, 0xffff, v{M}')
    A(f'v_max_u32 v{M}, v{M}, v{M+1}')
    dpp_scan('v_max_u32', M)
    A('s_nop 1')
    A(f'v_readlane_b32 s42, v{M}, 63')
    A('s_nop 1')
    A(f'v_mov_b32 v{M}, s42')
    A('s_mov_b64 exec, 1')
    A(f'ds_max_u32 v5, v{M} offset:{L_SC+128}')
    A('s_mov_b64 exec, -1')
    A('s_mov_b32 s42, 0x7fff7fff')
    for j in range(4): A(f'v_and_b32 v{M+j}, s42, v{88+j}')
    A(f'v_pk_max_u16 v{M}, v{M}, v{M+2}')
    A(f'v_pk_max_u16 v{M+1}, v{M+1}, v{M+3}')
    A(f'v_pk_max_u16 v{M}, v{M}, v{M+1}')
    A(f'v_lshrrev_b32 v{M+1}, 16, v{M}')
    A(f'v_and_b32 v{M}, 0xffff, v{M}')
    A(f'v_max_u32 v{M}, v{M}, v{M+1}')
    dpp_scan('v_max_u32', M)
    A('s_nop 1')
    A(f'v_readlane_b32 s42, v{M}, 63')
    A('s_nop 1')
    A(f'v_mov_b32 v{M}, s42')
    A('s_mov_b64 exec, 1')
    A(f'ds_max_u32 v5, v{M} offset:{L_SC+132}')
    A('s_mov_b64 exec, -1')
def mpload():
    A('v_and_b32 v47, 0xfc, v6')
    for k in range(4):
        A(f'buffer_load_dword v{84+k}, v47, s[{S_M}:{S_M+3}], s39 offen offset:{256*k}'); vm.append('M2')
def mpstore():
    A('s_cmp_eq_u32 s70, 1')
    A('s_cbranch_scc1 P_NOMP')
    vwait('M2')
    A('s_sub_i32 s43, 131, s71')
    for j in range(4):
        A(f'v_lshlrev_b32 v{PT}, 16, v{84+j}')
        A(f'v_and_b32 v{PT+1}, s49, v{84+j}')
        A(f'v_ldexp_f32 v{PT}, v{PT}, s43')
        A(f'v_ldexp_f32 v{PT+1}, v{PT+1}, s43')
        A(f'v_cvt_pk_f16_f32 v{84+j}, v{PT}, v{PT+1}')
    A('v_and_b32 v47, 0x3f0, v1')
    A(f'buffer_store_dwordx4 v[84:87], v47, s[{S_WS}:{S_WS+3}], s45 offen {OPT["st_mp"]}')
    L('P_NOMP')

def zrow(src, h, tile):
    for j in range(4):
        A(f'v_mul_hi_u32 v{h+8}, v{src+j}, s53')
        A(f'v_add_u32 v{h+10+j}, v{h+8}, v{src+j}')
    A(f'v_lshl_or_b32 v{h+8}, v{h+11}, 16, v{h+10}')
    A(f'v_lshl_or_b32 v{h+9}, v{h+13}, 16, v{h+12}')
    if tile == 0:
        A(f'v_and_b32 v{h+14}, -32, v2')
        A(f'v_add_u32 v{h+14}, v{h+14}, v2')
    A(f's_mul_i32 s42, s2, {OFS}')
    A(f's_add_u32 s42, s42, {OFF_BASE:#x}')
    A(f'buffer_store_dwordx2 v[{h+8}:{h+9}], v{h+14}, s[{S_WS}:{S_WS+3}], s42 offen offset:{64+32*tile}')
    vm.append(('OFS', tile))

def scan(tile, scoff):
    h = TT
    A('s_waitcnt lgkmcnt(0)')
    A('s_barrier')
    A(f'ds_read_b128 v[{h}:{h+3}], v1 offset:{L_H}')
    A(f'v_and_b32 v{h+5}, 63, v0')
    A(f'v_cmp_lt_u32 vcc, s50, v{h+5}')
    A(f'v_lshlrev_b32 v{h+5}, 2, v{h+5}')
    A('s_and_b64 s[56:57], vcc, 0xffff')
    A('s_waitcnt lgkmcnt(0)')
    if tile == 1:
        for j in range(4): A(f'v_and_b32 v{h+10+j}, 0xffff, v{h+j}')
        for j in range(4): A(f'v_lshrrev_b32 v{h+j}, 16, v{h+j}')
    for j in range(1, 4): A(f'v_add_u32 v{h+j}, v{h+j-1}, v{h+j}')
    A(f'v_mov_b32 v{h+4}, v{h+3}')
    dpp_scan('v_add_u32', h + 4)
    A('s_nop 1')
    A(f'v_readlane_b32 s42, v{h+4}, 63')
    A('s_nop 1')
    A(f'v_mov_b32 v{h+6}, s42')
    A('s_mov_b64 exec, s[56:57]')
    A(f'ds_add_u32 v{h+5}, v{h+6} offset:{scoff}')
    A('s_mov_b64 exec, -1')
    A('s_lshl_b32 s42, s50, 2')
    A(f'v_mov_b32 v{h+5}, s42')
    A(f'v_sub_u32 v{h+4}, v{h+4}, v{h+3}')
    if tile == 1: zrow(h + 10, h, 0)
    A('s_waitcnt lgkmcnt(0)')
    A('s_barrier')
    A(f'ds_read_b32 v{h+5}, v{h+5} offset:{scoff}')
    if tile == 1: A(f'ds_read_b64 v[{h+6}:{h+7}], v5 offset:{L_SC+128}')
    A('s_waitcnt lgkmcnt(0)')
    if tile == 1: A(f'v_readfirstlane_b32 s71, v{h+7}')
    A(f'v_add_u32 v{h+4}, v{h+4}, v{h+5}')
    if tile == 1:
        for j in range(4): A(f'v_add_u32 v{h+10+j}, v{h+4}, v{h+j}')
    for j in (3, 2, 1): A(f'v_add_u32 v{h+j}, v{h+4}, v{h+j-1}')
    A(f'v_mov_b32 v{h}, v{h+4}')
    A(f'ds_write_b128 v1, v[{h}:{h+3}] offset:{L_H}')
    if tile == 1:
        A('s_lshr_b32 s71, s71, 7')
        A('s_add_u32 s71, s71, 1')
        zrow(h + 10, h, 1)
        done = newlab('P_SC')
        A('s_cmp_lg_u32 s50, 0')
        A(f's_cbranch_scc1 {done}')
        A('s_mov_b64 exec, 1')
        A(f'buffer_store_dword v5, v5, s[{S_WS}:{S_WS+3}], s42 offen offset:28')
        A(f'buffer_store_dword v5, v5, s[{S_WS}:{S_WS+3}], s42 offen offset:60')
        A(f's_add_u32 s42, s2, {MAX_BASE:#x}')
        A(f'v_lshrrev_b32 v{h+6}, 7, v{h+6}')
        A(f'buffer_store_byte v{h+6}, v5, s[{S_WS}:{S_WS+3}], s42 offen')
        A('s_lshl_b32 s42, s2, 2')
        A(f's_add_u32 s42, s42, {MAX_BASE + 1024:#x}')
        A(f'v_mov_b32 v{h+5}, s71')
        A(f'buffer_store_dword v{h+5}, v5, s[{S_WS}:{S_WS+3}], s42 offen')
        A('s_mov_b64 exec, -1')
        L(done)
    A('s_waitcnt lgkmcnt(0)')
    A('s_barrier')

def scatter(tag, after_wait, after_fin):
    units = unitA if tag == 'A' else unitB
    lg = []
    def issue(k):
        vi0, vo0, _ = units[k]
        n = 4 if k < 6 else 1
        if k == 6: A('s_mov_b64 exec, s[40:41]')
        for j in range(n):
            A(f'ds_add_rtn_u32 v{TT+4*(k&1)+j}, v{vo0+j}, v3 offset:{L_H}')
            lg.append(('R', k))
        if k == 6: A('s_mov_b64 exec, -1')
    def fin(k):
        vi0, vo0, va0 = units[k]
        n = 4 if k < 6 else 1
        if k == 6: A('s_mov_b64 exec, s[40:41]')
        for j in range(n):
            t = TT + 4*(k & 1) + j
            q, a = TT + 8, TT + 9 + (j & 1)
            if tag == 'A': A(f'v_and_b32 v{t}, 0xffff, v{t}')
            A(f'v_mul_hi_u32 v{q}, v{t}, s53')
            A(f'v_lshlrev_b32 v{a}, 2, v{t}')
            A(f'v_add_u32 v{t}, v{q}, v{t}')
            A(f'ds_write_b32 v{a}, v{vi0+j} offset:{L_W}')
            A(f'ds_write_b8{"_d16_hi" if j & 1 else ""} v{t}, v{va0+j//2} offset:{L_X}')
            lg.extend([('W', k)] * 2)
        if k == 6: A('s_mov_b64 exec, -1')
    issue(0)
    for k in range(7):
        if k + 1 < 7: issue(k + 1)
        idx = max(i for i, t in enumerate(lg) if t == ('R', k) or t == ('W', k - 1))
        ny = sum(1 for t in lg[idx+1:] if t[1] != 6)
        A(f's_waitcnt lgkmcnt({min(ny, 15)})')
        if k in after_wait: after_wait[k]()
        fin(k)
        if k in after_fin:
            after_fin[k]()
            lg.extend([('H', k)] * 4)
    A('s_waitcnt lgkmcnt(0)')
    A('s_barrier')

RC = (NBLK + 1023) // 1024
lastc = NBLK - (RC - 1) * 1024
def copyout(tile, regs, ar):
    A(f's_movk_i32 s42, {lastc}')
    A('v_cmp_gt_u32 s[56:57], s42, v0')
    A(f'v_mul_u32_u24 v{ar[0]}, 12, v0')
    A(f'v_add_u32 v{ar[0]}, {L_W}, v{ar[0]}')
    A(f's_mul_i32 s42, s2, {2*RS}')
    if tile: A(f's_add_u32 s42, s42, {RS}')
    def rd(j):
        r = regs[j]
        if j == RC - 1: A('s_mov_b64 exec, s[56:57]')
        A(f'ds_read2_b32 v[{r}:{r+1}], v{ar[0]} offset0:0 offset1:1')
        A(f'ds_read_b32 v{r+2}, v{ar[0]} offset:8')
        A(f'ds_read_b32 v{r+3}, v6 offset:{L_X + j*4096}')
        if j == RC - 1: A('s_mov_b64 exec, -1')
        else: A(f'v_add_u32 v{ar[0]}, {12*1024}, v{ar[0]}')
    LA = 4
    for j in range(LA): rd(j)
    for j in range(RC):
        if j + LA < RC: rd(j + LA)
        A(f's_waitcnt lgkmcnt({3*max(0, min(LA, RC-2-j))})')
        if j == RC - 1: A('s_mov_b64 exec, s[56:57]')
        A(f'buffer_store_dwordx4 v[{regs[j]}:{regs[j]+3}], v1, s[{S_WS}:{S_WS+3}], s42 offen {OPT["st_ws"]}')
        if j < RC - 1: vm.append(('ST', tile, j))
        if j < RC - 1: A('s_add_u32 s42, s42, 16384')
    A('s_mov_b64 exec, -1')

stamp('stamp')
process('A', 0)
stamp('stamp')
maxm()
for k in range(1, 7): process('A', k)
stamp('stamp')
NPB = OPT['npb']
for k in range(NPB): load_unit('B', k)
scan(0, L_SC)
stamp('stamp')
ilv = dict((int(x.split(':')[0]), int(x.split(':')[1])) for x in OPT['ilv'].split(',')) if OPT['ilv'] else {}
pend = list(range(NPB, 7))
aw = {}
for k in range(7):
    take = []
    while pend and len(take) < OPT['bps'] and (pend[0] < 4 or k >= pend[0] - 3):
        take.append(pend.pop(0))
    if k == 6: take += pend; pend = []
    if take: aw[k] = (lambda tk=take: [load_unit('B', b) for b in tk])
scatter('A', aw, {k: (lambda b=b: process('B', b)) for k, b in ilv.items()})
def cpf_code():
    if OPT['cpf']:
        A('s_cmp_lg_u32 s50, 15')
        A('s_cbranch_scc1 P_NOCPF')
        A('s_getpc_b64 s[58:59]')
        L('P_PC')
        A('s_add_u32 s58, s58, acc_kernel-P_PC')
        A('s_addc_u32 s59, s59, 0')
        A('v_and_b32 v19, 63, v0')
        A('v_lshlrev_b32 v19, 7, v19')
        for j in range(3):
            A(f'v_min_u32 v20, CODE_END-acc_kernel-4, v19')
            A(f'global_load_dword v21, v20, s[58:59]')
            A('v_add_u32 v19, 8192, v19')
        L('P_NOCPF')
stamp('stamp')
CR = [48 + 4*j for j in range(RC)]
mpload()
if OPT['dst'] == '':
    copyout(0, CR, [TT, TT + 1, TT + 2])
    stamp('stamp')
    for k in range(7):
        if k not in ilv.values(): process('B', k)
    stamp('stamp')
    scan(1, L_SC + 64)
    cpf_code()
    stamp('stamp')
    scatter('B', {}, {})
else:
    A(f's_movk_i32 s42, {lastc}')
    A('v_cmp_gt_u32 s[64:65], s42, v0')
    A(f'v_mul_u32_u24 v{TT}, 12, v0')
    A(f'v_add_u32 v{TT}, {L_W}, v{TT}')
    A(f's_mul_i32 s66, s2, {2*RS}')
    for j in range(RC):
        r = CR[j]
        if j == RC - 1: A('s_mov_b64 exec, s[64:65]')
        A(f'ds_read2_b32 v[{r}:{r+1}], v{TT} offset0:0 offset1:1')
        A(f'ds_read_b32 v{r+2}, v{TT} offset:8')
        A(f'ds_read_b32 v{r+3}, v6 offset:{L_X + j*4096}')
        if j == RC - 1: A('s_mov_b64 exec, -1')
        else: A(f'v_add_u32 v{TT}, {12*1024}, v{TT}')
    nst = [0]
    def st(n):
        for _ in range(n):
            j = nst[0]
            if j >= RC: return
            nst[0] += 1
            if j == RC - 1: A('s_mov_b64 exec, s[64:65]')
            A(f'buffer_store_dwordx4 v[{CR[j]}:{CR[j]+3}], v1, s[{S_WS}:{S_WS+3}], s66 offen {OPT["st_ws"]}')
            if j < RC - 1:
                vm.append(('ST', 0, j)); A('s_add_u32 s66, s66, 16384')
            else: A('s_mov_b64 exec, -1')
    sch = [int(c) for c in OPT['dst']]
    rest = [k for k in range(7) if k not in ilv.values()]
    process('B', rest[0])
    A('s_waitcnt lgkmcnt(0)')
    st(sch[0])
    stamp('stamp')
    for k in rest[1:]: process('B', k)
    st(sch[1])
    stamp('stamp')
    scan(1, L_SC + 64)
    cpf_code()
    stamp('stamp')
    scatter('B', {k: (lambda n=sch[2+k]: st(n)) for k in range(7)}, {})
    assert nst[0] == RC
mpstore()

def tabgen():
    A('s_cmp_ge_u32 s50, 4')
    A('s_cbranch_scc1 P_NOTAB')
    A('s_load_dwordx2 s[4:5], s[0:1], 40')
    A('s_load_dwordx4 s[8:11], s[0:1], 56')
    A('s_lshl_b32 s42, s2, 8')
    D, a_, b_, t, RB, O = 8, 9, 10, 11, 12, 88
    A(f'v_add_u32 v{D}, s42, v0')
    A(f'v_lshlrev_b32 v16, 5, v{D}')
    A(f'v_lshlrev_b32 v{D}, 16, v{D}')
    A('s_waitcnt lgkmcnt(0)')
    A('s_load_dwordx4 s[4:7], s[4:5], 0')
    A('s_load_dwordx16 s[68:83], s[8:9], 0')
    A('s_load_dwordx16 s[84:99], s[10:11], 0')
    A(f's_mov_b32 s44, {f32bits(-10.0):#x}')
    A(f's_mov_b32 s45, {f32bits(math.log2(math.e)):#x}')
    def rnd():
        A(f'v_cvt_pk_bf16_f32 v{t}, v{a_}, v{b_}')
        A(f'v_lshlrev_b32 v{a_}, 16, v{t}')
        A(f'v_and_b32 v{b_}, s49, v{t}')
    A('s_waitcnt lgkmcnt(0)')
    for r in range(0, 8, 2):
        A(f's_lshl_b32 s42, s{4+r//2}, 16')
        A(f's_and_b32 s43, s{4+r//2}, 0xffff0000')
        A(f'v_subrev_f32 v{a_}, s42, v{D}')
        A(f'v_subrev_f32 v{b_}, s43, v{D}')
        rnd()
        A(f'v_mul_f32 v{a_}, v{a_}, v{a_}')
        A(f'v_mul_f32 v{b_}, v{b_}, v{b_}')
        rnd()
        A(f'v_mul_f32 v{a_}, s44, v{a_}')
        A(f'v_mul_f32 v{b_}, s44, v{b_}')
        rnd()
        A(f'v_mul_f32 v{a_}, s45, v{a_}')
        A(f'v_mul_f32 v{b_}, s45, v{b_}')
        A(f'v_exp_f32 v{a_}, v{a_}')
        A(f'v_exp_f32 v{b_}, v{b_}')
        A('s_nop 0')
        A(f'v_cvt_pk_bf16_f32 v{RB+r//2}, v{a_}, v{b_}')
    for r in range(0, 8, 2):
        for base, dst in ((84, O), (68, O + 4)):
            for d in range(4):
                op = 's_pack_hh_b32_b16' if d & 1 else 's_pack_ll_b32_b16'
                A(f'{op} s{42+(d&1)}, s{base + r*2 + d//2}, s{base + (r+1)*2 + d//2}')
                c = '0' if r == 0 else f'v{dst+d}'
                A(f'v_dot2_f32_bf16 v{dst+d}, v{RB+r//2}, s{42+(d&1)}, {c}')
    A('s_nop 2')
    A(f'v_cvt_pk_bf16_f32 v{O+4}, v{O+4}, v{O+5}')
    A(f'v_cvt_pk_bf16_f32 v{O+5}, v{O+6}, v{O+7}')
    A(f's_mov_b32 s42, {TAB_BASE:#x}')
    A(f'buffer_store_dwordx4 v[{O}:{O+3}], v16, s[{S_WS}:{S_WS+3}], s42 offen')
    A(f'buffer_store_dwordx4 v[{O+4}:{O+7}], v16, s[{S_WS}:{S_WS+3}], s42 offen offset:16')
    L('P_NOTAB')
stamp('stamp')
copyout(1, [48 + 4*j for j in range(RC)], [TT, TT + 1, TT + 2])
if OPT['tab']: tabgen()
stamp('stamp')
if OPT['stamp'] >= 0: A('s_waitcnt vmcnt(0)')
stamp('stamp')
if OPT.get('allst', 0):
    A(f's_cmp_lg_u32 s50, {OPT.get("swave", 0)}')
    A('s_cbranch_scc1 P_END')
    A('s_lshl_b32 s42, s2, 6')
    A('s_add_u32 s42, s42, 0xF000000')
    A('s_mov_b64 exec, 1')
    for n in range(stampn[0]):
        A(f'v_mov_b32 v{TT+1}, s{76+n}')
        A(f'buffer_store_dword v{TT+1}, v5, s[{S_WS}:{S_WS+3}], s42 offen offset:{4*n}')
        A('s_nop 1')
else: stamp_flush('stamp', 50, TT, OPT.get('swave', 0))
abs_end(87, 64, 0, 16)
L('P_END')
A('s_endpgm')

st2n = [0]
def stamp2():
    if OPT['stamp2'] < 0: return
    n = st2n[0]; st2n[0] += 1
    A(OPT.get('clk','s_memtime').replace(' ','_') + ' s[4:5]')
    A('s_waitcnt lgkmcnt(0)')
    A(f'v_writelane_b32 v127, s4, {n+2}')
khead('acc_kernel')
A('s_cmp_ge_u32 s2, 256')
A('s_cbranch_scc1 Q_END')
abs_start(127)
A('s_load_dwordx2 s[4:5], s[0:1], 0')
A('s_load_dwordx2 s[6:7], s[0:1], 104')
if OPT['pp']: A('s_setprio 3')
S_M, S_WS = 8, 12
A('s_and_b32 s3, s2, 7')
A('s_lshl_b32 s3, s3, 5')
A('s_lshr_b32 s16, s2, 3')
A('s_add_u32 s3, s3, s16')
VTB = 5; VOF = 8
VEB = VOF + 18
def EB(slot, s): return VEB + (slot * 2 + s) * 4
VG = VEB + 32
GP = [0]
def G(s, e): return VG + ((s + (GP[0] if s else 0)) * 3 + e) * 2
VCH = VG + 18
VT = VCH + 16
VA = VT + 6
VSH, VFC = VT + 10, VT + 11
VLA, VLB = VT + 12, VT + 13
VFB = VT + 14
VFG = VFB + 4
VL2 = VFG + 6
V3 = VL2
assert VFB % 2 == 0 and VL2 + 2 <= 126
def OF(s, k): return VOF + 9*s + k
def MK(slot, s, e): return 54 + slot * 12 + (s * 3 + e) * 2
A('v_and_b32 v1, 3, v0')
A('v_lshlrev_b32 v2, 4, v0')
A('v_lshrrev_b32 v3, 2, v0')
A('v_and_b32 v4, 1, v0')
A(f'v_mul_u32_u24 v{VT}, {OFS}, v3')
A(f'v_lshl_add_u32 v{VT+1}, v1, 4, v{VT}')
A(f'v_and_b32 v{VT}, -32, v{VT+1}')
A(f'v_and_b32 v{VT+2}, 63, v0')
A(f'v_lshlrev_b32 v{VT+2}, 2, v{VT+2}')
if not OPT['abst']: A('v_mov_b32 v127, 0')
A('s_lshl_b32 s17, s3, 6')
A(f's_add_u32 s17, s17, {OFF_BASE:#x}')
A(f's_mov_b32 s19, {MAX_BASE:#x}')
A('s_lshr_b32 s20, s3, 6')
A(f's_mul_i32 s20, s20, {NR*CHS}')
A(f's_add_u32 s20, s20, {MP_BASE:#x}')
A('v_cmp_gt_u32 s[22:23], 64, v0')
A('v_readfirstlane_b32 s21, v0')
A('s_nop 3')
A('s_lshl_b32 s50, s21, 4')
A('s_mov_b32 m0, s50')
A('s_waitcnt lgkmcnt(0)')
srd(S_M, 4, E * 8); srd(S_WS, 6, WS_BYTES)
A('s_lshl_b32 s16, s2, 2')
A(f's_add_u32 s16, s16, {MAX_BASE + 1024:#x}')
A('s_load_dword s27, s[6:7], s16')
TO = VG
A(f'buffer_load_dwordx4 v[{TO}:{TO+3}], v{VT+1}, s[{S_WS}:{S_WS+3}], s17 offen offset:64')
A(f'buffer_load_dword v{TO+4}, v{VT}, s[{S_WS}:{S_WS+3}], s17 offen offset:28')
A(f'buffer_load_dword v125, v{VT+2}, s[{S_WS}:{S_WS+3}], s19 offen')
if OPT['pp']: A('s_setprio 1' if OPT['pp'] == 2 else 's_setprio 2')
stamp2()
INLOOP = [0]
ool = []
def chall(lastchk=False):
    sk = newlab('Q_C')
    if lastchk:
        A(f's_cmp_eq_u32 s33, {(NR-2)//4}')
        A('s_cselect_b64 exec, 1, -1')
    else: A('s_mov_b64 exec, -1')
    A(f's_cmp_ge_u32 s50, {(NBK-48)*1024}')
    A(f's_cbranch_scc1 {sk}')
    A(f's_add_u32 s21, s20, {3*16384}')
    if not (OPT['skip_ch'] and INLOOP[0]): A(f'buffer_load_dwordx4 v[{VCH+12}:{VCH+15}], v2, s[{S_WS}:{S_WS+3}], s21 offen {OPT["ld_ch"]}')
    L(sk)
    for j in range(3):
        A(f's_add_u32 s21, s20, {j*16384}')
        if not (OPT['skip_ch'] and INLOOP[0]): A(f'buffer_load_dwordx4 v[{VCH+4*j}:{VCH+4*j+3}], v2, s[{S_WS}:{S_WS+3}], s21 offen {OPT["ld_ch"]}')
    A(f's_add_u32 s20, s20, {CHS}')
def fill():
    if OPT['skip_fill']: return
    sk = newlab('Q_F')
    A('s_mov_b64 exec, -1')
    for j in range(4):
        if j == 3:
            A(f's_cmp_ge_u32 s50, {(NBK-48)*1024}')
            A(f's_cbranch_scc1 {sk}')
        for k in range(4): A(f'ds_write_addtid_b32 v{VCH+4*j+k} offset:{j*16384+256*k}')
    L(sk)
chall()
A(f's_mov_b32 s16, {2*RS}')
A(f'v_mul_lo_u32 v{VTB}, v3, s16')
A(f'v_add_u32 v{VTB+1}, {RS}, v{VTB}')
A('v_cmp_eq_u32 s[36:37], 3, v1')
A('v_and_b32 v4, 63, v0')
A('v_lshlrev_b32 v1, 2, v1')
A('s_mov_b32 s44, 0')
A('s_lshr_b32 s45, s3, 6')
A(f's_mul_i32 s45, s45, {NR*CHI*8}')
A(f'v_add_u32 v3, {L_A}, v2')
z = VEB + 28
for r in range(4): A(f'v_mov_b32 v{z+r}, 0')
for j in range(4): A(f'ds_write_b128 v3, v[{z}:{z+3}] offset:{j*16384}')
A(f'v_add_u32 v{VT+6}, 65536, v3')
for j in range(2): A(f'ds_write_b128 v{VT+6}, v[{z}:{z+3}] offset:{j*16384}')
A('s_movk_i32 s16, 106')
A('v_cmp_gt_u32 s[24:25], s16, v0')
A('s_mov_b64 exec, s[24:25]')
A(f'ds_write_b128 v{VT+6}, v[{z}:{z+3}] offset:{2*16384}')
A('s_mov_b64 exec, -1')
A(f'v_mov_b32 v126, {L_SC2}')
VONE = VSH
A('s_mov_b64 exec, 1')
A(f'ds_write_b128 v126, v[{z}:{z+3}]')
A('s_mov_b64 exec, -1')
A('s_mov_b32 s30, 0xffff0000')
A(f's_mov_b32 s31, {L_A}')
A('s_mov_b32 s35, 0xfc000000')
A(f'v_mov_b32 v{VSH}, 18')
A(f'v_mov_b32 v{V3}, 3')
A(f'v_mov_b32 v{VFC}, 0xfffc')
A('s_waitcnt vmcnt(3)')
for s_ in range(2):
    for k in range(9):
        ln = 2*s_ + (1 if k >= 5 else 0)
        src = TO + ((k - 1) % 4 if k > 0 else 4)
        A(f'v_mov_b32_dpp v{OF(s_,k)}, v{src} quad_perm:[{ln},{ln},{ln},{ln}] row_mask:0xf bank_mask:0xf')

def pfcalc(s_, r, masks=True):
    slot = r % 4
    r0, h0, r1, h1 = (r + 1) >> 1, (r + 1) & 1, (r + 2) >> 1, r & 1
    y, d, ln, ad = VT, VT + 7, VT + 8, VA
    a, b = OF(s_, r0), OF(s_, r1)
    m = [MK(slot, s_, k) for k in range(3)]
    A('s_mov_b64 exec, -1')
    A(f'v_and_b32_sdwa v{y}, v{a}, v{VFC} {SD} src0_sel:WORD_{h0} src1_sel:DWORD')
    A(f'v_sub_u32_sdwa v{ln}, v{b}, v{a} {SD} src0_sel:WORD_{h1} src1_sel:WORD_{h0}')
    A(f'v_add_u32 v{y}, v{y}, v1')
    A(f'v_sub_u32_sdwa v{d}, v{y}, v{a} {SD} src0_sel:DWORD src1_sel:WORD_{h0}')
    A(f'v_lshl_add_u32 v{ad}, v{y}, 2, v{VTB+s_}')
    if masks:
        A(f'v_cmp_lt_u32 s[{m[0]}:{m[0]+1}], v{d}, v{ln}')
        A(f'v_add_u32 v{d}, 1, v{d}')
        A(f'v_cmp_lt_u32 s[{m[1]}:{m[1]+1}], v{d}, v{ln}')
        A(f'v_add_u32 v{d}, 1, v{d}')
        A(f'v_cmp_lt_u32 s[{m[2]}:{m[2]+1}], v{d}, v{ln}')
def pf1(s_, r, live=False, det=True):
    slot = r % 4
    m = [MK(slot, s_, k) for k in range(3)]
    e = EB(slot, s_)
    pfcalc(s_, r)
    A(f's_or_b64 vcc, s[{m[0]}:{m[0]+1}], s[{m[1]}:{m[1]+1}]')
    A(f's_or_b64 vcc, vcc, s[{m[2]}:{m[2]+1}]')
    if live: A('s_and_b64 vcc, vcc, s[18:19]')
    A('s_or_b64 exec, vcc, 1' if not OPT['skip_pf'] else 's_mov_b64 exec, -1')
    if not (OPT['skip_pf'] and INLOOP[0]): A(f'buffer_load_dwordx4 v[{e}:{e+3}], v{VA}, s[{S_WS}:{S_WS+3}], 0 offen {OPT["ld_ent"]}')
def xl(r):
    A('s_mov_b64 exec, -1')
    A(f's_add_u32 s47, s46, {r}')
    A(f'v_cmp_eq_u32 vcc, s47, v{VLB}')
    A('s_or_b64 exec, vcc, s[48:49]')
    A(f'buffer_load_dwordx4 v[{VFB}:{VFB+3}], v{VLA}, s[{S_WS}:{S_WS+3}], 0 offen')
def xg(r):
    A('s_mov_b64 exec, -1')
    A(f's_add_u32 s47, s46, {r}')
    A(f'v_cmpx_eq_u32 vcc, s47, v{VLB}')
    for e in range(3): gaddr(VFB + e, VFG + 2*e)
    for e in range(3):
        A(f's_and_b64 exec, vcc, s[{40+2*e}:{41+2*e}]')
        if not OPT['skip_g']: A(f'ds_read_b64 v[{VFG+2*e}:{VFG+2*e+1}], v{VFG+2*e}')
def xs():
    for e in range(3):
        A(f's_mov_b64 exec, s[{40+2*e}:{41+2*e}]')
        scat1(VFB + e, VFB + 3, e, VFG + 2*e)

def gath1(w, g):
    A(f'v_lshlrev_b32 v{g}, 3, v{w}')
    A(f'v_and_b32 v{g}, 0xfff8, v{g}')
    if not OPT['skip_g']: A(f'ds_read_b64 v[{g}:{g+1}], v{g}')

def scat1(w, xr, e, g, wait=False):
    x, ad = VT, VT + 1
    p0, p2 = VT + 2, VT + 4
    A(f'v_lshlrev_b32_sdwa v{x}, v{VSH}, v{xr} {SD} src0_sel:DWORD src1_sel:BYTE_{e}')
    A(f'v_bfe_u32 v{ad}, v{w}, 13, 13')
    A(f'v_and_or_b32 v{x}, v{w}, s35, v{x}')
    A(f'v_lshl_add_u32 v{ad}, v{ad}, 3, s31')
    A(f'v_fma_mix_f32 v{p2}, v{g+1}, v{x}, s28 op_sel:[0,1,0] op_sel_hi:[1,1,0]')
    A(f'v_fma_mix_f32 v{p2+1}, v{g+1}, v{x}, s28 op_sel:[1,1,0] op_sel_hi:[1,1,0]')
    if wait: A('s_waitcnt lgkmcnt(0)')
    A(f'ds_add_u64 v{ad}, v[{p2}:{p2+1}] offset:{L_ARB}')
    A(f'v_fma_mix_f32 v{p0}, v{g}, v{x}, s26 op_sel:[0,1,0] op_sel_hi:[1,1,0]')
    A(f'v_fma_mix_f32 v{p0+1}, v{g}, v{x}, s28 op_sel:[1,1,0] op_sel_hi:[1,1,0]')
    A(f'ds_add_u64 v{ad}, v[{p0}:{p0+1}]')

def gaddr(w, g):
    A(f'v_lshlrev_b32_sdwa v{g}, v{V3}, v{w} dst_sel:WORD_0 dst_unused:UNUSED_PAD src0_sel:DWORD src1_sel:DWORD')
def Gset(r, s_):
    slot = r % 4
    GP[0] = (r & 1) if OPT['nd'] else 0
    A('s_mov_b64 exec, -1')
    for e in range(3): gaddr(EB(slot, s_) + e, G(s_, e))
    for e in range(3):
        m = MK(slot, s_, e); g = G(s_, e)
        A(f's_mov_b64 exec, s[{m}:{m+1}]')
        if not OPT['skip_g']: A(f'ds_read_b64 v[{g}:{g+1}], v{g}')
def Sset(r, s_, hooks={}, w0=False):
    slot = r % 4
    GP[0] = (r & 1) if OPT['nd'] else 0
    for e in range(3):
        if e in hooks: hooks[e]()
        m = MK(slot, s_, e)
        A(f's_mov_b64 exec, s[{m}:{m+1}]')
        b = EB(slot, s_)
        if not OPT['skip_s']: scat1(b + e, b + 3, e, G(s_, e), w0 and e == 0)

A(f'v_mov_b32 v{VT+1}, 0')
pf1(0, 0, det=False); pf1(1, 0, det=False); pf1(0, 1, det=False)
A('s_mov_b64 exec, -1')
for s_ in range(2):
    A(f'v_lshrrev_b32 v{VT+2}, 16, v{OF(s_,0)}')
    A(f'v_lshrrev_b32 v{VT+3}, 18, v{OF(s_,0)}')
    A(f'v_sub_u32 v{VT+2}, v{VT+2}, v{VT+3}')
    A(f'v_lshrrev_b32 v{VT+3}, 18, v{OF(s_,8)}')
    A(f'v_add_u32 v{VT+2}, v{VT+2}, v{VT+3}')
    A(f'v_lshrrev_b32 v{VT+3}, 16, v{OF(s_,8)}')
    A(f'v_sub_u32 v{VT+4+s_}, v{VT+2}, v{VT+3}')
A(f'v_add_u32 v{VT+2}, v{VT+4}, v{VT+5}')
dpp_scan('v_add_u32', VT + 2)
A('s_nop 1')
A(f'v_readlane_b32 s32, v{VT+2}, 63')
A(f's_mov_b32 s26, {f32bits(544.0):#x}')
A(f's_mov_b32 s28, {f32bits(96.0):#x}')
if OPT['detp'] == 0:
    PV, TBL, CBL, LW = VFB, VFB + 1, VFB + 2, VFB + 3
    D0, D1 = VFG, VFG + 1
    A('s_mov_b64 exec, -1')
    A(f'v_mov_b32_dpp v{PV}, v{TO+3} quad_perm:[0,0,2,2] row_mask:0xf bank_mask:0xf')
    A(f'v_and_b32 v{CBL}, 1, v0')
    A(f'v_cmp_eq_u32 vcc, 0, v{CBL}')
    A(f'v_lshlrev_b32 v{CBL}, 5, v{CBL}')
    A('v_cmp_lt_u32 s[38:39], 4, v1')
    A(f'v_cndmask_b32 v{PV}, v{PV}, v{TO+4}, vcc')
    A('s_nop 0')
    A(f'v_cndmask_b32 v{TBL}, v{VTB}, v{VTB+1}, s[38:39]')
    A(f'v_add_u32 v{TBL}, 64, v{TBL}')
    A('s_mov_b32 s46, s50')
    for t in range(8):
        sa, ha = (PV, 1) if t == 0 else (TO + (t - 1) // 2, (t - 1) & 1)
        sb, hb = TO + t // 2, t & 1
        nx = newlab('Q_D'); lp = newlab('Q_D')
        y, rem = VT, VT + 1
        A(f'v_and_b32_sdwa v{y}, v{sa}, v{VFC} {SD} src0_sel:WORD_{ha} src1_sel:DWORD')
        A(f'v_sub_u32_sdwa v{rem}, v{sb}, v{y} {SD} src0_sel:WORD_{hb} src1_sel:DWORD')
        A(f'v_cmpx_lt_i32 vcc, 16, v{rem}')
        A(f's_cbranch_execz {nx}')
        A(f'v_lshl_add_u32 v{D0}, v{y}, 2, v{TBL}')
        A(f'v_subrev_u32 v{rem}, 16, v{rem}')
        L(lp)
        A(f'v_mbcnt_lo_u32_b32 v{LW}, exec_lo, 0')
        A(f'v_mbcnt_hi_u32_b32 v{LW}, exec_hi, v{LW}')
        A(f'v_min_u32 v{D1}, 3, v{rem}')
        A(f'v_add_u32 v{LW}, s44, v{LW}')
        A(f'v_add3_u32 v{D1}, v{D1}, v{CBL}, s47' if False else f'v_add_u32 v{D1}, v{D1}, v{CBL}')
        if t: A(f'v_add_u32 v{D1}, {t*4}, v{D1}')
        A('s_bcnt1_i32_b64 s47, exec')
        A(f'v_min_u32 v{LW}, 63, v{LW}')
        A('s_add_u32 s44, s44, s47')
        A(f'v_lshl_add_u32 v{LW}, v{LW}, 3, s46')
        A(f'ds_write_b64 v{LW}, v[{D0}:{D1}]')
        A(f'v_cmpx_lt_i32 vcc, 4, v{rem}')
        A(f's_cbranch_execz {nx}')
        A('s_cmp_ge_u32 s44, 64')
        A(f's_cbranch_scc1 {nx}')
        A(f'v_add_u32 v{D0}, 16, v{D0}')
        A(f'v_subrev_u32 v{rem}, 4, v{rem}')
        A(f's_branch {lp}')
        L(nx)
        A('s_mov_b64 exec, -1')
    A(f'v_lshl_add_u32 v{LW}, v4, 3, s46')
    A(f'ds_read_b64 v[{VLA}:{VLB}], v{LW}')
    A('v_cmp_gt_u32 s[38:39], s44, v4')
    A('s_waitcnt lgkmcnt(0)')
    A(f'v_and_b32 v{LW}, 3, v{VLB}')
    A(f'v_lshrrev_b32 v{VLB}, 2, v{VLB}')
    A(f'v_cndmask_b32 v{LW}, 0, v{LW}, s[38:39]')
    A(f'v_cndmask_b32 v{VLB}, -1, v{VLB}, s[38:39]')
    for e in range(3): A(f'v_cmp_lt_u32 s[{40+2*e}:{41+2*e}], {e}, v{LW}')
    A('s_mov_b32 s46, 0')
A('s_mov_b64 s[48:49], 1')
xl(0)
A('s_waitcnt vmcnt(4)')
fill()
chall()
A('s_mov_b32 s33, 0')
A('s_waitcnt vmcnt(3) lgkmcnt(0)')
stamp2()
A('s_barrier')
Gset(0, 0); Gset(0, 1); xg(0)
if OPT['warm'] == 2:
    A('s_cmp_lg_u32 s50, 0')
    A('s_cbranch_scc1 Q_NOWARM')
    A('s_load_dwordx2 s[4:5], s[0:1], 24')
    A('s_load_dwordx2 s[6:7], s[0:1], 40')
    A('s_load_dwordx8 s[92:99], s[0:1], 56')
    A('s_mov_b64 exec, -1')
    A('s_mul_i32 s16, s2, 3200')
    A(f'v_lshl_add_u32 v{VT}, v4, 6, s16')
    A(f'v_min_u32 v{VT}, {E*2-4}, v{VT}')
    A('s_waitcnt lgkmcnt(0)')
    A(f'global_load_dword v125, v{VT}, s[4:5]')
    A('s_load_dword s16, s[6:7], 0')
    for k in range(4): A(f's_load_dword s{16+(k&1)}, s[{92+2*k}:{93+2*k}], 0')
    L('Q_NOWARM')
pf1(1, 1); pf1(1, 2); xl(1)
if OPT['skip_pf']:
    pf1(0, 2); pf1(0, 3); pf1(1, 3); A('s_waitcnt vmcnt(0)')
A('s_waitcnt vmcnt(3) lgkmcnt(0)')
stamp2()
INLOOP[0] = 1
L('Q_LOOP')
for r in range(4):
    ps = r & 1
    if r == 1: stamp2()
    A('s_barrier')
    if r == 1: stamp2()
    if r == (NR - 1) % 4:
        A(f's_cmp_eq_u32 s33, {(NR-1)//4}')
        A(f's_cbranch_scc1 Q_LAST')
    fill()
    chall(r == (NR - 2) % 4)
    nd = OPT['nd']
    hp = OPT['hp']
    Sset(r, 0, w0=nd > 0)
    A('s_waitcnt vmcnt(3)' if nd else 's_waitcnt vmcnt(3) lgkmcnt(0)')
    if r == 1: stamp2()
    A('s_barrier')
    if r == 1: stamp2()
    Gset(r + 1, 0)
    if nd == 2: Gset(r + 1, 1)
    xg(r + 1)
    Sset(r, 1, {int(hp[0]): lambda: pf1(ps, r + 2), int(hp[1]): lambda: (pf1(ps, r + 3), xl(r + 2))}, w0=nd == 2)
    if nd != 2: Gset(r + 1, 1)
    if r == 3:
        A('s_mov_b64 exec, -1')
        A('s_add_u32 s33, s33, 1')
        A('s_add_u32 s46, s46, 4')
        for s_ in range(2):
            for k in range(0, 7): A(f'v_mov_b32 v{OF(s_,k)}, v{OF(s_,k+2)}')
    A('s_waitcnt vmcnt(3)' if OPT['nd'] == 2 else 's_waitcnt vmcnt(3) lgkmcnt(0)')
A('s_branch Q_LOOP')
L('Q_LAST')
if OPT['warm'] == 1:
    A('s_cmp_lg_u32 s50, 0')
    A('s_cbranch_scc1 Q_NOWARM')
    A('s_load_dwordx2 s[4:5], s[0:1], 24')
    A('s_load_dwordx2 s[6:7], s[0:1], 40')
    A('s_load_dwordx8 s[56:63], s[0:1], 56' if (NR - 1) % 4 != 0 else 'ERR')
    A('s_mov_b64 exec, -1')
    A('s_mul_i32 s16, s2, 3200')
    A(f'v_lshl_add_u32 v{VT}, v4, 6, s16')
    A(f'v_min_u32 v{VT}, {E*2-4}, v{VT}')
    A('s_waitcnt lgkmcnt(0)')
    A(f'global_load_dword v{VCH}, v{VT}, s[4:5]')
    A('s_load_dword s16, s[6:7], 0')
    for k in range(4): A(f's_load_dword s{17+k}, s[{56+2*k}:{57+2*k}], 0')
    L('Q_NOWARM')
Sset((NR - 1) % 4, 0)
Sset((NR - 1) % 4, 1)
A('s_waitcnt vmcnt(0)')
xs()
A('s_mov_b64 exec, -1')
A('s_waitcnt lgkmcnt(0)')
stamp2()
A('s_barrier')
A('v_lshlrev_b32 v3, 3, v0')
A(f'v_add_u32 v7, {L_A}, v3')
RA = 8
for k in range(7):
    if k == 6: A('s_mov_b64 exec, s[24:25]')
    A(f'ds_read_b64 v[{RA+4*k}:{RA+4*k+1}], v7 offset:{k*8192}')
A('s_mov_b64 exec, -1')
A(f'v_add_u32 v4, {L_ARB}, v7')
for k in range(7):
    if k == 6: A('s_mov_b64 exec, s[24:25]')
    A(f'ds_read_b64 v[{RA+4*k+2}:{RA+4*k+3}], v4 offset:{k*8192}')
A('s_mov_b64 exec, -1')
A('s_lshr_b32 s16, s3, 6'); A(f's_mul_i32 s16, s16, {E*8}')
A('s_and_b32 s17, s3, 63'); A(f's_mul_i32 s17, s17, {CH*8}')
A('s_add_u32 s16, s16, s17'); A(f's_add_u32 s16, s16, {PART_BASE:#x}')
A('v_mov_b32 v5, 0')
A(f's_mov_b32 s36, {f32bits(2.0**-10):#x}')
A(f's_mov_b32 s37, {f32bits(2.0**-13):#x}')
A('s_mov_b32 s38, s37'); A('s_mov_b32 s39, s37')
A('s_sub_i32 s40, s27, 135')
A('v_mov_b32 v6, 1.0')
A('v_ldexp_f32 v6, v6, s40')
A('s_and_b32 s41, s3, 63')
A('s_lshl_b32 s41, s41, 2')
A('s_lshr_b32 s42, s3, 6')
A('s_add_u32 s41, s41, s42')
A('s_lshl_b32 s41, s41, 2')
A(f's_add_u32 s41, s41, {SCL_BASE:#x}')
A('v_cmp_eq_u32 vcc, 0, v0')
A('s_mov_b64 exec, vcc')
A(f'buffer_store_dword v6, v5, s[{S_WS}:{S_WS+3}], s41 offen')
A('s_mov_b64 exec, -1')
X = 40
A('s_mov_b32 s51, 0')
A(f's_mov_b32 s52, {f32bits(0.25):#x}')
A(f's_mov_b32 s56, {f32bits(256.0):#x}')
A('s_mov_b32 s57, 0')
for k in range(7):
    a0, a1, b0, b1 = RA + 4*k, RA + 4*k + 1, RA + 4*k + 2, RA + 4*k + 3
    c = X; P = X + 2; t = X + 4
    A(f's_waitcnt lgkmcnt({max(0,5-k)})')
    if k == 6: A('s_mov_b64 exec, s[24:25]')
    A(f'v_lshrrev_b32 v{c}, 26, v{a0}')
    A(f'v_and_b32 v{a0}, 0x3ffffff, v{a0}')
    A(f'v_mul_u32_u24 v{c}, 49, v{c}')
    A(f'v_and_b32 v{c}, 63, v{c}')
    A(f'v_mad_u64_u32 v[{P}:{P+1}], vcc, v{c}, s28, 0')
    A(f'v_lshlrev_b32 v{t}, 19, v{c}')
    A(f'v_add_u32 v5, v5, v{c}')
    A(f'v_sub_u32 v{a0}, v{a0}, v{t}')
    A(f'v_mul_u32_u24 v{t}, 17, v{c}')
    A(f'v_sub_u32 v{a1}, v{a1}, v{P}')
    A(f'v_lshrrev_b32 v{t}, 6, v{t}')
    A(f'v_sub_u32 v{a1}, v{a1}, v{t}')
    A(f'v_add_u32 v{P+1}, v{P+1}, v{P}')
    A(f'v_sub_co_u32 v{b0}, vcc, v{b0}, v{P}')
    A(f'v_cvt_f32_i32 v{a0}, v{a0}')
    A(f'v_cvt_f32_i32 v{a1}, v{a1}')
    A(f'v_subb_co_u32 v{b1}, vcc, v{b1}, v{P+1}, vcc')
    A(f'v_ashrrev_i32 v{t}, 31, v{b0}')
    A(f'v_cvt_f32_i32 v{b0}, v{b0}')
    A(f'v_sub_u32 v{b1}, v{b1}, v{t}')
    A(f'v_min3_f32 v{c}, abs(v{a0}), abs(v{a1}), abs(v{b0})')
    A(f'v_cvt_f32_i32 v{b1}, v{b1}')
    A(f'v_pk_mul_f32 v[{a0}:{a1}], v[{a0}:{a1}], s[36:37]')
    A(f'v_min_f32 v{c}, abs(v{b1}), v{c}')
    A(f'v_pk_mul_f32 v[{b0}:{b1}], v[{b0}:{b1}], s[38:39]')
    A(f'v_max_f32 v{t}, abs(v{a0}), abs(v{a1})')
    A(f'v_cmp_gt_f32 s[54:55], s56, v{c}')
    A(f'v_cvt_pk_f16_f32 v{a0}, v{a0}, v{a1}')
    A(f'v_max3_f32 v{t}, abs(v{b0}), abs(v{b1}), v{t}')
    A(f'v_cvt_pk_f16_f32 v{a1}, v{b0}, v{b1}')
    A(f'v_cmp_gt_f32 vcc, s52, v{t}')
    A('s_and_b64 s[54:55], s[54:55], exec')
    A('s_bcnt1_i32_b64 s53, s[54:55]')
    A('s_add_u32 s57, s57, s53')
    A('s_and_b64 vcc, vcc, exec')
    A('s_bcnt1_i32_b64 s53, vcc')
    A('s_add_u32 s51, s51, s53')
    A(f'buffer_store_dwordx2 v[{a0}:{a1}], v3, s[{S_WS}:{S_WS+3}], s16 offen {OPT["st_part"]}')
    A('s_add_u32 s16, s16, 8192')
A('s_mov_b64 exec, -1')
A(f'v_max_u32_sdwa v6, v125, v125 {SD} src0_sel:BYTE_0 src1_sel:BYTE_1')
A(f'v_max_u32_sdwa v7, v125, v125 {SD} src0_sel:BYTE_2 src1_sel:BYTE_3')
A('v_max_u32 v125, v6, v7')
A('v_cmp_lt_u32 s[54:55], s27, v125')
dpp_scan('v_add_u32', 5)
A('s_nop 1')
A('v_readlane_b32 s42, v5, 63')
A('s_nop 3')
A('s_lshl_b32 s42, s42, 2')
A('s_add_u32 s42, s42, s32')
A('v_mov_b32 v6, s42')
A('s_lshl_b32 s57, s57, 16')
A('s_or_b32 s51, s51, s57')
A('v_mov_b32 v7, s51')
A('s_mov_b64 exec, 1')
A('ds_add_u32 v126, v6')
A('ds_add_u32 v126, v7 offset:4')
A('s_mov_b64 exec, -1')
A('s_waitcnt lgkmcnt(0)')
A('s_barrier')
A('ds_read_b64 v[6:7], v126')
A('s_waitcnt lgkmcnt(0)')
A('v_readfirstlane_b32 s42, v6')
A('v_readfirstlane_b32 s43, v7')
A('s_nop 3')
A(f's_cmp_gt_u32 s43, {1563 << 16:#x}')
A('s_cselect_b32 s42, 1, s42')
A('s_and_b32 s43, s43, 0xffff')
A('s_cmp_gt_u32 s43, 195')
A('s_cselect_b32 s42, 1, s42')
if OPT['forcefb'] == 1: A('s_mov_b32 s42, 1')
if OPT['forcefb'] == -1: A('s_mov_b32 s42, 0')
A('s_cmp_lg_u64 s[54:55], 0')
A('s_cselect_b32 s42, 1, s42')
A('s_cmp_eq_u32 s42, 0')
A('s_cbranch_scc1 Q_FIN')
A('s_waitcnt vmcnt(0)')
A('v_mov_b32 v6, 0x80000000')
A('v_mov_b32 v5, 0')
A('v_cmp_eq_u32 vcc, 0, v0')
A('s_mov_b64 exec, vcc')
A(f'buffer_store_dword v6, v5, s[{S_WS}:{S_WS+3}], s41 offen')
A('s_mov_b64 exec, -1')
A('v_lshrrev_b32 v8, 1, v0')
A('v_lshrrev_b32 v9, 2, v0')
A(f'v_mul_u32_u24 v9, {OFS}, v9')
A('v_and_b32 v39, 1, v8')
A('v_lshl_add_u32 v9, v39, 5, v9')
A(f's_mov_b32 s16, {RS}')
A('v_mul_lo_u32 v8, v8, s16')
A('v_and_b32 v10, 1, v0')
for r in range(12, 16): A(f'v_mov_b32 v{r}, 0')
A('v_add_u32 v11, 65536, v2')
A('s_mov_b32 s48, 0')
L('Q_FH')
A('s_barrier')
for j in range(4): A(f'ds_write_b128 v2, v[12:15] offset:{j*16384}')
for j in range(2): A(f'ds_write_b128 v11, v[12:15] offset:{j*16384}')
A('s_mov_b64 exec, s[24:25]')
A(f'ds_write_b128 v11, v[12:15] offset:{2*16384}')
A('s_mov_b64 exec, -1')
A('s_waitcnt lgkmcnt(0)')
A('s_barrier')
A('s_lshl_b32 s49, s3, 6')
A(f's_add_u32 s49, s49, {OFF_BASE:#x}')
A(f'buffer_load_ushort v17, v9, s[{S_WS}:{S_WS+3}], s49 offen offset:30')
A('s_waitcnt vmcnt(0)')
A('s_lshr_b32 s50, s3, 6')
A(f's_mul_i32 s50, s50, {NR*CHI*8}')
A('s_mov_b32 s51, 0')
L('Q_FR')
A('v_add_u32 v16, v17, v10')
A(f'buffer_load_ushort v17, v9, s[{S_WS}:{S_WS+3}], s49 offen offset:64')
A('s_waitcnt vmcnt(0)')
L('Q_FI')
A('v_cmp_lt_u32 vcc, v16, v17')
A('s_and_b64 exec, exec, vcc')
A('s_cbranch_execz Q_FRN')
A('s_mov_b64 s[52:53], exec')
A('v_and_b32 v18, 3, v16')
A('v_lshl_add_u32 v19, v16, 2, v8')
A('v_or_b32 v20, 3, v16')
A('v_lshl_add_u32 v20, v20, 2, v8')
A('v_add_u32 v20, v20, v18')
A(f'buffer_load_dword v21, v19, s[{S_WS}:{S_WS+3}], 0 offen')
A(f'buffer_load_ubyte v22, v20, s[{S_WS}:{S_WS+3}], 0 offen')
A('s_waitcnt vmcnt(0)')
A('v_bfe_u32 v23, v21, 13, 13')
A('v_subrev_u32 v23, s48, v23')
A('s_movk_i32 s16, 3125')
A('v_cmp_gt_u32 vcc, s16, v23')
A('v_cmp_ne_u32 s[54:55], 3, v18')
A('s_and_b64 vcc, vcc, s[54:55]')
A('v_bfe_u32 v24, v21, 0, 13')
A('v_lshlrev_b32 v24, 3, v24')
A('s_and_b64 exec, exec, vcc')
A('s_cbranch_execz Q_FIN2')
A(f'buffer_load_dwordx2 v[26:27], v24, s[{S_M}:{S_M+3}], s50 offen')
A('v_lshlrev_b32 v22, 2, v22')
A('v_lshrrev_b32 v25, 16, v21')
A('v_and_b32 v25, 0xfc00, v25')
A('v_or_b32 v25, v25, v22')
A('v_cvt_f32_f16 v25, v25')
A('v_cvt_f64_f32 v[28:29], v25')
A('v_lshlrev_b32 v23, 3, v23')
A('v_add_u32 v38, 50000, v23')
A('s_waitcnt vmcnt(0)')
A('v_lshlrev_b32 v30, 16, v26'); A('v_and_b32 v32, s30, v26')
A('v_lshlrev_b32 v34, 16, v27'); A('v_and_b32 v36, s30, v27')
for j, r in enumerate((30, 32, 34, 36)):
    A(f'v_cvt_f64_f32 v[{r}:{r+1}], v{r}')
    A(f'v_mul_f64 v[{r}:{r+1}], v[{r}:{r+1}], v[28:29]')
    A(f'ds_add_f64 v{23 if j < 2 else 38}, v[{r}:{r+1}] offset:{(j & 1) * 25000}')
L('Q_FIN2')
A('s_mov_b64 exec, s[52:53]')
A('v_add_u32 v16, 2, v16')
A('s_branch Q_FI')
L('Q_FRN')
A('s_mov_b64 exec, -1')
A('s_add_u32 s49, s49, 2')
A(f's_add_u32 s50, s50, {CHI*8}')
A('s_add_u32 s51, s51, 1')
A('s_cmp_lt_u32 s51, 16')
A('s_cbranch_scc1 Q_FR')
A('s_waitcnt lgkmcnt(0)')
A('s_barrier')
A('s_lshr_b32 s16, s3, 6'); A(f's_mul_i32 s16, s16, {E*8}')
A('s_and_b32 s17, s3, 63'); A(f's_mul_i32 s17, s17, {CH*8}')
A('s_add_u32 s16, s16, s17'); A(f's_add_u32 s16, s16, {PART_BASE:#x}')
A('s_lshl_b32 s17, s48, 3'); A('s_add_u32 s16, s16, s17')
A(f's_sub_u32 s52, s16, {PART_BASE:#x}')
A('s_lshl_b32 s52, s52, 1')
A(f's_add_u32 s52, s52, {P32_BASE:#x}')
A('v_mov_b32 v16, v3')
L('Q_FC')
A('s_movk_i32 s17, 25000')
A('v_cmp_gt_u32 vcc, s17, v16')
A('s_and_b64 exec, exec, vcc')
A('s_cbranch_execz Q_FCD')
A('v_add_u32 v17, 50000, v16')
for j in range(4):
    A(f'ds_read_b64 v[{18+2*j}:{19+2*j}], v{16 if j < 2 else 17} offset:{(j & 1) * 25000}')
A('s_waitcnt lgkmcnt(0)')
for j in range(4): A(f'v_cvt_f32_f64 v{30+j}, v[{18+2*j}:{19+2*j}]')
A('v_lshlrev_b32 v17, 1, v16')
A(f'buffer_store_dwordx4 v[30:33], v17, s[{S_WS}:{S_WS+3}], s52 offen')
A(f'buffer_store_dwordx2 v[12:13], v16, s[{S_WS}:{S_WS+3}], s16 offen')
A('v_add_u32 v16, 8192, v16')
A('s_branch Q_FC')
L('Q_FCD')
A('s_mov_b64 exec, -1')
A('s_add_u32 s48, s48, 3125')
A('s_cmp_lt_u32 s48, 6250')
A('s_cbranch_scc1 Q_FH')
L('Q_FIN')
stamp2()
if OPT['stamp2'] >= 0:
    A('s_waitcnt vmcnt(0)')
    stamp2()
    A('v_readfirstlane_b32 s54, v0')
    A('s_nop 3')
    A(f's_cmp_lg_u32 s2, {OPT["stamp2"]}')
    A('s_cbranch_scc1 Q_END')
    A(f's_cmp_lg_u32 s54, {64*OPT.get("swave", 0)}')
    A('s_cbranch_scc1 Q_END')
    A('s_load_dwordx2 s[4:5], s[0:1], 96')
    A('s_waitcnt lgkmcnt(0)')
    srd(72, 4, 256)
    A('v_readlane_b32 s54, v127, 2')
    A('v_and_b32 v4, 63, v0')
    A('v_lshlrev_b32 v4, 2, v4')
    A('v_subrev_u32 v127, s54, v127')
    A('buffer_store_dword v127, v4, s[72:75], 0 offen')
abs_end(127, 64, 1, 16)
L('Q_END')
A('s_endpgm')

NE = OPT['ne']
khead('fin_kernel')
A(f's_cmp_ge_u32 s2, {G3}')
A('s_cbranch_scc1 F_END')
abs_start(1)
A('s_load_dwordx2 s[4:5], s[0:1], 0')
A('s_load_dwordx2 s[6:7], s[0:1], 104')
A('s_load_dwordx2 s[8:9], s[0:1], 24')
A('s_load_dwordx2 s[10:11], s[0:1], 88')
A('s_load_dwordx2 s[28:29], s[0:1], 40')
A('s_load_dwordx8 s[64:71], s[0:1], 56')
S_M, S_WS, S_DIST, S_O = 12, 16, 20, 24
if not OPT['adj']:
    A(f's_mul_i32 s3, s2, {256*NE}')
    VB = 2
    def R(i, n): return VB + 40 * i + n
    for i in range(NE):
        e, t = R(i, 1), R(i, 2)
        A(f'v_add_u32 v{e}, s3, v0')
        if i: A(f'v_add_u32 v{e}, {256*i}, v{e}')
        A(f'v_lshlrev_b32 v{R(i,3)}, 1, v{e}')
        A(f'v_min_u32 v{t}, {E-1}, v{e}')
        A(f'v_lshlrev_b32 v{R(i,0)}, 3, v{t}')
        A(f'v_mul_hi_u32_u24 v{t}, {MAGIC_DIV:#x}, v{t}')
        A(f'v_lshlrev_b32 v{t}, 4, v{t}')
        A(f'v_lshlrev_b32 v{e}, 3, v{e}')
    A('s_waitcnt lgkmcnt(0)')
    srd(S_DIST, 8, E * 2)
    for i in range(NE):
        A(f'buffer_load_ushort v{R(i,3)}, v{R(i,3)}, s[{S_DIST}:{S_DIST+3}], 0 offen')
    if not OPT['tab']:
        A('s_load_dwordx4 s[28:31], s[28:29], 0')
        A('s_load_dwordx16 s[32:47], s[64:65], 0')
        A('s_load_dwordx16 s[48:63], s[66:67], 0')
    A('s_load_dwordx8 s[72:79], s[70:71], 0')
    A('s_load_dwordx8 s[64:71], s[68:69], 0')
    srd(S_WS, 6, WS_BYTES); srd(S_M, 4, E * 8); srd(S_O, 10, E * 8)
    for i in range(NE):
        A(f's_mov_b32 s4, {SCL_BASE:#x}')
        A(f'buffer_load_dwordx4 v[{R(i,6)}:{R(i,9)}], v{R(i,2)}, s[{S_WS}:{S_WS+3}], s4 offen')
        for p in range(4):
            A(f's_mov_b32 s4, {PART_BASE + p*E*8:#x}')
            A(f'buffer_load_dwordx2 v[{R(i,32+2*p)}:{R(i,33+2*p)}], v{R(i,0)}, s[{S_WS}:{S_WS+3}], s4 offen {OPT["ld_part"]}')
        A(f'buffer_load_dwordx2 v[{R(i,4)}:{R(i,5)}], v{R(i,1)}, s[{S_M}:{S_M+3}], 0 offen')
else:
    assert NE == 2 and not OPT['tab']
    A('s_lshl_b32 s3, s2, 8')
    VB = 2
    PQ, MQ, OQ, SC = 84, 100, 104, 8
    def R(i, n):
        if 32 <= n < 40: return PQ + ((n - 32) // 2) * 4 + 2 * i + (n & 1)
        if n in (4, 5): return MQ + 2 * i + (n - 4)
        if n in (30, 31): return OQ + 2 * i + (n - 30)
        if 6 <= n < 10: return VB + n
        return VB + 40 * i + n
    e, t = R(0, 1), R(0, 2)
    A(f'v_add_u32 v{e}, s3, v0')
    A(f'v_lshlrev_b32 v{R(0,3)}, 2, v{e}')
    A(f'v_min_u32 v{t}, {E//2-1}, v{e}')
    A(f'v_lshlrev_b32 v{R(0,0)}, 4, v{t}')
    A(f'v_lshlrev_b32 v{t}, 1, v{t}')
    A(f'v_mul_hi_u32_u24 v{t}, {MAGIC_DIV:#x}, v{t}')
    A(f'v_lshlrev_b32 v{t}, 4, v{t}')
    A(f'v_lshlrev_b32 v{e}, 4, v{e}')
    A('s_waitcnt lgkmcnt(0)')
    srd(S_DIST, 8, E * 2)
    A(f'buffer_load_dword v{R(0,3)}, v{R(0,3)}, s[{S_DIST}:{S_DIST+3}], 0 offen')
    A('s_load_dwordx4 s[28:31], s[28:29], 0')
    A('s_load_dwordx16 s[32:47], s[64:65], 0')
    A('s_load_dwordx16 s[48:63], s[66:67], 0')
    A('s_load_dwordx8 s[72:79], s[70:71], 0')
    A('s_load_dwordx8 s[64:71], s[68:69], 0')
    srd(S_WS, 6, WS_BYTES); srd(S_M, 4, E * 8); srd(S_O, 10, E * 8)
    for p in range(4):
        A(f's_mov_b32 s4, {PART_BASE + p*E*8:#x}')
        A(f'buffer_load_dwordx4 v[{PQ+4*p}:{PQ+4*p+3}], v{R(0,0)}, s[{S_WS}:{S_WS+3}], s4 offen {OPT["ld_part"]}')
    A(f's_mov_b32 s4, {SCL_BASE:#x}')
    A(f'buffer_load_dwordx4 v[{SC}:{SC+3}], v{t}, s[{S_WS}:{S_WS+3}], s4 offen')
    A(f'buffer_load_dwordx4 v[{MQ}:{MQ+3}], v{e}, s[{S_M}:{S_M+3}], 0 offen')
A('s_mov_b32 s5, 0xffff0000')
A(f's_mov_b32 s8, {f32bits(-10.0):#x}')
A(f's_mov_b32 s9, {f32bits(math.log2(math.e)):#x}')
def sw(base, idx, dst):
    sr = base + idx // 2
    if idx & 1: A(f's_and_b32 s{dst}, s{sr}, 0xffff0000')
    else: A(f's_lshl_b32 s{dst}, s{sr}, 16')
def spk(base, r, d, dst):
    op = 's_pack_hh_b32_b16' if d & 1 else 's_pack_ll_b32_b16'
    A(f'{op} s{dst}, s{base + r*2 + d//2}, s{base + (r+1)*2 + d//2}')
def unp(a, b, t):
    A(f'v_lshlrev_b32 v{a}, 16, v{t}')
    A(f'v_and_b32 v{b}, s5, v{t}')
def rnd2(a, b, t):
    A(f'v_cvt_pk_bf16_f32 v{t}, v{a}, v{b}')
    unp(a, b, t)
if not OPT['tab']:
    if OPT['adj']:
        A('s_waitcnt vmcnt(6) lgkmcnt(0)')
        A(f'v_and_b32 v{R(1,3)}, s5, v{R(0,3)}')
        A(f'v_lshlrev_b32 v{R(0,3)}, 16, v{R(0,3)}')
    else:
        A(f's_waitcnt vmcnt({6*NE}) lgkmcnt(0)')
        for i in range(NE): A(f'v_lshlrev_b32 v{R(i,3)}, 16, v{R(i,3)}')
    for r in range(0, 8, 2):
        sw(28, r, 6); sw(28, r + 1, 7)
        for i in range(NE):
            a_, b_, t = R(i, 14), R(i, 15), R(i, 2)
            A(f'v_subrev_f32 v{a_}, s6, v{R(i,3)}')
            A(f'v_subrev_f32 v{b_}, s7, v{R(i,3)}')
            rnd2(a_, b_, t)
            A(f'v_mul_f32 v{a_}, v{a_}, v{a_}')
            A(f'v_mul_f32 v{b_}, v{b_}, v{b_}')
            rnd2(a_, b_, t)
            A(f'v_mul_f32 v{a_}, s8, v{a_}')
            A(f'v_mul_f32 v{b_}, s8, v{b_}')
            rnd2(a_, b_, t)
            A(f'v_mul_f32 v{a_}, s9, v{a_}')
            A(f'v_mul_f32 v{b_}, s9, v{b_}')
            A(f'v_exp_f32 v{a_}, v{a_}')
            A(f'v_exp_f32 v{b_}, v{b_}')
            A('s_nop 0')
            A(f'v_cvt_pk_bf16_f32 v{R(i,18+r//2)}, v{a_}, v{b_}')
    for r in range(0, 8, 2):
        for base, dst in ((48, 22), (32, 26)):
            for d in range(4):
                spk(base, r, d, 6 + (d & 1))
                for i in range(NE):
                    c = '0' if r == 0 else f'v{R(i,dst+d)}'
                    A(f'v_dot2_f32_bf16 v{R(i,dst+d)}, v{R(i,18+r//2)}, s{6+(d&1)}, {c}')
    A('s_nop 2')
    for i in range(NE):
        rnd2(R(i,26), R(i,27), R(i,2)); rnd2(R(i,28), R(i,29), R(i,2))
else:
    A(f's_waitcnt vmcnt({6*NE})')
    A(f's_mov_b32 s4, {TAB_BASE:#x}')
    for i in range(NE):
        A(f'v_lshlrev_b32 v{R(i,3)}, 5, v{R(i,3)}')
        A(f'buffer_load_dwordx4 v[{R(i,22)}:{R(i,25)}], v{R(i,3)}, s[{S_WS}:{S_WS+3}], s4 offen')
        A(f'buffer_load_dwordx2 v[{R(i,20)}:{R(i,21)}], v{R(i,3)}, s[{S_WS}:{S_WS+3}], s4 offen offset:16')
A(f's_waitcnt vmcnt({2*NE}) lgkmcnt(0)' if OPT['tab'] else 's_waitcnt vmcnt(0)')
for i in range(NE):
    for p in range(4):
        for d in range(4):
            c = '0' if p == 0 else f'v{R(i,14+d)}'
            A(f'v_fma_mix_f32 v{R(i,14+d)}, v{R(i,32+2*p+d//2)}, v{R(i,6+p)}, {c} op_sel:[{d&1},0,0] op_sel_hi:[1,0,0]')
assert NE == 1
A(f'v_or_b32 v{R(0,2)}, v{R(0,6)}, v{R(0,7)}')
A(f'v_or3_b32 v{R(0,2)}, v{R(0,8)}, v{R(0,9)}, v{R(0,2)}')
A(f'v_cmp_gt_i32 vcc, 0, v{R(0,2)}')
A('s_cbranch_vccnz F_P32')
L('F_BACK')
for k in range(4):
    for d in range(4):
        sw(64, k*4 + d, 6 + (d & 1))
        for i in range(NE):
            if k == 0: A(f'v_mul_f32 v{R(i,10+d)}, s{6+(d&1)}, v{R(i,14+k)}')
            else: A(f'v_fmac_f32 v{R(i,10+d)}, s{6+(d&1)}, v{R(i,14+k)}')
if OPT['tab']:
    A('s_waitcnt vmcnt(0)')
    for i in range(NE):
        unp(R(i,26), R(i,27), R(i,20)); unp(R(i,28), R(i,29), R(i,21))
for i in range(NE):
    for d in range(4):
        A(f'v_mul_f32 v{R(i,10+d)}, v{R(i,10+d)}, v{R(i,22+d)}')
    A(f'v_cvt_pk_bf16_f32 v{R(i,18)}, v{R(i,10)}, v{R(i,11)}')
    A(f'v_cvt_pk_bf16_f32 v{R(i,19)}, v{R(i,12)}, v{R(i,13)}')
for k in (0, 2):
    for d in range(4):
        spk(72, k, d, 6 + (d & 1))
        for i in range(NE):
            c = '0' if k == 0 else f'v{R(i,22+d)}'
            A(f'v_dot2_f32_bf16 v{R(i,22+d)}, v{R(i,18+k//2)}, s{6+(d&1)}, {c}')
for i in range(NE):
    unp(R(i,10), R(i,11), R(i,4)); unp(R(i,12), R(i,13), R(i,5))
A('s_nop 0')
for i in range(NE):
    rnd2(R(i,22), R(i,23), R(i,2)); rnd2(R(i,24), R(i,25), R(i,2))
    for d in range(4):
        A(f'v_mul_f32 v{R(i,22+d)}, v{R(i,22+d)}, v{R(i,26+d)}')
    rnd2(R(i,22), R(i,23), R(i,2)); rnd2(R(i,24), R(i,25), R(i,2))
    for d in range(4):
        A(f'v_add_f32 v{R(i,22+d)}, v{R(i,22+d)}, v{R(i,10+d)}')
    A(f'v_cvt_pk_bf16_f32 v{R(i,30)}, v{R(i,22)}, v{R(i,23)}')
    A(f'v_cvt_pk_bf16_f32 v{R(i,31)}, v{R(i,24)}, v{R(i,25)}')
    if not OPT['adj']: A(f'buffer_store_dwordx2 v[{R(i,30)}:{R(i,31)}], v{R(i,1)}, s[{S_O}:{S_O+3}], 0 offen {OPT["st_out"]}')
if OPT['adj']: A(f'buffer_store_dwordx4 v[{OQ}:{OQ+3}], v{R(0,1)}, s[{S_O}:{S_O+3}], 0 offen {OPT["st_out"]}')
L('F_END')
A('s_endpgm')
L('F_P32')
A(f'v_lshlrev_b32 v{R(0,2)}, 1, v{R(0,0)}')
for p in range(4):
    A(f'v_cmp_gt_i32 vcc, 0, v{R(0,6+p)}')
    A(f's_mov_b32 s4, {P32_BASE + p*E*16:#x}')
    A('s_mov_b64 exec, vcc')
    A(f'buffer_load_dwordx4 v[{R(0,32)}:{R(0,35)}], v{R(0,2)}, s[{S_WS}:{S_WS+3}], s4 offen')
    A('s_waitcnt vmcnt(0)')
    for d in range(4): A(f'v_add_f32 v{R(0,14+d)}, v{R(0,14+d)}, v{R(0,32+d)}')
    A('s_mov_b64 exec, -1')
A('s_branch F_BACK')
L('CODE_END')

out.append('.section .rodata,"a"')
for name, vg, sg in (('part_kernel', 128, 102), ('acc_kernel', 128, 102), ('fin_kernel', 108 if OPT['adj'] else 4 + 40*OPT['ne'], 80)):
    out.append('.p2align 6')
    out.append(f'.amdhsa_kernel {name}')
    out.append(f'  .amdhsa_next_free_vgpr {vg}')
    out.append(f'  .amdhsa_next_free_sgpr {sg}')
    out.append(f'  .amdhsa_accum_offset {vg}')
    out.append('  .amdhsa_group_segment_fixed_size 0')
    out.append('  .amdhsa_kernarg_size 112')
    out.append('  .amdhsa_user_sgpr_count 2')
    out.append('  .amdhsa_user_sgpr_kernarg_segment_ptr 1')
    out.append('  .amdhsa_system_sgpr_workgroup_id_x 1')
    out.append('  .amdhsa_float_denorm_mode_32 3')
    out.append('.end_amdhsa_kernel')
open(sys.argv[1], 'w').write('\n'.join(out) + '\n')
```

```python
import struct, sys, math

E = 400000
T = 12800000
CH = 6250
S = 25000
NTILE = 512
NBLK = (S + 2) // 3
RS = 128 * (int([a for a in sys.argv[2:] if a.startswith('rsl=')][0][4:]) if any(a.startswith('rsl=') for a in sys.argv[2:]) else 1042)
OFS = 16448
OFF_BASE = 0x4400000
MAX_BASE = 0x4C00000
SCL_BASE = 0x4C03000
PART_BASE = 0x5000000
P32_BASE = 0x7000000
TAB_BASE = 0x6000000
WS_BYTES = 268435456
MAGIC_DIV = (2**32 + CH - 1) // CH
NR = int([a for a in sys.argv[2:] if a.startswith('NR=')][0][3:]) if any(a.startswith('NR=') for a in sys.argv[2:]) else 14
CHI = (E + 4*NR - 1) // (4*NR)
MAGIC_I = (2**32 + CHI - 1) // CHI
assert MAGIC_I < 2**24 and all((x*MAGIC_I) >> 32 == x // CHI for x in range(0, E, 1))
NBK = (CHI*8 + 1023) // 1024
CM = 33340
assert NR == 14
MINI = S - 6 * 4096
assert NTILE * RS <= OFF_BASE and OFF_BASE + 256 * OFS <= MAX_BASE

OPT = dict(ld_in='nt', st_ws='sc0 sc1', ld_ent='', ld_ch='', st_part='sc0 sc1', ld_part='', NB=2, skip_s=0, skip_g=0, skip_fill=0, skip_e=0,
           stamp=-1, stamp2=-1, prio=1, ilv='2:0,3:1,4:2,5:3', pre=1, npb=1, bps=1, vpos='123456', skip_ch=0, skip_pf=0, pmap=0, cpos=0, epos=1, unpair=0, k2prio=0, pa=2, pb=2, struct=0, forcefb=0, abst=0, wsoff=0, cpf=0, ne=1, pp=0, ilp=0, hp='01', NR=14, nd=1, tab=0, adj=0, st_out='sc0 sc1', warm=1, il=5, cbf=1, rr=1, detp=0, st_mp='sc0 sc1', dst='002211111')
for a in sys.argv[2:]:
    k, v = a.split('=')
    OPT[k] = int(v) if (v.lstrip('-').isdigit() and k not in ('vpos', 'dst', 'hp')) else v.replace('_', ' ')

def f32bits(x): return struct.unpack('<I', struct.pack('<f', x))[0]
out = []
def A(s): out.append('    ' + s)
def L(s): out.append(s + ':')
_lab = [0]
def newlab(p='L'):
    _lab[0] += 1
    return f'{p}_{_lab[0]}'
def srd(d, b, nbytes):
    if nbytes == WS_BYTES and OPT['wsoff']:
        off = OPT['wsoff'] << 20
        A(f's_add_u32 s{d}, s{b}, {off:#x}')
        A(f's_addc_u32 s{d+1}, s{b+1}, 0')
        A(f's_and_b32 s{d+1}, s{d+1}, 0xffff')
        A(f's_mov_b32 s{d+2}, {nbytes - off:#x}')
        A(f's_mov_b32 s{d+3}, 0x00020000')
        return
    A(f's_mov_b32 s{d}, s{b}')
    A(f's_and_b32 s{d+1}, s{b+1}, 0xffff')
    A(f's_mov_b32 s{d+2}, {nbytes:#x}')
    A(f's_mov_b32 s{d+3}, 0x00020000')
def dpp_scan(op, v):
    for sh in (1, 2, 4, 8):
        A('s_nop 1')
        A(f'{op}_dpp v{v}, v{v}, v{v} row_shr:{sh} row_mask:0xf bank_mask:0xf bound_ctrl:0')
    A('s_nop 1')
    A(f'{op}_dpp v{v}, v{v}, v{v} row_bcast:15 row_mask:0xa bank_mask:0xf')
    A('s_nop 1')
    A(f'{op}_dpp v{v}, v{v}, v{v} row_bcast:31 row_mask:0xc bank_mask:0xf')
def khead(name):
    out.append(f'.globl {name}')
    out.append('.p2align 8')
    out.append(f'.type {name},@function')
    L(name)
SD = 'dst_sel:DWORD dst_unused:UNUSED_PAD'
def abs_start(v):
    if not OPT['abst']: return
    A('s_memrealtime s[4:5]')
    A('s_waitcnt lgkmcnt(0)')
    A(f'v_mov_b32 v{v}, s4')
def abs_end(v, sr, kid, wpb):
    if not OPT['abst']: return
    A('s_mov_b64 exec, -1')
    A('s_waitcnt vmcnt(0)')
    A('s_load_dwordx2 s[4:5], s[0:1], 104')
    A('s_memrealtime s[6:7]')
    A('s_waitcnt lgkmcnt(0)')
    srd(sr, 4, WS_BYTES)
    A('v_lshrrev_b32 v1, 6, v0')
    A(f's_mul_i32 s7, s2, {wpb}')
    A('v_add_u32 v1, s7, v1')
    A('v_lshlrev_b32 v1, 3, v1')
    A(f'v_mov_b32 v2, v{v}')
    A('v_mov_b32 v3, s6')
    A(f's_mov_b32 s7, {0xF000000 + kid*65536:#x}')
    A('s_mov_b64 exec, 1')
    A(f'buffer_store_dwordx2 v[2:3], v1, s[{sr}:{sr+3}], s7 offen')

stampn = [0]
def stamp(key):
    if OPT[key] < 0: return
    n = stampn[0]; stampn[0] += 1
    A(OPT.get('clk','s_memtime').replace(' ','_') + ' s[98:99]')
    A('s_waitcnt lgkmcnt(0)')
    A(f's_mov_b32 s{76+n}, s98')
def stamp_flush(key, swave, vz, wave=0):
    if OPT[key] < 0: return
    lab = newlab('STF')
    A(f's_cmp_lg_u32 s2, {OPT[key]}')
    A(f's_cbranch_scc1 {lab}')
    A(f's_cmp_lg_u32 s{swave}, {wave}')
    A(f's_cbranch_scc1 {lab}')
    A('s_load_dwordx2 s[4:5], s[0:1], 96')
    A('s_waitcnt lgkmcnt(0)')
    srd(72, 4, 256)
    A('s_mov_b64 exec, 1')
    A(f'v_mov_b32 v{vz}, 0')
    for n in range(stampn[0]):
        A(f's_sub_u32 s98, s{76+n}, s76')
        A(f'v_mov_b32 v{vz+1}, s98')
        A(f'buffer_store_dword v{vz+1}, v{vz}, s[72:75], 0 offen offset:{4*n}')
        A('s_nop 1')
    L(lab)

L_H, L_SC, L_ST = 0, 16384, 16640
L_X = L_ST
L_W = L_X + NBLK * 4 + 8
LDS1 = L_W + NBLK * 12
assert L_W < 65536 and L_W % 16 == 0
L_ARB, L_A = 50000, NBK*1024
L_SC2 = L_A + 100000
LDS2 = L_SC2 + 64
assert LDS2 <= 163840
MP_BASE = 0x4C10000
CHS = NBK*1024
assert MP_BASE + 4*NR*CHS + CHS <= PART_BASE
G3 = (E + 256*OPT['ne'] - 1) // (256*OPT['ne'])

hdr = open('standalone__molecular_angular_gemnet__graph.s.ref').read().split('; Override launch')[0]
out.append(hdr.rstrip())
out.append(f'; @launch kernel=part_kernel grid=(256,1,1) block=(1024,1,1) lds={LDS1}')
out.append(f'; @launch kernel=acc_kernel grid=(256,1,1) block=(1024,1,1) lds={LDS2}')
out.append(f'; @launch kernel=fin_kernel grid=({G3},1,1) block=(256,1,1) lds=0')
out.append('.amdgcn_target "amdgcn-amd-amdhsa--gfx950"')
out.append('.text')

khead('part_kernel')
A('s_cmp_ge_u32 s2, 256')
A('s_cbranch_scc1 P_END')
abs_start(7+0) if False else abs_start(87)
A('s_load_dwordx4 s[4:7], s[0:1], 0')
A('s_load_dwordx2 s[8:9], s[0:1], 16')
A('s_load_dwordx2 s[10:11], s[0:1], 32')
A('s_load_dwordx2 s[12:13], s[0:1], 48')
A('s_load_dwordx2 s[14:15], s[0:1], 104')
S_IN, S_OUT, S_ANG, S_WS, S_M = 16, 20, 24, 28, 32
if OPT['prio']: A('s_setprio 3')
if OPT['cpf'] >= 2:
    A('s_getpc_b64 s[58:59]')
    A('v_lshlrev_b32 v48, 7, v0')
    A('v_cmp_gt_u32 vcc, 88, v0')
    A('s_and_saveexec_b64 s[56:57], vcc')
    A('s_cbranch_execz P_NOSPF')
    A('global_load_dword v87, v48, s[58:59]')
    L('P_NOSPF')
    A('s_mov_b64 exec, s[56:57]')
A('v_lshlrev_b32 v1, 4, v0')
A('v_lshlrev_b32 v2, 3, v0')
A('v_mov_b32 v3, 1')
A('v_mov_b32 v4, 0x10000')
A('v_mov_b32 v5, 0')
A('v_lshlrev_b32 v6, 2, v0')
A('v_lshlrev_b32 v7, 1, v0')
TT = 8
for r in range(4): A(f'v_mov_b32 v{TT+4+r}, 0')
A('v_readfirstlane_b32 s50, v0')
A(f'ds_write_b128 v1, v[{TT+4}:{TT+7}]')
A(f'ds_write_b32 v6, v5 offset:{L_SC}')
A(f's_movk_i32 s42, {MINI}')
A('v_cmp_gt_u32 s[40:41], s42, v0')
A('s_waitcnt lgkmcnt(0)')
A('s_load_dword s36, s[12:13], 0')
srd(S_IN, 6, T * 4); srd(S_OUT, 8, T * 4); srd(S_ANG, 10, T * 2); srd(S_WS, 14, WS_BYTES); srd(S_M, 4, E * 8)
A('s_lshr_b32 s50, s50, 6')
if OPT['il']:
    if OPT['il'] == 1:
        A('s_lshl_b32 s37, s2, 14')
    elif OPT['il'] == 5:
        A(f's_mul_i32 s37, s50, {256*6144 - 1024}')
        A('s_mul_i32 s38, s2, 6144')
        A('s_add_u32 s37, s37, s38')
    elif OPT['il'] == 6:
        A(f's_mul_i32 s37, s50, {6144 - 1024}')
        A(f's_mul_i32 s38, s2, {96*1024}')
        A('s_add_u32 s37, s37, s38')
    elif OPT['il'] == 7:
        A(f's_mul_i32 s37, s2, {96*1024}')
    elif OPT['il'] == 8:
        A('s_lshr_b32 s38, s2, 3')
        A('s_add_u32 s38, s38, s50')
        A('s_and_b32 s38, s38, 15')
        A('s_sub_i32 s38, s38, s50')
        A('s_lshl_b32 s38, s38, 10')
        A('s_lshl_b32 s37, s2, 14')
        A('s_add_i32 s37, s37, s38')
    else:
        G_ = OPT['il']
        A(f's_lshr_b32 s38, s50, {G_-2}')
        A(f's_mul_i32 s37, s38, {255 * (1024 << (G_-2))}')
        A(f's_lshl_b32 s38, s2, {10 + G_ - 2}')
        A('s_add_u32 s37, s37, s38')
    A('s_lshr_b32 s38, s37, 1')
    A(f's_mul_i32 s68, s2, {MINI*4}')
    A(f's_mul_i32 s69, s2, {MINI*2}')
else:
    A(f's_mul_i32 s37, s2, {2*S*4}')
    A(f's_mul_i32 s38, s2, {2*S*2}')
UA = 24
unitA = [(UA + 10*k, UA + 10*k + 4, UA + 10*k + 8) for k in range(6)] + [(84, 85, 86)]
unitB = [(88 + 10*k, 88 + 10*k + 4, 88 + 10*k + 8) for k in range(4)] + [unitA[0], unitA[1], (44, 45, 46)]
vm = []
ldf = OPT['ld_in']
def load_unit(tag, k):
    vi, vo, va = (unitA if tag == 'A' else unitB)[k]
    tile = 0 if tag == 'A' else 1
    if OPT['il'] and k < 6:
        us = {5: 1024, 6: 1024, 7: 16384}.get(OPT['il'], 256 * 16384)
        A(f's_add_u32 s43, s37, {tile*6*256*16384 + k*us}')
        A(f's_add_u32 s44, s38, {tile*6*256*8192 + k*us//2}')
    elif OPT['il']:
        A(f's_add_u32 s43, s68, {12*256*16384 + tile*256*MINI*4}')
        A(f's_add_u32 s44, s69, {12*256*8192 + tile*256*MINI*2}')
    else:
        A(f's_add_u32 s43, s37, {tile*S*4 + k*16384}')
        A(f's_add_u32 s44, s38, {tile*S*2 + k*8192}')
    if k < 6:
        A(f'buffer_load_dwordx4 v[{vo}:{vo+3}], v1, s[{S_OUT}:{S_OUT+3}], s43 offen {ldf}')
        A(f'buffer_load_dwordx4 v[{vi}:{vi+3}], v1, s[{S_IN}:{S_IN+3}], s43 offen {ldf}')
        A(f'buffer_load_dwordx2 v[{va}:{va+1}], v2, s[{S_ANG}:{S_ANG+3}], s44 offen {ldf}')
    else:
        A('s_or_b64 exec, s[40:41], 1')
        A(f'buffer_load_dword v{vo}, v6, s[{S_OUT}:{S_OUT+3}], s43 offen {ldf}')
        A(f'buffer_load_dword v{vi}, v6, s[{S_IN}:{S_IN+3}], s43 offen {ldf}')
        A(f'buffer_load_ushort v{va}, v7, s[{S_ANG}:{S_ANG+3}], s44 offen {ldf}')
        A('s_mov_b64 exec, -1')
    vm.extend([(tag, k)] * 3)
def vwait(tag):
    idx = max(i for i, t in enumerate(vm) if t == tag)
    A(f's_waitcnt vmcnt({min(len(vm)-1-idx, 63)})')
stamp('stamp')
for k in range(OPT['pre']): load_unit('A', k)
A('s_barrier')
A('s_lshl_b32 s39, s2, 4')
A('s_add_u32 s39, s39, s50')
A(f's_sub_u32 s42, s39, {4*NR*NBK}')
A(f's_cmp_ge_u32 s39, {4*NR*NBK}')
A('s_cselect_b32 s39, s42, s39')
A('s_cselect_b32 s70, 1, 0')
A('s_lshl_b32 s45, s39, 10')
A(f's_mul_hi_u32 s42, s39, {(2**32 + NBK - 1)//NBK:#x}')
A(f's_mul_i32 s42, s42, {CHS - CHI*8}')
A('s_sub_u32 s39, s45, s42')
A(f's_add_u32 s45, s45, {MP_BASE:#x}')
A('s_mul_i32 s42, s50, 198656')
A(f'buffer_load_dwordx4 v[88:91], v1, s[{S_M}:{S_M+3}], s42 offen'); vm.append('M')
for k in range(OPT['pre'], 7): load_unit('A', k)
if OPT['prio']: A('s_setprio 0')
_hi = f32bits(1/(2*math.pi)) & 0xFFFFFF00
if OPT['rr']:
    A(f's_mov_b32 s46, {_hi:#x}')
    A(f's_mov_b32 s47, {f32bits(1/(2*math.pi) - struct.unpack("<f", struct.pack("<I", _hi))[0]):#x}')
else:
    A(f's_mov_b32 s46, {f32bits(1/(2*math.pi)):#x}')
    A(f's_mov_b32 s47, {f32bits(1/(2*math.pi)):#x}')
A('s_mov_b32 s48, 0xfc000000')
A('s_mov_b32 s49, 0xffff0000')
A(f's_mov_b32 s51, {(-CH) & 0xffffffff:#x}')
A('s_mov_b32 s52, 0x00020002')
A(f's_movk_i32 s55, {1024-NR}')
A(f's_mov_b32 s54, {(-CHI) & 0xffffffff:#x}')
A('s_mov_b32 s53, 0x55555556')
A('s_waitcnt lgkmcnt(0)')
A('s_lshl_b32 s36, s36, 16')

PT = TT + 11
def process(tag, k):
    vi0, vo0, va0 = (unitA if tag == 'A' else unitB)[k]
    inc = 3 if tag == 'A' else 4
    n = 4 if k < 6 else 1
    vwait((tag, k))
    skip = None
    if k == 6:
        skip = newlab('P_MS')
        A('s_mov_b64 exec, s[40:41]')
        A(f's_cbranch_execz {skip}')
    tj, ti, t1 = PT, PT + 1, PT + 2
    for j in range(n):
        vi, vo = vi0 + j, vo0 + j
        A(f'v_mul_hi_u32_u24 v{tj}, {MAGIC_I:#x}, v{vi}')
        A(f'v_mul_hi_u32_u24 v{ti}, {MAGIC_DIV:#x}, v{vo}')
        A(f'v_mul_u32_u24 v{t1}, {(65536 + NR - 1)//NR}, v{tj}')
        A(f'v_mad_i32_i24 v{vi}, v{tj}, s54, v{vi}')
        A(f'v_mad_i32_i24 v{vo}, v{ti}, s51, v{vo}')
        A(f'v_lshrrev_b32 v{t1}, 16, v{t1}')
        A(f'v_lshl_or_b32 v{vi}, v{vo}, 13, v{vi}')
        A(f'v_lshl_add_u32 v{vo}, v{ti}, 4, v{tj}')
        A(f'v_mad_u32_u24 v{vo}, v{t1}, s55, v{vo}')
        A(f'v_bfe_i32 v{ti}, v{ti}, 0, 1')
        A(f'v_add_lshl_u32 v{vo}, v{vo}, 2, 2')
        A(f'v_bitop3_b32 v{vo}, v{vo}, v{ti}, 60 bitop3:0x78')
        A(f'ds_add_u32 v{vo}, v{inc} offset:{L_H}')
    a0, a1 = PT + 3, PT + 4
    assert a0 % 2 == 0
    npair = (n + 1) // 2
    nf = newlab('P_NF')
    A('s_cmp_eq_u32 s36, 0x3f800000')
    A(f's_cbranch_scc1 {nf}')
    for p in range(npair):
        va = va0 + p
        A(f'v_lshlrev_b32 v{a0}, 16, v{va}')
        A(f'v_and_b32 v{a1}, s49, v{va}')
        A(f'v_mul_f32 v{a0}, s36, v{a0}')
        A(f'v_mul_f32 v{a1}, s36, v{a1}')
        A(f'v_cvt_pk_bf16_f32 v{va}, v{a0}, v{a1}')
    L(nf)
    for p in range(npair):
        va = va0 + p
        A(f'v_lshlrev_b32 v{a0}, 16, v{va}')
        A(f'v_and_b32 v{a1}, s49, v{va}')
        if OPT['rr']:
            A(f'v_mul_f32 v{tj}, s46, v{a0}')
            A(f'v_mul_f32 v{ti}, s46, v{a1}')
            A(f'v_fract_f32 v{tj}, v{tj}')
            A(f'v_fract_f32 v{ti}, v{ti}')
            A(f'v_fmac_f32 v{tj}, s47, v{a0}')
            A(f'v_fmac_f32 v{ti}, s47, v{a1}')
            A(f'v_cos_f32 v{a0}, v{tj}')
            A(f'v_cos_f32 v{a1}, v{ti}')
        else:
            A(f'v_pk_mul_f32 v[{a0}:{a1}], v[{a0}:{a1}], s[46:47]')
            A(f'v_fract_f32 v{a0}, v{a0}')
            A(f'v_fract_f32 v{a1}, v{a1}')
            A(f'v_cos_f32 v{a0}, v{a0}')
            A(f'v_cos_f32 v{a1}, v{a1}')
        A('s_nop 0')
        if OPT['cbf']:
            A(f'v_cvt_pk_bf16_f32 v{va}, v{a0}, v{a1}')
            A(f'v_lshlrev_b32 v{a0}, 16, v{va}')
            A(f'v_and_b32 v{a1}, s49, v{va}')
            A(f'v_cvt_pk_f16_f32 v{va}, v{a0}, v{a1}')
        else:
            A(f'v_cvt_pk_f16_f32 v{va}, v{a0}, v{a1}')
            A(f'v_pk_add_u16 v{va}, v{va}, s52')
        e0, e1 = 2*p, 2*p + 1
        A(f'v_lshlrev_b32 v{a0}, 16, v{va}')
        if e1 < n: A(f'v_and_or_b32 v{vi0+e1}, v{va}, s48, v{vi0+e1}')
        A(f'v_and_or_b32 v{vi0+e0}, v{a0}, s48, v{vi0+e0}')
        A(f'v_lshrrev_b32 v{va}, 2, v{va}')
    if k == 6:
        L(skip)
        A('s_mov_b64 exec, -1')

def maxm():
    vwait('M')
    M = TT + 6
    A('s_mov_b32 s42, 0x7fff7fff')
    for j in range(4): A(f'v_and_b32 v{M+j}, s42, v{88+j}')
    A(f'v_pk_max_u16 v{M}, v{M}, v{M+2}')
    A(f'v_pk_max_u16 v{M+1}, v{M+1}, v{M+3}')
    A(f'v_pk_max_u16 v{M}, v{M}, v{M+1}')
    A(f'v_lshrrev_b32 v{M+1}, 16, v{M}')
    A(f'v_and_b32 v{M}, 0xffff, v{M}')
    A(f'v_max_u32 v{M}, v{M}, v{M+1}')
    dpp_scan('v_max_u32', M)
    A('s_nop 1')
    A(f'v_readlane_b32 s42, v{M}, 63')
    A('s_nop 1')
    A(f'v_mov_b32 v{M}, s42')
    A('s_mov_b64 exec, 1')
    A(f'ds_max_u32 v5, v{M} offset:{L_SC+132}')
    A('s_mov_b64 exec, -1')
def mpload():
    A('v_and_b32 v47, 0xfc, v6')
    for k in range(4):
        A(f'buffer_load_dword v{84+k}, v47, s[{S_M}:{S_M+3}], s39 offen offset:{256*k}'); vm.append('M2')
def mpstore():
    vwait('M2')
    A('s_mov_b32 s42, 0x7fff7fff')
    for j in range(4): A(f'v_and_b32 v{TT+j}, s42, v{84+j}')
    A(f'v_pk_max_u16 v{TT}, v{TT}, v{TT+2}')
    A(f'v_pk_max_u16 v{TT+1}, v{TT+1}, v{TT+3}')
    A(f'v_pk_max_u16 v{TT}, v{TT}, v{TT+1}')
    A('s_add_u32 s42, s71, 1')
    A('s_lshl_b32 s42, s42, 7')
    A(f'v_max_u32_sdwa v{TT}, v{TT}, v{TT} {SD} src0_sel:WORD_0 src1_sel:WORD_1')
    A('s_lshl_b32 s44, s2, 4')
    A('s_add_u32 s44, s44, s50')
    A(f'v_cmp_le_u32 vcc, s42, v{TT}')
    A(f's_add_u32 s44, s44, {MAX_BASE + 4096:#x}')
    A('s_sub_i32 s43, 131, s71')
    A('s_cmp_lg_u64 vcc, 0')
    A('s_cselect_b32 s42, 1, 0')
    A(f'v_mov_b32 v{TT+1}, s42')
    A('s_mov_b64 exec, 1')
    A(f'buffer_store_byte v{TT+1}, v5, s[{S_WS}:{S_WS+3}], s44 offen')
    A('s_mov_b64 exec, -1')
    A('s_cmp_eq_u32 s70, 1')
    A('s_cbranch_scc1 P_NOMP')
    for j in range(4):
        A(f'v_lshlrev_b32 v{PT}, 16, v{84+j}')
        A(f'v_and_b32 v{PT+1}, s49, v{84+j}')
        A(f'v_ldexp_f32 v{PT}, v{PT}, s43')
        A(f'v_ldexp_f32 v{PT+1}, v{PT+1}, s43')
        A(f'v_cvt_pk_f16_f32 v{84+j}, v{PT}, v{PT+1}')
    A('v_and_b32 v47, 0x3f0, v1')
    A(f'buffer_store_dwordx4 v[84:87], v47, s[{S_WS}:{S_WS+3}], s45 offen {OPT["st_mp"]}')
    L('P_NOMP')

def zrow(src, h, tile):
    for j in range(4):
        A(f'v_mul_hi_u32 v{h+8}, v{src+j}, s53')
        A(f'v_add_u32 v{h+10+j}, v{h+8}, v{src+j}')
    A(f'v_lshl_or_b32 v{h+8}, v{h+11}, 16, v{h+10}')
    A(f'v_lshl_or_b32 v{h+9}, v{h+13}, 16, v{h+12}')
    A(f'v_mov_b32_dpp v{h+15}, v{h+13} row_shr:1 row_mask:0xf bank_mask:0xf bound_ctrl:0')
    if tile == 0:
        A(f'v_and_b32 v{h+14}, -32, v2')
        A(f'v_add_u32 v{h+14}, v{h+14}, v2')
    A('s_mov_b32 exec_lo, 0xf0f0f0f0')
    A('s_mov_b32 exec_hi, 0xf0f0f0f0')
    A(f'v_lshl_or_b32 v{h+8}, v{h+11}, 16, v{h+12}')
    A(f'v_lshl_or_b32 v{h+9}, v{h+15}, 16, v{h+10}')
    A(f'v_sub_u32 v{h+8}, {CM*0x10001:#x}, v{h+8}')
    A(f'v_sub_u32 v{h+9}, {CM*0x10001:#x}, v{h+9}')
    if tile == 0: A(f'v_xor_b32 v{h+14}, 24, v{h+14}')
    A('s_mov_b64 exec, -1')
    A(f's_mul_i32 s42, s2, {OFS}')
    A(f's_add_u32 s42, s42, {OFF_BASE:#x}')
    A(f'buffer_store_dwordx2 v[{h+8}:{h+9}], v{h+14}, s[{S_WS}:{S_WS+3}], s42 offen offset:{64+32*tile}')
    vm.append(('OFS', tile))

def scan(tile, scoff):
    h = TT
    A('s_waitcnt lgkmcnt(0)')
    A('s_barrier')
    A(f'ds_read_b128 v[{h}:{h+3}], v1 offset:{L_H}')
    A(f'v_and_b32 v{h+5}, 63, v0')
    A(f'v_cmp_lt_u32 vcc, s50, v{h+5}')
    A(f'v_lshlrev_b32 v{h+5}, 2, v{h+5}')
    A('s_and_b64 s[56:57], vcc, 0xffff')
    A('s_waitcnt lgkmcnt(0)')
    if tile == 1:
        for j in range(4): A(f'v_and_b32 v{h+10+j}, 0xffff, v{h+j}')
        for j in range(4): A(f'v_lshrrev_b32 v{h+j}, 16, v{h+j}')
    for j in range(1, 4): A(f'v_add_u32 v{h+j}, v{h+j-1}, v{h+j}')
    A(f'v_mov_b32 v{h+4}, v{h+3}')
    dpp_scan('v_add_u32', h + 4)
    A('s_nop 1')
    A(f'v_readlane_b32 s42, v{h+4}, 63')
    A('s_nop 1')
    A(f'v_mov_b32 v{h+6}, s42')
    A('s_mov_b64 exec, s[56:57]')
    A(f'ds_add_u32 v{h+5}, v{h+6} offset:{scoff}')
    A('s_mov_b64 exec, -1')
    A('s_lshl_b32 s42, s50, 2')
    A(f'v_mov_b32 v{h+5}, s42')
    A(f'v_sub_u32 v{h+4}, v{h+4}, v{h+3}')
    if tile == 1: zrow(h + 10, h, 0)
    A('s_waitcnt lgkmcnt(0)')
    A('s_barrier')
    A(f'ds_read_b32 v{h+5}, v{h+5} offset:{scoff}')
    if tile == 1: A(f'ds_read_b64 v[{h+6}:{h+7}], v5 offset:{L_SC+128}')
    A('s_waitcnt lgkmcnt(0)')
    if tile == 1: A(f'v_readfirstlane_b32 s71, v{h+7}')
    A(f'v_add_u32 v{h+4}, v{h+4}, v{h+5}')
    if tile == 1:
        for j in range(4): A(f'v_add_u32 v{h+10+j}, v{h+4}, v{h+j}')
    for j in (3, 2, 1): A(f'v_add_u32 v{h+j}, v{h+4}, v{h+j-1}')
    A(f'v_mov_b32 v{h}, v{h+4}')
    A(f'ds_write_b128 v1, v[{h}:{h+3}] offset:{L_H}')
    if tile == 1:
        A('s_lshr_b32 s71, s71, 7')
        A('s_add_u32 s71, s71, 1')
        zrow(h + 10, h, 1)
        done = newlab('P_SC')
        A('s_cmp_lg_u32 s50, 0')
        A(f's_cbranch_scc1 {done}')
        A('s_mov_b64 exec, 1')
        A('s_lshl_b32 s42, s2, 2')
        A(f's_add_u32 s42, s42, {MAX_BASE + 1024:#x}')
        A(f'v_mov_b32 v{h+5}, s71')
        A(f'buffer_store_dword v{h+5}, v5, s[{S_WS}:{S_WS+3}], s42 offen')
        A('s_mov_b64 exec, -1')
        L(done)
    A('s_waitcnt lgkmcnt(0)')
    A('s_barrier')

def scatter(tag, after_wait, after_fin):
    units = unitA if tag == 'A' else unitB
    lg = []
    def issue(k):
        vi0, vo0, _ = units[k]
        n = 4 if k < 6 else 1
        if k == 6: A('s_mov_b64 exec, s[40:41]')
        for j in range(n):
            A(f'ds_add_rtn_u32 v{TT+4*(k&1)+j}, v{vo0+j}, v3 offset:{L_H}')
            lg.append(('R', k))
        if k == 6: A('s_mov_b64 exec, -1')
    def fin(k):
        vi0, vo0, va0 = units[k]
        n = 4 if k < 6 else 1
        if k == 6: A('s_mov_b64 exec, s[40:41]')
        for j in range(n):
            t = TT + 4*(k & 1) + j
            q, a = TT + 8, TT + 9 + (j & 1)
            if tag == 'A': A(f'v_and_b32 v{t}, 0xffff, v{t}')
            A(f'v_mul_hi_u32 v{q}, v{t}, s53')
            A(f'v_lshlrev_b32 v{a}, 2, v{t}')
            A(f'v_add_u32 v{t}, v{q}, v{t}')
            A(f'ds_write_b32 v{a}, v{vi0+j} offset:{L_W}')
            A(f'ds_write_b8{"_d16_hi" if j & 1 else ""} v{t}, v{va0+j//2} offset:{L_X}')
            lg.extend([('W', k)] * 2)
        if k == 6: A('s_mov_b64 exec, -1')
    issue(0)
    for k in range(7):
        if k + 1 < 7: issue(k + 1)
        idx = max(i for i, t in enumerate(lg) if t == ('R', k) or t == ('W', k - 1))
        ny = sum(1 for t in lg[idx+1:] if t[1] != 6)
        A(f's_waitcnt lgkmcnt({min(ny, 15)})')
        if k in after_wait: after_wait[k]()
        fin(k)
        if k in after_fin:
            after_fin[k]()
            lg.extend([('H', k)] * 4)
    A('s_waitcnt lgkmcnt(0)')
    A('s_barrier')

RC = (NBLK + 1023) // 1024
lastc = NBLK - (RC - 1) * 1024
def copyout(tile, regs, ar):
    A(f's_movk_i32 s42, {lastc}')
    A('v_cmp_gt_u32 s[56:57], s42, v0')
    A(f'v_mul_u32_u24 v{ar[0]}, 12, v0')
    A(f'v_add_u32 v{ar[0]}, {L_W}, v{ar[0]}')
    A(f's_mul_i32 s42, s2, {2*RS}')
    if tile: A(f's_add_u32 s42, s42, {RS}')
    def rd(j):
        r = regs[j]
        if j == RC - 1: A('s_mov_b64 exec, s[56:57]')
        A(f'ds_read2_b32 v[{r}:{r+1}], v{ar[0]} offset0:0 offset1:1')
        A(f'ds_read_b32 v{r+2}, v{ar[0]} offset:8')
        A(f'ds_read_b32 v{r+3}, v6 offset:{L_X + j*4096}')
        if j == RC - 1: A('s_mov_b64 exec, -1')
        else: A(f'v_add_u32 v{ar[0]}, {12*1024}, v{ar[0]}')
    LA = 4
    for j in range(LA): rd(j)
    for j in range(RC):
        if j + LA < RC: rd(j + LA)
        A(f's_waitcnt lgkmcnt({3*max(0, min(LA, RC-2-j))})')
        if j == RC - 1: A('s_mov_b64 exec, s[56:57]')
        A(f'buffer_store_dwordx4 v[{regs[j]}:{regs[j]+3}], v1, s[{S_WS}:{S_WS+3}], s42 offen {OPT["st_ws"]}')
        if j < RC - 1: vm.append(('ST', tile, j))
        if j < RC - 1: A('s_add_u32 s42, s42, 16384')
    A('s_mov_b64 exec, -1')

stamp('stamp')
process('A', 0)
stamp('stamp')
maxm()
for k in range(1, 7): process('A', k)
stamp('stamp')
NPB = OPT['npb']
for k in range(NPB): load_unit('B', k)
scan(0, L_SC)
stamp('stamp')
ilv = dict((int(x.split(':')[0]), int(x.split(':')[1])) for x in OPT['ilv'].split(',')) if OPT['ilv'] else {}
pend = list(range(NPB, 7))
aw = {}
for k in range(7):
    take = []
    while pend and len(take) < OPT['bps'] and (pend[0] < 4 or k >= pend[0] - 3):
        take.append(pend.pop(0))
    if k == 6: take += pend; pend = []
    if take: aw[k] = (lambda tk=take: [load_unit('B', b) for b in tk])
scatter('A', aw, {k: (lambda b=b: process('B', b)) for k, b in ilv.items()})
def cpf_code():
    if OPT['cpf']:
        A('s_cmp_lg_u32 s50, 15')
        A('s_cbranch_scc1 P_NOCPF')
        A('s_getpc_b64 s[58:59]')
        L('P_PC')
        A('s_add_u32 s58, s58, acc_kernel-P_PC')
        A('s_addc_u32 s59, s59, 0')
        A('v_and_b32 v19, 63, v0')
        A('v_lshlrev_b32 v19, 7, v19')
        for j in range(3):
            A(f'v_min_u32 v20, CODE_END-acc_kernel-4, v19')
            A(f'global_load_dword v21, v20, s[58:59]')
            A('v_add_u32 v19, 8192, v19')
        L('P_NOCPF')
stamp('stamp')
CR = [48 + 4*j for j in range(RC)]
mpload()
if OPT['dst'] == '':
    copyout(0, CR, [TT, TT + 1, TT + 2])
    stamp('stamp')
    for k in range(7):
        if k not in ilv.values(): process('B', k)
    stamp('stamp')
    scan(1, L_SC + 64)
    cpf_code()
    stamp('stamp')
    scatter('B', {}, {})
else:
    A(f's_movk_i32 s42, {lastc}')
    A('v_cmp_gt_u32 s[64:65], s42, v0')
    A(f'v_mul_u32_u24 v{TT}, 12, v0')
    A(f'v_add_u32 v{TT}, {L_W}, v{TT}')
    A(f's_mul_i32 s66, s2, {2*RS}')
    for j in range(RC):
        r = CR[j]
        if j == RC - 1: A('s_mov_b64 exec, s[64:65]')
        A(f'ds_read2_b32 v[{r}:{r+1}], v{TT} offset0:0 offset1:1')
        A(f'ds_read_b32 v{r+2}, v{TT} offset:8')
        A(f'ds_read_b32 v{r+3}, v6 offset:{L_X + j*4096}')
        if j == RC - 1: A('s_mov_b64 exec, -1')
        else: A(f'v_add_u32 v{TT}, {12*1024}, v{TT}')
    nst = [0]
    def st(n):
        for _ in range(n):
            j = nst[0]
            if j >= RC: return
            nst[0] += 1
            if j == RC - 1: A('s_mov_b64 exec, s[64:65]')
            A(f'buffer_store_dwordx4 v[{CR[j]}:{CR[j]+3}], v1, s[{S_WS}:{S_WS+3}], s66 offen {OPT["st_ws"]}')
            if j < RC - 1:
                vm.append(('ST', 0, j)); A('s_add_u32 s66, s66, 16384')
            else: A('s_mov_b64 exec, -1')
    sch = [int(c) for c in OPT['dst']]
    rest = [k for k in range(7) if k not in ilv.values()]
    process('B', rest[0])
    A('s_waitcnt lgkmcnt(0)')
    st(sch[0])
    stamp('stamp')
    for k in rest[1:]: process('B', k)
    st(sch[1])
    stamp('stamp')
    scan(1, L_SC + 64)
    cpf_code()
    stamp('stamp')
    scatter('B', {k: (lambda n=sch[2+k]: st(n)) for k in range(7)}, {})
    assert nst[0] == RC
mpstore()

def tabgen():
    A('s_cmp_ge_u32 s50, 4')
    A('s_cbranch_scc1 P_NOTAB')
    A('s_load_dwordx2 s[4:5], s[0:1], 40')
    A('s_load_dwordx4 s[8:11], s[0:1], 56')
    A('s_lshl_b32 s42, s2, 8')
    D, a_, b_, t, RB, O = 8, 9, 10, 11, 12, 88
    A(f'v_add_u32 v{D}, s42, v0')
    A(f'v_lshlrev_b32 v16, 5, v{D}')
    A(f'v_lshlrev_b32 v{D}, 16, v{D}')
    A('s_waitcnt lgkmcnt(0)')
    A('s_load_dwordx4 s[4:7], s[4:5], 0')
    A('s_load_dwordx16 s[68:83], s[8:9], 0')
    A('s_load_dwordx16 s[84:99], s[10:11], 0')
    A(f's_mov_b32 s44, {f32bits(-10.0):#x}')
    A(f's_mov_b32 s45, {f32bits(math.log2(math.e)):#x}')
    def rnd():
        A(f'v_cvt_pk_bf16_f32 v{t}, v{a_}, v{b_}')
        A(f'v_lshlrev_b32 v{a_}, 16, v{t}')
        A(f'v_and_b32 v{b_}, s49, v{t}')
    A('s_waitcnt lgkmcnt(0)')
    for r in range(0, 8, 2):
        A(f's_lshl_b32 s42, s{4+r//2}, 16')
        A(f's_and_b32 s43, s{4+r//2}, 0xffff0000')
        A(f'v_subrev_f32 v{a_}, s42, v{D}')
        A(f'v_subrev_f32 v{b_}, s43, v{D}')
        rnd()
        A(f'v_mul_f32 v{a_}, v{a_}, v{a_}')
        A(f'v_mul_f32 v{b_}, v{b_}, v{b_}')
        rnd()
        A(f'v_mul_f32 v{a_}, s44, v{a_}')
        A(f'v_mul_f32 v{b_}, s44, v{b_}')
        rnd()
        A(f'v_mul_f32 v{a_}, s45, v{a_}')
        A(f'v_mul_f32 v{b_}, s45, v{b_}')
        A(f'v_exp_f32 v{a_}, v{a_}')
        A(f'v_exp_f32 v{b_}, v{b_}')
        A('s_nop 0')
        A(f'v_cvt_pk_bf16_f32 v{RB+r//2}, v{a_}, v{b_}')
    for r in range(0, 8, 2):
        for base, dst in ((84, O), (68, O + 4)):
            for d in range(4):
                op = 's_pack_hh_b32_b16' if d & 1 else 's_pack_ll_b32_b16'
                A(f'{op} s{42+(d&1)}, s{base + r*2 + d//2}, s{base + (r+1)*2 + d//2}')
                c = '0' if r == 0 else f'v{dst+d}'
                A(f'v_dot2_f32_bf16 v{dst+d}, v{RB+r//2}, s{42+(d&1)}, {c}')
    A('s_nop 2')
    A(f'v_cvt_pk_bf16_f32 v{O+4}, v{O+4}, v{O+5}')
    A(f'v_cvt_pk_bf16_f32 v{O+5}, v{O+6}, v{O+7}')
    A(f's_mov_b32 s42, {TAB_BASE:#x}')
    A(f'buffer_store_dwordx4 v[{O}:{O+3}], v16, s[{S_WS}:{S_WS+3}], s42 offen')
    A(f'buffer_store_dwordx4 v[{O+4}:{O+7}], v16, s[{S_WS}:{S_WS+3}], s42 offen offset:16')
    L('P_NOTAB')
stamp('stamp')
copyout(1, [48 + 4*j for j in range(RC)], [TT, TT + 1, TT + 2])
if OPT['tab']: tabgen()
stamp('stamp')
if OPT['stamp'] >= 0: A('s_waitcnt vmcnt(0)')
stamp('stamp')
if OPT.get('allst', 0):
    A(f's_cmp_lg_u32 s50, {OPT.get("swave", 0)}')
    A('s_cbranch_scc1 P_END')
    A('s_lshl_b32 s42, s2, 6')
    A('s_add_u32 s42, s42, 0xF000000')
    A('s_mov_b64 exec, 1')
    for n in range(stampn[0]):
        A(f'v_mov_b32 v{TT+1}, s{76+n}')
        A(f'buffer_store_dword v{TT+1}, v5, s[{S_WS}:{S_WS+3}], s42 offen offset:{4*n}')
        A('s_nop 1')
else: stamp_flush('stamp', 50, TT, OPT.get('swave', 0))
abs_end(87, 64, 0, 16)
L('P_END')
A('s_endpgm')

st2n = [0]
def stamp2():
    if OPT['stamp2'] < 0: return
    n = st2n[0]; st2n[0] += 1
    A(OPT.get('clk','s_memtime').replace(' ','_') + ' s[4:5]')
    A('s_waitcnt lgkmcnt(0)')
    A(f'v_writelane_b32 v127, s4, {n+2}')
khead('acc_kernel')
A('s_cmp_ge_u32 s2, 256')
A('s_cbranch_scc1 Q_END')
abs_start(127)
A('s_load_dwordx2 s[4:5], s[0:1], 0')
A('s_load_dwordx2 s[6:7], s[0:1], 104')
if OPT['pp']: A('s_setprio 3')
S_M, S_WS = 8, 12
A('s_and_b32 s3, s2, 7')
A('s_lshl_b32 s3, s3, 5')
A('s_lshr_b32 s16, s2, 3')
A('s_add_u32 s3, s3, s16')
VTB = 5; VOF = 8
VEB = VOF + 18
def EB(slot, s): return VEB + (slot * 2 + s) * 4
VG = VEB + 32
GP = [0]
def G(s, e): return VG + ((s + (GP[0] if s else 0)) * 3 + e) * 2
VCH = VG + 18
VT = VCH + 16
VA = VT + 6
VSH, VFC = VT + 10, VT + 11
VLA, VLB = VT + 12, VT + 13
VFB = VT + 14
VFG = VFB + 4
VL2 = VFG + 6
V3 = VL2
assert VFB % 2 == 0 and VL2 + 2 <= 126
def OF(s, k): return VOF + 9*s + k
def MK(slot, s, e): return 54 + slot * 12 + (s * 3 + e) * 2
A('v_and_b32 v1, 3, v0')
A('v_lshlrev_b32 v2, 4, v0')
A('v_lshrrev_b32 v3, 2, v0')
A('v_and_b32 v4, 1, v0')
A(f'v_mul_u32_u24 v{VT}, {OFS}, v3')
A(f'v_lshl_add_u32 v{VT+1}, v1, 4, v{VT}')
A(f'v_lshlrev_b32 v{VT+2}, 2, v0')
if not OPT['abst']: A('v_mov_b32 v127, 0')
A('s_lshl_b32 s17, s3, 6')
A(f's_add_u32 s17, s17, {OFF_BASE:#x}')
A(f's_mov_b32 s19, {MAX_BASE + 4096:#x}')
A('s_lshr_b32 s20, s3, 6')
A(f's_mul_i32 s20, s20, {NR*CHS}')
A(f's_add_u32 s20, s20, {MP_BASE:#x}')
A('v_cmp_gt_u32 s[22:23], 64, v0')
A('v_readfirstlane_b32 s21, v0')
A('s_nop 3')
A('s_lshl_b32 s50, s21, 4')
A('s_mov_b32 m0, s50')
A('s_waitcnt lgkmcnt(0)')
srd(S_M, 4, E * 8); srd(S_WS, 6, WS_BYTES)
A('s_lshl_b32 s16, s2, 2')
A(f's_add_u32 s16, s16, {MAX_BASE + 1024:#x}')
A('s_load_dword s27, s[6:7], s16')
TO = VG
A(f'buffer_load_dwordx4 v[{TO}:{TO+3}], v{VT+1}, s[{S_WS}:{S_WS+3}], s17 offen offset:64')
A(f'buffer_load_dword v125, v{VT+2}, s[{S_WS}:{S_WS+3}], s19 offen')
if OPT['pp']: A('s_setprio 1' if OPT['pp'] == 2 else 's_setprio 2')
stamp2()
INLOOP = [0]
ool = []
def chall(lastchk=False):
    sk = newlab('Q_C')
    if lastchk:
        A(f's_cmp_eq_u32 s33, {(NR-2)//4}')
        A('s_cselect_b64 exec, 1, -1')
    else: A('s_mov_b64 exec, -1')
    A(f's_cmp_ge_u32 s50, {(NBK-48)*1024}')
    A(f's_cbranch_scc1 {sk}')
    A(f's_add_u32 s21, s20, {3*16384}')
    if not (OPT['skip_ch'] and INLOOP[0]): A(f'buffer_load_dwordx4 v[{VCH+12}:{VCH+15}], v2, s[{S_WS}:{S_WS+3}], s21 offen {OPT["ld_ch"]}')
    L(sk)
    for j in range(3):
        A(f's_add_u32 s21, s20, {j*16384}')
        if not (OPT['skip_ch'] and INLOOP[0]): A(f'buffer_load_dwordx4 v[{VCH+4*j}:{VCH+4*j+3}], v2, s[{S_WS}:{S_WS+3}], s21 offen {OPT["ld_ch"]}')
    A(f's_add_u32 s20, s20, {CHS}')
def fill():
    if OPT['skip_fill']: return
    sk = newlab('Q_F')
    A('s_mov_b64 exec, -1')
    for j in range(4):
        if j == 3:
            A(f's_cmp_ge_u32 s50, {(NBK-48)*1024}')
            A(f's_cbranch_scc1 {sk}')
        for k in range(4): A(f'ds_write_addtid_b32 v{VCH+4*j+k} offset:{j*16384+256*k}')
    L(sk)
chall()
A(f's_mov_b32 s16, {2*RS}')
A(f'v_mul_lo_u32 v{VTB}, v3, s16')
A('s_bitcmp1_b32 s3, 0')
A('s_cselect_b32 s51, -4, 4')
A('s_cselect_b32 s52, -1, 1')
A('s_cselect_b32 s53, 3, 0')
A(f's_cselect_b32 s16, {4*(CM-1)}, 0')
A(f'v_add_u32 v{VTB}, s16, v{VTB}')
A(f'v_add_u32 v{VTB+1}, {RS}, v{VTB}')
A('v_cmp_eq_u32 s[36:37], 3, v1')
A('v_and_b32 v4, 63, v0')
A('v_cmp_lt_u32 s[38:39], 1, v1')
A('v_lshl_add_u32 v1, v1, 2, s53')
A('s_mov_b32 s44, 0')
A('s_lshr_b32 s45, s3, 6')
A(f's_mul_i32 s45, s45, {NR*CHI*8}')
A(f'v_add_u32 v3, {L_A}, v2')
z = VEB + 28
for r in range(4): A(f'v_mov_b32 v{z+r}, 0')
for j in range(4): A(f'ds_write_b128 v3, v[{z}:{z+3}] offset:{j*16384}')
A(f'v_add_u32 v{VT+6}, 65536, v3')
for j in range(2): A(f'ds_write_b128 v{VT+6}, v[{z}:{z+3}] offset:{j*16384}')
A('s_movk_i32 s16, 106')
A('v_cmp_gt_u32 s[24:25], s16, v0')
A('s_mov_b64 exec, s[24:25]')
A(f'ds_write_b128 v{VT+6}, v[{z}:{z+3}] offset:{2*16384}')
A('s_mov_b64 exec, -1')
A(f'v_mov_b32 v126, {L_SC2}')
VONE = VSH
A('s_mov_b64 exec, 1')
A(f'ds_write_b128 v126, v[{z}:{z+3}]')
A('s_mov_b64 exec, -1')
A('s_mov_b32 s30, 0xffff0000')
A(f's_mov_b32 s31, {L_A}')
A('s_mov_b32 s35, 0xfc000000')
A(f'v_mov_b32 v{VSH}, 18')
A(f'v_mov_b32 v{V3}, 3')
A(f'v_mov_b32 v{VFC}, 0xfffc')
A('s_waitcnt vmcnt(3)')
for s_ in range(2):
    for k in range(8):
        ln = 2*s_ + (1 if k >= 4 else 0)
        A(f'v_mov_b32_dpp v{OF(s_,k)}, v{TO + k % 4} quad_perm:[{ln},{ln},{ln},{ln}] row_mask:0xf bank_mask:0xf')
for s_ in range(2):
    A(f'v_lshrrev_b32 v{OF(s_,8)}, 16, v{OF(s_,7)}')
    A(f'v_lshl_or_b32 v{OF(s_,8)}, v{OF(s_,8)}, 16, v{OF(s_,8)}')

def pfcalc(s_, r, masks=True):
    slot = r % 4
    r0, h0, r1, h1 = (r + 1) >> 1, (r + 1) & 1, (r + 2) >> 1, r & 1
    y, d, ln, ad = VT, VT + 7, VT + 8, VA
    a, b = OF(s_, r0), OF(s_, r1)
    m = [MK(slot, s_, k) for k in range(3)]
    A('s_mov_b64 exec, -1')
    A(f'v_and_b32_sdwa v{y}, v{a}, v{VFC} {SD} src0_sel:WORD_{h0} src1_sel:DWORD')
    A(f'v_sub_u32_sdwa v{ln}, v{b}, v{a} {SD} src0_sel:WORD_{h1} src1_sel:WORD_{h0}')
    A(f'v_add_u32 v{y}, v{y}, v1')
    A(f'v_sub_u32_sdwa v{d}, v{y}, v{a} {SD} src0_sel:DWORD src1_sel:WORD_{h0}')
    A(f'v_mad_i32_i24 v{ad}, v{y}, s51, v{VTB+s_}')
    if masks:
        A(f'v_cmp_lt_u32 s[{m[0]}:{m[0]+1}], v{d}, v{ln}')
        A(f'v_add_u32 v{d}, s52, v{d}')
        A(f'v_cmp_lt_u32 s[{m[1]}:{m[1]+1}], v{d}, v{ln}')
        A(f'v_add_u32 v{d}, s52, v{d}')
        A(f'v_cmp_lt_u32 s[{m[2]}:{m[2]+1}], v{d}, v{ln}')
def pf1(s_, r, live=False, det=True):
    slot = r % 4
    m = [MK(slot, s_, k) for k in range(3)]
    e = EB(slot, s_)
    pfcalc(s_, r)
    A(f's_or_b64 vcc, s[{m[0]}:{m[0]+1}], s[{m[1]}:{m[1]+1}]')
    A(f's_or_b64 vcc, vcc, s[{m[2]}:{m[2]+1}]')
    if live: A('s_and_b64 vcc, vcc, s[18:19]')
    A('s_or_b64 exec, vcc, 1' if not OPT['skip_pf'] else 's_mov_b64 exec, -1')
    if not (OPT['skip_pf'] and INLOOP[0]): A(f'buffer_load_dwordx4 v[{e}:{e+3}], v{VA}, s[{S_WS}:{S_WS+3}], 0 offen {OPT["ld_ent"]}')
def xl(r):
    A('s_mov_b64 exec, -1')
    A(f's_add_u32 s47, s46, {r}')
    A(f'v_cmp_eq_u32 vcc, s47, v{VLB}')
    A('s_or_b64 exec, vcc, s[48:49]')
    A(f'buffer_load_dwordx4 v[{VFB}:{VFB+3}], v{VLA}, s[{S_WS}:{S_WS+3}], 0 offen')
def xg(r):
    A('s_mov_b64 exec, -1')
    A(f's_add_u32 s47, s46, {r}')
    A(f'v_cmpx_eq_u32 vcc, s47, v{VLB}')
    for e in range(3): gaddr(VFB + e, VFG + 2*e)
    for e in range(3):
        A(f's_and_b64 exec, vcc, s[{40+2*e}:{41+2*e}]')
        if not OPT['skip_g']: A(f'ds_read_b64 v[{VFG+2*e}:{VFG+2*e+1}], v{VFG+2*e}')
def xs():
    for e in range(3):
        A(f's_mov_b64 exec, s[{40+2*e}:{41+2*e}]')
        scat1(VFB + e, VFB + 3, e, VFG + 2*e)

def gath1(w, g):
    A(f'v_lshlrev_b32 v{g}, 3, v{w}')
    A(f'v_and_b32 v{g}, 0xfff8, v{g}')
    if not OPT['skip_g']: A(f'ds_read_b64 v[{g}:{g+1}], v{g}')

def scat1(w, xr, e, g, wait=False):
    x, ad = VT, VT + 1
    p0, p2 = VT + 2, VT + 4
    A(f'v_lshlrev_b32_sdwa v{x}, v{VSH}, v{xr} {SD} src0_sel:DWORD src1_sel:BYTE_{e}')
    A(f'v_bfe_u32 v{ad}, v{w}, 13, 13')
    A(f'v_and_or_b32 v{x}, v{w}, s35, v{x}')
    A(f'v_lshl_add_u32 v{ad}, v{ad}, 3, s31')
    A(f'v_fma_mix_f32 v{p2}, v{g+1}, v{x}, s28 op_sel:[0,1,0] op_sel_hi:[1,1,0]')
    A(f'v_fma_mix_f32 v{p2+1}, v{g+1}, v{x}, s28 op_sel:[1,1,0] op_sel_hi:[1,1,0]')
    if wait: A('s_waitcnt lgkmcnt(0)')
    A(f'ds_add_u64 v{ad}, v[{p2}:{p2+1}] offset:{L_ARB}')
    A(f'v_fma_mix_f32 v{p0}, v{g}, v{x}, s26 op_sel:[0,1,0] op_sel_hi:[1,1,0]')
    A(f'v_fma_mix_f32 v{p0+1}, v{g}, v{x}, s28 op_sel:[1,1,0] op_sel_hi:[1,1,0]')
    A(f'ds_add_u64 v{ad}, v[{p0}:{p0+1}]')

def gaddr(w, g):
    A(f'v_lshlrev_b32_sdwa v{g}, v{V3}, v{w} dst_sel:WORD_0 dst_unused:UNUSED_PAD src0_sel:DWORD src1_sel:DWORD')
def Gset(r, s_):
    slot = r % 4
    GP[0] = (r & 1) if OPT['nd'] else 0
    A('s_mov_b64 exec, -1')
    for e in range(3): gaddr(EB(slot, s_) + e, G(s_, e))
    for e in range(3):
        m = MK(slot, s_, e); g = G(s_, e)
        A(f's_mov_b64 exec, s[{m}:{m+1}]')
        if not OPT['skip_g']: A(f'ds_read_b64 v[{g}:{g+1}], v{g}')
def Sset(r, s_, hooks={}, w0=False):
    slot = r % 4
    GP[0] = (r & 1) if OPT['nd'] else 0
    for e in range(3):
        if e in hooks: hooks[e]()
        m = MK(slot, s_, e)
        A(f's_mov_b64 exec, s[{m}:{m+1}]')
        b = EB(slot, s_)
        if not OPT['skip_s']: scat1(b + e, b + 3, e, G(s_, e), w0 and e == 0)

A(f'v_mov_b32 v{VT+1}, 0')
pf1(0, 0, det=False); pf1(1, 0, det=False); pf1(0, 1, det=False)
A('s_mov_b64 exec, -1')
A('s_bitcmp1_b32 s3, 0')
A(f's_cselect_b32 s16, {CM}, 0')
A(f'v_mov_b32 v{VT+8}, s16')
for s_ in range(2):
    A(f'v_lshrrev_b32 v{VT+2}, 16, v{OF(s_,0)}')
    A(f'v_lshrrev_b32 v{VT+3}, 16, v{OF(s_,8)}')
    A(f'v_mad_i32_i24 v{VT+2}, v{VT+2}, s52, v{VT+8}')
    A(f'v_mad_i32_i24 v{VT+3}, v{VT+3}, s52, v{VT+8}')
    A(f'v_sub_u32 v{VT+4+s_}, v{VT+2}, v{VT+3}')
    A(f'v_lshrrev_b32 v{VT+2}, 2, v{VT+2}')
    A(f'v_lshrrev_b32 v{VT+3}, 2, v{VT+3}')
    A(f'v_sub_u32 v{VT+2}, v{VT+3}, v{VT+2}')
    A(f'v_add_u32 v{VT+4+s_}, v{VT+4+s_}, v{VT+2}')
A(f'v_add_u32 v{VT+2}, v{VT+4}, v{VT+5}')
dpp_scan('v_add_u32', VT + 2)
A('s_nop 1')
A(f'v_readlane_b32 s32, v{VT+2}, 63')
A('s_nop 3')
A('s_mul_i32 s32, s32, s52')
A(f's_mov_b32 s26, {f32bits(544.0):#x}')
A(f's_mov_b32 s28, {f32bits(96.0):#x}')
if OPT['detp'] == 0:
    PV, TBL, CBL, LW = VFB, VFB + 1, VFB + 2, VFB + 3
    D0, D1 = VFG, VFG + 1
    A('s_mov_b64 exec, -1')
    A(f'v_mov_b32_dpp v{PV}, v{TO+3} quad_perm:[0,0,2,2] row_mask:0xf bank_mask:0xf')
    A(f'v_and_b32 v{CBL}, 1, v0')
    A(f'v_cmp_eq_u32 vcc, 0, v{CBL}')
    A(f'v_lshlrev_b32 v{LW}, 16, v{TO}')
    A(f'v_lshl_add_u32 v{CBL}, v{CBL}, 5, -8')
    A(f'v_cndmask_b32 v{PV}, v{PV}, v{LW}, vcc')
    A(f'v_cndmask_b32 v{TBL}, v{VTB}, v{VTB+1}, s[38:39]')
    A('s_add_u32 s42, s53, 16')
    A('s_mul_i32 s42, s42, s51')
    A(f'v_add_u32 v{TBL}, s42, v{TBL}')
    A('s_lshl_b32 s42, s51, 2')
    A('s_and_b32 s43, s3, 1')
    A('s_add_u32 s43, s43, 16')
    A('s_mov_b32 s46, s50')
    for t in range(8):
        sa, ha = (PV, 1) if t == 0 else (TO + (t - 1) // 2, (t - 1) & 1)
        sb, hb = TO + t // 2, t & 1
        nx = newlab('Q_D'); lp = newlab('Q_D')
        y, rem = VT, VT + 1
        A(f'v_and_b32_sdwa v{y}, v{sa}, v{VFC} {SD} src0_sel:WORD_{ha} src1_sel:DWORD')
        A(f'v_sub_u32_sdwa v{rem}, v{sb}, v{y} {SD} src0_sel:WORD_{hb} src1_sel:DWORD')
        A(f'v_cmpx_lt_i32 vcc, 16, v{rem}')
        A(f's_cbranch_execz {nx}')
        A(f'v_mad_i32_i24 v{D0}, v{y}, s51, v{TBL}')
        A(f'v_subrev_u32 v{rem}, s43, v{rem}')
        L(lp)
        A(f'v_mbcnt_lo_u32_b32 v{LW}, exec_lo, 0')
        A(f'v_mbcnt_hi_u32_b32 v{LW}, exec_hi, v{LW}')
        A(f'v_min_u32 v{D1}, 3, v{rem}')
        A(f'v_add_u32 v{LW}, s44, v{LW}')
        A(f'v_add3_u32 v{D1}, v{D1}, v{CBL}, s47' if False else f'v_add_u32 v{D1}, v{D1}, v{CBL}')
        if t: A(f'v_add_u32 v{D1}, {t*4}, v{D1}')
        A('s_bcnt1_i32_b64 s47, exec')
        A(f'v_min_u32 v{LW}, 63, v{LW}')
        A('s_add_u32 s44, s44, s47')
        A(f'v_lshl_add_u32 v{LW}, v{LW}, 3, s46')
        A(f'ds_write_b64 v{LW}, v[{D0}:{D1}]')
        A(f'v_cmpx_lt_i32 vcc, 4, v{rem}')
        A(f's_cbranch_execz {nx}')
        A('s_cmp_ge_u32 s44, 64')
        A(f's_cbranch_scc1 {nx}')
        A(f'v_add_u32 v{D0}, s42, v{D0}')
        A(f'v_subrev_u32 v{rem}, 4, v{rem}')
        A(f's_branch {lp}')
        L(nx)
        A('s_mov_b64 exec, -1')
    A(f'v_lshl_add_u32 v{LW}, v4, 3, s46')
    A(f'ds_read_b64 v[{VLA}:{VLB}], v{LW}')
    A('v_cmp_gt_u32 s[38:39], s44, v4')
    A('s_waitcnt lgkmcnt(0)')
    A(f'v_and_b32 v{LW}, 3, v{VLB}')
    A(f'v_lshrrev_b32 v{VLB}, 2, v{VLB}')
    A(f'v_cndmask_b32 v{LW}, 0, v{LW}, s[38:39]')
    A(f'v_cndmask_b32 v{VLB}, -1, v{VLB}, s[38:39]')
    A(f'v_cmp_lt_u32 s[38:39], 0, v{LW}')
    A(f'v_cmp_lt_u32 s[42:43], 1, v{LW}')
    A(f'v_cmp_lt_u32 vcc, 2, v{LW}')
    A('s_bitcmp1_b32 s3, 0')
    A('s_cselect_b64 s[40:41], vcc, s[38:39]')
    A('s_cselect_b64 s[44:45], s[38:39], vcc')
    A('s_mov_b32 s46, 0')
A('s_mov_b64 s[48:49], 1')
xl(0)
A('s_waitcnt vmcnt(4)')
fill()
chall()
A('s_mov_b32 s33, 0')
A('s_waitcnt vmcnt(3) lgkmcnt(0)')
stamp2()
A('s_barrier')
Gset(0, 0); Gset(0, 1); xg(0)
if OPT['warm'] == 2:
    A('s_cmp_lg_u32 s50, 0')
    A('s_cbranch_scc1 Q_NOWARM')
    A('s_load_dwordx2 s[4:5], s[0:1], 24')
    A('s_load_dwordx2 s[6:7], s[0:1], 40')
    A('s_load_dwordx8 s[92:99], s[0:1], 56')
    A('s_mov_b64 exec, -1')
    A('s_mul_i32 s16, s2, 3200')
    A(f'v_lshl_add_u32 v{VT}, v4, 6, s16')
    A(f'v_min_u32 v{VT}, {E*2-4}, v{VT}')
    A('s_waitcnt lgkmcnt(0)')
    A(f'global_load_dword v125, v{VT}, s[4:5]')
    A('s_load_dword s16, s[6:7], 0')
    for k in range(4): A(f's_load_dword s{16+(k&1)}, s[{92+2*k}:{93+2*k}], 0')
    L('Q_NOWARM')
pf1(1, 1); pf1(1, 2); xl(1)
if OPT['skip_pf']:
    pf1(0, 2); pf1(0, 3); pf1(1, 3); A('s_waitcnt vmcnt(0)')
A('s_waitcnt vmcnt(3) lgkmcnt(0)')
stamp2()
INLOOP[0] = 1
L('Q_LOOP')
for r in range(4):
    ps = r & 1
    if r == 1: stamp2()
    A('s_barrier')
    if r == 1: stamp2()
    if r == (NR - 1) % 4:
        A(f's_cmp_eq_u32 s33, {(NR-1)//4}')
        A(f's_cbranch_scc1 Q_LAST')
    fill()
    chall(r == (NR - 2) % 4)
    nd = OPT['nd']
    hp = OPT['hp']
    Sset(r, 0, w0=nd > 0)
    A('s_waitcnt vmcnt(3)' if nd else 's_waitcnt vmcnt(3) lgkmcnt(0)')
    if r == 1: stamp2()
    A('s_barrier')
    if r == 1: stamp2()
    Gset(r + 1, 0)
    if nd == 2: Gset(r + 1, 1)
    xg(r + 1)
    Sset(r, 1, {int(hp[0]): lambda: pf1(ps, r + 2), int(hp[1]): lambda: (pf1(ps, r + 3), xl(r + 2))}, w0=nd == 2)
    if nd != 2: Gset(r + 1, 1)
    if r == 3:
        A('s_mov_b64 exec, -1')
        A('s_add_u32 s33, s33, 1')
        A('s_add_u32 s46, s46, 4')
        for s_ in range(2):
            for k in range(0, 7): A(f'v_mov_b32 v{OF(s_,k)}, v{OF(s_,k+2)}')
            A(f'v_mov_b32 v{OF(s_,7)}, v{OF(s_,8)}')
    A('s_waitcnt vmcnt(3)' if OPT['nd'] == 2 else 's_waitcnt vmcnt(3) lgkmcnt(0)')
A('s_branch Q_LOOP')
L('Q_LAST')
if OPT['warm'] == 1:
    A('s_cmp_lg_u32 s50, 0')
    A('s_cbranch_scc1 Q_NOWARM')
    A('s_load_dwordx2 s[4:5], s[0:1], 24')
    A('s_load_dwordx2 s[6:7], s[0:1], 40')
    A('s_load_dwordx8 s[56:63], s[0:1], 56' if (NR - 1) % 4 != 0 else 'ERR')
    A('s_mov_b64 exec, -1')
    A('s_mul_i32 s16, s2, 3200')
    A(f'v_lshl_add_u32 v{VT}, v4, 6, s16')
    A(f'v_min_u32 v{VT}, {E*2-4}, v{VT}')
    A('s_waitcnt lgkmcnt(0)')
    A(f'global_load_dword v{VCH}, v{VT}, s[4:5]')
    A('s_load_dword s16, s[6:7], 0')
    for k in range(4): A(f's_load_dword s{17+k}, s[{56+2*k}:{57+2*k}], 0')
    L('Q_NOWARM')
Sset((NR - 1) % 4, 0)
Sset((NR - 1) % 4, 1)
A('s_waitcnt vmcnt(0)')
xs()
A('s_mov_b64 exec, -1')
A('s_waitcnt lgkmcnt(0)')
stamp2()
A('s_barrier')
A('v_lshlrev_b32 v3, 3, v0')
A(f'v_add_u32 v7, {L_A}, v3')
RA = 8
for k in range(7):
    if k == 6: A('s_mov_b64 exec, s[24:25]')
    A(f'ds_read_b64 v[{RA+4*k}:{RA+4*k+1}], v7 offset:{k*8192}')
A('s_mov_b64 exec, -1')
A(f'v_add_u32 v4, {L_ARB}, v7')
for k in range(7):
    if k == 6: A('s_mov_b64 exec, s[24:25]')
    A(f'ds_read_b64 v[{RA+4*k+2}:{RA+4*k+3}], v4 offset:{k*8192}')
A('s_mov_b64 exec, -1')
A('s_lshr_b32 s16, s3, 6'); A(f's_mul_i32 s16, s16, {E*8}')
A('s_and_b32 s17, s3, 63'); A(f's_mul_i32 s17, s17, {CH*8}')
A('s_add_u32 s16, s16, s17'); A(f's_add_u32 s16, s16, {PART_BASE:#x}')
A('v_mov_b32 v5, 0')
A(f's_mov_b32 s36, {f32bits(2.0**-10):#x}')
A(f's_mov_b32 s37, {f32bits(2.0**-13):#x}')
A('s_mov_b32 s38, s37'); A('s_mov_b32 s39, s37')
A('s_sub_i32 s40, s27, 135')
A('v_mov_b32 v6, 1.0')
A('v_ldexp_f32 v6, v6, s40')
A('s_and_b32 s41, s3, 63')
A('s_lshl_b32 s41, s41, 2')
A('s_lshr_b32 s42, s3, 6')
A('s_add_u32 s41, s41, s42')
A('s_lshl_b32 s41, s41, 2')
A(f's_add_u32 s41, s41, {SCL_BASE:#x}')
A('v_cmp_eq_u32 vcc, 0, v0')
A('s_mov_b64 exec, vcc')
A(f'buffer_store_dword v6, v5, s[{S_WS}:{S_WS+3}], s41 offen')
A('s_mov_b64 exec, -1')
X = 40
A('s_mov_b32 s51, 0')
A(f's_mov_b32 s52, {f32bits(0.25):#x}')
A(f's_mov_b32 s56, {f32bits(256.0):#x}')
A('s_mov_b32 s57, 0')
for k in range(7):
    a0, a1, b0, b1 = RA + 4*k, RA + 4*k + 1, RA + 4*k + 2, RA + 4*k + 3
    c = X; P = X + 2; t = X + 4
    A(f's_waitcnt lgkmcnt({max(0,5-k)})')
    if k == 6: A('s_mov_b64 exec, s[24:25]')
    A(f'v_lshrrev_b32 v{c}, 26, v{a0}')
    A(f'v_and_b32 v{a0}, 0x3ffffff, v{a0}')
    A(f'v_mul_u32_u24 v{c}, 49, v{c}')
    A(f'v_and_b32 v{c}, 63, v{c}')
    A(f'v_mad_u64_u32 v[{P}:{P+1}], vcc, v{c}, s28, 0')
    A(f'v_lshlrev_b32 v{t}, 19, v{c}')
    A(f'v_add_u32 v5, v5, v{c}')
    A(f'v_sub_u32 v{a0}, v{a0}, v{t}')
    A(f'v_mul_u32_u24 v{t}, 17, v{c}')
    A(f'v_sub_u32 v{a1}, v{a1}, v{P}')
    A(f'v_lshrrev_b32 v{t}, 6, v{t}')
    A(f'v_sub_u32 v{a1}, v{a1}, v{t}')
    A(f'v_add_u32 v{P+1}, v{P+1}, v{P}')
    A(f'v_sub_co_u32 v{b0}, vcc, v{b0}, v{P}')
    A(f'v_cvt_f32_i32 v{a0}, v{a0}')
    A(f'v_cvt_f32_i32 v{a1}, v{a1}')
    A(f'v_subb_co_u32 v{b1}, vcc, v{b1}, v{P+1}, vcc')
    A(f'v_ashrrev_i32 v{t}, 31, v{b0}')
    A(f'v_cvt_f32_i32 v{b0}, v{b0}')
    A(f'v_sub_u32 v{b1}, v{b1}, v{t}')
    A(f'v_min3_f32 v{c}, abs(v{a0}), abs(v{a1}), abs(v{b0})')
    A(f'v_cvt_f32_i32 v{b1}, v{b1}')
    A(f'v_pk_mul_f32 v[{a0}:{a1}], v[{a0}:{a1}], s[36:37]')
    A(f'v_min_f32 v{c}, abs(v{b1}), v{c}')
    A(f'v_pk_mul_f32 v[{b0}:{b1}], v[{b0}:{b1}], s[38:39]')
    A(f'v_max_f32 v{t}, abs(v{a0}), abs(v{a1})')
    A(f'v_cmp_gt_f32 s[54:55], s56, v{c}')
    A(f'v_cvt_pk_f16_f32 v{a0}, v{a0}, v{a1}')
    A(f'v_max3_f32 v{t}, abs(v{b0}), abs(v{b1}), v{t}')
    A(f'v_cvt_pk_f16_f32 v{a1}, v{b0}, v{b1}')
    A(f'v_cmp_gt_f32 vcc, s52, v{t}')
    A('s_and_b64 s[54:55], s[54:55], exec')
    A('s_bcnt1_i32_b64 s53, s[54:55]')
    A('s_add_u32 s57, s57, s53')
    A('s_and_b64 vcc, vcc, exec')
    A('s_bcnt1_i32_b64 s53, vcc')
    A('s_add_u32 s51, s51, s53')
    A(f'buffer_store_dwordx2 v[{a0}:{a1}], v3, s[{S_WS}:{S_WS+3}], s16 offen {OPT["st_part"]}')
    A('s_add_u32 s16, s16, 8192')
A('s_mov_b64 exec, -1')
A('v_cmp_ne_u32 s[54:55], 0, v125')
dpp_scan('v_add_u32', 5)
A('s_nop 1')
A('v_readlane_b32 s42, v5, 63')
A('s_nop 3')
A('s_lshl_b32 s42, s42, 2')
A('s_add_u32 s42, s42, s32')
A('v_mov_b32 v6, s42')
A('s_cmp_lg_u64 s[54:55], 0')
A('s_cselect_b32 s53, 256, 0')
A('s_add_u32 s51, s51, s53')
A('s_lshl_b32 s57, s57, 16')
A('s_or_b32 s51, s51, s57')
A('v_mov_b32 v7, s51')
A('s_mov_b64 exec, 1')
A('ds_add_u32 v126, v6')
A('ds_add_u32 v126, v7 offset:4')
A('s_mov_b64 exec, -1')
A('s_waitcnt lgkmcnt(0)')
A('s_barrier')
A('ds_read_b64 v[6:7], v126')
A('s_waitcnt lgkmcnt(0)')
A('v_readfirstlane_b32 s42, v6')
A('v_readfirstlane_b32 s43, v7')
A('s_nop 3')
A(f's_cmp_gt_u32 s43, {1563 << 16:#x}')
A('s_cselect_b32 s42, 1, s42')
A('s_and_b32 s43, s43, 0xffff')
A('s_cmp_gt_u32 s43, 195')
A('s_cselect_b32 s42, 1, s42')
if OPT['forcefb'] == 1: A('s_mov_b32 s42, 1')
if OPT['forcefb'] == -1: A('s_mov_b32 s42, 0')
A('s_cmp_eq_u32 s42, 0')
A('s_cbranch_scc1 Q_FIN')
A('s_waitcnt vmcnt(0)')
A('v_mov_b32 v6, 0x80000000')
A('v_mov_b32 v5, 0')
A('v_cmp_eq_u32 vcc, 0, v0')
A('s_mov_b64 exec, vcc')
A(f'buffer_store_dword v6, v5, s[{S_WS}:{S_WS+3}], s41 offen')
A('s_mov_b64 exec, -1')
A('v_lshrrev_b32 v8, 1, v0')
A('v_lshrrev_b32 v9, 2, v0')
A(f'v_mul_u32_u24 v9, {OFS}, v9')
A('v_and_b32 v39, 1, v8')
A('v_lshl_add_u32 v9, v39, 5, v9')
A(f's_mov_b32 s16, {RS}')
A('v_mul_lo_u32 v8, v8, s16')
A('v_and_b32 v10, 1, v0')
for r in range(12, 16): A(f'v_mov_b32 v{r}, 0')
A('v_add_u32 v11, 65536, v2')
A('s_mov_b32 s48, 0')
L('Q_FH')
A('s_barrier')
for j in range(4): A(f'ds_write_b128 v2, v[12:15] offset:{j*16384}')
for j in range(2): A(f'ds_write_b128 v11, v[12:15] offset:{j*16384}')
A('s_mov_b64 exec, s[24:25]')
A(f'ds_write_b128 v11, v[12:15] offset:{2*16384}')
A('s_mov_b64 exec, -1')
A('s_waitcnt lgkmcnt(0)')
A('s_barrier')
A('s_lshl_b32 s49, s3, 6')
A(f's_add_u32 s49, s49, {OFF_BASE:#x}')
A('s_lshr_b32 s50, s3, 6')
A(f's_mul_i32 s50, s50, {NR*CHI*8}')
A('s_mov_b32 s51, 0')
L('Q_FR')
A(f'buffer_load_ushort v16, v9, s[{S_WS}:{S_WS+3}], s49 offen offset:66')
A(f'buffer_load_ushort v17, v9, s[{S_WS}:{S_WS+3}], s49 offen offset:68')
A('s_waitcnt vmcnt(0)')
A('s_bitcmp0_b32 s3, 0')
A('s_cbranch_scc1 Q_FA')
A(f'v_sub_u32 v18, {CM}, v16')
A(f'v_sub_u32 v16, {CM}, v17')
A('v_mov_b32 v17, v18')
L('Q_FA')
A('v_add_u32 v16, v16, v10')
L('Q_FI')
A('v_cmp_lt_u32 vcc, v16, v17')
A('s_and_b64 exec, exec, vcc')
A('s_cbranch_execz Q_FRN')
A('s_mov_b64 s[52:53], exec')
A('v_and_b32 v18, 3, v16')
A('v_lshl_add_u32 v19, v16, 2, v8')
A('v_or_b32 v20, 3, v16')
A('v_lshl_add_u32 v20, v20, 2, v8')
A('v_add_u32 v20, v20, v18')
A(f'buffer_load_dword v21, v19, s[{S_WS}:{S_WS+3}], 0 offen')
A(f'buffer_load_ubyte v22, v20, s[{S_WS}:{S_WS+3}], 0 offen')
A('s_waitcnt vmcnt(0)')
A('v_bfe_u32 v23, v21, 13, 13')
A('v_subrev_u32 v23, s48, v23')
A('s_movk_i32 s16, 3125')
A('v_cmp_gt_u32 vcc, s16, v23')
A('v_cmp_ne_u32 s[54:55], 3, v18')
A('s_and_b64 vcc, vcc, s[54:55]')
A('v_bfe_u32 v24, v21, 0, 13')
A('v_lshlrev_b32 v24, 3, v24')
A('s_and_b64 exec, exec, vcc')
A('s_cbranch_execz Q_FIN2')
A(f'buffer_load_dwordx2 v[26:27], v24, s[{S_M}:{S_M+3}], s50 offen')
A('v_lshlrev_b32 v22, 2, v22')
A('v_lshrrev_b32 v25, 16, v21')
A('v_and_b32 v25, 0xfc00, v25')
A('v_or_b32 v25, v25, v22')
A('v_cvt_f32_f16 v25, v25')
A('v_cvt_f64_f32 v[28:29], v25')
A('v_lshlrev_b32 v23, 3, v23')
A('v_add_u32 v38, 50000, v23')
A('s_waitcnt vmcnt(0)')
A('v_lshlrev_b32 v30, 16, v26'); A('v_and_b32 v32, s30, v26')
A('v_lshlrev_b32 v34, 16, v27'); A('v_and_b32 v36, s30, v27')
for j, r in enumerate((30, 32, 34, 36)):
    A(f'v_cvt_f64_f32 v[{r}:{r+1}], v{r}')
    A(f'v_mul_f64 v[{r}:{r+1}], v[{r}:{r+1}], v[28:29]')
    A(f'ds_add_f64 v{23 if j < 2 else 38}, v[{r}:{r+1}] offset:{(j & 1) * 25000}')
L('Q_FIN2')
A('s_mov_b64 exec, s[52:53]')
A('v_add_u32 v16, 2, v16')
A('s_branch Q_FI')
L('Q_FRN')
A('s_mov_b64 exec, -1')
A('s_add_u32 s49, s49, 2')
A(f's_add_u32 s50, s50, {CHI*8}')
A('s_add_u32 s51, s51, 1')
A(f's_cmp_lt_u32 s51, {NR}')
A('s_cbranch_scc1 Q_FR')
A('s_waitcnt lgkmcnt(0)')
A('s_barrier')
A('s_lshr_b32 s16, s3, 6'); A(f's_mul_i32 s16, s16, {E*8}')
A('s_and_b32 s17, s3, 63'); A(f's_mul_i32 s17, s17, {CH*8}')
A('s_add_u32 s16, s16, s17'); A(f's_add_u32 s16, s16, {PART_BASE:#x}')
A('s_lshl_b32 s17, s48, 3'); A('s_add_u32 s16, s16, s17')
A(f's_sub_u32 s52, s16, {PART_BASE:#x}')
A('s_lshl_b32 s52, s52, 1')
A(f's_add_u32 s52, s52, {P32_BASE:#x}')
A('v_mov_b32 v16, v3')
L('Q_FC')
A('s_movk_i32 s17, 25000')
A('v_cmp_gt_u32 vcc, s17, v16')
A('s_and_b64 exec, exec, vcc')
A('s_cbranch_execz Q_FCD')
A('v_add_u32 v17, 50000, v16')
for j in range(4):
    A(f'ds_read_b64 v[{18+2*j}:{19+2*j}], v{16 if j < 2 else 17} offset:{(j & 1) * 25000}')
A('s_waitcnt lgkmcnt(0)')
for j in range(4): A(f'v_cvt_f32_f64 v{30+j}, v[{18+2*j}:{19+2*j}]')
A('v_lshlrev_b32 v17, 1, v16')
A(f'buffer_store_dwordx4 v[30:33], v17, s[{S_WS}:{S_WS+3}], s52 offen')
A(f'buffer_store_dwordx2 v[12:13], v16, s[{S_WS}:{S_WS+3}], s16 offen')
A('v_add_u32 v16, 8192, v16')
A('s_branch Q_FC')
L('Q_FCD')
A('s_mov_b64 exec, -1')
A('s_add_u32 s48, s48, 3125')
A('s_cmp_lt_u32 s48, 6250')
A('s_cbranch_scc1 Q_FH')
L('Q_FIN')
stamp2()
if OPT['stamp2'] >= 0:
    A('s_waitcnt vmcnt(0)')
    stamp2()
    A('v_readfirstlane_b32 s54, v0')
    A('s_nop 3')
    A(f's_cmp_lg_u32 s2, {OPT["stamp2"]}')
    A('s_cbranch_scc1 Q_END')
    A(f's_cmp_lg_u32 s54, {64*OPT.get("swave", 0)}')
    A('s_cbranch_scc1 Q_END')
    A('s_load_dwordx2 s[4:5], s[0:1], 96')
    A('s_waitcnt lgkmcnt(0)')
    srd(72, 4, 256)
    A('v_readlane_b32 s54, v127, 2')
    A('v_and_b32 v4, 63, v0')
    A('v_lshlrev_b32 v4, 2, v4')
    A('v_subrev_u32 v127, s54, v127')
    A('buffer_store_dword v127, v4, s[72:75], 0 offen')
abs_end(127, 64, 1, 16)
L('Q_END')
A('s_endpgm')

NE = OPT['ne']
khead('fin_kernel')
A(f's_cmp_ge_u32 s2, {G3}')
A('s_cbranch_scc1 F_END')
abs_start(1)
A('s_load_dwordx2 s[4:5], s[0:1], 0')
A('s_load_dwordx2 s[6:7], s[0:1], 104')
A('s_load_dwordx2 s[8:9], s[0:1], 24')
A('s_load_dwordx2 s[10:11], s[0:1], 88')
A('s_load_dwordx2 s[28:29], s[0:1], 40')
A('s_load_dwordx8 s[64:71], s[0:1], 56')
S_M, S_WS, S_DIST, S_O = 12, 16, 20, 24
if not OPT['adj']:
    A(f's_mul_i32 s3, s2, {256*NE}')
    VB = 2
    def R(i, n): return VB + 40 * i + n
    for i in range(NE):
        e, t = R(i, 1), R(i, 2)
        A(f'v_add_u32 v{e}, s3, v0')
        if i: A(f'v_add_u32 v{e}, {256*i}, v{e}')
        A(f'v_lshlrev_b32 v{R(i,3)}, 1, v{e}')
        A(f'v_min_u32 v{t}, {E-1}, v{e}')
        A(f'v_lshlrev_b32 v{R(i,0)}, 3, v{t}')
        A(f'v_mul_hi_u32_u24 v{t}, {MAGIC_DIV:#x}, v{t}')
        A(f'v_lshlrev_b32 v{t}, 4, v{t}')
        A(f'v_lshlrev_b32 v{e}, 3, v{e}')
    A('s_waitcnt lgkmcnt(0)')
    srd(S_DIST, 8, E * 2)
    for i in range(NE):
        A(f'buffer_load_ushort v{R(i,3)}, v{R(i,3)}, s[{S_DIST}:{S_DIST+3}], 0 offen')
    if not OPT['tab']:
        A('s_load_dwordx4 s[28:31], s[28:29], 0')
        A('s_load_dwordx16 s[32:47], s[64:65], 0')
        A('s_load_dwordx16 s[48:63], s[66:67], 0')
    A('s_load_dwordx8 s[72:79], s[70:71], 0')
    A('s_load_dwordx8 s[64:71], s[68:69], 0')
    srd(S_WS, 6, WS_BYTES); srd(S_M, 4, E * 8); srd(S_O, 10, E * 8)
    for i in range(NE):
        A(f's_mov_b32 s4, {SCL_BASE:#x}')
        A(f'buffer_load_dwordx4 v[{R(i,6)}:{R(i,9)}], v{R(i,2)}, s[{S_WS}:{S_WS+3}], s4 offen')
        for p in range(4):
            A(f's_mov_b32 s4, {PART_BASE + p*E*8:#x}')
            A(f'buffer_load_dwordx2 v[{R(i,32+2*p)}:{R(i,33+2*p)}], v{R(i,0)}, s[{S_WS}:{S_WS+3}], s4 offen {OPT["ld_part"]}')
        A(f'buffer_load_dwordx2 v[{R(i,4)}:{R(i,5)}], v{R(i,1)}, s[{S_M}:{S_M+3}], 0 offen')
else:
    assert NE == 2 and not OPT['tab']
    A('s_lshl_b32 s3, s2, 8')
    VB = 2
    PQ, MQ, OQ, SC = 84, 100, 104, 8
    def R(i, n):
        if 32 <= n < 40: return PQ + ((n - 32) // 2) * 4 + 2 * i + (n & 1)
        if n in (4, 5): return MQ + 2 * i + (n - 4)
        if n in (30, 31): return OQ + 2 * i + (n - 30)
        if 6 <= n < 10: return VB + n
        return VB + 40 * i + n
    e, t = R(0, 1), R(0, 2)
    A(f'v_add_u32 v{e}, s3, v0')
    A(f'v_lshlrev_b32 v{R(0,3)}, 2, v{e}')
    A(f'v_min_u32 v{t}, {E//2-1}, v{e}')
    A(f'v_lshlrev_b32 v{R(0,0)}, 4, v{t}')
    A(f'v_lshlrev_b32 v{t}, 1, v{t}')
    A(f'v_mul_hi_u32_u24 v{t}, {MAGIC_DIV:#x}, v{t}')
    A(f'v_lshlrev_b32 v{t}, 4, v{t}')
    A(f'v_lshlrev_b32 v{e}, 4, v{e}')
    A('s_waitcnt lgkmcnt(0)')
    srd(S_DIST, 8, E * 2)
    A(f'buffer_load_dword v{R(0,3)}, v{R(0,3)}, s[{S_DIST}:{S_DIST+3}], 0 offen')
    A('s_load_dwordx4 s[28:31], s[28:29], 0')
    A('s_load_dwordx16 s[32:47], s[64:65], 0')
    A('s_load_dwordx16 s[48:63], s[66:67], 0')
    A('s_load_dwordx8 s[72:79], s[70:71], 0')
    A('s_load_dwordx8 s[64:71], s[68:69], 0')
    srd(S_WS, 6, WS_BYTES); srd(S_M, 4, E * 8); srd(S_O, 10, E * 8)
    for p in range(4):
        A(f's_mov_b32 s4, {PART_BASE + p*E*8:#x}')
        A(f'buffer_load_dwordx4 v[{PQ+4*p}:{PQ+4*p+3}], v{R(0,0)}, s[{S_WS}:{S_WS+3}], s4 offen {OPT["ld_part"]}')
    A(f's_mov_b32 s4, {SCL_BASE:#x}')
    A(f'buffer_load_dwordx4 v[{SC}:{SC+3}], v{t}, s[{S_WS}:{S_WS+3}], s4 offen')
    A(f'buffer_load_dwordx4 v[{MQ}:{MQ+3}], v{e}, s[{S_M}:{S_M+3}], 0 offen')
A('s_mov_b32 s5, 0xffff0000')
A(f's_mov_b32 s8, {f32bits(-10.0):#x}')
A(f's_mov_b32 s9, {f32bits(math.log2(math.e)):#x}')
def sw(base, idx, dst):
    sr = base + idx // 2
    if idx & 1: A(f's_and_b32 s{dst}, s{sr}, 0xffff0000')
    else: A(f's_lshl_b32 s{dst}, s{sr}, 16')
def spk(base, r, d, dst):
    op = 's_pack_hh_b32_b16' if d & 1 else 's_pack_ll_b32_b16'
    A(f'{op} s{dst}, s{base + r*2 + d//2}, s{base + (r+1)*2 + d//2}')
def unp(a, b, t):
    A(f'v_lshlrev_b32 v{a}, 16, v{t}')
    A(f'v_and_b32 v{b}, s5, v{t}')
def rnd2(a, b, t):
    A(f'v_cvt_pk_bf16_f32 v{t}, v{a}, v{b}')
    unp(a, b, t)
if not OPT['tab']:
    if OPT['adj']:
        A('s_waitcnt vmcnt(6) lgkmcnt(0)')
        A(f'v_and_b32 v{R(1,3)}, s5, v{R(0,3)}')
        A(f'v_lshlrev_b32 v{R(0,3)}, 16, v{R(0,3)}')
    else:
        A(f's_waitcnt vmcnt({6*NE}) lgkmcnt(0)')
        for i in range(NE): A(f'v_lshlrev_b32 v{R(i,3)}, 16, v{R(i,3)}')
    for r in range(0, 8, 2):
        sw(28, r, 6); sw(28, r + 1, 7)
        for i in range(NE):
            a_, b_, t = R(i, 14), R(i, 15), R(i, 2)
            A(f'v_subrev_f32 v{a_}, s6, v{R(i,3)}')
            A(f'v_subrev_f32 v{b_}, s7, v{R(i,3)}')
            rnd2(a_, b_, t)
            A(f'v_mul_f32 v{a_}, v{a_}, v{a_}')
            A(f'v_mul_f32 v{b_}, v{b_}, v{b_}')
            rnd2(a_, b_, t)
            A(f'v_mul_f32 v{a_}, s8, v{a_}')
            A(f'v_mul_f32 v{b_}, s8, v{b_}')
            rnd2(a_, b_, t)
            A(f'v_mul_f32 v{a_}, s9, v{a_}')
            A(f'v_mul_f32 v{b_}, s9, v{b_}')
            A(f'v_exp_f32 v{a_}, v{a_}')
            A(f'v_exp_f32 v{b_}, v{b_}')
            A('s_nop 0')
            A(f'v_cvt_pk_bf16_f32 v{R(i,18+r//2)}, v{a_}, v{b_}')
    for r in range(0, 8, 2):
        for base, dst in ((48, 22), (32, 26)):
            for d in range(4):
                spk(base, r, d, 6 + (d & 1))
                for i in range(NE):
                    c = '0' if r == 0 else f'v{R(i,dst+d)}'
                    A(f'v_dot2_f32_bf16 v{R(i,dst+d)}, v{R(i,18+r//2)}, s{6+(d&1)}, {c}')
    A('s_nop 2')
    for i in range(NE):
        rnd2(R(i,26), R(i,27), R(i,2)); rnd2(R(i,28), R(i,29), R(i,2))
else:
    A(f's_waitcnt vmcnt({6*NE})')
    A(f's_mov_b32 s4, {TAB_BASE:#x}')
    for i in range(NE):
        A(f'v_lshlrev_b32 v{R(i,3)}, 5, v{R(i,3)}')
        A(f'buffer_load_dwordx4 v[{R(i,22)}:{R(i,25)}], v{R(i,3)}, s[{S_WS}:{S_WS+3}], s4 offen')
        A(f'buffer_load_dwordx2 v[{R(i,20)}:{R(i,21)}], v{R(i,3)}, s[{S_WS}:{S_WS+3}], s4 offen offset:16')
A(f's_waitcnt vmcnt({2*NE}) lgkmcnt(0)' if OPT['tab'] else 's_waitcnt vmcnt(0)')
for i in range(NE):
    for p in range(4):
        for d in range(4):
            c = '0' if p == 0 else f'v{R(i,14+d)}'
            A(f'v_fma_mix_f32 v{R(i,14+d)}, v{R(i,32+2*p+d//2)}, v{R(i,6+p)}, {c} op_sel:[{d&1},0,0] op_sel_hi:[1,0,0]')
assert NE == 1
A(f'v_or_b32 v{R(0,2)}, v{R(0,6)}, v{R(0,7)}')
A(f'v_or3_b32 v{R(0,2)}, v{R(0,8)}, v{R(0,9)}, v{R(0,2)}')
A(f'v_cmp_gt_i32 vcc, 0, v{R(0,2)}')
A('s_cbranch_vccnz F_P32')
L('F_BACK')
for k in range(4):
    for d in range(4):
        sw(64, k*4 + d, 6 + (d & 1))
        for i in range(NE):
            if k == 0: A(f'v_mul_f32 v{R(i,10+d)}, s{6+(d&1)}, v{R(i,14+k)}')
            else: A(f'v_fmac_f32 v{R(i,10+d)}, s{6+(d&1)}, v{R(i,14+k)}')
if OPT['tab']:
    A('s_waitcnt vmcnt(0)')
    for i in range(NE):
        unp(R(i,26), R(i,27), R(i,20)); unp(R(i,28), R(i,29), R(i,21))
for i in range(NE):
    for d in range(4):
        A(f'v_mul_f32 v{R(i,10+d)}, v{R(i,10+d)}, v{R(i,22+d)}')
    A(f'v_cvt_pk_bf16_f32 v{R(i,18)}, v{R(i,10)}, v{R(i,11)}')
    A(f'v_cvt_pk_bf16_f32 v{R(i,19)}, v{R(i,12)}, v{R(i,13)}')
for k in (0, 2):
    for d in range(4):
        spk(72, k, d, 6 + (d & 1))
        for i in range(NE):
            c = '0' if k == 0 else f'v{R(i,22+d)}'
            A(f'v_dot2_f32_bf16 v{R(i,22+d)}, v{R(i,18+k//2)}, s{6+(d&1)}, {c}')
for i in range(NE):
    unp(R(i,10), R(i,11), R(i,4)); unp(R(i,12), R(i,13), R(i,5))
A('s_nop 0')
for i in range(NE):
    rnd2(R(i,22), R(i,23), R(i,2)); rnd2(R(i,24), R(i,25), R(i,2))
    for d in range(4):
        A(f'v_mul_f32 v{R(i,22+d)}, v{R(i,22+d)}, v{R(i,26+d)}')
    rnd2(R(i,22), R(i,23), R(i,2)); rnd2(R(i,24), R(i,25), R(i,2))
    for d in range(4):
        A(f'v_add_f32 v{R(i,22+d)}, v{R(i,22+d)}, v{R(i,10+d)}')
    A(f'v_cvt_pk_bf16_f32 v{R(i,30)}, v{R(i,22)}, v{R(i,23)}')
    A(f'v_cvt_pk_bf16_f32 v{R(i,31)}, v{R(i,24)}, v{R(i,25)}')
    if not OPT['adj']: A(f'buffer_store_dwordx2 v[{R(i,30)}:{R(i,31)}], v{R(i,1)}, s[{S_O}:{S_O+3}], 0 offen {OPT["st_out"]}')
if OPT['adj']: A(f'buffer_store_dwordx4 v[{OQ}:{OQ+3}], v{R(0,1)}, s[{S_O}:{S_O+3}], 0 offen {OPT["st_out"]}')
L('F_END')
A('s_endpgm')
L('F_P32')
A(f'v_lshlrev_b32 v{R(0,2)}, 1, v{R(0,0)}')
for p in range(4):
    A(f'v_cmp_gt_i32 vcc, 0, v{R(0,6+p)}')
    A(f's_mov_b32 s4, {P32_BASE + p*E*16:#x}')
    A('s_mov_b64 exec, vcc')
    A(f'buffer_load_dwordx4 v[{R(0,32)}:{R(0,35)}], v{R(0,2)}, s[{S_WS}:{S_WS+3}], s4 offen')
    A('s_waitcnt vmcnt(0)')
    for d in range(4): A(f'v_add_f32 v{R(0,14+d)}, v{R(0,14+d)}, v{R(0,32+d)}')
    A('s_mov_b64 exec, -1')
A('s_branch F_BACK')
L('CODE_END')

out.append('.section .rodata,"a"')
for name, vg, sg in (('part_kernel', 128, 102), ('acc_kernel', 128, 102), ('fin_kernel', 108 if OPT['adj'] else 4 + 40*OPT['ne'], 80)):
    out.append('.p2align 6')
    out.append(f'.amdhsa_kernel {name}')
    out.append(f'  .amdhsa_next_free_vgpr {vg}')
    out.append(f'  .amdhsa_next_free_sgpr {sg}')
    out.append(f'  .amdhsa_accum_offset {vg}')
    out.append('  .amdhsa_group_segment_fixed_size 0')
    out.append('  .amdhsa_kernarg_size 112')
    out.append('  .amdhsa_user_sgpr_count 2')
    out.append('  .amdhsa_user_sgpr_kernarg_segment_ptr 1')
    out.append('  .amdhsa_system_sgpr_workgroup_id_x 1')
    out.append('  .amdhsa_float_denorm_mode_32 3')
    out.append('.end_amdhsa_kernel')
open(sys.argv[1], 'w').write('\n'.join(out) + '\n')
```

```python
import struct, sys, math

E = 400000
T = 12800000
CH = 6250
S = 25000
NTILE = 512
NBLK = (S + 2) // 3
RS = 128 * (int([a for a in sys.argv[2:] if a.startswith('rsl=')][0][4:]) if any(a.startswith('rsl=') for a in sys.argv[2:]) else 1042)
OFS = 16448
OFF_BASE = 0x4400000
MAX_BASE = 0x4C00000
SCL_BASE = 0x4C03000
PART_BASE = 0x5000000
P32_BASE = 0x7000000
TAB_BASE = 0x6000000
WS_BYTES = 268435456
MAGIC_DIV = (2**32 + CH - 1) // CH
NR = int([a for a in sys.argv[2:] if a.startswith('NR=')][0][3:]) if any(a.startswith('NR=') for a in sys.argv[2:]) else 14
CHI = (E + 4*NR - 1) // (4*NR)
MAGIC_I = (2**32 + CHI - 1) // CHI
assert MAGIC_I < 2**24 and all((x*MAGIC_I) >> 32 == x // CHI for x in range(0, E, 1))
NBK = (CHI*8 + 1023) // 1024
CM = 33340
assert NR == 14
MINI = S - 6 * 4096
assert NTILE * RS <= OFF_BASE and OFF_BASE + 256 * OFS <= MAX_BASE

OPT = dict(ld_in='nt', st_ws='sc0 sc1', ld_ent='', ld_ch='', st_part='sc0 sc1', ld_part='', NB=2, skip_s=0, skip_g=0, skip_fill=0, skip_e=0,
           stamp=-1, stamp2=-1, prio=1, ilv='2:0,3:1,4:2,5:3', pre=1, npb=1, bps=1, vpos='123456', skip_ch=0, skip_pf=0, pmap=0, cpos=0, epos=1, unpair=0, k2prio=0, pa=2, pb=2, struct=0, forcefb=0, abst=0, wsoff=0, cpf=0, ne=1, pp=0, ilp=0, hp='01', NR=14, nd=1, tab=0, adj=0, st_out='sc0 sc1', warm=1, il=5, cbf=1, rr=1, detp=0, st_mp='sc0 sc1', dst='002211111')
for a in sys.argv[2:]:
    k, v = a.split('=')
    OPT[k] = int(v) if (v.lstrip('-').isdigit() and k not in ('vpos', 'dst', 'hp')) else v.replace('_', ' ')

def f32bits(x): return struct.unpack('<I', struct.pack('<f', x))[0]
out = []
def A(s): out.append('    ' + s)
def L(s): out.append(s + ':')
_lab = [0]
def newlab(p='L'):
    _lab[0] += 1
    return f'{p}_{_lab[0]}'
def srd(d, b, nbytes):
    if nbytes == WS_BYTES and OPT['wsoff']:
        off = OPT['wsoff'] << 20
        A(f's_add_u32 s{d}, s{b}, {off:#x}')
        A(f's_addc_u32 s{d+1}, s{b+1}, 0')
        A(f's_and_b32 s{d+1}, s{d+1}, 0xffff')
        A(f's_mov_b32 s{d+2}, {nbytes - off:#x}')
        A(f's_mov_b32 s{d+3}, 0x00020000')
        return
    A(f's_mov_b32 s{d}, s{b}')
    A(f's_and_b32 s{d+1}, s{b+1}, 0xffff')
    A(f's_mov_b32 s{d+2}, {nbytes:#x}')
    A(f's_mov_b32 s{d+3}, 0x00020000')
def dpp_scan(op, v):
    for sh in (1, 2, 4, 8):
        A('s_nop 1')
        A(f'{op}_dpp v{v}, v{v}, v{v} row_shr:{sh} row_mask:0xf bank_mask:0xf bound_ctrl:0')
    A('s_nop 1')
    A(f'{op}_dpp v{v}, v{v}, v{v} row_bcast:15 row_mask:0xa bank_mask:0xf')
    A('s_nop 1')
    A(f'{op}_dpp v{v}, v{v}, v{v} row_bcast:31 row_mask:0xc bank_mask:0xf')
def khead(name):
    out.append(f'.globl {name}')
    out.append('.p2align 8')
    out.append(f'.type {name},@function')
    L(name)
SD = 'dst_sel:DWORD dst_unused:UNUSED_PAD'
def abs_start(v):
    if not OPT['abst']: return
    A('s_memrealtime s[4:5]')
    A('s_waitcnt lgkmcnt(0)')
    A(f'v_mov_b32 v{v}, s4')
def abs_end(v, sr, kid, wpb):
    if not OPT['abst']: return
    A('s_mov_b64 exec, -1')
    A('s_waitcnt vmcnt(0)')
    A('s_load_dwordx2 s[4:5], s[0:1], 104')
    A('s_memrealtime s[6:7]')
    A('s_waitcnt lgkmcnt(0)')
    srd(sr, 4, WS_BYTES)
    A('v_lshrrev_b32 v1, 6, v0')
    A(f's_mul_i32 s7, s2, {wpb}')
    A('v_add_u32 v1, s7, v1')
    A('v_lshlrev_b32 v1, 3, v1')
    A(f'v_mov_b32 v2, v{v}')
    A('v_mov_b32 v3, s6')
    A(f's_mov_b32 s7, {0xF000000 + kid*65536:#x}')
    A('s_mov_b64 exec, 1')
    A(f'buffer_store_dwordx2 v[2:3], v1, s[{sr}:{sr+3}], s7 offen')

stampn = [0]
def stamp(key):
    if OPT[key] < 0: return
    n = stampn[0]; stampn[0] += 1
    A(OPT.get('clk','s_memtime').replace(' ','_') + ' s[98:99]')
    A('s_waitcnt lgkmcnt(0)')
    A(f's_mov_b32 s{76+n}, s98')
def stamp_flush(key, swave, vz, wave=0):
    if OPT[key] < 0: return
    lab = newlab('STF')
    A(f's_cmp_lg_u32 s2, {OPT[key]}')
    A(f's_cbranch_scc1 {lab}')
    A(f's_cmp_lg_u32 s{swave}, {wave}')
    A(f's_cbranch_scc1 {lab}')
    A('s_load_dwordx2 s[4:5], s[0:1], 96')
    A('s_waitcnt lgkmcnt(0)')
    srd(72, 4, 256)
    A('s_mov_b64 exec, 1')
    A(f'v_mov_b32 v{vz}, 0')
    for n in range(stampn[0]):
        A(f's_sub_u32 s98, s{76+n}, s76')
        A(f'v_mov_b32 v{vz+1}, s98')
        A(f'buffer_store_dword v{vz+1}, v{vz}, s[72:75], 0 offen offset:{4*n}')
        A('s_nop 1')
    L(lab)

L_H, L_SC, L_ST = 0, 16384, 16640
L_X = L_ST
L_W = L_X + NBLK * 4 + 8
LDS1 = L_W + NBLK * 12
assert L_W < 65536 and L_W % 16 == 0
L_ARB, L_A = 50000, NBK*1024
L_SC2 = L_A + 100000
LDS2 = L_SC2 + 64
assert LDS2 <= 163840
MP_BASE = 0x4C10000
CHS = NBK*1024
assert MP_BASE + 4*NR*CHS + CHS <= PART_BASE
G3 = (E + 256*OPT['ne'] - 1) // (256*OPT['ne'])

hdr = open('standalone__molecular_angular_gemnet__graph.s.ref').read().split('; Override launch')[0]
out.append(hdr.rstrip())
out.append(f'; @launch kernel=part_kernel grid=(256,1,1) block=(1024,1,1) lds={LDS1}')
out.append(f'; @launch kernel=acc_kernel grid=(256,1,1) block=(1024,1,1) lds={LDS2}')
out.append(f'; @launch kernel=fin_kernel grid=({G3},1,1) block=(256,1,1) lds=0')
out.append('.amdgcn_target "amdgcn-amd-amdhsa--gfx950"')
out.append('.text')
for _l in """
Algorithm (generated by a hand-written generator script; three launches):
  agg[e] = S[e] * ((sum_t cos(f*angle_t) * m[idx_in_t]) @ w_down),  S = rbf @ w_sbf   (L = 1)
 part_kernel: every workgroup sorts two tiles of 25000 triplets in LDS by (in-part, out-chunk, in-chunk)
   and writes 16-byte blocks of 3 entries (in_local:13, out_local:13, bf16 cos as f16:14), the bin
   boundaries, and an f16 copy of m (scaled, permuted for ds_write_addtid fills).
 acc_kernel: workgroup (in-part p, out-chunk i) streams 14 chunks of m through LDS, gathers rows from LDS and
   accumulates in LDS with 64-bit integer atomics (fixed point + per-edge count).  Counts, range and
   significant bits are checked at the end; otherwise the workgroup redoes its work with f64 atomics.
 fin_kernel: adds the four partial sums and applies the per-edge epilogue.
""".strip('\n').split('\n'): out.append('; ' + _l)

khead('part_kernel')
A('s_cmp_ge_u32 s2, 256')
A('s_cbranch_scc1 P_END')
abs_start(7+0) if False else abs_start(87)
A('s_load_dwordx4 s[4:7], s[0:1], 0')
A('s_load_dwordx2 s[8:9], s[0:1], 16')
A('s_load_dwordx2 s[10:11], s[0:1], 32')
A('s_load_dwordx2 s[12:13], s[0:1], 48')
A('s_load_dwordx2 s[14:15], s[0:1], 104')
S_IN, S_OUT, S_ANG, S_WS, S_M = 16, 20, 24, 28, 32
if OPT['prio']: A('s_setprio 3')
if OPT['cpf'] >= 2:
    A('s_getpc_b64 s[58:59]')
    A('v_lshlrev_b32 v48, 7, v0')
    A('v_cmp_gt_u32 vcc, 88, v0')
    A('s_and_saveexec_b64 s[56:57], vcc')
    A('s_cbranch_execz P_NOSPF')
    A('global_load_dword v87, v48, s[58:59]')
    L('P_NOSPF')
    A('s_mov_b64 exec, s[56:57]')
A('v_lshlrev_b32 v1, 4, v0')
A('v_lshlrev_b32 v2, 3, v0')
A('v_mov_b32 v3, 1')
A('v_mov_b32 v4, 0x10000')
A('v_mov_b32 v5, 0')
A('v_lshlrev_b32 v6, 2, v0')
A('v_lshlrev_b32 v7, 1, v0')
TT = 8
for r in range(4): A(f'v_mov_b32 v{TT+4+r}, 0')
A('v_readfirstlane_b32 s50, v0')
A(f'ds_write_b128 v1, v[{TT+4}:{TT+7}]')
A(f'ds_write_b32 v6, v5 offset:{L_SC}')
A(f's_movk_i32 s42, {MINI}')
A('v_cmp_gt_u32 s[40:41], s42, v0')
A('s_waitcnt lgkmcnt(0)')
A('s_load_dword s36, s[12:13], 0')
srd(S_IN, 6, T * 4); srd(S_OUT, 8, T * 4); srd(S_ANG, 10, T * 2); srd(S_WS, 14, WS_BYTES); srd(S_M, 4, E * 8)
A('s_lshr_b32 s50, s50, 6')
if OPT['il']:
    if OPT['il'] == 1:
        A('s_lshl_b32 s37, s2, 14')
    elif OPT['il'] == 5:
        A(f's_mul_i32 s37, s50, {256*6144 - 1024}')
        A('s_mul_i32 s38, s2, 6144')
        A('s_add_u32 s37, s37, s38')
    elif OPT['il'] == 6:
        A(f's_mul_i32 s37, s50, {6144 - 1024}')
        A(f's_mul_i32 s38, s2, {96*1024}')
        A('s_add_u32 s37, s37, s38')
    elif OPT['il'] == 7:
        A(f's_mul_i32 s37, s2, {96*1024}')
    elif OPT['il'] == 8:
        A('s_lshr_b32 s38, s2, 3')
        A('s_add_u32 s38, s38, s50')
        A('s_and_b32 s38, s38, 15')
        A('s_sub_i32 s38, s38, s50')
        A('s_lshl_b32 s38, s38, 10')
        A('s_lshl_b32 s37, s2, 14')
        A('s_add_i32 s37, s37, s38')
    else:
        G_ = OPT['il']
        A(f's_lshr_b32 s38, s50, {G_-2}')
        A(f's_mul_i32 s37, s38, {255 * (1024 << (G_-2))}')
        A(f's_lshl_b32 s38, s2, {10 + G_ - 2}')
        A('s_add_u32 s37, s37, s38')
    A('s_lshr_b32 s38, s37, 1')
    A(f's_mul_i32 s68, s2, {MINI*4}')
    A(f's_mul_i32 s69, s2, {MINI*2}')
else:
    A(f's_mul_i32 s37, s2, {2*S*4}')
    A(f's_mul_i32 s38, s2, {2*S*2}')
UA = 24
unitA = [(UA + 10*k, UA + 10*k + 4, UA + 10*k + 8) for k in range(6)] + [(84, 85, 86)]
unitB = [(88 + 10*k, 88 + 10*k + 4, 88 + 10*k + 8) for k in range(4)] + [unitA[0], unitA[1], (44, 45, 46)]
vm = []
ldf = OPT['ld_in']
def load_unit(tag, k):
    vi, vo, va = (unitA if tag == 'A' else unitB)[k]
    tile = 0 if tag == 'A' else 1
    if OPT['il'] and k < 6:
        us = {5: 1024, 6: 1024, 7: 16384}.get(OPT['il'], 256 * 16384)
        A(f's_add_u32 s43, s37, {tile*6*256*16384 + k*us}')
        A(f's_add_u32 s44, s38, {tile*6*256*8192 + k*us//2}')
    elif OPT['il']:
        A(f's_add_u32 s43, s68, {12*256*16384 + tile*256*MINI*4}')
        A(f's_add_u32 s44, s69, {12*256*8192 + tile*256*MINI*2}')
    else:
        A(f's_add_u32 s43, s37, {tile*S*4 + k*16384}')
        A(f's_add_u32 s44, s38, {tile*S*2 + k*8192}')
    if k < 6:
        A(f'buffer_load_dwordx4 v[{vo}:{vo+3}], v1, s[{S_OUT}:{S_OUT+3}], s43 offen {ldf}')
        A(f'buffer_load_dwordx4 v[{vi}:{vi+3}], v1, s[{S_IN}:{S_IN+3}], s43 offen {ldf}')
        A(f'buffer_load_dwordx2 v[{va}:{va+1}], v2, s[{S_ANG}:{S_ANG+3}], s44 offen {ldf}')
    else:
        A('s_or_b64 exec, s[40:41], 1')
        A(f'buffer_load_dword v{vo}, v6, s[{S_OUT}:{S_OUT+3}], s43 offen {ldf}')
        A(f'buffer_load_dword v{vi}, v6, s[{S_IN}:{S_IN+3}], s43 offen {ldf}')
        A(f'buffer_load_ushort v{va}, v7, s[{S_ANG}:{S_ANG+3}], s44 offen {ldf}')
        A('s_mov_b64 exec, -1')
    vm.extend([(tag, k)] * 3)
def vwait(tag):
    idx = max(i for i, t in enumerate(vm) if t == tag)
    A(f's_waitcnt vmcnt({min(len(vm)-1-idx, 63)})')
stamp('stamp')
for k in range(OPT['pre']): load_unit('A', k)
A('s_barrier')
A('s_lshl_b32 s39, s2, 4')
A('s_add_u32 s39, s39, s50')
A(f's_sub_u32 s42, s39, {4*NR*NBK}')
A(f's_cmp_ge_u32 s39, {4*NR*NBK}')
A('s_cselect_b32 s39, s42, s39')
A('s_cselect_b32 s70, 1, 0')
A('s_lshl_b32 s45, s39, 10')
A(f's_mul_hi_u32 s42, s39, {(2**32 + NBK - 1)//NBK:#x}')
A(f's_mul_i32 s42, s42, {CHS - CHI*8}')
A('s_sub_u32 s39, s45, s42')
A(f's_add_u32 s45, s45, {MP_BASE:#x}')
A('s_mul_i32 s42, s50, 198656')
A(f'buffer_load_dwordx4 v[88:91], v1, s[{S_M}:{S_M+3}], s42 offen'); vm.append('M')
for k in range(OPT['pre'], 7): load_unit('A', k)
if OPT['prio']: A('s_setprio 0')
_hi = f32bits(1/(2*math.pi)) & 0xFFFFFF00
if OPT['rr']:
    A(f's_mov_b32 s46, {_hi:#x}')
    A(f's_mov_b32 s47, {f32bits(1/(2*math.pi) - struct.unpack("<f", struct.pack("<I", _hi))[0]):#x}')
else:
    A(f's_mov_b32 s46, {f32bits(1/(2*math.pi)):#x}')
    A(f's_mov_b32 s47, {f32bits(1/(2*math.pi)):#x}')
A('s_mov_b32 s48, 0xfc000000')
A('s_mov_b32 s49, 0xffff0000')
A(f's_mov_b32 s51, {(-CH) & 0xffffffff:#x}')
A('s_mov_b32 s52, 0x00020002')
A(f's_movk_i32 s55, {1024-NR}')
A(f's_mov_b32 s54, {(-CHI) & 0xffffffff:#x}')
A('s_mov_b32 s53, 0x55555556')
A('s_waitcnt lgkmcnt(0)')
A('s_lshl_b32 s36, s36, 16')

PT = TT + 11
def process(tag, k):
    vi0, vo0, va0 = (unitA if tag == 'A' else unitB)[k]
    inc = 3 if tag == 'A' else 4
    n = 4 if k < 6 else 1
    vwait((tag, k))
    skip = None
    if k == 6:
        skip = newlab('P_MS')
        A('s_mov_b64 exec, s[40:41]')
        A(f's_cbranch_execz {skip}')
    tj, ti, t1 = PT, PT + 1, PT + 2
    for j in range(n):
        vi, vo = vi0 + j, vo0 + j
        A(f'v_mul_hi_u32_u24 v{tj}, {MAGIC_I:#x}, v{vi}')
        A(f'v_mul_hi_u32_u24 v{ti}, {MAGIC_DIV:#x}, v{vo}')
        A(f'v_mul_u32_u24 v{t1}, {(65536 + NR - 1)//NR}, v{tj}')
        A(f'v_mad_i32_i24 v{vi}, v{tj}, s54, v{vi}')
        A(f'v_mad_i32_i24 v{vo}, v{ti}, s51, v{vo}')
        A(f'v_lshrrev_b32 v{t1}, 16, v{t1}')
        A(f'v_lshl_or_b32 v{vi}, v{vo}, 13, v{vi}')
        A(f'v_lshl_add_u32 v{vo}, v{ti}, 4, v{tj}')
        A(f'v_mad_u32_u24 v{vo}, v{t1}, s55, v{vo}')
        A(f'v_bfe_i32 v{ti}, v{ti}, 0, 1')
        A(f'v_add_lshl_u32 v{vo}, v{vo}, 2, 2')
        A(f'v_bitop3_b32 v{vo}, v{vo}, v{ti}, 60 bitop3:0x78')
        A(f'ds_add_u32 v{vo}, v{inc} offset:{L_H}')
    a0, a1 = PT + 3, PT + 4
    assert a0 % 2 == 0
    npair = (n + 1) // 2
    nf = newlab('P_NF')
    A('s_cmp_eq_u32 s36, 0x3f800000')
    A(f's_cbranch_scc1 {nf}')
    for p in range(npair):
        va = va0 + p
        A(f'v_lshlrev_b32 v{a0}, 16, v{va}')
        A(f'v_and_b32 v{a1}, s49, v{va}')
        A(f'v_mul_f32 v{a0}, s36, v{a0}')
        A(f'v_mul_f32 v{a1}, s36, v{a1}')
        A(f'v_cvt_pk_bf16_f32 v{va}, v{a0}, v{a1}')
    L(nf)
    for p in range(npair):
        va = va0 + p
        A(f'v_lshlrev_b32 v{a0}, 16, v{va}')
        A(f'v_and_b32 v{a1}, s49, v{va}')
        if OPT['rr']:
            A(f'v_mul_f32 v{tj}, s46, v{a0}')
            A(f'v_mul_f32 v{ti}, s46, v{a1}')
            A(f'v_fract_f32 v{tj}, v{tj}')
            A(f'v_fract_f32 v{ti}, v{ti}')
            A(f'v_fmac_f32 v{tj}, s47, v{a0}')
            A(f'v_fmac_f32 v{ti}, s47, v{a1}')
            A(f'v_cos_f32 v{a0}, v{tj}')
            A(f'v_cos_f32 v{a1}, v{ti}')
        else:
            A(f'v_pk_mul_f32 v[{a0}:{a1}], v[{a0}:{a1}], s[46:47]')
            A(f'v_fract_f32 v{a0}, v{a0}')
            A(f'v_fract_f32 v{a1}, v{a1}')
            A(f'v_cos_f32 v{a0}, v{a0}')
            A(f'v_cos_f32 v{a1}, v{a1}')
        A('s_nop 0')
        if OPT['cbf']:
            A(f'v_cvt_pk_bf16_f32 v{va}, v{a0}, v{a1}')
            A(f'v_lshlrev_b32 v{a0}, 16, v{va}')
            A(f'v_and_b32 v{a1}, s49, v{va}')
            A(f'v_cvt_pk_f16_f32 v{va}, v{a0}, v{a1}')
        else:
            A(f'v_cvt_pk_f16_f32 v{va}, v{a0}, v{a1}')
            A(f'v_pk_add_u16 v{va}, v{va}, s52')
        e0, e1 = 2*p, 2*p + 1
        A(f'v_lshlrev_b32 v{a0}, 16, v{va}')
        if e1 < n: A(f'v_and_or_b32 v{vi0+e1}, v{va}, s48, v{vi0+e1}')
        A(f'v_and_or_b32 v{vi0+e0}, v{a0}, s48, v{vi0+e0}')
        A(f'v_lshrrev_b32 v{va}, 2, v{va}')
    if k == 6:
        L(skip)
        A('s_mov_b64 exec, -1')

def maxm():
    vwait('M')
    M = TT + 6
    A('s_mov_b32 s42, 0x7fff7fff')
    for j in range(4): A(f'v_and_b32 v{M+j}, s42, v{88+j}')
    A(f'v_pk_max_u16 v{M}, v{M}, v{M+2}')
    A(f'v_pk_max_u16 v{M+1}, v{M+1}, v{M+3}')
    A(f'v_pk_max_u16 v{M}, v{M}, v{M+1}')
    A(f'v_lshrrev_b32 v{M+1}, 16, v{M}')
    A(f'v_and_b32 v{M}, 0xffff, v{M}')
    A(f'v_max_u32 v{M}, v{M}, v{M+1}')
    dpp_scan('v_max_u32', M)
    A('s_nop 1')
    A(f'v_readlane_b32 s42, v{M}, 63')
    A('s_nop 1')
    A(f'v_mov_b32 v{M}, s42')
    A('s_mov_b64 exec, 1')
    A(f'ds_max_u32 v5, v{M} offset:{L_SC+132}')
    A('s_mov_b64 exec, -1')
def mpload():
    A('v_and_b32 v47, 0xfc, v6')
    for k in range(4):
        A(f'buffer_load_dword v{84+k}, v47, s[{S_M}:{S_M+3}], s39 offen offset:{256*k}'); vm.append('M2')
def mpstore():
    vwait('M2')
    A('s_mov_b32 s42, 0x7fff7fff')
    for j in range(4): A(f'v_and_b32 v{TT+j}, s42, v{84+j}')
    A(f'v_pk_max_u16 v{TT}, v{TT}, v{TT+2}')
    A(f'v_pk_max_u16 v{TT+1}, v{TT+1}, v{TT+3}')
    A(f'v_pk_max_u16 v{TT}, v{TT}, v{TT+1}')
    A('s_add_u32 s42, s71, 1')
    A('s_lshl_b32 s42, s42, 7')
    A(f'v_max_u32_sdwa v{TT}, v{TT}, v{TT} {SD} src0_sel:WORD_0 src1_sel:WORD_1')
    A('s_lshl_b32 s44, s2, 4')
    A('s_add_u32 s44, s44, s50')
    A(f'v_cmp_le_u32 vcc, s42, v{TT}')
    A(f's_add_u32 s44, s44, {MAX_BASE + 4096:#x}')
    A('s_sub_i32 s43, 131, s71')
    A('s_cmp_lg_u64 vcc, 0')
    A('s_cselect_b32 s42, 1, 0')
    A(f'v_mov_b32 v{TT+1}, s42')
    A('s_mov_b64 exec, 1')
    A(f'buffer_store_byte v{TT+1}, v5, s[{S_WS}:{S_WS+3}], s44 offen')
    A('s_mov_b64 exec, -1')
    A('s_cmp_eq_u32 s70, 1')
    A('s_cbranch_scc1 P_NOMP')
    for j in range(4):
        A(f'v_lshlrev_b32 v{PT}, 16, v{84+j}')
        A(f'v_and_b32 v{PT+1}, s49, v{84+j}')
        A(f'v_ldexp_f32 v{PT}, v{PT}, s43')
        A(f'v_ldexp_f32 v{PT+1}, v{PT+1}, s43')
        A(f'v_cvt_pk_f16_f32 v{84+j}, v{PT}, v{PT+1}')
    A('v_and_b32 v47, 0x3f0, v1')
    A(f'buffer_store_dwordx4 v[84:87], v47, s[{S_WS}:{S_WS+3}], s45 offen {OPT["st_mp"]}')
    L('P_NOMP')

def zrow(src, h, tile):
    for j in range(4):
        A(f'v_mul_hi_u32 v{h+8}, v{src+j}, s53')
        A(f'v_add_u32 v{h+10+j}, v{h+8}, v{src+j}')
    A(f'v_lshl_or_b32 v{h+8}, v{h+11}, 16, v{h+10}')
    A(f'v_lshl_or_b32 v{h+9}, v{h+13}, 16, v{h+12}')
    A(f'v_mov_b32_dpp v{h+15}, v{h+13} row_shr:1 row_mask:0xf bank_mask:0xf bound_ctrl:0')
    if tile == 0:
        A(f'v_and_b32 v{h+14}, -32, v2')
        A(f'v_add_u32 v{h+14}, v{h+14}, v2')
    A('s_mov_b32 exec_lo, 0xf0f0f0f0')
    A('s_mov_b32 exec_hi, 0xf0f0f0f0')
    A(f'v_lshl_or_b32 v{h+8}, v{h+11}, 16, v{h+12}')
    A(f'v_lshl_or_b32 v{h+9}, v{h+15}, 16, v{h+10}')
    A(f'v_sub_u32 v{h+8}, {CM*0x10001:#x}, v{h+8}')
    A(f'v_sub_u32 v{h+9}, {CM*0x10001:#x}, v{h+9}')
    if tile == 0: A(f'v_xor_b32 v{h+14}, 24, v{h+14}')
    A('s_mov_b64 exec, -1')
    A(f's_mul_i32 s42, s2, {OFS}')
    A(f's_add_u32 s42, s42, {OFF_BASE:#x}')
    A(f'buffer_store_dwordx2 v[{h+8}:{h+9}], v{h+14}, s[{S_WS}:{S_WS+3}], s42 offen offset:{64+32*tile}')
    vm.append(('OFS', tile))

def scan(tile, scoff):
    h = TT
    A('s_waitcnt lgkmcnt(0)')
    A('s_barrier')
    A(f'ds_read_b128 v[{h}:{h+3}], v1 offset:{L_H}')
    A(f'v_and_b32 v{h+5}, 63, v0')
    A(f'v_cmp_lt_u32 vcc, s50, v{h+5}')
    A(f'v_lshlrev_b32 v{h+5}, 2, v{h+5}')
    A('s_and_b64 s[56:57], vcc, 0xffff')
    A('s_waitcnt lgkmcnt(0)')
    if tile == 1:
        for j in range(4): A(f'v_and_b32 v{h+10+j}, 0xffff, v{h+j}')
        for j in range(4): A(f'v_lshrrev_b32 v{h+j}, 16, v{h+j}')
    for j in range(1, 4): A(f'v_add_u32 v{h+j}, v{h+j-1}, v{h+j}')
    A(f'v_mov_b32 v{h+4}, v{h+3}')
    dpp_scan('v_add_u32', h + 4)
    A('s_nop 1')
    A(f'v_readlane_b32 s42, v{h+4}, 63')
    A('s_nop 1')
    A(f'v_mov_b32 v{h+6}, s42')
    A('s_mov_b64 exec, s[56:57]')
    A(f'ds_add_u32 v{h+5}, v{h+6} offset:{scoff}')
    A('s_mov_b64 exec, -1')
    A('s_lshl_b32 s42, s50, 2')
    A(f'v_mov_b32 v{h+5}, s42')
    A(f'v_sub_u32 v{h+4}, v{h+4}, v{h+3}')
    if tile == 1: zrow(h + 10, h, 0)
    A('s_waitcnt lgkmcnt(0)')
    A('s_barrier')
    A(f'ds_read_b32 v{h+5}, v{h+5} offset:{scoff}')
    if tile == 1: A(f'ds_read_b64 v[{h+6}:{h+7}], v5 offset:{L_SC+128}')
    A('s_waitcnt lgkmcnt(0)')
    if tile == 1: A(f'v_readfirstlane_b32 s71, v{h+7}')
    A(f'v_add_u32 v{h+4}, v{h+4}, v{h+5}')
    if tile == 1:
        for j in range(4): A(f'v_add_u32 v{h+10+j}, v{h+4}, v{h+j}')
    for j in (3, 2, 1): A(f'v_add_u32 v{h+j}, v{h+4}, v{h+j-1}')
    A(f'v_mov_b32 v{h}, v{h+4}')
    A(f'ds_write_b128 v1, v[{h}:{h+3}] offset:{L_H}')
    if tile == 1:
        A('s_lshr_b32 s71, s71, 7')
        A('s_add_u32 s71, s71, 1')
        zrow(h + 10, h, 1)
        done = newlab('P_SC')
        A('s_cmp_lg_u32 s50, 0')
        A(f's_cbranch_scc1 {done}')
        A('s_mov_b64 exec, 1')
        A('s_lshl_b32 s42, s2, 2')
        A(f's_add_u32 s42, s42, {MAX_BASE + 1024:#x}')
        A(f'v_mov_b32 v{h+5}, s71')
        A(f'buffer_store_dword v{h+5}, v5, s[{S_WS}:{S_WS+3}], s42 offen')
        A('s_mov_b64 exec, -1')
        L(done)
    A('s_waitcnt lgkmcnt(0)')
    A('s_barrier')

def scatter(tag, after_wait, after_fin):
    units = unitA if tag == 'A' else unitB
    lg = []
    def issue(k):
        vi0, vo0, _ = units[k]
        n = 4 if k < 6 else 1
        if k == 6: A('s_mov_b64 exec, s[40:41]')
        for j in range(n):
            A(f'ds_add_rtn_u32 v{TT+4*(k&1)+j}, v{vo0+j}, v3 offset:{L_H}')
            lg.append(('R', k))
        if k == 6: A('s_mov_b64 exec, -1')
    def fin(k):
        vi0, vo0, va0 = units[k]
        n = 4 if k < 6 else 1
        if k == 6: A('s_mov_b64 exec, s[40:41]')
        for j in range(n):
            t = TT + 4*(k & 1) + j
            q, a = TT + 8, TT + 9 + (j & 1)
            if tag == 'A': A(f'v_and_b32 v{t}, 0xffff, v{t}')
            A(f'v_mul_hi_u32 v{q}, v{t}, s53')
            A(f'v_lshlrev_b32 v{a}, 2, v{t}')
            A(f'v_add_u32 v{t}, v{q}, v{t}')
            A(f'ds_write_b32 v{a}, v{vi0+j} offset:{L_W}')
            A(f'ds_write_b8{"_d16_hi" if j & 1 else ""} v{t}, v{va0+j//2} offset:{L_X}')
            lg.extend([('W', k)] * 2)
        if k == 6: A('s_mov_b64 exec, -1')
    issue(0)
    for k in range(7):
        if k + 1 < 7: issue(k + 1)
        idx = max(i for i, t in enumerate(lg) if t == ('R', k) or t == ('W', k - 1))
        ny = sum(1 for t in lg[idx+1:] if t[1] != 6)
        A(f's_waitcnt lgkmcnt({min(ny, 15)})')
        if k in after_wait: after_wait[k]()
        fin(k)
        if k in after_fin:
            after_fin[k]()
            lg.extend([('H', k)] * 4)
    A('s_waitcnt lgkmcnt(0)')
    A('s_barrier')

RC = (NBLK + 1023) // 1024
lastc = NBLK - (RC - 1) * 1024
def copyout(tile, regs, ar):
    A(f's_movk_i32 s42, {lastc}')
    A('v_cmp_gt_u32 s[56:57], s42, v0')
    A(f'v_mul_u32_u24 v{ar[0]}, 12, v0')
    A(f'v_add_u32 v{ar[0]}, {L_W}, v{ar[0]}')
    A(f's_mul_i32 s42, s2, {2*RS}')
    if tile: A(f's_add_u32 s42, s42, {RS}')
    def rd(j):
        r = regs[j]
        if j == RC - 1: A('s_mov_b64 exec, s[56:57]')
        A(f'ds_read2_b32 v[{r}:{r+1}], v{ar[0]} offset0:0 offset1:1')
        A(f'ds_read_b32 v{r+2}, v{ar[0]} offset:8')
        A(f'ds_read_b32 v{r+3}, v6 offset:{L_X + j*4096}')
        if j == RC - 1: A('s_mov_b64 exec, -1')
        else: A(f'v_add_u32 v{ar[0]}, {12*1024}, v{ar[0]}')
    LA = 4
    for j in range(LA): rd(j)
    for j in range(RC):
        if j + LA < RC: rd(j + LA)
        A(f's_waitcnt lgkmcnt({3*max(0, min(LA, RC-2-j))})')
        if j == RC - 1: A('s_mov_b64 exec, s[56:57]')
        A(f'buffer_store_dwordx4 v[{regs[j]}:{regs[j]+3}], v1, s[{S_WS}:{S_WS+3}], s42 offen {OPT["st_ws"]}')
        if j < RC - 1: vm.append(('ST', tile, j))
        if j < RC - 1: A('s_add_u32 s42, s42, 16384')
    A('s_mov_b64 exec, -1')

stamp('stamp')
process('A', 0)
stamp('stamp')
maxm()
for k in range(1, 7): process('A', k)
stamp('stamp')
NPB = OPT['npb']
for k in range(NPB): load_unit('B', k)
scan(0, L_SC)
stamp('stamp')
ilv = dict((int(x.split(':')[0]), int(x.split(':')[1])) for x in OPT['ilv'].split(',')) if OPT['ilv'] else {}
pend = list(range(NPB, 7))
aw = {}
for k in range(7):
    take = []
    while pend and len(take) < OPT['bps'] and (pend[0] < 4 or k >= pend[0] - 3):
        take.append(pend.pop(0))
    if k == 6: take += pend; pend = []
    if take: aw[k] = (lambda tk=take: [load_unit('B', b) for b in tk])
scatter('A', aw, {k: (lambda b=b: process('B', b)) for k, b in ilv.items()})
def cpf_code():
    if OPT['cpf']:
        A('s_cmp_lg_u32 s50, 15')
        A('s_cbranch_scc1 P_NOCPF')
        A('s_getpc_b64 s[58:59]')
        L('P_PC')
        A('s_add_u32 s58, s58, acc_kernel-P_PC')
        A('s_addc_u32 s59, s59, 0')
        A('v_and_b32 v19, 63, v0')
        A('v_lshlrev_b32 v19, 7, v19')
        for j in range(3):
            A(f'v_min_u32 v20, CODE_END-acc_kernel-4, v19')
            A(f'global_load_dword v21, v20, s[58:59]')
            A('v_add_u32 v19, 8192, v19')
        L('P_NOCPF')
stamp('stamp')
CR = [48 + 4*j for j in range(RC)]
mpload()
if OPT['dst'] == '':
    copyout(0, CR, [TT, TT + 1, TT + 2])
    stamp('stamp')
    for k in range(7):
        if k not in ilv.values(): process('B', k)
    stamp('stamp')
    scan(1, L_SC + 64)
    cpf_code()
    stamp('stamp')
    scatter('B', {}, {})
else:
    A(f's_movk_i32 s42, {lastc}')
    A('v_cmp_gt_u32 s[64:65], s42, v0')
    A(f'v_mul_u32_u24 v{TT}, 12, v0')
    A(f'v_add_u32 v{TT}, {L_W}, v{TT}')
    A(f's_mul_i32 s66, s2, {2*RS}')
    for j in range(RC):
        r = CR[j]
        if j == RC - 1: A('s_mov_b64 exec, s[64:65]')
        A(f'ds_read2_b32 v[{r}:{r+1}], v{TT} offset0:0 offset1:1')
        A(f'ds_read_b32 v{r+2}, v{TT} offset:8')
        A(f'ds_read_b32 v{r+3}, v6 offset:{L_X + j*4096}')
        if j == RC - 1: A('s_mov_b64 exec, -1')
        else: A(f'v_add_u32 v{TT}, {12*1024}, v{TT}')
    nst = [0]
    def st(n):
        for _ in range(n):
            j = nst[0]
            if j >= RC: return
            nst[0] += 1
            if j == RC - 1: A('s_mov_b64 exec, s[64:65]')
            A(f'buffer_store_dwordx4 v[{CR[j]}:{CR[j]+3}], v1, s[{S_WS}:{S_WS+3}], s66 offen {OPT["st_ws"]}')
            if j < RC - 1:
                vm.append(('ST', 0, j)); A('s_add_u32 s66, s66, 16384')
            else: A('s_mov_b64 exec, -1')
    sch = [int(c) for c in OPT['dst']]
    rest = [k for k in range(7) if k not in ilv.values()]
    process('B', rest[0])
    A('s_waitcnt lgkmcnt(0)')
    st(sch[0])
    stamp('stamp')
    for k in rest[1:]: process('B', k)
    st(sch[1])
    stamp('stamp')
    scan(1, L_SC + 64)
    cpf_code()
    stamp('stamp')
    scatter('B', {k: (lambda n=sch[2+k]: st(n)) for k in range(7)}, {})
    assert nst[0] == RC
mpstore()

def tabgen():
    A('s_cmp_ge_u32 s50, 4')
    A('s_cbranch_scc1 P_NOTAB')
    A('s_load_dwordx2 s[4:5], s[0:1], 40')
    A('s_load_dwordx4 s[8:11], s[0:1], 56')
    A('s_lshl_b32 s42, s2, 8')
    D, a_, b_, t, RB, O = 8, 9, 10, 11, 12, 88
    A(f'v_add_u32 v{D}, s42, v0')
    A(f'v_lshlrev_b32 v16, 5, v{D}')
    A(f'v_lshlrev_b32 v{D}, 16, v{D}')
    A('s_waitcnt lgkmcnt(0)')
    A('s_load_dwordx4 s[4:7], s[4:5], 0')
    A('s_load_dwordx16 s[68:83], s[8:9], 0')
    A('s_load_dwordx16 s[84:99], s[10:11], 0')
    A(f's_mov_b32 s44, {f32bits(-10.0):#x}')
    A(f's_mov_b32 s45, {f32bits(math.log2(math.e)):#x}')
    def rnd():
        A(f'v_cvt_pk_bf16_f32 v{t}, v{a_}, v{b_}')
        A(f'v_lshlrev_b32 v{a_}, 16, v{t}')
        A(f'v_and_b32 v{b_}, s49, v{t}')
    A('s_waitcnt lgkmcnt(0)')
    for r in range(0, 8, 2):
        A(f's_lshl_b32 s42, s{4+r//2}, 16')
        A(f's_and_b32 s43, s{4+r//2}, 0xffff0000')
        A(f'v_subrev_f32 v{a_}, s42, v{D}')
        A(f'v_subrev_f32 v{b_}, s43, v{D}')
        rnd()
        A(f'v_mul_f32 v{a_}, v{a_}, v{a_}')
        A(f'v_mul_f32 v{b_}, v{b_}, v{b_}')
        rnd()
        A(f'v_mul_f32 v{a_}, s44, v{a_}')
        A(f'v_mul_f32 v{b_}, s44, v{b_}')
        rnd()
        A(f'v_mul_f32 v{a_}, s45, v{a_}')
        A(f'v_mul_f32 v{b_}, s45, v{b_}')
        A(f'v_exp_f32 v{a_}, v{a_}')
        A(f'v_exp_f32 v{b_}, v{b_}')
        A('s_nop 0')
        A(f'v_cvt_pk_bf16_f32 v{RB+r//2}, v{a_}, v{b_}')
    for r in range(0, 8, 2):
        for base, dst in ((84, O), (68, O + 4)):
            for d in range(4):
                op = 's_pack_hh_b32_b16' if d & 1 else 's_pack_ll_b32_b16'
                A(f'{op} s{42+(d&1)}, s{base + r*2 + d//2}, s{base + (r+1)*2 + d//2}')
                c = '0' if r == 0 else f'v{dst+d}'
                A(f'v_dot2_f32_bf16 v{dst+d}, v{RB+r//2}, s{42+(d&1)}, {c}')
    A('s_nop 2')
    A(f'v_cvt_pk_bf16_f32 v{O+4}, v{O+4}, v{O+5}')
    A(f'v_cvt_pk_bf16_f32 v{O+5}, v{O+6}, v{O+7}')
    A(f's_mov_b32 s42, {TAB_BASE:#x}')
    A(f'buffer_store_dwordx4 v[{O}:{O+3}], v16, s[{S_WS}:{S_WS+3}], s42 offen')
    A(f'buffer_store_dwordx4 v[{O+4}:{O+7}], v16, s[{S_WS}:{S_WS+3}], s42 offen offset:16')
    L('P_NOTAB')
stamp('stamp')
copyout(1, [48 + 4*j for j in range(RC)], [TT, TT + 1, TT + 2])
if OPT['tab']: tabgen()
stamp('stamp')
if OPT['stamp'] >= 0: A('s_waitcnt vmcnt(0)')
stamp('stamp')
if OPT.get('allst', 0):
    A(f's_cmp_lg_u32 s50, {OPT.get("swave", 0)}')
    A('s_cbranch_scc1 P_END')
    A('s_lshl_b32 s42, s2, 6')
    A('s_add_u32 s42, s42, 0xF000000')
    A('s_mov_b64 exec, 1')
    for n in range(stampn[0]):
        A(f'v_mov_b32 v{TT+1}, s{76+n}')
        A(f'buffer_store_dword v{TT+1}, v5, s[{S_WS}:{S_WS+3}], s42 offen offset:{4*n}')
        A('s_nop 1')
else: stamp_flush('stamp', 50, TT, OPT.get('swave', 0))
abs_end(87, 64, 0, 16)
L('P_END')
A('s_endpgm')

st2n = [0]
def stamp2():
    if OPT['stamp2'] < 0: return
    n = st2n[0]; st2n[0] += 1
    A(OPT.get('clk','s_memtime').replace(' ','_') + ' s[4:5]')
    A('s_waitcnt lgkmcnt(0)')
    A(f'v_writelane_b32 v127, s4, {n+2}')
khead('acc_kernel')
A('s_cmp_ge_u32 s2, 256')
A('s_cbranch_scc1 Q_END')
abs_start(127)
A('s_load_dwordx2 s[4:5], s[0:1], 0')
A('s_load_dwordx2 s[6:7], s[0:1], 104')
if OPT['pp']: A('s_setprio 3')
S_M, S_WS = 8, 12
A('s_and_b32 s3, s2, 7')
A('s_lshl_b32 s3, s3, 5')
A('s_lshr_b32 s16, s2, 3')
A('s_add_u32 s3, s3, s16')
VTB = 5; VOF = 8
VEB = VOF + 18
def EB(slot, s): return VEB + (slot * 2 + s) * 4
VG = VEB + 32
GP = [0]
def G(s, e): return VG + ((s + (GP[0] if s else 0)) * 3 + e) * 2
VCH = VG + 18
VT = VCH + 16
VA = VT + 6
VSH, VFC = VT + 10, VT + 11
VLA, VLB = VT + 12, VT + 13
VFB = VT + 14
VFG = VFB + 4
VL2 = VFG + 6
V3 = VL2
assert VFB % 2 == 0 and VL2 + 2 <= 126
def OF(s, k): return VOF + 9*s + k
def MK(slot, s, e): return 54 + slot * 12 + (s * 3 + e) * 2
A('v_and_b32 v1, 3, v0')
A('v_lshlrev_b32 v2, 4, v0')
A('v_lshrrev_b32 v3, 2, v0')
A('v_and_b32 v4, 1, v0')
A(f'v_mul_u32_u24 v{VT}, {OFS}, v3')
A(f'v_lshl_add_u32 v{VT+1}, v1, 4, v{VT}')
A(f'v_lshlrev_b32 v{VT+2}, 2, v0')
if not OPT['abst']: A('v_mov_b32 v127, 0')
A('s_lshl_b32 s17, s3, 6')
A(f's_add_u32 s17, s17, {OFF_BASE:#x}')
A(f's_mov_b32 s19, {MAX_BASE + 4096:#x}')
A('s_lshr_b32 s20, s3, 6')
A(f's_mul_i32 s20, s20, {NR*CHS}')
A(f's_add_u32 s20, s20, {MP_BASE:#x}')
A('v_cmp_gt_u32 s[22:23], 64, v0')
A('v_readfirstlane_b32 s21, v0')
A('s_nop 3')
A('s_lshl_b32 s50, s21, 4')
A('s_mov_b32 m0, s50')
A('s_waitcnt lgkmcnt(0)')
srd(S_M, 4, E * 8); srd(S_WS, 6, WS_BYTES)
A('s_lshl_b32 s16, s2, 2')
A(f's_add_u32 s16, s16, {MAX_BASE + 1024:#x}')
A('s_load_dword s27, s[6:7], s16')
TO = VG
A(f'buffer_load_dwordx4 v[{TO}:{TO+3}], v{VT+1}, s[{S_WS}:{S_WS+3}], s17 offen offset:64')
A(f'buffer_load_dword v125, v{VT+2}, s[{S_WS}:{S_WS+3}], s19 offen')
if OPT['pp']: A('s_setprio 1' if OPT['pp'] == 2 else 's_setprio 2')
stamp2()
INLOOP = [0]
ool = []
def chall(lastchk=False):
    sk = newlab('Q_C')
    if lastchk:
        A(f's_cmp_eq_u32 s33, {(NR-2)//4}')
        A('s_cselect_b64 exec, 1, -1')
    else: A('s_mov_b64 exec, -1')
    A(f's_cmp_ge_u32 s50, {(NBK-48)*1024}')
    A(f's_cbranch_scc1 {sk}')
    A(f's_add_u32 s21, s20, {3*16384}')
    if not (OPT['skip_ch'] and INLOOP[0]): A(f'buffer_load_dwordx4 v[{VCH+12}:{VCH+15}], v2, s[{S_WS}:{S_WS+3}], s21 offen {OPT["ld_ch"]}')
    L(sk)
    for j in range(3):
        A(f's_add_u32 s21, s20, {j*16384}')
        if not (OPT['skip_ch'] and INLOOP[0]): A(f'buffer_load_dwordx4 v[{VCH+4*j}:{VCH+4*j+3}], v2, s[{S_WS}:{S_WS+3}], s21 offen {OPT["ld_ch"]}')
    A(f's_add_u32 s20, s20, {CHS}')
def fill():
    if OPT['skip_fill']: return
    sk = newlab('Q_F')
    A('s_mov_b64 exec, -1')
    for j in range(4):
        if j == 3:
            A(f's_cmp_ge_u32 s50, {(NBK-48)*1024}')
            A(f's_cbranch_scc1 {sk}')
        for k in range(4): A(f'ds_write_addtid_b32 v{VCH+4*j+k} offset:{j*16384+256*k}')
    L(sk)
chall()
A(f's_mov_b32 s16, {2*RS}')
A(f'v_mul_lo_u32 v{VTB}, v3, s16')
A('s_bitcmp1_b32 s3, 0')
A('s_cselect_b32 s51, -4, 4')
A('s_cselect_b32 s52, -1, 1')
A('s_cselect_b32 s53, 3, 0')
A(f's_cselect_b32 s16, {4*(CM-1)}, 0')
A(f'v_add_u32 v{VTB}, s16, v{VTB}')
A(f'v_add_u32 v{VTB+1}, {RS}, v{VTB}')
A('v_cmp_eq_u32 s[36:37], 3, v1')
A('v_and_b32 v4, 63, v0')
A('v_cmp_lt_u32 s[38:39], 1, v1')
A('v_lshl_add_u32 v1, v1, 2, s53')
A('s_mov_b32 s44, 0')
A('s_lshr_b32 s45, s3, 6')
A(f's_mul_i32 s45, s45, {NR*CHI*8}')
A(f'v_add_u32 v3, {L_A}, v2')
z = VEB + 28
for r in range(4): A(f'v_mov_b32 v{z+r}, 0')
for j in range(4): A(f'ds_write_b128 v3, v[{z}:{z+3}] offset:{j*16384}')
A(f'v_add_u32 v{VT+6}, 65536, v3')
for j in range(2): A(f'ds_write_b128 v{VT+6}, v[{z}:{z+3}] offset:{j*16384}')
A('s_movk_i32 s16, 106')
A('v_cmp_gt_u32 s[24:25], s16, v0')
A('s_mov_b64 exec, s[24:25]')
A(f'ds_write_b128 v{VT+6}, v[{z}:{z+3}] offset:{2*16384}')
A('s_mov_b64 exec, -1')
A(f'v_mov_b32 v126, {L_SC2}')
VONE = VSH
A('s_mov_b64 exec, 1')
A(f'ds_write_b128 v126, v[{z}:{z+3}]')
A('s_mov_b64 exec, -1')
A('s_mov_b32 s30, 0xffff0000')
A(f's_mov_b32 s31, {L_A}')
A('s_mov_b32 s35, 0xfc000000')
A(f'v_mov_b32 v{VSH}, 18')
A(f'v_mov_b32 v{V3}, 3')
A(f'v_mov_b32 v{VFC}, 0xfffc')
A('s_waitcnt vmcnt(3)')
for s_ in range(2):
    for k in range(8):
        ln = 2*s_ + (1 if k >= 4 else 0)
        A(f'v_mov_b32_dpp v{OF(s_,k)}, v{TO + k % 4} quad_perm:[{ln},{ln},{ln},{ln}] row_mask:0xf bank_mask:0xf')
for s_ in range(2):
    A(f'v_lshrrev_b32 v{OF(s_,8)}, 16, v{OF(s_,7)}')
    A(f'v_lshl_or_b32 v{OF(s_,8)}, v{OF(s_,8)}, 16, v{OF(s_,8)}')

def pfcalc(s_, r, masks=True):
    slot = r % 4
    r0, h0, r1, h1 = (r + 1) >> 1, (r + 1) & 1, (r + 2) >> 1, r & 1
    y, d, ln, ad = VT, VT + 7, VT + 8, VA
    a, b = OF(s_, r0), OF(s_, r1)
    m = [MK(slot, s_, k) for k in range(3)]
    A('s_mov_b64 exec, -1')
    A(f'v_and_b32_sdwa v{y}, v{a}, v{VFC} {SD} src0_sel:WORD_{h0} src1_sel:DWORD')
    A(f'v_sub_u32_sdwa v{ln}, v{b}, v{a} {SD} src0_sel:WORD_{h1} src1_sel:WORD_{h0}')
    A(f'v_add_u32 v{y}, v{y}, v1')
    A(f'v_sub_u32_sdwa v{d}, v{y}, v{a} {SD} src0_sel:DWORD src1_sel:WORD_{h0}')
    A(f'v_mad_i32_i24 v{ad}, v{y}, s51, v{VTB+s_}')
    if masks:
        A(f'v_cmp_lt_u32 s[{m[0]}:{m[0]+1}], v{d}, v{ln}')
        A(f'v_add_u32 v{d}, s52, v{d}')
        A(f'v_cmp_lt_u32 s[{m[1]}:{m[1]+1}], v{d}, v{ln}')
        A(f'v_add_u32 v{d}, s52, v{d}')
        A(f'v_cmp_lt_u32 s[{m[2]}:{m[2]+1}], v{d}, v{ln}')
def pf1(s_, r, live=False, det=True):
    slot = r % 4
    m = [MK(slot, s_, k) for k in range(3)]
    e = EB(slot, s_)
    pfcalc(s_, r)
    A(f's_or_b64 vcc, s[{m[0]}:{m[0]+1}], s[{m[1]}:{m[1]+1}]')
    A(f's_or_b64 vcc, vcc, s[{m[2]}:{m[2]+1}]')
    if live: A('s_and_b64 vcc, vcc, s[18:19]')
    A('s_or_b64 exec, vcc, 1' if not OPT['skip_pf'] else 's_mov_b64 exec, -1')
    if not (OPT['skip_pf'] and INLOOP[0]): A(f'buffer_load_dwordx4 v[{e}:{e+3}], v{VA}, s[{S_WS}:{S_WS+3}], 0 offen {OPT["ld_ent"]}')
def xl(r):
    A('s_mov_b64 exec, -1')
    A(f's_add_u32 s47, s46, {r}')
    A(f'v_cmp_eq_u32 vcc, s47, v{VLB}')
    A('s_or_b64 exec, vcc, s[48:49]')
    A(f'buffer_load_dwordx4 v[{VFB}:{VFB+3}], v{VLA}, s[{S_WS}:{S_WS+3}], 0 offen')
def xg(r):
    A('s_mov_b64 exec, -1')
    A(f's_add_u32 s47, s46, {r}')
    A(f'v_cmpx_eq_u32 vcc, s47, v{VLB}')
    for e in range(3): gaddr(VFB + e, VFG + 2*e)
    for e in range(3):
        A(f's_and_b64 exec, vcc, s[{40+2*e}:{41+2*e}]')
        if not OPT['skip_g']: A(f'ds_read_b64 v[{VFG+2*e}:{VFG+2*e+1}], v{VFG+2*e}')
def xs():
    for e in range(3):
        A(f's_mov_b64 exec, s[{40+2*e}:{41+2*e}]')
        scat1(VFB + e, VFB + 3, e, VFG + 2*e)

def gath1(w, g):
    A(f'v_lshlrev_b32 v{g}, 3, v{w}')
    A(f'v_and_b32 v{g}, 0xfff8, v{g}')
    if not OPT['skip_g']: A(f'ds_read_b64 v[{g}:{g+1}], v{g}')

def scat1(w, xr, e, g, wait=False):
    x, ad = VT, VT + 1
    p0, p2 = VT + 2, VT + 4
    A(f'v_lshlrev_b32_sdwa v{x}, v{VSH}, v{xr} {SD} src0_sel:DWORD src1_sel:BYTE_{e}')
    A(f'v_bfe_u32 v{ad}, v{w}, 13, 13')
    A(f'v_and_or_b32 v{x}, v{w}, s35, v{x}')
    A(f'v_lshl_add_u32 v{ad}, v{ad}, 3, s31')
    A(f'v_fma_mix_f32 v{p2}, v{g+1}, v{x}, s28 op_sel:[0,1,0] op_sel_hi:[1,1,0]')
    A(f'v_fma_mix_f32 v{p2+1}, v{g+1}, v{x}, s28 op_sel:[1,1,0] op_sel_hi:[1,1,0]')
    if wait: A('s_waitcnt lgkmcnt(0)')
    A(f'ds_add_u64 v{ad}, v[{p2}:{p2+1}] offset:{L_ARB}')
    A(f'v_fma_mix_f32 v{p0}, v{g}, v{x}, s26 op_sel:[0,1,0] op_sel_hi:[1,1,0]')
    A(f'v_fma_mix_f32 v{p0+1}, v{g}, v{x}, s28 op_sel:[1,1,0] op_sel_hi:[1,1,0]')
    A(f'ds_add_u64 v{ad}, v[{p0}:{p0+1}]')

def gaddr(w, g):
    A(f'v_lshlrev_b32_sdwa v{g}, v{V3}, v{w} dst_sel:WORD_0 dst_unused:UNUSED_PAD src0_sel:DWORD src1_sel:DWORD')
def Gset(r, s_):
    slot = r % 4
    GP[0] = (r & 1) if OPT['nd'] else 0
    A('s_mov_b64 exec, -1')
    for e in range(3): gaddr(EB(slot, s_) + e, G(s_, e))
    for e in range(3):
        m = MK(slot, s_, e); g = G(s_, e)
        A(f's_mov_b64 exec, s[{m}:{m+1}]')
        if not OPT['skip_g']: A(f'ds_read_b64 v[{g}:{g+1}], v{g}')
def Sset(r, s_, hooks={}, w0=False):
    slot = r % 4
    GP[0] = (r & 1) if OPT['nd'] else 0
    for e in range(3):
        if e in hooks: hooks[e]()
        m = MK(slot, s_, e)
        A(f's_mov_b64 exec, s[{m}:{m+1}]')
        b = EB(slot, s_)
        if not OPT['skip_s']: scat1(b + e, b + 3, e, G(s_, e), w0 and e == 0)

A(f'v_mov_b32 v{VT+1}, 0')
pf1(0, 0, det=False); pf1(1, 0, det=False); pf1(0, 1, det=False)
A('s_mov_b64 exec, -1')
A('s_bitcmp1_b32 s3, 0')
A(f's_cselect_b32 s16, {CM}, 0')
A(f'v_mov_b32 v{VT+8}, s16')
for s_ in range(2):
    A(f'v_lshrrev_b32 v{VT+2}, 16, v{OF(s_,0)}')
    A(f'v_lshrrev_b32 v{VT+3}, 16, v{OF(s_,8)}')
    A(f'v_mad_i32_i24 v{VT+2}, v{VT+2}, s52, v{VT+8}')
    A(f'v_mad_i32_i24 v{VT+3}, v{VT+3}, s52, v{VT+8}')
    A(f'v_sub_u32 v{VT+4+s_}, v{VT+2}, v{VT+3}')
    A(f'v_lshrrev_b32 v{VT+2}, 2, v{VT+2}')
    A(f'v_lshrrev_b32 v{VT+3}, 2, v{VT+3}')
    A(f'v_sub_u32 v{VT+2}, v{VT+3}, v{VT+2}')
    A(f'v_add_u32 v{VT+4+s_}, v{VT+4+s_}, v{VT+2}')
A(f'v_add_u32 v{VT+2}, v{VT+4}, v{VT+5}')
dpp_scan('v_add_u32', VT + 2)
A('s_nop 1')
A(f'v_readlane_b32 s32, v{VT+2}, 63')
A('s_nop 3')
A('s_mul_i32 s32, s32, s52')
A(f's_mov_b32 s26, {f32bits(544.0):#x}')
A(f's_mov_b32 s28, {f32bits(96.0):#x}')
if OPT['detp'] == 0:
    PV, TBL, CBL, LW = VFB, VFB + 1, VFB + 2, VFB + 3
    D0, D1 = VFG, VFG + 1
    A('s_mov_b64 exec, -1')
    A(f'v_mov_b32_dpp v{PV}, v{TO+3} quad_perm:[0,0,2,2] row_mask:0xf bank_mask:0xf')
    A(f'v_and_b32 v{CBL}, 1, v0')
    A(f'v_cmp_eq_u32 vcc, 0, v{CBL}')
    A(f'v_lshlrev_b32 v{LW}, 16, v{TO}')
    A(f'v_lshl_add_u32 v{CBL}, v{CBL}, 5, -8')
    A(f'v_cndmask_b32 v{PV}, v{PV}, v{LW}, vcc')
    A(f'v_cndmask_b32 v{TBL}, v{VTB}, v{VTB+1}, s[38:39]')
    A('s_add_u32 s42, s53, 16')
    A('s_mul_i32 s42, s42, s51')
    A(f'v_add_u32 v{TBL}, s42, v{TBL}')
    A('s_lshl_b32 s42, s51, 2')
    A('s_and_b32 s43, s3, 1')
    A('s_add_u32 s43, s43, 16')
    A('s_mov_b32 s46, s50')
    for t in range(8):
        sa, ha = (PV, 1) if t == 0 else (TO + (t - 1) // 2, (t - 1) & 1)
        sb, hb = TO + t // 2, t & 1
        nx = newlab('Q_D'); lp = newlab('Q_D')
        y, rem = VT, VT + 1
        A(f'v_and_b32_sdwa v{y}, v{sa}, v{VFC} {SD} src0_sel:WORD_{ha} src1_sel:DWORD')
        A(f'v_sub_u32_sdwa v{rem}, v{sb}, v{y} {SD} src0_sel:WORD_{hb} src1_sel:DWORD')
        A(f'v_cmpx_lt_i32 vcc, 16, v{rem}')
        A(f's_cbranch_execz {nx}')
        A(f'v_mad_i32_i24 v{D0}, v{y}, s51, v{TBL}')
        A(f'v_subrev_u32 v{rem}, s43, v{rem}')
        L(lp)
        A(f'v_mbcnt_lo_u32_b32 v{LW}, exec_lo, 0')
        A(f'v_mbcnt_hi_u32_b32 v{LW}, exec_hi, v{LW}')
        A(f'v_min_u32 v{D1}, 3, v{rem}')
        A(f'v_add_u32 v{LW}, s44, v{LW}')
        A(f'v_add3_u32 v{D1}, v{D1}, v{CBL}, s47' if False else f'v_add_u32 v{D1}, v{D1}, v{CBL}')
        if t: A(f'v_add_u32 v{D1}, {t*4}, v{D1}')
        A('s_bcnt1_i32_b64 s47, exec')
        A(f'v_min_u32 v{LW}, 63, v{LW}')
        A('s_add_u32 s44, s44, s47')
        A(f'v_lshl_add_u32 v{LW}, v{LW}, 3, s46')
        A(f'ds_write_b64 v{LW}, v[{D0}:{D1}]')
        A(f'v_cmpx_lt_i32 vcc, 4, v{rem}')
        A(f's_cbranch_execz {nx}')
        A('s_cmp_ge_u32 s44, 64')
        A(f's_cbranch_scc1 {nx}')
        A(f'v_add_u32 v{D0}, s42, v{D0}')
        A(f'v_subrev_u32 v{rem}, 4, v{rem}')
        A(f's_branch {lp}')
        L(nx)
        A('s_mov_b64 exec, -1')
    A(f'v_lshl_add_u32 v{LW}, v4, 3, s46')
    A(f'ds_read_b64 v[{VLA}:{VLB}], v{LW}')
    A('v_cmp_gt_u32 s[38:39], s44, v4')
    A('s_waitcnt lgkmcnt(0)')
    A(f'v_and_b32 v{LW}, 3, v{VLB}')
    A(f'v_lshrrev_b32 v{VLB}, 2, v{VLB}')
    A(f'v_cndmask_b32 v{LW}, 0, v{LW}, s[38:39]')
    A(f'v_cndmask_b32 v{VLB}, -1, v{VLB}, s[38:39]')
    A(f'v_cmp_lt_u32 s[38:39], 0, v{LW}')
    A(f'v_cmp_lt_u32 s[42:43], 1, v{LW}')
    A(f'v_cmp_lt_u32 vcc, 2, v{LW}')
    A('s_bitcmp1_b32 s3, 0')
    A('s_cselect_b64 s[40:41], vcc, s[38:39]')
    A('s_cselect_b64 s[44:45], s[38:39], vcc')
    A('s_mov_b32 s46, 0')
A('s_mov_b64 s[48:49], 1')
xl(0)
A('s_waitcnt vmcnt(4)')
fill()
chall()
A('s_mov_b32 s33, 0')
A('s_waitcnt vmcnt(3) lgkmcnt(0)')
stamp2()
A('s_barrier')
Gset(0, 0); Gset(0, 1); xg(0)
if OPT['warm'] == 2:
    A('s_cmp_lg_u32 s50, 0')
    A('s_cbranch_scc1 Q_NOWARM')
    A('s_load_dwordx2 s[4:5], s[0:1], 24')
    A('s_load_dwordx2 s[6:7], s[0:1], 40')
    A('s_load_dwordx8 s[92:99], s[0:1], 56')
    A('s_mov_b64 exec, -1')
    A('s_mul_i32 s16, s2, 3200')
    A(f'v_lshl_add_u32 v{VT}, v4, 6, s16')
    A(f'v_min_u32 v{VT}, {E*2-4}, v{VT}')
    A('s_waitcnt lgkmcnt(0)')
    A(f'global_load_dword v125, v{VT}, s[4:5]')
    A('s_load_dword s16, s[6:7], 0')
    for k in range(4): A(f's_load_dword s{16+(k&1)}, s[{92+2*k}:{93+2*k}], 0')
    L('Q_NOWARM')
pf1(1, 1); pf1(1, 2); xl(1)
if OPT['skip_pf']:
    pf1(0, 2); pf1(0, 3); pf1(1, 3); A('s_waitcnt vmcnt(0)')
A('s_waitcnt vmcnt(3) lgkmcnt(0)')
stamp2()
INLOOP[0] = 1
L('Q_LOOP')
for r in range(4):
    ps = r & 1
    if r == 1: stamp2()
    A('s_barrier')
    if r == 1: stamp2()
    if r == (NR - 1) % 4:
        A(f's_cmp_eq_u32 s33, {(NR-1)//4}')
        A(f's_cbranch_scc1 Q_LAST')
    fill()
    chall(r == (NR - 2) % 4)
    nd = OPT['nd']
    hp = OPT['hp']
    Sset(r, 0, w0=nd > 0)
    A('s_waitcnt vmcnt(3)' if nd else 's_waitcnt vmcnt(3) lgkmcnt(0)')
    if r == 1: stamp2()
    A('s_barrier')
    if r == 1: stamp2()
    Gset(r + 1, 0)
    if nd == 2: Gset(r + 1, 1)
    xg(r + 1)
    Sset(r, 1, {int(hp[0]): lambda: pf1(ps, r + 2), int(hp[1]): lambda: (pf1(ps, r + 3), xl(r + 2))}, w0=nd == 2)
    if nd != 2: Gset(r + 1, 1)
    if r == 3:
        A('s_mov_b64 exec, -1')
        A('s_add_u32 s33, s33, 1')
        A('s_add_u32 s46, s46, 4')
        for s_ in range(2):
            for k in range(0, 7): A(f'v_mov_b32 v{OF(s_,k)}, v{OF(s_,k+2)}')
            A(f'v_mov_b32 v{OF(s_,7)}, v{OF(s_,8)}')
    A('s_waitcnt vmcnt(3)' if OPT['nd'] == 2 else 's_waitcnt vmcnt(3) lgkmcnt(0)')
A('s_branch Q_LOOP')
L('Q_LAST')
if OPT['warm'] == 1:
    A('s_cmp_lg_u32 s50, 0')
    A('s_cbranch_scc1 Q_NOWARM')
    A('s_load_dwordx2 s[4:5], s[0:1], 24')
    A('s_load_dwordx2 s[6:7], s[0:1], 40')
    A('s_load_dwordx8 s[56:63], s[0:1], 56' if (NR - 1) % 4 != 0 else 'ERR')
    A('s_mov_b64 exec, -1')
    A('s_mul_i32 s16, s2, 3200')
    A(f'v_lshl_add_u32 v{VT}, v4, 6, s16')
    A(f'v_min_u32 v{VT}, {E*2-4}, v{VT}')
    A('s_waitcnt lgkmcnt(0)')
    A(f'global_load_dword v{VCH}, v{VT}, s[4:5]')
    A('s_load_dword s16, s[6:7], 0')
    for k in range(4): A(f's_load_dword s{17+k}, s[{56+2*k}:{57+2*k}], 0')
    L('Q_NOWARM')
Sset((NR - 1) % 4, 0)
Sset((NR - 1) % 4, 1)
A('s_waitcnt vmcnt(0)')
xs()
A('s_mov_b64 exec, -1')
A('s_waitcnt lgkmcnt(0)')
stamp2()
A('s_barrier')
A('v_lshlrev_b32 v3, 3, v0')
A(f'v_add_u32 v7, {L_A}, v3')
RA = 8
for k in range(7):
    if k == 6: A('s_mov_b64 exec, s[24:25]')
    A(f'ds_read_b64 v[{RA+4*k}:{RA+4*k+1}], v7 offset:{k*8192}')
A('s_mov_b64 exec, -1')
A(f'v_add_u32 v4, {L_ARB}, v7')
for k in range(7):
    if k == 6: A('s_mov_b64 exec, s[24:25]')
    A(f'ds_read_b64 v[{RA+4*k+2}:{RA+4*k+3}], v4 offset:{k*8192}')
A('s_mov_b64 exec, -1')
A('s_lshr_b32 s16, s3, 6'); A(f's_mul_i32 s16, s16, {E*8}')
A('s_and_b32 s17, s3, 63'); A(f's_mul_i32 s17, s17, {CH*8}')
A('s_add_u32 s16, s16, s17'); A(f's_add_u32 s16, s16, {PART_BASE:#x}')
A('v_mov_b32 v5, 0')
A(f's_mov_b32 s36, {f32bits(2.0**-10):#x}')
A(f's_mov_b32 s37, {f32bits(2.0**-13):#x}')
A('s_mov_b32 s38, s37'); A('s_mov_b32 s39, s37')
A('s_sub_i32 s40, s27, 135')
A('v_mov_b32 v6, 1.0')
A('v_ldexp_f32 v6, v6, s40')
A('s_and_b32 s41, s3, 63')
A('s_lshl_b32 s41, s41, 2')
A('s_lshr_b32 s42, s3, 6')
A('s_add_u32 s41, s41, s42')
A('s_lshl_b32 s41, s41, 2')
A(f's_add_u32 s41, s41, {SCL_BASE:#x}')
A('v_cmp_eq_u32 vcc, 0, v0')
A('s_mov_b64 exec, vcc')
A(f'buffer_store_dword v6, v5, s[{S_WS}:{S_WS+3}], s41 offen')
A('s_mov_b64 exec, -1')
X = 40
A('s_mov_b32 s51, 0')
A(f's_mov_b32 s52, {f32bits(0.25):#x}')
A(f's_mov_b32 s56, {f32bits(256.0):#x}')
A('s_mov_b32 s57, 0')
for k in range(7):
    a0, a1, b0, b1 = RA + 4*k, RA + 4*k + 1, RA + 4*k + 2, RA + 4*k + 3
    c = X; P = X + 2; t = X + 4
    A(f's_waitcnt lgkmcnt({max(0,5-k)})')
    if k == 6: A('s_mov_b64 exec, s[24:25]')
    A(f'v_lshrrev_b32 v{c}, 26, v{a0}')
    A(f'v_and_b32 v{a0}, 0x3ffffff, v{a0}')
    A(f'v_mul_u32_u24 v{c}, 49, v{c}')
    A(f'v_and_b32 v{c}, 63, v{c}')
    A(f'v_mad_u64_u32 v[{P}:{P+1}], vcc, v{c}, s28, 0')
    A(f'v_lshlrev_b32 v{t}, 19, v{c}')
    A(f'v_add_u32 v5, v5, v{c}')
    A(f'v_sub_u32 v{a0}, v{a0}, v{t}')
    A(f'v_mul_u32_u24 v{t}, 17, v{c}')
    A(f'v_sub_u32 v{a1}, v{a1}, v{P}')
    A(f'v_lshrrev_b32 v{t}, 6, v{t}')
    A(f'v_sub_u32 v{a1}, v{a1}, v{t}')
    A(f'v_add_u32 v{P+1}, v{P+1}, v{P}')
    A(f'v_sub_co_u32 v{b0}, vcc, v{b0}, v{P}')
    A(f'v_cvt_f32_i32 v{a0}, v{a0}')
    A(f'v_cvt_f32_i32 v{a1}, v{a1}')
    A(f'v_subb_co_u32 v{b1}, vcc, v{b1}, v{P+1}, vcc')
    A(f'v_ashrrev_i32 v{t}, 31, v{b0}')
    A(f'v_cvt_f32_i32 v{b0}, v{b0}')
    A(f'v_sub_u32 v{b1}, v{b1}, v{t}')
    A(f'v_min3_f32 v{c}, abs(v{a0}), abs(v{a1}), abs(v{b0})')
    A(f'v_cvt_f32_i32 v{b1}, v{b1}')
    A(f'v_pk_mul_f32 v[{a0}:{a1}], v[{a0}:{a1}], s[36:37]')
    A(f'v_min_f32 v{c}, abs(v{b1}), v{c}')
    A(f'v_pk_mul_f32 v[{b0}:{b1}], v[{b0}:{b1}], s[38:39]')
    A(f'v_max_f32 v{t}, abs(v{a0}), abs(v{a1})')
    A(f'v_cmp_gt_f32 s[54:55], s56, v{c}')
    A(f'v_cvt_pk_f16_f32 v{a0}, v{a0}, v{a1}')
    A(f'v_max3_f32 v{t}, abs(v{b0}), abs(v{b1}), v{t}')
    A(f'v_cvt_pk_f16_f32 v{a1}, v{b0}, v{b1}')
    A(f'v_cmp_gt_f32 vcc, s52, v{t}')
    A('s_and_b64 s[54:55], s[54:55], exec')
    A('s_bcnt1_i32_b64 s53, s[54:55]')
    A('s_add_u32 s57, s57, s53')
    A('s_and_b64 vcc, vcc, exec')
    A('s_bcnt1_i32_b64 s53, vcc')
    A('s_add_u32 s51, s51, s53')
    A(f'buffer_store_dwordx2 v[{a0}:{a1}], v3, s[{S_WS}:{S_WS+3}], s16 offen {OPT["st_part"]}')
    A('s_add_u32 s16, s16, 8192')
A('s_mov_b64 exec, -1')
A('v_cmp_ne_u32 s[54:55], 0, v125')
dpp_scan('v_add_u32', 5)
A('s_nop 1')
A('v_readlane_b32 s42, v5, 63')
A('s_nop 3')
A('s_lshl_b32 s42, s42, 2')
A('s_add_u32 s42, s42, s32')
A('v_mov_b32 v6, s42')
A('s_cmp_lg_u64 s[54:55], 0')
A('s_cselect_b32 s53, 256, 0')
A('s_add_u32 s51, s51, s53')
A('s_lshl_b32 s57, s57, 16')
A('s_or_b32 s51, s51, s57')
A('v_mov_b32 v7, s51')
A('s_mov_b64 exec, 1')
A('ds_add_u32 v126, v6')
A('ds_add_u32 v126, v7 offset:4')
A('s_mov_b64 exec, -1')
A('s_waitcnt lgkmcnt(0)')
A('s_barrier')
A('ds_read_b64 v[6:7], v126')
A('s_waitcnt lgkmcnt(0)')
A('v_readfirstlane_b32 s42, v6')
A('v_readfirstlane_b32 s43, v7')
A('s_nop 3')
A(f's_cmp_gt_u32 s43, {1563 << 16:#x}')
A('s_cselect_b32 s42, 1, s42')
A('s_and_b32 s43, s43, 0xffff')
A('s_cmp_gt_u32 s43, 195')
A('s_cselect_b32 s42, 1, s42')
if OPT['forcefb'] == 1: A('s_mov_b32 s42, 1')
if OPT['forcefb'] == -1: A('s_mov_b32 s42, 0')
A('s_cmp_eq_u32 s42, 0')
A('s_cbranch_scc1 Q_FIN')
A('s_waitcnt vmcnt(0)')
A('v_mov_b32 v6, 0x80000000')
A('v_mov_b32 v5, 0')
A('v_cmp_eq_u32 vcc, 0, v0')
A('s_mov_b64 exec, vcc')
A(f'buffer_store_dword v6, v5, s[{S_WS}:{S_WS+3}], s41 offen')
A('s_mov_b64 exec, -1')
A('v_lshrrev_b32 v8, 1, v0')
A('v_lshrrev_b32 v9, 2, v0')
A(f'v_mul_u32_u24 v9, {OFS}, v9')
A('v_and_b32 v39, 1, v8')
A('v_lshl_add_u32 v9, v39, 5, v9')
A(f's_mov_b32 s16, {RS}')
A('v_mul_lo_u32 v8, v8, s16')
A('v_and_b32 v10, 1, v0')
for r in range(12, 16): A(f'v_mov_b32 v{r}, 0')
A('v_add_u32 v11, 65536, v2')
A('s_mov_b32 s48, 0')
L('Q_FH')
A('s_barrier')
for j in range(4): A(f'ds_write_b128 v2, v[12:15] offset:{j*16384}')
for j in range(2): A(f'ds_write_b128 v11, v[12:15] offset:{j*16384}')
A('s_mov_b64 exec, s[24:25]')
A(f'ds_write_b128 v11, v[12:15] offset:{2*16384}')
A('s_mov_b64 exec, -1')
A('s_waitcnt lgkmcnt(0)')
A('s_barrier')
A('s_lshl_b32 s49, s3, 6')
A(f's_add_u32 s49, s49, {OFF_BASE:#x}')
A('s_lshr_b32 s50, s3, 6')
A(f's_mul_i32 s50, s50, {NR*CHI*8}')
A('s_mov_b32 s51, 0')
L('Q_FR')
A(f'buffer_load_ushort v16, v9, s[{S_WS}:{S_WS+3}], s49 offen offset:66')
A(f'buffer_load_ushort v17, v9, s[{S_WS}:{S_WS+3}], s49 offen offset:68')
A('s_waitcnt vmcnt(0)')
A('s_bitcmp0_b32 s3, 0')
A('s_cbranch_scc1 Q_FA')
A(f'v_sub_u32 v18, {CM}, v16')
A(f'v_sub_u32 v16, {CM}, v17')
A('v_mov_b32 v17, v18')
L('Q_FA')
A('v_add_u32 v16, v16, v10')
L('Q_FI')
A('v_cmp_lt_u32 vcc, v16, v17')
A('s_and_b64 exec, exec, vcc')
A('s_cbranch_execz Q_FRN')
A('s_mov_b64 s[52:53], exec')
A('v_and_b32 v18, 3, v16')
A('v_lshl_add_u32 v19, v16, 2, v8')
A('v_or_b32 v20, 3, v16')
A('v_lshl_add_u32 v20, v20, 2, v8')
A('v_add_u32 v20, v20, v18')
A(f'buffer_load_dword v21, v19, s[{S_WS}:{S_WS+3}], 0 offen')
A(f'buffer_load_ubyte v22, v20, s[{S_WS}:{S_WS+3}], 0 offen')
A('s_waitcnt vmcnt(0)')
A('v_bfe_u32 v23, v21, 13, 13')
A('v_subrev_u32 v23, s48, v23')
A('s_movk_i32 s16, 3125')
A('v_cmp_gt_u32 vcc, s16, v23')
A('v_cmp_ne_u32 s[54:55], 3, v18')
A('s_and_b64 vcc, vcc, s[54:55]')
A('v_bfe_u32 v24, v21, 0, 13')
A('v_lshlrev_b32 v24, 3, v24')
A('s_and_b64 exec, exec, vcc')
A('s_cbranch_execz Q_FIN2')
A(f'buffer_load_dwordx2 v[26:27], v24, s[{S_M}:{S_M+3}], s50 offen')
A('v_lshlrev_b32 v22, 2, v22')
A('v_lshrrev_b32 v25, 16, v21')
A('v_and_b32 v25, 0xfc00, v25')
A('v_or_b32 v25, v25, v22')
A('v_cvt_f32_f16 v25, v25')
A('v_cvt_f64_f32 v[28:29], v25')
A('v_lshlrev_b32 v23, 3, v23')
A('v_add_u32 v38, 50000, v23')
A('s_waitcnt vmcnt(0)')
A('v_lshlrev_b32 v30, 16, v26'); A('v_and_b32 v32, s30, v26')
A('v_lshlrev_b32 v34, 16, v27'); A('v_and_b32 v36, s30, v27')
for j, r in enumerate((30, 32, 34, 36)):
    A(f'v_cvt_f64_f32 v[{r}:{r+1}], v{r}')
    A(f'v_mul_f64 v[{r}:{r+1}], v[{r}:{r+1}], v[28:29]')
    A(f'ds_add_f64 v{23 if j < 2 else 38}, v[{r}:{r+1}] offset:{(j & 1) * 25000}')
L('Q_FIN2')
A('s_mov_b64 exec, s[52:53]')
A('v_add_u32 v16, 2, v16')
A('s_branch Q_FI')
L('Q_FRN')
A('s_mov_b64 exec, -1')
A('s_add_u32 s49, s49, 2')
A(f's_add_u32 s50, s50, {CHI*8}')
A('s_add_u32 s51, s51, 1')
A(f's_cmp_lt_u32 s51, {NR}')
A('s_cbranch_scc1 Q_FR')
A('s_waitcnt lgkmcnt(0)')
A('s_barrier')
A('s_lshr_b32 s16, s3, 6'); A(f's_mul_i32 s16, s16, {E*8}')
A('s_and_b32 s17, s3, 63'); A(f's_mul_i32 s17, s17, {CH*8}')
A('s_add_u32 s16, s16, s17'); A(f's_add_u32 s16, s16, {PART_BASE:#x}')
A('s_lshl_b32 s17, s48, 3'); A('s_add_u32 s16, s16, s17')
A(f's_sub_u32 s52, s16, {PART_BASE:#x}')
A('s_lshl_b32 s52, s52, 1')
A(f's_add_u32 s52, s52, {P32_BASE:#x}')
A('v_mov_b32 v16, v3')
L('Q_FC')
A('s_movk_i32 s17, 25000')
A('v_cmp_gt_u32 vcc, s17, v16')
A('s_and_b64 exec, exec, vcc')
A('s_cbranch_execz Q_FCD')
A('v_add_u32 v17, 50000, v16')
for j in range(4):
    A(f'ds_read_b64 v[{18+2*j}:{19+2*j}], v{16 if j < 2 else 17} offset:{(j & 1) * 25000}')
A('s_waitcnt lgkmcnt(0)')
for j in range(4): A(f'v_cvt_f32_f64 v{30+j}, v[{18+2*j}:{19+2*j}]')
A('v_lshlrev_b32 v17, 1, v16')
A(f'buffer_store_dwordx4 v[30:33], v17, s[{S_WS}:{S_WS+3}], s52 offen')
A(f'buffer_store_dwordx2 v[12:13], v16, s[{S_WS}:{S_WS+3}], s16 offen')
A('v_add_u32 v16, 8192, v16')
A('s_branch Q_FC')
L('Q_FCD')
A('s_mov_b64 exec, -1')
A('s_add_u32 s48, s48, 3125')
A('s_cmp_lt_u32 s48, 6250')
A('s_cbranch_scc1 Q_FH')
L('Q_FIN')
stamp2()
if OPT['stamp2'] >= 0:
    A('s_waitcnt vmcnt(0)')
    stamp2()
    A('v_readfirstlane_b32 s54, v0')
    A('s_nop 3')
    A(f's_cmp_lg_u32 s2, {OPT["stamp2"]}')
    A('s_cbranch_scc1 Q_END')
    A(f's_cmp_lg_u32 s54, {64*OPT.get("swave", 0)}')
    A('s_cbranch_scc1 Q_END')
    A('s_load_dwordx2 s[4:5], s[0:1], 96')
    A('s_waitcnt lgkmcnt(0)')
    srd(72, 4, 256)
    A('v_readlane_b32 s54, v127, 2')
    A('v_and_b32 v4, 63, v0')
    A('v_lshlrev_b32 v4, 2, v4')
    A('v_subrev_u32 v127, s54, v127')
    A('buffer_store_dword v127, v4, s[72:75], 0 offen')
abs_end(127, 64, 1, 16)
L('Q_END')
A('s_endpgm')

NE = OPT['ne']
khead('fin_kernel')
A(f's_cmp_ge_u32 s2, {G3}')
A('s_cbranch_scc1 F_END')
abs_start(1)
A('s_load_dwordx2 s[4:5], s[0:1], 0')
A('s_load_dwordx2 s[6:7], s[0:1], 104')
A('s_load_dwordx2 s[8:9], s[0:1], 24')
A('s_load_dwordx2 s[10:11], s[0:1], 88')
A('s_load_dwordx2 s[28:29], s[0:1], 40')
A('s_load_dwordx8 s[64:71], s[0:1], 56')
S_M, S_WS, S_DIST, S_O = 12, 16, 20, 24
if not OPT['adj']:
    A(f's_mul_i32 s3, s2, {256*NE}')
    VB = 2
    def R(i, n): return VB + 40 * i + n
    for i in range(NE):
        e, t = R(i, 1), R(i, 2)
        A(f'v_add_u32 v{e}, s3, v0')
        if i: A(f'v_add_u32 v{e}, {256*i}, v{e}')
        A(f'v_lshlrev_b32 v{R(i,3)}, 1, v{e}')
        A(f'v_min_u32 v{t}, {E-1}, v{e}')
        A(f'v_lshlrev_b32 v{R(i,0)}, 3, v{t}')
        A(f'v_mul_hi_u32_u24 v{t}, {MAGIC_DIV:#x}, v{t}')
        A(f'v_lshlrev_b32 v{t}, 4, v{t}')
        A(f'v_lshlrev_b32 v{e}, 3, v{e}')
    A('s_waitcnt lgkmcnt(0)')
    srd(S_DIST, 8, E * 2)
    for i in range(NE):
        A(f'buffer_load_ushort v{R(i,3)}, v{R(i,3)}, s[{S_DIST}:{S_DIST+3}], 0 offen')
    if not OPT['tab']:
        A('s_load_dwordx4 s[28:31], s[28:29], 0')
        A('s_load_dwordx16 s[32:47], s[64:65], 0')
        A('s_load_dwordx16 s[48:63], s[66:67], 0')
    A('s_load_dwordx8 s[72:79], s[70:71], 0')
    A('s_load_dwordx8 s[64:71], s[68:69], 0')
    srd(S_WS, 6, WS_BYTES); srd(S_M, 4, E * 8); srd(S_O, 10, E * 8)
    for i in range(NE):
        A(f's_mov_b32 s4, {SCL_BASE:#x}')
        A(f'buffer_load_dwordx4 v[{R(i,6)}:{R(i,9)}], v{R(i,2)}, s[{S_WS}:{S_WS+3}], s4 offen')
        for p in range(4):
            A(f's_mov_b32 s4, {PART_BASE + p*E*8:#x}')
            A(f'buffer_load_dwordx2 v[{R(i,32+2*p)}:{R(i,33+2*p)}], v{R(i,0)}, s[{S_WS}:{S_WS+3}], s4 offen {OPT["ld_part"]}')
        A(f'buffer_load_dwordx2 v[{R(i,4)}:{R(i,5)}], v{R(i,1)}, s[{S_M}:{S_M+3}], 0 offen')
else:
    assert NE == 2 and not OPT['tab']
    A('s_lshl_b32 s3, s2, 8')
    VB = 2
    PQ, MQ, OQ, SC = 84, 100, 104, 8
    def R(i, n):
        if 32 <= n < 40: return PQ + ((n - 32) // 2) * 4 + 2 * i + (n & 1)
        if n in (4, 5): return MQ + 2 * i + (n - 4)
        if n in (30, 31): return OQ + 2 * i + (n - 30)
        if 6 <= n < 10: return VB + n
        return VB + 40 * i + n
    e, t = R(0, 1), R(0, 2)
    A(f'v_add_u32 v{e}, s3, v0')
    A(f'v_lshlrev_b32 v{R(0,3)}, 2, v{e}')
    A(f'v_min_u32 v{t}, {E//2-1}, v{e}')
    A(f'v_lshlrev_b32 v{R(0,0)}, 4, v{t}')
    A(f'v_lshlrev_b32 v{t}, 1, v{t}')
    A(f'v_mul_hi_u32_u24 v{t}, {MAGIC_DIV:#x}, v{t}')
    A(f'v_lshlrev_b32 v{t}, 4, v{t}')
    A(f'v_lshlrev_b32 v{e}, 4, v{e}')
    A('s_waitcnt lgkmcnt(0)')
    srd(S_DIST, 8, E * 2)
    A(f'buffer_load_dword v{R(0,3)}, v{R(0,3)}, s[{S_DIST}:{S_DIST+3}], 0 offen')
    A('s_load_dwordx4 s[28:31], s[28:29], 0')
    A('s_load_dwordx16 s[32:47], s[64:65], 0')
    A('s_load_dwordx16 s[48:63], s[66:67], 0')
    A('s_load_dwordx8 s[72:79], s[70:71], 0')
    A('s_load_dwordx8 s[64:71], s[68:69], 0')
    srd(S_WS, 6, WS_BYTES); srd(S_M, 4, E * 8); srd(S_O, 10, E * 8)
    for p in range(4):
        A(f's_mov_b32 s4, {PART_BASE + p*E*8:#x}')
        A(f'buffer_load_dwordx4 v[{PQ+4*p}:{PQ+4*p+3}], v{R(0,0)}, s[{S_WS}:{S_WS+3}], s4 offen {OPT["ld_part"]}')
    A(f's_mov_b32 s4, {SCL_BASE:#x}')
    A(f'buffer_load_dwordx4 v[{SC}:{SC+3}], v{t}, s[{S_WS}:{S_WS+3}], s4 offen')
    A(f'buffer_load_dwordx4 v[{MQ}:{MQ+3}], v{e}, s[{S_M}:{S_M+3}], 0 offen')
A('s_mov_b32 s5, 0xffff0000')
A(f's_mov_b32 s8, {f32bits(-10.0):#x}')
A(f's_mov_b32 s9, {f32bits(math.log2(math.e)):#x}')
def sw(base, idx, dst):
    sr = base + idx // 2
    if idx & 1: A(f's_and_b32 s{dst}, s{sr}, 0xffff0000')
    else: A(f's_lshl_b32 s{dst}, s{sr}, 16')
def spk(base, r, d, dst):
    op = 's_pack_hh_b32_b16' if d & 1 else 's_pack_ll_b32_b16'
    A(f'{op} s{dst}, s{base + r*2 + d//2}, s{base + (r+1)*2 + d//2}')
def unp(a, b, t):
    A(f'v_lshlrev_b32 v{a}, 16, v{t}')
    A(f'v_and_b32 v{b}, s5, v{t}')
def rnd2(a, b, t):
    A(f'v_cvt_pk_bf16_f32 v{t}, v{a}, v{b}')
    unp(a, b, t)
if not OPT['tab']:
    if OPT['adj']:
        A('s_waitcnt vmcnt(6) lgkmcnt(0)')
        A(f'v_and_b32 v{R(1,3)}, s5, v{R(0,3)}')
        A(f'v_lshlrev_b32 v{R(0,3)}, 16, v{R(0,3)}')
    else:
        A(f's_waitcnt vmcnt({6*NE}) lgkmcnt(0)')
        for i in range(NE): A(f'v_lshlrev_b32 v{R(i,3)}, 16, v{R(i,3)}')
    for r in range(0, 8, 2):
        sw(28, r, 6); sw(28, r + 1, 7)
        for i in range(NE):
            a_, b_, t = R(i, 14), R(i, 15), R(i, 2)
            A(f'v_subrev_f32 v{a_}, s6, v{R(i,3)}')
            A(f'v_subrev_f32 v{b_}, s7, v{R(i,3)}')
            rnd2(a_, b_, t)
            A(f'v_mul_f32 v{a_}, v{a_}, v{a_}')
            A(f'v_mul_f32 v{b_}, v{b_}, v{b_}')
            rnd2(a_, b_, t)
            A(f'v_mul_f32 v{a_}, s8, v{a_}')
            A(f'v_mul_f32 v{b_}, s8, v{b_}')
            rnd2(a_, b_, t)
            A(f'v_mul_f32 v{a_}, s9, v{a_}')
            A(f'v_mul_f32 v{b_}, s9, v{b_}')
            A(f'v_exp_f32 v{a_}, v{a_}')
            A(f'v_exp_f32 v{b_}, v{b_}')
            A('s_nop 0')
            A(f'v_cvt_pk_bf16_f32 v{R(i,18+r//2)}, v{a_}, v{b_}')
    for r in range(0, 8, 2):
        for base, dst in ((48, 22), (32, 26)):
            for d in range(4):
                spk(base, r, d, 6 + (d & 1))
                for i in range(NE):
                    c = '0' if r == 0 else f'v{R(i,dst+d)}'
                    A(f'v_dot2_f32_bf16 v{R(i,dst+d)}, v{R(i,18+r//2)}, s{6+(d&1)}, {c}')
    A('s_nop 2')
    for i in range(NE):
        rnd2(R(i,26), R(i,27), R(i,2)); rnd2(R(i,28), R(i,29), R(i,2))
else:
    A(f's_waitcnt vmcnt({6*NE})')
    A(f's_mov_b32 s4, {TAB_BASE:#x}')
    for i in range(NE):
        A(f'v_lshlrev_b32 v{R(i,3)}, 5, v{R(i,3)}')
        A(f'buffer_load_dwordx4 v[{R(i,22)}:{R(i,25)}], v{R(i,3)}, s[{S_WS}:{S_WS+3}], s4 offen')
        A(f'buffer_load_dwordx2 v[{R(i,20)}:{R(i,21)}], v{R(i,3)}, s[{S_WS}:{S_WS+3}], s4 offen offset:16')
A(f's_waitcnt vmcnt({2*NE}) lgkmcnt(0)' if OPT['tab'] else 's_waitcnt vmcnt(0)')
for i in range(NE):
    for p in range(4):
        for d in range(4):
            c = '0' if p == 0 else f'v{R(i,14+d)}'
            A(f'v_fma_mix_f32 v{R(i,14+d)}, v{R(i,32+2*p+d//2)}, v{R(i,6+p)}, {c} op_sel:[{d&1},0,0] op_sel_hi:[1,0,0]')
assert NE == 1
A(f'v_or_b32 v{R(0,2)}, v{R(0,6)}, v{R(0,7)}')
A(f'v_or3_b32 v{R(0,2)}, v{R(0,8)}, v{R(0,9)}, v{R(0,2)}')
A(f'v_cmp_gt_i32 vcc, 0, v{R(0,2)}')
A('s_cbranch_vccnz F_P32')
L('F_BACK')
for k in range(4):
    for d in range(4):
        sw(64, k*4 + d, 6 + (d & 1))
        for i in range(NE):
            if k == 0: A(f'v_mul_f32 v{R(i,10+d)}, s{6+(d&1)}, v{R(i,14+k)}')
            else: A(f'v_fmac_f32 v{R(i,10+d)}, s{6+(d&1)}, v{R(i,14+k)}')
if OPT['tab']:
    A('s_waitcnt vmcnt(0)')
    for i in range(NE):
        unp(R(i,26), R(i,27), R(i,20)); unp(R(i,28), R(i,29), R(i,21))
for i in range(NE):
    for d in range(4):
        A(f'v_mul_f32 v{R(i,10+d)}, v{R(i,10+d)}, v{R(i,22+d)}')
    A(f'v_cvt_pk_bf16_f32 v{R(i,18)}, v{R(i,10)}, v{R(i,11)}')
    A(f'v_cvt_pk_bf16_f32 v{R(i,19)}, v{R(i,12)}, v{R(i,13)}')
for k in (0, 2):
    for d in range(4):
        spk(72, k, d, 6 + (d & 1))
        for i in range(NE):
            c = '0' if k == 0 else f'v{R(i,22+d)}'
            A(f'v_dot2_f32_bf16 v{R(i,22+d)}, v{R(i,18+k//2)}, s{6+(d&1)}, {c}')
for i in range(NE):
    unp(R(i,10), R(i,11), R(i,4)); unp(R(i,12), R(i,13), R(i,5))
A('s_nop 0')
for i in range(NE):
    rnd2(R(i,22), R(i,23), R(i,2)); rnd2(R(i,24), R(i,25), R(i,2))
    for d in range(4):
        A(f'v_mul_f32 v{R(i,22+d)}, v{R(i,22+d)}, v{R(i,26+d)}')
    rnd2(R(i,22), R(i,23), R(i,2)); rnd2(R(i,24), R(i,25), R(i,2))
    for d in range(4):
        A(f'v_add_f32 v{R(i,22+d)}, v{R(i,22+d)}, v{R(i,10+d)}')
    A(f'v_cvt_pk_bf16_f32 v{R(i,30)}, v{R(i,22)}, v{R(i,23)}')
    A(f'v_cvt_pk_bf16_f32 v{R(i,31)}, v{R(i,24)}, v{R(i,25)}')
    if not OPT['adj']: A(f'buffer_store_dwordx2 v[{R(i,30)}:{R(i,31)}], v{R(i,1)}, s[{S_O}:{S_O+3}], 0 offen {OPT["st_out"]}')
if OPT['adj']: A(f'buffer_store_dwordx4 v[{OQ}:{OQ+3}], v{R(0,1)}, s[{S_O}:{S_O+3}], 0 offen {OPT["st_out"]}')
L('F_END')
A('s_endpgm')
L('F_P32')
A(f'v_lshlrev_b32 v{R(0,2)}, 1, v{R(0,0)}')
for p in range(4):
    A(f'v_cmp_gt_i32 vcc, 0, v{R(0,6+p)}')
    A(f's_mov_b32 s4, {P32_BASE + p*E*16:#x}')
    A('s_mov_b64 exec, vcc')
    A(f'buffer_load_dwordx4 v[{R(0,32)}:{R(0,35)}], v{R(0,2)}, s[{S_WS}:{S_WS+3}], s4 offen')
    A('s_waitcnt vmcnt(0)')
    for d in range(4): A(f'v_add_f32 v{R(0,14+d)}, v{R(0,14+d)}, v{R(0,32+d)}')
    A('s_mov_b64 exec, -1')
A('s_branch F_BACK')
L('CODE_END')

out.append('.section .rodata,"a"')
for name, vg, sg in (('part_kernel', 128, 102), ('acc_kernel', 128, 102), ('fin_kernel', 108 if OPT['adj'] else 4 + 40*OPT['ne'], 80)):
    out.append('.p2align 6')
    out.append(f'.amdhsa_kernel {name}')
    out.append(f'  .amdhsa_next_free_vgpr {vg}')
    out.append(f'  .amdhsa_next_free_sgpr {sg}')
    out.append(f'  .amdhsa_accum_offset {vg}')
    out.append('  .amdhsa_group_segment_fixed_size 0')
    out.append('  .amdhsa_kernarg_size 112')
    out.append('  .amdhsa_user_sgpr_count 2')
    out.append('  .amdhsa_user_sgpr_kernarg_segment_ptr 1')
    out.append('  .amdhsa_system_sgpr_workgroup_id_x 1')
    out.append('  .amdhsa_float_denorm_mode_32 3')
    out.append('.end_amdhsa_kernel')
open(sys.argv[1], 'w').write('\n'.join(out) + '\n')
```
